```python
import torch

def _softmax(x, axis=-1):
    return torch.softmax(x, dim=axis)

def _gelu(x):
    return torch.nn.functional.gelu(x, approximate='tanh')

def _silu(x):
    return torch.nn.functional.silu(x)

def _sigmoid(x):
    return torch.sigmoid(x)

def _layernorm(x, axis=-1, eps=1e-05):
    m = x.mean(dim=axis, keepdim=True)
    v = x.var(dim=axis, keepdim=True, unbiased=False)
    return (x - m) / torch.sqrt(v + eps)

def _scatter_add(tgt, idx, src, axis=0):
    return tgt.clone().index_add_(axis, idx, src)

def _segment_sum(src, seg, n):
    out = torch.zeros((n,) + src.shape[1:], dtype=src.dtype)
    return out.index_add_(0, seg, src)

def _pad(x, pw):
    flat = tuple((v for pair in reversed(pw) for v in pair))
    return torch.nn.functional.pad(x, flat)
kernel_name = 'concat_heads__memory_aug_recurrent_mem_tr__ssm_conv_s4d__prompt'

def setup_inputs():

    _w = lambda a: (lambda t: t.to(torch.bfloat16) if t.is_floating_point() else t)(torch.as_tensor(a))

    def _A_setup():
        B, S, Dm = (1, 2048, 576)
        H, Dh = (32, 128)
        M, seg = (8, 32)
        seg = min(seg, S)
        S = S // seg * seg
        return {'x': _w((lambda *s: torch.randn(*s, dtype=torch.bfloat16) * 0.05)(B, S, Dm)), 'mem0': _w((lambda *s: torch.randn(*s, dtype=torch.bfloat16) * 0.4)(B, M, Dm)), 'Wq': _w((lambda *s: torch.randn(*s, dtype=torch.bfloat16) * 6.4)(Dm, H, Dh) * Dm ** (-0.5)), 'Wk': _w((lambda *s: torch.randn(*s, dtype=torch.bfloat16) * 6.4)(Dm, H, Dh) * Dm ** (-0.5)), 'Wv': _w((lambda *s: torch.randn(*s, dtype=torch.bfloat16) * 0.4)(Dm, H, Dh) * Dm ** (-0.5)), 'Wo': _w((lambda *s: torch.randn(*s, dtype=torch.bfloat16) * 0.4)(H, Dh, Dm) * (H * Dh) ** (-0.5)), 'seg_len': seg}
    _A_in = _A_setup()

    def _B_setup():
        Bsz, L, D, N = (1, 2048, 576, 128)
        return {'u': _w((lambda *s: torch.randn(*s, dtype=torch.bfloat16) * 0.05)(Bsz, L, D)), 'log_A_real': _w((lambda *s: torch.randn(*s, dtype=torch.bfloat16) * 3.2)(D, N) * 0.5), 'A_imag': _w((lambda *s: torch.randn(*s, dtype=torch.bfloat16) * 0.05)(D, N) * 3.14), 'C_real': _w((lambda *s: torch.randn(*s, dtype=torch.bfloat16) * 0.4)(D, N) / N ** 0.5), 'C_imag': _w((lambda *s: torch.randn(*s, dtype=torch.bfloat16) * 0.4)(D, N) / N ** 0.5), 'log_dt': _w((lambda *s: torch.randn(*s, dtype=torch.bfloat16) * 0.05)(D) * 0.5 - 4.0), 'D_skip': _w((lambda *s: torch.randn(*s, dtype=torch.bfloat16) * 0.05)(D))}
    _B_in = _B_setup()
    return {'A_x': _A_in['x'], 'A_mem0': _A_in['mem0'], 'A_Wq': _A_in['Wq'], 'A_Wk': _A_in['Wk'], 'A_Wv': _A_in['Wv'], 'A_Wo': _A_in['Wo'], 'A_seg_len': _A_in['seg_len'], 'B_u': _B_in['u'], 'B_log_A_real': _B_in['log_A_real'], 'B_A_imag': _B_in['A_imag'], 'B_C_real': _B_in['C_real'], 'B_C_imag': _B_in['C_imag'], 'B_log_dt': _B_in['log_dt'], 'B_D_skip': _B_in['D_skip']}

def reference(A_x, A_mem0, A_Wq, A_Wk, A_Wv, A_Wo, A_seg_len, B_u, B_log_A_real, B_A_imag, B_C_real, B_C_imag, B_log_dt, B_D_skip):

    def _A_ref(x, mem0, Wq, Wk, Wv, Wo, seg_len):
        B, S, Dm = x.shape
        H, Dh = (Wq.shape[1], Wq.shape[2])
        M = mem0.shape[1]
        scale = Dh ** (-0.5)
        n_seg = S // seg_len
        L = M + seg_len
        idx = torch.arange(L)
        mask = (idx[:, None] < M) | (idx[:, None] >= idx[None, :])
        mem = mem0
        outs = []
        for s in range(n_seg):
            xs = x[:, s * seg_len:(s + 1) * seg_len, :].clone()
            h = torch.concatenate([mem, xs], axis=1)
            q = torch.einsum('btd,dhe->bhte', h, Wq)
            k = torch.einsum('btd,dhe->bhte', h, Wk)
            v = torch.einsum('btd,dhe->bhte', h, Wv)
            scores = torch.einsum('bhqe,bhke->bhqk', q, k) * scale
            scores = torch.where(mask[None, None], scores, -1000000000.0)
            p = _softmax(scores, axis=-1)
            o = torch.einsum('bhqk,bhke->bhqe', p, v)
            o = torch.einsum('bhte,hed->btd', o, Wo)
            mem = o[:, :M, :].clone()
            outs.append(o[:, M:, :])
        return torch.concatenate(outs, axis=1)

    def _B_ref(u, log_A_real, A_imag, C_real, C_imag, log_dt, D_skip):
        L = u.shape[1]
        dt = torch.exp(log_dt)
        A = -torch.exp(log_A_real) + 1j * A_imag
        C = (C_real + 1j * C_imag) * dt[:, None]
        pos = (lambda x, dt: x.to(dt))(torch.arange(L), log_dt.dtype)
        P = torch.exp((A * dt[:, None])[:, :, None] * pos[None, None, :])
        K = 2.0 * torch.einsum('dn,dnl->dl', C, P).real
        L2 = 2 * L
        u_t = (lambda x, *d: x.permute(*d))(u, 0, 2, 1)
        Kf = (lambda x, *a, **k: torch.fft.rfft(x.float(), *a, **k))(K, L2)
        Uf = (lambda x, *a, **k: torch.fft.rfft(x.float(), *a, **k))(u_t, L2)
        y = (lambda x, *a, **k: torch.fft.irfft(x, *a, **k).to(torch.bfloat16))(Uf * Kf[None, :, :], L2)[:, :, :L]
        y = (lambda x, *d: x.permute(*d))(y, 0, 2, 1)
        return y + u * D_skip[None, None, :]
    a = _A_ref(A_x, A_mem0, A_Wq, A_Wk, A_Wv, A_Wo, A_seg_len)
    b = _B_ref(B_u, B_log_A_real, B_A_imag, B_C_real, B_C_imag, B_log_dt, B_D_skip)
    return torch.concatenate([a, b], axis=-1)
```

```python
import re

def _regs(tok):
    tok = tok.strip()
    m = re.fullmatch(r'-?\|?([vas])\[(\d+):(\d+)\]\|?', tok)
    if m:
        return [(m.group(1), i) for i in range(int(m.group(2)), int(m.group(3)) + 1)]
    m = re.fullmatch(r'-?\|?([vas])(\d+)\|?', tok)
    if m:
        return [(m.group(1), int(m.group(2)))]
    m = re.fullmatch(r'-?abs\(([vas])(\d+)\)', tok)
    if m:
        return [(m.group(1), int(m.group(2)))]
    if tok == 'vcc':
        return [('s', 'vcc')]
    if tok == 'exec':
        return [('s', 'exec')]
    return []

def R(base, n=1, k='v'):
    return f'{k}{base}' if n == 1 else f'{k}[{base}:{base+n-1}]'

TRANS = ('v_exp_f32', 'v_log_f32', 'v_rcp_f32', 'v_rsq_f32', 'v_sqrt_f32', 'v_sin_f32', 'v_cos_f32')

class Asm:
    def __init__(self):
        self.lines = []
        self.pos = 0
        self.last = {}
        self.mfma_c_read = {}
        self.store_data = {}
        self.lds_seq = 0
        self.vm_seq = 0
        self.nops_inserted = 0

    def start_prof(self, base, stride, n):
        self._prof = [base, stride, n, 0, len(self.lines)]
    def finish_prof(self):
        if not getattr(self, '_prof', None): return
        base, stride, n, _, start = self._prof
        out = self.lines[:start]; k = 0; cnt = 0
        for ln in self.lines[start:]:
            if k < n and cnt % stride == 0 and ln.startswith('    ') and not ln.startswith('    ;'):
                out.append(f'    s_memtime s[{base+2*k}:{base+2*k+1}]   ; PROF {k}'); k += 1
            if ln.startswith('    '): cnt += 1
            out.append(ln)
        self.lines = out; self._prof = None

    def raw(self, s):
        self.lines.append(s)
    def comment(self, s):
        self.lines.append('    ; ' + s)
    def label(self, name):
        self.lines.append(name + ':')
    def fence(self, n=None):
        need = 0
        for r, (p, kind, extra) in self.last.items():
            if kind == 'mfma':
                w = {2: 5, 4: 8, 8: 12, 16: 20}[extra]
            elif kind == 'valu' or kind == 'trans':
                w = 5 if r[0] == 's' else 2
            else:
                w = 0
            need = max(need, w - (self.pos - p - 1))
        for r, (p, passes) in self.mfma_c_read.items():
            need = max(need, {2: 1, 4: 3, 8: 7, 16: 15}[passes] - (self.pos - p - 1))
        for r, p in self.store_data.items():
            need = max(need, 2 - (self.pos - p - 1))
        if need > 0:
            self.nop(need)
    def nop(self, n):
        while n > 0:
            k = min(n, 16)
            self.lines.append(f'    s_nop {k-1}')
            self.pos += k
            self.nops_inserted += k
            n -= k

    def _need(self, reg, states):
        pass

    def _emit(self, text, reads, writes, kind, passes=0, cls=None):
        need = 0
        def dist(p):
            return self.pos - p - 1
        for r in reads:
            if r in self.last:
                p, k, ex = self.last[r]
                w = 0
                if k == 'mfma':
                    if kind == 'mfma':
                        w = None
                    else:
                        w = {2: 5, 4: 8, 8: 12, 16: 20}[ex]
                elif k in ('valu', 'trans'):
                    if r[0] == 's':
                        if kind in ('valu', 'trans', 'mfma'):
                            w = 2
                            if cls == 'readlane': w = 4
                            if r[1] == 'exec':
                                w = 4 if kind == 'mfma' or cls in ('readlane', 'permlane') else (5 if cls == 'dpp' else 0)
                        elif kind in ('vmem',):
                            w = 5
                        else:
                            w = 1 if kind == 'salu' else 0
                    else:
                        if kind == 'mfma': w = 2
                        elif cls in ('permlane', 'dpp'): w = 2
                        elif cls == 'readlane': w = 1
                        elif k == 'trans' and kind == 'valu': w = 1
                if w:
                    need = max(need, w - dist(p))
        for r in writes:
            if r in self.last:
                p, k, ex = self.last[r]
                if k == 'mfma' and kind != 'mfma':
                    need = max(need, {2: 5, 4: 8, 8: 12, 16: 20}[ex] - dist(p))
            if r in self.mfma_c_read and kind in ('valu', 'trans'):
                p, ps = self.mfma_c_read[r]
                need = max(need, {2: 1, 4: 3, 8: 7, 16: 15}[ps] - dist(p))
            if r in self.store_data:
                need = max(need, 2 - dist(self.store_data[r]))
        return need

    def _commit(self, text, writes, kind, passes=0):
        self.lines.append('    ' + text)
        for r in writes:
            self.last[r] = (self.pos, kind, passes)
        self.pos += 1

    def valu(self, op, dst, *srcs, mods='', rmw=False, extra_w=(), extra_r=()):
        kind = 'trans' if op in TRANS else 'valu'
        cls = None
        if op.startswith('v_permlane'): cls = 'permlane'
        if 'dpp' in op or 'row_' in mods or 'quad_perm' in mods: cls = 'dpp'
        if op in ('v_readfirstlane_b32', 'v_readlane_b32'): cls = 'readlane'
        writes = _regs(dst)
        reads = []
        for s in srcs: reads += _regs(str(s))
        if cls == 'permlane':
            writes = writes + _regs(srcs[0]); reads = reads + _regs(dst)
        if rmw or op.startswith('v_fmac') or op.startswith('v_dot2c'): reads += _regs(dst)
        if op.startswith('v_cndmask') and len(srcs) == 2: reads.append(('s', 'vcc'))
        for e in extra_w: writes += _regs(e)
        for e in extra_r: reads += _regs(e)
        reads.append(('s', 'exec'))
        text = f"{op} {dst}, " + ', '.join(str(s) for s in srcs) + (' ' + mods if mods else '')
        n = self._emit(text, reads, writes, kind, cls=cls)
        if n > 0: self.nop(n)
        self._commit(text, writes, kind)

    def mfma(self, op, d, a, b, c=None, passes=4, mods=''):
        sparse = 'smfmac' in op
        D = _regs(d); A = _regs(a); B = _regs(b)
        C = D if sparse else _regs(str(c))
        idx = _regs(c) if sparse else []
        text = f"{op} {d}, {a}, {b}, {c}" + (' ' + mods if mods else '')
        need = self._emit(text, A + B + C + idx + [('s', 'exec')], D, 'mfma')
        def dist(p): return self.pos - p - 1
        for r in A + B + idx:
            if r in self.last and self.last[r][1] == 'mfma':
                p, k, ex = self.last[r]
                need = max(need, {2: 5, 4: 8, 8: 12, 16: 20}[ex] - dist(p))
        if C:
            same = all((r in self.last and self.last[r][1] == 'mfma' and self.last[r][0] == self.last[C[0]][0] and self.last[r][2] == passes) for r in C) and getattr(self, '_mf_shape', {}).get(self.last[C[0]][0]) == (op, tuple(C))
            for r in C:
                if r in self.last and self.last[r][1] == 'mfma':
                    p, k, ex = self.last[r]
                    if same:
                        w = 2 if ex == 2 else 0
                    else:
                        w = {2: 4, 4: 6, 8: 10, 16: 18}[ex]
                    need = max(need, w - dist(p))
        for r in D:
            if r not in C and r in self.last and self.last[r][1] == 'mfma':
                p, k, ex = self.last[r]
                need = max(need, {2: 4, 4: 6, 8: 10, 16: 18}[ex] - dist(p))
        if need > 0: self.nop(need)
        if not hasattr(self, '_mf_shape'): self._mf_shape = {}
        self._mf_shape[self.pos] = (op, tuple(D))
        for r in C: self.mfma_c_read[r] = (self.pos, passes)
        self._commit(text, D, 'mfma', passes)

    def salu(self, op, dst, *srcs, nodst=False):
        writes = [] if nodst else _regs(dst)
        reads = (_regs(dst) if nodst else [])
        for s in srcs: reads += _regs(str(s))
        text = f"{op} {dst}" + (', ' + ', '.join(str(s) for s in srcs) if srcs else '')
        n = self._emit(text, reads, writes, 'salu')
        if n > 0: self.nop(n)
        self._commit(text, writes, 'salu')

    def ins(self, text):
        self.lines.append('    ' + text)
        self.pos += 1

    def vmem(self, op, *ops, mods='', load=True, data=None):
        text = f"{op} " + ', '.join(str(o) for o in ops) + (' ' + mods if mods else '')
        if load:
            writes = _regs(ops[0]); reads = []
            for o in ops[1:]: reads += _regs(str(o))
        else:
            writes = []; reads = []
            for o in ops: reads += _regs(str(o))
        reads.append(('s', 'exec'))
        n = self._emit(text, reads, writes, 'vmem')
        if n > 0: self.nop(n)
        if not load and data is not None and len(_regs(data)) >= 3:
            for r in _regs(data): self.store_data[r] = self.pos
        self._commit(text, writes, 'load')
        if load:
            self.vm_seq += 1
        return self.vm_seq

    def ds(self, op, *ops, mods=''):
        load = 'read' in op or 'permute' in op or 'swizzle' in op
        text = f"{op} " + ', '.join(str(o) for o in ops) + (' ' + mods if mods else '')
        if load:
            writes = _regs(ops[0]); reads = []
            for o in ops[1:]: reads += _regs(str(o))
        else:
            writes = []; reads = []
            for o in ops: reads += _regs(str(o))
        n = self._emit(text, reads, writes, 'ds')
        if n > 0: self.nop(n)
        self._commit(text, writes, 'load')
        self.lds_seq += 1
        return self.lds_seq

    def wait(self, vm=None, lds=None):
        parts = []
        if vm is not None:
            n = 0 if vm == 'all' else self.vm_seq - vm
            parts.append(f'vmcnt({min(n, 63)})')
        if lds is not None:
            n = 0 if lds == 'all' else self.lds_seq - lds
            parts.append(f'lgkmcnt({min(n, 15)})')
        self.ins('s_waitcnt ' + ' '.join(parts))

    def text(self):
        self.finish_prof()
        return '\n'.join(self.lines) + '\n'
```

```python
import re

def _regs(tok):
    tok = tok.strip()
    m = re.fullmatch(r'-?\|?([vas])\[(\d+):(\d+)\]\|?', tok)
    if m:
        return [(m.group(1), i) for i in range(int(m.group(2)), int(m.group(3)) + 1)]
    m = re.fullmatch(r'-?\|?([vas])(\d+)\|?', tok)
    if m:
        return [(m.group(1), int(m.group(2)))]
    m = re.fullmatch(r'-?abs\(([vas])(\d+)\)', tok)
    if m:
        return [(m.group(1), int(m.group(2)))]
    if tok == 'vcc':
        return [('s', 'vcc')]
    if tok == 'exec':
        return [('s', 'exec')]
    return []

def R(base, n=1, k='v'):
    return f'{k}{base}' if n == 1 else f'{k}[{base}:{base+n-1}]'

TRANS = ('v_exp_f32', 'v_log_f32', 'v_rcp_f32', 'v_rsq_f32', 'v_sqrt_f32', 'v_sin_f32', 'v_cos_f32')

class Asm:
    def __init__(self):
        self.lines = []
        self.pos = 0
        self.last = {}
        self.mfma_c_read = {}
        self.store_data = {}
        self.lds_seq = 0
        self.vm_seq = 0
        self.nops_inserted = 0
        self.pend = {}
        self.done = {'lds': 0, 'vm': 0}
        self.auto = True; self.auto_log = []
        self.mf_pos = -99
        self.mf_free = -99

    def start_prof(self, base, stride, n, skip=0):
        self._prof = [base, stride, n, skip, len(self.lines)]
    def finish_prof(self):
        if not getattr(self, '_prof', None): return
        base, stride, n, skip, start = self._prof
        out = self.lines[:start]; k = 0; cnt = -skip
        for ln in self.lines[start:]:
            if k < n and cnt >= 0 and cnt % stride == 0 and ln.startswith('    ') and not ln.startswith('    ;'):
                out.append(f'    s_memtime s[{base+2*k}:{base+2*k+1}]   ; PROF {k}'); k += 1
            if ln.startswith('    '): cnt += 1
            out.append(ln)
        self.lines = out; self._prof = None

    def raw(self, s):
        self.lines.append(s)
    def comment(self, s):
        self.lines.append('    ; ' + s)
    def label(self, name):
        self.mf_free = -99
        self.lines.append(name + ':')
    def _autowait(self, regs, text):
        if not self.auto: return
        need = {}
        for r in regs:
            if r in self.pend:
                k, q = self.pend[r]
                if q > self.done[k]: need[k] = max(need.get(k, 0), q)
        if need:
            self.auto_log.append(text)
            self.wait(vm=need.get('vm'), lds=need.get('lds'))
    def nowait(self, tok):
        for r in _regs(tok): self.pend.pop(r, None)
    def forget(self):
        self.pend = {}
        self.last = {}; self.mfma_c_read = {}; self.store_data = {}; self.mf_free = -99
    def fence(self, n=None):
        need = 0
        for r, (p, kind, extra) in self.last.items():
            if kind == 'mfma':
                w = {2: 5, 4: 8, 8: 12, 16: 20}[extra]
            elif kind == 'valu' or kind == 'trans':
                w = 5 if r[0] == 's' else 2
            else:
                w = 0
            need = max(need, w - (self.pos - p - 1))
        for r, (p, passes) in self.mfma_c_read.items():
            need = max(need, {2: 1, 4: 3, 8: 7, 16: 15}[passes] - (self.pos - p - 1))
        for r, p in self.store_data.items():
            need = max(need, 2 - (self.pos - p - 1))
        if need > 0:
            self.nop(need)
    def nop(self, n):
        while n > 0:
            k = min(n, 16)
            self.lines.append(f'    s_nop {k-1}')
            self.pos += k
            self.nops_inserted += k
            n -= k

    def _need(self, reg, states):
        pass

    def _emit(self, text, reads, writes, kind, passes=0, cls=None):
        need = 0
        def dist(p):
            return self.pos - p - 1
        for r in reads:
            if r in self.last:
                p, k, ex = self.last[r]
                w = 0
                if k == 'mfma':
                    if kind == 'mfma':
                        w = None
                    else:
                        w = {2: 5, 4: 8, 8: 12, 16: 20}[ex]
                elif k in ('valu', 'trans'):
                    if r[0] == 's':
                        if kind in ('valu', 'trans', 'mfma'):
                            w = 2
                            if cls == 'readlane': w = 4
                            if r[1] == 'exec':
                                w = 4 if kind == 'mfma' or cls in ('readlane', 'permlane') else (5 if cls == 'dpp' else 0)
                        elif kind in ('vmem',):
                            w = 5
                        else:
                            w = 1 if kind == 'salu' else 0
                    else:
                        if kind == 'mfma': w = 2
                        elif cls in ('permlane', 'dpp'): w = 2
                        elif cls == 'readlane': w = 1
                        elif k == 'trans' and kind == 'valu': w = 1
                if w:
                    need = max(need, w - dist(p))
        for r in writes:
            if r in self.last:
                p, k, ex = self.last[r]
                if k == 'mfma' and kind != 'mfma':
                    need = max(need, {2: 5, 4: 8, 8: 12, 16: 20}[ex] - dist(p))
            if r in self.mfma_c_read and kind in ('valu', 'trans'):
                p, ps = self.mfma_c_read[r]
                need = max(need, {2: 1, 4: 3, 8: 7, 16: 15}[ps] - dist(p))
            if r in self.store_data:
                need = max(need, 2 - dist(self.store_data[r]))
        return need

    def _commit(self, text, writes, kind, passes=0):
        self.lines.append('    ' + text)
        for r in writes:
            self.last[r] = (self.pos, kind, passes)
        self.pos += 1

    def valu(self, op, dst, *srcs, mods='', rmw=False, extra_w=(), extra_r=()):
        kind = 'trans' if op in TRANS else 'valu'
        cls = None
        if op.startswith('v_permlane'): cls = 'permlane'
        if 'dpp' in op or 'row_' in mods or 'quad_perm' in mods: cls = 'dpp'
        if op in ('v_readfirstlane_b32', 'v_readlane_b32'): cls = 'readlane'
        writes = _regs(dst)
        reads = []
        for s in srcs: reads += _regs(str(s))
        if cls == 'permlane':
            writes = writes + _regs(srcs[0]); reads = reads + _regs(dst)
        if rmw or op.startswith('v_fmac') or op.startswith('v_dot2c'): reads += _regs(dst)
        if op.startswith('v_cndmask') and len(srcs) == 2: reads.append(('s', 'vcc'))
        for e in extra_w: writes += _regs(e)
        for e in extra_r: reads += _regs(e)
        reads.append(('s', 'exec'))
        text = f"{op} {dst}, " + ', '.join(str(s) for s in srcs) + (' ' + mods if mods else '')
        self._autowait(reads + writes, text)
        n = self._emit(text, reads, writes, kind, cls=cls)
        if n > 0: self.nop(n)
        self._commit(text, writes, kind)

    def mfma(self, op, d, a, b, c=None, passes=4, mods=''):
        sparse = 'smfmac' in op
        D = _regs(d); A = _regs(a); B = _regs(b)
        C = D if sparse else _regs(str(c))
        idx = _regs(c) if sparse else []
        text = f"{op} {d}, {a}, {b}, {c}" + (' ' + mods if mods else '')
        self._autowait(A + B + C + D + idx, text)
        def needs():
            res = [0, 0]
            def upd(p, w):
                k = 0 if p <= self.mf_pos else 1
                res[k] = max(res[k], w - (self.pos - p - 1))
            for r in A + B + C + idx + [('s', 'exec')]:
                if r in self.last and self.last[r][1] in ('valu', 'trans'):
                    upd(self.last[r][0], 4 if r == ('s', 'exec') else 2)
            for r in D:
                if r in self.store_data: upd(self.store_data[r], 2)
            for r in A + B + idx:
                if r in self.last and self.last[r][1] == 'mfma':
                    p, k, ex = self.last[r]; upd(p, {2: 5, 4: 8, 8: 12, 16: 20}[ex])
            if C:
                same = all((r in self.last and self.last[r][1] == 'mfma' and self.last[r][0] == self.last[C[0]][0] and self.last[r][2] == passes) for r in C) and getattr(self, '_mf_shape', {}).get(self.last[C[0]][0]) == (op, tuple(C))
                for r in C:
                    if r in self.last and self.last[r][1] == 'mfma':
                        p, k, ex = self.last[r]
                        upd(p, (2 if ex == 2 else 0) if same else {2: 4, 4: 6, 8: 10, 16: 18}[ex])
            for r in D:
                if r not in C and r in self.last and self.last[r][1] == 'mfma':
                    p, k, ex = self.last[r]; upd(p, {2: 4, 4: 6, 8: 10, 16: 18}[ex])
            return res
        na, nb = needs()
        if self.pos + na <= self.mf_free: na = 0
        if max(na, nb) > 0: self.nop(max(na, nb))
        if self.pos < self.mf_free:
            sk = self.mf_free - self.pos
            for r, (p, k, e) in list(self.last.items()):
                if p > self.mf_pos: self.last[r] = (p + sk, k, e)
            for r, p in list(self.store_data.items()):
                if p > self.mf_pos: self.store_data[r] = p + sk
            self.pos = self.mf_free
        if not hasattr(self, '_mf_shape'): self._mf_shape = {}
        self._mf_shape[self.pos] = (op, tuple(D))
        for r in C: self.mfma_c_read[r] = (self.pos, passes)
        self.mf_free = self.pos + passes; self.mf_pos = self.pos
        self._commit(text, D, 'mfma', passes)

    def salu(self, op, dst, *srcs, nodst=False):
        writes = [] if nodst else _regs(dst)
        reads = (_regs(dst) if nodst else [])
        for s in srcs: reads += _regs(str(s))
        text = f"{op} {dst}" + (', ' + ', '.join(str(s) for s in srcs) if srcs else '')
        n = self._emit(text, reads, writes, 'salu')
        if n > 0: self.nop(n)
        self._commit(text, writes, 'salu')

    def ins(self, text):
        self.lines.append('    ' + text)
        self.pos += 1
        if text.startswith('s_waitcnt'):
            m = re.search(r'vmcnt\((\d+)\)', text)
            if m: self.done['vm'] = max(self.done['vm'], self.vm_seq - int(m.group(1)))
            m = re.search(r'lgkmcnt\((\d+)\)', text)
            if m: self.done['lds'] = max(self.done['lds'], self.lds_seq - int(m.group(1)))

    def vmem(self, op, *ops, mods='', load=True, data=None):
        text = f"{op} " + ', '.join(str(o) for o in ops) + (' ' + mods if mods else '')
        if load:
            writes = _regs(ops[0]); reads = []
            for o in ops[1:]: reads += _regs(str(o))
        else:
            writes = []; reads = []
            for o in ops: reads += _regs(str(o))
        reads.append(('s', 'exec'))
        self._autowait(reads + [r for r in writes if self.pend.get(r, ('vm',))[0] != 'vm'], text)
        n = self._emit(text, reads, writes, 'vmem')
        if n > 0: self.nop(n)
        if not load and data is not None and len(_regs(data)) >= 3:
            for r in _regs(data): self.store_data[r] = self.pos
        self._commit(text, writes, 'load')
        if load:
            self.vm_seq += 1
            for r in writes: self.pend[r] = ('vm', self.vm_seq)
        return self.vm_seq

    def ds(self, op, *ops, mods=''):
        load = 'read' in op or 'permute' in op or 'swizzle' in op
        text = f"{op} " + ', '.join(str(o) for o in ops) + (' ' + mods if mods else '')
        if load:
            writes = _regs(ops[0]); reads = []
            for o in ops[1:]: reads += _regs(str(o))
        else:
            writes = []; reads = []
            for o in ops: reads += _regs(str(o))
        self._autowait(reads + [r for r in writes if self.pend.get(r, ('lds',))[0] != 'lds'], text)
        n = self._emit(text, reads, writes, 'ds')
        if n > 0: self.nop(n)
        self._commit(text, writes, 'load')
        self.lds_seq += 1
        for r in writes: self.pend[r] = ('lds', self.lds_seq)
        return self.lds_seq

    def wait(self, vm=None, lds=None):
        parts = []
        if vm is not None:
            n = 0 if vm == 'all' else self.vm_seq - vm
            parts.append(f'vmcnt({min(n, 63)})')
        if lds is not None:
            n = 0 if lds == 'all' else self.lds_seq - lds
            parts.append(f'lgkmcnt({min(n, 15)})')
        self.ins('s_waitcnt ' + ' '.join(parts))

    def text(self):
        self.finish_prof()
        return '\n'.join(self.lines) + '\n'
```

```python
from asmfw import Asm, R
import chain2 as C
import qkv2 as Q2

def s(i, n=1): return R(i, n, 's')
def v(i, n=1): return R(i, n, 'v')
MF32 = 'v_mfma_f32_16x16x32_bf16'
MF16 = 'v_mfma_f32_16x16x16_bf16'
SRD_WS = 4
WS_OF = C.WS_O

sSEG, sHh = 16, 17
sT0, sT1, sT2, sT3, sC1 = 18, 19, 20, 21, 22

def attn_job(a: Asm, tag, ld_fl='', st_fl='', mid=None):
    L16, L8, KMA, DD, TMP, NEG = 1, 2, 3, 4, 5, 6
    Q, K, KM, V, VM, S = 8, 40, 72, 88, 120, 136
    PB, ONES, HALF, LS, O = 160, 172, 176, 180, 188
    srd = s(SRD_WS, 4)
    a.valu('v_and_b32', v(TMP), 63, 'v0')
    a.valu('v_lshlrev_b32', v(L16), 4, v(TMP))
    a.valu('v_or_b32', v(KMA), 0x80, v(L16))
    a.valu('v_lshrrev_b32', v(DD), 4, v(TMP))
    a.valu('v_bfe_u32', v(NEG), v(TMP), 2, 2)
    a.valu('v_sub_u32', v(DD), v(NEG), v(DD))
    a.valu('v_lshlrev_b32', v(DD), 3, v(DD))
    a.valu('v_and_b32', v(NEG), 3, v(TMP))
    a.valu('v_add_u32', v(DD), v(DD), v(NEG))
    a.valu('v_mov_b32', v(NEG), '0xf149f2ca')
    a.salu('s_mov_b32', s(sC1), '0x3e0293ee')
    a.salu('s_lshl_b32', s(sT0), s(sSEG), 5)
    a.salu('s_add_u32', s(sT0), s(sT0), s(sHh))
    a.salu('s_lshl_b32', s(sT1), s(sT0), 13)
    tq = {}
    def ld4(dst, base, i):
        a.salu('s_add_u32', s(sT2), s(sT1), base + (i // 4) * 4096)
        return a.vmem('buffer_load_dwordx4', v(dst, 4), v(L16), srd, s(sT2), mods=f'offen offset:{(i%4)*1024} ' + ld_fl)
    for i in range(8): ld4(Q + 4 * i, C.WS_Q, i)
    a.salu('s_lshl_b32', s(sT3), s(sT0), 14)
    def ldkv(dst, j, w):
        a.salu('s_add_u32', s(sT2), s(sT3), C.WS_KV + w * 4096)
        return a.vmem('buffer_load_dwordx4', v(dst, 4), v(L16), srd, s(sT2), mods=f'offen offset:{j*1024} ' + ld_fl)
    for i in range(8): ldkv(K + 4 * i, i // 4, i % 4)
    tk0 = a.vm_seq
    for i in range(8): ldkv(V + 4 * i, 2 + i // 4, i % 4)
    for i in range(4): a.valu('v_mov_b32', v(ONES + i), '0x3f803f80')
    for i in range(2): a.valu('v_mov_b32', v(HALF + i), '0x3f003f00')
    a.wait(vm=tk0)
    def St(xq, kt): return S + (xq * 3 + kt) * 4
    for w in range(4):
        for xq in range(2):
            for kt in range(2):
                d = v(St(xq, kt), 4)
                a.mfma(MF32, d, v(K + (kt * 4 + w) * 4, 4), v(Q + (xq * 4 + w) * 4, 4), 0 if w == 0 else d)
    for xq in range(2):
        for xk in range(2):
            for r in range(4):
                e = 4 * (xk - xq) + r
                a.valu('v_cmp_le_i32', 'vcc', e, v(DD))
                a.valu('v_cndmask_b32', v(St(xq, xk) + r), v(NEG), v(St(xq, xk) + r), 'vcc')
    if mid: mid(a)
    a.salu('s_lshl_b32', s(sT2), s(sT0), 12)
    a.salu('s_add_u32', s(sT2), s(sT2), C.WS_KM)
    for w in range(4):
        tk = a.vmem('buffer_load_dwordx4', v(KM + 4 * w, 4), v(KMA), srd, s(sT2), mods=f'offen offset:{w*1024} ' + ld_fl)
    a.salu('s_lshl_b32', s(sT2), s(sT0), 12)
    a.salu('s_add_u32', s(sT2), s(sT2), C.WS_VM)
    for i in range(4):
        tv = a.vmem('buffer_load_dwordx4', v(VM + 4 * i, 4), v(L16), srd, s(sT2), mods=f'offen offset:{i*1024} ' + ld_fl)
    a.wait(vm=tk)
    for w in range(4):
        for xq in range(2):
            d = v(St(xq, 2), 4)
            a.mfma(MF32, d, v(KM + 4 * w, 4), v(Q + (xq * 4 + w) * 4, 4), 0 if w == 0 else d)
    M1, M2 = 196, 197
    for xq in range(2):
        Sx = [St(xq, 0) + i for i in range(12)]
        a.valu('v_max3_f32', v(M1), v(Sx[0]), v(Sx[1]), v(Sx[2]))
        a.valu('v_max3_f32', v(M2), v(Sx[3]), v(Sx[4]), v(Sx[5]))
        a.valu('v_max3_f32', v(M1), v(M1), v(Sx[6]), v(Sx[7]))
        a.valu('v_max3_f32', v(M2), v(M2), v(Sx[8]), v(Sx[9]))
        a.valu('v_max3_f32', v(M1), v(M1), v(Sx[10]), v(Sx[11]))
        a.valu('v_max_f32', v(M1), v(M1), v(M2))
        a.valu('v_mov_b32', v(M2), v(M1))
        a.valu('v_permlane32_swap_b32', v(M1), v(M2))
        a.valu('v_max_f32', v(M1), v(M1), v(M2))
        a.valu('v_mov_b32', v(M2), v(M1))
        a.valu('v_permlane16_swap_b32', v(M1), v(M2))
        a.valu('v_max_f32', v(M1), v(M1), v(M2))
        a.valu('v_mul_f32', v(M1), s(sC1), v(M1))
        a.valu('v_sub_f32', v(M1), 0, v(M1))
        for i in range(12): a.valu('v_fma_f32', v(Sx[i]), v(Sx[i]), s(sC1), v(M1))
        for i in range(12): a.valu('v_exp_f32', v(Sx[i]), v(Sx[i]))
        for i in range(6): a.valu('v_cvt_pk_bf16_f32', v(PB + xq * 6 + i), v(Sx[2 * i]), v(Sx[2 * i + 1]))
    for xq in range(2):
        a.mfma(MF32, v(LS + xq * 4, 4), v(ONES, 4), v(PB + xq * 6, 4), 0)
    for xq in range(2):
        a.mfma(MF16, v(LS + xq * 4, 4), v(HALF, 2), v(PB + xq * 6 + 4, 2), v(LS + xq * 4, 4))
    for xq in range(2):
        a.valu('v_rcp_f32', v(LS + xq * 4), v(LS + xq * 4))
    a.wait(vm=tv)
    a.salu('s_lshl_b32', s(sT0), s(sSEG), 18)
    a.salu('s_lshl_b32', s(sT1), s(sHh), 12)
    a.salu('s_add_u32', s(sT0), s(sT0), s(sT1))
    a.salu('s_add_u32', s(sT0), s(sT0), WS_OF)
    a.salu('s_add_u32', s(sT1), s(sT0), 131072)
    def Ot(w, xq, tau): return 8 + ((w * 2 + xq) * 2 + tau) * 4
    for w in range(4):
        for xq in range(2):
            for tau in range(2):
                a.mfma(MF32, v(Ot(w, xq, tau), 4), v(V + (tau * 4 + w) * 4, 4), v(PB + xq * 6, 4), 0)
    for w in range(4):
        for xq in range(2):
            for tau in range(2):
                d = v(Ot(w, xq, tau), 4)
                a.mfma(MF16, d, v(VM + w * 4 + tau * 2, 2), v(PB + xq * 6 + 4, 2), d)
    for w in range(4):
        for xq in range(2):
            o0, o1 = Ot(w, xq, 0), Ot(w, xq, 1)
            for r in range(4):
                a.valu('v_mul_f32', v(o0 + r), v(o0 + r), v(LS + xq * 4))
                a.valu('v_mul_f32', v(o1 + r), v(o1 + r), v(LS + xq * 4))
            for r in range(4):
                a.valu('v_cvt_pk_bf16_f32', v(o0 + r), v(o0 + 2 * r), v(o0 + 2 * r + 1))
            a.vmem('buffer_store_dwordx4', v(o0, 4), v(L16), srd, s(sT1 if xq else sT0), mods=f'offen offset:{w*1024} ' + st_fl, load=False, data=v(o0, 4))

def oproj_load(a: Asm, pWO, sCB, sWv):
    SRD_W = 12
    L, GA, TA, T = 2, 3, 4, 5
    a.valu('v_and_b32', v(L), 63, 'v0')
    a.valu('v_lshlrev_b32', 'v1', 4, v(L))
    a.valu('v_lshrrev_b32', v(T), 2, v(L)); a.valu('v_mul_u32_u24', v(GA), 1152, v(T))
    a.valu('v_and_b32', v(T), 3, v(L)); a.valu('v_lshl_add_u32', v(GA), v(T), 4, v(GA))
    a.salu('s_lshl_b32', s(sT3), s(sWv), 12)
    a.valu('v_add_u32', v(TA), s(sT3), 'v1')
    a.salu('s_mov_b64', s(SRD_W, 2), s(pWO, 2))
    a.salu('s_mov_b32', s(SRD_W + 2), 4096 * 1152); a.salu('s_mov_b32', s(SRD_W + 3), '0x20000')
    a.salu('s_mul_i32', s(sT1), s(sWv), 1024 * 1152); a.salu('s_lshl_b32', s(sT0), s(sCB), 6); a.salu('s_add_u32', s(sT1), s(sT1), s(sT0))
    jobs = []
    for j in range(16):
        def setup(a, j=j): a.salu('s_add_u32', s(sT0), s(sT1), j * 64 * 1152)
        rd = [(R(((2 * j + kk) * 2 + tau) * 4 + 2 * jp, 2, 'a'), 0, kk * 2048 + jp * 1024 + tau * 8) for kk in range(2) for tau in range(2) for jp in range(2)]
        jobs.append((setup, 16 * 1152, rd))
    Q2.tr_loader(a, SRD_W, jobs, GA, TA, 6, 7, sT3, sT0, [16384 * i for i in range(9)])
    a.ins('s_barrier')

def oproj_seg(a: Asm, tag, SRD_O, sCB, sWv, sJOB, ld_fl='sc1', pre=None, post=None, ofl=''):
    L16, TMP, TMP2, VO = 1, 2, 3, 4
    ACC, RING = 8, 32
    srd = s(SRD_WS, 4)
    a.salu('s_lshl_b32', s(sT0), s(sJOB), 17)
    a.salu('s_lshl_b32', s(sT1), s(sWv), 15)
    a.salu('s_add_u32', s(sT0), s(sT0), s(sT1))
    a.salu('s_add_u32', s(sT0), s(sT0), WS_OF)
    tg = {}
    for k in range(32):
        if k % 4 == 0 and k: a.salu('s_add_u32', s(sT0), s(sT0), 4096)
        tg[k] = a.vmem('buffer_load_dwordx4', v(RING + k * 4, 4), v(L16), srd, s(sT0), mods=f'offen offset:{(k % 4) * 1024} ' + ld_fl)
    a.valu('v_lshlrev_b32', v(TMP), 4, 'v0')
    a.valu('v_and_b32', v(TMP2), 0xc00, v(TMP))
    a.valu('v_lshl_add_u32', v(TMP), v(TMP2), 1, v(L16))
    for k in range(32):
        a.wait(vm=tg[k])
        for tau in range(2):
            d = v(ACC + tau * 4, 4)
            a.mfma(MF32, d, R((k * 2 + tau) * 4, 4, 'a'), v(RING + k * 4, 4), 0 if k == 0 else d)
    if pre: pre(a)
    for q in range(2):
        a.ds('ds_write_b128', v(TMP), v(ACC + 4 * q, 4), mods=f'offset:{q*1024}')
    a.wait(lds='all')
    a.ins('s_barrier')
    if post: post(a)
    a.salu('s_cmp_lg_u32', s(sWv), 0, nodst=True)
    a.ins(f's_cbranch_scc1 {tag}_skip')
    for ww in range(1, 4):
        for tau in range(2):
            a.ds('ds_read_b128', v(RING + (ww * 2 + tau) * 4, 4), v(L16), mods=f'offset:{ww*2048 + tau*1024}')
    a.valu('v_lshrrev_b32', v(TMP2), 4, v(L16))
    a.valu('v_bfe_u32', v(VO), v(TMP2), 2, 2)
    a.valu('v_lshlrev_b32', v(VO), 3, v(VO))
    a.valu('v_and_b32', v(TMP), 3, v(TMP2))
    a.valu('v_add_u32', v(VO), v(VO), v(TMP))
    a.valu('v_mul_u32_u24', v(VO), 2304, v(VO))
    a.valu('v_lshrrev_b32', v(TMP2), 4, v(TMP2))
    a.valu('v_lshl_add_u32', v(VO), v(TMP2), 4, v(VO))
    a.salu('s_lshr_b32', s(sT0), s(sJOB), 1)
    a.salu('s_lshl_b32', s(sT0), s(sT0), 3)
    a.salu('s_and_b32', s(sT1), s(sJOB), 1)
    a.salu('s_add_u32', s(sT0), s(sT0), s(sT1))
    a.salu('s_mul_i32', s(sT0), s(sT0), 4 * 2304)
    a.salu('s_lshl_b32', s(sT1), s(sCB), 6)
    a.salu('s_add_u32', s(sT0), s(sT0), s(sT1))
    a.wait(lds='all')
    for hh in range(4):
        d = ACC + hh * 2
        a.valu('v_pk_add_f32', v(d, 2), v(d, 2), v(RING + 8 + hh * 2, 2))
        a.valu('v_pk_add_f32', v(RING + 16 + hh * 2, 2), v(RING + 16 + hh * 2, 2), v(RING + 24 + hh * 2, 2))
        a.valu('v_pk_add_f32', v(d, 2), v(d, 2), v(RING + 16 + hh * 2, 2))
    for r in range(4):
        a.valu('v_cvt_pk_bf16_f32', v(RING + r), v(ACC + 2 * r), v(ACC + 2 * r + 1))
    a.vmem('buffer_store_dwordx4', v(RING, 4), v(VO), s(SRD_O, 4), s(sT0), mods='offen ' + ofl, load=False, data=v(RING, 4))
    a.label(f'{tag}_skip')
    a.fence()
```

```python
import sys, glob, os
sys.path.insert(0, 'gen2')
from asmfw import Asm
import chain2 as C
from chain2 import s, v

def kd(name, vgpr, accum, sgpr=102):
    return f'''.section .rodata,"a"
.p2align 6
.amdhsa_kernel {name}
  .amdhsa_next_free_vgpr {vgpr}
  .amdhsa_next_free_sgpr {sgpr}
  .amdhsa_accum_offset {accum}
  .amdhsa_group_segment_fixed_size 0
  .amdhsa_kernarg_size 136
  .amdhsa_user_sgpr_count 2
  .amdhsa_user_sgpr_kernarg_segment_ptr 1
  .amdhsa_system_sgpr_workgroup_id_x 1
.end_amdhsa_kernel
.text'''

def build(**kw):
    a = Asm()
    a.raw('.amdgcn_target "amdgcn-amd-amdhsa--gfx950"')
    a.raw('.text\n.globl chain_kernel\n.p2align 8\n.type chain_kernel,@function\nchain_kernel:')
    a.ins('s_load_dwordx4 s[96:99], s[0:1], 120')
    a.ins(f's_load_dwordx8 s[{C.sPTR}:{C.sPTR+7}], s[0:1], 8')
    a.ins(f's_load_dwordx2 s[{C.sPTR+8}:{C.sPTR+9}], s[0:1], 40')
    a.ins('s_getreg_b32 s3, hwreg(HW_REG_XCC_ID)')
    a.ins('s_memrealtime s[100:101]')
    a.ins('s_waitcnt lgkmcnt(0)')
    a.salu('s_mov_b32', 's4', 's98'); a.salu('s_mov_b32', 's5', 's99')
    a.salu('s_mov_b32', 's6', C.WS_SIZE); a.salu('s_mov_b32', 's7', '0x20000')
    a.salu('s_and_b32', 's3', 's3', 15)
    a.salu('s_cmp_lg_u32', 's3', 0, nodst=True)
    a.ins('s_cbranch_scc1 L_exit')
    a.salu('s_lshr_b32', s(C.sH), 's2', 3)
    a.salu('s_mov_b32', 's95', 0)
    def hook(a):
        if not kw.get('timing'): return
        if kw.get('timing') == 2:
            a.ins('s_waitcnt lgkmcnt(0)')
            a.salu('s_lshl_b32', 's40', s(C.sH), 2); a.salu('s_add_u32', 's40', 's40', s(C.sW)); a.salu('s_lshl_b32', 's40', 's40', 6)
            a.salu('s_add_u32', 's40', 's40', s(C.sSTEP)); a.salu('s_lshl_b32', 's40', 's40', 2); a.salu('s_add_u32', 's40', 's40', 202 << 20)
            a.salu('s_lshl_b32', 's93', s(C.sACC), 4); a.salu('s_sub_u32', 's94', 2000, 's94'); a.salu('s_min_u32', 's94', 's94', 15); a.salu('s_or_b32', 's93', 's93', 's94')
            a.valu('v_mov_b32', v(C.Rq[8] + 1), 's93')
            a.salu('s_mov_b64', 'exec', 1)
            a.vmem('buffer_store_dword', v(C.Rq[8] + 1), 'off', 's[4:7]', 's40', load=False)
            a.salu('s_mov_b64', 'exec', -1)
            return
        L = f'L_hk{len(a.lines)}'
        a.salu('s_cmp_lg_u32', s(C.sSTEP), ch.tstep, nodst=True)
        a.ins(f's_cbranch_scc1 {L}')
        a.ins('s_waitcnt lgkmcnt(0)')
        a.salu('s_lshl_b32', 's40', s(C.sH), 2); a.salu('s_add_u32', 's40', 's40', s(C.sW)); a.salu('s_lshl_b32', 's40', 's40', 7)
        a.salu('s_add_u32', 's40', 's40', 200 << 20)
        for i in range(12):
            a.valu('v_mov_b32', v(C.Rq[8] + 1), s(C.sACC + 2 * i))
            a.vmem('buffer_store_dword', v(C.Rq[8] + 1), 'off', 's[4:7]', 's40', mods=f'offset:{4*i}', load=False)
        a.valu('v_mov_b32', v(C.Rq[8] + 1), 's94')
        a.vmem('buffer_store_dword', v(C.Rq[8] + 1), 'off', 's[4:7]', 's40', mods='offset:48', load=False)
        a.ins('s_waitcnt vmcnt(0)')
        a.label(L)
    ch = C.Chain(a, 'cf', hook=hook, **kw)
    ch.prologue()
    a.ins('s_barrier')
    a.valu('v_mov_b32', 'v2', 1)
    a.salu('s_mov_b32', 's42', C.WS_SYNC)
    a.salu('s_cmp_lg_u32', s(C.sW), 0, nodst=True)
    a.ins('s_cbranch_scc1 L_noarr')
    a.salu('s_mov_b64', 'exec', 1)
    a.vmem('buffer_atomic_add', 'v2', 'off', 's[4:7]', 's42', load=False)
    a.salu('s_mov_b64', 'exec', -1)
    a.label('L_noarr')
    a.salu('s_mov_b32', 's40', 1 << 18)
    a.label('L_startpoll')
    a.vmem('buffer_load_dword', 'v3', 'off', 's[4:7]', 's42', mods='sc1')
    a.salu('s_sub_u32', 's40', 's40', 1)
    a.ins('s_cbranch_scc1 L_exit')
    a.wait(vm='all')
    a.valu('v_readfirstlane_b32', 's41', 'v3')
    a.nop(2)
    a.salu('s_cmp_lt_u32', 's41', 32, nodst=True)
    a.ins('s_cbranch_scc1 L_startpoll')
    a.ins('s_memrealtime s[98:99]'); a.ins('s_memtime s[96:97]'); a.ins('s_waitcnt lgkmcnt(0)')
    ch.loop_init()
    ch.step()
    a.ins('s_memrealtime s[42:43]'); a.ins('s_memtime s[40:41]'); a.ins('s_waitcnt lgkmcnt(0)')
    a.salu('s_sub_u32', 's40', 's40', 's96'); a.salu('s_sub_u32', 's42', 's42', 's98'); a.salu('s_sub_u32', 's43', 's98', 's100')
    a.valu('v_mov_b32', 'v2', 's40'); a.valu('v_mov_b32', 'v3', 's42'); a.valu('v_mov_b32', 'v4', 's43')
    a.salu('s_lshl_b32', 's40', s(C.sH), 4); a.salu('s_add_u32', 's40', 's40', 201 << 20)
    a.vmem('buffer_store_dwordx3', 'v[2:4]', 'off', 's[4:7]', 's40', load=False)
    a.label('L_exit')
    a.ins('s_endpgm')
    a.raw(kd('chain_kernel', 512, 256))
    if 0: print('auto waits:', a.auto_log)
    return a.text()

if __name__ == '__main__':
    for f in glob.glob('ct_*.s'): os.unlink(f)
    for spec in sys.argv[1:]:
        kw = dict((x.split('=')[0], int(x.split('=')[1])) for x in spec.split(','))
        kw.setdefault('spinmax', 2000)
        open('ct_' + spec.replace('=', '').replace(',', '_') + '.s', 'w').write(build(**kw))
    print(' '.join('"work/%s",' % os.path.basename(f) for f in sorted(glob.glob('ct_*.s'))))
```

```python
from asmfw import Asm, R

MB = 1 << 20
WS_KV = 0
WS_Q = 32 * MB
WS_O = 48 * MB
WS_MEM = 64 * MB
WS_PART = 64 * MB + 65536
XOFF = 1 * MB
WS_KM = 68 * MB
WS_VM = 77 * MB
WS_MEMH = 86 * MB
WS_SYNC = 120 * MB
SY_CHF = WS_SYNC + 16384
WS_SIZE = 256 * MB

K = 1024
L_MISC = 96 * K
L_MBUF = L_MISC
L_TB = L_MISC + 9216
L_SEL = L_MISC + 10240
L_MM = L_MISC + 11264
L_DUMP = L_MISC + 12288
L_SC = L_MISC + 14336
L_OB = L_MISC + 18432
L_NON = L_MISC + 20480
B_LW0, B_LW1 = 56 * K, 96 * K

LDS_ADDR = {}
for _t in range(4):
    LDS_ADDR[('k', 0, _t)] = _t * 16 * K
    LDS_ADDR[('k', 1, _t)] = _t * 16 * K + 8 * K
PB_O = {0: 64 * K, 2: 80 * K, 3: 120 * K}
for _i in (0, 2, 3):
    LDS_ADDR[('o', 2, _i)] = PB_O[_i]; LDS_ADDR[('o', 3, _i)] = PB_O[_i] + 8 * K
LDS_ADDR[('o', 4, 0)] = 136 * K; LDS_ADDR[('o', 4, 1)] = 144 * K
LDS_ADDR[('q', 1, 0)] = 152 * K

AQ0, AK0, AQ1, AK1, AV0, AV1 = 0, 4, 8, 12, 16, 20
Rq = [24 + 4 * i for i in range(9)]
IDX, LH, LW0, LW1, LW2, L16, PST, PSX, OR0, MST, MMW, LW3 = range(60, 72)
VW0 = 72

def all_frags():
    fr = [(m, t, sl) for m in 'qkv' for sl in range(9) for t in range(2)]
    fr += [('o', u, k) for u in range(4) for k in range(4)] + [('o', 4, 0), ('o', 4, 1)]
    return fr
REGF = {}
_res = [f for f in all_frags() if f not in LDS_ADDR]
assert len(_res) == 55
for _i, _f in enumerate(_res): REGF[_f] = ('a', _i * 8) if _i < 32 else ('v', VW0 + (_i - 32) * 8)
def freg(f): return R(REGF[f][1], 8, REGF[f][0])

SRD, SRDW = 4, 8
sH, sW = 12, 13
sMEM, sMEM4, sMEM8, sMST, sMRS = 14, 15, 16, 17, 18
sPL, sPS0, sPS1, sPSX = 19, 20, 21, 22
sKX, sPF, sKM, sVM, sFL = 23, 24, 25, 26, 27
sSTEP, sSPIN, sTAG, sMSU = 28, 29, 30, 31
sSTM, sHI8, sW0M, sLO8 = 32, 34, 36, 38
sT0, sT1, sT2, sT3 = 40, 41, 42, 43
sC1, sNC1, sK128 = 44, 46, 47
sPTR = 48
sONE, sHALF = 60, 62
sROLE, sFV = 64, 65
sAL, sALW = 66, 67
sACC = 68
sNONCE = 95
sSUM = 96

SMF = 'v_smfmac_f32_16x16x64_bf16'
MF32 = 'v_mfma_f32_16x16x32_bf16'
MF16 = 'v_mfma_f32_16x16x16_bf16'
def s(i, n=1): return R(i, n, 's')
def v(i, n=1): return R(i, n, 'v')

def lds_base(addr):
    if addr + 4096 < 64 * K: return LH, addr
    if addr < L_MISC + 24 * K: return LW0, addr - B_LW0
    return LW1, addr - B_LW1

class Chain:
    def __init__(self, a, tag, fl='', lfl='nt', pfl='sc1', xoff=0, nsteps=64, timing=0, dA=0, dB=24, d0=0, d1=24, dX=0, nopub=0, nopf=0,
                 hook=None, nomax=0, gap=0, dual=0, tstep=40, spinmax=1 << 16, prof=None, pstride=8, pA=20, pF=30, rt=0, dW=0, ks=2, early=1, k1=1, pskip=0, dZ=60, dE=0, ins0=0, p1=1, epf=1, npr=10, pg=6, dP=10, k0=1, pG=30, eo=1, w0hook=None, pbr=1, ppos=1):
        self.pbr = pbr; self.ppos = ppos
        self.w0hook = w0hook
        self.eo = eo
        self.k0 = k0; self.pG = pG
        self.npr = npr; self.pg = pg; self.dP = dP
        self.p1 = p1; self.epf = epf
        self.ins0 = ins0
        self.dZ = dZ; self.dE = dE
        self.pskip = pskip
        self.k1 = k1
        self.ks = ks; self.early = early
        self.dW = dW
        self.clk = 's_memrealtime' if rt else 's_memtime'
        self.pA = pA; self.pF = pF
        self.prof = prof; self.pstride = pstride
        self.a = a; self.tag = tag; self.fl = fl; self.lfl = lfl; self.pfl = pfl
        self.wsmem = WS_MEM + xoff; self.wspart = WS_PART + xoff; self.nsteps = nsteps; self.timing = timing
        self.dA = dA; self.dB = dB; self.d0 = d0; self.d1 = d1; self.dX = dX; self.nopub = nopub; self.nopf = nopf
        self.hook = hook; self.nomax = nomax; self.gap = gap; self.dual = dual; self.tstep = tstep; self.spinmax = spinmax

    def stamp(self, i):
        if self.prof is not None:
            if i == self.prof and not getattr(self.a, '_prof', None): self.a.start_prof(sACC, self.pstride, 12, self.pskip)
        elif self.timing == 1 or (self.timing == 2 and i == 0): self.a.ins(f'{self.clk} s[{sACC+2*i}:{sACC+2*i+1}]')

    def addresses(self):
        a = self.a
        T0, T1, C, G = 0 + 24, 25, 26, 27
        a.valu('v_lshrrev_b32', v(T0), 6, 'v0')
        a.valu('v_readfirstlane_b32', s(sW), v(T0))
        a.valu('v_lshlrev_b32', v(LH), 4, 'v0')
        a.valu('v_add_u32', v(LW0), B_LW0, v(LH))
        a.valu('v_xor_b32', v(LW1), 1024, v(LH)); a.valu('v_add_u32', v(LW1), B_LW1, v(LW1))
        a.valu('v_xor_b32', v(LW2), 2048, v(LH)); a.valu('v_add_u32', v(LW2), B_LW1, v(LW2))
        a.valu('v_and_b32', v(L16), 1023, v(LH)); a.valu('v_add_u32', v(L16), B_LW1, v(L16))
        a.valu('v_and_b32', v(C), 15, 'v0')
        a.valu('v_bfe_u32', v(G), 'v0', 4, 2)
        a.valu('v_mov_b32', v(IDX), '0x4444'); a.valu('v_mov_b32', v(T1), '0xeeee')
        a.valu('v_cmp_lt_u32', 'vcc', 7, v(C))
        a.valu('v_cndmask_b32', v(IDX), v(IDX), v(T1), 'vcc')
        a.valu('v_and_b32', v(PSX), 12, v(C)); a.valu('v_lshlrev_b32', v(PSX), 3, v(PSX))
        a.valu('v_and_b32', v(T1), 1, v(C)); a.valu('v_lshl_add_u32', v(PSX), v(T1), 4, v(PSX))
        a.valu('v_bfe_u32', v(T1), v(C), 1, 1); a.valu('v_lshl_add_u32', v(PSX), v(T1), 3, v(PSX))
        a.valu('v_lshl_add_u32', v(PST), v(G), 14, v(PSX)); a.valu('v_lshl_add_u32', v(PST), v(T0), 17, v(PST))
        a.valu('v_and_b32', v(PSX), 63, v(PSX))
        a.valu('v_lshrrev_b32', v(T1), 1, v(T0)); a.valu('v_lshl_add_u32', v(PSX), v(T1), 18, v(PSX))
        a.valu('v_lshl_add_u32', v(PSX), v(G), 16, v(PSX))
        a.valu('v_lshrrev_b32', v(T1), 3, v(C)); a.valu('v_lshl_add_u32', v(PSX), v(T1), 15, v(PSX))
        a.valu('v_and_b32', v(T1), 1, v(T0)); a.valu('v_lshl_add_u32', v(PSX), v(T1), 6, v(PSX))
        a.valu('v_and_b32', v(T1), 31, 'v0')
        a.valu('v_lshlrev_b32', v(MMW), 4, v(T1))
        a.valu('v_lshlrev_b32', v(28), 3, v(T1)); a.valu('v_lshl_add_u32', v(28), v(T0), 8, v(28)); a.valu('v_add_u32', v(28), L_DUMP, v(28))
        a.valu('v_lshrrev_b32', v(T1), 1, v(T0)); a.valu('v_lshl_add_u32', v(MMW), v(T1), 9, v(MMW))
        a.valu('v_and_b32', v(T1), 1, v(T0)); a.valu('v_lshl_add_u32', v(MMW), v(T1), 3, v(MMW))
        a.valu('v_add_u32', v(MMW), L_MM, v(MMW))
        a.valu('v_cmp_gt_u32', 'vcc', 2, v(G))
        a.valu('v_cndmask_b32', v(MMW), v(MMW), v(28), 'vcc')
        a.valu('v_xor_b32', v(LW3), 2048, v(LW1))
        a.valu('v_lshrrev_b32', v(OR0), 4, 'v0'); a.valu('v_lshlrev_b32', v(OR0), 7, v(OR0))
        a.valu('v_and_b32', v(T1), 7, v(C)); a.valu('v_lshl_add_u32', v(OR0), v(T1), 4, v(OR0)); a.valu('v_add_u32', v(OR0), L_OB, v(OR0))
        a.valu('v_and_b32', v(T1), 1, v(G)); a.valu('v_lshlrev_b32', v(MST), 7, v(T1))
        a.valu('v_lshrrev_b32', v(T1), 1, v(G)); a.valu('v_lshl_add_u32', v(MST), v(T1), 3, v(MST))
        a.valu('v_and_b32', v(T1), 3, v(C)); a.valu('v_lshl_add_u32', v(MST), v(T1), 4, v(MST))
        a.valu('v_bfe_u32', v(T1), v(C), 2, 1); a.valu('v_lshl_add_u32', v(MST), v(T1), 2, v(MST))
        a.salu('s_mov_b32', s(sSTM), '0x00ff00ff'); a.salu('s_mov_b32', s(sSTM + 1), '0x00ff00ff')
        a.salu('s_not_b64', s(sHI8, 2), s(sSTM, 2))
        a.salu('s_lshr_b32', s(sMSU), s(sH), 1); a.salu('s_lshl_b32', s(sMSU), s(sMSU), 8)
        a.salu('s_and_b32', s(sT0), s(sH), 1); a.salu('s_lshl_b32', s(sT0), s(sT0), 6); a.salu('s_add_u32', s(sMSU), s(sMSU), s(sT0))
        a.salu('s_and_b32', s(sT0), s(sW), 1); a.salu('s_lshl_b32', s(sT0), s(sT0), 12)
        a.salu('s_add_u32', s(sMSU), s(sMSU), s(sT0))
        a.salu('s_lshl_b32', s(sPL), s(sH), 14); a.salu('s_add_u32', s(sPL), s(sPL), self.wspart - B_LW1)
        a.salu('s_add_u32', s(sT1), s(sPL), 8192)
        a.salu('s_add_u32', s(sPL), s(sPL), s(sT0))
        a.salu('s_and_b32', s(sT0), s(sH), 1); a.salu('s_lshl_b32', s(sT0), s(sT0), 2); a.salu('s_or_b32', s(sT0), s(sT0), s(sW))
        a.salu('s_cmp_eq_u32', s(sT0), 5, nodst=True)
        a.salu('s_cselect_b32', s(sROLE), 0, s(sW))
        a.salu('s_cmp_lg_u32', s(sW), 1, nodst=True)
        a.ins(f's_cbranch_scc1 {self.tag}_notx')
        a.salu('s_mov_b32', s(sSTM), '0xff'); a.salu('s_mov_b32', s(sSTM + 1), '0xff')
        a.salu('s_mov_b32', s(sPL), s(sT1))
        a.salu('s_lshr_b32', s(sMSU), s(sH), 3); a.salu('s_lshl_b32', s(sMSU), s(sMSU), 8)
        a.salu('s_and_b32', s(sT0), s(sH), 2); a.salu('s_lshl_b32', s(sT0), s(sT0), 6); a.salu('s_add_u32', s(sMSU), s(sMSU), s(sT0))
        a.salu('s_and_b32', s(sT0), s(sH), 4); a.salu('s_lshl_b32', s(sT0), s(sT0), 4); a.salu('s_add_u32', s(sMSU), s(sMSU), s(sT0))
        a.salu('s_add_u32', s(sMSU), s(sMSU), 8192)
        a.label(f'{self.tag}_notx')
        a.salu('s_cmp_lg_u32', s(sW), 0, nodst=True)
        a.ins(f's_cbranch_scc1 {self.tag}_notp')
        a.salu('s_min_u32', s(sT0), s(sH), 23); a.salu('s_mul_i32', s(sT0), s(sT0), 384); a.salu('s_add_u32', s(sT0), s(sT0), L_MBUF)
        a.valu('v_add_u32', v(MST), s(sT0), v(LH))
        a.valu('v_mov_b32', v(T1), L_NON)
        a.valu('v_cmp_lt_u32', 'vcc', 23, 'v0')
        a.valu('v_cndmask_b32', v(MST), v(MST), v(T1), 'vcc')
        a.label(f'{self.tag}_notp')
        a.fence()

    def init_exchange(self):
        a = self.a; srd = s(SRD, 4); t = self.tag
        for i in range(4): a.valu('v_mov_b32', v(28 + i), 1)
        a.salu('s_lshl_b32', s(sT0), s(sH), 14); a.salu('s_add_u32', s(sT0), s(sT0), self.wspart)
        for rd in range(3):
            a.salu('s_add_u32', s(sT1), s(sT0), rd * 4096)
            a.vmem('buffer_store_dwordx4', v(28, 4), v(LH), srd, s(sT1), mods='offen ' + self.fl, load=False, data=v(28, 4))
        a.salu('s_cmp_eq_u32', s(sROLE), 0, nodst=True)
        a.ins(f's_cbranch_scc1 {t}_init_done')
        a.salu('s_mov_b64', s(SRDW, 2), s(sPTR, 2))
        a.salu('s_mov_b32', s(SRDW + 2), 9216); a.salu('s_mov_b32', s(SRDW + 3), '0x20000')
        a.valu('v_add_u32', v(24), s(sMSU), v(MST))
        a.valu('v_bfe_u32', v(25), v(24), 4, 3); a.valu('v_mul_u32_u24', v(25), 1152, v(25))
        a.valu('v_lshrrev_b32', v(26), 7, v(24)); a.valu('v_lshl_add_u32', v(25), v(26), 4, v(25))
        a.valu('v_and_b32', v(26), 15, v(24)); a.valu('v_add_u32', v(25), v(25), v(26))
        a.salu('s_mov_b64', 'exec', s(sSTM, 2))
        a.vmem('buffer_load_dword', v(26), v(25), s(SRDW, 4), 0, mods='offen')
        a.valu('v_mov_b32', v(27), -1)
        a.salu('s_add_u32', s(sT0), s(sMSU), self.wsmem)
        for i in range(1, 4):
            a.salu('s_add_u32', s(sT1), s(sT0), i * 16384)
            a.vmem('buffer_store_dword', v(27), v(MST), srd, s(sT1), mods='offen ' + self.fl, load=False)
        a.wait(vm='all')
        a.vmem('buffer_store_dword', v(26), v(MST), srd, s(sT0), mods='offen ' + self.fl, load=False)
        a.salu('s_mov_b64', 'exec', -1)
        a.label(f'{t}_init_done')
        a.fence()

    def constants(self):
        a = self.a
        C, E, LO, HI = 40, 41, 42, 43
        a.valu('v_bfe_u32', v(C), v(LH), 4, 4)
        a.valu('v_bfe_u32', v(E), v(LH), 8, 1); a.valu('v_lshlrev_b32', v(E), 2, v(E)); a.valu('v_sub_u32', v(E), v(C), v(E))
        a.valu('v_mov_b32', v(LO), '0x3f80'); a.valu('v_mov_b32', v(HI), '0x3f800000')
        for m in range(4):
            lo = 2 * m if m < 2 else 2 * m + 4
            a.valu('v_cmp_eq_u32', 'vcc', lo, v(E)); a.valu('v_cndmask_b32', v(32 + m), 0, v(LO), 'vcc')
            a.valu('v_cmp_eq_u32', 'vcc', lo + 1, v(E)); a.valu('v_cndmask_b32', v(32 + m), v(32 + m), v(HI), 'vcc')
            a.valu('v_cmp_eq_u32', 'vcc', 2 * m, v(C)); a.valu('v_cndmask_b32', v(36 + m), 0, v(LO), 'vcc')
            a.valu('v_cmp_eq_u32', 'vcc', 2 * m + 1, v(C)); a.valu('v_cndmask_b32', v(36 + m), v(36 + m), v(HI), 'vcc')
        a.ds('ds_write_b128', v(L16), v(32, 4), mods=f'offset:{L_TB - B_LW1}')
        a.ds('ds_write_b128', v(L16), v(36, 4), mods=f'offset:{L_SEL - B_LW1}')
        for m in range(4): a.valu('v_mov_b32', v(44 + m), s(sNONCE))
        a.valu('v_mov_b32', v(48), L_NON)
        a.ds('ds_write_b128', v(48), v(44, 4))

    def load_weights(self):
        a = self.a
        GA, GO, GX, TA, TO, TX, T0, T1, T2 = 48, 49, 50, 51, 52, 53, 54, 55, 56
        TAh = {}
        L = 57
        a.valu('v_and_b32', v(L), 63, 'v0')
        def bit(dst, src, b, sh, acc):
            a.valu('v_bfe_u32', v(T0), v(src), b, 1)
            if acc: a.valu('v_lshl_add_u32', v(dst), v(T0), sh, v(dst))
            else: a.valu('v_lshlrev_b32', v(dst), sh, v(T0))
        bit(GA, L, 2, 13, 0); bit(GA, L, 3, 15, 1); bit(GA, L, 4, 14, 1); bit(GA, L, 5, 16, 1)
        a.valu('v_lshrrev_b32', v(T1), 4, v(L)); a.valu('v_and_b32', v(T1), 2, v(T1)); a.valu('v_xor_b32', v(T1), v(T1), v(L))
        a.valu('v_and_b32', v(T1), 3, v(T1)); a.valu('v_lshl_add_u32', v(GA), v(T1), 4, v(GA))
        bit(TA, L, 2, 6, 0); bit(TA, L, 3, 9, 1); bit(TA, L, 4, 7, 1); bit(TA, L, 5, 12, 1)
        bit(TA, L, 0, 3, 1); bit(TA, L, 1, 4, 1); bit(TA, L, 3, 5, 1)
        a.valu('v_lshrrev_b32', v(T1), 3, v(L)); a.valu('v_mul_u32_u24', v(GO), 1152, v(T1))
        a.valu('v_and_b32', v(T1), 7, v(L)); a.valu('v_lshl_add_u32', v(GO), v(T1), 4, v(GO))
        bit(TO, L, 4, 13, 0); bit(TO, L, 5, 9, 1); bit(TO, L, 2, 7, 1); bit(TO, L, 3, 5, 1)
        a.valu('v_and_b32', v(T1), 3, v(L)); a.valu('v_lshl_add_u32', v(TO), v(T1), 3, v(TO))
        a.valu('v_lshrrev_b32', v(T1), 2, v(L)); a.valu('v_mul_u32_u24', v(GX), 1152, v(T1))
        a.valu('v_and_b32', v(T1), 3, v(L)); a.valu('v_lshl_add_u32', v(GX), v(T1), 4, v(GX))
        bit(TX, L, 4, 12, 0); bit(TX, L, 5, 8, 1); bit(TX, L, 2, 6, 1); bit(TX, L, 3, 5, 1)
        a.valu('v_and_b32', v(T1), 3, v(L)); a.valu('v_lshl_add_u32', v(TX), v(T1), 3, v(TX))
        sWK, sCOL, sOB, sX16, sKS = 66, 67, 92, 93, 94
        a.salu('s_lshl_b32', s(sWK), s(sW), 10)
        a.salu('s_lshl_b32', s(sX16), s(sW), 14)
        a.salu('s_lshl_b32', s(sCOL), s(sH), 8); a.salu('s_lshl_b32', s(sT0), s(sW), 6); a.salu('s_add_u32', s(sCOL), s(sCOL), s(sT0))
        a.salu('s_mul_i32', s(sOB), s(sH), 128 * 1152)
        for r in (TA, TO, TX): a.valu('v_add_u32', v(r), s(sWK), v(r))
        a.salu('s_mov_b32', s(SRDW + 2), 576 * 8192); a.salu('s_mov_b32', s(SRDW + 3), '0x20000')
        pW = {'q': sPTR + 2, 'k': sPTR + 4, 'v': sPTR + 6, 'o': sPTR + 8}
        cur = [None]
        def setsrd(m):
            if cur[0] != m: a.salu('s_mov_b64', s(SRDW, 2), s(pW[m], 2)); cur[0] = m
        def dma(va):
            a.raw(f'    buffer_load_dwordx4 v{va}, s[{SRDW}:{SRDW+3}], s{sT1} offen lds')
            a.pos += 1; a.vm_seq += 1
        def issue(job):
            kind, m, x, buf = job
            setsrd(m)
            if kind == 'g':
                for t in range(4):
                    a.salu('s_xor_b32', s(sT0), s(sX16), t << 14)
                    a.salu('s_add_u32', s(sT0), s(sT0), s(sWK))
                    for p in range(4):
                        a.salu('s_add_u32', 'm0', s(sT0), buf + p * 4096)
                        a.salu('s_add_u32', s(sT1), s(sCOL), ((x * 4 + t) * 64 + p * 16) * 8192)
                        dma(GA)
            elif kind == 's':
                for p in range(4):
                    a.salu('s_add_u32', 'm0', s(sWK), buf + p * 4096)
                    a.salu('s_add_u32', s(sT1), s(sCOL), (512 + p * 16) * 8192)
                    dma(GA)
            elif kind == 'o':
                a.salu('s_xor_b32', s(sKS), s(sW), x[1]); a.salu('s_mul_i32', s(sKS), s(sKS), 32 * 1152)
                a.salu('s_add_u32', s(sKS), s(sKS), s(sOB))
                a.salu('s_lshl_b32', s(sT0), s(sW), 7); a.salu('s_add_u32', s(sKS), s(sKS), s(sT0))
                for p in range(4):
                    a.salu('s_add_u32', 'm0', s(sWK), buf + p * 4096)
                    a.salu('s_add_u32', s(sT1), s(sKS), p * 8 * 1152 + x[0] * 512)
                    dma(GO)
            else:
                for kk in range(2):
                    a.salu('s_xor_b32', s(sKS), s(sW), 2 * kk); a.salu('s_mul_i32', s(sKS), s(sKS), 32 * 1152)
                    a.salu('s_add_u32', s(sKS), s(sKS), s(sOB))
                    a.salu('s_lshr_b32', s(sT0), s(sW), 1); a.salu('s_lshl_b32', s(sT0), s(sT0), 6)
                    a.salu('s_add_u32', s(sKS), s(sKS), s(sT0))
                    for p in range(2):
                        a.salu('s_add_u32', 'm0', s(sWK), buf + (2 * kk + p) * 4096)
                        a.salu('s_add_u32', s(sT1), s(sKS), p * 16 * 1152 + 1024)
                        dma(GX)
            return a.vm_seq
        def build(frs, base, offs, buf):
            a.valu('v_add_u32', v(T1), buf, v(base))
            if base == TA: a.valu('v_xor_b32', v(T2), 32, v(T1))
            tmp = {}
            for fi, f in enumerate(frs):
                k, b = ('v', 8 * fi) if f in LDS_ADDR else REGF[f]
                for jp in range(4):
                    alt, off = offs(fi, jp)
                    a.ds('ds_read_b64_tr_b16', R(b + 2 * jp, 2, k), v(T2 if alt else T1), mods=f'offset:{off}')
            a.wait(lds='all')
            wr = False
            for fi, f in enumerate(frs):
                if f in LDS_ADDR:
                    rg, off = lds_base(LDS_ADDR[f])
                    if rg == LW1:
                        a.ins('s_barrier')
                    a.ds('ds_write_b128', v(rg), v(8 * fi, 4), mods=f'offset:{off}')
                    a.ds('ds_write_b128', v(rg), v(8 * fi + 4, 4), mods=f'offset:{off + 4096}')
                    wr = True
            if wr: a.wait(lds='all')
        oq = lambda fi, jp: (fi, (jp >> 1) * 8192 + (jp & 1) * 256)
        oo = lambda fi, jp: (0, (jp >> 1) * 4096 + (jp & 1) * 256 + fi * 64)
        ox = lambda fi, jp: (0, fi * 8192 + (jp >> 1) * 512 + (jp & 1) * 128)
        def consume(job):
            kind, m, x, buf = job
            if kind == 'g':
                for i in range(4): build([(m, 0, x * 4 + i), (m, 1, x * 4 + i)], TA, oq, buf + i * 16384)
            elif kind == 's': build([(m, 0, 8), (m, 1, 8)], TA, oq, buf)
            elif kind == 'o': build([('o', 2 * x[0], x[1]), ('o', 2 * x[0] + 1, x[1])], TO, oo, buf)
            else: build([('o', 4, 0), ('o', 4, 1)], TX, ox, buf)
        A_, B_, c0, c1 = 0, 64 * K, 128 * K, 144 * K
        jobs = [('g', 'k', 1, A_), ('s', 'k', 8, c0), ('g', 'v', 0, B_), ('s', 'v', 8, c1), ('g', 'v', 1, A_), ('s', 'q', 8, c0), ('g', 'q', 1, B_),
                ('g', 'q', 0, A_), ('o', 'o', (0, 0), c0), ('o', 'o', (0, 1), 64 * K), ('o', 'o', (0, 2), 80 * K), ('o', 'o', (0, 3), 96 * K),
                ('g', 'k', 0, A_), ('o', 'o', (1, 3), 120 * K), ('x', 'o', 0, 136 * K), ('o', 'o', (1, 0), 64 * K), ('o', 'o', (1, 2), 80 * K), ('o', 'o', (1, 1), 96 * K)]
        def span(j): return (j[3], j[3] + (65536 if j[0] == 'g' else 16384))
        tags = {}; issued = 0
        def clear(jn, done):
            lo, hi = span(jobs[jn])
            return all(span(jobs[x])[1] <= lo or span(jobs[x])[0] >= hi for x in range(done, jn))
        first = True
        for j in range(len(jobs)):
            while issued < len(jobs) and clear(issued, j) and (issued == j or a.vm_seq - (tags[j - 1] if j else base_seq) + (16 if jobs[issued][0] == 'g' else 4) <= 60):
                if first: base_seq = a.vm_seq
                tags[issued] = issue(jobs[issued]); issued += 1
                first = False
            if j == 0 and self.mid0: self.mid0()
            a.wait(vm=tags[j])
            consume(jobs[j])
        a.ins('s_barrier')

    def prologue(self):
        a = self.a
        self.addresses()
        self.init_exchange()
        a.wait(vm='all')
        self.mid0 = None
        self.load_weights()
        self.constants()
        a.wait(vm='all', lds='all')
        a.fence()

    def loop_init(self):
        a = self.a
        a.salu('s_mov_b32', s(sC1), '0x3e0293ee'); a.salu('s_mov_b32', s(sC1 + 1), s(sC1))
        a.salu('s_or_b32', s(sNC1), s(sC1), '0x80000000')
        a.salu('s_mov_b32', s(sK128), 128)
        a.salu('s_mov_b32', s(sONE), '0x3f803f80'); a.salu('s_mov_b32', s(sONE + 1), s(sONE))
        a.salu('s_mov_b32', s(sHALF), '0x3e803e80'); a.salu('s_mov_b32', s(sHALF + 1), s(sHALF))
        a.salu('s_mov_b32', s(sSTEP), 0)
        a.salu('s_mov_b32', s(sMEM), self.wsmem)
        a.salu('s_lshl_b32', s(sPF), s(sH), 14); a.salu('s_add_u32', s(sPF), s(sPF), WS_KV)
        a.salu('s_mul_i32', s(sT0), s(sW), 3072); a.salu('s_add_u32', s(sKX), s(sPF), s(sT0))
        a.salu('s_lshl_b32', s(sPS0), s(sH), 7); a.salu('s_add_u32', s(sPS0), s(sPS0), self.wspart)
        a.salu('s_add_u32', s(sPS1), s(sPS0), 65536)
        a.salu('s_add_u32', s(sLO8), s(sPS0), 4096); a.salu('s_add_u32', s(sLO8 + 1), s(sPS1), 4096)
        a.salu('s_lshl_b32', s(sPSX), s(sH), 7); a.salu('s_add_u32', s(sPSX), s(sPSX), self.wspart + 8192)
        a.salu('s_lshl_b32', s(sT0), s(sH), 12)
        a.salu('s_add_u32', s(sKM), s(sT0), WS_KM + (self.nsteps - 1) * 32 * 4096)
        a.salu('s_add_u32', s(sVM), s(sT0), WS_VM + (self.nsteps - 1) * 32 * 4096)
        a.salu('s_lshl_b32', s(sFV), s(sH), 9); a.salu('s_add_u32', s(sFV), s(sFV), WS_MEMH)
        a.salu('s_lshl_b32', s(sT0), s(sW), 5); a.salu('s_or_b32', s(sT0), s(sT0), s(sH))
        a.salu('s_cmp_lt_u32', s(sT0), 24, nodst=True)
        a.salu('s_cselect_b32', s(sW0M), '0x1ffffff', 0); a.salu('s_mov_b32', s(sW0M + 1), 0)
        a.salu('s_lshl_b32', s(sFL), s(sH), 7); a.salu('s_add_u32', s(sFL), s(sFL), SY_CHF)
        a.salu('s_lshl_b32', s(sT0), s(sW), 2); a.salu('s_add_u32', s(sFL), s(sFL), s(sT0))
        a.salu('s_mov_b32', 'm0', L_DUMP + 1024)
        a.valu('v_lshlrev_b32', v(Rq[8]), 2, v(LH))
        for d in range(2):
            a.raw(f'    buffer_load_dword v{Rq[8]}, s[{SRD}:{SRD+3}], s{sPF} offen sc1 lds'); a.pos += 1; a.vm_seq += 1
            a.salu('s_add_u32', s(sPF), s(sPF), 32 * 16384)
        if self.timing:
            for i in range(24): a.salu('s_mov_b32', s(sACC + i), 0)

    def step(self):
        a = self.a; t = self.tag; fl = self.fl; lfl = self.lfl
        srd = s(SRD, 4); T = {}
        R0, R1, R2, R3, R4, R5, R6, R7, R8 = Rq
        ACCS = {'q0': AQ0, 'q1': AQ1, 'k0': AK0, 'k1': AK1, 'v0': AV0, 'v1': AV1}
        where = {}
        M = {}
        def fr(f, dst):
            rg, off = lds_base(LDS_ADDR[f])
            def f0(): where[f] = dst; a.ds('ds_read_b128', v(dst, 4), v(rg), mods=f'offset:{off}')
            def f1(): T[f] = a.ds('ds_read_b128', v(dst + 4, 4), v(rg), mods=f'offset:{off + 4096}')
            return f0, f1
        def xr(i): return {0: (LW0, B_LW0), 1: (LW1, B_LW1), 2: (LW2, B_LW1), 3: (LW3, B_LW1)}[i]
        def mr(sl, dst):
            def f():
                M[sl] = dst
                if sl == 8: T[('m', sl)] = a.ds('ds_read_b128', v(dst, 4), v(L16), mods=f'offset:{L_MBUF + 8192 - B_LW1}')
                else:
                    rg, b = xr(sl & 3)
                    T[('m', sl)] = a.ds('ds_read_b128', v(dst, 4), v(rg), mods=f'offset:{L_MBUF + (sl >> 2) * 4096 - b}')
            return f
        def wl(key): return lambda: a.wait(lds=T[key])
        def wv(key): return lambda: (a.wait(vm=T[key]) if T[key] > a.done['vm'] else None)
        def mm(o, sl):
            f = (o[0], int(o[1]), sl)
            a.mfma(SMF, v(ACCS[o], 4), v(M[sl], 4), v(where[f], 8) if f in LDS_ADDR else freg(f), v(IDX))
        def run(seq):
            for x in seq:
                if isinstance(x, tuple): mm(*x)
                elif x is not None: x()
        def sal(*args, **kw): return lambda: a.salu(*args, **kw)
        def val(*args, **kw): return lambda: a.valu(*args, **kw)
        def ins(x): return lambda: a.ins(x)
        def z2(r, c=0): return val('v_mov_b64', v(r, 2), c)
        def zero(lo, hi):
            for i in range(lo, hi, 2): z2(i)()
        def cvt(d, x, y=None): return val('v_cvt_pk_bf16_f32', v(d), v(x), v(x + 1 if y is None else y))
        def dpp(d, x, bm): return val('v_mov_b32_dpp', v(d), v(x), mods=f'row_ror:8 row_mask:0xf bank_mask:{bm}', rmw=True)
        def mf(op, d, A, B, C): return lambda: a.mfma(op, v(d, 4), v(A, 4 if op == MF32 else 2), v(B, 4 if op == MF32 else 2), 0 if C is None else v(C, 4))
        def st(k): return lambda: self.stamp(k)
        LC, TM, LCW, MC = R8, R8 + 1, R8 + 2, R8 + 3
        def vbr(lab):
            a.ins(f's_cbranch_vccnz {lab}')
        def poll0():
            a.vmem('buffer_load_dwordx4', v(R0, 4), v(LH), srd, s(sMEM), mods='offen ' + lfl); a.nowait(v(R0, 4))
        def poll1():
            a.vmem('buffer_load_dwordx4', v(R1, 4), v(LH), srd, s(sMEM4), mods='offen ' + lfl)
            a.vmem('buffer_load_dword', v(MC), v(LC), srd, s(sMEM8), mods='offen ' + lfl)
            a.nowait(v(R1, 4)); a.nowait(v(MC))
        def prefetch_top():
            run(list(fr(('q', 1, 0), R2)) + list(fr(('k', 0, 0), R4)) + list(fr(('k', 1, 0), R6)))
        def offsets():
            a.salu('s_add_u32', s(sMEM4), s(sMEM), 4096); a.salu('s_add_u32', s(sMEM8), s(sMEM), 8192)
        def pubk(r):
            if self.nopub: return
            a.salu('s_mov_b64', 'exec', s(sHI8, 2))
            a.vmem('buffer_store_dwordx4', v(r, 4), v(LH), srd, s(sKM), mods='offen ' + self.pfl, load=False, data=v(r, 4))
            a.salu('s_mov_b64', 'exec', -1)
        def pubv(r):
            if self.nopub: return
            a.vmem('buffer_store_dwordx4', v(r, 4), v(LH), srd, s(sVM), mods='offen ' + self.pfl, load=False, data=v(r, 4))
        def flag(r):
            if self.nopub: return
            a.salu('s_mov_b64', 'exec', 1)
            a.vmem('buffer_store_dword', v(r), 'off', srd, s(sFL), mods='sc1', load=False)
            a.salu('s_mov_b64', 'exec', -1)
        def pf(r):
            if self.nopf: return
            a.raw(f'    buffer_load_dword v{r}, s[{SRD}:{SRD+3}], s{sPF} offen sc1 lds'); a.pos += 1; a.vm_seq += 1

        offsets(); prefetch_top()
        a.salu('s_mov_b32', s(sSPIN), self.spinmax)
        poll0()
        a.raw('.p2align 6')
        a.label(f'{t}_loop')
        a.forget()
        zero(0, 20)
        a.label(f'{t}_loop2')
        st(0)()
        zero(20, 24)
        a.valu('v_lshrrev_b32', v(LC), 2, v(LH))
        a.valu('v_add_u32', v(LCW), L_MBUF + 8192, v(LC))
        if self.timing: a.salu('s_mov_b32', 's94', s(sSPIN))
        a.salu('s_mov_b32', s(sSPIN), self.spinmax)
        if self.hook: self.hook(a)
        for i in range(self.ks - 1):
            if self.pA: a.nop(self.pA)
            poll0()
        a.ins('s_waitcnt lgkmcnt(0)')
        a.label(f'{t}_chk0')
        a.ins(f's_waitcnt vmcnt({self.ks - 1})')
        st(1)()
        M[0] = R0; M[4] = R1
        K01, K11 = fr(('k', 0, 1), R2), fr(('k', 1, 1), R4)
        K02, K12 = fr(('k', 0, 2), R2), fr(('k', 1, 2), R4)
        K03, K13 = fr(('k', 0, 3), R2), fr(('k', 1, 3), R4)
        o2 = [sal('s_add_u32', s(sMRS), s(sMEM), s(sMSU)), sal('s_add_u32', s(sT1), s(sMEM), 16384), sal('s_and_b32', s(sT1), s(sT1), 0xffff),
              sal('s_add_u32', s(sT1), s(sT1), self.wsmem), sal('s_add_u32', s(sMST), s(sT1), s(sMSU)), sal('s_and_b32', s(sTAG), s(sSTEP), 1)]
        a.valu('v_max3_u32', v(TM), v(R0), v(R0 + 1), v(R0 + 2)); a.valu('v_max_u32', v(TM), v(TM), v(R0 + 3))
        a.valu('v_cmp_eq_u32', 'vcc', -1, v(TM))
        wA = a.ds('ds_write_b128', v(LW0), v(R0, 4), mods=f'offset:{L_MBUF - B_LW0}')
        vbr(f'{t}_spin0')
        run([('q1', 0), poll1 if self.p1 == 1 else None, ('k0', 0), K01[0], ('k1', 0), K01[1], lambda: a.wait(lds=wA)])
        a.ins('s_barrier')
        st(2)()
        def kx(i):
            def f(): T['kx', i] = a.vmem('buffer_load_dwordx4', v(R2 + 4 * i, 4), v(LH), srd, s(sKX), mods=f'offen offset:{i*1024} sc1')
            return f
        c1 = [val('v_max3_u32', v(TM), v(R1), v(R1 + 1), v(R1 + 2)), val('v_max3_u32', v(TM), v(TM), v(R1 + 3), v(MC)), val('v_cmp_eq_u32', 'vcc', -1, v(TM))]
        def w1a(): a.ds('ds_write_b128', v(LW0), v(R1, 4), mods=f'offset:{L_MBUF + 4096 - B_LW0}')
        def w1b(): T['wB'] = a.ds('ds_write_b32', v(LCW), v(MC))
        run([mr(1, R6), ('q0', 0), K11[0], ('v0', 0), K11[1], ('v1', 0), mr(2, R7), poll1 if self.p1 == 2 else None,
             ('k0', 1), K02[0], ('q0', 1), K02[1], ('q1', 1), o2[0], o2[1], ('k1', 1), K12[0], ('q0', 2), K12[1], ('q1', 2), mr(3, R6),
             ('k0', 2), K03[0], ins('s_waitcnt vmcnt(0)'), st(3), c1[0], w1a, c1[1], ('k1', 2), w1b, c1[2], ('q0', 3), K03[1], ('q1', 3), K13[0]])
        vbr(f'{t}_spin1')
        a.lines.append(f'{t}_go1:')
        run([('q0', 4), K13[1], ('q1', 4), o2[2], o2[3], ('k0', 4), wl('wB')])
        a.ins('s_barrier')
        TB = R1
        def tbld(): T['tb'] = a.ds('ds_read_b128', v(TB, 4), v(L16), mods=f'offset:{L_TB - B_LW1}')
        def pmld(R1=AQ0):
            if self.nopub: return
            a.salu('s_mov_b64', 'exec', s(sW0M, 2))
            a.ds('ds_read_b128', v(R1, 4), v(MST))
            a.salu('s_mov_b64', 'exec', -1)
        def pubm(R1=AQ0):
            if self.nopub: return
            a._autowait([('v', R1 + i) for i in range(4)], 'pubm')
            L = f'{t}_np{len(a.lines)}'
            a.salu('s_mov_b64', 'exec', s(sW0M, 2))
            if self.pbr: a.ins(f's_cbranch_execz {L}')
            a.vmem('buffer_store_dwordx4', v(R1, 4), v(LH), srd, s(sFV), mods='offen ' + self.pfl, load=False, data=v(R1, 4))
            if self.pbr: a.pos -= 1; a.lines.append(L + ':')
            a.salu('s_mov_b64', 'exec', -1)
        run([mr(5, R7), ('k0', 3), mr(7, R8), ('k1', 4), kx(0), ('k1', 3), mr(8, R0), ('v0', 4), mr(6, R6), ('v1', 4), kx(1),
             ('q0', 5), val('v_lshlrev_b32', v(R1), 2, v(LH)), ('k0', 5), o2[4], o2[5], ('q0', 7), kx(2), ('k0', 7), ('q0', 8), ('k0', 8), kx(3), ('q0', 6), ('k0', 6), ins('s_barrier'),
             ('q1', 5), lambda: pf(R1), ('k1', 5), tbld, ('q1', 7), cvt(AQ0, AQ0), ('k1', 7), cvt(AQ0 + 1, AQ0 + 2),
             ('q1', 8), cvt(AQ0 + 2, AK0), ('q1', 6), cvt(AQ0 + 3, AK0 + 2),
             ('k1', 8), sal('s_cmp_eq_u32', s(sSTEP), self.nsteps - 1, nodst=True), ('k1', 6), wl('tb')])
        st(4)()
        MMR = R0 + 3
        run([cvt(AQ1, AQ1), mf(MF32, AK0, AQ0, TB, None), cvt(AQ1 + 1, AQ1 + 2), wv(('kx', 1)), cvt(AQ1 + 2, AK1), cvt(AQ1 + 3, AK1 + 2),
             mf(MF32, AK1, AQ1, TB, None), cvt(AQ0, AK0), cvt(AQ0 + 1, AK0 + 2), ('v0', 8), (lambda: pmld(R1)) if self.ppos == 1 else mr(3, R1),
             cvt(AQ0 + 2, AK1), cvt(AQ0 + 3, AK1 + 2)])
        a.ins(f's_cbranch_scc1 {t}_last')
        run([mf(MF32, AQ1, AQ0, AQ0, None), mf(MF32, AK0, R3, AQ0, None), mr(2, R3), mf(MF32, AK1, R2, AQ0, None), mr(1, R2),
             dpp(AQ1, AQ1 + 2, '0xc'), dpp(AQ1 + 1, AQ1 + 3, '0xc')])
        a.ds('ds_write_b64', v(MMW), v(AQ1, 2))
        run([dpp(AK1 + r, AK0 + r, '0xc') for r in range(4)])
        ws_ = a.ds('ds_write_b128', v(LW0), v(AK1, 4), mods=f'offset:{L_SC - B_LW0}')
        run([('v1', 8), ('v0', 7), val('v_or_b32', v(MMR), 512, v(L16)), ('v1', 7)] + ([wv(('kx', 3)), lambda: pubm(R1)] if self.ppos == 1 else []) + [('v0', 6)])
        a.wait(lds=ws_)
        a.ins('s_barrier')
        st(5)()
        X0, X1, X2, X3, MA, MB_ = AK1, AK0, AQ1, AQ0, R8, R0
        def xrd(i, d):
            rg, b = xr(i)
            return lambda: a.ds('ds_read_b128', v(d, 4), v(rg), mods=f'offset:{L_SC - b}')
        def mmrd(d, o): return lambda: a.ds('ds_read_b128', v(d, 4), v(MMR), mods=f'offset:{L_MM + o - B_LW1}')
        def add(d, x, y): return val('v_add_f32', v(d), v(x), v(y))
        def pka(d, x, y): a.valu('v_pk_add_f32', v(d, 2), v(x, 2), v(y, 2))
        run([xrd(1, X1), xrd(2, X2), xrd(3, X3), ('v1', 6), mmrd(MA, -512), ('v0', 5), mmrd(MB_, 0), ('v1', 5), mr(3, R1) if self.ppos == 1 else None,
             ('v0', 1), ('v1', 1), add(X0, X0, X1), ('v0', 2), add(X0 + 1, X0 + 1, X1 + 1), ('v1', 2), add(X0 + 2, X0 + 2, X1 + 2), ('v0', 3), add(X0 + 3, X0 + 3, X1 + 3), ('v1', 3)]
            + [add(X2 + r, X2 + r, X3 + r) for r in range(4)])
        pka(MA, MA, MA + 2); pka(MB_, MB_, MB_ + 2)
        pka(X0, X0, X2); pka(X0 + 2, X0 + 2, X2 + 2); pka(MA, MA, MB_)
        st(6)()
        M1, M2 = AK0, AK0 + 1
        BM, BT = AK0 + 2, AQ1
        U20, U30 = fr(('o', 2, 0), R6), fr(('o', 3, 0), R4)
        AC = [R2, R3, AQ1, AK1]; ACX = AV1
        WL, LQ, O0, O1 = R0, R1, R8, AV1
        a.valu('v_max3_f32', v(M1), v(X0), v(X0 + 1), v(X0 + 2))
        a.valu('v_max3_f32', v(M2), v(X0 + 3), v(MA), v(MA + 1))
        a.valu('v_max_f32', v(M1), v(M1), v(M2))
        run([cvt(AV0, AV0), cvt(AV0 + 1, AV0 + 2)])
        a.valu('v_max_f32_dpp', v(M1), v(M1), v(M1), mods='row_ror:8 row_mask:0xf bank_mask:0xf')
        a.valu('v_mov_b32', v(M2), v(M1))
        run([cvt(AV0 + 2, AV1), cvt(AV0 + 3, AV1 + 2)])
        a.valu('v_permlane32_swap_b32', v(M1), v(M2))
        a.valu('v_max_f32', v(M1), v(M1), v(M2))
        a.valu('v_mov_b32', v(M2), v(M1))
        run([z2(WL, s(sHALF, 2)), z2(WL + 2, s(sONE, 2))])
        a.valu('v_permlane16_swap_b32', v(M1), v(M2))
        a.valu('v_max_f32', v(M1), v(M1), v(M2))
        a.valu('v_mul_f32', v(M1), s(sNC1), v(M1))
        for d in (X0, X0 + 2, MA):
            a.valu('v_pk_fma_f32', v(d, 2), v(d, 2), s(sC1, 2), v(M1, 2), mods='op_sel_hi:[1,1,0]')
        def ex(d): return val('v_exp_f32', v(d), v(d))
        OW = AK0
        F = {0: AQ0, 1: R0, 2: R1, 3: R8}
        run([ex(X0), ex(X0 + 1), ex(X0 + 2), cvt(BT, X0), ex(X0 + 3), ex(MA), cvt(BT + 1, X0 + 2), dpp(BT + 2, BT, '0xf'), ex(MA + 1), dpp(BT + 3, BT + 1, '0xf'),
             cvt(BM, MA), wv(('kx', 3)), st(7),
             mf(MF32, O0, R4, BT, None), U20[0], dpp(BM + 1, BM, '0xf'), mf(MF32, O1, R5, BT, None), U20[1], val('v_bfe_u32', v(OW), v(LH), 7, 1),
             mf(MF32, LQ, WL, BM, None), pmld if self.ppos == 2 else None, val('v_lshl_add_u32', v(OW), v(OW), 3, v(OR0)), z2(AC[0]),
             mf(MF16, O0, AV0, BM, O0), z2(AC[0] + 2), z2(AC[1]), mf(MF16, O1, AV0 + 2, BM, O1),
             val('v_add_f32_dpp', v(LQ), v(LQ), v(LQ), mods='row_ror:8 row_mask:0xf bank_mask:0xf'), val('v_rcp_f32', v(LQ), v(LQ)), z2(AC[1] + 2)]
            + [val('v_mul_f32', v(O0 + r), v(O0 + r), v(LQ)) for r in range(4)]
            + [val('v_mul_f32_dpp', v(O0 + r), v(O1 + r), v(LQ), mods='row_ror:8 row_mask:0xf bank_mask:0xc', rmw=True) for r in range(4)]
            + [cvt(O0, O0), cvt(O0 + 1, O0 + 2)])
        wo = a.ds('ds_write_b64', v(OW), v(O0, 2))
        if self.ppos == 2: pubm()
        a.ds('ds_read_b128', v(F[0], 4), v(OR0))
        def E(u, i):
            def f():
                fg = ('o', u, i)
                a.mfma(SMF, v(ACX if u == 4 else AC[u], 4), v(F[2 * i if u == 4 else i], 4), v(where[fg], 8) if fg in LDS_ADDR else freg(fg), v(IDX))
            return f
        OA = [None, F[1], F[2], F[3] + 2]
        run([U30[0], U30[1]] + [val('v_xor_b32', v(OA[i]), 512 * i, v(OR0)) for i in (1, 2, 3)] + [z2(AC[2]), z2(AC[2] + 2), z2(AC[3]), z2(AC[3] + 2)])
        a.wait(lds=wo)
        a.ins('s_barrier')
        st(8)()
        def frd(i): return lambda: a.ds('ds_read_b128', v(F[i], 4), v(OA[i]))
        def tag(r): return val('v_and_or_b32', v(r), v(r), -2, s(sTAG))
        def fin(u):
            r = ACX if u == 4 else AC[u]
            so = [sPS0, sPS1, sLO8, sLO8 + 1, sPSX][u]
            return [cvt(r, r), cvt(r + 1, r + 2), tag(r), lambda: a.vmem('buffer_store_dwordx2', v(r, 2), v(PSX if u == 4 else PST), srd, s(so), mods='offen ' + fl, load=False)]
        P0 = [R4, R5, R6, R7]
        def shot(P):
            for i in range(4):
                a.vmem('buffer_load_dwordx4', v(P[i], 4), v(L16), srd, s(sPL), mods=f'offen offset:{1024 * i} ' + lfl)
            a.nowait(v(P[0], 16))
        def shot0():
            if not self.ins0: return
            if self.dE: a.nop(self.dE)
            a.ins(f's_cbranch_scc1 {t}_ns0')
            p = a.pos
            for r in P0: a.valu('v_not_b32', v(r), s(sTAG))
            shot(P0)
            a.pos = p
            a.lines.append(f'{t}_ns0:')
        XF0, XF1, U22, U32, U23, U33 = fr(('o', 4, 0), R6), fr(('o', 4, 1), R4), fr(('o', 2, 2), R6), fr(('o', 3, 2), R4), fr(('o', 2, 3), AQ0), fr(('o', 3, 3), R2)
        f0, f1, f2, f3, fx = [fin(u) for u in range(5)]
        if self.eo == 1:
          run([frd(1), frd(2), E(0, 0), frd(3), E(1, 0), z2(ACX), E(2, 0), XF0[0], z2(ACX + 2),
             E(0, 1), XF0[1], E(0, 2), E(0, 3), E(1, 1), E(1, 2), f0[0], E(1, 3), f0[1], E(3, 0), XF1[0], f0[2], E(4, 0), f0[3], f1[0], XF1[1],
             E(2, 1), U22[0], f1[1], f1[2], E(3, 1), f1[3], st(9), U22[1], U23[0], U23[1], E(4, 1), U33[0], U33[1], U32[0], U32[1], E(2, 2), fx[0], fx[1], E(2, 3), fx[2], fx[3],
             E(3, 3), sal('s_cmp_lg_u32', s(sW), 2, nodst=True), E(3, 2), f2[0], f2[1], f2[2], f2[3], f3[0], f3[1], f3[2], f3[3]])
        else:
          run([frd(1), frd(2), E(2, 0), frd(3), E(0, 0), XF0[0], z2(ACX), E(1, 0), XF0[1], z2(ACX + 2), E(3, 0), XF1[0],
             E(0, 1), XF1[1], E(0, 2), E(0, 3), E(4, 0), U22[0], E(1, 1), U22[1], f0[0], E(4, 1), U23[0], f0[1], E(1, 2), U23[1], f0[2], E(1, 3), f0[3], fx[0],
             E(2, 1), U32[0], fx[1], E(2, 2), U32[1], fx[2], f1[0], E(3, 1), fx[3], f1[1], f1[2], E(2, 3), f1[3], st(9), U33[0], U33[1],
             E(3, 2), sal('s_cmp_lg_u32', s(sW), 2, nodst=True), f2[0], f2[1], f2[2], E(3, 3), f2[3], f3[0], f3[1], f3[2], f3[3]])
        st(10)()
        P = [AQ0, AK0, AQ1, AK1]; RD, XT, NEG, SELR = R1, AV1, AV1 + 1, R8
        def finish():
            a.fence()
            a.ins(f's_branch {t}_loop')
        def publish():
            a.valu('v_cvt_pk_bf16_f32', v(RD), v(RD), v(RD + 2))
            a.salu('s_mov_b64', 'exec', s(sSTM, 2))
            a.vmem('buffer_store_dword', v(RD), v(MST), srd, s(sMST), mods='offen ' + fl, load=False)
            st(11)()
        def reset():
            a.vmem('buffer_store_dword', v(NEG), v(MST), srd, s(sMRS), mods='offen ' + fl, load=False)
            a.salu('s_mov_b64', 'exec', -1)
        def idle(pre=True):
            a.ds('ds_read_b128', v(SELR, 4), v(L16), mods=f'offset:{L_SEL - B_LW1}')
            if pre: prefetch_top()
            a.salu('s_add_u32', s(sSTEP), s(sSTEP), 1); a.salu('s_mov_b32', s(sMEM), s(sT1))
            a.salu('s_add_u32', s(sKX), s(sKX), 32 * 16384); a.salu('s_add_u32', s(sPF), s(sPF), 32 * 16384)
            offsets(); a.valu('v_mov_b32', v(NEG), -1)
            a.salu('s_add_u32', s(sFV), s(sFV), 24 * 512)
            a.salu('s_mov_b32', s(sT0), 1)
        def reduce(lab, k, P):
            a.label(f'{t}_chk{lab}')
            a.valu('v_mov_b32', v(XT), 0)
            for i in range(4):
                a.ins(f's_waitcnt vmcnt({4 * k - 1 - i})')
                chk = [val('v_bitop3_b32', v(XT), v(XT), v(r), s(sTAG), mods='bitop3:0xf6') for r in (P[i], P[i] + 2)]
                if k > 1: run(chk)
                a.mfma(MF32, v(RD, 4), v(P[i], 4), v(SELR, 4), 0 if i == 0 else v(RD, 4))
                if k == 1: run(chk)
            a.valu('v_and_b32', v(XT), s(sT0), v(XT))
            a.valu('v_cmp_ne_u32', 'vcc', 0, v(XT))
            a.ins(f's_cbranch_vccnz {t}_spin{lab}')
            a.pos += 4
            a.valu('v_permlane32_swap_b32', v(RD), v(RD + 2)); a.valu('v_permlane32_swap_b32', v(RD + 1), v(RD + 3))
            a.valu('v_add_f32', v(RD), v(RD), v(RD + 2)); a.valu('v_add_f32', v(RD + 2), v(RD + 1), v(RD + 3))
        def retry(lab, P):
            a.label(f'{t}_spin{lab}')
            a.forget()
            shot(P)
            a.salu('s_sub_u32', s(sSPIN), s(sSPIN), 1)
            a.salu('s_cmp_lt_i32', s(sSPIN), 0, nodst=True)
            a.salu('s_cselect_b32', s(sT0), 0, 1)
            a.ins(f's_branch {t}_chk{lab}')
        a.ins(f's_cbranch_scc1 {t}_w013')
        a.fence()
        if self.d0: a.nop(self.d0)
        shot(P0)
        idle(False); zero(0, 20)
        if self.k0 > 1: a.nop(self.pF); shot(P0)
        reduce('F', self.k0, P0); publish(); reset()
        if self.k0 == 1: prefetch_top()
        a.nop(self.dB); poll0()
        if self.k0 > 1: a.ins('s_waitcnt vmcnt(1)'); prefetch_top()
        a.fence()
        a.ins(f's_branch {t}_loop2')
        a.label(f'{t}_w013')
        a.forget()
        idle()
        a.salu('s_cmp_eq_u32', s(sROLE), 0, nodst=True)
        a.ins(f's_cbranch_scc1 {t}_w0')
        if self.d1: a.nop(self.d1)
        shot(P)
        if self.k1 > 1: a.nop(self.pG); shot(P)
        reduce('G', self.k1, P)
        a.salu('s_cmp_eq_u32', s(sW), 3, nodst=True)
        a.ins(f's_cbranch_scc1 {t}_w3')
        a.valu('v_mov_b32', v(RD + 1), v(RD)); a.valu('v_mov_b32', v(RD + 3), v(RD + 2))
        a.valu('v_permlane16_swap_b32', v(RD), v(RD + 1)); a.valu('v_permlane16_swap_b32', v(RD + 2), v(RD + 3))
        a.valu('v_add_f32', v(RD), v(RD), v(RD + 1)); a.valu('v_add_f32', v(RD + 2), v(RD + 2), v(RD + 3))
        a.label(f'{t}_w3')
        if self.k1 > 1: a.ins('s_cbranch_execz .+4') if 0 else None
        publish(); reset()
        poll0()
        if self.k1 > 1: a.ins('s_waitcnt vmcnt(1)')
        finish()
        a.label(f'{t}_w0')
        a.forget()
        zero(0, 20)
        if self.w0hook: self.w0hook(a)
        a.nop(self.dZ); poll0()
        a.ins(f's_branch {t}_loop2')
        retry('F', P0); retry('G', P)
        a.label(f'{t}_spin0')
        a.forget()
        poll0()
        a.salu('s_sub_u32', s(sSPIN), s(sSPIN), 1)
        a.salu('s_cmp_lt_i32', s(sSPIN), 0, nodst=True)
        a.ins(f's_cbranch_scc0 {t}_chk0')
        a.ins('s_waitcnt vmcnt(0)')
        for r in range(4): a.valu('v_min_u32', v(R0 + r), -2, v(R0 + r))
        a.ins(f's_branch {t}_chk0')
        a.label(f'{t}_spin1')
        a.forget()
        poll1()
        a.salu('s_sub_u32', s(sSPIN), s(sSPIN), 1)
        a.salu('s_cmp_lt_i32', s(sSPIN), 0, nodst=True)
        a.ins('s_waitcnt vmcnt(0)')
        run(c1 + [w1a, w1b, ins('s_waitcnt lgkmcnt(0)')])
        a.ins(f's_cbranch_scc1 {t}_go1')
        a.ins(f's_cbranch_vccnz {t}_spin1')
        a.ins(f's_branch {t}_go1')
        a.label(f'{t}_last')
        a.forget(); a.nop(2)
        M.update({8: R0, 7: R8, 6: R6, 5: R7})
        a.ins('s_waitcnt vmcnt(0) lgkmcnt(0)')
        run([lambda: pmld(R4), lambda: pubk(AQ0), mr(1, R2), mr(2, R3), mr(3, R1), lambda: pubm(R4), ('v1', 8)] + [(o, sl) for sl in (7, 6, 5, 1, 2, 3) for o in ('v0', 'v1')]
            + [cvt(AV0, AV0), cvt(AV0 + 1, AV0 + 2), cvt(AV0 + 2, AV1), cvt(AV0 + 3, AV1 + 2), lambda: pubv(AV0), val('v_mov_b32', v(R2), s(sNONCE))])
        a.ins('s_waitcnt vmcnt(0)')
        flag(R2)
```

```python
from asmfw import Asm, R
import chain2 as C

def s(i, n=1): return R(i, n, 's')
def v(i, n=1): return R(i, n, 'v')
MF32 = 'v_mfma_f32_16x16x32_bf16'

SRD_WS, SRD_X, SRD_W = 4, 8, 12
sM, sHh, sW, sSEG, sSTR = 16, 17, 18, 19, 20
sT0, sT1, sT2 = 21, 22, 23
sSRC, sLDSW, sOUT, sBUF, sOUT1 = 24, 25, 26, 27, 28
sPRG, sRND, sT3 = 29, 30, 31
sO2, sOA, sSA, sHS = 40, 41, 42, 43
XBUF = 36864
SY_PRG = C.WS_SYNC
DONE = 63
WF = 64

def wfrag(hd, tau, k): return R(tau * 72 + k * 4, 4, 'a') if hd else v(WF + tau * 72 + k * 4, 4)

def tr_loader(a, srd, jobs, GA, TA, T1, T2, sWK, sT, bufs, mid=None):
    nb = len(bufs); tags = {}
    def issue(j):
        jobs[j][0](a)
        for p in range(4):
            a.salu('s_add_u32', 'm0', s(sWK), bufs[j % nb] + p * 1024)
            if p: a.salu('s_add_u32', s(sT), s(sT), jobs[j][1])
            else: a.nop(1)
            a.raw(f'    buffer_load_dwordx4 v{GA}, s[{srd}:{srd+3}], s{sT} offen lds'); a.pos += 1; a.vm_seq += 1
        tags[j] = a.vm_seq
    for j in range(min(nb, len(jobs))): issue(j)
    if mid: mid()
    for j in range(len(jobs)):
        a.valu('v_add_u32', v(T1), bufs[j % nb], v(TA))
        a.valu('v_xor_b32', v(T2), 32, v(T1))
        a.wait(vm=tags[j])
        for dst, alt, off in jobs[j][2]:
            a.ds('ds_read_b64_tr_b16', dst, v(T2 if alt else T1), mods=f'offset:{off}')
        a.wait(lds='all')
        if j + nb < len(jobs): issue(j + nb)

def qkv_role(a: Asm, tag, pX, pW, sNONCE, sGRP, late=None, qw=0, qx=0):
    t = tag
    ACC, PK, AF = 208, 8, 32
    LANE16, VSRC, VRD, TMP, TMP2, GA, LWv, TA = 1, 2, 3, 4, 5, 6, 7, 24
    srd = s(SRD_WS, 4)
    a.valu('v_lshrrev_b32', v(TMP), 6, 'v0')
    a.valu('v_readfirstlane_b32', s(sW), v(TMP))
    a.valu('v_lshlrev_b32', v(LWv), 4, 'v0')
    a.valu('v_and_b32', v(TMP), 63, 'v0')
    a.valu('v_lshrrev_b32', v(GA), 2, v(TMP)); a.valu('v_lshlrev_b32', v(GA), 13, v(GA))
    a.valu('v_lshrrev_b32', v(TMP2), 4, v(TMP)); a.valu('v_and_b32', v(TMP2), 2, v(TMP2)); a.valu('v_xor_b32', v(TMP2), v(TMP2), v(TMP))
    a.valu('v_and_b32', v(TMP2), 3, v(TMP2)); a.valu('v_lshl_add_u32', v(GA), v(TMP2), 4, v(GA))
    a.valu('v_lshrrev_b32', v(TA), 4, v(TMP)); a.valu('v_lshlrev_b32', v(TA), 9, v(TA))
    a.valu('v_bfe_u32', v(TMP2), v(TMP), 2, 2); a.valu('v_lshl_add_u32', v(TA), v(TMP2), 6, v(TA))
    a.valu('v_bfe_u32', v(TMP2), v(TMP), 4, 1); a.valu('v_lshl_add_u32', v(TA), v(TMP2), 5, v(TA))
    a.valu('v_and_b32', v(TMP2), 3, v(TMP)); a.valu('v_lshl_add_u32', v(TA), v(TMP2), 3, v(TA))
    a.salu('s_lshl_b32', s(sT3), s(sW), 12)
    a.valu('v_add_u32', v(TA), s(sT3), v(TA))
    a.salu('s_cmp_eq_u32', s(sM), 1, nodst=True)
    a.salu('s_cselect_b64', s(SRD_W, 2), s(pW + 2, 2), s(pW, 2))
    a.salu('s_cmp_eq_u32', s(sM), 2, nodst=True)
    a.salu('s_cselect_b64', s(SRD_W, 2), s(pW + 4, 2), s(SRD_W, 2))
    a.salu('s_mov_b32', s(SRD_W + 2), 576 * 8192); a.salu('s_mov_b32', s(SRD_W + 3), '0x20000')
    a.salu('s_lshl_b32', s(sOUT1), s(sHh), 8); a.salu('s_lshl_b32', s(sT0), s(sW), 6); a.salu('s_add_u32', s(sOUT1), s(sOUT1), s(sT0))
    def rest():
        a.valu('v_and_b32', v(TMP2), 15, v(TMP))
        a.valu('v_lshrrev_b32', v(VRD), 4, v(TMP))
        a.valu('v_lshrrev_b32', v(VSRC), 2, v(TMP2))
        a.valu('v_xor_b32', v(VRD), v(VRD), v(VSRC))
        a.valu('v_lshl_add_u32', v(VRD), v(TMP2), 2, v(VRD))
        a.valu('v_lshlrev_b32', v(LANE16), 4, v(VRD))
        a.valu('v_lshrrev_b32', v(TMP2), 2, v(TMP))
        a.valu('v_lshrrev_b32', v(VRD), 4, v(TMP))
        a.valu('v_and_b32', v(TMP), 3, v(TMP))
        a.valu('v_xor_b32', v(TMP), v(TMP), v(VRD))
        a.valu('v_lshlrev_b32', v(VRD), 3, v(VRD))
        a.valu('v_and_b32', v(TMP2), 3, v(TMP2))
        a.valu('v_add_u32', v(VRD), v(VRD), v(TMP2))
        a.valu('v_mul_u32_u24', v(VSRC), 1152, v(VRD))
        a.valu('v_lshl_add_u32', v(VSRC), v(TMP), 4, v(VSRC))
        a.salu('s_mov_b32', s(SRD_X), s(pX)); a.salu('s_mov_b32', s(SRD_X + 1), s(pX + 1))
        a.salu('s_mov_b32', s(SRD_X + 2), 2048 * 1152); a.salu('s_mov_b32', s(SRD_X + 3), '0x20000')
        a.salu('s_lshr_b32', s(sT1), s(sW), 1); a.salu('s_mul_i32', s(sSRC), s(sT1), 4608)
        a.salu('s_and_b32', s(sT1), s(sW), 1); a.salu('s_mul_i32', s(sT2), s(sT1), 576); a.salu('s_add_u32', s(sSRC), s(sSRC), s(sT2))
        a.salu('s_mul_i32', s(sLDSW), s(sW), 9 * 1024)
        a.salu('s_mul_i32', s(sT1), s(sSEG), 32 * 1152); a.salu('s_add_u32', s(sSRC), s(sSRC), s(sT1))
        a.salu('s_mul_i32', s(sSA), s(sSTR), 32 * 1152)
        a.salu('s_mov_b32', s(sBUF), 0)
        dma(sBUF)
        a.salu('s_lshl_b32', s(sT1), s(sSEG), 5); a.salu('s_add_u32', s(sT1), s(sT1), s(sHh))
        a.salu('s_lshl_b32', s(sOUT), s(sT1), 14)
        a.salu('s_mul_i32', s(sT2), s(sW), 3072); a.salu('s_add_u32', s(sOUT), s(sOUT), s(sT2))
        a.salu('s_lshl_b32', s(sT2), s(sM), 11); a.salu('s_add_u32', s(sOUT), s(sOUT), s(sT2))
        a.salu('s_add_u32', s(sOUT), s(sOUT), C.WS_KV - 2048)
        a.salu('s_lshl_b32', s(sT1), s(sT1), 13); a.salu('s_add_u32', s(sT1), s(sT1), C.WS_Q)
        a.salu('s_cmp_eq_u32', s(sM), 0, nodst=True)
        a.salu('s_cselect_b32', s(sOUT), s(sT1), s(sOUT))
        a.salu('s_cselect_b32', s(sO2), 4, 1); a.salu('s_cselect_b32', s(sHS), 1, 2)
        a.salu('s_lshl_b32', s(sO2), s(sO2), 10); a.salu('s_lshl_b32', s(sHS), s(sHS), 13)
        a.salu('s_lshl_b32', s(sOA), s(sHS), 5); a.salu('s_mul_i32', s(sOA), s(sOA), s(sSTR))
        a.salu('s_lshl_b32', s(sPRG), s(sHh), 7); a.salu('s_lshl_b32', s(sT1), s(sGRP), 2)
        a.salu('s_add_u32', s(sPRG), s(sPRG), s(sT1)); a.salu('s_add_u32', s(sPRG), s(sPRG), SY_PRG)
    def dma_ops(bufreg):
        ops = []
        for i in range(9):
            def f(i=i):
                if i == 0: a.salu('s_add_u32', s(sT2), s(bufreg), s(sLDSW))
                a.salu('s_add_u32', 'm0', s(sT2), i * 1024 - i * 64)
                a.nop(1)
                a.raw(f'    buffer_load_dwordx4 v{VSRC}, s[{SRD_X}:{SRD_X+3}], s{sSRC} offen offset:{i * 64} lds')
                a.pos += 1; a.vm_seq += 1
                if i == 8: a.salu('s_add_u32', s(sSRC), s(sSRC), s(sSA))
            ops.append(f)
        return ops
    def dma(bufreg):
        for f in dma_ops(bufreg): f()
    jobs = []
    for tt in range(9):
        for hd in range(2):
            def setup(a, tt=tt, hd=hd): a.salu('s_add_u32', s(sT0), s(sOUT1), tt * 64 * 8192 + hd * 256)
            rd = []
            for kk in range(2):
                for tau in range(2):
                    k_, b_ = ('a', tau * 72 + (2 * tt + kk) * 4) if hd else ('v', WF + tau * 72 + (2 * tt + kk) * 4)
                    for jp in range(2): rd.append((R(b_ + 2 * jp, 2, k_), tau, kk * 2048 + jp * 256))
            jobs.append((setup, 16 * 8192, rd))
    tr_loader(a, SRD_W, jobs, GA, TA, 25, 26, sT3, sT0, [40960 + 16384 * i for i in range(7)], mid=rest)
    if late: late(a)
    a.ins('s_barrier')
    a.salu('s_mov_b32', s(sBUF), XBUF)
    dma(sBUF)
    a.salu('s_mov_b32', s(sBUF), 0)
    a.salu('s_mov_b32', s(sRND), s(sNONCE))
    a.salu('s_cmp_eq_u32', s(sW), 0, nodst=True)
    a.salu('s_cselect_b32', 's34', 1, 0); a.salu('s_mov_b32', 's35', 0)
    a.salu('s_cmp_eq_u32', s(sM), 2, nodst=True)
    a.ins(f's_cbranch_scc1 {t}_vloop')
    def pub(valexpr):
        a.valu('v_mov_b32', v(TMP), valexpr)
        a.salu('s_mov_b64', 'exec', 's[34:35]')
        a.vmem('buffer_store_dword', v(TMP), 'off', srd, s(sPRG), mods='sc1', load=False)
        a.salu('s_mov_b64', 'exec', -1)
    for isv in (0, 1):
        L = f'{t}_vloop' if isv else f'{t}_loop'
        a.fence()
        a.label(L)
        a.forget()
        a.ins('s_barrier')
        a.valu('v_add_u32', v(VRD), s(sBUF), v(LANE16))
        rd = {}
        def rdA(k):
            for x in range(2):
                rd[(k, x)] = a.ds('ds_read_b128', v(AF + ((k % 4) * 2 + x) * 4, 4), v(VRD), mods=f'offset:{(x*18+k)*1024}')
        for k in range(3): rdA(k)
        a.salu('s_sub_u32', s(sT1), s(sRND), 1)
        pub(s(sT1))
        a.salu('s_add_u32', s(sT1), s(sBUF), 2 * XBUF)
        a.salu('s_sub_u32', s(sT0), s(sT1), 3 * XBUF)
        a.salu('s_cselect_b32', s(sT1), s(sT1), s(sT0))
        dops = dma_ops(sT1)
        for k in range(18):
            if k + 3 < 18: rdA(k + 3)
            if k < 9: dops[k]()
            a.wait(lds=rd[(k, 1)])
            for hd in range(2):
                for x in range(2):
                    for tau in range(2):
                        acc = v(ACC + ((hd * 2 + x) * 2 + tau) * 4, 4)
                        xf = v(AF + ((k % 4) * 2 + x) * 4, 4)
                        wf = wfrag(hd, tau, k)
                        if isv: a.mfma(MF32, acc, xf, wf, 0 if k == 0 else acc)
                        else: a.mfma(MF32, acc, wf, xf, 0 if k == 0 else acc)
        a.ins(f's_waitcnt vmcnt({qw})')
        for hd in range(2):
            A0 = ACC + hd * 16
            for o in range(2):
                for r in range(4):
                    d = PK + (hd * 2 + o) * 4 + r
                    src = A0 + (((r >> 1) * 2 + o) if isv else (o * 2 + (r >> 1))) * 4 + (r & 1) * 2
                    a.valu('v_cvt_pk_bf16_f32', v(d), v(src), v(src + 1))
                if hd == 0 and o == 0: a.salu('s_mov_b32', s(sOUT1), s(sOUT))
                elif o == 0: a.salu('s_add_u32', s(sOUT1), s(sOUT), s(sHS))
                else: a.salu('s_add_u32', s(sOUT1), s(sOUT1), s(sO2))
                a.vmem('buffer_store_dwordx4', v(PK + (hd * 2 + o) * 4, 4), v(LWv), srd, s(sOUT1), mods='offen ' + ('sc1', '', 'nt', 'sc1 nt')[qx], load=False, data=v(PK + (hd * 2 + o) * 4, 4))
        a.salu('s_add_u32', s(sOUT), s(sOUT), s(sOA))
        a.salu('s_add_u32', s(sBUF), s(sBUF), XBUF)
        a.salu('s_cmp_eq_u32', s(sBUF), 3 * XBUF, nodst=True)
        a.salu('s_cselect_b32', s(sBUF), 0, s(sBUF))
        a.salu('s_add_u32', s(sRND), s(sRND), 1)
        a.salu('s_add_u32', s(sSEG), s(sSEG), s(sSTR))
        a.salu('s_cmp_lt_u32', s(sSEG), 64, nodst=True)
        a.fence()
        a.ins(f's_cbranch_scc1 {L}')
        if not isv: a.ins(f's_branch {t}_done')
    a.label(f'{t}_done')
    a.ins('s_waitcnt vmcnt(0)')
    a.ins('s_barrier')
    a.salu('s_add_u32', s(sT1), s(sNONCE), DONE)
    pub(s(sT1))


def memkv_role(a: Asm, tag, sNONCE, sPAR, slp=4):
    t = tag
    ACC = 8
    regs = [24 + 4 * i for i in range(10)] + [208 + 4 * i for i in range(8)]
    VA, VF, TMP, TMP2, LWv = [1, 2, 3], 6, 4, 5, 7
    srd = s(SRD_WS, 4)
    sS, sSRCM, sDST = 19, 24, 26
    a.forget()
    a.valu('v_and_b32', v(TMP), 63, 'v0')
    a.valu('v_lshrrev_b32', v(TMP2), 4, v(TMP))
    for b in range(3):
        a.valu('v_add_u32', v(VA[b]), 4 * b, v(TMP2))
        a.valu('v_mul_u32_u24', v(VF), 11, v(VA[b])); a.valu('v_lshrrev_b32', v(VF), 5, v(VF))
        a.valu('v_add_u32', v(VA[b]), v(VA[b]), v(VF)); a.valu('v_lshlrev_b32', v(VA[b]), 7, v(VA[b]))
        a.valu('v_and_b32', v(VF), 7, v(TMP)); a.valu('v_lshl_add_u32', v(VA[b]), v(VF), 4, v(VA[b]))
    a.valu('v_min_u32', v(VF), 23, v(TMP)); a.valu('v_lshlrev_b32', v(VF), 9, v(VF))
    a.salu('s_mov_b32', s(sS), s(sPAR))
    a.salu('s_mul_i32', s(sSRCM), s(sS), 12288); a.salu('s_add_u32', s(sSRCM), s(sSRCM), C.WS_MEMH)
    a.salu('s_lshl_b32', s(sDST), s(sS), 5); a.salu('s_add_u32', s(sDST), s(sDST), s(sHh)); a.salu('s_lshl_b32', s(sDST), s(sDST), 12)
    a.salu('s_mov_b32', s(sT0), C.WS_KM)
    a.salu('s_cmp_eq_u32', s(sM), 2, nodst=True)
    a.salu('s_cselect_b32', s(sT0), C.WS_VM, s(sT0))
    a.salu('s_add_u32', s(sDST), s(sDST), s(sT0))
    a.salu('s_lshl_b32', s(sPRG), s(sHh), 7); a.salu('s_lshl_b32', s(sT0), s(sM), 1); a.salu('s_add_u32', s(sT0), s(sT0), s(sPAR))
    a.salu('s_lshl_b32', s(sT0), s(sT0), 2); a.salu('s_add_u32', s(sPRG), s(sPRG), s(sT0))
    a.salu('s_add_u32', s(sPRG), s(sPRG), SY_PRG + 128 - 8)
    a.fence()
    a.label(f'{t}_loop')
    a.forget()
    a.salu('s_cmp_lg_u32', s(sW), 0, nodst=True)
    a.ins(f's_cbranch_scc1 {t}_go')
    a.salu('s_add_u32', s(sT2), s(sSRCM), 12288)
    a.salu('s_mov_b32', s(sT0), 1 << 22)
    a.label(f'{t}_wait')
    a.vmem('buffer_load_dword', v(TMP), v(VF), srd, s(sT2), mods='offen offset:384 sc1')
    a.salu('s_sub_u32', s(sT0), s(sT0), 1)
    a.ins(f's_cbranch_scc1 {t}_go')
    a.ins('s_waitcnt vmcnt(0)')
    a.valu('v_cmp_ne_u32', 'vcc', s(sNONCE), v(TMP))
    a.ins(f's_cbranch_vccz {t}_go')
    a.ins(f's_sleep {slp}')
    a.ins(f's_branch {t}_wait')
    a.label(f'{t}_go')
    a.ins('s_barrier')
    tg = []
    for k in range(18):
        if k % 6 == 0: a.salu('s_add_u32', s(sT2), s(sSRCM), (k // 6) * 4096)
        tg.append(a.vmem('buffer_load_dwordx4', v(regs[k], 4), v(VA[k % 3]), srd, s(sT2), mods=f'offen offset:{((k // 3) & 1) * 2048} sc1'))
    a.salu('s_add_u32', s(sSRCM), s(sSRCM), 2 * 12288)
    a.salu('s_add_u32', s(sT1), s(sS), s(sNONCE)); a.salu('s_add_u32', s(sT1), s(sT1), 1)
    a.salu('s_cmp_eq_u32', s(sM), 2, nodst=True)
    a.ins(f's_cbranch_scc1 {t}_v')
    done0 = dict(a.done)
    for isv in (0, 1):
        if isv: a.label(f'{t}_v'); a.done = dict(done0)
        for k in range(18):
            a.wait(vm=tg[k])
            for hd in range(2):
                for tau in range(2):
                    acc = v(ACC + (hd * 2 + tau) * 4, 4); xf = v(regs[k], 4); wf = wfrag(hd, tau, k)
                    if isv: a.mfma(MF32, acc, xf, wf, 0 if k == 0 else acc)
                    else: a.mfma(MF32, acc, wf, xf, 0 if k == 0 else acc)
        if isv:
            for q4 in range(8): a.valu('v_pk_mul_f32', v(ACC + 2 * q4, 2), v(ACC + 2 * q4, 2), '0.5', mods='op_sel_hi:[1,0]')
        a.fence()
        if not isv: a.ins(f's_branch {t}_st')
    a.label(f'{t}_st')
    for q4 in range(8): a.valu('v_cvt_pk_bf16_f32', v(24 + q4), v(ACC + 2 * q4), v(ACC + 2 * q4 + 1))
    a.salu('s_add_u32', s(sT0), s(sDST), 4096)
    a.vmem('buffer_store_dwordx4', v(24, 4), v(LWv), srd, s(sDST), mods='offen sc1', load=False, data=v(24, 4))
    a.vmem('buffer_store_dwordx4', v(28, 4), v(LWv), srd, s(sT0), mods='offen sc1', load=False, data=v(28, 4))
    a.ins('s_waitcnt vmcnt(0)')
    a.ins('s_barrier')
    a.valu('v_mov_b32', v(TMP), s(sT1))
    a.salu('s_mov_b64', 'exec', 's[34:35]')
    a.vmem('buffer_store_dword', v(TMP), 'off', srd, s(sPRG), mods='sc1', load=False)
    a.salu('s_mov_b64', 'exec', -1)
    a.salu('s_add_u32', s(sS), s(sS), 2)
    a.salu('s_add_u32', s(sDST), s(sDST), 2 << 17)
    a.salu('s_cmp_lt_u32', s(sS), 62, nodst=True)
    a.fence()
    a.ins(f's_cbranch_scc1 {t}_loop')
```

```python
from asmfw import Asm, R

def s(i, n=1): return R(i, n, 's')
def v(i, n=1): return R(i, n, 'v')
MF32 = 'v_mfma_f32_16x16x32_bf16'
MFF = 'v_mfma_f32_16x16x4_f32'

CH = 16384
L_U = 0
L_KD = 4608
L_K0 = 7424
L_K1 = 11776
L_Y = 7424
C0 = 2064

SRD_U, SRD_P, SRD_O = 8, 12, 16
sD0, sW, sT0, sT1, sT2, sI = 20, 21, 22, 23, 24, 25
sL2E, sINV2PI = 26, 27

def ssm_job(a: Asm, tag, pB, pOUT):
    t = tag
    pU, pLA, pAI, pCR, pCI, pDT, pDS = [pB + 2 * i for i in range(7)]
    LANE, Cc, G, LB, TMP, TMP2, TMP3 = 1, 2, 3, 4, 5, 6, 7
    UR = 8
    def srd(base, p, size):
        a.salu('s_mov_b32', s(base), s(p)); a.salu('s_mov_b32', s(base + 1), s(p + 1))
        a.salu('s_mov_b32', s(base + 2), size); a.salu('s_mov_b32', s(base + 3), '0x20000')
    a.valu('v_lshrrev_b32', v(TMP), 6, 'v0')
    a.valu('v_readfirstlane_b32', s(sW), v(TMP))
    a.valu('v_and_b32', v(LANE), 63, 'v0')
    a.valu('v_and_b32', v(Cc), 15, v(LANE))
    a.valu('v_lshrrev_b32', v(G), 4, v(LANE))
    a.valu('v_lshlrev_b32', v(LB), 14, v(TMP))
    srd(SRD_U, pU, 2048 * 1152)
    srd(SRD_O, pOUT, 2048 * 2304)
    a.valu('v_mul_u32_u24', v(TMP), 8 * 1152, 'v0')
    a.salu('s_lshl_b32', s(sT0), s(sD0), 1)
    for r in range(8):
        a.salu('s_add_u32', s(sT1), s(sT0), r * 1152)
        a.vmem('buffer_load_dwordx2', v(UR + 2 * r, 2), v(TMP), s(SRD_U, 4), s(sT1), mods='offen')
    PR = 24
    a.salu('s_add_u32', s(sT0), s(sD0), s(sW))
    a.salu('s_lshl_b32', s(sT1), s(sT0), 8)
    a.valu('v_lshlrev_b32', v(TMP2), 3, v(Cc))
    a.valu('v_lshl_add_u32', v(TMP2), v(G), 1, v(TMP2))
    for q, p in enumerate((pLA, pAI, pCR, pCI)):
        srd(SRD_P, p, 576 * 256)
        for i in range(2):
            a.vmem('buffer_load_ushort', v(PR + i * 4 + q), v(TMP2), s(SRD_P, 4), s(sT1), mods=f'offen offset:{i*128}')
    srd(SRD_P, pDT, 1152)
    a.salu('s_lshl_b32', s(sT1), s(sT0), 1)
    tp = a.vmem('buffer_load_ushort', v(32), 'off', s(SRD_P, 4), s(sT1))
    a.salu('s_mov_b32', s(sL2E), '0x3fb8aa3b')
    a.salu('s_mov_b32', s(sINV2PI), '0x3e22f983')
    for i in range(2): a.valu('v_mov_b32', v(34 + i), 0)
    a.valu('v_lshl_add_u32', v(TMP2), v(LANE), 3, v(LB))
    a.ds('ds_write_b64', v(TMP2), v(34, 2), mods=f'offset:{L_U}')
    a.wait(vm=tp)
    a.valu('v_mov_b32', v(36), '0x05040100'); a.valu('v_mov_b32', v(37), '0x07060302')
    a.valu('v_lshlrev_b32', v(TMP2), 4, 'v0')
    for ch in range(4):
        for j in range(4):
            a.valu('v_perm_b32', v(40 + j), v(UR + 2 * (2 * j + 1) + (ch >> 1)), v(UR + 2 * (2 * j) + (ch >> 1)), v(36 + (ch & 1)))
        a.ds('ds_write_b128', v(TMP2), v(40, 4), mods=f'offset:{ch*CH + L_U + 512}')
        a.nop(2)
    def exp_bf16(dst, src):
        a.valu('v_lshlrev_b32', v(dst), 16, v(src))
        a.valu('v_mul_f32', v(dst), s(sL2E), v(dst))
        a.valu('v_exp_f32', v(dst), v(dst))
        a.valu('v_cvt_pk_bf16_f32', v(dst), v(dst), v(dst))
        a.valu('v_and_b32', v(dst), '0xffff0000', v(dst))
    DT = 32
    exp_bf16(DT, DT)
    a.valu('v_add_f32', v(33), v(DT), v(DT))
    for i in range(2):
        b = PR + i * 4
        exp_bf16(b, b)
        a.valu('v_mul_f32', v(b), v(b), v(DT))
        a.valu('v_mul_f32', v(b), s(sL2E), v(b))
        a.valu('v_sub_f32', v(b), 0, v(b))
        a.valu('v_lshlrev_b32', v(b + 1), 16, v(b + 1))
        a.valu('v_mul_f32', v(b + 1), v(b + 1), v(DT))
        a.valu('v_mul_f32', v(b + 1), s(sINV2PI), v(b + 1))
        for q in (2, 3):
            a.valu('v_lshlrev_b32', v(b + q), 16, v(b + q))
            a.valu('v_mul_f32', v(b + q), v(b + q), v(33))
    POS = 44
    a.valu('v_cvt_f32_u32', v(POS + 3), v(Cc))
    a.valu('v_mul_f32', v(POS), '0x41800000', v(POS + 3))
    a.valu('v_and_b32', v(TMP), 7, v(Cc))
    a.valu('v_add_u32', v(TMP), 8, v(TMP))
    a.valu('v_cvt_f32_u32', v(TMP), v(TMP))
    a.valu('v_mul_f32', v(POS + 1), '0x42000000', v(TMP))
    a.valu('v_mul_f32', v(TMP2), '0x42800000', v(TMP))
    a.valu('v_cmp_lt_u32', 'vcc', 7, v(Cc))
    a.valu('v_cndmask_b32', v(POS + 1), v(POS + 1), v(TMP2), 'vcc')
    a.valu('v_add_f32', v(TMP), '0x41000000', v(POS + 3))
    a.valu('v_mul_f32', v(POS + 2), '0x43000000', v(TMP))
    KA = 48
    for i in range(16): a.valu('v_mov_b32', v(KA + i), 0)
    ZA, ZB, CR, CI = 64, 65, 66, 67
    E = 68
    def cexp(re, im, pos):
        a.valu('v_mul_f32', v(82), v(ZA), v(pos))
        a.valu('v_mul_f32', v(83), v(ZB), v(pos))
        a.valu('v_exp_f32', v(82), v(82))
        a.valu('v_fract_f32', v(83), v(83))
        a.valu('v_cos_f32', v(re), v(83))
        a.valu('v_sin_f32', v(im), v(83))
        a.valu('v_mul_f32', v(re), v(re), v(82))
        a.valu('v_mul_f32', v(im), v(im), v(82))
    for kap in range(32):
        b = PR + (kap >> 4) * 4
        for q, d in enumerate((ZA, ZB, CR, CI)):
            a.valu('v_mov_b32_dpp', v(d), v(b + q), mods=f'row_newbcast:{kap & 15} row_mask:0xf bank_mask:0xf')
        cexp(E + 6, E + 7, POS + 3)
        for i in range(1, 4):
            r0, i0, r1, i1 = E + 4 + 2 * i, E + 5 + 2 * i, E + 6 + 2 * i, E + 7 + 2 * i
            a.valu('v_mul_f32', v(84), v(i0), v(i0))
            a.valu('v_add_f32', v(85), v(r0), v(r0))
            a.valu('v_fma_f32', v(r1), v(r0), v(r0), f'-v84')
            a.valu('v_mul_f32', v(i1), v(85), v(i0))
        for tl in range(3):
            re, im = E + 2 * tl, E + 2 * tl + 1
            cexp(re, im, POS + tl)
            a.valu('v_mul_f32', v(84), v(CI), v(im))
            a.valu('v_mul_f32', v(85), v(CI), v(re))
            a.valu('v_fma_f32', v(re), v(CR), v(re), '-v84')
            a.valu('v_fma_f32', v(im), f'-v{CR}', v(im), '-v85')
        for blk, (tl, bt) in enumerate(((0, 0), (1, 1), (1, 2), (2, 3))):
            d = v(KA + 4 * blk, 4)
            a.mfma(MFF, d, v(E + 2 * tl), v(E + 6 + 2 * bt), d, passes=8)
        for blk, (tl, bt) in enumerate(((0, 0), (1, 1), (1, 2), (2, 3))):
            d = v(KA + 4 * blk, 4)
            a.mfma(MFF, d, v(E + 2 * tl + 1), v(E + 7 + 2 * bt), d, passes=8)
    a.valu('v_lshlrev_b32', v(TMP), 8, v(G))
    a.valu('v_lshl_add_u32', v(TMP), v(Cc), 2, v(TMP))
    a.valu('v_add_u32', v(TMP), v(TMP), v(LB))
    for r in range(4): a.ds('ds_write_b32', v(TMP), v(KA + r), mods=f'offset:{L_KD + r*64}')
    a.valu('v_cmp_gt_u32', 'vcc', 2, v(G))
    a.salu('s_mov_b64', 'exec', 'vcc')
    for r in range(4): a.ds('ds_write_b32', v(TMP), v(KA + 4 + r), mods=f'offset:{L_KD + 1024 + r*64}')
    for r in range(4): a.ds('ds_write_b32', v(TMP), v(KA + 12 + r), mods=f'offset:{L_KD + 2048 + r*64}')
    a.salu('s_not_b64', 'exec', 'exec')
    for r in range(4): a.ds('ds_write_b32', v(TMP), v(KA + 8 + r), mods=f'offset:{L_KD + 1024 + r*64}')
    a.salu('s_mov_b32', 'exec_lo', 0); a.salu('s_mov_b32', 'exec_hi', 3)
    a.valu('v_cmp_eq_u32', 'vcc', 0, v(Cc))
    a.valu('v_cndmask_b32', v(TMP2), 0, v(KA + 12), 'vcc')
    a.ds('ds_write_b32', v(TMP), v(TMP2), mods=f'offset:{L_KD + 2048}')
    a.salu('s_mov_b64', 'exec', -1)
    a.wait(lds='all')
    a.valu('v_lshlrev_b32', v(TMP3), 1, v(LANE))
    a.valu('v_sub_u32', v(TMP3), C0 + 1, v(TMP3))
    a.valu('v_lshl_add_u32', v(64), v(LANE), 2, v(LB))
    a.valu('v_mov_b32', v(65), 641)
    a.salu('s_mov_b32', s(sI), 17)
    a.label(f'{t}_exp')
    for q in range(3):
        L, F = 66 + q, 70 + q
        a.valu('v_subrev_u32', v(L), q, v(TMP3))
        a.valu('v_cvt_f32_u32', v(F), v(L))
        a.valu('v_cvt_pk_bf16_f32', v(F), v(F), v(F))
        a.valu('v_and_b32', v(F), '0xffff', v(F))
        a.valu('v_subrev_u32', v(F), '0x4280', v(F))
        a.valu('v_cmp_gt_u32', 'vcc', 256, v(L))
        a.valu('v_cndmask_b32', v(F), v(F), v(L), 'vcc')
        a.valu('v_cmp_gt_u32', 'vcc', 2048, v(L))
        a.valu('v_cndmask_b32', v(F), v(65), v(F), 'vcc')
        a.valu('v_lshl_add_u32', v(F), v(F), 2, v(LB))
        a.ds('ds_read_b32', v(74 + q), v(F), mods=f'offset:{L_KD}')
    a.wait(lds='all')
    a.valu('v_cvt_pk_bf16_f32', v(78), v(75), v(76))
    a.valu('v_cvt_pk_bf16_f32', v(79), v(74), v(75))
    a.ds('ds_write_b32', v(64), v(78), mods=f'offset:{L_K0}')
    a.ds('ds_write_b32', v(64), v(79), mods=f'offset:{L_K1}')
    a.valu('v_subrev_u32', v(TMP3), 128, v(TMP3))
    a.valu('v_add_u32', v(64), 256, v(64))
    a.salu('s_sub_u32', s(sI), s(sI), 1)
    a.salu('s_cmp_lg_u32', s(sI), 0, nodst=True)
    a.fence()
    a.ins(f's_cbranch_scc1 {t}_exp')
    a.wait(lds='all')
    a.ins('s_barrier')
    AA, BA = 64, 65
    a.valu('v_and_b32', v(TMP), 1, v(Cc))
    a.valu('v_mul_u32_u24', v(AA), L_K1 - L_K0, v(TMP))
    a.valu('v_sub_u32', v(TMP), v(TMP), v(Cc))
    a.valu('v_lshl_add_u32', v(TMP), v(G), 3, v(TMP))
    a.valu('v_lshl_add_u32', v(AA), v(TMP), 1, v(AA))
    a.valu('v_add_u32', v(AA), L_K0 + 2 * (C0 - 16), v(AA))
    a.valu('v_add_u32', v(AA), v(AA), v(LB))
    a.valu('v_lshlrev_b32', v(BA), 5, v(Cc))
    a.valu('v_lshl_add_u32', v(BA), v(G), 4, v(BA))
    a.valu('v_add_u32', v(BA), L_U + 512 - 32, v(BA))
    a.valu('v_add_u32', v(BA), v(BA), v(LB))
    YA = 96
    AFR, BFR = 68, 128
    for i in range(32): a.valu('v_mov_b32', v(YA + i), 0)
    for Gp in range(8):
        a.salu('s_mov_b32', s(sI), 8)
        a.label(f'{t}_cv{Gp}')
        a.ds('ds_read2_b32', v(AFR, 2), v(AA), mods='offset0:0 offset1:1')
        a.ds('ds_read2_b32', v(AFR + 2, 2), v(AA), mods='offset0:2 offset1:3')
        tg = {}
        for nt in range(Gp, 8):
            tg[nt] = a.ds('ds_read_b128', v(BFR + 4 * nt, 4), v(BA), mods=f'offset:{(nt - Gp) * 512}')
        a.valu('v_subrev_u32', v(AA), 64, v(AA))
        a.valu('v_subrev_u32', v(BA), 64, v(BA))
        for nt in range(Gp, 8):
            a.wait(lds=tg[nt])
            d = v(YA + 4 * nt, 4)
            a.mfma(MF32, d, v(AFR, 4), v(BFR + 4 * nt, 4), d)
        a.salu('s_sub_u32', s(sI), s(sI), 1)
        a.salu('s_cmp_lg_u32', s(sI), 0, nodst=True)
        a.ins(f's_cbranch_scc1 {t}_cv{Gp}')
        a.valu('v_add_u32', v(BA), 512, v(BA))
    a.fence()
    a.valu('v_lshlrev_b32', v(TMP), 6, v(Cc))
    a.valu('v_lshl_add_u32', v(TMP), v(G), 4, v(TMP))
    a.valu('v_add_u32', v(TMP), v(TMP), v(LB))
    for nt in range(8):
        a.ds('ds_write_b128', v(TMP), v(YA + 4 * nt, 4), mods=f'offset:{L_Y + nt*1024}')
    srd(SRD_P, pDS, 1152)
    a.salu('s_lshl_b32', s(sT1), s(sD0), 1)
    a.vmem('buffer_load_dwordx2', v(24, 2), 'off', s(SRD_P, 4), s(sT1))
    a.wait(vm='all', lds='all')
    a.ins('s_barrier')
    a.valu('v_lshlrev_b32', v(26), 16, v(24)); a.valu('v_and_b32', v(27), '0xffff0000', v(24))
    a.valu('v_lshlrev_b32', v(28), 16, v(25)); a.valu('v_and_b32', v(29), '0xffff0000', v(25))
    a.valu('v_lshlrev_b32', v(TMP), 5, 'v0')
    for ch in range(4):
        a.ds('ds_read_b128', v(64 + ch * 8, 4), v(TMP), mods=f'offset:{ch*CH + L_Y}')
        a.ds('ds_read_b128', v(68 + ch * 8, 4), v(TMP), mods=f'offset:{ch*CH + L_Y + 16}')
    a.wait(lds='all')
    a.valu('v_mul_u32_u24', v(TMP), 8 * 2304, 'v0')
    a.salu('s_lshl_b32', s(sT0), s(sD0), 1)
    a.salu('s_add_u32', s(sT0), s(sT0), 1152)
    for r in range(8):
        for ch in range(4):
            u = UR + 2 * r + (ch >> 1)
            if ch & 1: a.valu('v_and_b32', v(TMP2), '0xffff0000', v(u))
            else: a.valu('v_lshlrev_b32', v(TMP2), 16, v(u))
            a.valu('v_fmac_f32', v(64 + ch * 8 + r), v(TMP2), v(26 + ch))
        a.valu('v_cvt_pk_bf16_f32', v(UR + 2 * r), v(64 + r), v(72 + r))
        a.valu('v_cvt_pk_bf16_f32', v(UR + 2 * r + 1), v(80 + r), v(88 + r))
        a.salu('s_add_u32', s(sT1), s(sT0), r * 2304)
        a.vmem('buffer_store_dwordx2', v(UR + 2 * r, 2), v(TMP), s(SRD_O, 4), s(sT1), mods='offen', load=False)
```

```python
import sys
sys.path.insert(0, 'gen2')
from asmfw import Asm
import chain2 as C, qkv2 as Q, attn2 as A, ssm as S
from chain2 import s, v
from build_ct import kd
NAME = 'concat_heads__memory_aug_recurrent_mem_tr__ssm_conv_s4d__prompt'
def start(a, name):
    a.raw(f'.text\n.globl {name}\n.p2align 8\n.type {name},@function\n{name}:')
def ws_srd(a, p):
    a.salu('s_mov_b32', 's4', s(p)); a.salu('s_mov_b32', 's5', s(p + 1))
    a.salu('s_mov_b32', 's6', C.WS_SIZE); a.salu('s_mov_b32', 's7', '0x20000')

sNONCE = C.sNONCE
DBG = 96
SY_ATT = C.WS_SYNC + 65536
D_NONCE, D_HELP, D_CH, D_ARR, D_SSM, D_T2, D_ATT, D_WF, D_OP = 0, 4, 128, 132, 8, 12, 16, 20, 136
D_XF2 = 24
D_MODE, D_CH2, D_ARR2 = 28, 208, 212
XCC = [0]
NWARM = [9]
XD = [0]
OPS = [6]
DV = [70]
HDELAY = [0]
TMO = [1 << 17]
KVR = 4
MSL = [4]

DIAG = [0]
IFL = ['']
def diag(a, idx):
    if not DIAG[0]: return
    a.fence()
    a.ins('s_memrealtime s[90:91]'); a.ins('s_waitcnt lgkmcnt(0)')
    a.salu('s_mov_b64', 's[82:83]', 'exec'); a.salu('s_mov_b64', 'exec', 1)
    a.valu('v_mov_b32', v(DV[0]), 's90')
    a.vmem('buffer_atomic_umax', v(DV[0]), 'off', s(DBG, 4), 0, mods=f'offset:{64 + 4 * idx}', load=False)
    a.salu('s_mov_b64', 'exec', 's[82:83]')
    a.nop(2)

def trace(a, base, sidx, k):
    if not DIAG[0]: return
    a.fence()
    a.ins('s_memrealtime s[90:91]'); a.ins('s_waitcnt lgkmcnt(0)')
    a.salu('s_lshl_b32', 's92', s(sidx), 4); a.salu('s_add_u32', 's92', 's92', (201 << 20) + base + 4 * k)
    a.valu('v_mov_b32', 'v249', 's90')
    a.salu('s_mov_b64', 'exec', 1)
    a.vmem('buffer_store_dword', 'v249', 'off', 's[4:7]', 's92', load=False)
    a.salu('s_mov_b64', 'exec', -1)
    a.nop(2)

_tk = [0]
def ticket(a, dst, off, vb=250):
    _tk[0] += 1
    L = f'tk{_tk[0]}'
    a.fence()
    a.salu('s_mov_b32', 's37', off)
    a.valu('v_mov_b32', v(vb), 1)
    a.valu('v_mov_b32', v(vb + 1), 163832)
    a.valu('v_cmp_eq_u32', 'vcc', 0, 'v0')
    a.salu('s_and_saveexec_b64', 's[38:39]', 'vcc')
    a.ins(f's_cbranch_execz {L}')
    a.vmem('buffer_atomic_add', v(vb), 'off', s(DBG, 4), 's37', mods='sc0')
    a.wait(vm='all')
    a.ds('ds_write_b32', v(vb + 1), v(vb))
    a.wait(lds='all')
    a.label(L)
    a.salu('s_mov_b64', 'exec', -1)
    a.ins('s_barrier')
    a.ds('ds_read_b32', v(vb + 2), v(vb + 1))
    a.wait(lds='all')
    a.valu('v_readfirstlane_b32', s(dst), v(vb + 2))
    a.ins('s_barrier')
    a.nop(4)

def flag_store(a, soff):
    _tk[0] += 1
    a.ins('s_waitcnt vmcnt(0)')
    a.ins('s_barrier')
    a.valu('v_mov_b32', 'v250', s(sNONCE))
    a.valu('v_cmp_eq_u32', 'vcc', 0, 'v0')
    a.salu('s_and_saveexec_b64', 's[38:39]', 'vcc')
    a.ins(f's_cbranch_execz fs{_tk[0]}')
    a.vmem('buffer_store_dword', 'v250', 'off', 's[4:7]', soff, mods='sc1', load=False)
    a.label(f'fs{_tk[0]}')
    a.salu('s_mov_b64', 'exec', -1)

def flags_wait(a, soff, lo, hi, va, vd, sleep=2):
    _tk[0] += 1
    L = f'fw{_tk[0]}'
    a.fence()
    a.valu('v_mbcnt_lo_u32_b32', v(va), -1, 0)
    a.valu('v_mbcnt_hi_u32_b32', v(va), -1, v(va))
    a.valu('v_min_u32', v(va), hi - lo - 1, v(va))
    a.valu('v_lshlrev_b32', v(va), 2, v(va))
    a.salu('s_mov_b32', 's88', 1 << 22)
    a.label(L)
    a.vmem('buffer_load_dword', v(vd), v(va), 's[4:7]', soff, mods=f'offen offset:{4 * lo} sc1')
    a.salu('s_sub_u32', 's88', 's88', 1)
    a.ins(f's_cbranch_scc1 {L}x')
    a.ins('s_waitcnt vmcnt(0)')
    a.valu('v_cmp_ne_u32', 'vcc', s(sNONCE), v(vd))
    a.ins(f's_cbranch_vccz {L}x')
    a.ins(f's_sleep {sleep}')
    a.ins(f's_branch {L}')
    a.label(f'{L}x')

def coarse_wait(a, sseg, vd, shp):
    _tk[0] += 1
    L = f'cw{_tk[0]}'
    a.fence()
    a.salu('s_mov_b32', 's88', 1 << 16)
    a.label(L)
    a.vmem('buffer_load_dword', v(vd), 'off', 's[4:7]', s(shp), mods='offset:128 sc1')
    a.ins('s_waitcnt vmcnt(0)')
    a.valu('v_readfirstlane_b32', 's42', v(vd))
    a.salu('s_sub_u32', 's42', 's42', s(sNONCE))
    a.salu('s_cmp_gt_u32', 's42', 64, nodst=True)
    a.salu('s_cselect_b32', 's42', 0, 's42')
    a.salu('s_add_u32', 's42', 's42', 2)
    a.salu('s_cmp_ge_u32', 's42', s(sseg), nodst=True)
    a.ins(f's_cbranch_scc1 {L}x')
    a.salu('s_sub_u32', 's88', 's88', 1)
    a.ins(f's_cbranch_scc1 {L}x')
    a.salu('s_sub_u32', 's42', s(sseg), 's42')
    a.salu('s_min_u32', 's42', 's42', 6)
    a.label(f'{L}s')
    a.ins('s_sleep 24')
    a.salu('s_sub_u32', 's42', 's42', 1)
    a.salu('s_cmp_lg_u32', 's42', 0, nodst=True)
    a.ins(f's_cbranch_scc1 {L}s')
    a.ins(f's_branch {L}')
    a.label(f'{L}x')

def prog_wait(a, lab, va, vd, vneed, sbase, sleep, scnt='s40'):
    a.salu('s_mov_b32', scnt, 1 << 22)
    a.label(lab)
    a.vmem('buffer_load_dword', v(vd), v(va), 's[4:7]', sbase, mods='offen sc1')
    a.salu('s_sub_u32', scnt, scnt, 1)
    a.ins(f's_cbranch_scc1 {lab}_go')
    a.ins('s_waitcnt vmcnt(0)')
    a.valu('v_subrev_u32', v(vd), vneed, v(vd))
    a.valu('v_cmp_lt_u32', 'vcc', 64, v(vd))
    a.ins(f's_cbranch_vccz {lab}_go')
    a.ins(f's_sleep {sleep}')
    a.ins(f's_branch {lab}')
    a.label(f'{lab}_go')

def k_main(a, **kw):
    n = NAME + '_kernel'
    DV[0] = 59
    start(a, n)
    a.salu('s_cmp_ge_u32', 's2', 256, nodst=True)
    a.ins('s_cbranch_scc1 L_exit')
    a.ins('s_load_dwordx4 s[80:83], s[0:1], 120')
    a.ins('s_load_dwordx16 s[48:63], s[0:1], 0')
    a.ins('s_memrealtime s[90:91]')
    a.valu('v_lshrrev_b32', 'v1', 6, 'v0')
    a.valu('v_readfirstlane_b32', 's32', 'v1')
    a.ins('s_waitcnt lgkmcnt(0)')
    ws_srd(a, 82)
    a.salu('s_mov_b32', s(DBG), 's80'); a.salu('s_mov_b32', s(DBG + 1), 's81')
    a.salu('s_mov_b32', s(DBG + 2), 256); a.salu('s_mov_b32', s(DBG + 3), '0x20000')
    a.salu('s_cmp_lg_u32', 's32', 0, nodst=True)
    a.ins('s_cbranch_scc1 L_nod0')
    diag(a, 0)
    a.label('L_nod0')
    a.salu('s_cmp_lg_u32', 's32', 3, nodst=True)
    a.ins('s_cbranch_scc1 L_nowarm')
    a.ins('s_getpc_b64 s[44:45]')
    a.label('L_pcw')
    a.valu('v_and_b32', 'v1', 63, 'v0')
    a.valu('v_lshlrev_b32', 'v1', 7, 'v1')
    for i in range(NWARM[0]):
        a.valu('v_min_u32', 'v2', 'L_exit-L_pcw', 'v1')
        a.vmem('global_load_dword', v(210 + i), 'v2', 's[44:45]')
        a.valu('v_add_u32', 'v1', 8192, 'v1')
    a.label('L_nowarm')
    a.salu('s_lshl_b32', 's90', 's90', 8)
    a.salu('s_or_b32', 's90', 's90', 1)
    a.valu('v_mov_b32', 'v200', 's90'); a.valu('v_mov_b32', 'v201', 0)
    a.salu('s_cmp_lg_u32', 's32', 0, nodst=True)
    a.ins('s_cbranch_scc1 L_nn')
    a.salu('s_mov_b64', 'exec', 1)
    a.vmem('buffer_atomic_cmpswap', 'v[200:201]', 'off', s(DBG, 4), 0, mods=f'offset:{D_NONCE} sc0')
    a.salu('s_mov_b64', 'exec', -1)
    a.label('L_nn')
    def get_nonce(lab):
        a.ins('s_waitcnt vmcnt(0)')
        a.valu('v_mov_b32', 'v251', 163832)
        a.salu('s_cmp_lg_u32', 's32', 0, nodst=True)
        a.ins(f's_cbranch_scc1 {lab}')
        a.valu('v_mov_b32', 'v201', 's90')
        a.valu('v_cmp_eq_u32', 'vcc', 0, 'v200')
        a.valu('v_cndmask_b32', 'v200', 'v200', 'v201', 'vcc')
        a.salu('s_mov_b64', 'exec', 1)
        a.ds('ds_write_b32', 'v251', 'v200', mods='offset:4')
        a.salu('s_mov_b64', 'exec', -1)
        a.wait(lds='all')
        a.label(lab)
        a.ins('s_barrier')
        a.ds('ds_read_b32', 'v252', 'v251', mods='offset:4')
        a.wait(lds='all')
        a.valu('v_readfirstlane_b32', s(sNONCE), 'v252')
        a.nop(2)
    a.ins('s_getreg_b32 s3, hwreg(HW_REG_XCC_ID)')
    a.salu('s_and_b32', 's3', 's3', 15)
    a.salu('s_cmp_lg_u32', 's3', XCC[0], nodst=True)
    a.ins('s_cbranch_scc1 L_h0')
    ticket(a, C.sH, D_CH)
    get_nonce('L_nn2')
    a.salu('s_cmp_lt_u32', s(C.sH), 32, nodst=True)
    a.ins('s_cbranch_scc1 L_chain')
    a.ins('s_branch L_helper')
    a.label('L_h0')
    ticket(a, 36, D_HELP)
    get_nonce('L_nn3')
    a.ins('s_branch L_helper1')
    a.label('L_chain')
    diag(a, 14)
    def kvwait(a, lab, need, va, vd):
        a.salu('s_lshr_b32', 's92', s(C.sH), 1); a.salu('s_lshl_b32', 's92', 's92', 8); a.salu('s_add_u32', 's92', 's92', Q.SY_PRG)
        a.salu('s_add_u32', 's93', s(sNONCE), need)
        a.valu('v_bfe_u32', v(va), v(C.LH), 4, 6); a.valu('v_min_u32', v(va), 11, v(va)); a.valu('v_lshlrev_b32', v(va), 2, v(va))
        prog_wait(a, lab, va, vd, 's93', 's92', 2, scnt='s94')
    def hook(a):
        if not DIAG[0]: return
        a.salu('s_lshl_b32', 's88', s(C.sH), 2); a.salu('s_add_u32', 's88', 's88', s(C.sW))
        a.salu('s_cmp_lg_u32', 's88', 0, nodst=True)
        a.ins('s_cbranch_scc1 L_nohook')
        a.ins('s_memrealtime s[90:91]'); a.ins('s_memtime s[72:73]'); a.ins('s_waitcnt lgkmcnt(0)')
        a.valu('v_mov_b32', v(C.Rq[1]), 's90'); a.valu('v_mov_b32', v(C.Rq[1] + 1), 's72')
        a.salu('s_lshl_b32', 's88', s(C.sSTEP), 3); a.salu('s_add_u32', 's88', 's88', 200 << 20)
        a.vmem('buffer_store_dwordx2', v(C.Rq[1], 2), 'off', 's[4:7]', 's88', load=False)
        a.label('L_nohook')
        a.fence()
    def chain_body(tag, safe):
        a.ins(f's_load_dwordx8 s[{C.sPTR}:{C.sPTR+7}], s[0:1], 8')
        a.ins(f's_load_dwordx2 s[{C.sPTR+8}:{C.sPTR+9}], s[0:1], 40')
        a.ins('s_waitcnt lgkmcnt(0)')
        def w0hook(a):
            if not safe: hook(a)
            a.salu('s_cmp_lg_u32', s(C.sSTEP), 6 * KVR - 2, nodst=True)
            a.ins(f's_cbranch_scc1 {tag}_nokv')
            kvwait(a, f'{tag}_kv1', Q.DONE, C.Rq[1], C.Rq[1] + 1)
            a.label(f'{tag}_nokv')
        if safe: ch = C.Chain(a, tag, fl='sc1', lfl='sc1', xoff=C.XOFF, d0=200, d1=200, dB=100, dZ=400, ks=1, w0hook=w0hook, spinmax=1 << 20)
        else: ch = C.Chain(a, tag, w0hook=w0hook, spinmax=1 << 20, **kw)
        ch.prologue()
        diag(a, 2)
        arr = D_ARR2 if safe else D_ARR
        a.ins('s_barrier')
        a.valu('v_mov_b32', 'v2', 1)
        a.salu('s_cmp_lg_u32', s(C.sW), 0, nodst=True)
        a.ins(f's_cbranch_scc1 {tag}_noarr')
        a.salu('s_mov_b64', 'exec', 1)
        a.vmem('buffer_atomic_add', 'v2', 'off', s(DBG, 4), 0, mods=f'offset:{arr}', load=False)
        a.salu('s_mov_b32', 's40', (1 << 24) if safe else TMO[0])
        a.salu('s_mov_b32', 's42', 2)
        a.label(f'{tag}_startpoll')
        a.vmem('buffer_load_dword', 'v3', 'off', s(DBG, 4), 0, mods=f'offset:{arr} sc1')
        a.salu('s_sub_u32', 's40', 's40', 1)
        a.ins(f's_cbranch_scc1 {tag}_decide')
        a.wait(vm='all')
        a.valu('v_readfirstlane_b32', 's41', 'v3')
        a.nop(2)
        a.salu('s_cmp_lt_u32', 's41', 32, nodst=True)
        a.ins(f's_cbranch_scc1 {tag}_startpoll')
        a.salu('s_mov_b32', 's42', 1)
        a.label(f'{tag}_decide')
        if not safe:
            a.valu('v_mov_b32', 'v4', 's42'); a.valu('v_mov_b32', 'v5', 0)
            a.vmem('buffer_atomic_cmpswap', 'v[4:5]', 'off', s(DBG, 4), 0, mods=f'offset:{D_MODE} sc0')
            a.wait(vm='all')
            a.valu('v_mov_b32', 'v5', 's42')
            a.valu('v_cmp_eq_u32', 'vcc', 0, 'v4')
            a.valu('v_cndmask_b32', 'v4', 'v4', 'v5', 'vcc')
            a.valu('v_mov_b32', 'v5', C.L_SC)
            a.ds('ds_write_b32', 'v5', 'v4')
            a.wait(lds='all')
        a.salu('s_mov_b64', 'exec', -1)
        a.label(f'{tag}_noarr')
        a.ins('s_barrier')
        if not safe:
            a.valu('v_mov_b32', 'v5', C.L_SC)
            a.ds('ds_read_b32', 'v4', 'v5')
            a.wait(lds='all')
            a.valu('v_readfirstlane_b32', 's41', 'v4')
            a.nop(2)
            a.salu('s_cmp_eq_u32', 's41', 1, nodst=True)
            a.ins(f's_cbranch_scc1 {tag}_run')
            a.valu('v_lshrrev_b32', 'v0', 4, v(C.LH))
            a.salu('s_mov_b32', 's32', s(C.sW))
            a.ins('s_load_dwordx16 s[48:63], s[0:1], 0')
            a.ins('s_waitcnt lgkmcnt(0)')
            a.ins('s_branch L_helper')
            a.label(f'{tag}_run')
        diag(a, 3)
        kvwait(a, f'{tag}_kv0', KVR, 2, 3)
        ch.loop_init()
        diag(a, 4)
        ch.step()
        diag(a, 5)
        a.ins('s_endpgm')
    chain_body('cf', False)
    a.label('L_chain_safe')
    a.forget()
    chain_body('cs', True)
    def mode_check(lab):
        a.salu('s_mov_b32', 's40', 4 * TMO[0])
        a.label(f'{lab}_w')
        a.vmem('buffer_load_dword', 'v250', 'off', s(DBG, 4), 0, mods=f'offset:{D_MODE} sc1')
        a.wait(vm='all')
        a.valu('v_readfirstlane_b32', 's41', 'v250')
        a.salu('s_cmp_lg_u32', 's41', 0, nodst=True)
        a.ins(f's_cbranch_scc1 {lab}_known')
        a.salu('s_sub_u32', 's40', 's40', 1)
        a.ins(f's_cbranch_scc1 {lab}_force')
        a.ins('s_sleep 2')
        a.ins(f's_branch {lab}_w')
        a.label(f'{lab}_force')
        a.valu('v_mov_b32', 'v250', 2); a.valu('v_mov_b32', 'v251', 0)
        a.salu('s_mov_b64', 'exec', 1)
        a.vmem('buffer_atomic_cmpswap', 'v[250:251]', 'off', s(DBG, 4), 0, mods=f'offset:{D_MODE}', load=False)
        a.salu('s_mov_b64', 'exec', -1)
        a.ins('s_waitcnt vmcnt(0)')
        a.salu('s_mov_b32', 's40', 4 * TMO[0])
        a.ins(f's_branch {lab}_w')
        a.label(f'{lab}_known')
    a.forget()
    a.label('L_helper')
    DV[0] = 249
    a.forget()
    a.label('L_qkv_next')
    ticket(a, 36, D_HELP)
    a.label('L_helper1')
    a.ins('s_load_dwordx16 s[64:79], s[0:1], 64')
    a.ins('s_waitcnt lgkmcnt(0)')
    a.salu('s_cmp_ge_u32', 's36', 320, nodst=True)
    a.ins('s_cbranch_scc1 L_ssm_next')
    a.salu('s_and_b32', s(Q.sHh), 's36', 15); a.salu('s_lshl_b32', s(Q.sHh), s(Q.sHh), 1)
    a.salu('s_bfe_u32', s(Q.sM), 's36', '0x10004')
    a.salu('s_lshr_b32', s(Q.sSEG), 's36', 5)
    a.salu('s_mul_i32', 's33', s(Q.sM), 6); a.salu('s_add_u32', 's33', 's33', s(Q.sSEG))
    a.salu('s_add_u32', s(Q.sM), s(Q.sM), 1)
    a.salu('s_lshr_b32', 's37', 's36', 4); a.salu('s_sub_u32', 's38', 's37', 12)
    a.salu('s_cmp_ge_u32', 's36', 192, nodst=True)
    a.salu('s_cselect_b32', s(Q.sM), 0, s(Q.sM))
    a.salu('s_cselect_b32', s(Q.sSEG), 's38', s(Q.sSEG))
    a.salu('s_cselect_b32', 's33', 's37', 's33')
    a.salu('s_cselect_b32', s(Q.sSTR), 8, 6)
    Q.qkv_role(a, 'qk', 48, 52, sNONCE, 33)
    diag(a, 6)
    a.salu('s_cmp_ge_u32', 's36', 64, nodst=True)
    a.ins('s_cbranch_scc1 L_qkv_next')
    a.salu('s_lshr_b32', 's33', 's36', 5)
    Q.memkv_role(a, 'mk', sNONCE, 33, slp=MSL[0])
    diag(a, 1)
    a.ins('s_endpgm')
    a.label('L_ssm_next')
    ticket(a, S.sD0, D_SSM)
    a.salu('s_cmp_ge_u32', s(S.sD0), 144, nodst=True)
    a.ins('s_cbranch_scc1 L_phase2')
    a.salu('s_lshl_b32', s(S.sD0), s(S.sD0), 2)
    a.forget()
    S.ssm_job(a, 'ss', 62, 76)
    diag(a, 7)
    a.ins('s_branch L_ssm_next')
    sWv, sCB = 32, 33
    a.label('L_phase2')
    mode_check('mc2')
    a.salu('s_cmp_eq_u32', 's41', 1, nodst=True)
    a.ins('s_cbranch_scc1 L_phase2b')
    ticket(a, C.sH, D_CH2)
    a.salu('s_cmp_lt_u32', s(C.sH), 32, nodst=True)
    a.ins('s_cbranch_scc1 L_chain_safe')
    a.label('L_phase2b')
    a.salu('s_mov_b32', 's8', 's76'); a.salu('s_mov_b32', 's9', 's77')
    a.salu('s_mov_b32', 's10', 2048 * 2304); a.salu('s_mov_b32', 's11', '0x20000')
    ticket(a, 36, D_T2)
    a.salu('s_mul_hi_u32', 's37', 's36', '0x55555556')
    a.salu('s_mul_i32', 's40', 's37', 3)
    a.salu('s_sub_u32', s(sCB), 's36', 's37')
    a.salu('s_mul_hi_u32', 's41', s(sCB), '0x0e38e38f')
    a.salu('s_mul_i32', 's41', 's41', 18)
    a.salu('s_sub_u32', s(sCB), s(sCB), 's41')
    a.salu('s_cmp_lg_u32', 's40', 's36', nodst=True)
    a.ins('s_cbranch_scc1 L_op_start')
    a.label('L_att_next')
    ticket(a, 34, D_ATT)
    a.salu('s_cmp_ge_u32', 's34', 512, nodst=True)
    a.ins('s_cbranch_scc1 L_op_start')
    a.salu('s_lshr_b32', s(A.sSEG), 's34', 3)
    a.salu('s_and_b32', s(A.sHh), 's34', 7)
    a.salu('s_lshl_b32', s(A.sHh), s(A.sHh), 2)
    a.salu('s_add_u32', s(A.sHh), s(A.sHh), s(sWv))
    a.salu('s_lshr_b32', 's36', s(A.sHh), 1); a.salu('s_lshl_b32', 's36', 's36', 8); a.salu('s_add_u32', 's36', 's36', Q.SY_PRG)
    a.salu('s_mul_i32', 's37', s(A.sSEG), 43); a.salu('s_lshr_b32', 's37', 's37', 8)
    a.salu('s_mul_i32', 's41', 's37', 6); a.salu('s_sub_u32', 's41', s(A.sSEG), 's41')
    a.valu('v_and_b32', 'v1', 63, 'v0')
    a.valu('v_mul_u32_u24', 'v2', 6, 'v1'); a.valu('v_add_u32', 'v2', 's41', 'v2')
    a.valu('v_mov_b32', 'v4', 's37')
    a.salu('s_and_b32', 's41', s(A.sSEG), 7); a.salu('s_add_u32', 's41', 's41', 12)
    a.salu('s_lshr_b32', 's37', s(A.sSEG), 3)
    a.valu('v_mov_b32', 'v5', 's41'); a.valu('v_mov_b32', 'v6', 's37')
    a.valu('v_cmp_lt_u32', 'vcc', 1, 'v1')
    a.valu('v_cndmask_b32', 'v2', 'v2', 'v5', 'vcc'); a.valu('v_cndmask_b32', 'v4', 'v4', 'v6', 'vcc')
    a.valu('v_lshlrev_b32', 'v2', 2, 'v2')
    a.valu('v_add3_u32', 'v4', 'v4', s(sNONCE), 1)
    prog_wait(a, 'L_aw1', 2, 3, 'v4', 's36', 4)
    def mid(a):
        a.fence()
        trace(a, 0, 34, 0)
        coarse_wait(a, A.sSEG, 199, 36)
        trace(a, 0, 34, 1)
        a.salu('s_and_b32', 's37', s(A.sSEG), 1); a.salu('s_lshl_b32', 's37', 's37', 2); a.salu('s_add_u32', 's37', 's37', 's36'); a.salu('s_add_u32', 's37', 's37', 128)
        a.salu('s_add_u32', 's41', s(A.sSEG), s(sNONCE)); a.salu('s_add_u32', 's41', 's41', 1)
        a.salu('s_lshl_b32', 's42', s(A.sHh), 7); a.salu('s_add_u32', 's42', 's42', C.SY_CHF)
        a.salu('s_cmp_eq_u32', s(A.sSEG), 63, nodst=True)
        a.salu('s_cselect_b32', 's37', 's42', 's37')
        a.salu('s_cselect_b32', 's41', s(sNONCE), 's41')
        a.salu('s_cselect_b32', 's42', 12, 8)
        a.valu('v_lshlrev_b32', 'v198', 2, 'v0'); a.valu('v_and_b32', 'v198', 's42', 'v198')
        prog_wait(a, 'L_aw2', 198, 199, 's41', 's37', 4)
        trace(a, 0, 34, 2)
    A.attn_job(a, 'at', ld_fl='sc1', st_fl='sc1', mid=mid)
    a.salu('s_lshr_b32', 's40', 's34', 1)
    a.salu('s_lshl_b32', 's40', 's40', 7)
    a.salu('s_and_b32', 's41', 's34', 1)
    a.salu('s_lshl_b32', 's41', 's41', 2)
    a.salu('s_add_u32', 's40', 's40', 's41')
    a.salu('s_add_u32', 's40', 's40', SY_ATT)
    flag_store(a, 's40')
    trace(a, 0, 34, 3)
    a.ins('s_branch L_att_next')
    a.label('L_op_start')
    a.salu('s_lshl_b32', 's35', s(sCB), 2)
    a.salu('s_add_u32', 's35', 's35', D_OP)
    ticket(a, A.sSEG, 's35')
    a.salu('s_cmp_ge_u32', s(A.sSEG), 128, nodst=True)
    a.ins('s_cbranch_scc1 L_op_nextcb')
    A.oproj_load(a, 58, sCB, sWv)
    a.label('L_op_seg')
    a.salu('s_lshr_b32', 's43', s(A.sSEG), 1)
    a.salu('s_add_u32', 's43', 's43', 1)
    a.salu('s_and_b32', 's36', s(sCB), 15); a.salu('s_lshl_b32', 's36', 's36', 8); a.salu('s_add_u32', 's36', 's36', Q.SY_PRG)
    a.salu('s_lshl_b32', 's94', s(sCB), 7); a.salu('s_add_u32', 's94', 's94', s(A.sSEG))
    trace(a, 65536, 94, 0)
    coarse_wait(a, 43, 3, 36)
    trace(a, 65536, 94, 1)
    a.salu('s_lshr_b32', 's89', s(A.sSEG), 1)
    a.salu('s_lshl_b32', 's89', 's89', 2)
    a.salu('s_add_u32', 's89', 's89', s(sWv))
    a.salu('s_lshl_b32', 's89', 's89', 7)
    a.salu('s_add_u32', 's89', 's89', SY_ATT)
    flags_wait(a, 's89', 0, 2, 2, 3, sleep=OPS[0])
    trace(a, 65536, 94, 2)
    A.oproj_seg(a, 'os', 8, sCB, sWv, A.sSEG)
    trace(a, 65536, 94, 3)
    a.salu('s_cmp_ge_u32', s(A.sSEG), 124, nodst=True)
    a.ins('s_cbranch_scc1 L_op_nextcb')
    ticket(a, A.sSEG, 's35')
    a.salu('s_cmp_lt_u32', s(A.sSEG), 128, nodst=True)
    a.ins('s_cbranch_scc1 L_op_seg')
    a.label('L_op_nextcb')
    a.valu('v_and_b32', 'v1', 63, 'v0')
    a.valu('v_min_u32', 'v1', 17, 'v1')
    a.valu('v_lshlrev_b32', 'v2', 2, 'v1')
    a.vmem('buffer_load_dword', 'v3', 'v2', s(DBG, 4), 0, mods=f'offen offset:{D_OP} sc1')
    a.wait(vm='all')
    a.valu('v_cmp_gt_u32', 'vcc', 128, 'v3')
    a.salu('s_ff1_i32_b64', 's40', 'vcc')
    a.valu('v_mov_b32', 'v250', 's40')
    a.valu('v_mov_b32', 'v251', 163832)
    a.salu('s_cmp_lg_u32', s(sWv), 0, nodst=True)
    a.ins('s_cbranch_scc1 L_op_nw')
    a.ds('ds_write_b32', 'v251', 'v250')
    a.wait(lds='all')
    a.label('L_op_nw')
    a.ins('s_barrier')
    a.ds('ds_read_b32', 'v252', 'v251')
    a.wait(lds='all')
    a.valu('v_readfirstlane_b32', s(sCB), 'v252')
    a.ins('s_barrier')
    a.nop(2)
    a.salu('s_cmp_lt_u32', s(sCB), 18, nodst=True)
    a.ins('s_cbranch_scc1 L_op_start')
    diag(a, 10)
    a.label('L_exit')
    a.ins('s_endpgm')
    a.raw(kd(n, 512, 256))

def build(**kw):
    hdr = open(f'/code/{NAME}.s.ref').read().split('; Override launch geometry')[0]
    a = Asm()
    a.raw(hdr.rstrip())
    a.raw('; @launch grid=(256,1,1) block=(256,1,1) lds=163840')
    a.raw('.amdgcn_target "amdgcn-amd-amdhsa--gfx950"')
    k_main(a, **kw)
    return a.text()

if __name__ == '__main__':
    kw = dict(d0=55, dB=15, ks=2, pA=20, d1=45, dZ=120, pbr=0)
    open('one.s', 'w').write(build(**kw))
    for spec in sys.argv[1:]:
        k2 = dict((x.split('=')[0], int(x.split('=')[1])) for x in spec.split(','))
        open('one_' + spec.replace('=', '').replace(',', '_') + '.s', 'w').write(build(**{**kw, **k2}))
    XCC[0] = 9; TMO[0] = 1 << 8
    open('one_safe.s', 'w').write(build(**kw))
    XCC[0] = 0; TMO[0] = 0
    open('one_safe2.s', 'w').write(build(**kw))
    TMO[0] = 1 << 17
    DIAG[0] = 1
    open('one_d.s', 'w').write(build(**kw))
    print('ok')
```

```python
import re

def _regs(tok):
    tok = tok.strip()
    m = re.fullmatch(r'-?\|?([vas])\[(\d+):(\d+)\]\|?', tok)
    if m:
        return [(m.group(1), i) for i in range(int(m.group(2)), int(m.group(3)) + 1)]
    m = re.fullmatch(r'-?\|?([vas])(\d+)\|?', tok)
    if m:
        return [(m.group(1), int(m.group(2)))]
    m = re.fullmatch(r'-?abs\(([vas])(\d+)\)', tok)
    if m:
        return [(m.group(1), int(m.group(2)))]
    if tok == 'vcc':
        return [('s', 'vcc')]
    if tok == 'exec':
        return [('s', 'exec')]
    return []

def R(base, n=1, k='v'):
    return f'{k}{base}' if n == 1 else f'{k}[{base}:{base+n-1}]'

TRANS = ('v_exp_f32', 'v_log_f32', 'v_rcp_f32', 'v_rsq_f32', 'v_sqrt_f32', 'v_sin_f32', 'v_cos_f32')

class Asm:
    def __init__(self):
        self.lines = []
        self.pos = 0
        self.last = {}
        self.mfma_c_read = {}
        self.store_data = {}
        self.lds_seq = 0
        self.vm_seq = 0
        self.nops_inserted = 0
        self.pend = {}
        self.done = {'lds': 0, 'vm': 0}
        self.auto = True; self.auto_log = []
        self.mf_pos = -99; self.mf_blk = 0
        self.mf_free = -99

    def start_prof(self, base, stride, n, skip=0):
        self._prof = [base, stride, n, skip, len(self.lines)]
    def finish_prof(self):
        if not getattr(self, '_prof', None): return
        base, stride, n, skip, start = self._prof
        out = self.lines[:start]; k = 0; cnt = -skip
        for ln in self.lines[start:]:
            if k < n and cnt >= 0 and cnt % stride == 0 and ln.startswith('    ') and not ln.startswith('    ;'):
                out.append(f'    s_memtime s[{base+2*k}:{base+2*k+1}]   ; PROF {k}'); k += 1
            if ln.startswith('    '): cnt += 1
            out.append(ln)
        self.lines = out; self._prof = None

    def raw(self, s):
        self.lines.append(s)
    def comment(self, s):
        self.lines.append('    ; ' + s)
    def label(self, name):
        self.mf_free = -99
        self.lines.append(name + ':')
    def _autowait(self, regs, text):
        if not self.auto: return
        need = {}
        for r in regs:
            if r in self.pend:
                k, q = self.pend[r]
                if q > self.done[k]: need[k] = max(need.get(k, 0), q)
        if need:
            self.auto_log.append(text)
            self.wait(vm=need.get('vm'), lds=need.get('lds'))
    def nowait(self, tok):
        for r in _regs(tok): self.pend.pop(r, None)
    def forget(self):
        self.pend = {}
        self.last = {}; self.mfma_c_read = {}; self.store_data = {}; self.mf_free = -99
    def fence(self, n=None):
        need = 0
        for r, (p, kind, extra) in self.last.items():
            if kind == 'mfma':
                w = {2: 5, 4: 8, 8: 12, 16: 20}[extra]
            elif kind == 'valu' or kind == 'trans':
                w = 5 if r[0] == 's' else 2
            else:
                w = 0
            need = max(need, w - (self.pos - p - 1))
        for r, (p, passes) in self.mfma_c_read.items():
            need = max(need, {2: 1, 4: 3, 8: 7, 16: 15}[passes] - (self.pos - p - 1))
        for r, p in self.store_data.items():
            need = max(need, 2 - (self.pos - p - 1))
        if need > 0:
            self.nop(need)
    def nop(self, n):
        while n > 0:
            k = min(n, 16)
            self.lines.append(f'    s_nop {k-1}')
            self.pos += k
            self.nops_inserted += k
            n -= k

    def _need(self, reg, states):
        pass

    def _emit(self, text, reads, writes, kind, passes=0, cls=None):
        need = 0
        def dist(p):
            return self.pos - p - 1
        for r in reads:
            if r in self.last:
                p, k, ex = self.last[r]
                w = 0
                if k == 'mfma':
                    if kind == 'mfma':
                        w = None
                    else:
                        w = {2: 5, 4: 8, 8: 12, 16: 20}[ex]
                elif k in ('valu', 'trans'):
                    if r[0] == 's':
                        if kind in ('valu', 'trans', 'mfma'):
                            w = 2
                            if cls == 'readlane': w = 4
                            if r[1] == 'exec':
                                w = 4 if kind == 'mfma' or cls in ('readlane', 'permlane') else (5 if cls == 'dpp' else 0)
                        elif kind in ('vmem',):
                            w = 5
                        else:
                            w = 1 if kind == 'salu' else 0
                    else:
                        if kind == 'mfma': w = 2
                        elif cls in ('permlane', 'dpp'): w = 2
                        elif cls == 'readlane': w = 1
                        elif k == 'trans' and kind == 'valu': w = 1
                if w:
                    need = max(need, w - dist(p))
        for r in writes:
            if r in self.last:
                p, k, ex = self.last[r]
                if k == 'mfma' and kind != 'mfma':
                    need = max(need, {2: 5, 4: 8, 8: 12, 16: 20}[ex] - dist(p))
            if r in self.mfma_c_read and kind in ('valu', 'trans'):
                p, ps = self.mfma_c_read[r]
                need = max(need, {2: 1, 4: 3, 8: 7, 16: 15}[ps] - dist(p))
            if r in self.store_data:
                need = max(need, 2 - dist(self.store_data[r]))
        return need

    def _commit(self, text, writes, kind, passes=0):
        self.lines.append('    ' + text)
        for r in writes:
            self.last[r] = (self.pos, kind, passes)
        self.pos += 1

    def valu(self, op, dst, *srcs, mods='', rmw=False, extra_w=(), extra_r=()):
        kind = 'trans' if op in TRANS else 'valu'
        cls = None
        if op.startswith('v_permlane'): cls = 'permlane'
        if 'dpp' in op or 'row_' in mods or 'quad_perm' in mods: cls = 'dpp'
        if op in ('v_readfirstlane_b32', 'v_readlane_b32'): cls = 'readlane'
        writes = _regs(dst)
        reads = []
        for s in srcs: reads += _regs(str(s))
        if cls == 'permlane':
            writes = writes + _regs(srcs[0]); reads = reads + _regs(dst)
        if rmw or op.startswith('v_fmac') or op.startswith('v_dot2c'): reads += _regs(dst)
        if op.startswith('v_cndmask') and len(srcs) == 2: reads.append(('s', 'vcc'))
        for e in extra_w: writes += _regs(e)
        for e in extra_r: reads += _regs(e)
        reads.append(('s', 'exec'))
        text = f"{op} {dst}, " + ', '.join(str(s) for s in srcs) + (' ' + mods if mods else '')
        self._autowait(reads + writes, text)
        if self.mf_free > -99 and self.pos < self.mf_pos + self.mf_blk:
            n0 = self._emit(text, reads, writes, kind, cls=cls)
            sk = self.mf_pos + self.mf_blk - self.pos
            if n0 <= sk and all(p <= self.mf_pos for (p, k, e) in self.last.values() if k in ('valu', 'trans')) and all(p <= self.mf_pos for p in self.store_data.values()):
                self.pos += sk
        n = self._emit(text, reads, writes, kind, cls=cls)
        if n > 0: self.nop(n)
        self._commit(text, writes, kind)

    def mfma(self, op, d, a, b, c=None, passes=4, mods=''):
        sparse = 'smfmac' in op
        D = _regs(d); A = _regs(a); B = _regs(b)
        C = D if sparse else _regs(str(c))
        idx = _regs(c) if sparse else []
        text = f"{op} {d}, {a}, {b}, {c}" + (' ' + mods if mods else '')
        self._autowait(A + B + C + D + idx, text)
        def needs():
            res = [0, 0]
            def upd(p, w):
                k = 0 if p <= self.mf_pos else 1
                res[k] = max(res[k], w - (self.pos - p - 1))
            for r in A + B + C + idx + [('s', 'exec')]:
                if r in self.last and self.last[r][1] in ('valu', 'trans'):
                    upd(self.last[r][0], 4 if r == ('s', 'exec') else 2)
            for r in D:
                if r in self.store_data: upd(self.store_data[r], 2)
            for r in A + B + idx:
                if r in self.last and self.last[r][1] == 'mfma':
                    p, k, ex = self.last[r]; upd(p, {2: 5, 4: 8, 8: 12, 16: 20}[ex])
            if C:
                same = all((r in self.last and self.last[r][1] == 'mfma' and self.last[r][0] == self.last[C[0]][0] and self.last[r][2] == passes) for r in C) and getattr(self, '_mf_shape', {}).get(self.last[C[0]][0]) == (op, tuple(C))
                for r in C:
                    if r in self.last and self.last[r][1] == 'mfma':
                        p, k, ex = self.last[r]
                        upd(p, (2 if ex == 2 else 0) if same else {2: 4, 4: 6, 8: 10, 16: 18}[ex])
            for r in D:
                if r not in C and r in self.last and self.last[r][1] == 'mfma':
                    p, k, ex = self.last[r]; upd(p, {2: 4, 4: 6, 8: 10, 16: 18}[ex])
            return res
        na, nb = needs()
        if self.pos + na <= self.mf_free: na = 0
        if max(na, nb) > 0: self.nop(max(na, nb))
        if self.pos < self.mf_free:
            sk = self.mf_free - self.pos
            for r, (p, k, e) in list(self.last.items()):
                if p > self.mf_pos: self.last[r] = (p + sk, k, e)
            for r, p in list(self.store_data.items()):
                if p > self.mf_pos: self.store_data[r] = p + sk
            self.pos = self.mf_free
        if not hasattr(self, '_mf_shape'): self._mf_shape = {}
        self._mf_shape[self.pos] = (op, tuple(D))
        for r in C: self.mfma_c_read[r] = (self.pos, passes)
        self.mf_free = self.pos + passes; self.mf_pos = self.pos; self.mf_blk = 3 if sparse else 2
        self._commit(text, D, 'mfma', passes)

    def salu(self, op, dst, *srcs, nodst=False):
        dst = str(dst)
        writes = [] if nodst else _regs(dst)
        reads = (_regs(dst) if nodst else [])
        for s in srcs: reads += _regs(str(s))
        text = f"{op} {dst}" + (', ' + ', '.join(str(s) for s in srcs) if srcs else '')
        n = self._emit(text, reads, writes, 'salu')
        if n > 0: self.nop(n)
        self._commit(text, writes, 'salu')

    def ins(self, text):
        self.lines.append('    ' + text)
        self.pos += 1
        if text.startswith('s_waitcnt'):
            m = re.search(r'vmcnt\((\d+)\)', text)
            if m: self.done['vm'] = max(self.done['vm'], self.vm_seq - int(m.group(1)))
            m = re.search(r'lgkmcnt\((\d+)\)', text)
            if m: self.done['lds'] = max(self.done['lds'], self.lds_seq - int(m.group(1)))

    def vmem(self, op, *ops, mods='', load=True, data=None):
        text = f"{op} " + ', '.join(str(o) for o in ops) + (' ' + mods if mods else '')
        if load:
            writes = _regs(ops[0]); reads = []
            for o in ops[1:]: reads += _regs(str(o))
        else:
            writes = []; reads = []
            for o in ops: reads += _regs(str(o))
        reads.append(('s', 'exec'))
        self._autowait(reads + [r for r in writes if self.pend.get(r, ('vm',))[0] != 'vm'], text)
        n = self._emit(text, reads, writes, 'vmem')
        if n > 0: self.nop(n)
        if not load and data is not None and len(_regs(data)) >= 3:
            for r in _regs(data): self.store_data[r] = self.pos
        self._commit(text, writes, 'load')
        if load:
            self.vm_seq += 1
            for r in writes: self.pend[r] = ('vm', self.vm_seq)
        return self.vm_seq

    def ds(self, op, *ops, mods=''):
        load = 'read' in op or 'permute' in op or 'swizzle' in op
        text = f"{op} " + ', '.join(str(o) for o in ops) + (' ' + mods if mods else '')
        if load:
            writes = _regs(ops[0]); reads = []
            for o in ops[1:]: reads += _regs(str(o))
        else:
            writes = []; reads = []
            for o in ops: reads += _regs(str(o))
        self._autowait(reads + [r for r in writes if self.pend.get(r, ('lds',))[0] != 'lds'], text)
        n = self._emit(text, reads, writes, 'ds')
        if n > 0: self.nop(n)
        self._commit(text, writes, 'load')
        self.lds_seq += 1
        for r in writes: self.pend[r] = ('lds', self.lds_seq)
        return self.lds_seq

    def wait(self, vm=None, lds=None):
        parts = []
        if vm is not None:
            n = 0 if vm == 'all' else self.vm_seq - vm
            parts.append(f'vmcnt({min(n, 63)})')
        if lds is not None:
            n = 0 if lds == 'all' else self.lds_seq - lds
            parts.append(f'lgkmcnt({min(n, 15)})')
        self.ins('s_waitcnt ' + ' '.join(parts))

    def text(self):
        self.finish_prof()
        return '\n'.join(self.lines) + '\n'
```

```python
import sys, glob, os
sys.path.insert(0, 'gen2')
from asmfw import Asm
import chain2 as C
from chain2 import s, v

def kd(name, vgpr, accum, sgpr=102):
    return f'''.section .rodata,"a"
.p2align 6
.amdhsa_kernel {name}
  .amdhsa_next_free_vgpr {vgpr}
  .amdhsa_next_free_sgpr {sgpr}
  .amdhsa_accum_offset {accum}
  .amdhsa_group_segment_fixed_size 0
  .amdhsa_kernarg_size 136
  .amdhsa_user_sgpr_count 2
  .amdhsa_user_sgpr_kernarg_segment_ptr 1
  .amdhsa_system_sgpr_workgroup_id_x 1
.end_amdhsa_kernel
.text'''

def build(**kw):
    a = Asm()
    a.raw('.amdgcn_target "amdgcn-amd-amdhsa--gfx950"')
    a.raw('.text\n.globl chain_kernel\n.p2align 8\n.type chain_kernel,@function\nchain_kernel:')
    a.ins('s_load_dwordx4 s[96:99], s[0:1], 120')
    a.ins(f's_load_dwordx8 s[{C.sPTR}:{C.sPTR+7}], s[0:1], 8')
    a.ins(f's_load_dwordx2 s[{C.sPTR+8}:{C.sPTR+9}], s[0:1], 40')
    a.ins('s_getreg_b32 s3, hwreg(HW_REG_XCC_ID)')
    a.ins('s_memrealtime s[100:101]')
    a.ins('s_waitcnt lgkmcnt(0)')
    a.salu('s_mov_b32', 's4', 's98'); a.salu('s_mov_b32', 's5', 's99')
    a.salu('s_mov_b32', 's6', C.WS_SIZE); a.salu('s_mov_b32', 's7', '0x20000')
    a.salu('s_and_b32', 's3', 's3', 15)
    a.salu('s_cmp_lg_u32', 's3', 0, nodst=True)
    a.ins('s_cbranch_scc1 L_exit')
    a.salu('s_lshr_b32', s(C.sH), 's2', 3)
    a.salu('s_mov_b32', 's95', 0)
    def hook(a):
        if not kw.get('timing'):
            a.salu('s_cmp_lg_u32', s(C.sSTEP), 8, nodst=True); L8 = f'L_n8{len(a.lines)}'; a.ins(f's_cbranch_scc1 {L8}'); a.ins('s_memtime s[92:93]'); a.lines.append(L8 + ':')
            return
        if kw.get('timing') == 2:
            a.ins('s_waitcnt lgkmcnt(0)')
            a.salu('s_lshl_b32', 's40', s(C.sH), 2); a.salu('s_add_u32', 's40', 's40', s(C.sW)); a.salu('s_lshl_b32', 's40', 's40', 6)
            a.salu('s_add_u32', 's40', 's40', s(C.sSTEP)); a.salu('s_lshl_b32', 's40', 's40', 2); a.salu('s_add_u32', 's40', 's40', 202 << 20)
            a.salu('s_lshl_b32', 's93', s(C.sACC), 4); a.salu('s_sub_u32', 's94', 2000, 's94'); a.salu('s_min_u32', 's94', 's94', 15); a.salu('s_or_b32', 's93', 's93', 's94')
            a.valu('v_mov_b32', v(C.Rq[8] + 1), 's93')
            a.salu('s_mov_b64', 'exec', 1)
            a.vmem('buffer_store_dword', v(C.Rq[8] + 1), 'off', 's[4:7]', 's40', load=False)
            a.salu('s_mov_b64', 'exec', -1)
            return
        L = f'L_hk{len(a.lines)}'
        a.salu('s_cmp_lg_u32', s(C.sSTEP), ch.tstep, nodst=True)
        a.ins(f's_cbranch_scc1 {L}')
        a.ins('s_waitcnt lgkmcnt(0)')
        a.salu('s_lshl_b32', 's40', s(C.sH), 2); a.salu('s_add_u32', 's40', 's40', s(C.sW)); a.salu('s_lshl_b32', 's40', 's40', 7)
        a.salu('s_add_u32', 's40', 's40', 200 << 20)
        for i in range(12):
            a.valu('v_mov_b32', v(C.Rq[8] + 1), s(C.sACC + 2 * i))
            a.vmem('buffer_store_dword', v(C.Rq[8] + 1), 'off', 's[4:7]', 's40', mods=f'offset:{4*i}', load=False)
        a.valu('v_mov_b32', v(C.Rq[8] + 1), 's94')
        a.vmem('buffer_store_dword', v(C.Rq[8] + 1), 'off', 's[4:7]', 's40', mods='offset:48', load=False)
        a.ins('s_waitcnt vmcnt(0)')
        a.label(L)
    ch = C.Chain(a, 'cf', hook=hook, **kw)
    ch.load_lanes()
    ch.prologue()
    a.ins('s_barrier')
    a.valu('v_mov_b32', 'v2', 1)
    a.salu('s_mov_b32', 's42', C.WS_SYNC)
    a.salu('s_cmp_lg_u32', s(C.sW), 0, nodst=True)
    a.ins('s_cbranch_scc1 L_noarr')
    a.salu('s_mov_b64', 'exec', 1)
    a.vmem('buffer_atomic_add', 'v2', 'off', 's[4:7]', 's42', load=False)
    a.salu('s_mov_b64', 'exec', -1)
    a.label('L_noarr')
    a.salu('s_mov_b32', 's40', 1 << 18)
    a.label('L_startpoll')
    a.vmem('buffer_load_dword', 'v3', 'off', 's[4:7]', 's42', mods='sc1')
    a.salu('s_sub_u32', 's40', 's40', 1)
    a.ins('s_cbranch_scc1 L_exit')
    a.wait(vm='all')
    a.valu('v_readfirstlane_b32', 's41', 'v3')
    a.nop(2)
    a.salu('s_cmp_lt_u32', 's41', 32, nodst=True)
    a.ins('s_cbranch_scc1 L_startpoll')
    a.ins('s_memrealtime s[98:99]'); a.ins('s_memtime s[96:97]'); a.ins('s_waitcnt lgkmcnt(0)')
    ch.loop_init()
    ch.step()
    a.ins('s_memrealtime s[42:43]'); a.ins('s_memtime s[40:41]'); a.ins('s_waitcnt lgkmcnt(0)')
    a.salu('s_sub_u32', 's41', 's40', 's92'); a.valu('v_mov_b32', 'v5', 's41'); a.salu('s_sub_u32', 's40', 's40', 's96'); a.salu('s_sub_u32', 's42', 's42', 's98'); a.salu('s_sub_u32', 's43', 's98', 's100')
    a.valu('v_mov_b32', 'v2', 's40'); a.valu('v_mov_b32', 'v3', 's42'); a.valu('v_mov_b32', 'v4', 's43')
    a.salu('s_lshl_b32', 's40', s(C.sH), 4); a.salu('s_add_u32', 's40', 's40', 201 << 20)
    a.vmem('buffer_store_dwordx4', 'v[2:5]', 'off', 's[4:7]', 's40', load=False)
    a.label('L_exit')
    a.ins('s_endpgm')
    ch.load_sub()
    a.raw(kd('chain_kernel', 512, 256))
    if 0: print('auto waits:', a.auto_log)
    return a.text()

if __name__ == '__main__':
    for f in glob.glob('ct_*.s'): os.unlink(f)
    for spec in sys.argv[1:]:
        kw = dict((x.split('=')[0], int(x.split('=')[1])) for x in spec.split(','))
        kw.setdefault('spinmax', 2000)
        for k_, v_ in dict(d0=70, dB=18, ks=2, pA=14, d1=68, dX=40, dZ=164, pbr=0, p1=4).items(): kw.setdefault(k_, v_)
        open('ct_' + spec.replace('=', '').replace(',', '_') + '.s', 'w').write(build(**kw))
    print(' '.join('"work/%s",' % os.path.basename(f) for f in sorted(glob.glob('ct_*.s'))))
```

```python
from asmfw import Asm, R

MB = 1 << 20
WS_KV = 0
WS_Q = 32 * MB
WS_O = 48 * MB
WS_MEM = 64 * MB
WS_PART = 64 * MB + 65536
XOFF = 1 * MB
WS_KM = 68 * MB
WS_VM = 77 * MB
WS_M0 = 88 * MB
WS_MEMH = 86 * MB
WS_SYNC = 120 * MB
SY_CHF = WS_SYNC + 16384
WS_SIZE = 256 * MB

K = 1024
L_MISC = 96 * K
L_MBUF = L_MISC
L_TB = L_MISC + 9216
L_DUMP = L_MISC + 9728
L_NON = L_MISC + 9984
L_SEL = L_MISC + 10240
L_MM = L_MISC + 11264
L_SC = L_MISC + 12288
L_OB = L_MBUF
B_LW0, B_LW1 = 56 * K, 96 * K

LDS_ADDR = {}
for _t in range(4):
    LDS_ADDR[('k', 0, _t)] = _t * 16 * K
    LDS_ADDR[('k', 1, _t)] = _t * 16 * K + 8 * K
LDS_ADDR[('q', 0, 0)] = 64 * K; LDS_ADDR[('q', 1, 0)] = 72 * K
LDS_ADDR[('k', 0, 8)] = 80 * K; LDS_ADDR[('k', 1, 8)] = 88 * K
LDS_ADDR[('o', 2, 2)] = 112 * K; LDS_ADDR[('o', 3, 2)] = 120 * K
LDS_ADDR[('o', 2, 3)] = 128 * K; LDS_ADDR[('o', 3, 3)] = 136 * K
LDS_ADDR[('o', 4, 0)] = 144 * K; LDS_ADDR[('o', 4, 1)] = 152 * K

AQ0, AK0, AQ1, AK1, AV0, AV1 = 0, 4, 8, 12, 16, 20
Rq = [24 + 4 * i for i in range(9)]
IDX, LH, LW0, LW1, LW2, L16, PST, PSX, OR0, MST, MMW, LW3 = range(60, 72)
ZZ, OA1, OA2, OA3, OW, MMR, PFA = 72, 74, 75, 76, 77, 78, 79
VW0 = 80

def all_frags():
    fr = [(m, t, sl) for m in 'qkv' for sl in range(9) for t in range(2)]
    fr += [('o', u, k) for u in range(4) for k in range(4)] + [('o', 4, 0), ('o', 4, 1)]
    return fr
REGF = {}
_res = [f for f in all_frags() if f not in LDS_ADDR]
assert len(_res) == 54
for _i, _f in enumerate(_res): REGF[_f] = ('a', _i * 8) if _i < 32 else ('v', VW0 + (_i - 32) * 8)
def freg(f): return R(REGF[f][1], 8, REGF[f][0])

SRD, SRDW = 4, 8
sH, sW = 12, 13
sMEM, sMEM4, sMEM8, sMST, sMRS = 14, 15, 16, 17, 18
sPL, sPS0, sPS1, sPSX = 19, 20, 21, 22
sKX, sPF, sKM, sVM, sFL = 23, 24, 25, 26, 27
sSTEP, sSPIN, sTAG, sMSU = 28, 29, 30, 31
sSTM, sHI8, sW0M, sLO8 = 32, 34, 36, 38
sT0, sT1, sT2, sT3 = 40, 41, 42, 43
sC1, sNC1, sK128 = 44, 46, 47
sPTR = 48
sONE, sHALF = 60, 62
sROLE, sFV = 64, 65
sAL, sALW = 66, 67
sACC = 68
sNONCE = 95
sSUM = 96

SMF = 'v_smfmac_f32_16x16x64_bf16'
MF32 = 'v_mfma_f32_16x16x32_bf16'
MF16 = 'v_mfma_f32_16x16x16_bf16'
def s(i, n=1): return R(i, n, 's')
def v(i, n=1): return R(i, n, 'v')

def lds_base(addr):
    if addr + 4096 < 64 * K: return LH, addr
    if addr < L_MISC + 16 * K: return LW0, addr - B_LW0
    return LW1, addr - B_LW1

class Chain:
    def __init__(self, a, tag, fl='', lfl='nt', pfl='sc1', xoff=0, nsteps=64, timing=0, dA=0, dB=24, d0=0, d1=24, dX=0, nopub=0, nopf=0,
                 hook=None, nomax=0, gap=0, dual=0, tstep=40, spinmax=1 << 16, prof=None, pstride=8, pA=20, pF=30, rt=0, dW=0, ks=2, early=1, k1=1, pskip=0, dZ=60, dE=0, ins0=0, p1=1, epf=1, npr=10, pg=6, dP=10, k0=1, pG=30, eo=1, w0hook=None, pbr=1, ppos=1, ptrace=None, lcap=16, lrev=5, gs=2, lord=1, lasy=4, lpri=5, gforce=0):
        self.gforce = gforce
        self.lpri = lpri; self.tick = lambda: None
        self.lasy = lasy
        self.lord = lord
        self.gs = gs
        self.lcap = lcap; self.lrev = lrev
        self.ptrace = ptrace
        self.pbr = pbr; self.ppos = ppos
        self.w0hook = w0hook
        self.eo = eo
        self.k0 = k0; self.pG = pG
        self.npr = npr; self.pg = pg; self.dP = dP
        self.p1 = p1; self.epf = epf
        self.ins0 = ins0
        self.dZ = dZ; self.dE = dE
        self.pskip = pskip
        self.k1 = k1
        self.ks = ks; self.early = early
        self.dW = dW
        self.clk = 's_memrealtime' if rt else 's_memtime'
        self.pA = pA; self.pF = pF
        self.prof = prof; self.pstride = pstride
        self.a = a; self.tag = tag; self.fl = fl; self.lfl = lfl; self.pfl = pfl
        self.wsmem = WS_MEM + xoff; self.wspart = WS_PART + xoff; self.nsteps = nsteps; self.timing = timing
        self.dA = dA; self.dB = dB; self.d0 = d0; self.d1 = d1; self.dX = dX; self.nopub = nopub; self.nopf = nopf
        self.hook = hook; self.nomax = nomax; self.gap = gap; self.dual = dual; self.tstep = tstep; self.spinmax = spinmax

    def stamp(self, i):
        if self.prof is not None:
            if i == self.prof and not getattr(self.a, '_prof', None): self.a.start_prof(sACC, self.pstride, 12, self.pskip)
        elif self.timing == 1 or (self.timing == 2 and i == 0): self.a.ins(f'{self.clk} s[{sACC+2*i}:{sACC+2*i+1}]')

    def addresses(self):
        a = self.a
        T0, T1, C, G = 0 + 24, 25, 26, 27
        a.valu('v_lshrrev_b32', v(T0), 6, 'v0')
        a.valu('v_lshlrev_b32', v(LH), 4, 'v0')
        a.valu('v_add_u32', v(LW0), B_LW0, v(LH))
        a.valu('v_xor_b32', v(LW1), 1024, v(LH)); a.valu('v_add_u32', v(LW1), B_LW1, v(LW1))
        a.valu('v_xor_b32', v(LW2), 2048, v(LH)); a.valu('v_add_u32', v(LW2), B_LW1, v(LW2))
        a.valu('v_and_b32', v(L16), 1023, v(LH)); a.valu('v_add_u32', v(L16), B_LW1, v(L16))
        a.valu('v_and_b32', v(C), 15, 'v0')
        a.valu('v_bfe_u32', v(G), 'v0', 4, 2)
        a.valu('v_mov_b32', v(IDX), '0x4444'); a.valu('v_mov_b32', v(T1), '0xeeee')
        a.valu('v_cmp_lt_u32', 'vcc', 7, v(C))
        a.valu('v_cndmask_b32', v(IDX), v(IDX), v(T1), 'vcc')
        self.tick()
        a.valu('v_and_b32', v(PSX), 12, v(C)); a.valu('v_lshlrev_b32', v(PSX), 3, v(PSX))
        a.valu('v_and_b32', v(T1), 1, v(C)); a.valu('v_lshl_add_u32', v(PSX), v(T1), 4, v(PSX))
        a.valu('v_bfe_u32', v(T1), v(C), 1, 1); a.valu('v_lshl_add_u32', v(PSX), v(T1), 3, v(PSX))
        a.valu('v_lshl_add_u32', v(PST), v(G), 14, v(PSX)); a.valu('v_lshl_add_u32', v(PST), v(T0), 17, v(PST))
        self.tick()
        a.valu('v_and_b32', v(PSX), 63, v(PSX))
        a.valu('v_lshrrev_b32', v(T1), 1, v(T0)); a.valu('v_lshl_add_u32', v(PSX), v(T1), 18, v(PSX))
        a.valu('v_lshl_add_u32', v(PSX), v(G), 16, v(PSX))
        a.valu('v_lshrrev_b32', v(T1), 3, v(C)); a.valu('v_lshl_add_u32', v(PSX), v(T1), 15, v(PSX))
        a.valu('v_and_b32', v(T1), 1, v(T0)); a.valu('v_lshl_add_u32', v(PSX), v(T1), 6, v(PSX))
        self.tick()
        a.valu('v_and_b32', v(T1), 31, 'v0')
        a.valu('v_lshlrev_b32', v(MMW), 4, v(T1))
        a.valu('v_lshlrev_b32', v(28), 3, v(T1)); a.valu('v_lshl_add_u32', v(28), v(T0), 10, v(28)); a.valu('v_add_u32', v(28), L_SC, v(28))
        a.valu('v_lshrrev_b32', v(T1), 1, v(T0)); a.valu('v_lshl_add_u32', v(MMW), v(T1), 9, v(MMW))
        a.valu('v_and_b32', v(T1), 1, v(T0)); a.valu('v_lshl_add_u32', v(MMW), v(T1), 3, v(MMW))
        a.valu('v_add_u32', v(MMW), L_MM, v(MMW))
        a.valu('v_cmp_gt_u32', 'vcc', 2, v(G))
        a.valu('v_cndmask_b32', v(MMW), v(MMW), v(28), 'vcc')
        self.tick()
        a.valu('v_xor_b32', v(LW3), 2048, v(LW1))
        a.valu('v_lshrrev_b32', v(OR0), 4, 'v0'); a.valu('v_lshlrev_b32', v(OR0), 7, v(OR0))
        a.valu('v_and_b32', v(T1), 7, v(C)); a.valu('v_lshl_add_u32', v(OR0), v(T1), 4, v(OR0)); a.valu('v_add_u32', v(OR0), L_OB, v(OR0))
        for i, r in enumerate((OA1, OA2, OA3)): a.valu('v_xor_b32', v(r), 512 * (i + 1), v(OR0))
        a.valu('v_lshrrev_b32', v(T1), 3, v(C)); a.valu('v_lshl_add_u32', v(OW), v(T1), 3, v(OR0))
        a.valu('v_or_b32', v(MMR), 512, v(L16)); a.valu('v_lshlrev_b32', v(PFA), 2, v(LH)); a.valu('v_mov_b64', v(ZZ, 2), 0)
        a.valu('v_and_b32', v(T1), 1, v(G)); a.valu('v_lshlrev_b32', v(MST), 7, v(T1))
        a.valu('v_lshrrev_b32', v(T1), 1, v(G)); a.valu('v_lshl_add_u32', v(MST), v(T1), 3, v(MST))
        a.valu('v_and_b32', v(T1), 3, v(C)); a.valu('v_lshl_add_u32', v(MST), v(T1), 4, v(MST))
        a.valu('v_bfe_u32', v(T1), v(C), 2, 1); a.valu('v_lshl_add_u32', v(MST), v(T1), 2, v(MST))
        self.tick()
        a.salu('s_mov_b32', s(sSTM), '0x00ff00ff'); a.salu('s_mov_b32', s(sSTM + 1), '0x00ff00ff')
        a.salu('s_not_b64', s(sHI8, 2), s(sSTM, 2))
        a.salu('s_lshr_b32', s(sMSU), s(sH), 1); a.salu('s_lshl_b32', s(sMSU), s(sMSU), 8)
        a.salu('s_and_b32', s(sT0), s(sH), 1); a.salu('s_lshl_b32', s(sT0), s(sT0), 6); a.salu('s_add_u32', s(sMSU), s(sMSU), s(sT0))
        a.salu('s_and_b32', s(sT0), s(sW), 1); a.salu('s_lshl_b32', s(sT0), s(sT0), 12)
        a.salu('s_add_u32', s(sMSU), s(sMSU), s(sT0))
        a.salu('s_lshl_b32', s(sPL), s(sH), 14); a.salu('s_add_u32', s(sPL), s(sPL), self.wspart - B_LW1)
        a.salu('s_add_u32', s(sT1), s(sPL), 8192)
        a.salu('s_add_u32', s(sPL), s(sPL), s(sT0))
        a.salu('s_and_b32', s(sT0), s(sH), 1); a.salu('s_lshl_b32', s(sT0), s(sT0), 2); a.salu('s_or_b32', s(sT0), s(sT0), s(sW))
        a.salu('s_cmp_eq_u32', s(sT0), 5, nodst=True)
        a.salu('s_cselect_b32', s(sROLE), 0, s(sW))
        a.salu('s_cmp_lg_u32', s(sW), 1, nodst=True)
        a.ins(f's_cbranch_scc1 {self.tag}_notx')
        a.salu('s_mov_b32', s(sSTM), '0xff'); a.salu('s_mov_b32', s(sSTM + 1), '0xff')
        a.salu('s_mov_b32', s(sPL), s(sT1))
        a.salu('s_lshr_b32', s(sMSU), s(sH), 3); a.salu('s_lshl_b32', s(sMSU), s(sMSU), 8)
        a.salu('s_and_b32', s(sT0), s(sH), 2); a.salu('s_lshl_b32', s(sT0), s(sT0), 6); a.salu('s_add_u32', s(sMSU), s(sMSU), s(sT0))
        a.salu('s_and_b32', s(sT0), s(sH), 4); a.salu('s_lshl_b32', s(sT0), s(sT0), 4); a.salu('s_add_u32', s(sMSU), s(sMSU), s(sT0))
        a.salu('s_add_u32', s(sMSU), s(sMSU), 8192)
        a.label(f'{self.tag}_notx')
        a.salu('s_cmp_lg_u32', s(sW), 0, nodst=True)
        a.ins(f's_cbranch_scc1 {self.tag}_notp')
        a.salu('s_min_u32', s(sT0), s(sH), 23); a.salu('s_mul_i32', s(sT0), s(sT0), 384); a.salu('s_add_u32', s(sT0), s(sT0), L_MBUF)
        a.valu('v_add_u32', v(MST), s(sT0), v(LH))
        a.valu('v_mov_b32', v(T1), L_NON)
        a.valu('v_cmp_lt_u32', 'vcc', 23, 'v0')
        a.valu('v_cndmask_b32', v(MST), v(MST), v(T1), 'vcc')
        a.label(f'{self.tag}_notp')
        a.fence()

    def init_exchange(self):
        a = self.a; srd = s(SRD, 4)
        self.tick()
        for i in range(4): a.valu('v_mov_b32', v(28 + i), 1)
        a.salu('s_lshl_b32', s(sT0), s(sH), 14); a.salu('s_add_u32', s(sT0), s(sT0), self.wspart)
        for rd in range(3):
            a.salu('s_add_u32', s(sT1), s(sT0), rd * 4096)
            a.vmem('buffer_store_dwordx4', v(28, 4), v(LH), srd, s(sT1), mods='offen ' + self.fl, load=False, data=v(28, 4))
        a.salu('s_cmp_eq_u32', s(sROLE), 0, nodst=True)
        a.salu('s_cselect_b64', 'exec', 0, s(sSTM, 2))
        a.valu('v_mov_b32', v(27), -1)
        for i in range(4):
            a.salu('s_add_u32', s(sT1), s(sMSU), self.wsmem + i * 16384)
            a.vmem('buffer_store_dword', v(27), v(MST), srd, s(sT1), mods='offen ' + self.fl, load=False)
        a.salu('s_mov_b64', 'exec', -1)
        self.tick()
        a.salu('s_mov_b64', s(68, 2), s(sPTR, 2))
        a.salu('s_mov_b32', s(70), 9216); a.salu('s_mov_b32', s(71), '0x20000')
        a.valu('v_and_b32', v(25), 7, 'v0'); a.valu('v_mul_u32_u24', v(25), 1152, v(25))
        a.valu('v_lshrrev_b32', v(26), 3, 'v0'); a.valu('v_lshl_add_u32', v(25), v(26), 4, v(25))
        a.vmem('buffer_load_dwordx4', v(36, 4), v(25), s(68, 4), 0, mods='offen')
        a.vmem('buffer_load_dwordx4', v(40, 4), v(25), s(68, 4), 0, mods='offen offset:512')
        a.valu('v_bfe_u32', v(25), 'v0', 2, 3); a.valu('v_mul_u32_u24', v(25), 1152, v(25))
        a.valu('v_lshrrev_b32', v(26), 5, 'v0'); a.valu('v_lshl_add_u32', v(25), v(26), 4, v(25))
        a.valu('v_and_b32', v(26), 3, 'v0'); a.valu('v_lshl_add_u32', v(25), v(26), 2, v(25))
        a.vmem('buffer_load_dword', v(44), v(25), s(68, 4), 0, mods='offen offset:1024')

    def init_late(self):
        a = self.a; srd = s(SRD, 4)
        for r in range(36, 45): a.valu('v_min_u32', v(r), -2, v(r))
        a.salu('s_lshl_b32', s(sMEM), s(sH), 16); a.salu('s_add_u32', s(sMEM), s(sMEM), WS_M0)
        a.salu('s_add_u32', s(sT1), s(sMEM), 4096); a.salu('s_add_u32', s(sT2), s(sMEM), 8192)
        a.valu('v_lshrrev_b32', v(45), 2, v(LH))
        a.vmem('buffer_store_dwordx4', v(36, 4), v(LH), srd, s(sMEM), mods='offen ' + self.fl, load=False, data=v(36, 4))
        a.vmem('buffer_store_dwordx4', v(40, 4), v(LH), srd, s(sT1), mods='offen ' + self.fl, load=False, data=v(40, 4))
        a.vmem('buffer_store_dword', v(44), v(45), srd, s(sT2), mods='offen ' + self.fl, load=False)

    def constants(self):
        a = self.a
        C, E, LO, HI = 40, 41, 42, 43
        a.valu('v_bfe_u32', v(C), v(LH), 4, 4)
        a.valu('v_bfe_u32', v(E), v(LH), 8, 1); a.valu('v_lshlrev_b32', v(E), 2, v(E)); a.valu('v_sub_u32', v(E), v(C), v(E))
        a.valu('v_mov_b32', v(LO), '0x3f80'); a.valu('v_mov_b32', v(HI), '0x3f800000')
        for m in range(4):
            lo = 2 * m if m < 2 else 2 * m + 4
            a.valu('v_cmp_eq_u32', 'vcc', lo, v(E)); a.valu('v_cndmask_b32', v(32 + m), 0, v(LO), 'vcc')
            a.valu('v_cmp_eq_u32', 'vcc', lo + 1, v(E)); a.valu('v_cndmask_b32', v(32 + m), v(32 + m), v(HI), 'vcc')
            a.valu('v_cmp_eq_u32', 'vcc', 2 * m, v(C)); a.valu('v_cndmask_b32', v(36 + m), 0, v(LO), 'vcc')
            a.valu('v_cmp_eq_u32', 'vcc', 2 * m + 1, v(C)); a.valu('v_cndmask_b32', v(36 + m), v(36 + m), v(HI), 'vcc')
        a.ds('ds_write_b128', v(MMR), v(32, 4), mods=f'offset:{L_TB - 512 - B_LW1}')
        a.ds('ds_write_b128', v(L16), v(36, 4), mods=f'offset:{L_SEL - B_LW1}')
        for m in range(4): a.valu('v_mov_b32', v(44 + m), s(sNONCE))
        a.valu('v_mov_b32', v(48), L_NON)
        a.ds('ds_write_b128', v(48), v(44, 4))

    def load_lanes(self):
        a = self.a
        GA, GO, GX, TA, TO, TX, T0, T1, T2 = 48, 49, 50, 51, 52, 53, 54, 55, 56
        L = 57
        a.valu('v_lshrrev_b32', v(T0), 6, 'v0')
        a.valu('v_readfirstlane_b32', s(sW), v(T0))
        a.valu('v_and_b32', v(L), 63, 'v0')
        def bit(dst, src, b, sh, acc):
            a.valu('v_bfe_u32', v(T0), v(src), b, 1)
            if acc: a.valu('v_lshl_add_u32', v(dst), v(T0), sh, v(dst))
            else: a.valu('v_lshlrev_b32', v(dst), sh, v(T0))
        bit(GA, L, 2, 13, 0); bit(GA, L, 3, 15, 1); bit(GA, L, 4, 14, 1); bit(GA, L, 5, 16, 1)
        a.valu('v_lshrrev_b32', v(T1), 4, v(L)); a.valu('v_and_b32', v(T1), 2, v(T1)); a.valu('v_xor_b32', v(T1), v(T1), v(L))
        a.valu('v_and_b32', v(T1), 3, v(T1)); a.valu('v_lshl_add_u32', v(GA), v(T1), 4, v(GA))
        bit(TA, L, 2, 6, 0); bit(TA, L, 3, 9, 1); bit(TA, L, 4, 7, 1); bit(TA, L, 5, 12, 1)
        bit(TA, L, 0, 3, 1); bit(TA, L, 1, 4, 1); bit(TA, L, 3, 5, 1)
        a.valu('v_lshrrev_b32', v(T1), 3, v(L)); a.valu('v_mul_u32_u24', v(GO), 1152, v(T1))
        a.valu('v_and_b32', v(T1), 7, v(L)); a.valu('v_lshl_add_u32', v(GO), v(T1), 4, v(GO))
        bit(TO, L, 4, 13, 0); bit(TO, L, 5, 9, 1); bit(TO, L, 2, 7, 1); bit(TO, L, 3, 5, 1)
        a.valu('v_and_b32', v(T1), 3, v(L)); a.valu('v_lshl_add_u32', v(TO), v(T1), 3, v(TO))
        a.valu('v_lshrrev_b32', v(T1), 2, v(L)); a.valu('v_mul_u32_u24', v(GX), 1152, v(T1))
        a.valu('v_and_b32', v(T1), 3, v(L)); a.valu('v_lshl_add_u32', v(GX), v(T1), 4, v(GX))
        bit(TX, L, 4, 12, 0); bit(TX, L, 5, 8, 1); bit(TX, L, 2, 6, 1); bit(TX, L, 3, 5, 1)
        a.valu('v_and_b32', v(T1), 3, v(L)); a.valu('v_lshl_add_u32', v(TX), v(T1), 3, v(TX))
        sWK, sX16 = 66, 93
        a.salu('s_lshl_b32', s(sWK), s(sW), 10)
        a.salu('s_and_b32', s(sX16), s(sW), self.gs - 1); a.salu('s_lshl_b32', s(sX16), s(sX16), 14)
        a.salu('s_and_b32', s(75), s(sW), 4 - self.gs); a.salu('s_lshl_b32', s(75), s(75), 19)
        for r in (TA, TO, TX): a.valu('v_add_u32', v(r), s(sWK), v(r))
        a.valu('v_mov_b32', v(58), v(GA))
        a.salu('s_mov_b32', s(SRDW + 2), 576 * 8192); a.salu('s_mov_b32', s(SRDW + 3), '0x20000')

    def load_sub(self):
        a = self.a; t = self.tag
        a.label(f'{t}_dma')
        a.salu('s_xor_b32', s(74), s(76), s(81))
        a.salu('s_add_u32', 'm0', s(74), s(80))
        a.salu('s_add_u32', s(76), s(76), 4096)
        a.raw(f'    buffer_load_dwordx4 v58, s[{SRDW}:{SRDW+3}], s78 offen lds')
        a.salu('s_add_u32', s(78), s(78), s(79))
        a.salu('s_cmp_lt_u32', s(76), s(77), nodst=True)
        a.ins(f's_cbranch_scc1 {t}_dma')
        a.ins('s_setpc_b64 s[82:83]')

    def load_weights(self):
        a = self.a; t = self.tag
        GA, GO, GX, TA, TO, TX, T0, T1, T2 = 48, 49, 50, 51, 52, 53, 54, 55, 56
        sWK, sCOL, sOB, sX16, sKS = 66, 67, 92, 93, 94
        a.salu('s_lshl_b32', s(sCOL), s(sH), 8); a.salu('s_lshl_b32', s(sT0), s(sW), 6); a.salu('s_add_u32', s(sCOL), s(sCOL), s(sT0))
        a.salu('s_mul_i32', s(sOB), s(sH), 128 * 1152)
        pW = {'q': sPTR + 2, 'k': sPTR + 4, 'v': sPTR + 6, 'o': sPTR + 8}
        cur = {'m': None, 'va': GA, 'st': None, 'x': None}
        def call(m, va, step, xm, buf, lo, hi):
            if cur['m'] != m: a.salu('s_mov_b64', s(SRDW, 2), s(pW[m], 2)); cur['m'] = m
            if cur['va'] != va: a.valu('v_mov_b32', v(58), v(va)); cur['va'] = va
            if cur['st'] != step: a.salu('s_mov_b32', s(79), step); cur['st'] = step
            if cur['x'] != xm: a.salu('s_mov_b32', s(81), xm); cur['x'] = xm
            if lo == 0: a.salu('s_add_u32', s(80), s(sWK), buf); a.salu('s_mov_b32', s(76), 0)
            a.salu('s_mov_b32', s(77), hi * 4096)
            a.ins(f's_call_b64 s[82:83], {t}_dma')
            a.vm_seq += hi - lo
        def issue(job):
            kind, m, x, buf = job
            if kind == 'g':
                a.salu('s_xor_b32', s(78), s(75), x * self.gs * 64 * 8192)
                a.salu('s_add_u32', s(78), s(78), s(sCOL))
                for p in range(0, 4 * self.gs, 2): call(m, GA, 16 * 8192, s(sX16), buf, p, p + 2); yield
            elif kind == 's':
                a.salu('s_add_u32', s(78), s(sCOL), 512 * 8192)
                for p in (0, 2): call(m, GA, 16 * 8192, 0, buf, p, p + 2); yield
            elif kind == 'o':
                a.salu('s_xor_b32', s(sKS), s(sW), x[1]); a.salu('s_mul_i32', s(sKS), s(sKS), 32 * 1152)
                a.salu('s_add_u32', s(sKS), s(sKS), s(sOB))
                a.salu('s_lshl_b32', s(74), s(sW), 7); a.salu('s_add_u32', s(sKS), s(sKS), s(74))
                a.salu('s_add_u32', s(78), s(sKS), x[0] * 512)
                for p in (0, 2): call(m, GO, 8 * 1152, 0, buf, p, p + 2); yield
            else:
                for kk in range(2):
                    a.salu('s_xor_b32', s(sKS), s(sW), 2 * kk); a.salu('s_mul_i32', s(sKS), s(sKS), 32 * 1152)
                    a.salu('s_add_u32', s(sKS), s(sKS), s(sOB))
                    a.salu('s_lshr_b32', s(74), s(sW), 1); a.salu('s_lshl_b32', s(74), s(74), 6)
                    a.salu('s_add_u32', s(sKS), s(sKS), s(74))
                    a.salu('s_add_u32', s(78), s(sKS), 1024)
                    call(m, GX, 16 * 1152, 0, buf, 2 * kk, 2 * kk + 2); yield
        def build(frs, base, offs, buf):
            a.valu('v_add_u32', v(T1), buf, v(base))
            if base == TA: a.valu('v_xor_b32', v(T2), 32, v(T1))
            tmp = {}
            for fi, f in enumerate(frs):
                k, b = ('v', 8 * fi) if f in LDS_ADDR else REGF[f]
                for jp in range(4):
                    alt, off = offs(fi, jp)
                    a.ds('ds_read_b64_tr_b16', R(b + 2 * jp, 2, k), v(T2 if alt else T1), mods=f'offset:{off}')
                self.tick()
            a.wait(lds='all')
            wr = False
            for fi, f in enumerate(frs):
                if f in LDS_ADDR:
                    rg, off = lds_base(LDS_ADDR[f])
                    if rg == LW1:
                        a.ins('s_barrier')
                    a.ds('ds_write_b128', v(rg), v(8 * fi, 4), mods=f'offset:{off}')
                    a.ds('ds_write_b128', v(rg), v(8 * fi + 4, 4), mods=f'offset:{off + 4096}')
                    wr = True
            if wr: a.wait(lds='all')
        oq = lambda fi, jp: (fi, (jp >> 1) * 8192 + (jp & 1) * 256)
        oo = lambda fi, jp: (0, (jp >> 1) * 4096 + (jp & 1) * 256 + fi * 64)
        ox = lambda fi, jp: (0, fi * 8192 + (jp >> 1) * 512 + (jp & 1) * 128)
        def consume(job):
            kind, m, x, buf = job
            if kind == 'g':
                for i in range(self.gs): build([(m, 0, x * self.gs + i), (m, 1, x * self.gs + i)], TA, oq, buf + i * 16384)
            elif kind == 's': build([(m, 0, 8), (m, 1, 8)], TA, oq, buf)
            elif kind == 'o': build([('o', 2 * x[0], x[1]), ('o', 2 * x[0] + 1, x[1])], TO, oo, buf)
            else: build([('o', 4, 0), ('o', 4, 1)], TX, ox, buf)
        jobs = [['o', 'o', x, None] for x in ((0, 0), (0, 1), (0, 2), (0, 3), (1, 0), (1, 1))] + [['g', 'v', x, None] for x in range(4)] + [['s', 'v', 8, None],
                ['g', 'k', 2, None], ['g', 'k', 3, None], ['g', 'q', 2, None], ['g', 'q', 3, None], ['s', 'q', 8, None], ['g', 'q', 1, None],
                ['g', 'q', 0, 64 * K], ['g', 'k', 0, 0], ['g', 'k', 1, 32 * K], ['x', 'o', 0, 144 * K], ['o', 'o', (1, 3), 128 * K], ['o', 'o', (1, 2), 112 * K], ['s', 'k', 8, 80 * K]]
        size = lambda j: self.gs * 16 * K if j[0] == 'g' else 16 * K
        def finals(j):
            if j[:3] == ['g', 'q', 0]: return [(64 * K, 80 * K)]
            if j[3] is not None and j[4]: return [(j[3], j[3] + size(j))]
            return []
        for j in jobs: j.append(j[3] is not None)
        def place(n, done):
            busy = [(jobs[x][3], jobs[x][3] + size(jobs[x])) for x in range(done, n)] + [sp for x in range(n) for sp in finals(jobs[x])]
            if not jobs[n][4]: busy += finals(jobs[n])
            def firstfix(lo): return min([x for x in range(n + 1, min(n + 1 + self.lrev, len(jobs))) if jobs[x][4] and not (jobs[x][3] + size(jobs[x]) <= lo or jobs[x][3] >= lo + size(jobs[n]))] + [99])
            cands = [jobs[n][3]] if jobs[n][4] else sorted(range(0, 160 * K - size(jobs[n]) + 1, 8 * K), key=lambda lo: -firstfix(lo))
            for lo in cands:
                if all(b[1] <= lo or b[0] >= lo + size(jobs[n]) for b in busy): return lo
            return None
        tags = {}; S = dict(n=0, gen=None, left=0, j=0, out=0)
        def tick(force=False):
            if S['gen'] is None:
                n = S['n']
                if n >= len(jobs): return False
                lo = place(n, S['j'])
                if lo is None: return False
                if S['out'] + 2 > self.lcap and not force: return False
                jobs[n][3] = lo; S['gen'] = issue(jobs[n][:4]); S['left'] = size(jobs[n]) // 8192
            elif S['out'] + 2 > self.lcap and not force: return False
            next(S['gen']); S['left'] -= 1; S['out'] += 2
            if S['left'] == 0: tags[S['n']] = a.vm_seq; S['n'] += 1; S['gen'] = None
            return True
        self.tick = tick
        pend = list(self.stages); mark = None
        for i in range(self.lpri): tick()
        for j in range(len(jobs)):
            S['j'] = j
            if pend and ((len(pend) > 1 or len(self.stages) < 4) and (mark is None or (j > 0 and tags[j - 1] > mark)) or (len(pend) == 1 and len(self.stages) == 4 and j >= len(jobs) - self.lasy)):
                pend.pop(0)(a); mark = a.vm_seq
            while tick(): pass
            while j not in tags: assert tick(True)
            a.wait(vm=tags[j])
            self.outs = getattr(self, 'outs', []) + [S['out']]
            S['out'] -= size(jobs[j]) // 4096
            consume(jobs[j][:4])
            if self.ptrace: self.ptrace(a, j)
        self.tick = lambda: None
        assert not pend
        self.sched = [(j[:4]) for j in jobs]
        a.ins('s_barrier')

    def prologue(self, st1=None, st2=None, st3=None, late=None):
        a = self.a
        def s0(a):
            if self.ptrace: self.ptrace(a, 25)
            self.addresses(); self.init_exchange()
            if self.ptrace: self.ptrace(a, 26)
        def s1(a):
            self.init_late()
            if st1: st1(a)
        self.stages = [s0, s1] + [x for x in (st2, st3) if x]
        self.load_weights()
        a.wait(vm='all')
        if late: late(a)
        self.constants()
        a.wait(vm='all', lds='all')
        a.fence()

    def loop_init(self):
        a = self.a
        a.salu('s_mov_b32', s(sC1), '0x3e0293ee'); a.salu('s_mov_b32', s(sC1 + 1), s(sC1))
        a.salu('s_mov_b32', s(sNC1), '0x42000000' if not self.gforce else 0)
        a.salu('s_mov_b32', s(sK128), 128)
        a.salu('s_mov_b32', s(sONE), '0x3f803f80'); a.salu('s_mov_b32', s(sONE + 1), s(sONE))
        a.salu('s_mov_b32', s(sHALF), '0x3e803e80'); a.salu('s_mov_b32', s(sHALF + 1), s(sHALF))
        a.salu('s_mov_b32', s(sSTEP), 0)
        a.salu('s_lshl_b32', s(sPF), s(sH), 14); a.salu('s_add_u32', s(sPF), s(sPF), WS_KV)
        a.salu('s_add_u32', s(sAL), s(sPF), (self.nsteps - 1) * 32 * 16384)
        a.salu('s_mul_i32', s(sT0), s(sW), 3072); a.salu('s_add_u32', s(sKX), s(sPF), s(sT0))
        a.salu('s_lshl_b32', s(sPS0), s(sH), 7); a.salu('s_add_u32', s(sPS0), s(sPS0), self.wspart)
        a.salu('s_add_u32', s(sPS1), s(sPS0), 65536)
        a.salu('s_add_u32', s(sLO8), s(sPS0), 4096); a.salu('s_add_u32', s(sLO8 + 1), s(sPS1), 4096)
        a.salu('s_lshl_b32', s(sPSX), s(sH), 7); a.salu('s_add_u32', s(sPSX), s(sPSX), self.wspart + 8192)
        a.salu('s_lshl_b32', s(sT0), s(sH), 12)
        a.salu('s_add_u32', s(sKM), s(sT0), WS_KM + (self.nsteps - 2) * 32 * 4096)
        a.salu('s_add_u32', s(sVM), s(sT0), WS_VM + (self.nsteps - 2) * 32 * 4096)
        a.salu('s_lshl_b32', s(sFV), s(sH), 9); a.salu('s_add_u32', s(sFV), s(sFV), WS_MEMH)
        a.salu('s_lshl_b32', s(sT0), s(sW), 5); a.salu('s_or_b32', s(sT0), s(sT0), s(sH))
        a.salu('s_cmp_lt_u32', s(sT0), 24, nodst=True)
        a.salu('s_cselect_b32', s(sW0M), '0x1ffffff', 0); a.salu('s_mov_b32', s(sW0M + 1), 0)
        a.salu('s_lshl_b32', s(sFL), s(sH), 7); a.salu('s_add_u32', s(sFL), s(sFL), SY_CHF)
        a.salu('s_lshl_b32', s(sT0), s(sW), 2); a.salu('s_add_u32', s(sFL), s(sFL), s(sT0))
        a.salu('s_mov_b32', 'm0', L_DUMP)
        a.valu('v_lshlrev_b32', v(Rq[8]), 2, v(LH))
        for d in range(2):
            a.raw(f'    buffer_load_dword v{Rq[8]}, s[{SRD}:{SRD+3}], s{sPF} offen sc1 lds'); a.pos += 1; a.vm_seq += 1
            a.salu('s_add_u32', s(sPF), s(sPF), 32 * 16384)
        a.valu('v_lshlrev_b32', v(Rq[8]), 2, v(LH))
        a.salu('s_lshl_b32', s(sT0), s(sH), 14); a.salu('s_add_u32', s(sT0), s(sT0), self.wspart)
        a.raw(f'    buffer_load_dword v{Rq[8]}, s[{SRD}:{SRD+3}], s{sT0} offen sc1 lds'); a.pos += 1; a.vm_seq += 1
        a.salu('s_and_b32', s(sT0), s(sH), 3); a.salu('s_lshl_b32', s(sT0), s(sT0), 14); a.salu('s_add_u32', s(sT0), s(sT0), self.wsmem)
        a.raw(f'    buffer_load_dword v{Rq[8]}, s[{SRD}:{SRD+3}], s{sT0} offen sc1 lds'); a.pos += 1; a.vm_seq += 1
        if self.timing:
            for i in range(24): a.salu('s_mov_b32', s(sACC + i), 0)

    def step(self):
        a = self.a; t = self.tag; fl = self.fl; lfl = self.lfl
        srd = s(SRD, 4); T = {}
        R0, R1, R2, R3, R4, R5, R6, R7, R8 = Rq
        ACCS = {'q0': AQ0, 'q1': AQ1, 'k0': AK0, 'k1': AK1, 'v0': AV0, 'v1': AV1}
        where = {}
        M = {}
        def fr(f, dst):
            rg, off = lds_base(LDS_ADDR[f])
            def f0(): where[f] = dst; a.ds('ds_read_b128', v(dst, 4), v(rg), mods=f'offset:{off}')
            def f1(): T[f] = a.ds('ds_read_b128', v(dst + 4, 4), v(rg), mods=f'offset:{off + 4096}')
            return f0, f1
        def xr(i): return {0: (LW0, B_LW0), 1: (LW1, B_LW1), 2: (LW2, B_LW1), 3: (LW3, B_LW1)}[i]
        def mr(sl, dst):
            def f():
                M[sl] = dst
                if sl == 8: T[('m', sl)] = a.ds('ds_read_b128', v(dst, 4), v(L16), mods=f'offset:{L_MBUF + 8192 - B_LW1}')
                else:
                    rg, b = xr(sl & 3)
                    T[('m', sl)] = a.ds('ds_read_b128', v(dst, 4), v(rg), mods=f'offset:{L_MBUF + (sl >> 2) * 4096 - b}')
            return f
        def wl(key): return lambda: a.wait(lds=T[key])
        def wv(key): return lambda: (a.wait(vm=T[key]) if T[key] > a.done['vm'] else None)
        def mm(o, sl):
            f = (o[0], int(o[1]), sl)
            a.mfma(SMF, v(ACCS[o], 4), v(M[sl], 4), v(where[f], 8) if f in LDS_ADDR else freg(f), v(IDX))
        def run(seq):
            for x in seq:
                if isinstance(x, tuple): mm(*x)
                elif x is not None: x()
        def sal(*args, **kw): return lambda: a.salu(*args, **kw)
        def val(*args, **kw): return lambda: a.valu(*args, **kw)
        def ins(x): return lambda: a.ins(x)
        def z2(r, c=0): return val('v_mov_b64', v(r, 2), c)
        def zero(lo, hi):
            for i in range(lo, hi, 2): z2(i)()
        def cvt(d, x, y=None): return val('v_cvt_pk_bf16_f32', v(d), v(x), v(x + 1 if y is None else y))
        def dpp(d, x, bm): return val('v_mov_b32_dpp', v(d), v(x), mods=f'row_ror:8 row_mask:0xf bank_mask:{bm}', rmw=True)
        def mf(op, d, A, B, C): return lambda: a.mfma(op, v(d, 4), v(A, 4 if op == MF32 else 2), v(B, 4 if op == MF32 else 2), 0 if C is None else v(C, 4))
        def st(k): return lambda: self.stamp(k)
        LC, TM, LCW, MC = R8, R8 + 1, R8 + 2, R8 + 3
        def vbr(lab):
            a.ins(f's_cbranch_vccnz {lab}')
        def poll0():
            a.vmem('buffer_load_dwordx4', v(R0, 4), v(LH), srd, s(sMEM), mods='offen ' + lfl); a.nowait(v(R0, 4))
        def poll1():
            a.vmem('buffer_load_dwordx4', v(R1, 4), v(LH), srd, s(sMEM4), mods='offen ' + lfl)
            a.vmem('buffer_load_dword', v(MC), v(LC), srd, s(sMEM8), mods='offen ' + lfl)
            a.nowait(v(R1, 4)); a.nowait(v(MC))
        def prefetch_top():
            run(list(fr(('q', 1, 0), R2)) + list(fr(('k', 0, 0), R4)) + list(fr(('k', 1, 0), R6)))
        def prefetch_av(): run(list(fr(('q', 0, 0), AV0)))
        def offsets():
            a.salu('s_add_u32', s(sMEM4), s(sMEM), 4096); a.salu('s_add_u32', s(sMEM8), s(sMEM), 8192)
        def pubk(r):
            if self.nopub: return
            a.salu('s_mov_b64', 'exec', s(sHI8, 2))
            a.vmem('buffer_store_dwordx4', v(r, 4), v(LH), srd, s(sKM), mods='offen ' + self.pfl, load=False, data=v(r, 4))
            a.salu('s_mov_b64', 'exec', -1)
        def pubv(r):
            if self.nopub: return
            a.vmem('buffer_store_dwordx4', v(r, 4), v(LH), srd, s(sVM), mods='offen ' + self.pfl, load=False, data=v(r, 4))
        def flag(r):
            if self.nopub: return
            a.salu('s_mov_b64', 'exec', 1)
            a.vmem('buffer_store_dword', v(r), 'off', srd, s(sFL), mods='sc1', load=False)
            a.salu('s_mov_b64', 'exec', -1)
        def pf(r):
            if self.nopf: return
            a.raw(f'    buffer_load_dword v{r}, s[{SRD}:{SRD+3}], s{sPF} offen sc1 lds'); a.pos += 1; a.vm_seq += 1

        offsets(); prefetch_top()
        a.salu('s_mov_b32', s(sSPIN), self.spinmax)
        poll0()
        a.raw('.p2align 6')
        a.label(f'{t}_loop')
        a.forget()
        zero(0, 16)
        a.label(f'{t}_loop2')
        st(0)()
        def top():
            prefetch_av()
            a.valu('v_lshrrev_b32', v(LC), 2, v(LH))
            a.valu('v_add_u32', v(LCW), L_MBUF + 8192, v(LC))
            if self.timing: a.salu('s_mov_b32', 's94', s(sSPIN))
            a.salu('s_mov_b32', s(sSPIN), self.spinmax)
            if self.hook: self.hook(a)
        top()
        for i in range(self.ks - 1):
            if self.pA: a.nop(self.pA)
            poll0()
        a.ins('s_waitcnt lgkmcnt(0)')
        a.label(f'{t}_chk0')
        a.ins(f's_waitcnt vmcnt({self.ks - 1})')
        a.lines.append(f'{t}_chk0b:')
        st(1)()
        M[0] = R0; M[4] = R1
        K01, K11 = fr(('k', 0, 1), R2), fr(('k', 1, 1), R4)
        K02, K12 = fr(('k', 0, 2), R2), fr(('k', 1, 2), R4)
        K03, K13 = fr(('k', 0, 3), R2), fr(('k', 1, 3), R4)
        o2 = [sal('s_add_u32', s(sMRS), s(sMEM), s(sMSU)), sal('s_add_u32', s(sT1), s(sMEM), 16384), sal('s_and_b32', s(sT1), s(sT1), 0xffff),
              sal('s_add_u32', s(sT1), s(sT1), self.wsmem), sal('s_add_u32', s(sMST), s(sT1), s(sMSU)), sal('s_and_b32', s(sTAG), s(sSTEP), 1)]
        a.valu('v_max3_u32', v(TM), v(R0), v(R0 + 1), v(R0 + 2)); a.valu('v_max_u32', v(TM), v(TM), v(R0 + 3))
        a.valu('v_cmp_eq_u32', 'vcc', -1, v(TM))
        wA = a.ds('ds_write_b128', v(LW0), v(R0, 4), mods=f'offset:{L_MBUF - B_LW0}')
        vbr(f'{t}_spin0')
        run([('q0', 0), poll1 if self.p1 == 1 else None, ('q1', 0), z2(AV0), ('k1', 0), K01[0], z2(AV0 + 2), lambda: a.wait(lds=wA)])
        a.ins('s_barrier')
        st(2)()
        def kx(i):
            def f(): T['kx', i] = a.vmem('buffer_load_dwordx4', v(R2 + 4 * i, 4), v(LH), srd, s(sKX), mods=f'offen offset:{i*1024} sc1')
            return f
        c1 = [val('v_max3_u32', v(TM), v(R1), v(R1 + 1), v(R1 + 2)), val('v_max3_u32', v(TM), v(TM), v(R1 + 3), v(MC)), val('v_cmp_eq_u32', 'vcc', -1, v(TM))]
        def w1a(): a.ds('ds_write_b128', v(LW0), v(R1, 4), mods=f'offset:{L_MBUF + 4096 - B_LW0}')
        def w1b(): T['wB'] = a.ds('ds_write_b32', v(LCW), v(MC))
        run([mr(1, R6), K01[1], ('k0', 0), K11[0], z2(AV1), ('v0', 0), K11[1], z2(AV1 + 2), mr(2, R7), ('v1', 0), poll1 if self.p1 == 2 else None,
             ('q0', 1), o2[0], o2[1], ('k0', 1), K02[0], ('q1', 1), K02[1], ('k1', 1), K12[0], ('q0', 2), K12[1], ('q1', 2), mr(3, R6),
             ('k0', 2), ins('s_waitcnt vmcnt(0)'), st(3), w1a, ('k1', 2), w1b, c1[0], ('q0', 3), K03[0], c1[1], ('q1', 3), K03[1], c1[2], ('v0', 2), K13[0], ('v1', 2), K13[1]])
        vbr(f'{t}_spin1')
        a.lines.append(f'{t}_go1:')
        run([('q0', 4), wl('wB')])
        a.ins('s_barrier')
        TB = R1
        def tbld(): T['tb'] = a.ds('ds_read_b128', v(TB, 4), v(MMR), mods=f'offset:{L_TB - 512 - B_LW1}')
        def pmld(R1=AQ0):
            if self.nopub: return
            a.salu('s_mov_b64', 'exec', s(sW0M, 2))
            a.ds('ds_read_b128', v(R1, 4), v(MST))
            a.salu('s_mov_b64', 'exec', -1)
        def pubm(R1=AQ0):
            if self.nopub: return
            a._autowait([('v', R1 + i) for i in range(4)], 'pubm')
            L = f'{t}_np{len(a.lines)}'
            a.salu('s_mov_b64', 'exec', s(sW0M, 2))
            if self.pbr: a.ins(f's_cbranch_execz {L}')
            a.vmem('buffer_store_dwordx4', v(R1, 4), v(LH), srd, s(sFV), mods='offen ' + self.pfl, load=False, data=v(R1, 4))
            if self.pbr: a.pos -= 1; a.lines.append(L + ':')
            a.salu('s_mov_b64', 'exec', -1)
        K08, K18 = fr(('k', 0, 8), R6), fr(('k', 1, 8), R6)
        run([mr(5, R7), ('k0', 3), mr(7, R8), ('q1', 4), kx(0), ('k1', 3), mr(6, R6), ('k0', 4), mr(8, R0), ('k1', 4), o2[2], o2[3], ('v0', 4), kx(1), ('v1', 4), o2[4], o2[5],
             ('q0', 5), tbld, ('k0', 5), kx(2), ('q1', 5), ('k1', 5), ('v0', 5), kx(3), ('v1', 5), K08[1],
             ('q0', 6), ('k0', 6), ('q1', 6), ('k1', 6), ('v0', 6), lambda: pf(PFA), ('v1', 6), K08[0],
             ('q0', 7), ('k0', 7), ('q0', 8), sal('s_cmp_ge_u32', s(sSTEP), self.nsteps - 2, nodst=True), ('q1', 7), lambda: a._autowait([('v', R6)], 'k08'),
             ('k0', 8), K18[0], cvt(AQ0, AQ0), ('k1', 7), K18[1], cvt(AQ0 + 1, AQ0 + 2),
             ('q1', 8), cvt(AQ0 + 2, AK0), ('v0', 7), cvt(AQ0 + 3, AK0 + 2), mf(MF32, AK0, AQ0, TB, None), cvt(AQ1, AQ1), ('k1', 8), mr(1, R6)])
        st(4)()
        run([cvt(AQ1 + 1, AQ1 + 2), ('v1', 7), mr(3, R7), cvt(AQ0, AK0), cvt(AQ1 + 2, AK1), cvt(AQ1 + 3, AK1 + 2), cvt(AQ0 + 1, AK0 + 2), wv(('kx', 3)),
             mf(MF32, AK1, AQ1, TB, None), lambda: pmld(R8), ('v0', 8),
             cvt(AQ0 + 2, AK1), cvt(AQ0 + 3, AK1 + 2)])
        XF0, XF1, U22, U23, U32, U33 = fr(('o', 4, 0), R2), fr(('o', 4, 1), R6), fr(('o', 2, 2), R4), fr(('o', 2, 3), R2), fr(('o', 3, 2), R6), fr(('o', 3, 3), R4)
        run([mf(MF32, AQ1, AQ0, AQ0, None), ins(f's_cbranch_scc1 {t}_last'), lambda: a.lines.append(f'{t}_back:'), mf(MF32, AK0, R3, AQ0, None), XF0[1], mf(MF32, AK1, R2, AQ0, None), XF0[0],
             dpp(AQ1, AQ1 + 2, '0xc'), dpp(AQ1 + 1, AQ1 + 3, '0xc')])
        a.ds('ds_write_b64', v(MMW), v(AQ1, 2))
        a.pos += 2
        run([dpp(AK1 + r, AK0 + r, '0xc') for r in range(4)])
        ws_ = a.ds('ds_write_b128', v(LW0), v(AK1, 4), mods=f'offset:{L_SC - B_LW0}')
        run([('v1', 8), lambda: pubm(R8), ('v0', 1), ('v1', 1)])
        a.wait(lds=ws_)
        a.ins('s_barrier')
        st(5)()
        X0, X1, X2, X3, MA, MB_ = AK1, AK0, AQ1, AQ0, R8, R1
        def xrd(i, d):
            rg, b = xr(i)
            return lambda: a.ds('ds_read_b128', v(d, 4), v(rg), mods=f'offset:{L_SC - b}')
        def mmrd(d, o): return lambda: a.ds('ds_read_b128', v(d, 4), v(MMR), mods=f'offset:{L_MM + o - B_LW1}')
        def mulc(d): return val('v_mul_f32', v(d), s(sC1), v(d))
        def fmc(d, x): return val('v_fmac_f32', v(d), s(sC1), v(x))
        BM, BT = AK0 + 2, AQ1
        AC = [AK1, AQ1, AV0, AV1]; ACX = AK0
        WL, LQ, O0, O1 = R0, AQ0, R1, AV1
        ET, EM = AQ0, MA + 2
        CK = AK0
        F = {0: AQ0, 1: R0, 2: R1, 3: R8}
        def zmf(d): return mf(MF16, d, ZZ, ZZ, None)
        def ex(d, x): return val('v_exp_f32', v(d), v(x))
        def pkf(d, x): return val('v_pk_fma_f32', v(d, 2), v(x, 2), s(sC1, 2), v(d, 2))
        BMT = R8 + 2
        mm_ = [val('v_pk_add_f32', v(MA, 2), v(MA, 2), v(MA + 2, 2)), val('v_pk_add_f32', v(MB_, 2), v(MB_, 2), v(MB_ + 2, 2)), val('v_pk_add_f32', v(MA, 2), v(MA, 2), v(MB_, 2)),
               val('v_pk_mul_f32', v(MA, 2), v(MA, 2), s(sC1, 2))]
        run([mmrd(MA, -512), mmrd(MB_, 0), ('v0', 3), xrd(1, X1), xrd(2, X2), ('v1', 3), xrd(3, X3), XF1[0], XF1[1], mulc(X0), mulc(X0 + 1), mulc(X0 + 2), mulc(X0 + 3),
             z2(WL, s(sHALF, 2)), cvt(AV0, AV0), lambda: a._autowait([('v', MB_)], 'mb')] + mm_ + [ex(EM, MA), ex(EM + 1, MA + 1),
             pkf(X0, X1), pkf(X0 + 2, X1 + 2), cvt(BM, EM), cvt(AV0 + 1, AV0 + 2), lambda: a._autowait([('v', X3)], 'x3'), pkf(X0, X2), pkf(X0 + 2, X2 + 2),
             pkf(X0, X3), dpp(BM + 1, BM, '0xf'), pkf(X0 + 2, X3 + 2)])
        st(6)()
        def soft(first):
            x_ = [cvt(AV0 + 2, AV1), cvt(AV0 + 3, AV1 + 2), z2(WL + 2, s(sONE, 2))] if first else [None] * 3
            if not first: run([ex(EM, MA), ex(EM + 1, MA + 1), cvt(BM, EM), dpp(BM + 1, BM, '0xf')])
            run([ex(ET, X0), mf(MF16, O0, AV0, BM, None), ex(ET + 1, X0 + 1), x_[0], ex(ET + 2, X0 + 2), x_[1], cvt(BT, ET), ex(ET + 3, X0 + 3), mf(MF16, O1, AV0 + 2, BM, None), x_[2],
                 cvt(BT + 1, ET + 2), dpp(BT + 2, BT, '0xf'), val('v_max3_f32', v(CK), f'|v{X0}|', f'|v{X0+1}|', f'|v{X0+2}|'), st(7) if first else None,
                 mf(MF32, LQ, WL, BM, None), dpp(BT + 3, BT + 1, '0xf'), val('v_max3_f32', v(CK), v(CK), f'|v{X0+3}|', f'|v{MA}|'), val('v_max_f32_e64', v(CK), v(CK), f'|v{MA+1}|'),
                 mf(MF32, O0, R4, BT, O0), val('v_cmp_nge_f32', 'vcc', s(sNC1), v(CK)),
                 mf(MF32, O1, R5, BT, O1)])
        soft(True)
        a.ins(f's_cbranch_scc1 {t}_stash')
        a.lines.append(f'{t}_back2:')
        vbr(f'{t}_guard')
        a.lines.append(f'{t}_norm:')
        run([val('v_add_f32_dpp', v(LQ), v(LQ), v(LQ), mods='row_ror:8 row_mask:0xf bank_mask:0xf'), val('v_rcp_f32', v(LQ), v(LQ)), zmf(AC[0])]
            + [val('v_mul_f32', v(O0 + r), v(O0 + r), v(LQ)) for r in range(4)]
            + [val('v_mul_f32_dpp', v(O0 + r), v(O1 + r), v(LQ), mods='row_ror:8 row_mask:0xf bank_mask:0xc', rmw=True) for r in range(4)]
            + [cvt(O0, O0), cvt(O0 + 1, O0 + 2), zmf(AC[1])])
        wo = a.ds('ds_write_b64', v(OW), v(O0, 2))
        def guard():
            a.label(f'{t}_guard')
            a.forget(); a.nop(8)
            M1, M2 = BM, BM + 1
            a.valu('v_max3_f32', v(M1), v(X0), v(X0 + 1), v(X0 + 2))
            a.valu('v_max3_f32', v(M2), v(X0 + 3), v(MA), v(MA + 1))
            a.valu('v_max_f32', v(M1), v(M1), v(M2))
            a.valu('v_max_f32_dpp', v(M1), v(M1), v(M1), mods='row_ror:8 row_mask:0xf bank_mask:0xf')
            for sw in ('v_permlane32_swap_b32', 'v_permlane16_swap_b32'):
                a.valu('v_mov_b32', v(M2), v(M1)); a.valu(sw, v(M1), v(M2)); a.valu('v_max_f32', v(M1), v(M1), v(M2))
            for d in (X0, X0 + 1, X0 + 2, X0 + 3, MA, MA + 1): a.valu('v_sub_f32', v(d), v(d), v(M1))
            soft(False)
            a.fence()
            a.ins(f's_branch {t}_norm')
        def E(u, i):
            def f():
                fg = ('o', u, i)
                a.mfma(SMF, v(ACX if u == 4 else AC[u], 4), v(F[2 * i if u == 4 else i], 4), v(where[fg], 8) if fg in LDS_ADDR else freg(fg), v(IDX))
            return f
        OA = [None, OA1, OA2, OA3]
        run([zmf(ACX), lambda: a.ds('ds_read_b128', v(F[0], 4), v(OR0)), zmf(AC[2]), U22[0], zmf(AC[3]), U22[1]])
        a.wait(lds=wo)
        a.ins('s_barrier')
        st(8)()
        def frd(i): return lambda: a.ds('ds_read_b128', v(F[i], 4), v(OA[i]))
        def tag(r): return val('v_and_or_b32', v(r), v(r), -2, s(sTAG))
        def fin(u):
            r = ACX if u == 4 else AC[u]
            so = [sPS0, sPS1, sLO8, sLO8 + 1, sPSX][u]
            return [cvt(r, r), cvt(r + 1, r + 2), tag(r), lambda: a.vmem('buffer_store_dwordx2', v(r, 2), v(PSX if u == 4 else PST), srd, s(so), mods='offen ' + fl, load=False)]
        P0 = [R4, R5, R6, R7]
        def shot(P):
            for i in range(4):
                a.vmem('buffer_load_dwordx4', v(P[i], 4), v(L16), srd, s(sPL), mods=f'offen offset:{1024 * i} ' + lfl)
            a.nowait(v(P[0], 16))
        def shot0():
            if not self.ins0: return
            if self.dE: a.nop(self.dE)
            a.ins(f's_cbranch_scc1 {t}_ns0')
            p = a.pos
            for r in P0: a.valu('v_not_b32', v(r), s(sTAG))
            shot(P0)
            a.pos = p
            a.lines.append(f'{t}_ns0:')
        f0, f1, f2, f3, fx = [fin(u) for u in range(5)]
        def aw(*regs): return lambda: a._autowait([('v', r) for r in regs], 'aw')
        if self.eo == 2:
          run([frd(1), frd(2), frd(3), E(0, 0), E(1, 0), E(4, 0), U23[0],
             aw(F[2]), E(0, 1), U23[1], E(0, 2), E(0, 3), E(1, 1), E(1, 2), f0[0], E(1, 3), f0[2], f0[1], E(4, 1), f0[3], U32[0], E(2, 2), U32[1], f1[0], f1[2], f1[1], E(2, 0), f1[3], st(9), U33[0],
             E(2, 1), U33[1], fx[0], E(2, 3), fx[2], fx[1], E(3, 0), fx[3], E(3, 1), f2[0], aw(R4 + 4), E(3, 2), f2[2], f2[1], E(3, 3), f2[3], sal('s_cmp_lg_u32', s(sW), 2, nodst=True), f3[0], f3[2], f3[1], f3[3]])
        else:
          run([frd(1), frd(2), frd(3), E(0, 0), E(1, 0), E(4, 0), U23[0], E(2, 0), U23[1],
             aw(F[2]), E(0, 1), E(4, 1), U32[0], E(0, 2), U32[1], E(0, 3), fx[0], E(2, 2), U33[0], fx[2], E(1, 1), U33[1], fx[1], E(1, 2), fx[3], f0[0], E(1, 3), f0[2], E(2, 1), f0[1],
             E(2, 3), f0[3], f1[0], aw(R4 + 4), E(3, 0), f1[2], E(3, 1), f1[1], E(3, 2), f1[3], st(9), f2[0], E(3, 3), f2[2], f2[1], f2[3], sal('s_cmp_lg_u32', s(sW), 2, nodst=True), f3[0], f3[2], f3[1], f3[3]])
        st(10)()
        P = [AQ0, AK0, AQ1, AK1]; RD, XT, NEG, SELR = R1, AV1, AV1 + 1, R8
        def finish():
            a.fence()
            a.ins(f's_branch {t}_loop')
        def publish():
            a.valu('v_cvt_pk_bf16_f32', v(RD), v(RD), v(RD + 2))
            a.salu('s_mov_b64', 'exec', s(sSTM, 2))
            a.vmem('buffer_store_dword', v(RD), v(MST), srd, s(sMST), mods='offen ' + fl, load=False)
            st(11)()
        def reset():
            a.vmem('buffer_store_dword', v(NEG), v(MST), srd, s(sMRS), mods='offen ' + fl, load=False)
            a.salu('s_mov_b64', 'exec', -1)
        def idle(pre=True):
            a.ds('ds_read_b128', v(SELR, 4), v(L16), mods=f'offset:{L_SEL - B_LW1}')
            if pre: prefetch_top()
            a.salu('s_add_u32', s(sSTEP), s(sSTEP), 1); a.salu('s_mov_b32', s(sMEM), s(sT1))
            a.salu('s_add_u32', s(sKX), s(sKX), 32 * 16384); a.salu('s_add_u32', s(sPF), s(sPF), 32 * 16384); a.salu('s_min_u32', s(sPF), s(sPF), s(sAL))
            offsets(); a.valu('v_mov_b32', v(NEG), -1)
            a.salu('s_add_u32', s(sFV), s(sFV), 24 * 512)
            a.salu('s_mov_b32', s(sT0), 1)
            if self.dA: z2(R0, -1)()
        def reduce(lab, k, P, y=0):
            a.label(f'{t}_chk{lab}')
            a.valu('v_mov_b32', v(XT), 0)
            for i in range(4):
                a.ins(f's_waitcnt vmcnt({4 * k - 1 - i + y})')
                chk = [val('v_bitop3_b32', v(XT), v(XT), v(r), s(sTAG), mods='bitop3:0xf6') for r in (P[i], P[i] + 2)]
                if k > 1: run(chk)
                a.mfma(MF32, v(RD, 4), v(P[i], 4), v(SELR, 4), 0 if i == 0 else v(RD, 4))
                if k == 1: run(chk)
            a.valu('v_and_b32', v(XT), s(sT0), v(XT))
            a.valu('v_cmp_ne_u32', 'vcc', 0, v(XT))
            a.ins(f's_cbranch_vccnz {t}_spin{lab}')
            a.pos += 4
            a.valu('v_permlane32_swap_b32', v(RD), v(RD + 2)); a.valu('v_permlane32_swap_b32', v(RD + 1), v(RD + 3))
            a.valu('v_add_f32', v(RD), v(RD), v(RD + 2)); a.valu('v_add_f32', v(RD + 2), v(RD + 1), v(RD + 3))
        def retry(lab, P):
            a.label(f'{t}_spin{lab}')
            a.forget()
            shot(P)
            a.salu('s_sub_u32', s(sSPIN), s(sSPIN), 1)
            a.salu('s_cmp_lt_i32', s(sSPIN), 0, nodst=True)
            a.salu('s_cselect_b32', s(sT0), 0, 1)
            if lab == 'G' and self.dA: poll0()
            a.ins(f's_branch {t}_chk{lab}')
        a.ins(f's_cbranch_scc1 {t}_w013')
        a.fence()
        if self.d0: a.nop(self.d0)
        shot(P0)
        idle(False); zero(0, 16)
        if self.k0 > 1: a.nop(self.pF); shot(P0)
        reduce('F', self.k0, P0); publish(); reset()
        if self.k0 == 1: prefetch_top()
        a.nop(self.dB); poll0()
        if self.k0 > 1: a.ins('s_waitcnt vmcnt(1)'); prefetch_top()
        a.fence()
        a.ins(f's_branch {t}_loop2')
        a.label(f'{t}_w013')
        a.forget()
        idle()
        a.salu('s_cmp_eq_u32', s(sROLE), 0, nodst=True)
        a.ins(f's_cbranch_scc1 {t}_w0')
        a.salu('s_cmp_eq_u32', s(sW), 1, nodst=True)
        if self.dX: a.nop(self.dX)
        a.ins(f's_cbranch_scc1 {t}_sx')
        a.nop(self.d1 - self.dX)
        a.lines.append(f'{t}_sx:')
        shot(P)
        if self.k1 > 1: a.nop(self.pG); shot(P)
        if self.dA: a.nop(self.dA); poll0()
        reduce('G', self.k1, P, 1 if self.dA else 0)
        a.salu('s_cmp_eq_u32', s(sW), 3, nodst=True)
        a.ins(f's_cbranch_scc1 {t}_w3')
        a.valu('v_mov_b32', v(RD + 1), v(RD)); a.valu('v_mov_b32', v(RD + 3), v(RD + 2))
        a.valu('v_permlane16_swap_b32', v(RD), v(RD + 1)); a.valu('v_permlane16_swap_b32', v(RD + 2), v(RD + 3))
        a.valu('v_add_f32', v(RD), v(RD), v(RD + 1)); a.valu('v_add_f32', v(RD + 2), v(RD + 2), v(RD + 3))
        a.label(f'{t}_w3')
        if self.k1 > 1: a.ins('s_cbranch_execz .+4') if 0 else None
        publish(); reset()
        poll0()
        if self.dA:
            zero(0, 16); top(); a.ins('s_waitcnt vmcnt(3) lgkmcnt(0)'); a.fence(); a.ins(f's_branch {t}_chk0b')
        else: finish()
        a.label(f'{t}_w0')
        a.forget()
        zero(0, 16)
        if self.w0hook: self.w0hook(a)
        a.nop(self.dZ); poll0()
        a.ins(f's_branch {t}_loop2')
        retry('F', P0); retry('G', P)
        guard()
        a.label(f'{t}_stash')
        a.forget()
        pubv(AV0)
        a.salu('s_add_u32', s(sVM), s(sVM), 32 * 4096)
        a.nop(2)
        a.ins(f's_branch {t}_back2')
        a.label(f'{t}_spin0')
        a.forget()
        poll0()
        a.salu('s_sub_u32', s(sSPIN), s(sSPIN), 1)
        a.salu('s_cmp_lt_i32', s(sSPIN), 0, nodst=True)
        a.ins(f's_cbranch_scc0 {t}_chk0')
        a.ins('s_waitcnt vmcnt(0)')
        for r in range(4): a.valu('v_min_u32', v(R0 + r), -2, v(R0 + r))
        a.ins(f's_branch {t}_chk0')
        a.label(f'{t}_spin1')
        a.forget()
        poll1()
        a.salu('s_sub_u32', s(sSPIN), s(sSPIN), 1)
        a.salu('s_cmp_lt_i32', s(sSPIN), 0, nodst=True)
        a.ins('s_waitcnt vmcnt(0)')
        run(c1 + [w1a, w1b, ins('s_waitcnt lgkmcnt(0)')])
        a.ins(f's_cbranch_scc1 {t}_go1')
        a.ins(f's_cbranch_vccnz {t}_spin1')
        a.ins(f's_branch {t}_go1')
        a.label(f'{t}_last')
        a.forget(); a.nop(2)
        a.salu('s_cmp_eq_u32', s(sSTEP), self.nsteps - 1, nodst=True)
        a.ins(f's_cbranch_scc1 {t}_last2')
        pubk(AQ0)
        a.salu('s_add_u32', s(sKM), s(sKM), 32 * 4096)
        a.salu('s_cmp_eq_u32', 0, 0, nodst=True)
        a.ins(f's_branch {t}_back')
        a.label(f'{t}_last2')
        M.update({8: R0, 1: R6, 3: R7})
        a.ins('s_waitcnt lgkmcnt(0)')
        run([lambda: pubk(AQ0), sal('s_add_u32', s(sT0), s(sNONCE), self.nsteps), val('v_mov_b32', v(R2), s(sT0)), ('v1', 8)] + [(o, sl) for sl in (1, 3) for o in ('v0', 'v1')]
            + [cvt(AV0, AV0), cvt(AV0 + 1, AV0 + 2), cvt(AV0 + 2, AV1), cvt(AV0 + 3, AV1 + 2), lambda: pubv(AV0)])
        a.ins('s_waitcnt vmcnt(0)')
        flag(R2)
```

```python
import sys
sys.path.insert(0, 'gen2')
from asmfw import Asm
import chain2 as C, qkv2 as Q, attn2 as A, ssm as S
from chain2 import s, v
from build_ct import kd
NAME = 'concat_heads__memory_aug_recurrent_mem_tr__ssm_conv_s4d__prompt'
def start(a, name):
    a.raw(f'.text\n.globl {name}\n.p2align 8\n.type {name},@function\n{name}:')
def ws_srd(a, p):
    a.salu('s_mov_b32', 's4', s(p)); a.salu('s_mov_b32', 's5', s(p + 1))
    a.salu('s_mov_b32', 's6', C.WS_SIZE); a.salu('s_mov_b32', 's7', '0x20000')

sNONCE = C.sNONCE
DBG = 96
SY_ATT = C.WS_SYNC + 65536
D_NONCE, D_HELP, D_CH, D_ARR, D_SSM, D_T2, D_ATT, D_WF, D_OP = 144, 4, 128, 132, 8, 12, 16, 20, 136
D_XF2 = 24
D_MODE, D_CH2, D_ARR2, D_GO2 = 140, 208, 212, 216
XCC = [0]
NWARM = [5]
XD = [0]
OPS = [4]
DV = [70]
HDELAY = [0]
TMO = [1 << 17]
KVR = 2
D_POOL = 32
NCH = [32]
FX = [0]
BOFF = [24]
ATS = [3]
MSL = [4]

DIAG = [0]
IFL = ['']
def diag(a, idx, val=None):
    if not DIAG[0]: return
    a.fence()
    a.ins('s_memrealtime s[90:91]'); a.ins('s_waitcnt lgkmcnt(0)')
    if val is not None: a.salu('s_mov_b32', 's90', val)
    a.salu('s_mov_b64', 's[100:101]', 'exec'); a.salu('s_mov_b64', 'exec', 1)
    a.valu('v_mov_b32', v(DV[0]), 's90')
    a.salu('s_lshl_b32', 's91', 's2', 8); a.salu('s_add_u32', 's91', 's91', 203 << 20)
    a.vmem('buffer_store_dword', v(DV[0]), 'off', 's[4:7]', 's91', mods=f'offset:{4 * idx}', load=False)
    a.salu('s_mov_b64', 'exec', 's[100:101]')
    a.nop(2)

def dsel(a, idx):
    if not DIAG[0]: return
    L = f'ds{len(a.lines)}'
    a.salu('s_cmp_ge_u32', 's36', 192, nodst=True)
    a.ins(f's_cbranch_scc1 {L}')
    diag(a, idx)
    a.ins(f's_branch {L}x')
    a.label(L)
    diag(a, idx + 5)
    a.label(L + 'x')

def trace(a, base, sidx, k):
    if not DIAG[0]: return
    a.fence()
    a.ins('s_memrealtime s[90:91]'); a.ins('s_waitcnt lgkmcnt(0)')
    a.salu('s_lshl_b32', 's92', s(sidx), 4); a.salu('s_add_u32', 's92', 's92', (201 << 20) + base + 4 * k)
    a.valu('v_mov_b32', 'v249', 's90')
    a.salu('s_mov_b64', 'exec', 1)
    a.vmem('buffer_store_dword', 'v249', 'off', 's[4:7]', 's92', load=False)
    a.salu('s_mov_b64', 'exec', -1)
    a.nop(2)

_tk = [0]
def get_nonce(a, vd):
    _tk[0] += 1
    L = f'gn{_tk[0]}'
    a.fence()
    a.salu('s_mov_b32', 's88', 1 << 22)
    a.label(L)
    a.salu('s_cmp_lg_u32', s(sNONCE), 0, nodst=True)
    a.ins(f's_cbranch_scc1 {L}x')
    a.vmem('buffer_load_dword', v(vd), 'off', s(DBG, 4), 0, mods=f'offset:{D_NONCE} sc1')
    a.salu('s_sub_u32', 's88', 's88', 1)
    a.ins(f's_cbranch_scc1 {L}x')
    a.ins('s_waitcnt vmcnt(0)')
    a.valu('v_readfirstlane_b32', s(sNONCE), v(vd))
    a.nop(2)
    a.ins(f's_branch {L}')
    a.label(f'{L}x')

def ticket(a, dst, off, vb=250, mid=None):
    _tk[0] += 1
    L = f'tk{_tk[0]}'
    a.fence()
    a.salu('s_mov_b32', 's37', off)
    a.valu('v_mov_b32', v(vb), 1)
    a.valu('v_mov_b32', v(vb + 1), 163832)
    a.valu('v_cmp_eq_u32', 'vcc', 0, 'v0')
    a.salu('s_and_saveexec_b64', 's[38:39]', 'vcc')
    a.ins(f's_cbranch_execz {L}' + ('m' if mid else ''))
    a.vmem('buffer_atomic_add', v(vb), 'off', s(DBG, 4), 's37', mods='sc0')
    if mid:
        a.label(L + 'm')
        a.salu('s_mov_b64', 's[38:39]', 'exec')
        a.salu('s_mov_b64', 'exec', -1)
        mid()
        a.salu('s_mov_b64', 'exec', 's[38:39]')
        a.ins(f's_cbranch_execz {L}')
    a.wait(vm='all')
    a.ds('ds_write_b32', v(vb + 1), v(vb))
    a.wait(lds='all')
    a.label(L)
    a.salu('s_mov_b64', 'exec', -1)
    a.ins('s_barrier')
    a.ds('ds_read_b32', v(vb + 2), v(vb + 1))
    a.wait(lds='all')
    a.valu('v_readfirstlane_b32', s(dst), v(vb + 2))
    a.ins('s_barrier')
    a.nop(4)

def flag_store(a, soff):
    _tk[0] += 1
    a.ins('s_waitcnt vmcnt(0)')
    a.ins('s_barrier')
    a.valu('v_mov_b32', 'v250', s(sNONCE))
    a.valu('v_cmp_eq_u32', 'vcc', 0, 'v0')
    a.salu('s_and_saveexec_b64', 's[38:39]', 'vcc')
    a.ins(f's_cbranch_execz fs{_tk[0]}')
    a.vmem('buffer_store_dword', 'v250', 'off', 's[4:7]', soff, mods='sc1', load=False)
    a.label(f'fs{_tk[0]}')
    a.salu('s_mov_b64', 'exec', -1)

def flags_wait(a, soff, lo, hi, va, vd, sleep=2):
    _tk[0] += 1
    L = f'fw{_tk[0]}'
    a.fence()
    a.valu('v_mbcnt_lo_u32_b32', v(va), -1, 0)
    a.valu('v_mbcnt_hi_u32_b32', v(va), -1, v(va))
    a.valu('v_min_u32', v(va), hi - lo - 1, v(va))
    a.valu('v_lshlrev_b32', v(va), 2, v(va))
    a.salu('s_mov_b32', 's88', 1 << 22)
    a.label(L)
    a.vmem('buffer_load_dword', v(vd), v(va), 's[4:7]', soff, mods=f'offen offset:{4 * lo} sc1')
    a.salu('s_sub_u32', 's88', 's88', 1)
    a.ins(f's_cbranch_scc1 {L}x')
    a.ins('s_waitcnt vmcnt(0)')
    a.valu('v_cmp_ne_u32', 'vcc', s(sNONCE), v(vd))
    a.ins(f's_cbranch_vccz {L}x')
    a.ins(f's_sleep {sleep}')
    a.salu('s_cmp_gt_u32', 's88', (1 << 22) - BOFF[0], nodst=True)
    a.ins(f's_cbranch_scc1 {L}')
    a.ins('s_sleep 40')
    a.ins(f's_branch {L}')
    a.label(f'{L}x')

def coarse_wait(a, sseg, vd, shp):
    _tk[0] += 1
    L = f'cw{_tk[0]}'
    a.fence()
    a.salu('s_mov_b32', 's88', 1 << 16)
    a.label(L)
    a.vmem('buffer_load_dword', v(vd), 'off', 's[4:7]', s(shp), mods='offset:128 sc1')
    a.ins('s_waitcnt vmcnt(0)')
    a.valu('v_readfirstlane_b32', 's42', v(vd))
    a.salu('s_sub_u32', 's42', 's42', s(sNONCE))
    a.salu('s_cmp_gt_u32', 's42', 64, nodst=True)
    a.salu('s_cselect_b32', 's42', 0, 's42')
    a.salu('s_add_u32', 's42', 's42', 2)
    a.salu('s_cmp_ge_u32', 's42', s(sseg), nodst=True)
    a.ins(f's_cbranch_scc1 {L}x')
    a.salu('s_sub_u32', 's88', 's88', 1)
    a.ins(f's_cbranch_scc1 {L}x')
    a.salu('s_sub_u32', 's42', s(sseg), 's42')
    a.salu('s_min_u32', 's42', 's42', 6)
    a.label(f'{L}s')
    a.ins('s_sleep 24')
    a.salu('s_sub_u32', 's42', 's42', 1)
    a.salu('s_cmp_lg_u32', 's42', 0, nodst=True)
    a.ins(f's_cbranch_scc1 {L}s')
    a.ins(f's_branch {L}')
    a.label(f'{L}x')

def prog_wait(a, lab, va, vd, vneed, sbase, sleep, scnt='s40'):
    a.salu('s_mov_b32', scnt, 1 << 22)
    a.label(lab)
    a.vmem('buffer_load_dword', v(vd), v(va), 's[4:7]', sbase, mods='offen sc1')
    a.salu('s_sub_u32', scnt, scnt, 1)
    a.ins(f's_cbranch_scc1 {lab}_go')
    a.ins('s_waitcnt vmcnt(0)')
    a.valu('v_subrev_u32', v(vd), vneed, v(vd))
    a.valu('v_cmp_lt_u32', 'vcc', 64, v(vd))
    a.ins(f's_cbranch_vccz {lab}_go')
    a.ins(f's_sleep {sleep}')
    a.ins(f's_branch {lab}')
    a.label(f'{lab}_go')

def k_main(a, hd=0, hg=0, **kw):
    n = NAME + '_kernel'
    DV[0] = 59
    start(a, n)
    a.salu('s_cmp_ge_u32', 's2', 256, nodst=True)
    a.ins('s_cbranch_scc1 L_exit')
    a.ins('s_load_dwordx4 s[84:87], s[0:1], 120')
    a.ins('s_load_dwordx16 s[48:63], s[0:1], 0')
    a.valu('v_lshrrev_b32', 'v1', 6, 'v0')
    a.valu('v_readfirstlane_b32', 's32', 'v1')
    a.ins('s_getreg_b32 s3, hwreg(HW_REG_XCC_ID)')
    a.salu('s_and_b32', 's3', 's3', 15)
    a.salu('s_cmp_lg_u32', 's32', 3, nodst=True)
    a.ins('s_cbranch_scc1 L_nowarm')
    a.ins('s_getpc_b64 s[44:45]')
    a.label('L_pcw')
    a.valu('v_and_b32', 'v1', 63, 'v0')
    a.valu('v_lshlrev_b32', 'v1', 7, 'v1')
    a.salu('s_cmp_lg_u32', 's3', XCC[0], nodst=True)
    a.salu('s_cselect_b32', 's33', 'L_helper-L_pcw', 0)
    a.valu('v_add_u32', 'v1', 's33', 'v1')
    for i in range(NWARM[0]):
        if i == 2: a.ins('s_cbranch_scc0 L_nowarm')
        a.valu('v_min_u32', 'v2', 'L_exit-L_pcw', 'v1')
        a.vmem('global_load_dword', v(240 + i), 'v2', 's[44:45]')
        a.valu('v_add_u32', 'v1', 8192, 'v1')
    a.label('L_nowarm')
    a.forget()
    a.ins('s_waitcnt lgkmcnt(0)')
    ws_srd(a, 86)
    a.salu('s_mov_b32', s(DBG), 's84'); a.salu('s_mov_b32', s(DBG + 1), 's85')
    a.salu('s_mov_b32', s(DBG + 2), 256); a.salu('s_mov_b32', s(DBG + 3), '0x20000')
    a.salu('s_mov_b32', s(sNONCE), 0)
    diag(a, 0)
    a.salu('s_cmp_lg_u32', 's3', XCC[0], nodst=True)
    a.ins('s_cbranch_scc1 L_helper')
    lanes = C.Chain(a, 'x', gs=kw.get('gs', 2))
    ticket(a, C.sH, D_CH, mid=lanes.load_lanes)
    a.salu('s_cmp_ge_u32', s(C.sH), NCH[0], nodst=True)
    a.ins('s_cbranch_scc1 L_helper')
    a.label('L_chain')
    diag(a, 14)
    diag(a, 15, s(C.sH))
    if DIAG[0]:
        a.ins('s_getreg_b32 s89, hwreg(HW_REG_HW_ID)'); diag(a, 12, 's89')
    def kvaddr(a, va, sb):
        a.salu('s_lshr_b32', s(sb), s(C.sH), 1); a.salu('s_lshl_b32', s(sb), s(sb), 8); a.salu('s_add_u32', s(sb), s(sb), Q.SY_PRG)
        a.valu('v_bfe_u32', v(va), v(C.LH), 4, 6); a.valu('v_min_u32', v(va), 11, v(va)); a.valu('v_lshlrev_b32', v(va), 2, v(va))
    def kvwait(a, lab, need, va, vd):
        kvaddr(a, va, 92)
        a.salu('s_add_u32', 's93', s(sNONCE), need)
        prog_wait(a, lab, va, vd, 's93', 's92', 2, scnt='s94')
    def hook(a):
        if not DIAG[0]: return
        a.salu('s_lshl_b32', 's88', s(C.sH), 2); a.salu('s_add_u32', 's88', 's88', s(C.sW))
        a.salu('s_cmp_lg_u32', 's88', 0, nodst=True)
        a.ins('s_cbranch_scc1 L_nohook')
        a.ins('s_memrealtime s[90:91]'); a.ins('s_memtime s[72:73]'); a.ins('s_waitcnt lgkmcnt(0)')
        a.valu('v_mov_b32', v(C.Rq[1]), 's90'); a.valu('v_mov_b32', v(C.Rq[1] + 1), 's72')
        a.salu('s_lshl_b32', 's88', s(C.sSTEP), 3); a.salu('s_add_u32', 's88', 's88', 200 << 20)
        a.vmem('buffer_store_dwordx2', v(C.Rq[1], 2), 'off', 's[4:7]', 's88', load=False)
        a.label('L_nohook')
        a.fence()
    def chain_body(tag, safe):
        for i in range(5): a.salu('s_mov_b64', s(C.sPTR + 2 * i, 2), s(C.sPTR + 2 * i + 2, 2))
        def w0hook(a):
            if not safe: hook(a)
            a.salu('s_cmp_lg_u32', s(C.sSTEP), 6 * KVR - 2, nodst=True)
            a.ins(f's_cbranch_scc1 {tag}_nokv')
            kvwait(a, f'{tag}_kv1', Q.DONE, C.Rq[1], C.Rq[1] + 1)
            a.label(f'{tag}_nokv')
        if safe: ch = C.Chain(a, tag, fl='sc1', lfl='sc1', xoff=C.XOFF, d0=200, d1=200, dB=100, dZ=400, ks=1, w0hook=w0hook, spinmax=1 << 20)
        else: ch = C.Chain(a, tag, ptrace=(lambda a, j: diag(a, 16 + j)), w0hook=w0hook, spinmax=1 << 20, **kw)
        if safe: ch.load_lanes()
        arr, mode = (D_ARR2, D_GO2) if safe else (D_ARR, D_MODE)
        def st1(a):
            a.valu('v_mov_b32', 'v46', 1)
            a.salu('s_mov_b64', 'exec', 1)
            a.vmem('buffer_atomic_add', 'v46', 'off', s(DBG, 4), 0, mods=f'offset:{arr} sc0')
            a.salu('s_mov_b64', 'exec', -1)
        def st2(a):
            a.valu('v_readfirstlane_b32', 's41', 'v46')
            a.valu('v_mov_b32', 'v36', 1); a.valu('v_mov_b32', 'v37', 0)
            a.salu('s_cmp_eq_u32', 's41', 127, nodst=True)
            a.salu('s_cselect_b64', 'exec', 1, 0)
            a.vmem('buffer_atomic_cmpswap', 'v[36:37]', 'off', s(DBG, 4), 0, mods=f'offset:{mode}', load=False)
            a.salu('s_mov_b64', 'exec', -1)
        def st3(a):
            a.vmem('buffer_load_dword', 'v38', 'off', s(DBG, 4), 0, mods=f'offset:{mode} sc1')
            a.vmem('buffer_load_dword', 'v39', 'off', s(DBG, 4), 0, mods=f'offset:{D_NONCE} sc1')
            kvaddr(a, 40, 84)
            a.vmem('buffer_load_dword', 'v41', 'v40', 's[4:7]', 's84', mods='offen sc1')
        def late(a):
            a.valu('v_readfirstlane_b32', s(sNONCE), 'v39')
            a.valu('v_readfirstlane_b32', 's85', 'v38')
            get_nonce(a, 24)
            a.salu('s_add_u32', 's93', s(sNONCE), KVR)
            a.valu('v_subrev_u32', 'v41', 's93', 'v41')
            a.valu('v_cmp_lt_u32', 's[86:87]', 64, 'v41')
        ch.prologue(st1, st2, st3, late)
        diag(a, 2)
        a.salu('s_cmp_eq_u32', 's85', 1, nodst=True)
        a.ins(f's_cbranch_scc1 {tag}_run')
        a.salu('s_mov_b32', 's40', (1 << 24) if safe else TMO[0])
        a.label(f'{tag}_startpoll')
        a.vmem('buffer_load_dword', 'v3', 'off', s(DBG, 4), 0, mods=f'offset:{mode} sc1')
        a.wait(vm='all')
        a.valu('v_readfirstlane_b32', 's85', 'v3')
        a.salu('s_cmp_eq_u32', 's85', 1, nodst=True)
        a.ins(f's_cbranch_scc1 {tag}_run')
        if not safe:
            a.salu('s_cmp_eq_u32', 's85', 2, nodst=True)
            a.ins(f's_cbranch_scc1 {tag}_leave')
        a.ins('s_sleep 1')
        a.salu('s_sub_u32', 's40', 's40', 1)
        a.ins(f's_cbranch_scc0 {tag}_startpoll')
        if safe: a.ins('s_endpgm')
        else:
            a.valu('v_mov_b32', 'v4', 2); a.valu('v_mov_b32', 'v5', 0)
            a.salu('s_mov_b64', 'exec', 1)
            a.vmem('buffer_atomic_cmpswap', 'v[4:5]', 'off', s(DBG, 4), 0, mods=f'offset:{D_MODE}', load=False)
            a.salu('s_mov_b64', 'exec', -1)
            a.salu('s_mov_b32', 's40', 1 << 20)
            a.ins(f's_branch {tag}_startpoll')
            a.label(f'{tag}_leave')
            a.valu('v_lshrrev_b32', 'v0', 4, v(C.LH))
            a.salu('s_mov_b32', 's32', s(C.sW))
            a.ins('s_load_dwordx16 s[48:63], s[0:1], 0')
            a.ins('s_waitcnt lgkmcnt(0)')
            a.ins('s_branch L_helper')
        a.label(f'{tag}_run')
        diag(a, 3)
        a.salu('s_cmp_eq_u64', 's[86:87]', 0, nodst=True)
        a.ins(f's_cbranch_scc1 {tag}_kv0_go')
        kvwait(a, f'{tag}_kv0', KVR, 2, 3)
        ch.loop_init()
        diag(a, 4)
        if not safe and DIAG[0]: print(ch.outs, [(j[1], j[3] // 1024) for j in ch.sched])
        ch.step()
        diag(a, 5)
        a.ins('s_endpgm')
        ch.load_sub()
    chain_body('cf', False)
    a.label('L_chain_safe')
    a.forget()
    chain_body('cs', True)
    def mode_check(lab):
        a.salu('s_mov_b32', 's40', 4 * TMO[0])
        a.label(f'{lab}_w')
        a.vmem('buffer_load_dword', 'v250', 'off', s(DBG, 4), 0, mods=f'offset:{D_MODE} sc1')
        a.wait(vm='all')
        a.valu('v_readfirstlane_b32', 's41', 'v250')
        a.salu('s_cmp_lg_u32', 's41', 0, nodst=True)
        a.ins(f's_cbranch_scc1 {lab}_known')
        a.salu('s_sub_u32', 's40', 's40', 1)
        a.ins(f's_cbranch_scc1 {lab}_force')
        a.ins('s_sleep 2')
        a.ins(f's_branch {lab}_w')
        a.label(f'{lab}_force')
        a.valu('v_mov_b32', 'v250', 2); a.valu('v_mov_b32', 'v251', 0)
        a.salu('s_mov_b64', 'exec', 1)
        a.vmem('buffer_atomic_cmpswap', 'v[250:251]', 'off', s(DBG, 4), 0, mods=f'offset:{D_MODE}', load=False)
        a.salu('s_mov_b64', 'exec', -1)
        a.ins('s_waitcnt vmcnt(0)')
        a.salu('s_mov_b32', 's40', 4 * TMO[0])
        a.ins(f's_branch {lab}_w')
        a.label(f'{lab}_known')
    a.forget()
    a.label('L_helper')
    DV[0] = 249
    a.forget()
    a.ins('s_load_dwordx16 s[64:79], s[0:1], 64')
    a.salu('s_sub_u32', 's33', 's3', XCC[0] + 1); a.salu('s_and_b32', 's33', 's33', 3 if FX[0] else 7)
    a.label('L_pool')
    a.salu('s_lshl_b32', 's35', 's33', 2); a.salu('s_add_u32', 's35', 's35', D_POOL)
    ticket(a, 34, 's35')
    a.salu('s_mul_i32', 's36', 's33', 30); a.salu('s_add_u32', 's36', 's36', 's34')
    a.salu('s_or_b32', 's33', 's34', 's32')
    a.salu('s_cmp_lg_u32', 's33', 0, nodst=True)
    a.ins('s_cbranch_scc1 L_helper1')
    a.ins('s_memrealtime s[90:91]'); a.ins('s_waitcnt lgkmcnt(0)')
    a.salu('s_lshl_b32', 's90', 's90', 8); a.salu('s_or_b32', 's90', 's90', 1)
    a.valu('v_mov_b32', 'v250', 's90'); a.valu('v_mov_b32', 'v251', 0)
    a.salu('s_mov_b64', 'exec', 1)
    a.vmem('buffer_atomic_cmpswap', 'v[250:251]', 'off', s(DBG, 4), 0, mods=f'offset:{D_NONCE}', load=False)
    a.salu('s_mov_b64', 'exec', -1)
    a.label('L_helper1')
    if hd:
        a.salu('s_mul_i32', 's37', 's36', 171); a.salu('s_lshr_b32', 's37', 's37', 10); a.salu('s_mul_i32', 's37', 's37', 6); a.salu('s_sub_u32', 's37', 's36', 's37')
        a.salu('s_cmp_lt_u32', 's37', hg, nodst=True); a.ins('s_cbranch_scc1 L_nhd')
        for i in range(hd): a.ins('s_sleep 127')
        a.label('L_nhd')
    diag(a, 9)
    a.salu('s_cmp_ge_u32', 's34', 30, nodst=True)
    a.ins('s_cbranch_scc1 L_qkv_next')
    a.salu('s_cmp_ge_u32', 's36', 192, nodst=True)
    a.ins('s_cbranch_scc1 L_qkv_next')
    a.salu('s_mul_i32', 's37', 's36', 171); a.salu('s_lshr_b32', 's37', 's37', 10)
    a.salu('s_mul_i32', 's38', 's37', 6); a.salu('s_sub_u32', 's36', 's36', 's38')
    a.salu('s_lshl_b32', 's36', 's36', 5); a.salu('s_add_u32', 's36', 's36', 's37')
    a.ins('s_branch L_job')
    a.label('L_qkv_next')
    ticket(a, 36, D_HELP)
    a.salu('s_add_u32', 's36', 's36', 192)
    a.salu('s_cmp_ge_u32', 's36', 320, nodst=True)
    a.ins('s_cbranch_scc1 L_ssm_next')
    a.label('L_job')
    a.salu('s_and_b32', s(Q.sHh), 's36', 15); a.salu('s_lshl_b32', s(Q.sHh), s(Q.sHh), 1)
    a.salu('s_bfe_u32', s(Q.sM), 's36', '0x10004')
    a.salu('s_lshr_b32', s(Q.sSEG), 's36', 5)
    a.salu('s_mul_i32', 's33', s(Q.sM), 6); a.salu('s_add_u32', 's33', 's33', s(Q.sSEG))
    a.salu('s_add_u32', s(Q.sM), s(Q.sM), 1)
    a.salu('s_lshr_b32', 's37', 's36', 4); a.salu('s_sub_u32', 's38', 's37', 12)
    a.salu('s_cmp_ge_u32', 's36', 192, nodst=True)
    a.salu('s_cselect_b32', s(Q.sM), 0, s(Q.sM))
    a.salu('s_cselect_b32', s(Q.sSEG), 's38', s(Q.sSEG))
    a.salu('s_cselect_b32', 's33', 's37', 's33')
    a.salu('s_cselect_b32', s(Q.sSTR), 8, 6)
    Q.qkv_role(a, 'qk', 48, 52, sNONCE, 33, late=lambda a: (get_nonce(a, 25), dsel(a, 8)))
    dsel(a, 6)
    a.salu('s_cmp_ge_u32', 's36', 64, nodst=True)
    a.ins('s_cbranch_scc1 L_qkv_next')
    a.salu('s_lshr_b32', 's33', 's36', 5)
    Q.memkv_role(a, 'mk', sNONCE, 33, slp=MSL[0])
    diag(a, 1)
    a.ins('s_endpgm')
    a.label('L_ssm_next')
    ticket(a, S.sD0, D_SSM)
    a.salu('s_cmp_ge_u32', s(S.sD0), 144, nodst=True)
    a.ins('s_cbranch_scc1 L_phase2')
    a.salu('s_lshl_b32', s(S.sD0), s(S.sD0), 2)
    a.forget()
    S.ssm_job(a, 'ss', 62, 76)
    diag(a, 7)
    a.ins('s_branch L_ssm_next')
    sWv, sCB = 32, 33
    a.label('L_phase2')
    a.forget()
    a.valu('v_and_b32', 'v1', 63, 'v0'); a.valu('v_min_u32', 'v1', 6, 'v1'); a.valu('v_lshlrev_b32', 'v2', 2, 'v1')
    a.vmem('buffer_load_dword', 'v3', 'v2', s(DBG, 4), 0, mods=f'offen offset:{D_POOL} sc1')
    a.valu('v_mov_b32', 'v4', 30); a.valu('v_cmp_eq_u32', 'vcc', 6, 'v1'); a.valu('v_cndmask_b32', 'v4', 'v4', 12, 'vcc', mods='')
    a.wait(vm='all')
    a.valu('v_cmp_lt_u32', 'vcc', 'v3', 'v4')
    a.salu('s_ff1_i32_b64', 's40', 'vcc')
    a.valu('v_mov_b32', 'v250', 's40'); a.valu('v_mov_b32', 'v251', 163832)
    a.salu('s_cmp_lg_u32', 's32', 0, nodst=True)
    a.ins('s_cbranch_scc1 L_sw_nw')
    a.ds('ds_write_b32', 'v251', 'v250')
    a.wait(lds='all')
    a.label('L_sw_nw')
    a.ins('s_barrier')
    a.ds('ds_read_b32', 'v252', 'v251')
    a.wait(lds='all')
    a.valu('v_readfirstlane_b32', 's33', 'v252')
    a.ins('s_barrier')
    a.nop(2)
    a.salu('s_cmp_lt_u32', 's33', 7, nodst=True)
    a.ins('s_cbranch_scc1 L_pool')
    get_nonce(a, 250)
    mode_check('mc2')
    a.salu('s_cmp_eq_u32', 's41', 1, nodst=True)
    a.ins('s_cbranch_scc1 L_phase2b')
    ticket(a, C.sH, D_CH2)
    a.salu('s_cmp_lt_u32', s(C.sH), 32, nodst=True)
    a.ins('s_cbranch_scc1 L_chain_safe')
    a.label('L_phase2b')
    a.salu('s_mov_b32', 's8', 's76'); a.salu('s_mov_b32', 's9', 's77')
    a.salu('s_mov_b32', 's10', 2048 * 2304); a.salu('s_mov_b32', 's11', '0x20000')
    ticket(a, 34, D_T2)
    a.salu('s_cmp_ge_u32', 's34', 156, nodst=True)
    a.ins('s_cbranch_scc1 L_done')
    a.salu('s_cmp_ge_u32', 's34', 48, nodst=True)
    a.ins('s_cbranch_scc1 L_op_start')
    a.label('L_att_next')
    a.forget()
    a.salu('s_lshr_b32', s(A.sSEG), 's34', 3)
    a.salu('s_and_b32', s(A.sHh), 's34', 7)
    a.salu('s_lshl_b32', s(A.sHh), s(A.sHh), 2)
    a.salu('s_add_u32', s(A.sHh), s(A.sHh), s(sWv))
    a.salu('s_lshr_b32', 's36', s(A.sHh), 1); a.salu('s_lshl_b32', 's36', 's36', 8); a.salu('s_add_u32', 's36', 's36', Q.SY_PRG)
    a.salu('s_mul_i32', 's37', s(A.sSEG), 43); a.salu('s_lshr_b32', 's37', 's37', 8)
    a.salu('s_mul_i32', 's41', 's37', 6); a.salu('s_sub_u32', 's41', s(A.sSEG), 's41')
    a.valu('v_and_b32', 'v1', 63, 'v0')
    a.valu('v_mul_u32_u24', 'v2', 6, 'v1'); a.valu('v_add_u32', 'v2', 's41', 'v2')
    a.valu('v_mov_b32', 'v4', 's37')
    a.salu('s_and_b32', 's41', s(A.sSEG), 7); a.salu('s_add_u32', 's41', 's41', 12)
    a.salu('s_lshr_b32', 's37', s(A.sSEG), 3)
    a.valu('v_mov_b32', 'v5', 's41'); a.valu('v_mov_b32', 'v6', 's37')
    a.valu('v_cmp_lt_u32', 'vcc', 1, 'v1')
    a.valu('v_cndmask_b32', 'v2', 'v2', 'v5', 'vcc'); a.valu('v_cndmask_b32', 'v4', 'v4', 'v6', 'vcc')
    a.valu('v_lshlrev_b32', 'v2', 2, 'v2')
    a.valu('v_add3_u32', 'v4', 'v4', s(sNONCE), 1)
    prog_wait(a, 'L_aw1', 2, 3, 'v4', 's36', 4)
    def mid(a):
        a.fence()
        trace(a, 0, 34, 0)
        coarse_wait(a, A.sSEG, 199, 36)
        trace(a, 0, 34, 1)
        a.salu('s_and_b32', 's37', s(A.sSEG), 1); a.salu('s_lshl_b32', 's37', 's37', 2); a.salu('s_add_u32', 's37', 's37', 's36'); a.salu('s_add_u32', 's37', 's37', 128)
        a.salu('s_add_u32', 's41', s(A.sSEG), s(sNONCE)); a.salu('s_add_u32', 's41', 's41', 1)
        a.salu('s_lshl_b32', 's42', s(A.sHh), 7); a.salu('s_add_u32', 's42', 's42', C.SY_CHF)
        a.salu('s_cmp_ge_u32', s(A.sSEG), 62, nodst=True)
        a.salu('s_cselect_b32', 's37', 's42', 's37')
        a.salu('s_cselect_b32', 's42', 12, 8)
        a.valu('v_lshlrev_b32', 'v198', 2, 'v0'); a.valu('v_and_b32', 'v198', 's42', 'v198')
        prog_wait(a, 'L_aw2', 198, 199, 's41', 's37', ATS[0])
        trace(a, 0, 34, 2)
    A.attn_job(a, 'at', ld_fl='sc1', st_fl='sc1', mid=mid)
    a.salu('s_lshr_b32', 's40', 's34', 1)
    a.salu('s_lshl_b32', 's40', 's40', 7)
    a.salu('s_and_b32', 's41', s(A.sHh), 7)
    a.salu('s_lshl_b32', 's41', 's41', 2)
    a.salu('s_add_u32', 's40', 's40', 's41')
    a.salu('s_add_u32', 's40', 's40', SY_ATT)
    a.valu('v_mov_b32', 'v250', s(sNONCE))
    a.ins('s_waitcnt vmcnt(0)')
    a.salu('s_mov_b64', 'exec', 1)
    a.vmem('buffer_store_dword', 'v250', 'off', 's[4:7]', 's40', mods='sc1', load=False)
    a.salu('s_mov_b64', 'exec', -1)
    trace(a, 0, 34, 3)
    a.salu('s_add_u32', 's34', 's34', 48)
    a.salu('s_cmp_lt_u32', 's34', 512, nodst=True)
    a.fence()
    a.ins('s_cbranch_scc1 L_att_next')
    a.ins('s_branch L_done')
    a.label('L_op_start')
    a.forget()
    a.salu('s_sub_u32', 's34', 's34', 48)
    a.salu('s_mul_hi_u32', s(A.sSEG), 's34', '0x0e38e38f')
    a.salu('s_mul_i32', 's41', s(A.sSEG), 18)
    a.salu('s_sub_u32', s(sCB), 's34', 's41')
    A.oproj_load(a, 58, sCB, sWv)
    a.label('L_op_seg')
    a.salu('s_lshr_b32', 's43', s(A.sSEG), 1)
    a.salu('s_add_u32', 's43', 's43', 1)
    a.salu('s_min_u32', 's43', 's43', 63)
    a.salu('s_and_b32', 's36', s(sCB), 15); a.salu('s_lshl_b32', 's36', 's36', 8); a.salu('s_add_u32', 's36', 's36', Q.SY_PRG)
    a.salu('s_lshl_b32', 's94', s(sCB), 7); a.salu('s_add_u32', 's94', 's94', s(A.sSEG))
    trace(a, 65536, 94, 0)
    coarse_wait(a, 43, 3, 36)
    trace(a, 65536, 94, 1)
    a.salu('s_lshr_b32', 's89', s(A.sSEG), 1)
    a.salu('s_lshl_b32', 's89', 's89', 2)
    a.salu('s_add_u32', 's89', 's89', s(sWv))
    a.salu('s_lshl_b32', 's89', 's89', 7)
    a.salu('s_add_u32', 's89', 's89', SY_ATT)
    flags_wait(a, 's89', 0, 8, 2, 3, sleep=OPS[0])
    trace(a, 65536, 94, 2)
    A.oproj_seg(a, 'os', 8, sCB, sWv, A.sSEG)
    trace(a, 65536, 94, 3)
    a.salu('s_add_u32', s(A.sSEG), s(A.sSEG), 6)
    a.salu('s_cmp_ge_u32', s(A.sSEG), 128, nodst=True)
    a.ins('s_cbranch_scc1 L_done')
    a.ins('s_barrier')
    a.ins('s_branch L_op_seg')
    a.label('L_done')
    diag(a, 10)
    a.label('L_exit')
    a.ins('s_endpgm')
    a.raw(kd(n, 512, 256))

def build(**kw):
    hdr = open(f'/code/{NAME}.s.ref').read().split('; Override launch geometry')[0]
    a = Asm()
    a.raw(hdr.rstrip())
    a.raw('; @launch grid=(256,1,1) block=(256,1,1) lds=163840')
    a.raw('.amdgcn_target "amdgcn-amd-amdhsa--gfx950"')
    k_main(a, **kw)
    return a.text()

if __name__ == '__main__':
    kw = dict(d0=72, dB=15, ks=2, pA=14, d1=70, dX=30, dZ=168, pbr=0)
    open('one.s', 'w').write(build(**kw))
    for spec in sys.argv[1:]:
        k2 = dict((x.split('=')[0], int(x.split('=')[1])) for x in spec.split(','))
        open('one_' + spec.replace('=', '').replace(',', '_') + '.s', 'w').write(build(**{**kw, **k2}))
    XCC[0] = 9; TMO[0] = 1 << 8; FX[0] = 1
    open('one_safe.s', 'w').write(build(**kw))
    XCC[0] = 0; TMO[0] = 1 << 8; NCH[0] = 31; FX[0] = 0
    open('one_safe2.s', 'w').write(build(**kw))
    TMO[0] = 1 << 17; NCH[0] = 32
    DIAG[0] = 1
    for spec in sys.argv[1:]:
        k2 = dict((x.split('=')[0], int(x.split('=')[1])) for x in spec.split(','))
        open('one_' + spec.replace('=', '').replace(',', '_') + '_d.s', 'w').write(build(**{**kw, **k2}))
    open('one_d.s', 'w').write(build(**kw))
    print('ok')
```

```python
import sys
sys.path.insert(0, 'gen2')
from asmfw import Asm
import chain2 as C, qkv2 as Q, attn2 as A, ssm as S
from chain2 import s, v
from build_ct import kd
NAME = 'concat_heads__memory_aug_recurrent_mem_tr__ssm_conv_s4d__prompt'
def start(a, name):
    a.raw(f'.text\n.globl {name}\n.p2align 8\n.type {name},@function\n{name}:')
def ws_srd(a, p):
    a.salu('s_mov_b32', 's4', s(p)); a.salu('s_mov_b32', 's5', s(p + 1))
    a.salu('s_mov_b32', 's6', C.WS_SIZE); a.salu('s_mov_b32', 's7', '0x20000')

sNONCE = C.sNONCE
DBG = 96
SY_ATT = C.WS_SYNC + 65536
D_NONCE, D_HELP, D_CH, D_ARR, D_SSM, D_T2, D_ATT, D_WF, D_OP = 144, 4, 128, 132, 8, 12, 16, 20, 136
D_XF2 = 24
D_MODE, D_CH2, D_ARR2, D_GO2 = 140, 208, 212, 216
XCC = [0]
NWARM = [5]
XD = [0]
OPS = [4]
DV = [70]
HDELAY = [0]
TMO = [1 << 17]
KVR = 2
D_POOL = 32
NCH = [32]
FX = [0]
BOFF = [24]
ATS = [3]
MSL = [4]

DIAG = [0]
IFL = ['']
def diag(a, idx, val=None):
    if not DIAG[0]: return
    a.fence()
    a.ins('s_memrealtime s[90:91]'); a.ins('s_waitcnt lgkmcnt(0)')
    if val is not None: a.salu('s_mov_b32', 's90', val)
    a.salu('s_mov_b64', 's[100:101]', 'exec'); a.salu('s_mov_b64', 'exec', 1)
    a.valu('v_mov_b32', v(DV[0]), 's90')
    a.salu('s_lshl_b32', 's91', 's2', 8); a.salu('s_add_u32', 's91', 's91', 203 << 20)
    a.vmem('buffer_store_dword', v(DV[0]), 'off', 's[4:7]', 's91', mods=f'offset:{4 * idx}', load=False)
    a.salu('s_mov_b64', 'exec', 's[100:101]')
    a.nop(2)

LD = [0]
def ldiag(a, word, vreg, op='buffer_atomic_umax'):
    if not LD[0]: return
    a.fence()
    a.ins('s_memrealtime s[90:91]'); a.ins('s_waitcnt lgkmcnt(0)')
    a.salu('s_and_b32', 's90', 's90', 0xfffff)
    a.valu('v_mov_b32', v(vreg), 's90')
    a.valu('v_cmp_eq_u32', 'vcc', 0, 'v0' if vreg > 200 else v(C.LH))
    a.salu('s_mov_b64', 'exec', 'vcc')
    a.vmem(op, v(vreg), 'off', s(DBG, 4), 0, mods=f'offset:{4 * word}', load=False)
    a.salu('s_mov_b64', 'exec', -1)
    a.nop(2)

def dsel(a, idx):
    if not DIAG[0]: return
    L = f'ds{len(a.lines)}'
    a.salu('s_cmp_ge_u32', 's36', 192, nodst=True)
    a.ins(f's_cbranch_scc1 {L}')
    diag(a, idx)
    a.ins(f's_branch {L}x')
    a.label(L)
    diag(a, idx + 5)
    a.label(L + 'x')

def trace(a, base, sidx, k):
    if not DIAG[0]: return
    a.fence()
    a.ins('s_memrealtime s[90:91]'); a.ins('s_waitcnt lgkmcnt(0)')
    a.salu('s_lshl_b32', 's92', s(sidx), 4); a.salu('s_add_u32', 's92', 's92', (201 << 20) + base + 4 * k)
    a.valu('v_mov_b32', 'v249', 's90')
    a.salu('s_mov_b64', 'exec', 1)
    a.vmem('buffer_store_dword', 'v249', 'off', 's[4:7]', 's92', load=False)
    a.salu('s_mov_b64', 'exec', -1)
    a.nop(2)

_tk = [0]
def get_nonce(a, vd):
    _tk[0] += 1
    L = f'gn{_tk[0]}'
    a.fence()
    a.salu('s_mov_b32', 's88', 1 << 22)
    a.label(L)
    a.salu('s_cmp_lg_u32', s(sNONCE), 0, nodst=True)
    a.ins(f's_cbranch_scc1 {L}x')
    a.vmem('buffer_load_dword', v(vd), 'off', s(DBG, 4), 0, mods=f'offset:{D_NONCE} sc1')
    a.salu('s_sub_u32', 's88', 's88', 1)
    a.ins(f's_cbranch_scc1 {L}x')
    a.ins('s_waitcnt vmcnt(0)')
    a.valu('v_readfirstlane_b32', s(sNONCE), v(vd))
    a.nop(2)
    a.ins(f's_branch {L}')
    a.label(f'{L}x')

def ticket(a, dst, off, vb=250, mid=None):
    _tk[0] += 1
    L = f'tk{_tk[0]}'
    a.fence()
    a.salu('s_mov_b32', 's37', off)
    a.valu('v_mov_b32', v(vb), 1)
    a.valu('v_mov_b32', v(vb + 1), 163832)
    a.valu('v_cmp_eq_u32', 'vcc', 0, 'v0')
    a.salu('s_and_saveexec_b64', 's[38:39]', 'vcc')
    a.ins(f's_cbranch_execz {L}' + ('m' if mid else ''))
    a.vmem('buffer_atomic_add', v(vb), 'off', s(DBG, 4), 's37', mods='sc0')
    if mid:
        a.label(L + 'm')
        a.salu('s_mov_b64', 's[38:39]', 'exec')
        a.salu('s_mov_b64', 'exec', -1)
        mid()
        a.salu('s_mov_b64', 'exec', 's[38:39]')
        a.ins(f's_cbranch_execz {L}')
    a.wait(vm='all')
    a.ds('ds_write_b32', v(vb + 1), v(vb))
    a.wait(lds='all')
    a.label(L)
    a.salu('s_mov_b64', 'exec', -1)
    a.ins('s_barrier')
    a.ds('ds_read_b32', v(vb + 2), v(vb + 1))
    a.wait(lds='all')
    a.valu('v_readfirstlane_b32', s(dst), v(vb + 2))
    a.ins('s_barrier')
    a.nop(4)

def flag_store(a, soff):
    _tk[0] += 1
    a.ins('s_waitcnt vmcnt(0)')
    a.ins('s_barrier')
    a.valu('v_mov_b32', 'v250', s(sNONCE))
    a.valu('v_cmp_eq_u32', 'vcc', 0, 'v0')
    a.salu('s_and_saveexec_b64', 's[38:39]', 'vcc')
    a.ins(f's_cbranch_execz fs{_tk[0]}')
    a.vmem('buffer_store_dword', 'v250', 'off', 's[4:7]', soff, mods='sc1', load=False)
    a.label(f'fs{_tk[0]}')
    a.salu('s_mov_b64', 'exec', -1)

def flags_wait(a, soff, lo, hi, va, vd, sleep=2):
    _tk[0] += 1
    L = f'fw{_tk[0]}'
    a.fence()
    a.valu('v_mbcnt_lo_u32_b32', v(va), -1, 0)
    a.valu('v_mbcnt_hi_u32_b32', v(va), -1, v(va))
    a.valu('v_min_u32', v(va), hi - lo - 1, v(va))
    a.valu('v_lshlrev_b32', v(va), 2, v(va))
    a.salu('s_mov_b32', 's88', 1 << 22)
    a.label(L)
    a.vmem('buffer_load_dword', v(vd), v(va), 's[4:7]', soff, mods=f'offen offset:{4 * lo} sc1')
    a.salu('s_sub_u32', 's88', 's88', 1)
    a.ins(f's_cbranch_scc1 {L}x')
    a.ins('s_waitcnt vmcnt(0)')
    a.valu('v_cmp_ne_u32', 'vcc', s(sNONCE), v(vd))
    a.ins(f's_cbranch_vccz {L}x')
    a.ins(f's_sleep {sleep}')
    a.salu('s_cmp_gt_u32', 's88', (1 << 22) - BOFF[0], nodst=True)
    a.ins(f's_cbranch_scc1 {L}')
    a.ins('s_sleep 40')
    a.ins(f's_branch {L}')
    a.label(f'{L}x')

def coarse_wait(a, sseg, vd, shp):
    _tk[0] += 1
    L = f'cw{_tk[0]}'
    a.fence()
    a.salu('s_mov_b32', 's88', 1 << 16)
    a.label(L)
    a.vmem('buffer_load_dword', v(vd), 'off', 's[4:7]', s(shp), mods='offset:128 sc1')
    a.ins('s_waitcnt vmcnt(0)')
    a.valu('v_readfirstlane_b32', 's42', v(vd))
    a.salu('s_sub_u32', 's42', 's42', s(sNONCE))
    a.salu('s_cmp_gt_u32', 's42', 64, nodst=True)
    a.salu('s_cselect_b32', 's42', 0, 's42')
    a.salu('s_add_u32', 's42', 's42', 2)
    a.salu('s_cmp_ge_u32', 's42', s(sseg), nodst=True)
    a.ins(f's_cbranch_scc1 {L}x')
    a.salu('s_sub_u32', 's88', 's88', 1)
    a.ins(f's_cbranch_scc1 {L}x')
    a.salu('s_sub_u32', 's42', s(sseg), 's42')
    a.salu('s_min_u32', 's42', 's42', 6)
    a.label(f'{L}s')
    a.ins('s_sleep 24')
    a.salu('s_sub_u32', 's42', 's42', 1)
    a.salu('s_cmp_lg_u32', 's42', 0, nodst=True)
    a.ins(f's_cbranch_scc1 {L}s')
    a.ins(f's_branch {L}')
    a.label(f'{L}x')

def prog_wait(a, lab, va, vd, vneed, sbase, sleep, scnt='s40'):
    a.salu('s_mov_b32', scnt, 1 << 22)
    a.label(lab)
    a.vmem('buffer_load_dword', v(vd), v(va), 's[4:7]', sbase, mods='offen sc1')
    a.salu('s_sub_u32', scnt, scnt, 1)
    a.ins(f's_cbranch_scc1 {lab}_go')
    a.ins('s_waitcnt vmcnt(0)')
    a.valu('v_subrev_u32', v(vd), vneed, v(vd))
    a.valu('v_cmp_lt_u32', 'vcc', 64, v(vd))
    a.ins(f's_cbranch_vccz {lab}_go')
    a.ins(f's_sleep {sleep}')
    a.ins(f's_branch {lab}')
    a.label(f'{lab}_go')

def k_main(a, hd=0, hg=0, **kw):
    n = NAME + '_kernel'
    DV[0] = 59
    start(a, n)
    a.salu('s_cmp_ge_u32', 's2', 256, nodst=True)
    a.ins('s_cbranch_scc1 L_exit')
    a.ins('s_load_dwordx4 s[84:87], s[0:1], 120')
    a.ins('s_load_dwordx16 s[48:63], s[0:1], 0')
    a.valu('v_lshrrev_b32', 'v1', 6, 'v0')
    a.valu('v_readfirstlane_b32', 's32', 'v1')
    a.ins('s_getreg_b32 s3, hwreg(HW_REG_XCC_ID)')
    a.salu('s_and_b32', 's3', 's3', 15)
    a.salu('s_cmp_lg_u32', 's32', 3, nodst=True)
    a.ins('s_cbranch_scc1 L_nowarm')
    a.ins('s_getpc_b64 s[44:45]')
    a.label('L_pcw')
    a.valu('v_and_b32', 'v1', 63, 'v0')
    a.valu('v_lshlrev_b32', 'v1', 7, 'v1')
    a.salu('s_cmp_lg_u32', 's3', XCC[0], nodst=True)
    a.salu('s_cselect_b32', 's33', 'L_helper-L_pcw', 0)
    a.valu('v_add_u32', 'v1', 's33', 'v1')
    for i in range(NWARM[0]):
        if i == 2: a.ins('s_cbranch_scc0 L_nowarm')
        a.valu('v_min_u32', 'v2', 'L_exit-L_pcw', 'v1')
        a.vmem('global_load_dword', v(240 + i), 'v2', 's[44:45]')
        a.valu('v_add_u32', 'v1', 8192, 'v1')
    a.label('L_nowarm')
    a.forget()
    a.ins('s_waitcnt lgkmcnt(0)')
    ws_srd(a, 86)
    a.salu('s_mov_b32', s(DBG), 's84'); a.salu('s_mov_b32', s(DBG + 1), 's85')
    a.salu('s_mov_b32', s(DBG + 2), 256); a.salu('s_mov_b32', s(DBG + 3), '0x20000')
    a.salu('s_mov_b32', s(sNONCE), 0)
    diag(a, 0)
    a.salu('s_cmp_lg_u32', 's3', XCC[0], nodst=True)
    a.ins('s_cbranch_scc1 L_helper')
    lanes = C.Chain(a, 'x', gs=kw.get('gs', 2))
    ticket(a, C.sH, D_CH, mid=lanes.load_lanes)
    a.salu('s_cmp_ge_u32', s(C.sH), NCH[0], nodst=True)
    a.ins('s_cbranch_scc1 L_helper')
    a.label('L_chain')
    diag(a, 14)
    ldiag(a, 0, 250)
    diag(a, 15, s(C.sH))
    if DIAG[0]:
        a.ins('s_getreg_b32 s89, hwreg(HW_REG_HW_ID)'); diag(a, 12, 's89')
    def kvaddr(a, va, sb):
        a.salu('s_lshr_b32', s(sb), s(C.sH), 1); a.salu('s_lshl_b32', s(sb), s(sb), 8); a.salu('s_add_u32', s(sb), s(sb), Q.SY_PRG)
        a.valu('v_bfe_u32', v(va), v(C.LH), 4, 6); a.valu('v_min_u32', v(va), 11, v(va)); a.valu('v_lshlrev_b32', v(va), 2, v(va))
    def kvwait(a, lab, need, va, vd):
        kvaddr(a, va, 92)
        a.salu('s_add_u32', 's93', s(sNONCE), need)
        prog_wait(a, lab, va, vd, 's93', 's92', 2, scnt='s94')
    def hook(a):
        if not DIAG[0]: return
        a.salu('s_lshl_b32', 's88', s(C.sH), 2); a.salu('s_add_u32', 's88', 's88', s(C.sW))
        a.salu('s_cmp_lg_u32', 's88', 0, nodst=True)
        a.ins('s_cbranch_scc1 L_nohook')
        a.ins('s_memrealtime s[90:91]'); a.ins('s_memtime s[72:73]'); a.ins('s_waitcnt lgkmcnt(0)')
        a.valu('v_mov_b32', v(C.Rq[1]), 's90'); a.valu('v_mov_b32', v(C.Rq[1] + 1), 's72')
        a.salu('s_lshl_b32', 's88', s(C.sSTEP), 3); a.salu('s_add_u32', 's88', 's88', 200 << 20)
        a.vmem('buffer_store_dwordx2', v(C.Rq[1], 2), 'off', 's[4:7]', 's88', load=False)
        a.label('L_nohook')
        a.fence()
    def chain_body(tag, safe):
        for i in range(5): a.salu('s_mov_b64', s(C.sPTR + 2 * i, 2), s(C.sPTR + 2 * i + 2, 2))
        def w0hook(a):
            if not safe: hook(a)
            a.salu('s_cmp_lg_u32', s(C.sSTEP), 6 * KVR - 2, nodst=True)
            a.ins(f's_cbranch_scc1 {tag}_nokv')
            kvwait(a, f'{tag}_kv1', Q.DONE, C.Rq[1], C.Rq[1] + 1)
            ldiag(a, 5, C.Rq[1])
            a.label(f'{tag}_nokv')
        if safe: ch = C.Chain(a, tag, fl='sc1', lfl='sc1', xoff=C.XOFF, d0=200, d1=200, dB=100, dZ=400, ks=1, w0hook=w0hook, spinmax=1 << 20)
        else: ch = C.Chain(a, tag, ptrace=(lambda a, j: diag(a, 16 + j)), w0hook=w0hook, spinmax=1 << 20, **kw)
        if safe: ch.load_lanes()
        arr, mode = (D_ARR2, D_GO2) if safe else (D_ARR, D_MODE)
        def st1(a):
            a.valu('v_mov_b32', 'v46', 1)
            a.salu('s_mov_b64', 'exec', 1)
            a.vmem('buffer_atomic_add', 'v46', 'off', s(DBG, 4), 0, mods=f'offset:{arr} sc0')
            a.salu('s_mov_b64', 'exec', -1)
        def st2(a):
            a.valu('v_readfirstlane_b32', 's41', 'v46')
            a.valu('v_mov_b32', 'v36', 1); a.valu('v_mov_b32', 'v37', 0)
            a.salu('s_cmp_eq_u32', 's41', 127, nodst=True)
            a.salu('s_cselect_b64', 'exec', 1, 0)
            a.vmem('buffer_atomic_cmpswap', 'v[36:37]', 'off', s(DBG, 4), 0, mods=f'offset:{mode}', load=False)
            a.salu('s_mov_b64', 'exec', -1)
        def st3(a):
            a.vmem('buffer_load_dword', 'v38', 'off', s(DBG, 4), 0, mods=f'offset:{mode} sc1')
            a.vmem('buffer_load_dword', 'v39', 'off', s(DBG, 4), 0, mods=f'offset:{D_NONCE} sc1')
            kvaddr(a, 40, 84)
            a.vmem('buffer_load_dword', 'v41', 'v40', 's[4:7]', 's84', mods='offen sc1')
        def late(a):
            a.valu('v_readfirstlane_b32', s(sNONCE), 'v39')
            a.valu('v_readfirstlane_b32', 's85', 'v38')
            get_nonce(a, 24)
            a.salu('s_add_u32', 's93', s(sNONCE), KVR)
            a.valu('v_subrev_u32', 'v41', 's93', 'v41')
            a.valu('v_cmp_lt_u32', 's[86:87]', 64, 'v41')
        ch.prologue(st1, st2, st3, late)
        diag(a, 2)
        a.salu('s_cmp_eq_u32', 's85', 1, nodst=True)
        a.ins(f's_cbranch_scc1 {tag}_run')
        a.salu('s_mov_b32', 's40', (1 << 24) if safe else TMO[0])
        a.label(f'{tag}_startpoll')
        a.vmem('buffer_load_dword', 'v3', 'off', s(DBG, 4), 0, mods=f'offset:{mode} sc1')
        a.wait(vm='all')
        a.valu('v_readfirstlane_b32', 's85', 'v3')
        a.salu('s_cmp_eq_u32', 's85', 1, nodst=True)
        a.ins(f's_cbranch_scc1 {tag}_run')
        if not safe:
            a.salu('s_cmp_eq_u32', 's85', 2, nodst=True)
            a.ins(f's_cbranch_scc1 {tag}_leave')
        a.ins('s_sleep 1')
        a.salu('s_sub_u32', 's40', 's40', 1)
        a.ins(f's_cbranch_scc0 {tag}_startpoll')
        if safe: a.ins('s_endpgm')
        else:
            a.valu('v_mov_b32', 'v4', 2); a.valu('v_mov_b32', 'v5', 0)
            a.salu('s_mov_b64', 'exec', 1)
            a.vmem('buffer_atomic_cmpswap', 'v[4:5]', 'off', s(DBG, 4), 0, mods=f'offset:{D_MODE}', load=False)
            a.salu('s_mov_b64', 'exec', -1)
            a.salu('s_mov_b32', 's40', 1 << 20)
            a.ins(f's_branch {tag}_startpoll')
            a.label(f'{tag}_leave')
            a.valu('v_lshrrev_b32', 'v0', 4, v(C.LH))
            a.salu('s_mov_b32', 's32', s(C.sW))
            a.ins('s_load_dwordx16 s[48:63], s[0:1], 0')
            a.ins('s_waitcnt lgkmcnt(0)')
            a.ins('s_branch L_helper')
        a.label(f'{tag}_run')
        diag(a, 3)
        a.salu('s_cmp_eq_u64', 's[86:87]', 0, nodst=True)
        a.ins(f's_cbranch_scc1 {tag}_kv0_go')
        kvwait(a, f'{tag}_kv0', KVR, 2, 3)
        ch.loop_init()
        diag(a, 4)
        ldiag(a, 4, 24)
        if not safe and DIAG[0]: print(ch.outs, [(j[1], j[3] // 1024) for j in ch.sched])
        ch.step()
        diag(a, 5)
        ldiag(a, 6, 24)
        a.ins('s_endpgm')
        ch.load_sub()
    chain_body('cf', False)
    a.label('L_chain_safe')
    a.forget()
    chain_body('cs', True)
    def mode_check(lab):
        a.salu('s_mov_b32', 's40', 4 * TMO[0])
        a.label(f'{lab}_w')
        a.vmem('buffer_load_dword', 'v250', 'off', s(DBG, 4), 0, mods=f'offset:{D_MODE} sc1')
        a.wait(vm='all')
        a.valu('v_readfirstlane_b32', 's41', 'v250')
        a.salu('s_cmp_lg_u32', 's41', 0, nodst=True)
        a.ins(f's_cbranch_scc1 {lab}_known')
        a.salu('s_sub_u32', 's40', 's40', 1)
        a.ins(f's_cbranch_scc1 {lab}_force')
        a.ins('s_sleep 2')
        a.ins(f's_branch {lab}_w')
        a.label(f'{lab}_force')
        a.valu('v_mov_b32', 'v250', 2); a.valu('v_mov_b32', 'v251', 0)
        a.salu('s_mov_b64', 'exec', 1)
        a.vmem('buffer_atomic_cmpswap', 'v[250:251]', 'off', s(DBG, 4), 0, mods=f'offset:{D_MODE}', load=False)
        a.salu('s_mov_b64', 'exec', -1)
        a.ins('s_waitcnt vmcnt(0)')
        a.salu('s_mov_b32', 's40', 4 * TMO[0])
        a.ins(f's_branch {lab}_w')
        a.label(f'{lab}_known')
    a.forget()
    a.label('L_helper')
    DV[0] = 249
    a.forget()
    a.ins('s_load_dwordx16 s[64:79], s[0:1], 64')
    a.salu('s_sub_u32', 's33', 's3', XCC[0] + 1); a.salu('s_and_b32', 's33', 's33', 3 if FX[0] else 7)
    a.label('L_pool')
    a.salu('s_lshl_b32', 's35', 's33', 2); a.salu('s_add_u32', 's35', 's35', D_POOL)
    ticket(a, 34, 's35')
    a.salu('s_mul_i32', 's36', 's33', 30); a.salu('s_add_u32', 's36', 's36', 's34')
    a.salu('s_or_b32', 's33', 's34', 's32')
    a.salu('s_cmp_lg_u32', 's33', 0, nodst=True)
    a.ins('s_cbranch_scc1 L_helper1')
    a.ins('s_memrealtime s[90:91]'); a.ins('s_waitcnt lgkmcnt(0)')
    a.salu('s_lshl_b32', 's90', 's90', 8); a.salu('s_or_b32', 's90', 's90', 1)
    a.valu('v_mov_b32', 'v250', 's90'); a.valu('v_mov_b32', 'v251', 0)
    a.salu('s_mov_b64', 'exec', 1)
    a.vmem('buffer_atomic_cmpswap', 'v[250:251]', 'off', s(DBG, 4), 0, mods=f'offset:{D_NONCE}', load=False)
    a.salu('s_mov_b64', 'exec', -1)
    a.label('L_helper1')
    if hd:
        a.salu('s_mul_i32', 's37', 's36', 171); a.salu('s_lshr_b32', 's37', 's37', 10); a.salu('s_mul_i32', 's37', 's37', 6); a.salu('s_sub_u32', 's37', 's36', 's37')
        a.salu('s_cmp_lt_u32', 's37', hg, nodst=True); a.ins('s_cbranch_scc1 L_nhd')
        for i in range(hd): a.ins('s_sleep 127')
        a.label('L_nhd')
    diag(a, 9)
    a.salu('s_cmp_ge_u32', 's34', 30, nodst=True)
    a.ins('s_cbranch_scc1 L_qkv_next')
    a.salu('s_cmp_ge_u32', 's36', 192, nodst=True)
    a.ins('s_cbranch_scc1 L_qkv_next')
    a.salu('s_mul_i32', 's37', 's36', 171); a.salu('s_lshr_b32', 's37', 's37', 10)
    a.salu('s_mul_i32', 's38', 's37', 6); a.salu('s_sub_u32', 's36', 's36', 's38')
    a.salu('s_lshl_b32', 's36', 's36', 5); a.salu('s_add_u32', 's36', 's36', 's37')
    a.ins('s_branch L_job')
    a.label('L_qkv_next')
    ticket(a, 36, D_HELP)
    a.salu('s_add_u32', 's36', 's36', 192)
    a.salu('s_cmp_ge_u32', 's36', 320, nodst=True)
    a.ins('s_cbranch_scc1 L_ssm_next')
    a.label('L_job')
    a.salu('s_and_b32', s(Q.sHh), 's36', 15); a.salu('s_lshl_b32', s(Q.sHh), s(Q.sHh), 1)
    a.salu('s_bfe_u32', s(Q.sM), 's36', '0x10004')
    a.salu('s_lshr_b32', s(Q.sSEG), 's36', 5)
    a.salu('s_mul_i32', 's33', s(Q.sM), 6); a.salu('s_add_u32', 's33', 's33', s(Q.sSEG))
    a.salu('s_add_u32', s(Q.sM), s(Q.sM), 1)
    a.salu('s_lshr_b32', 's37', 's36', 4); a.salu('s_sub_u32', 's38', 's37', 12)
    a.salu('s_cmp_ge_u32', 's36', 192, nodst=True)
    a.salu('s_cselect_b32', s(Q.sM), 0, s(Q.sM))
    a.salu('s_cselect_b32', s(Q.sSEG), 's38', s(Q.sSEG))
    a.salu('s_cselect_b32', 's33', 's37', 's33')
    a.salu('s_cselect_b32', s(Q.sSTR), 8, 6)
    Q.qkv_role(a, 'qk', 48, 52, sNONCE, 33, late=lambda a: (get_nonce(a, 25), dsel(a, 8)))
    dsel(a, 6)
    a.salu('s_cmp_ge_u32', 's36', 64, nodst=True)
    a.ins('s_cbranch_scc1 L_qkv_next')
    a.salu('s_lshr_b32', 's33', 's36', 5)
    Q.memkv_role(a, 'mk', sNONCE, 33, slp=MSL[0])
    diag(a, 1)
    a.ins('s_endpgm')
    a.label('L_ssm_next')
    ticket(a, S.sD0, D_SSM)
    a.salu('s_cmp_ge_u32', s(S.sD0), 144, nodst=True)
    a.ins('s_cbranch_scc1 L_phase2')
    a.salu('s_lshl_b32', s(S.sD0), s(S.sD0), 2)
    a.forget()
    S.ssm_job(a, 'ss', 62, 76)
    diag(a, 7)
    a.ins('s_branch L_ssm_next')
    sWv, sCB = 32, 33
    a.label('L_phase2')
    a.forget()
    a.valu('v_and_b32', 'v1', 63, 'v0'); a.valu('v_min_u32', 'v1', 6, 'v1'); a.valu('v_lshlrev_b32', 'v2', 2, 'v1')
    a.vmem('buffer_load_dword', 'v3', 'v2', s(DBG, 4), 0, mods=f'offen offset:{D_POOL} sc1')
    a.valu('v_mov_b32', 'v4', 30); a.valu('v_cmp_eq_u32', 'vcc', 6, 'v1'); a.valu('v_cndmask_b32', 'v4', 'v4', 12, 'vcc', mods='')
    a.wait(vm='all')
    a.valu('v_cmp_lt_u32', 'vcc', 'v3', 'v4')
    a.salu('s_ff1_i32_b64', 's40', 'vcc')
    a.valu('v_mov_b32', 'v250', 's40'); a.valu('v_mov_b32', 'v251', 163832)
    a.salu('s_cmp_lg_u32', 's32', 0, nodst=True)
    a.ins('s_cbranch_scc1 L_sw_nw')
    a.ds('ds_write_b32', 'v251', 'v250')
    a.wait(lds='all')
    a.label('L_sw_nw')
    a.ins('s_barrier')
    a.ds('ds_read_b32', 'v252', 'v251')
    a.wait(lds='all')
    a.valu('v_readfirstlane_b32', 's33', 'v252')
    a.ins('s_barrier')
    a.nop(2)
    a.salu('s_cmp_lt_u32', 's33', 7, nodst=True)
    a.ins('s_cbranch_scc1 L_pool')
    get_nonce(a, 250)
    mode_check('mc2')
    a.salu('s_cmp_eq_u32', 's41', 1, nodst=True)
    a.ins('s_cbranch_scc1 L_phase2b')
    ticket(a, C.sH, D_CH2)
    a.salu('s_cmp_lt_u32', s(C.sH), 32, nodst=True)
    a.ins('s_cbranch_scc1 L_chain_safe')
    a.label('L_phase2b')
    a.salu('s_mov_b32', 's8', 's76'); a.salu('s_mov_b32', 's9', 's77')
    a.salu('s_mov_b32', 's10', 2048 * 2304); a.salu('s_mov_b32', 's11', '0x20000')
    ticket(a, 34, D_T2)
    a.salu('s_cmp_ge_u32', 's34', 156, nodst=True)
    a.ins('s_cbranch_scc1 L_done')
    a.salu('s_cmp_ge_u32', 's34', 48, nodst=True)
    a.ins('s_cbranch_scc1 L_op_start')
    a.label('L_att_next')
    a.forget()
    a.salu('s_lshr_b32', s(A.sSEG), 's34', 3)
    a.salu('s_and_b32', s(A.sHh), 's34', 7)
    a.salu('s_lshl_b32', s(A.sHh), s(A.sHh), 2)
    a.salu('s_add_u32', s(A.sHh), s(A.sHh), s(sWv))
    a.salu('s_lshr_b32', 's36', s(A.sHh), 1); a.salu('s_lshl_b32', 's36', 's36', 8); a.salu('s_add_u32', 's36', 's36', Q.SY_PRG)
    a.salu('s_mul_i32', 's37', s(A.sSEG), 43); a.salu('s_lshr_b32', 's37', 's37', 8)
    a.salu('s_mul_i32', 's41', 's37', 6); a.salu('s_sub_u32', 's41', s(A.sSEG), 's41')
    a.valu('v_and_b32', 'v1', 63, 'v0')
    a.valu('v_mul_u32_u24', 'v2', 6, 'v1'); a.valu('v_add_u32', 'v2', 's41', 'v2')
    a.valu('v_mov_b32', 'v4', 's37')
    a.salu('s_and_b32', 's41', s(A.sSEG), 7); a.salu('s_add_u32', 's41', 's41', 12)
    a.salu('s_lshr_b32', 's37', s(A.sSEG), 3)
    a.valu('v_mov_b32', 'v5', 's41'); a.valu('v_mov_b32', 'v6', 's37')
    a.valu('v_cmp_lt_u32', 'vcc', 1, 'v1')
    a.valu('v_cndmask_b32', 'v2', 'v2', 'v5', 'vcc'); a.valu('v_cndmask_b32', 'v4', 'v4', 'v6', 'vcc')
    a.valu('v_lshlrev_b32', 'v2', 2, 'v2')
    a.valu('v_add3_u32', 'v4', 'v4', s(sNONCE), 1)
    prog_wait(a, 'L_aw1', 2, 3, 'v4', 's36', 4)
    def mid(a):
        a.fence()
        trace(a, 0, 34, 0)
        coarse_wait(a, A.sSEG, 199, 36)
        trace(a, 0, 34, 1)
        a.salu('s_and_b32', 's37', s(A.sSEG), 1); a.salu('s_lshl_b32', 's37', 's37', 2); a.salu('s_add_u32', 's37', 's37', 's36'); a.salu('s_add_u32', 's37', 's37', 128)
        a.salu('s_add_u32', 's41', s(A.sSEG), s(sNONCE)); a.salu('s_add_u32', 's41', 's41', 1)
        a.salu('s_lshl_b32', 's42', s(A.sHh), 7); a.salu('s_add_u32', 's42', 's42', C.SY_CHF)
        a.salu('s_cmp_ge_u32', s(A.sSEG), 62, nodst=True)
        a.salu('s_cselect_b32', 's37', 's42', 's37')
        a.salu('s_cselect_b32', 's42', 12, 8)
        a.valu('v_lshlrev_b32', 'v198', 2, 'v0'); a.valu('v_and_b32', 'v198', 's42', 'v198')
        prog_wait(a, 'L_aw2', 198, 199, 's41', 's37', ATS[0])
        trace(a, 0, 34, 2)
    A.attn_job(a, 'at', ld_fl='sc1', st_fl='sc1', mid=mid)
    a.salu('s_lshr_b32', 's40', 's34', 1)
    a.salu('s_lshl_b32', 's40', 's40', 7)
    a.salu('s_and_b32', 's41', s(A.sHh), 7)
    a.salu('s_lshl_b32', 's41', 's41', 2)
    a.salu('s_add_u32', 's40', 's40', 's41')
    a.salu('s_add_u32', 's40', 's40', SY_ATT)
    a.valu('v_mov_b32', 'v250', s(sNONCE))
    a.ins('s_waitcnt vmcnt(0)')
    a.salu('s_mov_b64', 'exec', 1)
    a.vmem('buffer_store_dword', 'v250', 'off', 's[4:7]', 's40', mods='sc1', load=False)
    a.salu('s_mov_b64', 'exec', -1)
    trace(a, 0, 34, 3)
    a.salu('s_add_u32', 's34', 's34', 48)
    a.salu('s_cmp_lt_u32', 's34', 512, nodst=True)
    a.fence()
    a.ins('s_cbranch_scc1 L_att_next')
    a.ins('s_branch L_done')
    a.label('L_op_start')
    a.forget()
    a.salu('s_sub_u32', 's34', 's34', 48)
    a.salu('s_mul_hi_u32', s(A.sSEG), 's34', '0x0e38e38f')
    a.salu('s_mul_i32', 's41', s(A.sSEG), 18)
    a.salu('s_sub_u32', s(sCB), 's34', 's41')
    A.oproj_load(a, 58, sCB, sWv)
    a.label('L_op_seg')
    a.salu('s_lshr_b32', 's43', s(A.sSEG), 1)
    a.salu('s_add_u32', 's43', 's43', 1)
    a.salu('s_min_u32', 's43', 's43', 63)
    a.salu('s_and_b32', 's36', s(sCB), 15); a.salu('s_lshl_b32', 's36', 's36', 8); a.salu('s_add_u32', 's36', 's36', Q.SY_PRG)
    a.salu('s_lshl_b32', 's94', s(sCB), 7); a.salu('s_add_u32', 's94', 's94', s(A.sSEG))
    trace(a, 65536, 94, 0)
    coarse_wait(a, 43, 3, 36)
    trace(a, 65536, 94, 1)
    a.salu('s_lshr_b32', 's89', s(A.sSEG), 1)
    a.salu('s_lshl_b32', 's89', 's89', 2)
    a.salu('s_add_u32', 's89', 's89', s(sWv))
    a.salu('s_lshl_b32', 's89', 's89', 7)
    a.salu('s_add_u32', 's89', 's89', SY_ATT)
    flags_wait(a, 's89', 0, 8, 2, 3, sleep=OPS[0])
    trace(a, 65536, 94, 2)
    A.oproj_seg(a, 'os', 8, sCB, sWv, A.sSEG)
    trace(a, 65536, 94, 3)
    a.salu('s_add_u32', s(A.sSEG), s(A.sSEG), 6)
    a.salu('s_cmp_ge_u32', s(A.sSEG), 128, nodst=True)
    a.ins('s_cbranch_scc1 L_done')
    a.ins('s_barrier')
    a.ins('s_branch L_op_seg')
    a.label('L_done')
    diag(a, 10)
    ldiag(a, 7, 250)
    a.label('L_exit')
    a.ins('s_endpgm')
    a.raw(kd(n, 512, 256))

def build(**kw):
    hdr = open(f'/code/{NAME}.s.ref').read().split('; Override launch geometry')[0]
    a = Asm()
    a.raw(hdr.rstrip())
    a.raw('; @launch grid=(256,1,1) block=(256,1,1) lds=163840')
    a.raw('.amdgcn_target "amdgcn-amd-amdhsa--gfx950"')
    k_main(a, **kw)
    return a.text()

if __name__ == '__main__':
    kw = dict(d0=72, dB=15, ks=2, pA=14, d1=70, dX=30, dZ=168, pbr=0)
    open('one.s', 'w').write(build(**kw))
    for spec in sys.argv[1:]:
        k2 = dict((x.split('=')[0], int(x.split('=')[1])) for x in spec.split(','))
        open('one_' + spec.replace('=', '').replace(',', '_') + '.s', 'w').write(build(**{**kw, **k2}))
    XCC[0] = 9; TMO[0] = 1 << 8; FX[0] = 1
    open('one_safe.s', 'w').write(build(**kw))
    XCC[0] = 0; TMO[0] = 1 << 8; NCH[0] = 31; FX[0] = 0
    open('one_safe2.s', 'w').write(build(**kw))
    TMO[0] = 1 << 17; NCH[0] = 32
    LD[0] = 1
    open('one_l.s', 'w').write(build(**kw))
    LD[0] = 0
    DIAG[0] = 1
    for spec in sys.argv[1:]:
        k2 = dict((x.split('=')[0], int(x.split('=')[1])) for x in spec.split(','))
        open('one_' + spec.replace('=', '').replace(',', '_') + '_d.s', 'w').write(build(**{**kw, **k2}))
    open('one_d.s', 'w').write(build(**kw))
    print('ok')
```

```python
from asmfw import Asm, R

MB = 1 << 20
WS_KV = 0
WS_Q = 32 * MB
WS_O = 48 * MB
WS_MEM = 64 * MB
WS_PART = 64 * MB + 65536
XOFF = 1 * MB
WS_KM = 68 * MB
WS_VM = 77 * MB
WS_M0 = 88 * MB
WS_MEMH = 86 * MB
WS_CPY = 92 * MB
WS_SYNC = 120 * MB
SY_CHF = WS_SYNC + 16384
SY_CPY = WS_SYNC + 24576
WS_SIZE = 256 * MB

K = 1024
L_MISC = 96 * K
L_MBUF = L_MISC
L_TB = L_MISC + 9216
L_DUMP = L_MISC + 9728
L_NON = L_MISC + 9984
L_SEL = L_MISC + 10240
L_MM = L_MISC + 11264
L_SC = L_MISC + 12288
L_OB = L_MBUF
B_LW0, B_LW1 = 56 * K, 96 * K

LDS_ADDR = {}
for _t in range(4):
    LDS_ADDR[('k', 0, _t)] = _t * 16 * K
    LDS_ADDR[('k', 1, _t)] = _t * 16 * K + 8 * K
LDS_ADDR[('q', 0, 0)] = 64 * K; LDS_ADDR[('q', 1, 0)] = 72 * K
LDS_ADDR[('k', 0, 8)] = 80 * K; LDS_ADDR[('k', 1, 8)] = 88 * K
LDS_ADDR[('o', 2, 2)] = 112 * K; LDS_ADDR[('o', 3, 2)] = 120 * K
LDS_ADDR[('o', 2, 3)] = 128 * K; LDS_ADDR[('o', 3, 3)] = 136 * K
LDS_ADDR[('o', 4, 0)] = 144 * K; LDS_ADDR[('o', 4, 1)] = 152 * K

AQ0, AK0, AQ1, AK1, AV0, AV1 = 0, 4, 8, 12, 16, 20
Rq = [24 + 4 * i for i in range(9)]
IDX, LH, LW0, LW1, LW2, L16, PST, PSX, OR0, MST, MMW, LW3 = range(60, 72)
ZZ, OA1, OA2, OA3, OW, MMR, PFA = 72, 74, 75, 76, 77, 78, 79
VW0 = 80

def all_frags():
    fr = [(m, t, sl) for m in 'qkv' for sl in range(9) for t in range(2)]
    fr += [('o', u, k) for u in range(4) for k in range(4)] + [('o', 4, 0), ('o', 4, 1)]
    return fr
REGF = {}
_res = [f for f in all_frags() if f not in LDS_ADDR]
assert len(_res) == 54
for _i, _f in enumerate(_res): REGF[_f] = ('a', _i * 8) if _i < 32 else ('v', VW0 + (_i - 32) * 8)
def freg(f): return R(REGF[f][1], 8, REGF[f][0])

SRD, SRDW = 4, 8
sH, sW = 12, 13
sMEM, sMEM4, sMEM8, sMST, sMRS = 14, 15, 16, 17, 18
sPL, sPS0, sPS1, sPSX = 19, 20, 21, 22
sKX, sPF, sKM, sVM, sFL = 23, 24, 25, 26, 27
sSTEP, sSPIN, sTAG, sMSU = 28, 29, 30, 31
sSTM, sHI8, sW0M, sLO8 = 32, 34, 36, 38
sT0, sT1, sT2, sT3 = 40, 41, 42, 43
sC1, sNC1, sK128 = 44, 46, 47
sPTR = 48
sONE, sHALF = 60, 62
sROLE, sFV = 64, 65
sAL, sALW = 66, 67
sACC = 68
sNONCE = 95
sSUM = 96

SMF = 'v_smfmac_f32_16x16x64_bf16'
MF32 = 'v_mfma_f32_16x16x32_bf16'
MF16 = 'v_mfma_f32_16x16x16_bf16'
def s(i, n=1): return R(i, n, 's')
def v(i, n=1): return R(i, n, 'v')

def lds_base(addr):
    if addr + 4096 < 64 * K: return LH, addr
    if addr < L_MISC + 16 * K: return LW0, addr - B_LW0
    return LW1, addr - B_LW1

class Chain:
    def __init__(self, a, tag, fl='', lfl='nt', pfl='sc1', xoff=0, nsteps=64, timing=0, dA=0, dB=24, d0=0, d1=24, dX=0, nopub=0, nopf=0,
                 hook=None, nomax=0, gap=0, dual=0, tstep=40, spinmax=1 << 16, prof=None, pstride=8, pA=20, pF=30, rt=0, dW=0, ks=2, early=1, k1=1, pskip=0, dZ=60, dE=0, ins0=0, p1=1, epf=1, npr=10, pg=6, dP=10, k0=1, pG=30, eo=1, w0hook=None, pbr=1, ppos=1, ptrace=None, lcap=16, lrev=5, gs=2, lord=1, lasy=4, lpri=5, gforce=0, cpy=None, swn=4, swe=2, pf128=0, pfe=0, xnop=0):
        self.xnop = xnop
        self.pf128 = pf128; self.pfe = pfe
        self.swe = swe
        self.swn = swn
        self.cpy = cpy
        self.gforce = gforce
        self.lpri = lpri; self.tick = lambda: None
        self.lasy = lasy
        self.lord = lord
        self.gs = gs
        self.lcap = lcap; self.lrev = lrev
        self.ptrace = ptrace
        self.pbr = pbr; self.ppos = ppos
        self.w0hook = w0hook
        self.eo = eo
        self.k0 = k0; self.pG = pG
        self.npr = npr; self.pg = pg; self.dP = dP
        self.p1 = p1; self.epf = epf
        self.ins0 = ins0
        self.dZ = dZ; self.dE = dE
        self.pskip = pskip
        self.k1 = k1
        self.ks = ks; self.early = early
        self.dW = dW
        self.clk = 's_memrealtime' if rt else 's_memtime'
        self.pA = pA; self.pF = pF
        self.prof = prof; self.pstride = pstride
        self.a = a; self.tag = tag; self.fl = fl; self.lfl = lfl; self.pfl = pfl
        self.wsmem = WS_MEM + xoff; self.wspart = WS_PART + xoff; self.nsteps = nsteps; self.timing = timing
        self.dA = dA; self.dB = dB; self.d0 = d0; self.d1 = d1; self.dX = dX; self.nopub = nopub; self.nopf = nopf
        self.hook = hook; self.nomax = nomax; self.gap = gap; self.dual = dual; self.tstep = tstep; self.spinmax = spinmax

    def stamp(self, i):
        if self.prof is not None:
            if i == self.prof and not getattr(self.a, '_prof', None): self.a.start_prof(sACC, self.pstride, 12, self.pskip)
        elif self.timing == 1 or (self.timing == 2 and i == 0): self.a.ins(f'{self.clk} s[{sACC+2*i}:{sACC+2*i+1}]')

    def addresses(self):
        a = self.a
        T0, T1, C, G = 0 + 24, 25, 26, 27
        a.valu('v_lshrrev_b32', v(T0), 6, 'v0')
        a.valu('v_lshlrev_b32', v(LH), 4, 'v0')
        a.valu('v_add_u32', v(LW0), B_LW0, v(LH))
        a.valu('v_xor_b32', v(LW1), 1024, v(LH)); a.valu('v_add_u32', v(LW1), B_LW1, v(LW1))
        a.valu('v_xor_b32', v(LW2), 2048, v(LH)); a.valu('v_add_u32', v(LW2), B_LW1, v(LW2))
        a.valu('v_and_b32', v(L16), 1023, v(LH)); a.valu('v_add_u32', v(L16), B_LW1, v(L16))
        a.valu('v_and_b32', v(C), 15, 'v0')
        a.valu('v_bfe_u32', v(G), 'v0', 4, 2)
        a.valu('v_mov_b32', v(IDX), '0x4444'); a.valu('v_mov_b32', v(T1), '0xeeee')
        a.valu('v_cmp_lt_u32', 'vcc', 7, v(C))
        a.valu('v_cndmask_b32', v(IDX), v(IDX), v(T1), 'vcc')
        self.tick()
        a.valu('v_and_b32', v(PSX), 12, v(C)); a.valu('v_lshlrev_b32', v(PSX), 3, v(PSX))
        a.valu('v_and_b32', v(T1), 1, v(C)); a.valu('v_lshl_add_u32', v(PSX), v(T1), 4, v(PSX))
        a.valu('v_bfe_u32', v(T1), v(C), 1, 1); a.valu('v_lshl_add_u32', v(PSX), v(T1), 3, v(PSX))
        a.valu('v_lshl_add_u32', v(PST), v(G), 14, v(PSX)); a.valu('v_lshl_add_u32', v(PST), v(T0), 17, v(PST))
        self.tick()
        a.valu('v_and_b32', v(PSX), 63, v(PSX))
        a.valu('v_lshrrev_b32', v(T1), 1, v(T0)); a.valu('v_lshl_add_u32', v(PSX), v(T1), 18, v(PSX))
        a.valu('v_lshl_add_u32', v(PSX), v(G), 16, v(PSX))
        a.valu('v_lshrrev_b32', v(T1), 3, v(C)); a.valu('v_lshl_add_u32', v(PSX), v(T1), 15, v(PSX))
        a.valu('v_and_b32', v(T1), 1, v(T0)); a.valu('v_lshl_add_u32', v(PSX), v(T1), 6, v(PSX))
        self.tick()
        a.valu('v_and_b32', v(T1), 31, 'v0')
        a.valu('v_lshlrev_b32', v(MMW), 4, v(T1))
        a.valu('v_lshlrev_b32', v(28), 3, v(T1)); a.valu('v_lshl_add_u32', v(28), v(T0), 10, v(28)); a.valu('v_add_u32', v(28), L_SC, v(28))
        a.valu('v_lshrrev_b32', v(T1), 1, v(T0)); a.valu('v_lshl_add_u32', v(MMW), v(T1), 9, v(MMW))
        a.valu('v_and_b32', v(T1), 1, v(T0)); a.valu('v_lshl_add_u32', v(MMW), v(T1), 3, v(MMW))
        a.valu('v_add_u32', v(MMW), L_MM, v(MMW))
        a.valu('v_cmp_gt_u32', 'vcc', 2, v(G))
        a.valu('v_cndmask_b32', v(MMW), v(MMW), v(28), 'vcc')
        self.tick()
        a.valu('v_xor_b32', v(LW3), 2048, v(LW1))
        a.valu('v_lshrrev_b32', v(OR0), 4, 'v0'); a.valu('v_lshlrev_b32', v(OR0), 7, v(OR0))
        a.valu('v_and_b32', v(T1), 7, v(C)); a.valu('v_lshl_add_u32', v(OR0), v(T1), 4, v(OR0)); a.valu('v_add_u32', v(OR0), L_OB, v(OR0))
        for i, r in enumerate((OA1, OA2, OA3)): a.valu('v_xor_b32', v(r), 512 * (i + 1), v(OR0))
        a.valu('v_lshrrev_b32', v(T1), 3, v(C)); a.valu('v_lshl_add_u32', v(OW), v(T1), 3, v(OR0))
        a.valu('v_or_b32', v(MMR), 512, v(L16)); a.valu('v_lshlrev_b32', v(PFA), 2, v(LH))
        if self.pf128: a.valu('v_and_b32', v(PFA), '0xffffff80', v(PFA))
        a.valu('v_mov_b64', v(ZZ, 2), 0)
        a.valu('v_and_b32', v(T1), 1, v(G)); a.valu('v_lshlrev_b32', v(MST), 7, v(T1))
        a.valu('v_lshrrev_b32', v(T1), 1, v(G)); a.valu('v_lshl_add_u32', v(MST), v(T1), 3, v(MST))
        a.valu('v_and_b32', v(T1), 3, v(C)); a.valu('v_lshl_add_u32', v(MST), v(T1), 4, v(MST))
        a.valu('v_bfe_u32', v(T1), v(C), 2, 1); a.valu('v_lshl_add_u32', v(MST), v(T1), 2, v(MST))
        self.tick()
        a.salu('s_mov_b32', s(sSTM), '0x00ff00ff'); a.salu('s_mov_b32', s(sSTM + 1), '0x00ff00ff')
        a.salu('s_not_b64', s(sHI8, 2), s(sSTM, 2))
        a.salu('s_lshr_b32', s(sMSU), s(sH), 1); a.salu('s_lshl_b32', s(sMSU), s(sMSU), 8)
        a.salu('s_and_b32', s(sT0), s(sH), 1); a.salu('s_lshl_b32', s(sT0), s(sT0), 6); a.salu('s_add_u32', s(sMSU), s(sMSU), s(sT0))
        a.salu('s_and_b32', s(sT0), s(sW), 1); a.salu('s_lshl_b32', s(sT0), s(sT0), 12)
        a.salu('s_add_u32', s(sMSU), s(sMSU), s(sT0))
        a.salu('s_lshl_b32', s(sPL), s(sH), 14); a.salu('s_add_u32', s(sPL), s(sPL), self.wspart - B_LW1)
        a.salu('s_add_u32', s(sT1), s(sPL), 8192)
        a.salu('s_add_u32', s(sPL), s(sPL), s(sT0))
        a.salu('s_and_b32', s(sT0), s(sH), 1); a.salu('s_lshl_b32', s(sT0), s(sT0), 2); a.salu('s_or_b32', s(sT0), s(sT0), s(sW))
        a.salu('s_cmp_eq_u32', s(sT0), 5, nodst=True)
        a.salu('s_cselect_b32', s(sROLE), 0, s(sW))
        a.salu('s_cmp_lg_u32', s(sW), 1, nodst=True)
        a.ins(f's_cbranch_scc1 {self.tag}_notx')
        a.salu('s_mov_b32', s(sSTM), '0xff'); a.salu('s_mov_b32', s(sSTM + 1), '0xff')
        a.salu('s_mov_b32', s(sPL), s(sT1))
        a.salu('s_lshr_b32', s(sMSU), s(sH), 3); a.salu('s_lshl_b32', s(sMSU), s(sMSU), 8)
        a.salu('s_and_b32', s(sT0), s(sH), 2); a.salu('s_lshl_b32', s(sT0), s(sT0), 6); a.salu('s_add_u32', s(sMSU), s(sMSU), s(sT0))
        a.salu('s_and_b32', s(sT0), s(sH), 4); a.salu('s_lshl_b32', s(sT0), s(sT0), 4); a.salu('s_add_u32', s(sMSU), s(sMSU), s(sT0))
        a.salu('s_add_u32', s(sMSU), s(sMSU), 8192)
        a.label(f'{self.tag}_notx')
        a.salu('s_cmp_lg_u32', s(sW), 0, nodst=True)
        a.ins(f's_cbranch_scc1 {self.tag}_notp')
        a.salu('s_min_u32', s(sT0), s(sH), 23); a.salu('s_mul_i32', s(sT0), s(sT0), 384); a.salu('s_add_u32', s(sT0), s(sT0), L_MBUF)
        a.valu('v_add_u32', v(MST), s(sT0), v(LH))
        a.valu('v_mov_b32', v(T1), L_NON)
        a.valu('v_cmp_lt_u32', 'vcc', 23, 'v0')
        a.valu('v_cndmask_b32', v(MST), v(MST), v(T1), 'vcc')
        a.label(f'{self.tag}_notp')
        a.fence()

    def init_exchange(self):
        a = self.a; srd = s(SRD, 4)
        self.tick()
        for i in range(4): a.valu('v_mov_b32', v(28 + i), 1)
        a.salu('s_lshl_b32', s(sT0), s(sH), 14); a.salu('s_add_u32', s(sT0), s(sT0), self.wspart)
        for rd in range(3):
            a.salu('s_add_u32', s(sT1), s(sT0), rd * 4096)
            a.vmem('buffer_store_dwordx4', v(28, 4), v(LH), srd, s(sT1), mods='offen ' + self.fl, load=False, data=v(28, 4))
        a.salu('s_cmp_eq_u32', s(sROLE), 0, nodst=True)
        a.salu('s_cselect_b64', 'exec', 0, s(sSTM, 2))
        a.valu('v_mov_b32', v(27), -1)
        for i in range(4):
            a.salu('s_add_u32', s(sT1), s(sMSU), self.wsmem + i * 16384)
            a.vmem('buffer_store_dword', v(27), v(MST), srd, s(sT1), mods='offen ' + self.fl, load=False)
        a.salu('s_mov_b64', 'exec', -1)
        self.tick()
        a.salu('s_mov_b64', s(68, 2), s(sPTR, 2))
        a.salu('s_mov_b32', s(70), 9216); a.salu('s_mov_b32', s(71), '0x20000')
        a.valu('v_and_b32', v(25), 7, 'v0'); a.valu('v_mul_u32_u24', v(25), 1152, v(25))
        a.valu('v_lshrrev_b32', v(26), 3, 'v0'); a.valu('v_lshl_add_u32', v(25), v(26), 4, v(25))
        a.vmem('buffer_load_dwordx4', v(36, 4), v(25), s(68, 4), 0, mods='offen')
        a.vmem('buffer_load_dwordx4', v(40, 4), v(25), s(68, 4), 0, mods='offen offset:512')
        a.valu('v_bfe_u32', v(25), 'v0', 2, 3); a.valu('v_mul_u32_u24', v(25), 1152, v(25))
        a.valu('v_lshrrev_b32', v(26), 5, 'v0'); a.valu('v_lshl_add_u32', v(25), v(26), 4, v(25))
        a.valu('v_and_b32', v(26), 3, 'v0'); a.valu('v_lshl_add_u32', v(25), v(26), 2, v(25))
        a.vmem('buffer_load_dword', v(44), v(25), s(68, 4), 0, mods='offen offset:1024')

    def init_late(self):
        a = self.a; srd = s(SRD, 4)
        for r in range(36, 45): a.valu('v_min_u32', v(r), -2, v(r))
        a.salu('s_lshl_b32', s(sMEM), s(sH), 16); a.salu('s_add_u32', s(sMEM), s(sMEM), WS_M0)
        a.salu('s_add_u32', s(sT1), s(sMEM), 4096); a.salu('s_add_u32', s(sT2), s(sMEM), 8192)
        a.valu('v_lshrrev_b32', v(45), 2, v(LH))
        a.vmem('buffer_store_dwordx4', v(36, 4), v(LH), srd, s(sMEM), mods='offen ' + self.fl, load=False, data=v(36, 4))
        a.vmem('buffer_store_dwordx4', v(40, 4), v(LH), srd, s(sT1), mods='offen ' + self.fl, load=False, data=v(40, 4))
        a.vmem('buffer_store_dword', v(44), v(45), srd, s(sT2), mods='offen ' + self.fl, load=False)

    def constants(self):
        a = self.a
        C, E, LO, HI = 40, 41, 42, 43
        a.valu('v_bfe_u32', v(C), v(LH), 4, 4)
        a.valu('v_bfe_u32', v(E), v(LH), 8, 1); a.valu('v_lshlrev_b32', v(E), 2, v(E)); a.valu('v_sub_u32', v(E), v(C), v(E))
        a.valu('v_mov_b32', v(LO), '0x3f80'); a.valu('v_mov_b32', v(HI), '0x3f800000')
        for m in range(4):
            lo = 2 * m if m < 2 else 2 * m + 4
            a.valu('v_cmp_eq_u32', 'vcc', lo, v(E)); a.valu('v_cndmask_b32', v(32 + m), 0, v(LO), 'vcc')
            a.valu('v_cmp_eq_u32', 'vcc', lo + 1, v(E)); a.valu('v_cndmask_b32', v(32 + m), v(32 + m), v(HI), 'vcc')
            a.valu('v_cmp_eq_u32', 'vcc', 2 * m, v(C)); a.valu('v_cndmask_b32', v(36 + m), 0, v(LO), 'vcc')
            a.valu('v_cmp_eq_u32', 'vcc', 2 * m + 1, v(C)); a.valu('v_cndmask_b32', v(36 + m), v(36 + m), v(HI), 'vcc')
        a.ds('ds_write_b128', v(MMR), v(32, 4), mods=f'offset:{L_TB - 512 - B_LW1}')
        a.ds('ds_write_b128', v(L16), v(36, 4), mods=f'offset:{L_SEL - B_LW1}')
        for m in range(4): a.valu('v_mov_b32', v(44 + m), s(sNONCE))
        a.valu('v_mov_b32', v(48), L_NON)
        a.ds('ds_write_b128', v(48), v(44, 4))

    def load_lanes(self):
        a = self.a
        GA, GO, GX, TA, TO, TX, T0, T1, T2 = 48, 49, 50, 51, 52, 53, 54, 55, 56
        L = 57
        a.valu('v_lshrrev_b32', v(T0), 6, 'v0')
        a.valu('v_readfirstlane_b32', s(sW), v(T0))
        a.valu('v_and_b32', v(L), 63, 'v0')
        def bit(dst, src, b, sh, acc):
            a.valu('v_bfe_u32', v(T0), v(src), b, 1)
            if acc: a.valu('v_lshl_add_u32', v(dst), v(T0), sh, v(dst))
            else: a.valu('v_lshlrev_b32', v(dst), sh, v(T0))
        bit(GA, L, 2, 13, 0); bit(GA, L, 3, 15, 1); bit(GA, L, 4, 14, 1); bit(GA, L, 5, 16, 1)
        a.valu('v_lshrrev_b32', v(T1), 4, v(L)); a.valu('v_and_b32', v(T1), 2, v(T1)); a.valu('v_xor_b32', v(T1), v(T1), v(L))
        a.valu('v_and_b32', v(T1), 3, v(T1)); a.valu('v_lshl_add_u32', v(GA), v(T1), 4, v(GA))
        bit(TA, L, 2, 6, 0); bit(TA, L, 3, 9, 1); bit(TA, L, 4, 7, 1); bit(TA, L, 5, 12, 1)
        bit(TA, L, 0, 3, 1); bit(TA, L, 1, 4, 1); bit(TA, L, 3, 5, 1)
        a.valu('v_lshrrev_b32', v(T1), 3, v(L)); a.valu('v_mul_u32_u24', v(GO), 1152, v(T1))
        a.valu('v_and_b32', v(T1), 7, v(L)); a.valu('v_lshl_add_u32', v(GO), v(T1), 4, v(GO))
        bit(TO, L, 4, 13, 0); bit(TO, L, 5, 9, 1); bit(TO, L, 2, 7, 1); bit(TO, L, 3, 5, 1)
        a.valu('v_and_b32', v(T1), 3, v(L)); a.valu('v_lshl_add_u32', v(TO), v(T1), 3, v(TO))
        a.valu('v_lshrrev_b32', v(T1), 2, v(L)); a.valu('v_mul_u32_u24', v(GX), 1152, v(T1))
        a.valu('v_and_b32', v(T1), 3, v(L)); a.valu('v_lshl_add_u32', v(GX), v(T1), 4, v(GX))
        bit(TX, L, 4, 12, 0); bit(TX, L, 5, 8, 1); bit(TX, L, 2, 6, 1); bit(TX, L, 3, 5, 1)
        a.valu('v_and_b32', v(T1), 3, v(L)); a.valu('v_lshl_add_u32', v(TX), v(T1), 3, v(TX))
        sWK, sX16 = 66, 93
        a.salu('s_lshl_b32', s(sWK), s(sW), 10)
        a.salu('s_and_b32', s(sX16), s(sW), self.gs - 1); a.salu('s_lshl_b32', s(sX16), s(sX16), 14)
        a.salu('s_and_b32', s(75), s(sW), 4 - self.gs); a.salu('s_lshl_b32', s(75), s(75), 19)
        for r in (TA, TO, TX): a.valu('v_add_u32', v(r), s(sWK), v(r))
        a.valu('v_mov_b32', v(58), v(GA))
        a.salu('s_mov_b32', s(SRDW + 2), 576 * 8192); a.salu('s_mov_b32', s(SRDW + 3), '0x20000')

    def load_sub(self):
        a = self.a; t = self.tag
        a.label(f'{t}_dma')
        a.salu('s_xor_b32', s(74), s(76), s(81))
        a.salu('s_add_u32', 'm0', s(74), s(80))
        a.salu('s_add_u32', s(76), s(76), 4096)
        a.raw(f'    buffer_load_dwordx4 v58, s[{SRDW}:{SRDW+3}], s78 offen lds')
        a.salu('s_add_u32', s(78), s(78), s(79))
        a.salu('s_cmp_lt_u32', s(76), s(77), nodst=True)
        a.ins(f's_cbranch_scc1 {t}_dma')
        a.ins('s_setpc_b64 s[82:83]')

    def load_weights(self):
        a = self.a; t = self.tag
        GA, GO, GX, TA, TO, TX, T0, T1, T2 = 48, 49, 50, 51, 52, 53, 54, 55, 56
        sWK, sCOL, sOB, sX16, sKS = 66, 67, 92, 93, 94
        a.salu('s_lshl_b32', s(sCOL), s(sH), 8); a.salu('s_lshl_b32', s(sT0), s(sW), 6); a.salu('s_add_u32', s(sCOL), s(sCOL), s(sT0))
        a.salu('s_mul_i32', s(sOB), s(sH), 128 * 1152)
        a.salu('s_lshr_b32', s(73), s(sPTR + 2), 8); a.salu('s_add_u32', s(73), s(73), s(sH)); a.salu('s_and_b32', s(73), s(73), 31)
        a.salu('s_bitcmp1_b32', '0xa2222222', s(73), nodst=True)
        a.salu('s_cselect_b32', s(72), 5 if self.cpy else 0, 0)
        a.salu('s_add_u32', s(73), s(73), 1); a.salu('s_lshr_b32', s(73), s(73), 2)
        def switch():
            L = f'{t}_ncp'
            a.salu('s_cmp_eq_u32', s(72), 0, nodst=True)
            a.ins(f's_cbranch_scc1 {L}')
            self.cpy(a)
            a.salu('s_mul_i32', s(74), s(73), 3 * 576 * 256); a.salu('s_add_u32', s(74), s(74), WS_CPY)
            a.salu('s_add_u32', s(sPTR + 2), s(SRD), s(74)); a.salu('s_addc_u32', s(sPTR + 3), s(SRD + 1), 0)
            for i in (4,): a.salu('s_add_u32', s(sPTR + i), s(sPTR + i - 2), 576 * 256); a.salu('s_addc_u32', s(sPTR + i + 1), s(sPTR + i - 1), 0)
            a.salu('s_lshl_b32', s(sCOL), s(sW), 6)
            a.valu('v_and_b32', v(T0), 63, v(GA)); a.valu('v_lshrrev_b32', v(GA), 13, v(GA)); a.valu('v_lshl_add_u32', v(GA), v(GA), 8, v(T0))
            a.lines.append(L + ':')
            cur['va'] = None; cur['st'] = None; cur['m'] = None; cur['sw'] = True
        pW = {'q': sPTR + 2, 'k': sPTR + 4, 'v': sPTR + 6, 'o': sPTR + 8}
        cur = {'m': None, 'va': GA, 'st': None, 'x': None, 'sw': False}
        def call(m, va, step, xm, buf, lo, hi):
            if cur['m'] != m: a.salu('s_mov_b64', s(SRDW, 2), s(pW[m], 2)); cur['m'] = m
            if cur['va'] != va: a.valu('v_mov_b32', v(58), v(va)); cur['va'] = va
            if cur['st'] != step:
                if va == GA and cur['sw']: a.salu('s_lshr_b32', s(79), step, s(72))
                else: a.salu('s_mov_b32', s(79), step)
                cur['st'] = step
            if cur['x'] != xm: a.salu('s_mov_b32', s(81), xm); cur['x'] = xm
            if lo == 0: a.salu('s_add_u32', s(80), s(sWK), buf); a.salu('s_mov_b32', s(76), 0)
            a.salu('s_mov_b32', s(77), hi * 4096)
            a.ins(f's_call_b64 s[82:83], {t}_dma')
            a.vm_seq += hi - lo
        def issue(job):
            kind, m, x, buf = job
            if kind == 'g':
                cur['ng'] = cur.get('ng', 0) + 1
                if self.cpy and cur['ng'] == self.swn + 1 - self.swe: self.cpy(a, True)
                if self.cpy and cur['ng'] == self.swn + 1: switch()
                a.salu('s_xor_b32', s(78), s(75), x * self.gs * 64 * 8192)
                if cur['sw']: a.salu('s_lshr_b32', s(78), s(78), s(72))
                a.salu('s_add_u32', s(78), s(78), s(sCOL))
                for p in range(0, 4 * self.gs, 2): call(m, GA, 16 * 8192, s(sX16), buf, p, p + 2); yield
            elif kind == 's':
                if cur['sw']: a.salu('s_lshr_b32', s(78), 512 * 8192, s(72)); a.salu('s_add_u32', s(78), s(78), s(sCOL))
                else: a.salu('s_add_u32', s(78), s(sCOL), 512 * 8192)
                for p in (0, 2): call(m, GA, 16 * 8192, 0, buf, p, p + 2); yield
            elif kind == 'o':
                a.salu('s_xor_b32', s(sKS), s(sW), x[1]); a.salu('s_mul_i32', s(sKS), s(sKS), 32 * 1152)
                a.salu('s_add_u32', s(sKS), s(sKS), s(sOB))
                a.salu('s_lshl_b32', s(74), s(sW), 7); a.salu('s_add_u32', s(sKS), s(sKS), s(74))
                a.salu('s_add_u32', s(78), s(sKS), x[0] * 512)
                for p in (0, 2): call(m, GO, 8 * 1152, 0, buf, p, p + 2); yield
            else:
                for kk in range(2):
                    a.salu('s_xor_b32', s(sKS), s(sW), 2 * kk); a.salu('s_mul_i32', s(sKS), s(sKS), 32 * 1152)
                    a.salu('s_add_u32', s(sKS), s(sKS), s(sOB))
                    a.salu('s_lshr_b32', s(74), s(sW), 1); a.salu('s_lshl_b32', s(74), s(74), 6)
                    a.salu('s_add_u32', s(sKS), s(sKS), s(74))
                    a.salu('s_add_u32', s(78), s(sKS), 1024)
                    call(m, GX, 16 * 1152, 0, buf, 2 * kk, 2 * kk + 2); yield
        def build(frs, base, offs, buf):
            a.valu('v_add_u32', v(T1), buf, v(base))
            if base == TA: a.valu('v_xor_b32', v(T2), 32, v(T1))
            tmp = {}
            for fi, f in enumerate(frs):
                k, b = ('v', 8 * fi) if f in LDS_ADDR else REGF[f]
                for jp in range(4):
                    alt, off = offs(fi, jp)
                    a.ds('ds_read_b64_tr_b16', R(b + 2 * jp, 2, k), v(T2 if alt else T1), mods=f'offset:{off}')
                self.tick()
            a.wait(lds='all')
            wr = False
            for fi, f in enumerate(frs):
                if f in LDS_ADDR:
                    rg, off = lds_base(LDS_ADDR[f])
                    if rg == LW1:
                        a.ins('s_barrier')
                    a.ds('ds_write_b128', v(rg), v(8 * fi, 4), mods=f'offset:{off}')
                    a.ds('ds_write_b128', v(rg), v(8 * fi + 4, 4), mods=f'offset:{off + 4096}')
                    wr = True
            if wr: a.wait(lds='all')
        oq = lambda fi, jp: (fi, (jp >> 1) * 8192 + (jp & 1) * 256)
        oo = lambda fi, jp: (0, (jp >> 1) * 4096 + (jp & 1) * 256 + fi * 64)
        ox = lambda fi, jp: (0, fi * 8192 + (jp >> 1) * 512 + (jp & 1) * 128)
        def consume(job):
            kind, m, x, buf = job
            if kind == 'g':
                for i in range(self.gs): build([(m, 0, x * self.gs + i), (m, 1, x * self.gs + i)], TA, oq, buf + i * 16384)
            elif kind == 's': build([(m, 0, 8), (m, 1, 8)], TA, oq, buf)
            elif kind == 'o': build([('o', 2 * x[0], x[1]), ('o', 2 * x[0] + 1, x[1])], TO, oo, buf)
            else: build([('o', 4, 0), ('o', 4, 1)], TX, ox, buf)
        jobs = [['o', 'o', x, None] for x in ((0, 0), (0, 1), (0, 2), (0, 3), (1, 0), (1, 1))] + [['s', 'v', 8, None]] + [['g', 'v', x, None] for x in range(4)] + [
                ['g', 'k', 2, None], ['g', 'k', 3, None], ['g', 'q', 2, None], ['g', 'q', 3, None], ['s', 'q', 8, None], ['g', 'q', 1, None],
                ['g', 'q', 0, 64 * K], ['g', 'k', 0, 0], ['g', 'k', 1, 32 * K], ['x', 'o', 0, 144 * K], ['o', 'o', (1, 3), 128 * K], ['o', 'o', (1, 2), 112 * K], ['s', 'k', 8, 80 * K]]
        size = lambda j: self.gs * 16 * K if j[0] == 'g' else 16 * K
        def finals(j):
            if j[:3] == ['g', 'q', 0]: return [(64 * K, 80 * K)]
            if j[3] is not None and j[4]: return [(j[3], j[3] + size(j))]
            return []
        for j in jobs: j.append(j[3] is not None)
        def place(n, done):
            busy = [(jobs[x][3], jobs[x][3] + size(jobs[x])) for x in range(done, n)] + [sp for x in range(n) for sp in finals(jobs[x])]
            if not jobs[n][4]: busy += finals(jobs[n])
            cands = [K * [112, 80, 16, 0, 144, 96, 32, 112, 64, 0, 32, 128, 64, 0, 32, 96, 112, 64, 0, 32, 144, 128, 112, 80][n]]
            for lo in cands:
                if all(b[1] <= lo or b[0] >= lo + size(jobs[n]) for b in busy): return lo
            return None
        tags = {}; S = dict(n=0, gen=None, left=0, j=0, out=0)
        def tick(force=False):
            if S['gen'] is None:
                n = S['n']
                if n >= len(jobs): return False
                lo = place(n, S['j'])
                if lo is None: return False
                if S['out'] + 2 > self.lcap and not force: return False
                jobs[n][3] = lo; S['gen'] = issue(jobs[n][:4]); S['left'] = size(jobs[n]) // 8192
            elif S['out'] + 2 > self.lcap and not force: return False
            next(S['gen']); S['left'] -= 1; S['out'] += 2
            if S['left'] == 0: tags[S['n']] = a.vm_seq; S['n'] += 1; S['gen'] = None
            return True
        self.tick = tick
        pend = list(self.stages); mark = None
        for i in range(self.lpri): tick()
        for j in range(len(jobs)):
            S['j'] = j
            if pend and ((len(pend) > 1 or len(self.stages) < 4) and (mark is None or (j > 0 and tags[j - 1] > mark)) or (len(pend) == 1 and len(self.stages) == 4 and j >= len(jobs) - self.lasy)):
                pend.pop(0)(a); mark = a.vm_seq
            while tick(): pass
            while j not in tags: assert tick(True)
            a.wait(vm=tags[j])
            self.outs = getattr(self, 'outs', []) + [S['out']]
            S['out'] -= size(jobs[j]) // 4096
            consume(jobs[j][:4])
            if self.ptrace: self.ptrace(a, j)
        self.tick = lambda: None
        assert not pend
        self.sched = [(j[:4]) for j in jobs]
        a.ins('s_barrier')

    def prologue(self, st1=None, st2=None, st3=None, late=None):
        a = self.a
        def s0(a):
            if self.ptrace: self.ptrace(a, 25)
            self.addresses(); self.init_exchange()
            if self.ptrace: self.ptrace(a, 26)
        def s1(a):
            self.init_late()
            if st1: st1(a)
        self.stages = [s0, s1] + [x for x in (st2, st3) if x]
        self.load_weights()
        a.wait(vm='all')
        if late: late(a)
        self.constants()
        a.wait(vm='all', lds='all')
        a.fence()

    def loop_init(self):
        a = self.a
        a.salu('s_mov_b32', s(sC1), '0x3e0293ee'); a.salu('s_mov_b32', s(sC1 + 1), s(sC1))
        a.salu('s_mov_b32', s(sNC1), '0x42000000' if not self.gforce else 0)
        a.salu('s_mov_b32', s(sK128), 128)
        a.salu('s_mov_b32', s(sONE), '0x3f803f80'); a.salu('s_mov_b32', s(sONE + 1), s(sONE))
        a.salu('s_mov_b32', s(sHALF), '0x3e803e80'); a.salu('s_mov_b32', s(sHALF + 1), s(sHALF))
        a.salu('s_mov_b32', s(sSTEP), 0)
        a.salu('s_lshl_b32', s(sPF), s(sH), 14); a.salu('s_add_u32', s(sPF), s(sPF), WS_KV)
        a.salu('s_add_u32', s(sAL), s(sPF), (self.nsteps - 1) * 32 * 16384)
        a.salu('s_mul_i32', s(sT0), s(sW), 3072); a.salu('s_add_u32', s(sKX), s(sPF), s(sT0))
        a.salu('s_lshl_b32', s(sPS0), s(sH), 7); a.salu('s_add_u32', s(sPS0), s(sPS0), self.wspart)
        a.salu('s_add_u32', s(sPS1), s(sPS0), 65536)
        a.salu('s_add_u32', s(sLO8), s(sPS0), 4096); a.salu('s_add_u32', s(sLO8 + 1), s(sPS1), 4096)
        a.salu('s_lshl_b32', s(sPSX), s(sH), 7); a.salu('s_add_u32', s(sPSX), s(sPSX), self.wspart + 8192)
        a.salu('s_lshl_b32', s(sT0), s(sH), 12)
        a.salu('s_add_u32', s(sKM), s(sT0), WS_KM + (self.nsteps - 2) * 32 * 4096)
        a.salu('s_add_u32', s(sVM), s(sT0), WS_VM + (self.nsteps - 2) * 32 * 4096)
        a.salu('s_lshl_b32', s(sFV), s(sH), 9); a.salu('s_add_u32', s(sFV), s(sFV), WS_MEMH)
        a.salu('s_lshl_b32', s(sT0), s(sW), 5); a.salu('s_or_b32', s(sT0), s(sT0), s(sH))
        a.salu('s_cmp_lt_u32', s(sT0), 24, nodst=True)
        a.salu('s_cselect_b32', s(sW0M), '0x1ffffff', 0); a.salu('s_mov_b32', s(sW0M + 1), 0)
        a.salu('s_lshl_b32', s(sFL), s(sH), 7); a.salu('s_add_u32', s(sFL), s(sFL), SY_CHF)
        a.salu('s_lshl_b32', s(sT0), s(sW), 2); a.salu('s_add_u32', s(sFL), s(sFL), s(sT0))
        a.salu('s_mov_b32', 'm0', L_DUMP)
        a.valu('v_lshlrev_b32', v(Rq[8]), 2, v(LH))
        for d in range(2):
            a.raw(f'    buffer_load_dword v{Rq[8]}, s[{SRD}:{SRD+3}], s{sPF} offen sc1 lds'); a.pos += 1; a.vm_seq += 1
            a.salu('s_add_u32', s(sPF), s(sPF), 32 * 16384)
        a.valu('v_lshlrev_b32', v(Rq[8]), 2, v(LH))
        a.salu('s_lshl_b32', s(sT0), s(sH), 14); a.salu('s_add_u32', s(sT0), s(sT0), self.wspart)
        a.raw(f'    buffer_load_dword v{Rq[8]}, s[{SRD}:{SRD+3}], s{sT0} offen sc1 lds'); a.pos += 1; a.vm_seq += 1
        a.salu('s_and_b32', s(sT0), s(sH), 3); a.salu('s_lshl_b32', s(sT0), s(sT0), 14); a.salu('s_add_u32', s(sT0), s(sT0), self.wsmem)
        a.raw(f'    buffer_load_dword v{Rq[8]}, s[{SRD}:{SRD+3}], s{sT0} offen sc1 lds'); a.pos += 1; a.vm_seq += 1
        if self.timing:
            for i in range(24): a.salu('s_mov_b32', s(sACC + i), 0)

    def step(self):
        a = self.a; t = self.tag; fl = self.fl; lfl = self.lfl
        srd = s(SRD, 4); T = {}
        R0, R1, R2, R3, R4, R5, R6, R7, R8 = Rq
        ACCS = {'q0': AQ0, 'q1': AQ1, 'k0': AK0, 'k1': AK1, 'v0': AV0, 'v1': AV1}
        where = {}
        M = {}
        def fr(f, dst):
            rg, off = lds_base(LDS_ADDR[f])
            def f0(): where[f] = dst; a.ds('ds_read_b128', v(dst, 4), v(rg), mods=f'offset:{off}')
            def f1(): T[f] = a.ds('ds_read_b128', v(dst + 4, 4), v(rg), mods=f'offset:{off + 4096}')
            return f0, f1
        def xr(i): return {0: (LW0, B_LW0), 1: (LW1, B_LW1), 2: (LW2, B_LW1), 3: (LW3, B_LW1)}[i]
        def mr(sl, dst):
            def f():
                M[sl] = dst
                if sl == 8: T[('m', sl)] = a.ds('ds_read_b128', v(dst, 4), v(L16), mods=f'offset:{L_MBUF + 8192 - B_LW1}')
                else:
                    rg, b = xr(sl & 3)
                    T[('m', sl)] = a.ds('ds_read_b128', v(dst, 4), v(rg), mods=f'offset:{L_MBUF + (sl >> 2) * 4096 - b}')
            return f
        def wl(key): return lambda: a.wait(lds=T[key])
        def wv(key): return lambda: (a.wait(vm=T[key]) if T[key] > a.done['vm'] else None)
        def mm(o, sl):
            f = (o[0], int(o[1]), sl)
            a.mfma(SMF, v(ACCS[o], 4), v(M[sl], 4), v(where[f], 8) if f in LDS_ADDR else freg(f), v(IDX))
        def run(seq):
            for x in seq:
                if isinstance(x, tuple): mm(*x)
                elif x is not None: x()
        def sal(*args, **kw): return lambda: a.salu(*args, **kw)
        def val(*args, **kw): return lambda: a.valu(*args, **kw)
        def ins(x): return lambda: a.ins(x)
        def z2(r, c=0): return val('v_mov_b64', v(r, 2), c)
        def zero(lo, hi):
            for i in range(lo, hi, 2): z2(i)()
        def cvt(d, x, y=None): return val('v_cvt_pk_bf16_f32', v(d), v(x), v(x + 1 if y is None else y))
        def dpp(d, x, bm): return val('v_mov_b32_dpp', v(d), v(x), mods=f'row_ror:8 row_mask:0xf bank_mask:{bm}', rmw=True)
        def mf(op, d, A, B, C): return lambda: a.mfma(op, v(d, 4), v(A, 4 if op == MF32 else 2), v(B, 4 if op == MF32 else 2), 0 if C is None else v(C, 4))
        def st(k): return lambda: self.stamp(k)
        LC, TM, LCW, MC = R8, R8 + 1, R8 + 2, R8 + 3
        def vbr(lab):
            a.ins(f's_cbranch_vccnz {lab}')
        def poll0():
            a.vmem('buffer_load_dwordx4', v(R0, 4), v(LH), srd, s(sMEM), mods='offen ' + lfl); a.nowait(v(R0, 4))
        def poll1():
            a.vmem('buffer_load_dwordx4', v(R1, 4), v(LH), srd, s(sMEM4), mods='offen ' + lfl)
            a.vmem('buffer_load_dword', v(MC), v(LC), srd, s(sMEM8), mods='offen ' + lfl)
            a.nowait(v(R1, 4)); a.nowait(v(MC))
        def prefetch_top():
            run(list(fr(('q', 1, 0), R2)) + list(fr(('k', 0, 0), R4)) + list(fr(('k', 1, 0), R6)))
        def prefetch_av(): run(list(fr(('q', 0, 0), AV0)))
        def offsets():
            a.salu('s_add_u32', s(sMEM4), s(sMEM), 4096); a.salu('s_add_u32', s(sMEM8), s(sMEM), 8192)
        def pubk(r):
            if self.nopub: return
            a.salu('s_mov_b64', 'exec', s(sHI8, 2))
            a.vmem('buffer_store_dwordx4', v(r, 4), v(LH), srd, s(sKM), mods='offen ' + self.pfl, load=False, data=v(r, 4))
            a.salu('s_mov_b64', 'exec', -1)
        def pubv(r):
            if self.nopub: return
            a.vmem('buffer_store_dwordx4', v(r, 4), v(LH), srd, s(sVM), mods='offen ' + self.pfl, load=False, data=v(r, 4))
        def flag(r):
            if self.nopub: return
            a.salu('s_mov_b64', 'exec', 1)
            a.vmem('buffer_store_dword', v(r), 'off', srd, s(sFL), mods='sc1', load=False)
            a.salu('s_mov_b64', 'exec', -1)
        def pf(r):
            if self.nopf: return
            a.raw(f'    buffer_load_dword v{r}, s[{SRD}:{SRD+3}], s{sPF} offen sc1 lds'); a.pos += 1; a.vm_seq += 1

        offsets(); prefetch_top()
        a.salu('s_mov_b32', s(sSPIN), self.spinmax)
        poll0()
        a.raw('.p2align 6')
        a.label(f'{t}_loop')
        a.forget()
        zero(0, 16)
        a.label(f'{t}_loop2')
        st(0)()
        def top():
            prefetch_av()
            a.valu('v_lshrrev_b32', v(LC), 2, v(LH))
            a.valu('v_add_u32', v(LCW), L_MBUF + 8192, v(LC))
            if self.timing: a.salu('s_mov_b32', 's94', s(sSPIN))
            a.salu('s_mov_b32', s(sSPIN), self.spinmax)
            if self.hook: self.hook(a)
        top()
        for i in range(self.ks - 1):
            if self.pA: a.nop(self.pA)
            poll0()
        a.ins('s_waitcnt lgkmcnt(0)')
        a.label(f'{t}_chk0')
        a.ins(f's_waitcnt vmcnt({self.ks - 1})')
        a.lines.append(f'{t}_chk0b:')
        st(1)()
        M[0] = R0; M[4] = R1
        K01, K11 = fr(('k', 0, 1), R2), fr(('k', 1, 1), R4)
        K02, K12 = fr(('k', 0, 2), R2), fr(('k', 1, 2), R4)
        K03, K13 = fr(('k', 0, 3), R2), fr(('k', 1, 3), R4)
        o2 = [sal('s_add_u32', s(sMRS), s(sMEM), s(sMSU)), sal('s_add_u32', s(sT1), s(sMEM), 16384), sal('s_and_b32', s(sT1), s(sT1), 0xffff),
              sal('s_add_u32', s(sT1), s(sT1), self.wsmem), sal('s_add_u32', s(sMST), s(sT1), s(sMSU)), sal('s_and_b32', s(sTAG), s(sSTEP), 1)]
        a.valu('v_max3_u32', v(TM), v(R0), v(R0 + 1), v(R0 + 2)); a.valu('v_max_u32', v(TM), v(TM), v(R0 + 3))
        a.valu('v_cmp_eq_u32', 'vcc', -1, v(TM))
        wA = a.ds('ds_write_b128', v(LW0), v(R0, 4), mods=f'offset:{L_MBUF - B_LW0}')
        vbr(f'{t}_spin0')
        run([('q0', 0), poll1 if self.p1 == 1 else None, ('q1', 0), z2(AV0), ('k1', 0), K01[0], z2(AV0 + 2), lambda: a.wait(lds=wA)])
        a.ins('s_barrier')
        st(2)()
        def kx(i):
            def f(): T['kx', i] = a.vmem('buffer_load_dwordx4', v(R2 + 4 * i, 4), v(LH), srd, s(sKX), mods=f'offen offset:{i*1024} sc1')
            return f
        c1 = [val('v_max3_u32', v(TM), v(R1), v(R1 + 1), v(R1 + 2)), val('v_max3_u32', v(TM), v(TM), v(R1 + 3), v(MC)), val('v_cmp_eq_u32', 'vcc', -1, v(TM))]
        def w1a(): a.ds('ds_write_b128', v(LW0), v(R1, 4), mods=f'offset:{L_MBUF + 4096 - B_LW0}')
        def w1b(): T['wB'] = a.ds('ds_write_b32', v(LCW), v(MC))
        run([mr(1, R6), K01[1], ('k0', 0), K11[0], z2(AV1), ('v0', 0), K11[1], z2(AV1 + 2), mr(2, R7), ('v1', 0), poll1 if self.p1 == 2 else None,
             ('q0', 1), o2[0], o2[1], ('k0', 1), K02[0], ('q1', 1), K02[1], ('k1', 1), K12[0], ('q0', 2), K12[1], ('q1', 2), mr(3, R6),
             ('k0', 2), ins('s_waitcnt vmcnt(0)'), st(3), w1a, ('k1', 2), w1b, c1[0], ('q0', 3), K03[0], c1[1], ('q1', 3), K03[1], c1[2], ('v0', 2), K13[0], ('v1', 2), K13[1]])
        vbr(f'{t}_spin1')
        a.lines.append(f'{t}_go1:')
        run([('q0', 4), wl('wB')])
        a.ins('s_barrier')
        TB = R1
        def tbld(): T['tb'] = a.ds('ds_read_b128', v(TB, 4), v(MMR), mods=f'offset:{L_TB - 512 - B_LW1}')
        def pmld(R1=AQ0):
            if self.nopub: return
            a.salu('s_mov_b64', 'exec', s(sW0M, 2))
            a.ds('ds_read_b128', v(R1, 4), v(MST))
            a.salu('s_mov_b64', 'exec', -1)
        def pubm(R1=AQ0):
            if self.nopub: return
            a._autowait([('v', R1 + i) for i in range(4)], 'pubm')
            L = f'{t}_np{len(a.lines)}'
            a.salu('s_mov_b64', 'exec', s(sW0M, 2))
            if self.pbr: a.ins(f's_cbranch_execz {L}')
            a.vmem('buffer_store_dwordx4', v(R1, 4), v(LH), srd, s(sFV), mods='offen ' + self.pfl, load=False, data=v(R1, 4))
            if self.pbr: a.pos -= 1; a.lines.append(L + ':')
            a.salu('s_mov_b64', 'exec', -1)
        K08, K18 = fr(('k', 0, 8), R6), fr(('k', 1, 8), R6)
        run([mr(5, R7), ('k0', 3), mr(7, R8), ('q1', 4), kx(0), ('k1', 3), mr(6, R6), ('k0', 4), mr(8, R0), ('k1', 4), o2[2], o2[3], ('v0', 4), kx(1), ('v1', 4), o2[4], o2[5],
             ('q0', 5), tbld, ('k0', 5), kx(2), ('q1', 5), ('k1', 5), ('v0', 5), kx(3), ('v1', 5), K08[1],
             ('q0', 6), ('k0', 6), (lambda: pf(PFA)) if self.pfe else None, ('q1', 6), ('k1', 6), ('v0', 6), (lambda: pf(PFA)) if not self.pfe else None, ('v1', 6), K08[0],
             ('q0', 7), ('k0', 7), ('q0', 8), sal('s_cmp_ge_u32', s(sSTEP), self.nsteps - 2, nodst=True), ('q1', 7), lambda: a._autowait([('v', R6)], 'k08'),
             ('k0', 8), K18[0], cvt(AQ0, AQ0), ('k1', 7), K18[1], cvt(AQ0 + 1, AQ0 + 2),
             ('q1', 8), cvt(AQ0 + 2, AK0), ('v0', 7), cvt(AQ0 + 3, AK0 + 2), mf(MF32, AK0, AQ0, TB, None), cvt(AQ1, AQ1), ('k1', 8), mr(1, R6)])
        st(4)()
        run([cvt(AQ1 + 1, AQ1 + 2), ('v1', 7), mr(3, R7), cvt(AQ0, AK0), cvt(AQ1 + 2, AK1), cvt(AQ1 + 3, AK1 + 2), cvt(AQ0 + 1, AK0 + 2), wv(('kx', 3)),
             mf(MF32, AK1, AQ1, TB, None), lambda: pmld(R8), ('v0', 8),
             cvt(AQ0 + 2, AK1), cvt(AQ0 + 3, AK1 + 2)])
        XF0, XF1, U22, U23, U32, U33 = fr(('o', 4, 0), R2), fr(('o', 4, 1), R6), fr(('o', 2, 2), R4), fr(('o', 2, 3), R2), fr(('o', 3, 2), R6), fr(('o', 3, 3), R4)
        run([mf(MF32, AQ1, AQ0, AQ0, None), ins(f's_cbranch_scc1 {t}_last'), lambda: a.lines.append(f'{t}_back:'), mf(MF32, AK0, R3, AQ0, None), XF0[1], mf(MF32, AK1, R2, AQ0, None), XF0[0],
             dpp(AQ1, AQ1 + 2, '0xc'), dpp(AQ1 + 1, AQ1 + 3, '0xc')])
        a.ds('ds_write_b64', v(MMW), v(AQ1, 2))
        a.pos += 2
        run([dpp(AK1 + r, AK0 + r, '0xc') for r in range(4)])
        ws_ = a.ds('ds_write_b128', v(LW0), v(AK1, 4), mods=f'offset:{L_SC - B_LW0}')
        run([('v1', 8), lambda: pubm(R8), ('v0', 1), ('v1', 1)])
        a.wait(lds=ws_)
        a.ins('s_barrier')
        st(5)()
        X0, X1, X2, X3, MA, MB_ = AK1, AK0, AQ1, AQ0, R8, R1
        def xrd(i, d):
            rg, b = xr(i)
            return lambda: a.ds('ds_read_b128', v(d, 4), v(rg), mods=f'offset:{L_SC - b}')
        def mmrd(d, o): return lambda: a.ds('ds_read_b128', v(d, 4), v(MMR), mods=f'offset:{L_MM + o - B_LW1}')
        def mulc(d): return val('v_mul_f32', v(d), s(sC1), v(d))
        def fmc(d, x): return val('v_fmac_f32', v(d), s(sC1), v(x))
        BM, BT = AK0 + 2, AQ1
        AC = [AK1, AQ1, AV0, AV1]; ACX = AK0
        WL, LQ, O0, O1 = R0, AQ0, R1, AV1
        ET, EM = AQ0, MA + 2
        CK = AK0
        F = {0: AQ0, 1: R0, 2: R1, 3: R8}
        def zmf(d): return mf(MF16, d, ZZ, ZZ, None)
        def ex(d, x): return val('v_exp_f32', v(d), v(x))
        def pkf(d, x): return val('v_pk_fma_f32', v(d, 2), v(x, 2), s(sC1, 2), v(d, 2))
        BMT = R8 + 2
        mm_ = [val('v_pk_add_f32', v(MA, 2), v(MA, 2), v(MA + 2, 2)), val('v_pk_add_f32', v(MB_, 2), v(MB_, 2), v(MB_ + 2, 2)), val('v_pk_add_f32', v(MA, 2), v(MA, 2), v(MB_, 2)),
               val('v_pk_mul_f32', v(MA, 2), v(MA, 2), s(sC1, 2))]
        run([mmrd(MA, -512), mmrd(MB_, 0), ('v0', 3), xrd(1, X1), xrd(2, X2), ('v1', 3), xrd(3, X3), XF1[0], XF1[1], mulc(X0), mulc(X0 + 1), mulc(X0 + 2), mulc(X0 + 3),
             z2(WL, s(sHALF, 2)), cvt(AV0, AV0), lambda: a._autowait([('v', MB_)], 'mb')] + mm_ + [ex(EM, MA), ex(EM + 1, MA + 1),
             pkf(X0, X1), pkf(X0 + 2, X1 + 2), cvt(BM, EM), cvt(AV0 + 1, AV0 + 2), lambda: a._autowait([('v', X3)], 'x3'), pkf(X0, X2), pkf(X0 + 2, X2 + 2),
             pkf(X0, X3), dpp(BM + 1, BM, '0xf'), pkf(X0 + 2, X3 + 2)])
        st(6)()
        def soft(first):
            x_ = [cvt(AV0 + 2, AV1), cvt(AV0 + 3, AV1 + 2), z2(WL + 2, s(sONE, 2))] if first else [None] * 3
            if not first: run([ex(EM, MA), ex(EM + 1, MA + 1), cvt(BM, EM), dpp(BM + 1, BM, '0xf')])
            run([ex(ET, X0), mf(MF16, O0, AV0, BM, None), ex(ET + 1, X0 + 1), x_[0], ex(ET + 2, X0 + 2), x_[1], cvt(BT, ET), ex(ET + 3, X0 + 3), mf(MF16, O1, AV0 + 2, BM, None), x_[2],
                 cvt(BT + 1, ET + 2), dpp(BT + 2, BT, '0xf'), val('v_max3_f32', v(CK), f'|v{X0}|', f'|v{X0+1}|', f'|v{X0+2}|'), st(7) if first else None,
                 mf(MF32, LQ, WL, BM, None), dpp(BT + 3, BT + 1, '0xf'), val('v_max3_f32', v(CK), v(CK), f'|v{X0+3}|', f'|v{MA}|'), val('v_max_f32_e64', v(CK), v(CK), f'|v{MA+1}|'),
                 mf(MF32, O0, R4, BT, O0), val('v_cmp_nge_f32', 'vcc', s(sNC1), v(CK)),
                 mf(MF32, O1, R5, BT, O1)])
        soft(True)
        a.ins(f's_cbranch_scc1 {t}_stash')
        a.lines.append(f'{t}_back2:')
        vbr(f'{t}_guard')
        a.lines.append(f'{t}_norm:')
        run([val('v_add_f32_dpp', v(LQ), v(LQ), v(LQ), mods='row_ror:8 row_mask:0xf bank_mask:0xf'), val('v_rcp_f32', v(LQ), v(LQ)), zmf(AC[0])]
            + [val('v_mul_f32', v(O0 + r), v(O0 + r), v(LQ)) for r in range(4)]
            + [val('v_mul_f32_dpp', v(O0 + r), v(O1 + r), v(LQ), mods='row_ror:8 row_mask:0xf bank_mask:0xc', rmw=True) for r in range(4)]
            + [cvt(O0, O0), cvt(O0 + 1, O0 + 2), zmf(AC[1])])
        wo = a.ds('ds_write_b64', v(OW), v(O0, 2))
        def guard():
            a.label(f'{t}_guard')
            a.forget(); a.nop(8)
            M1, M2 = BM, BM + 1
            a.valu('v_max3_f32', v(M1), v(X0), v(X0 + 1), v(X0 + 2))
            a.valu('v_max3_f32', v(M2), v(X0 + 3), v(MA), v(MA + 1))
            a.valu('v_max_f32', v(M1), v(M1), v(M2))
            a.valu('v_max_f32_dpp', v(M1), v(M1), v(M1), mods='row_ror:8 row_mask:0xf bank_mask:0xf')
            for sw in ('v_permlane32_swap_b32', 'v_permlane16_swap_b32'):
                a.valu('v_mov_b32', v(M2), v(M1)); a.valu(sw, v(M1), v(M2)); a.valu('v_max_f32', v(M1), v(M1), v(M2))
            for d in (X0, X0 + 1, X0 + 2, X0 + 3, MA, MA + 1): a.valu('v_sub_f32', v(d), v(d), v(M1))
            soft(False)
            a.fence()
            a.ins(f's_branch {t}_norm')
        def E(u, i):
            def f():
                fg = ('o', u, i)
                a.mfma(SMF, v(ACX if u == 4 else AC[u], 4), v(F[2 * i if u == 4 else i], 4), v(where[fg], 8) if fg in LDS_ADDR else freg(fg), v(IDX))
            return f
        OA = [None, OA1, OA2, OA3]
        run([zmf(ACX), lambda: a.ds('ds_read_b128', v(F[0], 4), v(OR0)), zmf(AC[2]), U22[0], zmf(AC[3]), U22[1]])
        a.wait(lds=wo)
        a.ins('s_barrier')
        st(8)()
        if self.xnop: a.nop(self.xnop)
        def frd(i): return lambda: a.ds('ds_read_b128', v(F[i], 4), v(OA[i]))
        def tag(r): return val('v_and_or_b32', v(r), v(r), -2, s(sTAG))
        def fin(u):
            r = ACX if u == 4 else AC[u]
            so = [sPS0, sPS1, sLO8, sLO8 + 1, sPSX][u]
            return [cvt(r, r), cvt(r + 1, r + 2), tag(r), lambda: a.vmem('buffer_store_dwordx2', v(r, 2), v(PSX if u == 4 else PST), srd, s(so), mods='offen ' + fl, load=False)]
        P0 = [R4, R5, R6, R7]
        def shot(P):
            for i in range(4):
                a.vmem('buffer_load_dwordx4', v(P[i], 4), v(L16), srd, s(sPL), mods=f'offen offset:{1024 * i} ' + lfl)
            a.nowait(v(P[0], 16))
        def shot0():
            if not self.ins0: return
            if self.dE: a.nop(self.dE)
            a.ins(f's_cbranch_scc1 {t}_ns0')
            p = a.pos
            for r in P0: a.valu('v_not_b32', v(r), s(sTAG))
            shot(P0)
            a.pos = p
            a.lines.append(f'{t}_ns0:')
        f0, f1, f2, f3, fx = [fin(u) for u in range(5)]
        def aw(*regs): return lambda: a._autowait([('v', r) for r in regs], 'aw')
        if self.eo == 2:
          run([frd(1), frd(2), frd(3), E(0, 0), E(1, 0), E(4, 0), U23[0],
             aw(F[2]), E(0, 1), U23[1], E(0, 2), E(0, 3), E(1, 1), E(1, 2), f0[0], E(1, 3), f0[2], f0[1], E(4, 1), f0[3], U32[0], E(2, 2), U32[1], f1[0], f1[2], f1[1], E(2, 0), f1[3], st(9), U33[0],
             E(2, 1), U33[1], fx[0], E(2, 3), fx[2], fx[1], E(3, 0), fx[3], E(3, 1), f2[0], aw(R4 + 4), E(3, 2), f2[2], f2[1], E(3, 3), f2[3], sal('s_cmp_lg_u32', s(sW), 2, nodst=True), f3[0], f3[2], f3[1], f3[3]])
        else:
          run([frd(1), frd(2), frd(3), E(0, 0), E(1, 0), E(4, 0), U23[0], E(2, 0), U23[1],
             aw(F[2]), E(0, 1), E(4, 1), U32[0], E(0, 2), U32[1], E(0, 3), fx[0], E(2, 2), U33[0], fx[2], E(1, 1), U33[1], fx[1], E(1, 2), fx[3], f0[0], E(1, 3), f0[2], E(2, 1), f0[1],
             E(2, 3), f0[3], f1[0], aw(R4 + 4), E(3, 0), f1[2], E(3, 1), f1[1], E(3, 2), f1[3], st(9), f2[0], E(3, 3), f2[2], f2[1], f2[3], sal('s_cmp_lg_u32', s(sW), 2, nodst=True), f3[0], f3[2], f3[1], f3[3]])
        st(10)()
        P = [AQ0, AK0, AQ1, AK1]; RD, XT, NEG, SELR = R1, AV1, AV1 + 1, R8
        def finish():
            a.fence()
            a.ins(f's_branch {t}_loop')
        def publish():
            a.valu('v_cvt_pk_bf16_f32', v(RD), v(RD), v(RD + 2))
            a.salu('s_mov_b64', 'exec', s(sSTM, 2))
            a.vmem('buffer_store_dword', v(RD), v(MST), srd, s(sMST), mods='offen ' + fl, load=False)
            st(11)()
        def reset():
            a.vmem('buffer_store_dword', v(NEG), v(MST), srd, s(sMRS), mods='offen ' + fl, load=False)
            a.salu('s_mov_b64', 'exec', -1)
        def idle(pre=True):
            a.ds('ds_read_b128', v(SELR, 4), v(L16), mods=f'offset:{L_SEL - B_LW1}')
            if pre: prefetch_top()
            a.salu('s_add_u32', s(sSTEP), s(sSTEP), 1); a.salu('s_mov_b32', s(sMEM), s(sT1))
            a.salu('s_add_u32', s(sKX), s(sKX), 32 * 16384); a.salu('s_add_u32', s(sPF), s(sPF), 32 * 16384); a.salu('s_min_u32', s(sPF), s(sPF), s(sAL))
            offsets(); a.valu('v_mov_b32', v(NEG), -1)
            a.salu('s_add_u32', s(sFV), s(sFV), 24 * 512)
            a.salu('s_mov_b32', s(sT0), 1)
            if self.dA: z2(R0, -1)()
        def reduce(lab, k, P, y=0):
            a.label(f'{t}_chk{lab}')
            a.valu('v_mov_b32', v(XT), 0)
            for i in range(4):
                a.ins(f's_waitcnt vmcnt({4 * k - 1 - i + y})')
                chk = [val('v_bitop3_b32', v(XT), v(XT), v(r), s(sTAG), mods='bitop3:0xf6') for r in (P[i], P[i] + 2)]
                if k > 1: run(chk)
                a.mfma(MF32, v(RD, 4), v(P[i], 4), v(SELR, 4), 0 if i == 0 else v(RD, 4))
                if k == 1: run(chk)
            a.valu('v_and_b32', v(XT), s(sT0), v(XT))
            a.valu('v_cmp_ne_u32', 'vcc', 0, v(XT))
            a.ins(f's_cbranch_vccnz {t}_spin{lab}')
            a.pos += 4
            a.valu('v_permlane32_swap_b32', v(RD), v(RD + 2)); a.valu('v_permlane32_swap_b32', v(RD + 1), v(RD + 3))
            a.valu('v_add_f32', v(RD), v(RD), v(RD + 2)); a.valu('v_add_f32', v(RD + 2), v(RD + 1), v(RD + 3))
        def retry(lab, P):
            a.label(f'{t}_spin{lab}')
            a.forget()
            shot(P)
            a.salu('s_sub_u32', s(sSPIN), s(sSPIN), 1)
            a.salu('s_cmp_lt_i32', s(sSPIN), 0, nodst=True)
            a.salu('s_cselect_b32', s(sT0), 0, 1)
            if lab == 'G' and self.dA: poll0()
            a.ins(f's_branch {t}_chk{lab}')
        a.ins(f's_cbranch_scc1 {t}_w013')
        a.fence()
        if self.d0: a.nop(self.d0)
        shot(P0)
        idle(False); zero(0, 16)
        if self.k0 > 1: a.nop(self.pF); shot(P0)
        reduce('F', self.k0, P0); publish(); reset()
        if self.k0 == 1: prefetch_top()
        a.nop(self.dB); poll0()
        if self.k0 > 1: a.ins('s_waitcnt vmcnt(1)'); prefetch_top()
        a.fence()
        a.ins(f's_branch {t}_loop2')
        a.label(f'{t}_w013')
        a.forget()
        idle()
        a.salu('s_cmp_eq_u32', s(sROLE), 0, nodst=True)
        a.ins(f's_cbranch_scc1 {t}_w0')
        a.salu('s_cmp_eq_u32', s(sW), 1, nodst=True)
        if self.dX: a.nop(self.dX)
        a.ins(f's_cbranch_scc1 {t}_sx')
        a.nop(self.d1 - self.dX)
        a.lines.append(f'{t}_sx:')
        shot(P)
        if self.k1 > 1: a.nop(self.pG); shot(P)
        if self.dA: a.nop(self.dA); poll0()
        reduce('G', self.k1, P, 1 if self.dA else 0)
        a.salu('s_cmp_eq_u32', s(sW), 3, nodst=True)
        a.ins(f's_cbranch_scc1 {t}_w3')
        a.valu('v_mov_b32', v(RD + 1), v(RD)); a.valu('v_mov_b32', v(RD + 3), v(RD + 2))
        a.valu('v_permlane16_swap_b32', v(RD), v(RD + 1)); a.valu('v_permlane16_swap_b32', v(RD + 2), v(RD + 3))
        a.valu('v_add_f32', v(RD), v(RD), v(RD + 1)); a.valu('v_add_f32', v(RD + 2), v(RD + 2), v(RD + 3))
        a.label(f'{t}_w3')
        if self.k1 > 1: a.ins('s_cbranch_execz .+4') if 0 else None
        publish(); reset()
        poll0()
        if self.dA:
            zero(0, 16); top(); a.ins('s_waitcnt vmcnt(3) lgkmcnt(0)'); a.fence(); a.ins(f's_branch {t}_chk0b')
        else: finish()
        a.label(f'{t}_w0')
        a.forget()
        zero(0, 16)
        if self.w0hook: self.w0hook(a)
        a.nop(self.dZ); poll0()
        a.ins(f's_branch {t}_loop2')
        retry('F', P0); retry('G', P)
        guard()
        a.label(f'{t}_stash')
        a.forget()
        pubv(AV0)
        a.salu('s_add_u32', s(sVM), s(sVM), 32 * 4096)
        a.nop(2)
        a.ins(f's_branch {t}_back2')
        a.label(f'{t}_spin0')
        a.forget()
        poll0()
        a.salu('s_sub_u32', s(sSPIN), s(sSPIN), 1)
        a.salu('s_cmp_lt_i32', s(sSPIN), 0, nodst=True)
        a.ins(f's_cbranch_scc0 {t}_chk0')
        a.ins('s_waitcnt vmcnt(0)')
        for r in range(4): a.valu('v_min_u32', v(R0 + r), -2, v(R0 + r))
        a.ins(f's_branch {t}_chk0')
        a.label(f'{t}_spin1')
        a.forget()
        poll1()
        a.salu('s_sub_u32', s(sSPIN), s(sSPIN), 1)
        a.salu('s_cmp_lt_i32', s(sSPIN), 0, nodst=True)
        a.ins('s_waitcnt vmcnt(0)')
        run(c1 + [w1a, w1b, ins('s_waitcnt lgkmcnt(0)')])
        a.ins(f's_cbranch_scc1 {t}_go1')
        a.ins(f's_cbranch_vccnz {t}_spin1')
        a.ins(f's_branch {t}_go1')
        a.label(f'{t}_last')
        a.forget(); a.nop(2)
        a.salu('s_cmp_eq_u32', s(sSTEP), self.nsteps - 1, nodst=True)
        a.ins(f's_cbranch_scc1 {t}_last2')
        pubk(AQ0)
        a.salu('s_add_u32', s(sKM), s(sKM), 32 * 4096)
        a.salu('s_cmp_eq_u32', 0, 0, nodst=True)
        a.ins(f's_branch {t}_back')
        a.label(f'{t}_last2')
        M.update({8: R0, 1: R6, 3: R7})
        a.ins('s_waitcnt lgkmcnt(0)')
        run([lambda: pubk(AQ0), sal('s_add_u32', s(sT0), s(sNONCE), self.nsteps), val('v_mov_b32', v(R2), s(sT0)), ('v1', 8)] + [(o, sl) for sl in (1, 3) for o in ('v0', 'v1')]
            + [cvt(AV0, AV0), cvt(AV0 + 1, AV0 + 2), cvt(AV0 + 2, AV1), cvt(AV0 + 3, AV1 + 2), lambda: pubv(AV0)])
        a.ins('s_waitcnt vmcnt(0)')
        flag(R2)
```

```python
import sys
sys.path.insert(0, 'gen2')
from asmfw import Asm
import chain2 as C, qkv2 as Q, attn2 as A, ssm as S
from chain2 import s, v
from build_ct import kd
NAME = 'concat_heads__memory_aug_recurrent_mem_tr__ssm_conv_s4d__prompt'
def start(a, name):
    a.raw(f'.text\n.globl {name}\n.p2align 8\n.type {name},@function\n{name}:')
def ws_srd(a, p):
    a.salu('s_mov_b32', 's4', s(p)); a.salu('s_mov_b32', 's5', s(p + 1))
    a.salu('s_mov_b32', 's6', C.WS_SIZE); a.salu('s_mov_b32', 's7', '0x20000')

sNONCE = C.sNONCE
DBG = 96
SY_ATT = C.WS_SYNC + 65536
D_NONCE, D_HELP, D_CH, D_ARR, D_SSM, D_T2, D_ATT, D_WF, D_OP = 64, 4, 128, 132, 8, 12, 16, 20, 136
D_XF2 = 24
D_MODE, D_CH2, D_ARR2, D_GO2 = 140, 208, 212, 216
XCC = [0]
NWARM = [5]
XD = [0]
OPS = [4]
DV = [70]
HDELAY = [0]
TMO = [1 << 17]
KVR = 2
CPS = [0]
D_POOL = 32
D_P2 = 160
NCH = [32]
FX = [0]
BOFF = [24]
ATS = [3]
MSL = [4]

DIAG = [0]
IFL = ['']
def diag(a, idx, val=None):
    if not DIAG[0]: return
    a.fence()
    a.ins('s_memrealtime s[90:91]'); a.ins('s_waitcnt lgkmcnt(0)')
    if val is not None: a.salu('s_mov_b32', 's90', val)
    a.salu('s_mov_b64', 's[100:101]', 'exec'); a.salu('s_mov_b64', 'exec', 1)
    a.valu('v_mov_b32', v(DV[0]), 's90')
    a.salu('s_lshl_b32', 's91', 's2', 8); a.salu('s_add_u32', 's91', 's91', 203 << 20)
    a.vmem('buffer_store_dword', v(DV[0]), 'off', 's[4:7]', 's91', mods=f'offset:{4 * idx}', load=False)
    a.salu('s_mov_b64', 'exec', 's[100:101]')
    a.nop(2)

LD = [0]
def ldiag(a, word, vreg, op='buffer_atomic_umax'):
    if not LD[0]: return
    a.fence()
    a.ins('s_memrealtime s[90:91]'); a.ins('s_waitcnt lgkmcnt(0)')
    a.salu('s_lshl_b32', 's91', 's2', 8); a.salu('s_add_u32', 's91', 's91', 203 << 20)
    a.valu('v_mov_b32', v(vreg), 's90')
    a.valu('v_cmp_eq_u32', 'vcc', 0, 'v0' if vreg > 200 else v(C.LH))
    a.salu('s_mov_b64', 'exec', 'vcc')
    a.vmem('buffer_store_dword', v(vreg), 'off', 's[4:7]', 's91', mods=f'offset:{4 * word}', load=False)
    a.salu('s_mov_b64', 'exec', -1)
    a.nop(2)

def scan(a, base, p2):
    _tk[0] += 1
    a.valu('v_and_b32', 'v1', 63, 'v0'); a.valu('v_min_u32', 'v1', 6, 'v1'); a.valu('v_lshlrev_b32', 'v2', 2, 'v1')
    a.salu('s_cmp_lg_u32', 's32', 0, nodst=True)
    a.valu('v_mov_b32', 'v251', 163832)
    a.ins(f's_cbranch_scc1 sw{_tk[0]}')
    a.vmem('buffer_load_dword', 'v3', 'v2', s(DBG, 4), 0, mods=f'offen offset:{base} sc1')
    a.valu('v_mov_b32', 'v4', 24 if p2 else 32)
    if p2: a.valu('v_cmp_gt_u32', 'vcc', 4, 'v1'); a.valu('v_cndmask_b32', 'v4', 'v4', 22, 'vcc', mods='')
    a.wait(vm='all')
    a.valu('v_cmp_lt_u32', 'vcc', 'v3', 'v4')
    a.salu('s_ff1_i32_b64', 's40', 'vcc')
    a.valu('v_mov_b32', 'v250', 's40')
    a.ds('ds_write_b32', 'v251', 'v250')
    a.wait(lds='all')
    a.label(f'sw{_tk[0]}')
    a.ins('s_barrier')
    a.ds('ds_read_b32', 'v252', 'v251')
    a.wait(lds='all')
    a.valu('v_readfirstlane_b32', 's33', 'v252')
    a.ins('s_barrier')
    a.nop(2)

def dsel(a, idx):
    if not DIAG[0]: return
    L = f'ds{len(a.lines)}'
    a.salu('s_cmp_ge_u32', 's36', 192, nodst=True)
    a.ins(f's_cbranch_scc1 {L}')
    diag(a, idx)
    a.ins(f's_branch {L}x')
    a.label(L)
    diag(a, idx + 5)
    a.label(L + 'x')

def trace(a, base, sidx, k):
    if not DIAG[0]: return
    a.fence()
    a.ins('s_memrealtime s[90:91]'); a.ins('s_waitcnt lgkmcnt(0)')
    a.salu('s_lshl_b32', 's92', s(sidx), 4); a.salu('s_add_u32', 's92', 's92', (201 << 20) + base + 4 * k)
    a.valu('v_mov_b32', 'v249', 's90')
    a.salu('s_mov_b64', 'exec', 1)
    a.vmem('buffer_store_dword', 'v249', 'off', 's[4:7]', 's92', load=False)
    a.salu('s_mov_b64', 'exec', -1)
    a.nop(2)

_tk = [0]
def get_nonce(a, vd):
    _tk[0] += 1
    L = f'gn{_tk[0]}'
    a.fence()
    a.salu('s_mov_b32', 's88', 1 << 22)
    a.label(L)
    a.salu('s_cmp_lg_u32', s(sNONCE), 0, nodst=True)
    a.ins(f's_cbranch_scc1 {L}x')
    a.vmem('buffer_load_dword', v(vd), 'off', s(DBG, 4), 0, mods=f'offset:{D_NONCE} sc1')
    a.salu('s_sub_u32', 's88', 's88', 1)
    a.ins(f's_cbranch_scc1 {L}x')
    a.ins('s_waitcnt vmcnt(0)')
    a.valu('v_readfirstlane_b32', s(sNONCE), v(vd))
    a.nop(2)
    a.ins(f's_branch {L}')
    a.label(f'{L}x')

def ticket(a, dst, off, vb=250, mid=None):
    _tk[0] += 1
    L = f'tk{_tk[0]}'
    a.fence()
    a.salu('s_mov_b32', 's37', off)
    a.valu('v_mov_b32', v(vb), 1)
    a.valu('v_mov_b32', v(vb + 1), 163832)
    a.valu('v_cmp_eq_u32', 'vcc', 0, 'v0')
    a.salu('s_and_saveexec_b64', 's[38:39]', 'vcc')
    a.ins(f's_cbranch_execz {L}' + ('m' if mid else ''))
    a.vmem('buffer_atomic_add', v(vb), 'off', s(DBG, 4), 's37', mods='sc0')
    if mid:
        a.label(L + 'm')
        a.salu('s_mov_b64', 's[38:39]', 'exec')
        a.salu('s_mov_b64', 'exec', -1)
        mid()
        a.salu('s_mov_b64', 'exec', 's[38:39]')
        a.ins(f's_cbranch_execz {L}')
    a.wait(vm='all')
    a.ds('ds_write_b32', v(vb + 1), v(vb))
    a.wait(lds='all')
    a.label(L)
    a.salu('s_mov_b64', 'exec', -1)
    a.ins('s_barrier')
    a.ds('ds_read_b32', v(vb + 2), v(vb + 1))
    a.wait(lds='all')
    a.valu('v_readfirstlane_b32', s(dst), v(vb + 2))
    a.ins('s_barrier')
    a.nop(4)

def flag_store(a, soff):
    _tk[0] += 1
    a.ins('s_waitcnt vmcnt(0)')
    a.ins('s_barrier')
    a.valu('v_mov_b32', 'v250', s(sNONCE))
    a.valu('v_cmp_eq_u32', 'vcc', 0, 'v0')
    a.salu('s_and_saveexec_b64', 's[38:39]', 'vcc')
    a.ins(f's_cbranch_execz fs{_tk[0]}')
    a.vmem('buffer_store_dword', 'v250', 'off', 's[4:7]', soff, mods='sc1', load=False)
    a.label(f'fs{_tk[0]}')
    a.salu('s_mov_b64', 'exec', -1)

def flags_wait(a, soff, lo, hi, va, vd, sleep=2):
    _tk[0] += 1
    L = f'fw{_tk[0]}'
    a.fence()
    a.valu('v_mbcnt_lo_u32_b32', v(va), -1, 0)
    a.valu('v_mbcnt_hi_u32_b32', v(va), -1, v(va))
    a.valu('v_min_u32', v(va), hi - lo - 1, v(va))
    a.valu('v_lshlrev_b32', v(va), 2, v(va))
    a.salu('s_mov_b32', 's88', 1 << 22)
    a.label(L)
    a.vmem('buffer_load_dword', v(vd), v(va), 's[4:7]', soff, mods=f'offen offset:{4 * lo} sc1')
    a.salu('s_sub_u32', 's88', 's88', 1)
    a.ins(f's_cbranch_scc1 {L}x')
    a.ins('s_waitcnt vmcnt(0)')
    a.valu('v_cmp_ne_u32', 'vcc', s(sNONCE), v(vd))
    a.ins(f's_cbranch_vccz {L}x')
    a.ins(f's_sleep {sleep}')
    a.salu('s_cmp_gt_u32', 's88', (1 << 22) - BOFF[0], nodst=True)
    a.ins(f's_cbranch_scc1 {L}')
    a.ins('s_sleep 40')
    a.ins(f's_branch {L}')
    a.label(f'{L}x')

def coarse_wait(a, sseg, vd, shp):
    _tk[0] += 1
    L = f'cw{_tk[0]}'
    a.fence()
    a.salu('s_mov_b32', 's88', 1 << 16)
    a.label(L)
    a.vmem('buffer_load_dword', v(vd), 'off', 's[4:7]', s(shp), mods='offset:128 sc1')
    a.ins('s_waitcnt vmcnt(0)')
    a.valu('v_readfirstlane_b32', 's42', v(vd))
    a.salu('s_sub_u32', 's42', 's42', s(sNONCE))
    a.salu('s_cmp_gt_u32', 's42', 64, nodst=True)
    a.salu('s_cselect_b32', 's42', 0, 's42')
    a.salu('s_add_u32', 's42', 's42', 2)
    a.salu('s_cmp_ge_u32', 's42', s(sseg), nodst=True)
    a.ins(f's_cbranch_scc1 {L}x')
    a.salu('s_sub_u32', 's88', 's88', 1)
    a.ins(f's_cbranch_scc1 {L}x')
    a.salu('s_sub_u32', 's42', s(sseg), 's42')
    a.salu('s_min_u32', 's42', 's42', 6)
    a.label(f'{L}s')
    a.ins('s_sleep 24')
    a.salu('s_sub_u32', 's42', 's42', 1)
    a.salu('s_cmp_lg_u32', 's42', 0, nodst=True)
    a.ins(f's_cbranch_scc1 {L}s')
    a.ins(f's_branch {L}')
    a.label(f'{L}x')

def prog_wait(a, lab, va, vd, vneed, sbase, sleep, scnt='s40'):
    a.salu('s_mov_b32', scnt, 1 << 22)
    a.label(lab)
    a.vmem('buffer_load_dword', v(vd), v(va), 's[4:7]', sbase, mods='offen sc1')
    a.salu('s_sub_u32', scnt, scnt, 1)
    a.ins(f's_cbranch_scc1 {lab}_go')
    a.ins('s_waitcnt vmcnt(0)')
    a.valu('v_subrev_u32', v(vd), vneed, v(vd))
    a.valu('v_cmp_lt_u32', 'vcc', 64, v(vd))
    a.ins(f's_cbranch_vccz {lab}_go')
    a.ins(f's_sleep {sleep}')
    a.ins(f's_branch {lab}')
    a.label(f'{lab}_go')

def k_main(a, hd=0, hg=0, warm=0, msl=4, cp=1, wt=1, qw=9, qx=0, kvr=2, **kw):
    global KVR
    KVR = kvr
    n = NAME + '_kernel'
    DV[0] = 59
    start(a, n)
    a.salu('s_cmp_ge_u32', 's2', 256, nodst=True)
    a.ins('s_cbranch_scc1 L_exit')
    a.ins('s_load_dwordx4 s[84:87], s[0:1], 120')
    a.ins('s_load_dwordx16 s[48:63], s[0:1], 0')
    a.valu('v_lshrrev_b32', 'v1', 6, 'v0')
    a.valu('v_readfirstlane_b32', 's32', 'v1')
    a.ins('s_getreg_b32 s3, hwreg(HW_REG_XCC_ID)')
    a.salu('s_and_b32', 's3', 's3', 15)
    a.salu('s_cmp_lg_u32', 's32', 3, nodst=True)
    a.ins('s_cbranch_scc1 L_nowarm')
    a.ins('s_getpc_b64 s[44:45]')
    a.label('L_pcw')
    a.valu('v_and_b32', 'v1', 63, 'v0')
    a.valu('v_lshlrev_b32', 'v1', 7, 'v1')
    a.salu('s_cmp_lg_u32', 's3', XCC[0], nodst=True)
    a.salu('s_cselect_b32', 's33', 'L_helper-L_pcw', 0)
    a.valu('v_add_u32', 'v1', 's33', 'v1')
    for i in range(NWARM[0]):
        if i == 2: a.ins('s_cbranch_scc0 L_nowarm')
        a.valu('v_min_u32', 'v2', 'L_exit-L_pcw', 'v1')
        a.vmem('global_load_dword', v(240 + i), 'v2', 's[44:45]')
        a.valu('v_add_u32', 'v1', 8192, 'v1')
    a.label('L_nowarm')
    a.forget()
    a.ins('s_waitcnt lgkmcnt(0)')
    ws_srd(a, 86)
    a.salu('s_mov_b32', s(DBG), 's84'); a.salu('s_mov_b32', s(DBG + 1), 's85')
    a.salu('s_mov_b32', s(DBG + 2), 256); a.salu('s_mov_b32', s(DBG + 3), '0x20000')
    a.salu('s_mov_b32', s(sNONCE), 0)
    diag(a, 0)
    a.salu('s_cmp_lg_u32', 's3', XCC[0], nodst=True)
    a.ins('s_cbranch_scc1 L_helper')
    lanes = C.Chain(a, 'x', gs=kw.get('gs', 2))
    ticket(a, C.sH, D_CH, mid=lanes.load_lanes)
    a.salu('s_cmp_ge_u32', s(C.sH), NCH[0], nodst=True)
    a.ins('s_cbranch_scc1 L_helper')
    a.label('L_chain')
    diag(a, 14)
    ldiag(a, 0, 250)
    diag(a, 15, s(C.sH))
    if DIAG[0]:
        a.ins('s_getreg_b32 s89, hwreg(HW_REG_HW_ID)'); diag(a, 12, 's89')
    def kvaddr(a, va, sb):
        a.salu('s_lshr_b32', s(sb), s(C.sH), 1); a.salu('s_lshl_b32', s(sb), s(sb), 8); a.salu('s_add_u32', s(sb), s(sb), Q.SY_PRG)
        a.valu('v_bfe_u32', v(va), v(C.LH), 4, 6); a.valu('v_min_u32', v(va), 11, v(va)); a.valu('v_lshlrev_b32', v(va), 2, v(va))
    def kvwait(a, lab, need, va, vd):
        kvaddr(a, va, 92)
        a.salu('s_add_u32', 's93', s(sNONCE), need)
        prog_wait(a, lab, va, vd, 's93', 's92', 2, scnt='s94')
    def hook(a):
        if not DIAG[0]: return
        a.salu('s_lshl_b32', 's88', s(C.sH), 2); a.salu('s_add_u32', 's88', 's88', s(C.sW))
        a.salu('s_cmp_lg_u32', 's88', 0, nodst=True)
        a.ins('s_cbranch_scc1 L_nohook')
        a.ins('s_memrealtime s[90:91]'); a.ins('s_memtime s[72:73]'); a.ins('s_waitcnt lgkmcnt(0)')
        a.valu('v_mov_b32', v(C.Rq[1]), 's90'); a.valu('v_mov_b32', v(C.Rq[1] + 1), 's72')
        a.salu('s_lshl_b32', 's88', s(C.sSTEP), 3); a.salu('s_add_u32', 's88', 's88', 200 << 20)
        a.vmem('buffer_store_dwordx2', v(C.Rq[1], 2), 'off', 's[4:7]', 's88', load=False)
        a.label('L_nohook')
        a.fence()
    def chain_body(tag, safe):
        for i in range(5): a.salu('s_mov_b64', s(C.sPTR + 2 * i, 2), s(C.sPTR + 2 * i + 2, 2))
        def cpywait(a, early=False):
            if early:
                a.salu('s_lshl_b32', 's89', 's73', 7); a.salu('s_add_u32', 's89', 's89', C.SY_CPY)
                a.valu('v_min_u32', 'v33', 7, 'v57'); a.valu('v_lshlrev_b32', 'v33', 2, 'v33')
                a.salu('s_cmp_eq_u32', 's72', 0, nodst=True)
                a.ins(f's_cbranch_scc1 {tag}_cpe')
                a.ins(f'buffer_load_dword v34, off, s[{DBG}:{DBG+3}], 0 offset:{D_NONCE} sc1')
                a.ins('buffer_load_dword v35, v33, s[4:7], s89 offen sc1')
                a.lines.append(f'{tag}_cpe:')
                CPS[0] = a.vm_seq
                return
            q0, d0 = a.vm_seq, dict(a.done)
            a.wait(vm=CPS[0])
            a.valu('v_readfirstlane_b32', s(sNONCE), 'v34')
            a.valu('v_cmp_ne_u32', 'vcc', 'v34', 'v35')
            a.salu('s_cmp_eq_u32', s(sNONCE), 0, nodst=True)
            a.ins(f's_cbranch_scc1 {tag}_cps')
            a.ins(f's_cbranch_vccz {tag}_cpo')
            a.label(f'{tag}_cps')
            get_nonce(a, 34)
            flags_wait(a, 's89', 0, 8, 33, 35, sleep=1)
            a.label(f'{tag}_cpo')
            a.vm_seq, a.done = q0, d0
        def w0hook(a):
            if not safe: hook(a)
            a.salu('s_cmp_lg_u32', s(C.sSTEP), 6 * KVR - 2, nodst=True)
            a.ins(f's_cbranch_scc1 {tag}_nokv')
            kvwait(a, f'{tag}_kv1', Q.DONE, C.Rq[1], C.Rq[1] + 1)
            ldiag(a, 5, C.Rq[1])
            a.label(f'{tag}_nokv')
        if safe: ch = C.Chain(a, tag, fl='sc1', lfl='sc1', xoff=C.XOFF, d0=200, d1=200, dB=100, dZ=400, ks=1, w0hook=w0hook, spinmax=1 << 20)
        else: ch = C.Chain(a, tag, cpy=cpywait if cp else None, ptrace=(lambda a, j: diag(a, 16 + j)), w0hook=w0hook, spinmax=1 << 20, **kw)
        if safe: ch.load_lanes()
        arr, mode = (D_ARR2, D_GO2) if safe else (D_ARR, D_MODE)
        def st1(a):
            a.valu('v_mov_b32', 'v46', 1)
            a.salu('s_mov_b64', 'exec', 1)
            a.vmem('buffer_atomic_add', 'v46', 'off', s(DBG, 4), 0, mods=f'offset:{arr} sc0')
            a.salu('s_mov_b64', 'exec', -1)
        def st2(a):
            a.valu('v_readfirstlane_b32', 's41', 'v46')
            a.valu('v_mov_b32', 'v36', 1); a.valu('v_mov_b32', 'v37', 0)
            a.salu('s_cmp_eq_u32', 's41', 127, nodst=True)
            a.salu('s_cselect_b64', 'exec', 1, 0)
            a.vmem('buffer_atomic_cmpswap', 'v[36:37]', 'off', s(DBG, 4), 0, mods=f'offset:{mode}', load=False)
            a.salu('s_mov_b64', 'exec', -1)
        def st3(a):
            a.vmem('buffer_load_dword', 'v38', 'off', s(DBG, 4), 0, mods=f'offset:{mode} sc1')
            a.vmem('buffer_load_dword', 'v39', 'off', s(DBG, 4), 0, mods=f'offset:{D_NONCE} sc1')
            kvaddr(a, 40, 84)
            a.vmem('buffer_load_dword', 'v41', 'v40', 's[4:7]', 's84', mods='offen sc1')
        def late(a):
            a.valu('v_readfirstlane_b32', s(sNONCE), 'v39')
            a.valu('v_readfirstlane_b32', 's85', 'v38')
            get_nonce(a, 24)
            a.salu('s_add_u32', 's93', s(sNONCE), KVR)
            a.valu('v_subrev_u32', 'v41', 's93', 'v41')
            a.valu('v_cmp_lt_u32', 's[86:87]', 64, 'v41')
        ch.prologue(st1, st2, st3, late)
        diag(a, 2)
        a.salu('s_cmp_eq_u32', 's85', 1, nodst=True)
        a.ins(f's_cbranch_scc1 {tag}_run')
        a.salu('s_mov_b32', 's40', (1 << 24) if safe else TMO[0])
        a.label(f'{tag}_startpoll')
        a.vmem('buffer_load_dword', 'v3', 'off', s(DBG, 4), 0, mods=f'offset:{mode} sc1')
        a.wait(vm='all')
        a.valu('v_readfirstlane_b32', 's85', 'v3')
        a.salu('s_cmp_eq_u32', 's85', 1, nodst=True)
        a.ins(f's_cbranch_scc1 {tag}_run')
        if not safe:
            a.salu('s_cmp_eq_u32', 's85', 2, nodst=True)
            a.ins(f's_cbranch_scc1 {tag}_leave')
        a.ins('s_sleep 1')
        a.salu('s_sub_u32', 's40', 's40', 1)
        a.ins(f's_cbranch_scc0 {tag}_startpoll')
        if safe: a.ins('s_endpgm')
        else:
            a.valu('v_mov_b32', 'v4', 2); a.valu('v_mov_b32', 'v5', 0)
            a.salu('s_mov_b64', 'exec', 1)
            a.vmem('buffer_atomic_cmpswap', 'v[4:5]', 'off', s(DBG, 4), 0, mods=f'offset:{D_MODE}', load=False)
            a.salu('s_mov_b64', 'exec', -1)
            a.salu('s_mov_b32', 's40', 1 << 20)
            a.ins(f's_branch {tag}_startpoll')
            a.label(f'{tag}_leave')
            a.valu('v_lshrrev_b32', 'v0', 4, v(C.LH))
            a.salu('s_mov_b32', 's32', s(C.sW))
            a.ins('s_load_dwordx16 s[48:63], s[0:1], 0')
            a.ins('s_waitcnt lgkmcnt(0)')
            a.ins('s_branch L_helper')
        a.label(f'{tag}_run')
        diag(a, 3)
        a.salu('s_cmp_eq_u64', 's[86:87]', 0, nodst=True)
        a.ins(f's_cbranch_scc1 {tag}_kv0_go')
        kvwait(a, f'{tag}_kv0', KVR, 2, 3)
        ch.loop_init()
        diag(a, 4)
        ldiag(a, 4, 24)
        if not safe and DIAG[0]: print(ch.outs, [(j[1], j[3] // 1024) for j in ch.sched])
        ch.step()
        diag(a, 5)
        ldiag(a, 6, 24)
        a.ins('s_endpgm')
        ch.load_sub()
    chain_body('cf', False)
    a.label('L_chain_safe')
    a.forget()
    chain_body('cs', True)
    def mode_check(lab):
        a.salu('s_mov_b32', 's40', 4 * TMO[0])
        a.label(f'{lab}_w')
        a.vmem('buffer_load_dword', 'v250', 'off', s(DBG, 4), 0, mods=f'offset:{D_MODE} sc1')
        a.wait(vm='all')
        a.valu('v_readfirstlane_b32', 's41', 'v250')
        a.salu('s_cmp_lg_u32', 's41', 0, nodst=True)
        a.ins(f's_cbranch_scc1 {lab}_known')
        a.salu('s_sub_u32', 's40', 's40', 1)
        a.ins(f's_cbranch_scc1 {lab}_force')
        a.ins('s_sleep 2')
        a.ins(f's_branch {lab}_w')
        a.label(f'{lab}_force')
        a.valu('v_mov_b32', 'v250', 2); a.valu('v_mov_b32', 'v251', 0)
        a.salu('s_mov_b64', 'exec', 1)
        a.vmem('buffer_atomic_cmpswap', 'v[250:251]', 'off', s(DBG, 4), 0, mods=f'offset:{D_MODE}', load=False)
        a.salu('s_mov_b64', 'exec', -1)
        a.ins('s_waitcnt vmcnt(0)')
        a.salu('s_mov_b32', 's40', 4 * TMO[0])
        a.ins(f's_branch {lab}_w')
        a.label(f'{lab}_known')
    a.forget()
    a.label('L_helper')
    DV[0] = 249
    a.forget()
    a.ins('s_load_dwordx16 s[64:79], s[0:1], 64')
    a.salu('s_sub_u32', 's33', 's3', XCC[0] + 1); a.salu('s_and_b32', 's33', 's33', 3 if FX[0] else 7)
    a.label('L_pool')
    a.salu('s_lshl_b32', 's35', 's33', 2); a.salu('s_add_u32', 's35', 's35', D_POOL)
    ticket(a, 34, 's35')
    a.salu('s_mov_b32', 's36', 's33')
    a.salu('s_or_b32', 's33', 's34', 's32')
    a.salu('s_cmp_lg_u32', 's33', 0, nodst=True)
    a.ins('s_cbranch_scc1 L_helper1')
    a.ins('s_memrealtime s[90:91]'); a.ins('s_waitcnt lgkmcnt(0)')
    a.salu('s_lshl_b32', 's90', 's90', 8); a.salu('s_or_b32', 's90', 's90', 1)
    a.valu('v_mov_b32', 'v250', 's90'); a.valu('v_mov_b32', 'v251', 0)
    a.salu('s_mov_b64', 'exec', 1)
    a.vmem('buffer_atomic_cmpswap', 'v[250:251]', 'off', s(DBG, 4), 0, mods=f'offset:{D_NONCE}', load=False)
    a.salu('s_mov_b64', 'exec', -1)
    a.label('L_helper1')
    if warm:
        a.salu('s_cmp_lg_u32', s(sNONCE), 0, nodst=True)
        a.ins('s_cbranch_scc1 L_nowm')
        a.salu('s_sub_u32', 's37', 's35', D_POOL); a.salu('s_lshl_b32', 's37', 's37', 3); a.salu('s_add_u32', 's37', 's37', 's34')
        a.salu('s_mul_i32', 's37', 's37', 21504)
        a.salu('s_mov_b32', 's14', 576 * 8192); a.salu('s_mov_b32', 's15', '0x20000')
        a.salu('s_mov_b32', 'm0', 155648)
        if warm == 1:
            a.valu('v_lshlrev_b32', 'v1', 6, 'v0'); a.valu('v_add_u32', 'v2', 16384, 'v1'); a.valu('v_min_u32', 'v2', 21504 - 64, 'v2')
        else: a.valu('v_lshlrev_b32', 'v1', 4, 'v0')
        for p in (56, 54, 52, 58):
            a.salu('s_mov_b64', 's[12:13]', s(p, 2))
            if warm == 1:
                a.raw('    buffer_load_dword v1, s[12:15], s37 offen lds'); a.raw('    buffer_load_dword v2, s[12:15], s37 offen lds')
            else:
                for i in range(6):
                    a.salu('s_add_u32', 's38', 's37', min(i * 4096, 21504 - 4096))
                    a.raw('    buffer_load_dwordx4 v1, s[12:15], s38 offen lds')
        a.label('L_nowm')
    if hd:
        a.salu('s_mul_i32', 's37', 's36', 171); a.salu('s_lshr_b32', 's37', 's37', 10); a.salu('s_mul_i32', 's37', 's37', 6); a.salu('s_sub_u32', 's37', 's36', 's37')
        a.salu('s_cmp_lt_u32', 's37', hg, nodst=True); a.ins('s_cbranch_scc1 L_nhd')
        for i in range(hd): a.ins('s_sleep 127')
        a.label('L_nhd')
    diag(a, 9)
    a.salu('s_cmp_ge_u32', 's34', 32, nodst=True)
    a.ins('s_cbranch_scc1 L_qkv_next')
    a.salu('s_cmp_ge_u32', 's36', 7, nodst=True)
    a.ins('s_cbranch_scc1 L_qkv_next')
    a.salu('s_max_u32', 's37', 's36', 4); a.salu('s_sub_u32', 's37', 's37', 4); a.salu('s_mul_i32', 's37', 's37', 6)
    a.salu('s_lshl_b32', 's38', 's36', 1); a.salu('s_add_u32', 's38', 's38', 's37')
    a.salu('s_cmp_lt_u32', 's36', 4, nodst=True); a.salu('s_cselect_b32', 's39', 2, 8)
    a.salu('s_mul_i32', 's36', 's36', 30); a.salu('s_sub_u32', 's36', 's36', 's37')
    a.salu('s_cmp_lt_u32', 's34', 's39', nodst=True)
    a.ins('s_cbranch_scc1 L_copy')
    a.salu('s_add_u32', 's36', 's36', 's34'); a.salu('s_sub_u32', 's36', 's36', 's39')
    a.salu('s_mul_i32', 's37', 's36', 171); a.salu('s_lshr_b32', 's37', 's37', 10)
    a.salu('s_mul_i32', 's38', 's37', 6); a.salu('s_sub_u32', 's36', 's36', 's38')
    a.salu('s_lshl_b32', 's36', 's36', 5); a.salu('s_add_u32', 's36', 's36', 's37')
    a.ins('s_branch L_job')
    a.label('L_copy')
    if 1:
        a.salu('s_add_u32', 's36', 's38', 's34')
        a.salu('s_mul_i32', 's36', 's36', 11); a.salu('s_and_b32', 's36', 's36', 31)
        a.salu('s_cmp_ge_u32', 's36', 18 if cp else 0, nodst=True)
        a.ins('s_cbranch_scc1 L_qkv_next')
        a.salu('s_mul_i32', 's39', 's36', 57); a.salu('s_lshr_b32', 's39', 's39', 9)
        a.salu('s_mul_i32', 's37', 's39', 9); a.salu('s_sub_u32', 's37', 's36', 's37')
        a.salu('s_sub_u32', 's33', 1, 's39')
        a.salu('s_mul_i32', 's36', 's37', 3); a.salu('s_add_u32', 's36', 's36', 's33')
        a.salu('s_lshl_b32', 's38', 's37', 2); a.salu('s_add_u32', 's38', 's38', 1); a.salu('s_min_u32', 's38', 's38', 31)
        a.salu('s_lshr_b32', 's39', 's52', 8); a.salu('s_sub_u32', 's38', 's38', 's39'); a.salu('s_and_b32', 's38', 's38', 31)
        a.salu('s_lshl_b32', 's38', 's38', 8)
        a.salu('s_cmp_eq_u32', 's33', 1, nodst=True); a.salu('s_cselect_b64', 's[12:13]', 's[54:55]', 's[52:53]')
        a.salu('s_mov_b32', 's14', 576 * 8192); a.salu('s_mov_b32', 's15', '0x20000')
        a.valu('v_lshrrev_b32', 'v1', 4, 'v0'); a.valu('v_lshlrev_b32', 'v1', 13, 'v1'); a.valu('v_and_b32', 'v2', 15, 'v0'); a.valu('v_lshl_add_u32', 'v1', 'v2', 4, 'v1')
        a.valu('v_lshlrev_b32', 'v2', 4, 'v0')
        a.salu('s_mul_i32', 's39', 's36', 576 * 256); a.salu('s_add_u32', 's39', 's39', C.WS_CPY)
        tg = []
        for i in range(36):
            tg.append(a.vmem('buffer_load_dwordx4', v(8 + 4 * i, 4), 'v1', 's[12:15]', 's38', mods='offen'))
            a.salu('s_add_u32', 's38', 's38', 16 * 8192)
        for i in range(36):
            if i == 0: a.wait(vm='all')
            a.vmem('buffer_store_dwordx4', v(8 + 4 * i, 4), 'v2', 's[4:7]', 's39', mods='offen sc1', load=False, data=v(8 + 4 * i, 4))
            a.salu('s_add_u32', 's39', 's39', 4096)
        get_nonce(a, 3)
        a.salu('s_lshl_b32', 's37', 's37', 7); a.salu('s_lshl_b32', 's36', 's33', 2); a.salu('s_add_u32', 's36', 's36', 's32')
        a.salu('s_lshl_b32', 's36', 's36', 2); a.salu('s_add_u32', 's37', 's37', 's36'); a.salu('s_add_u32', 's37', 's37', C.SY_CPY)
        a.valu('v_mov_b32', 'v3', s(sNONCE))
        a.ins('s_waitcnt vmcnt(0)')
        a.salu('s_mov_b64', 'exec', 1)
        a.vmem('buffer_store_dword', 'v3', 'off', 's[4:7]', 's37', mods='sc1', load=False)
        a.salu('s_mov_b64', 'exec', -1)
        diag(a, 44)
    a.label('L_qkv_next')
    ticket(a, 36, D_HELP)
    a.salu('s_add_u32', 's36', 's36', 192)
    a.salu('s_cmp_ge_u32', 's36', 320, nodst=True)
    a.ins('s_cbranch_scc1 L_ssm_next')
    a.label('L_job')
    a.salu('s_and_b32', s(Q.sHh), 's36', 15); a.salu('s_lshl_b32', s(Q.sHh), s(Q.sHh), 1)
    a.salu('s_bfe_u32', s(Q.sM), 's36', '0x10004')
    a.salu('s_lshr_b32', s(Q.sSEG), 's36', 5)
    a.salu('s_mul_i32', 's33', s(Q.sM), 6); a.salu('s_add_u32', 's33', 's33', s(Q.sSEG))
    a.salu('s_add_u32', s(Q.sM), s(Q.sM), 1)
    a.salu('s_lshr_b32', 's37', 's36', 4); a.salu('s_sub_u32', 's38', 's37', 12)
    a.salu('s_cmp_ge_u32', 's36', 192, nodst=True)
    a.salu('s_cselect_b32', s(Q.sM), 0, s(Q.sM))
    a.salu('s_cselect_b32', s(Q.sSEG), 's38', s(Q.sSEG))
    a.salu('s_cselect_b32', 's33', 's37', 's33')
    a.salu('s_cselect_b32', s(Q.sSTR), 8, 6)
    Q.qkv_role(a, 'qk', 48, 52, sNONCE, 33, late=lambda a: (get_nonce(a, 25), dsel(a, 8)), qw=qw, qx=qx)
    dsel(a, 6)
    a.salu('s_cmp_ge_u32', 's36', 64, nodst=True)
    a.ins('s_cbranch_scc1 L_qkv_next')
    a.salu('s_lshr_b32', 's33', 's36', 5)
    Q.memkv_role(a, 'mk', sNONCE, 33, slp=msl)
    diag(a, 1)
    a.ins('s_endpgm')
    a.label('L_ssm_next')
    ticket(a, S.sD0, D_SSM)
    a.salu('s_cmp_ge_u32', s(S.sD0), 144, nodst=True)
    a.ins('s_cbranch_scc1 L_phase2')
    a.salu('s_lshl_b32', s(S.sD0), s(S.sD0), 2)
    a.forget()
    S.ssm_job(a, 'ss', 62, 76)
    diag(a, 7)
    a.ins('s_branch L_ssm_next')
    sWv, sCB = 32, 33
    a.label('L_phase2')
    a.forget()
    scan(a, D_POOL, False)
    a.salu('s_cmp_lt_u32', 's33', 7, nodst=True)
    a.ins('s_cbranch_scc1 L_pool')
    if wt > 1:
        a.salu('s_cmp_lg_u32', 's32', 0, nodst=True); a.ins('s_cbranch_scc1 L_nwb'); a.ins('buffer_wbl2 sc1'); a.ins('s_waitcnt vmcnt(0)'); a.label('L_nwb')
    get_nonce(a, 250)
    mode_check('mc2')
    a.salu('s_cmp_eq_u32', 's41', 1, nodst=True)
    a.ins('s_cbranch_scc1 L_phase2b')
    ticket(a, C.sH, D_CH2)
    a.salu('s_cmp_lt_u32', s(C.sH), 32, nodst=True)
    a.ins('s_cbranch_scc1 L_chain_safe')
    a.label('L_phase2b')
    a.salu('s_mov_b32', 's8', 's76'); a.salu('s_mov_b32', 's9', 's77')
    a.salu('s_mov_b32', 's10', 2048 * 2304); a.salu('s_mov_b32', 's11', '0x20000')
    a.salu('s_sub_u32', 's33', 's3', XCC[0] + 1); a.salu('s_and_b32', 's33', 's33', 3 if FX[0] else 7)
    a.salu('s_cmp_eq_u32', 's33', 7, nodst=True)
    a.ins('s_cbranch_scc1 L_p2scan')
    a.label('L_p2take')
    a.salu('s_lshl_b32', 's35', 's33', 2); a.salu('s_add_u32', 's35', 's35', D_P2)
    ticket(a, 34, 's35')
    a.salu('s_cmp_lt_u32', 's33', 4, nodst=True); a.salu('s_cselect_b32', 's36', 4, 6)
    a.salu('s_cmp_lt_u32', 's34', 's36', nodst=True)
    a.ins('s_cbranch_scc1 L_att0')
    a.salu('s_sub_u32', 's34', 's34', 's36')
    a.salu('s_cmp_lt_u32', 's34', 18, nodst=True)
    a.ins('s_cbranch_scc1 L_op_start')
    a.label('L_p2scan')
    scan(a, D_P2, True)
    a.salu('s_cmp_lt_u32', 's33', 7, nodst=True)
    a.ins('s_cbranch_scc1 L_p2take')
    a.ins('s_branch L_done')
    a.label('L_att0')
    a.salu('s_mul_i32', 's36', 's34', 7); a.salu('s_mul_i32', 's37', 's34', 3); a.salu('s_add_u32', 's37', 's37', 12)
    a.salu('s_cmp_lt_u32', 's34', 4, nodst=True); a.salu('s_cselect_b32', 's34', 's36', 's37')
    a.salu('s_add_u32', 's34', 's34', 's33')
    a.salu('s_cmp_ge_u32', 's34', 32, nodst=True)
    a.ins('s_cbranch_scc1 L_done')
    a.label('L_att_next')
    a.forget()
    a.salu('s_lshr_b32', s(A.sSEG), 's34', 3)
    a.salu('s_and_b32', s(A.sHh), 's34', 7)
    a.salu('s_lshl_b32', s(A.sHh), s(A.sHh), 2)
    a.salu('s_add_u32', s(A.sHh), s(A.sHh), s(sWv))
    a.salu('s_lshr_b32', 's36', s(A.sHh), 1); a.salu('s_lshl_b32', 's36', 's36', 8); a.salu('s_add_u32', 's36', 's36', Q.SY_PRG)
    a.salu('s_mul_i32', 's37', s(A.sSEG), 43); a.salu('s_lshr_b32', 's37', 's37', 8)
    a.salu('s_mul_i32', 's41', 's37', 6); a.salu('s_sub_u32', 's41', s(A.sSEG), 's41')
    a.valu('v_and_b32', 'v1', 63, 'v0')
    a.valu('v_mul_u32_u24', 'v2', 6, 'v1'); a.valu('v_add_u32', 'v2', 's41', 'v2')
    a.valu('v_mov_b32', 'v4', 's37')
    a.salu('s_and_b32', 's41', s(A.sSEG), 7); a.salu('s_add_u32', 's41', 's41', 12)
    a.salu('s_lshr_b32', 's37', s(A.sSEG), 3)
    a.valu('v_mov_b32', 'v5', 's41'); a.valu('v_mov_b32', 'v6', 's37')
    a.valu('v_cmp_lt_u32', 'vcc', 1, 'v1')
    a.valu('v_cndmask_b32', 'v2', 'v2', 'v5', 'vcc'); a.valu('v_cndmask_b32', 'v4', 'v4', 'v6', 'vcc')
    a.valu('v_lshlrev_b32', 'v2', 2, 'v2')
    a.valu('v_add3_u32', 'v4', 'v4', s(sNONCE), 1)
    prog_wait(a, 'L_aw1', 2, 3, 'v4', 's36', 4)
    def mid(a):
        a.fence()
        trace(a, 0, 34, 0)
        coarse_wait(a, A.sSEG, 199, 36)
        trace(a, 0, 34, 1)
        a.salu('s_and_b32', 's37', s(A.sSEG), 1); a.salu('s_lshl_b32', 's37', 's37', 2); a.salu('s_add_u32', 's37', 's37', 's36'); a.salu('s_add_u32', 's37', 's37', 128)
        a.salu('s_add_u32', 's41', s(A.sSEG), s(sNONCE)); a.salu('s_add_u32', 's41', 's41', 1)
        a.salu('s_lshl_b32', 's42', s(A.sHh), 7); a.salu('s_add_u32', 's42', 's42', C.SY_CHF)
        a.salu('s_cmp_ge_u32', s(A.sSEG), 62, nodst=True)
        a.salu('s_cselect_b32', 's37', 's42', 's37')
        a.salu('s_cselect_b32', 's42', 12, 8)
        a.valu('v_lshlrev_b32', 'v198', 2, 'v0'); a.valu('v_and_b32', 'v198', 's42', 'v198')
        prog_wait(a, 'L_aw2', 198, 199, 's41', 's37', ATS[0])
        trace(a, 0, 34, 2)
    A.attn_job(a, 'at', ld_fl='sc1', st_fl='sc1', mid=mid)
    a.salu('s_lshr_b32', 's40', 's34', 1)
    a.salu('s_lshl_b32', 's40', 's40', 7)
    a.salu('s_and_b32', 's41', s(A.sHh), 7)
    a.salu('s_lshl_b32', 's41', 's41', 2)
    a.salu('s_add_u32', 's40', 's40', 's41')
    a.salu('s_add_u32', 's40', 's40', SY_ATT)
    a.valu('v_mov_b32', 'v250', s(sNONCE))
    a.ins('s_waitcnt vmcnt(0)')
    a.salu('s_mov_b64', 'exec', 1)
    a.vmem('buffer_store_dword', 'v250', 'off', 's[4:7]', 's40', mods='sc1', load=False)
    a.salu('s_mov_b64', 'exec', -1)
    trace(a, 0, 34, 3)
    a.salu('s_add_u32', 's34', 's34', 32)
    a.salu('s_cmp_lt_u32', 's34', 512, nodst=True)
    a.fence()
    a.ins('s_cbranch_scc1 L_att_next')
    a.ins('s_branch L_done')
    a.label('L_op_start')
    a.forget()
    a.salu('s_mov_b32', s(A.sSEG), 's33')
    a.salu('s_mov_b32', s(sCB), 's34')
    A.oproj_load(a, 58, sCB, sWv)
    a.label('L_op_seg')
    a.salu('s_lshr_b32', 's43', s(A.sSEG), 1)
    a.salu('s_add_u32', 's43', 's43', 1)
    a.salu('s_min_u32', 's43', 's43', 63)
    a.salu('s_and_b32', 's36', s(sCB), 15); a.salu('s_lshl_b32', 's36', 's36', 8); a.salu('s_add_u32', 's36', 's36', Q.SY_PRG)
    a.salu('s_lshl_b32', 's94', s(sCB), 7); a.salu('s_add_u32', 's94', 's94', s(A.sSEG))
    trace(a, 65536, 94, 0)
    coarse_wait(a, 43, 3, 36)
    trace(a, 65536, 94, 1)
    a.salu('s_lshr_b32', 's89', s(A.sSEG), 1)
    a.salu('s_lshl_b32', 's89', 's89', 2)
    a.salu('s_add_u32', 's89', 's89', s(sWv))
    a.salu('s_lshl_b32', 's89', 's89', 7)
    a.salu('s_add_u32', 's89', 's89', SY_ATT)
    flags_wait(a, 's89', 0, 8, 2, 3, sleep=OPS[0])
    trace(a, 65536, 94, 2)
    A.oproj_seg(a, 'os', 8, sCB, sWv, A.sSEG, ofl='sc1' if wt else '')
    trace(a, 65536, 94, 3)
    a.salu('s_add_u32', s(A.sSEG), s(A.sSEG), 7)
    a.salu('s_cmp_ge_u32', s(A.sSEG), 128, nodst=True)
    a.ins('s_cbranch_scc1 L_done')
    a.ins('s_barrier')
    a.ins('s_branch L_op_seg')
    a.label('L_done')
    diag(a, 10)
    ldiag(a, 7, 250)
    a.label('L_exit')
    a.ins('s_endpgm')
    a.raw(kd(n, 512, 256))

def build(**kw):
    hdr = open(f'/code/{NAME}.s.ref').read().split('; Override launch geometry')[0]
    a = Asm()
    a.raw(hdr.rstrip())
    a.raw('; @launch grid=(256,1,1) block=(256,1,1) lds=163840')
    a.raw('.amdgcn_target "amdgcn-amd-amdhsa--gfx950"')
    k_main(a, **kw)
    return a.text()

if __name__ == '__main__':
    kw = dict(d0=72, dB=15, ks=2, pA=14, d1=70, dX=40, dZ=168, pbr=0)
    open('one.s', 'w').write(build(**kw))
    for spec in sys.argv[1:]:
        k2 = dict((x.split('=')[0], int(x.split('=')[1])) for x in spec.split(','))
        open('one_' + spec.replace('=', '').replace(',', '_') + '.s', 'w').write(build(**{**kw, **k2}))
    XCC[0] = 9; TMO[0] = 1 << 8; FX[0] = 1
    open('one_safe.s', 'w').write(build(**kw))
    XCC[0] = 0; TMO[0] = 1 << 8; NCH[0] = 31; FX[0] = 0
    open('one_safe2.s', 'w').write(build(**kw))
    TMO[0] = 1 << 17; NCH[0] = 32
    LD[0] = 1
    open('one_l.s', 'w').write(build(**kw))
    for spec in sys.argv[1:]:
        k2 = dict((x.split('=')[0], int(x.split('=')[1])) for x in spec.split(','))
        open('one_' + spec.replace('=', '').replace(',', '_') + '_l.s', 'w').write(build(**{**kw, **k2}))
    LD[0] = 0
    DIAG[0] = 1
    for spec in sys.argv[1:]:
        k2 = dict((x.split('=')[0], int(x.split('=')[1])) for x in spec.split(','))
        open('one_' + spec.replace('=', '').replace(',', '_') + '_d.s', 'w').write(build(**{**kw, **k2}))
    open('one_d.s', 'w').write(build(**kw))
    print('ok')
```

```python
from asmfw import Asm, R

MB = 1 << 20
WS_KV = 0
WS_Q = 32 * MB
WS_O = 48 * MB
WS_MEM = 64 * MB
WS_PART = 64 * MB + 65536
XOFF = 1 * MB
WS_KM = 68 * MB
WS_VM = 77 * MB
WS_M0 = 88 * MB
WS_MEMH = 86 * MB
WS_CPY = 92 * MB
WS_SYNC = 120 * MB
SY_CHF = WS_SYNC + 16384
SY_CPY = WS_SYNC + 24576
WS_SIZE = 256 * MB

K = 1024
L_MISC = 96 * K
L_MBUF = L_MISC
L_TB = L_MISC + 9216
L_DUMP = L_MISC + 9728
L_NON = L_MISC + 9984
L_SEL = L_MISC + 10240
L_MM = L_MISC + 11264
L_SC = L_MISC + 12288
L_OB = L_MBUF
B_LW0, B_LW1 = 56 * K, 96 * K

LDS_ADDR = {}
for _t in range(4):
    LDS_ADDR[('k', 0, _t)] = _t * 16 * K
    LDS_ADDR[('k', 1, _t)] = _t * 16 * K + 8 * K
LDS_ADDR[('q', 0, 0)] = 64 * K; LDS_ADDR[('q', 1, 0)] = 72 * K
LDS_ADDR[('k', 0, 8)] = 80 * K; LDS_ADDR[('k', 1, 8)] = 88 * K
LDS_ADDR[('o', 2, 2)] = 112 * K; LDS_ADDR[('o', 3, 2)] = 120 * K
LDS_ADDR[('o', 2, 3)] = 128 * K; LDS_ADDR[('o', 3, 3)] = 136 * K
LDS_ADDR[('o', 4, 0)] = 144 * K; LDS_ADDR[('o', 4, 1)] = 152 * K

AQ0, AK0, AQ1, AK1, AV0, AV1 = 0, 4, 8, 12, 16, 20
Rq = [24 + 4 * i for i in range(9)]
IDX, LH, LW0, LW1, LW2, L16, PST, PSX, OR0, MST, MMW, LW3 = range(60, 72)
ZZ, OA1, OA2, OA3, OW, MMR, PFA = 72, 74, 75, 76, 77, 78, 79
VW0 = 80

def all_frags():
    fr = [(m, t, sl) for m in 'qkv' for sl in range(9) for t in range(2)]
    fr += [('o', u, k) for u in range(4) for k in range(4)] + [('o', 4, 0), ('o', 4, 1)]
    return fr
REGF = {}
_res = [f for f in all_frags() if f not in LDS_ADDR]
assert len(_res) == 54
for _i, _f in enumerate(_res): REGF[_f] = ('a', _i * 8) if _i < 32 else ('v', VW0 + (_i - 32) * 8)
def freg(f): return R(REGF[f][1], 8, REGF[f][0])

SRD, SRDW = 4, 8
sH, sW = 12, 13
sMEM, sMEM4, sMEM8, sMST, sMRS = 14, 15, 16, 17, 18
sPL, sPS0, sPS1, sPSX = 19, 20, 21, 22
sKX, sPF, sKM, sVM, sFL = 23, 24, 25, 26, 27
sSTEP, sSPIN, sTAG, sMSU = 28, 29, 30, 31
sSTM, sHI8, sW0M, sLO8 = 32, 34, 36, 38
sT0, sT1, sT2, sT3 = 40, 41, 42, 43
sC1, sNC1, sK128 = 44, 46, 47
sPTR = 48
sONE, sHALF = 60, 62
sROLE, sFV = 64, 65
sAL = 47
sACC = 68
sNONCE = 95
sSUM = 96

SMF = 'v_smfmac_f32_16x16x64_bf16'
MF32 = 'v_mfma_f32_16x16x32_bf16'
MF16 = 'v_mfma_f32_16x16x16_bf16'
def s(i, n=1): return R(i, n, 's')
def v(i, n=1): return R(i, n, 'v')

def lds_base(addr):
    if addr + 4096 < 64 * K: return LH, addr
    if addr < L_MISC + 16 * K: return LW0, addr - B_LW0
    return LW1, addr - B_LW1

class Chain:
    def __init__(self, a, tag, fl='', lfl='nt', pfl='sc1', xoff=0, nsteps=64, timing=0, dA=0, dB=24, d0=0, d1=24, dX=0, nopub=0, nopf=0,
                 hook=None, nomax=0, gap=0, dual=0, tstep=40, spinmax=1 << 16, prof=None, pstride=8, pA=20, pF=30, rt=0, dW=0, ks=2, early=1, k1=1, pskip=0, dZ=60, dE=0, ins0=0, p1=1, epf=1, npr=10, pg=6, dP=10, k0=1, pG=30, eo=1, w0hook=None, pbr=1, ppos=1, ptrace=None, lcap=16, lrev=5, gs=2, lord=1, lasy=7, lt=3, lpri=5, gforce=0, cpy=None, swn=4, swe=2, pf128=0, pfe=0, xnop=0, c1n=2):
        self.c1n = c1n
        self.xnop = xnop
        self.pf128 = pf128; self.pfe = pfe
        self.swe = swe
        self.swn = swn
        self.cpy = cpy
        self.gforce = gforce
        self.lpri = lpri; self.tick = lambda: None
        self.lasy = lasy; self.lt = lt
        self.lord = lord
        self.gs = gs
        self.lcap = lcap; self.lrev = lrev
        self.ptrace = ptrace
        self.pbr = pbr; self.ppos = ppos
        self.w0hook = w0hook
        self.eo = eo
        self.k0 = k0; self.pG = pG
        self.npr = npr; self.pg = pg; self.dP = dP
        self.p1 = p1; self.epf = epf
        self.ins0 = ins0
        self.dZ = dZ; self.dE = dE
        self.pskip = pskip
        self.k1 = k1
        self.ks = ks; self.early = early
        self.dW = dW
        self.clk = 's_memrealtime' if rt else 's_memtime'
        self.pA = pA; self.pF = pF
        self.prof = prof; self.pstride = pstride
        self.a = a; self.tag = tag; self.fl = fl; self.lfl = lfl; self.pfl = pfl
        self.wsmem = WS_MEM + xoff; self.wspart = WS_PART + xoff; self.nsteps = nsteps; self.timing = timing
        self.dA = dA; self.dB = dB; self.d0 = d0; self.d1 = d1; self.dX = dX; self.nopub = nopub; self.nopf = nopf
        self.hook = hook; self.nomax = nomax; self.gap = gap; self.dual = dual; self.tstep = tstep; self.spinmax = spinmax

    def stamp(self, i):
        if self.prof is not None:
            if i == self.prof and not getattr(self.a, '_prof', None): self.a.start_prof(sACC, self.pstride, 12, self.pskip)
        elif self.timing == 1 or (self.timing == 2 and i == 0): self.a.ins(f'{self.clk} s[{sACC+2*i}:{sACC+2*i+1}]')

    def addresses(self):
        a = self.a
        T0, T1, C, G = 0 + 24, 25, 26, 27
        a.valu('v_lshrrev_b32', v(T0), 6, 'v0')
        a.valu('v_lshlrev_b32', v(LH), 4, 'v0')
        a.valu('v_add_u32', v(LW0), B_LW0, v(LH))
        a.valu('v_xor_b32', v(LW1), 1024, v(LH)); a.valu('v_add_u32', v(LW1), B_LW1, v(LW1))
        a.valu('v_xor_b32', v(LW2), 2048, v(LH)); a.valu('v_add_u32', v(LW2), B_LW1, v(LW2))
        a.valu('v_and_b32', v(L16), 1023, v(LH)); a.valu('v_add_u32', v(L16), B_LW1, v(L16))
        a.valu('v_and_b32', v(C), 15, 'v0')
        a.valu('v_bfe_u32', v(G), 'v0', 4, 2)
        a.valu('v_mov_b32', v(IDX), '0x4444'); a.valu('v_mov_b32', v(T1), '0xeeee')
        a.valu('v_cmp_lt_u32', 'vcc', 7, v(C))
        a.valu('v_cndmask_b32', v(IDX), v(IDX), v(T1), 'vcc')
        self.tick()
        a.valu('v_and_b32', v(PSX), 12, v(C)); a.valu('v_lshlrev_b32', v(PSX), 3, v(PSX))
        a.valu('v_and_b32', v(T1), 1, v(C)); a.valu('v_lshl_add_u32', v(PSX), v(T1), 4, v(PSX))
        a.valu('v_bfe_u32', v(T1), v(C), 1, 1); a.valu('v_lshl_add_u32', v(PSX), v(T1), 3, v(PSX))
        a.valu('v_lshl_add_u32', v(PST), v(G), 14, v(PSX)); a.valu('v_lshl_add_u32', v(PST), v(T0), 17, v(PST))
        self.tick()
        a.valu('v_and_b32', v(PSX), 63, v(PSX))
        a.valu('v_lshrrev_b32', v(T1), 1, v(T0)); a.valu('v_lshl_add_u32', v(PSX), v(T1), 18, v(PSX))
        a.valu('v_lshl_add_u32', v(PSX), v(G), 16, v(PSX))
        a.valu('v_lshrrev_b32', v(T1), 3, v(C)); a.valu('v_lshl_add_u32', v(PSX), v(T1), 15, v(PSX))
        a.valu('v_and_b32', v(T1), 1, v(T0)); a.valu('v_lshl_add_u32', v(PSX), v(T1), 6, v(PSX))
        self.tick()
        a.valu('v_and_b32', v(T1), 31, 'v0')
        a.valu('v_lshlrev_b32', v(MMW), 4, v(T1))
        a.valu('v_lshlrev_b32', v(28), 3, v(T1)); a.valu('v_lshl_add_u32', v(28), v(T0), 10, v(28)); a.valu('v_add_u32', v(28), L_SC, v(28))
        a.valu('v_lshrrev_b32', v(T1), 1, v(T0)); a.valu('v_lshl_add_u32', v(MMW), v(T1), 9, v(MMW))
        a.valu('v_and_b32', v(T1), 1, v(T0)); a.valu('v_lshl_add_u32', v(MMW), v(T1), 3, v(MMW))
        a.valu('v_add_u32', v(MMW), L_MM, v(MMW))
        a.valu('v_cmp_gt_u32', 'vcc', 2, v(G))
        a.valu('v_cndmask_b32', v(MMW), v(MMW), v(28), 'vcc')
        self.tick()
        a.valu('v_xor_b32', v(LW3), 2048, v(LW1))
        a.valu('v_lshrrev_b32', v(OR0), 4, 'v0'); a.valu('v_lshlrev_b32', v(OR0), 7, v(OR0))
        a.valu('v_and_b32', v(T1), 7, v(C)); a.valu('v_lshl_add_u32', v(OR0), v(T1), 4, v(OR0)); a.valu('v_add_u32', v(OR0), L_OB, v(OR0))
        for i, r in enumerate((OA1, OA2, OA3)): a.valu('v_xor_b32', v(r), 512 * (i + 1), v(OR0))
        a.valu('v_lshrrev_b32', v(T1), 3, v(C)); a.valu('v_lshl_add_u32', v(OW), v(T1), 3, v(OR0))
        a.valu('v_or_b32', v(MMR), 512, v(L16)); a.valu('v_lshlrev_b32', v(PFA), 2, v(LH))
        if self.pf128: a.valu('v_and_b32', v(PFA), '0xffffff80', v(PFA))
        a.valu('v_mov_b64', v(ZZ, 2), 0)
        a.valu('v_and_b32', v(T1), 1, v(G)); a.valu('v_lshlrev_b32', v(MST), 7, v(T1))
        a.valu('v_lshrrev_b32', v(T1), 1, v(G)); a.valu('v_lshl_add_u32', v(MST), v(T1), 3, v(MST))
        a.valu('v_and_b32', v(T1), 3, v(C)); a.valu('v_lshl_add_u32', v(MST), v(T1), 4, v(MST))
        a.valu('v_bfe_u32', v(T1), v(C), 2, 1); a.valu('v_lshl_add_u32', v(MST), v(T1), 2, v(MST))
        self.tick()
        a.salu('s_mov_b32', s(sSTM), '0x00ff00ff'); a.salu('s_mov_b32', s(sSTM + 1), '0x00ff00ff')
        a.salu('s_not_b64', s(sHI8, 2), s(sSTM, 2))
        a.salu('s_lshr_b32', s(sMSU), s(sH), 1); a.salu('s_lshl_b32', s(sMSU), s(sMSU), 8)
        a.salu('s_and_b32', s(sT0), s(sH), 1); a.salu('s_lshl_b32', s(sT0), s(sT0), 6); a.salu('s_add_u32', s(sMSU), s(sMSU), s(sT0))
        a.salu('s_and_b32', s(sT0), s(sW), 1); a.salu('s_lshl_b32', s(sT0), s(sT0), 12)
        a.salu('s_add_u32', s(sMSU), s(sMSU), s(sT0))
        a.salu('s_lshl_b32', s(sPL), s(sH), 14); a.salu('s_add_u32', s(sPL), s(sPL), self.wspart - B_LW1)
        a.salu('s_add_u32', s(sT1), s(sPL), 8192)
        a.salu('s_add_u32', s(sPL), s(sPL), s(sT0))
        a.salu('s_and_b32', s(sT0), s(sH), 1); a.salu('s_lshl_b32', s(sT0), s(sT0), 2); a.salu('s_or_b32', s(sT0), s(sT0), s(sW))
        a.salu('s_cmp_eq_u32', s(sT0), 5, nodst=True)
        a.salu('s_cselect_b32', s(sROLE), 0, s(sW))
        a.salu('s_cmp_lg_u32', s(sW), 1, nodst=True)
        a.ins(f's_cbranch_scc1 {self.tag}_notx')
        a.salu('s_mov_b32', s(sSTM), '0xff'); a.salu('s_mov_b32', s(sSTM + 1), '0xff')
        a.salu('s_mov_b32', s(sPL), s(sT1))
        a.salu('s_lshr_b32', s(sMSU), s(sH), 3); a.salu('s_lshl_b32', s(sMSU), s(sMSU), 8)
        a.salu('s_and_b32', s(sT0), s(sH), 2); a.salu('s_lshl_b32', s(sT0), s(sT0), 6); a.salu('s_add_u32', s(sMSU), s(sMSU), s(sT0))
        a.salu('s_and_b32', s(sT0), s(sH), 4); a.salu('s_lshl_b32', s(sT0), s(sT0), 4); a.salu('s_add_u32', s(sMSU), s(sMSU), s(sT0))
        a.salu('s_add_u32', s(sMSU), s(sMSU), 8192)
        a.label(f'{self.tag}_notx')
        a.salu('s_cmp_lg_u32', s(sW), 0, nodst=True)
        a.ins(f's_cbranch_scc1 {self.tag}_notp')
        a.salu('s_min_u32', s(sT0), s(sH), 23); a.salu('s_mul_i32', s(sT0), s(sT0), 384); a.salu('s_add_u32', s(sT0), s(sT0), L_MBUF)
        a.valu('v_add_u32', v(MST), s(sT0), v(LH))
        a.valu('v_mov_b32', v(T1), L_NON)
        a.valu('v_cmp_lt_u32', 'vcc', 23, 'v0')
        a.valu('v_cndmask_b32', v(MST), v(MST), v(T1), 'vcc')
        a.label(f'{self.tag}_notp')
        a.fence()

    def init_exchange(self):
        a = self.a; srd = s(SRD, 4)
        self.tick()
        for i in range(4): a.valu('v_mov_b32', v(28 + i), 1)
        a.salu('s_lshl_b32', s(sT0), s(sH), 14); a.salu('s_add_u32', s(sT0), s(sT0), self.wspart)
        for rd in range(3):
            a.salu('s_add_u32', s(sT1), s(sT0), rd * 4096)
            a.vmem('buffer_store_dwordx4', v(28, 4), v(LH), srd, s(sT1), mods='offen ' + self.fl, load=False, data=v(28, 4))
        a.salu('s_cmp_eq_u32', s(sROLE), 0, nodst=True)
        a.salu('s_cselect_b64', 'exec', 0, s(sSTM, 2))
        a.valu('v_mov_b32', v(27), -1)
        for i in range(4):
            a.salu('s_add_u32', s(sT1), s(sMSU), self.wsmem + i * 16384)
            a.vmem('buffer_store_dword', v(27), v(MST), srd, s(sT1), mods='offen ' + self.fl, load=False)
        a.salu('s_mov_b64', 'exec', -1)
        self.tick()
        a.salu('s_mov_b64', s(68, 2), s(sPTR, 2))
        a.salu('s_mov_b32', s(70), 9216); a.salu('s_mov_b32', s(71), '0x20000')
        a.valu('v_and_b32', v(25), 7, 'v0'); a.valu('v_mul_u32_u24', v(25), 1152, v(25))
        a.valu('v_lshrrev_b32', v(26), 3, 'v0'); a.valu('v_lshl_add_u32', v(25), v(26), 4, v(25))
        a.vmem('buffer_load_dwordx4', v(36, 4), v(25), s(68, 4), 0, mods='offen')
        a.vmem('buffer_load_dwordx4', v(40, 4), v(25), s(68, 4), 0, mods='offen offset:512')
        a.valu('v_bfe_u32', v(25), 'v0', 2, 3); a.valu('v_mul_u32_u24', v(25), 1152, v(25))
        a.valu('v_lshrrev_b32', v(26), 5, 'v0'); a.valu('v_lshl_add_u32', v(25), v(26), 4, v(25))
        a.valu('v_and_b32', v(26), 3, 'v0'); a.valu('v_lshl_add_u32', v(25), v(26), 2, v(25))
        a.vmem('buffer_load_dword', v(44), v(25), s(68, 4), 0, mods='offen offset:1024')

    def init_late(self):
        a = self.a; srd = s(SRD, 4)
        for r in range(36, 45): a.valu('v_min_u32', v(r), -2, v(r))
        a.salu('s_lshl_b32', s(sMEM), s(sH), 16); a.salu('s_add_u32', s(sMEM), s(sMEM), WS_M0)
        a.salu('s_add_u32', s(sT1), s(sMEM), 4096); a.salu('s_add_u32', s(sT2), s(sMEM), 8192)
        a.valu('v_lshrrev_b32', v(45), 2, v(LH))
        a.vmem('buffer_store_dwordx4', v(36, 4), v(LH), srd, s(sMEM), mods='offen ' + self.fl, load=False, data=v(36, 4))
        a.vmem('buffer_store_dwordx4', v(40, 4), v(LH), srd, s(sT1), mods='offen ' + self.fl, load=False, data=v(40, 4))
        a.vmem('buffer_store_dword', v(44), v(45), srd, s(sT2), mods='offen ' + self.fl, load=False)

    def constants(self):
        a = self.a
        C, E, LO, HI = 24, 25, 26, 27
        a.valu('v_bfe_u32', v(C), v(LH), 4, 4)
        a.valu('v_bfe_u32', v(E), v(LH), 8, 1); a.valu('v_lshlrev_b32', v(E), 2, v(E)); a.valu('v_sub_u32', v(E), v(C), v(E))
        a.valu('v_mov_b32', v(LO), '0x3f80'); a.valu('v_mov_b32', v(HI), '0x3f800000')
        for m in range(4):
            self.tick()
            lo = 2 * m if m < 2 else 2 * m + 4
            a.valu('v_cmp_eq_u32', 'vcc', lo, v(E)); a.valu('v_cndmask_b32', v(16 + m), 0, v(LO), 'vcc')
            a.valu('v_cmp_eq_u32', 'vcc', lo + 1, v(E)); a.valu('v_cndmask_b32', v(16 + m), v(16 + m), v(HI), 'vcc')
            a.valu('v_cmp_eq_u32', 'vcc', 2 * m, v(C)); a.valu('v_cndmask_b32', v(20 + m), 0, v(LO), 'vcc')
            a.valu('v_cmp_eq_u32', 'vcc', 2 * m + 1, v(C)); a.valu('v_cndmask_b32', v(20 + m), v(20 + m), v(HI), 'vcc')

    def constants_put(self):
        a = self.a
        a.ds('ds_write_b128', v(MMR), v(16, 4), mods=f'offset:{L_TB - 512 - B_LW1}')
        a.ds('ds_write_b128', v(L16), v(20, 4), mods=f'offset:{L_SEL - B_LW1}')
        for m in range(4): a.valu('v_mov_b32', v(44 + m), s(sNONCE))
        a.valu('v_mov_b32', v(48), L_NON)
        a.ds('ds_write_b128', v(48), v(44, 4))

    def load_lanes(self):
        a = self.a
        GA, GO, GX, TA, TO, TX, T0, T1, T2 = 48, 49, 50, 51, 52, 53, 54, 55, 56
        L = 57
        a.valu('v_lshrrev_b32', v(T0), 6, 'v0')
        a.valu('v_readfirstlane_b32', s(sW), v(T0))
        a.valu('v_and_b32', v(L), 63, 'v0')
        def bit(dst, src, b, sh, acc):
            a.valu('v_bfe_u32', v(T0), v(src), b, 1)
            if acc: a.valu('v_lshl_add_u32', v(dst), v(T0), sh, v(dst))
            else: a.valu('v_lshlrev_b32', v(dst), sh, v(T0))
        bit(GA, L, 2, 13, 0); bit(GA, L, 3, 15, 1); bit(GA, L, 4, 14, 1); bit(GA, L, 5, 16, 1)
        a.valu('v_lshrrev_b32', v(T1), 4, v(L)); a.valu('v_and_b32', v(T1), 2, v(T1)); a.valu('v_xor_b32', v(T1), v(T1), v(L))
        a.valu('v_and_b32', v(T1), 3, v(T1)); a.valu('v_lshl_add_u32', v(GA), v(T1), 4, v(GA))
        bit(TA, L, 2, 6, 0); bit(TA, L, 3, 9, 1); bit(TA, L, 4, 7, 1); bit(TA, L, 5, 12, 1)
        bit(TA, L, 0, 3, 1); bit(TA, L, 1, 4, 1); bit(TA, L, 3, 5, 1)
        a.valu('v_lshrrev_b32', v(T1), 3, v(L)); a.valu('v_mul_u32_u24', v(GO), 1152, v(T1))
        a.valu('v_and_b32', v(T1), 7, v(L)); a.valu('v_lshl_add_u32', v(GO), v(T1), 4, v(GO))
        bit(TO, L, 4, 13, 0); bit(TO, L, 5, 9, 1); bit(TO, L, 2, 7, 1); bit(TO, L, 3, 5, 1)
        a.valu('v_and_b32', v(T1), 3, v(L)); a.valu('v_lshl_add_u32', v(TO), v(T1), 3, v(TO))
        a.valu('v_lshrrev_b32', v(T1), 2, v(L)); a.valu('v_mul_u32_u24', v(GX), 1152, v(T1))
        a.valu('v_and_b32', v(T1), 3, v(L)); a.valu('v_lshl_add_u32', v(GX), v(T1), 4, v(GX))
        bit(TX, L, 4, 12, 0); bit(TX, L, 5, 8, 1); bit(TX, L, 2, 6, 1); bit(TX, L, 3, 5, 1)
        a.valu('v_and_b32', v(T1), 3, v(L)); a.valu('v_lshl_add_u32', v(TX), v(T1), 3, v(TX))
        sWK, sX16 = 66, 93
        a.salu('s_lshl_b32', s(sWK), s(sW), 10)
        a.salu('s_and_b32', s(sX16), s(sW), self.gs - 1); a.salu('s_lshl_b32', s(sX16), s(sX16), 14)
        a.salu('s_and_b32', s(75), s(sW), 4 - self.gs); a.salu('s_lshl_b32', s(75), s(75), 19)
        for r in (TA, TO, TX): a.valu('v_add_u32', v(r), s(sWK), v(r))
        a.valu('v_mov_b32', v(58), v(GA))
        a.salu('s_mov_b32', s(SRDW + 2), 576 * 8192); a.salu('s_mov_b32', s(SRDW + 3), '0x20000')

    def load_sub(self):
        a = self.a; t = self.tag
        a.label(f'{t}_dma')
        a.salu('s_xor_b32', s(74), s(76), s(81))
        a.salu('s_add_u32', 'm0', s(74), s(80))
        a.salu('s_add_u32', s(76), s(76), 4096)
        a.raw(f'    buffer_load_dwordx4 v58, s[{SRDW}:{SRDW+3}], s78 offen lds')
        a.salu('s_add_u32', s(78), s(78), s(79))
        a.salu('s_cmp_lt_u32', s(76), s(77), nodst=True)
        a.ins(f's_cbranch_scc1 {t}_dma')
        a.ins('s_setpc_b64 s[82:83]')

    def load_weights(self):
        a = self.a; t = self.tag
        GA, GO, GX, TA, TO, TX, T0, T1, T2 = 48, 49, 50, 51, 52, 53, 54, 55, 56
        sWK, sCOL, sOB, sX16, sKS = 66, 67, 92, 93, 94
        a.salu('s_lshl_b32', s(sCOL), s(sH), 8); a.salu('s_lshl_b32', s(sT0), s(sW), 6); a.salu('s_add_u32', s(sCOL), s(sCOL), s(sT0))
        a.salu('s_mul_i32', s(sOB), s(sH), 128 * 1152)
        a.salu('s_lshr_b32', s(73), s(sPTR + 2), 8); a.salu('s_add_u32', s(73), s(73), s(sH)); a.salu('s_and_b32', s(73), s(73), 31)
        a.salu('s_bitcmp1_b32', '0xa2222222', s(73), nodst=True)
        a.salu('s_cselect_b32', s(72), 5 if self.cpy else 0, 0)
        a.salu('s_add_u32', s(73), s(73), 1); a.salu('s_lshr_b32', s(73), s(73), 2)
        def switch():
            L = f'{t}_ncp'
            a.salu('s_cmp_eq_u32', s(72), 0, nodst=True)
            a.ins(f's_cbranch_scc1 {L}')
            self.cpy(a)
            a.salu('s_mul_i32', s(74), s(73), 3 * 576 * 256); a.salu('s_add_u32', s(74), s(74), WS_CPY)
            a.salu('s_add_u32', s(sPTR + 2), s(SRD), s(74)); a.salu('s_addc_u32', s(sPTR + 3), s(SRD + 1), 0)
            for i in (4,): a.salu('s_add_u32', s(sPTR + i), s(sPTR + i - 2), 576 * 256); a.salu('s_addc_u32', s(sPTR + i + 1), s(sPTR + i - 1), 0)
            a.salu('s_lshl_b32', s(sCOL), s(sW), 6)
            a.valu('v_and_b32', v(T0), 63, v(GA)); a.valu('v_lshrrev_b32', v(GA), 13, v(GA)); a.valu('v_lshl_add_u32', v(GA), v(GA), 8, v(T0))
            a.lines.append(L + ':')
            cur['va'] = None; cur['st'] = None; cur['m'] = None; cur['sw'] = True
        pW = {'q': sPTR + 2, 'k': sPTR + 4, 'v': sPTR + 6, 'o': sPTR + 8}
        cur = {'m': None, 'va': GA, 'st': None, 'x': None, 'sw': False}
        def call(m, va, step, xm, buf, lo, hi):
            if cur['m'] != m: a.salu('s_mov_b64', s(SRDW, 2), s(pW[m], 2)); cur['m'] = m
            if cur['va'] != va: a.valu('v_mov_b32', v(58), v(va)); cur['va'] = va
            if cur['st'] != step:
                if va == GA and cur['sw']: a.salu('s_lshr_b32', s(79), step, s(72))
                else: a.salu('s_mov_b32', s(79), step)
                cur['st'] = step
            if cur['x'] != xm: a.salu('s_mov_b32', s(81), xm); cur['x'] = xm
            if lo == 0: a.salu('s_add_u32', s(80), s(sWK), buf); a.salu('s_mov_b32', s(76), 0)
            a.salu('s_mov_b32', s(77), hi * 4096)
            a.ins(f's_call_b64 s[82:83], {t}_dma')
            a.vm_seq += hi - lo
        def issue(job):
            kind, m, x, buf = job
            if kind == 'g':
                cur['ng'] = cur.get('ng', 0) + 1
                if self.cpy and cur['ng'] == self.swn + 1 - self.swe: self.cpy(a, True)
                if self.cpy and cur['ng'] == self.swn + 1: switch()
                a.salu('s_xor_b32', s(78), s(75), x * self.gs * 64 * 8192)
                if cur['sw']: a.salu('s_lshr_b32', s(78), s(78), s(72))
                a.salu('s_add_u32', s(78), s(78), s(sCOL))
                for p in range(0, 4 * self.gs, 2): call(m, GA, 16 * 8192, s(sX16), buf, p, p + 2); yield
            elif kind == 's':
                if cur['sw']: a.salu('s_lshr_b32', s(78), 512 * 8192, s(72)); a.salu('s_add_u32', s(78), s(78), s(sCOL))
                else: a.salu('s_add_u32', s(78), s(sCOL), 512 * 8192)
                for p in (0, 2): call(m, GA, 16 * 8192, 0, buf, p, p + 2); yield
            elif kind == 'o':
                a.salu('s_xor_b32', s(sKS), s(sW), x[1]); a.salu('s_mul_i32', s(sKS), s(sKS), 32 * 1152)
                a.salu('s_add_u32', s(sKS), s(sKS), s(sOB))
                a.salu('s_lshl_b32', s(74), s(sW), 7); a.salu('s_add_u32', s(sKS), s(sKS), s(74))
                a.salu('s_add_u32', s(78), s(sKS), x[0] * 512)
                for p in (0, 2): call(m, GO, 8 * 1152, 0, buf, p, p + 2); yield
            else:
                for kk in range(2):
                    a.salu('s_xor_b32', s(sKS), s(sW), 2 * kk); a.salu('s_mul_i32', s(sKS), s(sKS), 32 * 1152)
                    a.salu('s_add_u32', s(sKS), s(sKS), s(sOB))
                    a.salu('s_lshr_b32', s(74), s(sW), 1); a.salu('s_lshl_b32', s(74), s(74), 6)
                    a.salu('s_add_u32', s(sKS), s(sKS), s(74))
                    a.salu('s_add_u32', s(78), s(sKS), 1024)
                    call(m, GX, 16 * 1152, 0, buf, 2 * kk, 2 * kk + 2); yield
        def build(frs, base, offs, buf):
            a.valu('v_add_u32', v(T1), buf, v(base))
            if base == TA: a.valu('v_xor_b32', v(T2), 32, v(T1))
            tmp = {}
            for fi, f in enumerate(frs):
                k, b = ('v', 8 * fi) if f in LDS_ADDR else REGF[f]
                for jp in range(4):
                    alt, off = offs(fi, jp)
                    a.ds('ds_read_b64_tr_b16', R(b + 2 * jp, 2, k), v(T2 if alt else T1), mods=f'offset:{off}')
                self.tick()
            a.wait(lds='all')
            wr = False
            for fi, f in enumerate(frs):
                if f in LDS_ADDR:
                    rg, off = lds_base(LDS_ADDR[f])
                    if rg == LW1:
                        a.ins('s_barrier')
                    a.ds('ds_write_b128', v(rg), v(8 * fi, 4), mods=f'offset:{off}')
                    a.ds('ds_write_b128', v(rg), v(8 * fi + 4, 4), mods=f'offset:{off + 4096}')
                    wr = True
            if wr: a.wait(lds='all')
        oq = lambda fi, jp: (fi, (jp >> 1) * 8192 + (jp & 1) * 256)
        oo = lambda fi, jp: (0, (jp >> 1) * 4096 + (jp & 1) * 256 + fi * 64)
        ox = lambda fi, jp: (0, fi * 8192 + (jp >> 1) * 512 + (jp & 1) * 128)
        def consume(job):
            kind, m, x, buf = job
            if kind == 'g':
                for i in range(self.gs): build([(m, 0, x * self.gs + i), (m, 1, x * self.gs + i)], TA, oq, buf + i * 16384)
            elif kind == 's': build([(m, 0, 8), (m, 1, 8)], TA, oq, buf)
            elif kind == 'o': build([('o', 2 * x[0], x[1]), ('o', 2 * x[0] + 1, x[1])], TO, oo, buf)
            else: build([('o', 4, 0), ('o', 4, 1)], TX, ox, buf)
        jobs = [['o', 'o', x, None] for x in ((0, 0), (0, 1), (0, 2), (0, 3), (1, 0), (1, 1))] + [['s', 'v', 8, None]] + [['g', 'v', x, None] for x in range(4)] + [
                ['g', 'k', 2, None], ['g', 'k', 3, None], ['g', 'q', 2, None], ['g', 'q', 3, None], ['s', 'q', 8, None], ['g', 'q', 1, None],
                ['g', 'q', 0, 64 * K], ['g', 'k', 0, 0], ['g', 'k', 1, 32 * K], ['x', 'o', 0, 144 * K], ['o', 'o', (1, 3), 128 * K], ['o', 'o', (1, 2), 112 * K], ['s', 'k', 8, 80 * K]]
        size = lambda j: self.gs * 16 * K if j[0] == 'g' else 16 * K
        def finals(j):
            if j[:3] == ['g', 'q', 0]: return [(64 * K, 80 * K)]
            if j[3] is not None and j[4]: return [(j[3], j[3] + size(j))]
            return []
        for j in jobs: j.append(j[3] is not None)
        def place(n, done):
            busy = [(jobs[x][3], jobs[x][3] + size(jobs[x])) for x in range(done, n)] + [sp for x in range(n) for sp in finals(jobs[x])]
            if not jobs[n][4]: busy += finals(jobs[n])
            cands = [K * [112, 80, 16, 0, 144, 96, 32, 112, 64, 0, 32, 128, 64, 0, 32, 96, 112, 64, 0, 32, 144, 128, 112, 80][n]]
            for lo in cands:
                if all(b[1] <= lo or b[0] >= lo + size(jobs[n]) for b in busy): return lo
            return None
        tags = {}; S = dict(n=0, gen=None, left=0, j=0, out=0)
        def tick(force=False):
            if S['gen'] is None:
                n = S['n']
                if n >= len(jobs): return False
                lo = place(n, S['j'])
                if lo is None: return False
                if S['out'] + 2 > self.lcap and not force: return False
                jobs[n][3] = lo; S['gen'] = issue(jobs[n][:4]); S['left'] = size(jobs[n]) // 8192
            elif S['out'] + 2 > self.lcap and not force: return False
            next(S['gen']); S['left'] -= 1; S['out'] += 2
            if S['left'] == 0: tags[S['n']] = a.vm_seq; S['n'] += 1; S['gen'] = None
            return True
        self.tick = tick
        pend = list(self.stages); mark = None
        for i in range(self.lpri): tick()
        for j in range(len(jobs)):
            S['j'] = j
            if pend and (mark is None or (j > 0 and tags[j - 1] > mark)):
                pend.pop(0)(a); mark = a.vm_seq
            if len(jobs) - j in self.at:
                assert not pend
                self.at[len(jobs) - j](a)
            while tick(): pass
            while j not in tags: assert tick(True)
            a.wait(vm=tags[j])
            self.outs = getattr(self, 'outs', []) + [S['out']]
            S['out'] -= size(jobs[j]) // 4096
            consume(jobs[j][:4])
            if self.ptrace: self.ptrace(a, j)
        self.tick = lambda: None
        assert not pend
        self.sched = [(j[:4]) for j in jobs]
        a.ins('s_barrier')

    def prologue(self, st1=None, st2=None, st3=None, st4=None, late=None):
        a = self.a
        def s0(a): self.addresses(); self.init_exchange()
        def s1(a):
            self.init_late()
            if st1: st1(a)
            self.tick(); self.loop_scalars(); self.constants()
        def s4(a):
            self.touch_exchange()
            if st4: st4(a)
            else: self.touch_kv()
        self.stages = [s0, s1] + [x for x in (st2,) if x]
        self.at = {self.lt: s4}
        if st3: self.at[self.lasy] = st3
        self.load_weights()
        if late: late(a)
        self.constants_put()
        a.wait(vm='all', lds='all')
        a.fence()

    def loop_scalars(self):
        a = self.a
        a.salu('s_mov_b32', s(sC1), '0x3e0293ee'); a.salu('s_mov_b32', s(sC1 + 1), s(sC1))
        a.salu('s_mov_b32', s(sNC1), '0x42000000' if not self.gforce else 0)
        a.salu('s_mov_b32', s(sONE), '0x3f803f80'); a.salu('s_mov_b32', s(sONE + 1), s(sONE))
        a.salu('s_mov_b32', s(sHALF), '0x3e803e80'); a.salu('s_mov_b32', s(sHALF + 1), s(sHALF))
        a.salu('s_mov_b32', s(sSTEP), 0)
        a.salu('s_lshl_b32', s(sPF), s(sH), 14); a.salu('s_add_u32', s(sPF), s(sPF), WS_KV)
        a.salu('s_add_u32', s(sAL), s(sPF), (self.nsteps - 1) * 32 * 16384)
        a.salu('s_mul_i32', s(sT0), s(sW), 3072); a.salu('s_add_u32', s(sKX), s(sPF), s(sT0))
        a.salu('s_lshl_b32', s(sPS0), s(sH), 7); a.salu('s_add_u32', s(sPS0), s(sPS0), self.wspart)
        a.salu('s_add_u32', s(sPS1), s(sPS0), 65536)
        a.salu('s_add_u32', s(sLO8), s(sPS0), 4096); a.salu('s_add_u32', s(sLO8 + 1), s(sPS1), 4096)
        a.salu('s_lshl_b32', s(sPSX), s(sH), 7); a.salu('s_add_u32', s(sPSX), s(sPSX), self.wspart + 8192)
        a.salu('s_lshl_b32', s(sT0), s(sH), 12)
        a.salu('s_add_u32', s(sKM), s(sT0), WS_KM + (self.nsteps - 2) * 32 * 4096)
        a.salu('s_add_u32', s(sVM), s(sT0), WS_VM + (self.nsteps - 2) * 32 * 4096)
        a.salu('s_lshl_b32', s(sFV), s(sH), 9); a.salu('s_add_u32', s(sFV), s(sFV), WS_MEMH)
        a.salu('s_lshl_b32', s(sT0), s(sW), 5); a.salu('s_or_b32', s(sT0), s(sT0), s(sH))
        a.salu('s_cmp_lt_u32', s(sT0), 24, nodst=True)
        a.salu('s_cselect_b32', s(sW0M), '0x1ffffff', 0); a.salu('s_mov_b32', s(sW0M + 1), 0)
        a.salu('s_lshl_b32', s(sFL), s(sH), 7); a.salu('s_add_u32', s(sFL), s(sFL), SY_CHF)
        a.salu('s_lshl_b32', s(sT0), s(sW), 2); a.salu('s_add_u32', s(sFL), s(sFL), s(sT0))

    def touch_kv(self):
        a = self.a
        a.salu('s_add_u32', s(sT0), s(sPF), 32 * 16384)
        a.ins(f'buffer_load_dword v30, v{PFA}, s[{SRD}:{SRD+3}], s{sPF} offen sc1')
        a.ins(f'buffer_load_dword v30, v{PFA}, s[{SRD}:{SRD+3}], s{sT0} offen sc1')

    def touch_exchange(self):
        a = self.a
        a.ins(f'buffer_load_dword v30, v{PFA}, s[{SRD}:{SRD+3}], s{sMEM} offen sc1')
        a.salu('s_lshl_b32', s(sT0), s(sH), 14); a.salu('s_add_u32', s(sT0), s(sT0), self.wspart)
        a.ins(f'buffer_load_dword v30, v{PFA}, s[{SRD}:{SRD+3}], s{sT0} offen sc1')
        a.salu('s_and_b32', s(sT0), s(sH), 3); a.salu('s_lshl_b32', s(sT0), s(sT0), 14); a.salu('s_add_u32', s(sT0), s(sT0), self.wsmem)
        a.ins(f'buffer_load_dword v30, v{PFA}, s[{SRD}:{SRD+3}], s{sT0} offen sc1')

    def loop_init(self):
        a = self.a
        a.salu('s_mov_b32', 'm0', L_DUMP)
        a.salu('s_add_u32', s(sPF), s(sPF), 2 * 32 * 16384)
        if self.timing:
            for i in range(24): a.salu('s_mov_b32', s(sACC + i), 0)

    def step(self):
        a = self.a; t = self.tag; fl = self.fl; lfl = self.lfl
        srd = s(SRD, 4); T = {}
        R0, R1, R2, R3, R4, R5, R6, R7, R8 = Rq
        ACCS = {'q0': AQ0, 'q1': AQ1, 'k0': AK0, 'k1': AK1, 'v0': AV0, 'v1': AV1}
        where = {}
        M = {}
        def fr(f, dst):
            rg, off = lds_base(LDS_ADDR[f])
            def f0(): where[f] = dst; a.ds('ds_read_b128', v(dst, 4), v(rg), mods=f'offset:{off}')
            def f1(): T[f] = a.ds('ds_read_b128', v(dst + 4, 4), v(rg), mods=f'offset:{off + 4096}')
            return f0, f1
        def xr(i): return {0: (LW0, B_LW0), 1: (LW1, B_LW1), 2: (LW2, B_LW1), 3: (LW3, B_LW1)}[i]
        def mr(sl, dst):
            def f():
                M[sl] = dst
                if sl == 8: T[('m', sl)] = a.ds('ds_read_b128', v(dst, 4), v(L16), mods=f'offset:{L_MBUF + 8192 - B_LW1}')
                else:
                    rg, b = xr(sl & 3)
                    T[('m', sl)] = a.ds('ds_read_b128', v(dst, 4), v(rg), mods=f'offset:{L_MBUF + (sl >> 2) * 4096 - b}')
            return f
        def wl(key): return lambda: a.wait(lds=T[key])
        def wv(key): return lambda: (a.wait(vm=T[key]) if T[key] > a.done['vm'] else None)
        def mm(o, sl):
            f = (o[0], int(o[1]), sl)
            a.mfma(SMF, v(ACCS[o], 4), v(M[sl], 4), v(where[f], 8) if f in LDS_ADDR else freg(f), v(IDX))
        def run(seq):
            for x in seq:
                if isinstance(x, tuple): mm(*x)
                elif x is not None: x()
        def sal(*args, **kw): return lambda: a.salu(*args, **kw)
        def val(*args, **kw): return lambda: a.valu(*args, **kw)
        def ins(x): return lambda: a.ins(x)
        def z2(r, c=0): return val('v_mov_b64', v(r, 2), c)
        def zero(lo, hi):
            for i in range(lo, hi, 2): z2(i)()
        def cvt(d, x, y=None): return val('v_cvt_pk_bf16_f32', v(d), v(x), v(x + 1 if y is None else y))
        def dpp(d, x, bm): return val('v_mov_b32_dpp', v(d), v(x), mods=f'row_ror:8 row_mask:0xf bank_mask:{bm}', rmw=True)
        def mf(op, d, A, B, C): return lambda: a.mfma(op, v(d, 4), v(A, 4 if op == MF32 else 2), v(B, 4 if op == MF32 else 2), 0 if C is None else v(C, 4))
        def zmf(d): return mf(MF16, d, ZZ, ZZ, None)
        def st(k): return lambda: self.stamp(k)
        LC, TM, LCW, MC = R8, R8 + 1, R8 + 2, R8 + 3
        def vbr(lab):
            a.ins(f's_cbranch_vccnz {lab}')
        def poll0(R0=R0):
            a.vmem('buffer_load_dwordx4', v(R0, 4), v(LH), srd, s(sMEM), mods='offen ' + lfl); a.nowait(v(R0, 4))
        def poll1():
            a.vmem('buffer_load_dwordx4', v(R1, 4), v(LH), srd, s(sMEM4), mods='offen ' + lfl)
            a.vmem('buffer_load_dword', v(MC), v(LC), srd, s(sMEM8), mods='offen ' + lfl)
            a.nowait(v(R1, 4)); a.nowait(v(MC))
        def prefetch_top():
            run(list(fr(('q', 1, 0), R2)) + list(fr(('k', 0, 0), R4)) + list(fr(('k', 1, 0), R6)))
        def prefetch_av(): run(list(fr(('q', 0, 0), AV0)))
        def offsets():
            a.salu('s_add_u32', s(sMEM4), s(sMEM), 4096); a.salu('s_add_u32', s(sMEM8), s(sMEM), 8192)
        def pubk(r):
            if self.nopub: return
            a.salu('s_mov_b64', 'exec', s(sHI8, 2))
            a.vmem('buffer_store_dwordx4', v(r, 4), v(LH), srd, s(sKM), mods='offen ' + self.pfl, load=False, data=v(r, 4))
            a.salu('s_mov_b64', 'exec', -1)
        def pubv(r):
            if self.nopub: return
            a.vmem('buffer_store_dwordx4', v(r, 4), v(LH), srd, s(sVM), mods='offen ' + self.pfl, load=False, data=v(r, 4))
        def flag(r):
            if self.nopub: return
            a.salu('s_mov_b64', 'exec', 1)
            a.vmem('buffer_store_dword', v(r), 'off', srd, s(sFL), mods='sc1', load=False)
            a.salu('s_mov_b64', 'exec', -1)
        def pf(r):
            if self.nopf: return
            a.raw(f'    buffer_load_dword v{r}, s[{SRD}:{SRD+3}], s{sPF} offen sc1 lds'); a.pos += 1; a.vm_seq += 1

        offsets(); prefetch_top()
        a.salu('s_mov_b32', s(sSPIN), self.spinmax)
        poll0()
        a.raw('.p2align 6')
        a.label(f'{t}_loop')
        a.forget()
        zero(0, 16)
        a.label(f'{t}_loop2')
        st(0)()
        def top():
            prefetch_av()
            a.valu('v_lshrrev_b32', v(LC), 2, v(LH))
            a.valu('v_add_u32', v(LCW), L_MBUF + 8192, v(LC))
            if self.timing: a.salu('s_mov_b32', 's94', s(sSPIN))
            a.salu('s_mov_b32', s(sSPIN), self.spinmax)
            if self.hook: self.hook(a)
        top()
        for i in range(self.ks - 1):
            if self.pA: a.nop(self.pA)
            poll0()
        r1 = self.p1 == 3
        if r1:
            if self.dA: a.nop(self.dA)
            poll1()
        a.ins('s_waitcnt lgkmcnt(0)')
        a.label(f'{t}_chk0')
        a.ins(f's_waitcnt vmcnt({self.ks - 1 + (2 if r1 else 0)})')
        st(1)()
        M[0] = R0; M[4] = R1
        K01, K11 = fr(('k', 0, 1), R2), fr(('k', 1, 1), R4)
        K02, K12 = fr(('k', 0, 2), R2), fr(('k', 1, 2), R4)
        K03, K13 = fr(('k', 0, 3), R2), fr(('k', 1, 3), R4)
        o2 = [sal('s_add_u32', s(sMRS), s(sMEM), s(sMSU)), sal('s_add_u32', s(sT1), s(sMEM), 16384), sal('s_and_b32', s(sT1), s(sT1), 0xffff),
              sal('s_add_u32', s(sT1), s(sT1), self.wsmem), sal('s_add_u32', s(sMST), s(sT1), s(sMSU)), sal('s_and_b32', s(sTAG), s(sSTEP), 1)]
        a.valu('v_max3_u32', v(TM), v(R0), v(R0 + 1), v(R0 + 2)); a.valu('v_max_u32', v(TM), v(TM), v(R0 + 3))
        a.valu('v_cmp_eq_u32', 'vcc', -1, v(TM))
        wA = a.ds('ds_write_b128', v(LW0), v(R0, 4), mods=f'offset:{L_MBUF - B_LW0}')
        vbr(f'{t}_spin0')
        run([('q0', 0), poll1 if self.p1 in (1, 3) else None, ('q1', 0), K01[0], ('k1', 0), K01[1], zmf(AV0), lambda: a.wait(lds=wA)])
        a.ins('s_barrier')
        st(2)()
        def kx(i):
            def f(): T['kx', i] = a.vmem('buffer_load_dwordx4', v(R2 + 4 * i, 4), v(LH), srd, s(sKX), mods=f'offen offset:{i*1024} sc1')
            return f
        c1 = [val('v_max3_u32', v(TM), v(R1), v(R1 + 1), v(R1 + 2)), val('v_max3_u32', v(TM), v(TM), v(R1 + 3), v(MC)), val('v_cmp_eq_u32', 'vcc', -1, v(TM))]
        def w1a(): a.ds('ds_write_b128', v(LW0), v(R1, 4), mods=f'offset:{L_MBUF + 4096 - B_LW0}')
        def w1b(): T['wB'] = a.ds('ds_write_b32', v(LCW), v(MC))
        if r1:
            seq = [[('q0', 1), o2[0], o2[1]], [('k0', 1), K02[0]], [('q1', 1), K02[1]], [('k1', 1), K12[0]], [('q0', 2), K12[1]], [('q1', 2), mr(3, R6)],
                   [('k0', 2), K03[0]], [('k1', 2), K03[1]], [('v0', 2), K13[0]], [('v1', 2), K13[1]], [('q0', 3)], [('q1', 3)], [('q0', 4)]]
            n = self.c1n
            run([mr(1, R6), zmf(AV1), mr(2, R7), ('k0', 0), K11[0], ('v0', 0), K11[1], ('v1', 0)] + sum(seq[:n], []))
            run([ins('s_waitcnt vmcnt(2)'), st(3)] + c1 + [seq[n][0], w1a] + seq[n][1:] + [seq[n + 1][0], w1b] + seq[n + 1][1:])
            vbr(f'{t}_spin1')
            a.lines.append(f'{t}_go1:')
            run(sum(seq[n + 2:], []) + [ins('s_waitcnt vmcnt(0)'), wl('wB')])
        else:
            run([mr(1, R6), zmf(AV1), mr(2, R7), ('k0', 0), K11[0], ('v0', 0), K11[1], ('v1', 0), poll1 if self.p1 == 2 else None,
                 ('q0', 1), o2[0], o2[1], ('k0', 1), K02[0], ('q1', 1), K02[1], ('k1', 1), K12[0], ('q0', 2), K12[1], ('q1', 2), mr(3, R6),
                 ('k0', 2), ins('s_waitcnt vmcnt(0)'), st(3), w1a, ('k1', 2), w1b, c1[0], ('q0', 3), K03[0], c1[1], ('q1', 3), K03[1], c1[2], ('v0', 2), K13[0], ('v1', 2), K13[1]])
            vbr(f'{t}_spin1')
            a.lines.append(f'{t}_go1:')
            run([('q0', 4), wl('wB')])
        a.ins('s_barrier')
        TB = R1
        def tbld(): T['tb'] = a.ds('ds_read_b128', v(TB, 4), v(MMR), mods=f'offset:{L_TB - 512 - B_LW1}')
        def pmld(R1=AQ0):
            if self.nopub: return
            a.salu('s_mov_b64', 'exec', s(sW0M, 2))
            a.ds('ds_read_b128', v(R1, 4), v(MST))
            a.salu('s_mov_b64', 'exec', -1)
        def pubm(R1=AQ0):
            if self.nopub: return
            a._autowait([('v', R1 + i) for i in range(4)], 'pubm')
            L = f'{t}_np{len(a.lines)}'
            a.salu('s_mov_b64', 'exec', s(sW0M, 2))
            if self.pbr: a.ins(f's_cbranch_execz {L}')
            a.vmem('buffer_store_dwordx4', v(R1, 4), v(LH), srd, s(sFV), mods='offen ' + self.pfl, load=False, data=v(R1, 4))
            if self.pbr: a.pos -= 1; a.lines.append(L + ':')
            a.salu('s_mov_b64', 'exec', -1)
        K08, K18 = fr(('k', 0, 8), R6), fr(('k', 1, 8), R6)
        run([mr(5, R7), ('q1', 4), mr(7, R8), ('k0', 4), lambda: a._autowait([('v', R4 + 4)], 'k13'), ('k0', 3), kx(0), ('k1', 3), mr(6, R6), ('k1', 4), mr(8, R0), o2[2], o2[3], ('v0', 4), kx(1), ('v1', 4), o2[4], o2[5],
             ('q0', 5), tbld, ('k0', 5), kx(2), ('q1', 5), ('k1', 5), ('v0', 5), kx(3), ('v1', 5), K08[1],
             ('q0', 6), ('k0', 6), (lambda: pf(PFA)) if self.pfe else None, ('q1', 6), ('k1', 6), ('v0', 6), (lambda: pf(PFA)) if not self.pfe else None, ('v1', 6), K08[0],
             ('q0', 7), ('k0', 7), ('q0', 8), sal('s_cmp_ge_u32', s(sSTEP), self.nsteps - 2, nodst=True), ('q1', 7), lambda: a._autowait([('v', R6)], 'k08'),
             ('k0', 8), K18[0], cvt(AQ0, AQ0), ('k1', 7), K18[1], cvt(AQ0 + 1, AQ0 + 2),
             ('q1', 8), cvt(AQ0 + 2, AK0), ('v0', 7), cvt(AQ0 + 3, AK0 + 2), mf(MF32, AK0, AQ0, TB, None), cvt(AQ1, AQ1), ('k1', 8), mr(1, R6)])
        st(4)()
        run([cvt(AQ1 + 1, AQ1 + 2), ('v1', 7), mr(3, R7), cvt(AQ0, AK0), cvt(AQ1 + 2, AK1), cvt(AQ1 + 3, AK1 + 2), cvt(AQ0 + 1, AK0 + 2), wv(('kx', 3)),
             mf(MF32, AK1, AQ1, TB, None), lambda: pmld(R8), ('v0', 8),
             cvt(AQ0 + 2, AK1), cvt(AQ0 + 3, AK1 + 2)])
        XF0, XF1, U22, U23, U32, U33 = fr(('o', 4, 0), R2), fr(('o', 4, 1), R6), fr(('o', 2, 2), R4), fr(('o', 2, 3), R2), fr(('o', 3, 2), R6), fr(('o', 3, 3), R4)
        run([mf(MF32, AQ1, AQ0, AQ0, None), ins(f's_cbranch_scc1 {t}_last'), lambda: a.lines.append(f'{t}_back:'), mf(MF32, AK0, R3, AQ0, None), XF0[1], mf(MF32, AK1, R2, AQ0, None), XF0[0],
             dpp(AQ1, AQ1 + 2, '0xc'), dpp(AQ1 + 1, AQ1 + 3, '0xc')])
        a.ds('ds_write_b64', v(MMW), v(AQ1, 2))
        a.pos += 2
        run([dpp(AK1 + r, AK0 + r, '0xc') for r in range(4)])
        ws_ = a.ds('ds_write_b128', v(LW0), v(AK1, 4), mods=f'offset:{L_SC - B_LW0}')
        run([('v1', 8), lambda: pubm(R8), ('v0', 1), ('v1', 1)])
        a.wait(lds=ws_)
        a.ins('s_barrier')
        st(5)()
        X0, X1, X2, X3, MA, MB_ = AK1, AK0, AQ1, AQ0, R8, R1
        def xrd(i, d):
            rg, b = xr(i)
            return lambda: a.ds('ds_read_b128', v(d, 4), v(rg), mods=f'offset:{L_SC - b}')
        def mmrd(d, o): return lambda: a.ds('ds_read_b128', v(d, 4), v(MMR), mods=f'offset:{L_MM + o - B_LW1}')
        def mulc(d): return val('v_mul_f32', v(d), s(sC1), v(d))
        def fmc(d, x): return val('v_fmac_f32', v(d), s(sC1), v(x))
        BM, BT = AK0 + 2, AQ1
        AC = [AK1, AQ1, AV0, AV1]; ACX = AK0
        WL, LQ, O0, O1 = R0, AQ0, R1, AV1
        ET, EM = AQ0, MA + 2
        CK = AK0
        F = {0: AQ0, 1: R0, 2: R1, 3: R8}
        def ex(d, x): return val('v_exp_f32', v(d), v(x))
        def pkf(d, x): return val('v_pk_fma_f32', v(d, 2), v(x, 2), s(sC1, 2), v(d, 2))
        BMT = R8 + 2
        mm_ = [val('v_pk_add_f32', v(MA, 2), v(MA, 2), v(MA + 2, 2)), val('v_pk_add_f32', v(MB_, 2), v(MB_, 2), v(MB_ + 2, 2)), val('v_pk_add_f32', v(MA, 2), v(MA, 2), v(MB_, 2)),
               val('v_pk_mul_f32', v(MA, 2), v(MA, 2), s(sC1, 2))]
        def pkm(d): return val('v_pk_mul_f32', v(d, 2), v(d, 2), s(sC1, 2))
        run([mmrd(MA, -512), mmrd(MB_, 0), ('v0', 3), xrd(1, X1), xrd(2, X2), ('v1', 3), xrd(3, X3), XF1[0], XF1[1],
             z2(WL, s(sHALF, 2)), z2(WL + 2, s(sONE, 2)), cvt(AV0, AV0), cvt(AV0 + 1, AV0 + 2), pkm(X0), pkm(X0 + 2), lambda: a._autowait([('v', MB_)], 'mb')] + mm_ + [ex(EM, MA), ex(EM + 1, MA + 1),
             lambda: a._autowait([('v', X2)], 'x2'), pkf(X0, X1), pkf(X0 + 2, X1 + 2), cvt(BM, EM), pkf(X0, X2), pkf(X0 + 2, X2 + 2),
             pkf(X0, X3), dpp(BM + 1, BM, '0xf'), pkf(X0 + 2, X3 + 2)])
        st(6)()
        def soft(first):
            x_ = [cvt(AV0 + 2, AV1), cvt(AV0 + 3, AV1 + 2), None] if first else [None] * 3
            if not first: run([ex(EM, MA), ex(EM + 1, MA + 1), cvt(BM, EM), dpp(BM + 1, BM, '0xf')])
            run([ex(ET, X0), mf(MF16, O0, AV0, BM, None), ex(ET + 1, X0 + 1), x_[0], ex(ET + 2, X0 + 2), x_[1], cvt(BT, ET), ex(ET + 3, X0 + 3), mf(MF16, O1, AV0 + 2, BM, None), x_[2],
                 cvt(BT + 1, ET + 2), dpp(BT + 2, BT, '0xf'), val('v_max3_f32', v(CK), f'|v{X0}|', f'|v{X0+1}|', f'|v{X0+2}|'), dpp(BT + 3, BT + 1, '0xf'), st(7) if first else None,
                 mf(MF32, LQ, WL, BM, None), val('v_max3_f32', v(CK), v(CK), f'|v{X0+3}|', f'|v{MA}|'), val('v_max_f32_e64', v(CK), v(CK), f'|v{MA+1}|'),
                 mf(MF32, O0, R4, BT, O0), val('v_cmp_nge_f32', 'vcc', s(sNC1), v(CK)),
                 mf(MF32, O1, R5, BT, O1),
                 val('v_add_f32_dpp', v(LQ), v(LQ), v(LQ), mods='row_ror:8 row_mask:0xf bank_mask:0xf'), val('v_rcp_f32', v(LQ), v(LQ))])
        soft(True)
        vbr(f'{t}_guard')
        a.lines.append(f'{t}_norm:')
        run([zmf(AC[0])]
            + [val('v_mul_f32', v(O0 + r), v(O0 + r), v(LQ)) for r in range(4)]
            + [val('v_mul_f32_dpp', v(O0 + r), v(O1 + r), v(LQ), mods='row_ror:8 row_mask:0xf bank_mask:0xc', rmw=True) for r in range(4)]
            + [cvt(O0, O0), cvt(O0 + 1, O0 + 2), zmf(AC[1])])
        wo = a.ds('ds_write_b64', v(OW), v(O0, 2))
        def guard():
            a.label(f'{t}_guard')
            a.forget()
            a.ins(f's_cbranch_scc0 {t}_guard2')
            pubv(AV0)
            a.salu('s_add_u32', s(sVM), s(sVM), 32 * 4096)
            a.label(f'{t}_guard2')
            a.nop(8)
            M1, M2 = BM, BM + 1
            a.valu('v_max3_f32', v(M1), v(X0), v(X0 + 1), v(X0 + 2))
            a.valu('v_max3_f32', v(M2), v(X0 + 3), v(MA), v(MA + 1))
            a.valu('v_max_f32', v(M1), v(M1), v(M2))
            a.valu('v_max_f32_dpp', v(M1), v(M1), v(M1), mods='row_ror:8 row_mask:0xf bank_mask:0xf')
            for sw in ('v_permlane32_swap_b32', 'v_permlane16_swap_b32'):
                a.valu('v_mov_b32', v(M2), v(M1)); a.valu(sw, v(M1), v(M2)); a.valu('v_max_f32', v(M1), v(M1), v(M2))
            for d in (X0, X0 + 1, X0 + 2, X0 + 3, MA, MA + 1): a.valu('v_sub_f32', v(d), v(d), v(M1))
            soft(False)
            a.fence()
            a.ins(f's_branch {t}_norm')
        def E(u, i):
            def f():
                fg = ('o', u, i)
                a.mfma(SMF, v(ACX if u == 4 else AC[u], 4), v(F[2 * i if u == 4 else i], 4), v(where[fg], 8) if fg in LDS_ADDR else freg(fg), v(IDX))
            return f
        OA = [None, OA1, OA2, OA3]
        run([zmf(ACX), lambda: a.ds('ds_read_b128', v(F[0], 4), v(OR0)), zmf(AC[2]), U22[0], zmf(AC[3]), U22[1]])
        a.wait(lds=wo)
        a.ins('s_barrier')
        st(8)()
        if self.xnop: a.nop(self.xnop)
        def frd(i): return lambda: a.ds('ds_read_b128', v(F[i], 4), v(OA[i]))
        def tag(r): return val('v_and_or_b32', v(r), v(r), -2, s(sTAG))
        def fin(u):
            r = ACX if u == 4 else AC[u]
            so = [sPS0, sPS1, sLO8, sLO8 + 1, sPSX][u]
            return [cvt(r, r), cvt(r + 1, r + 2), tag(r), lambda: a.vmem('buffer_store_dwordx2', v(r, 2), v(PSX if u == 4 else PST), srd, s(so), mods='offen ' + fl, load=False)]
        P0 = [R4, R5, R6, R7]
        def shot(P):
            for i in range(4):
                a.vmem('buffer_load_dwordx4', v(P[i], 4), v(L16), srd, s(sPL), mods=f'offen offset:{1024 * i} ' + lfl)
            a.nowait(v(P[0], 16))
        def shot0():
            if not self.ins0: return
            if self.dE: a.nop(self.dE)
            a.ins(f's_cbranch_scc1 {t}_ns0')
            p = a.pos
            for r in P0: a.valu('v_not_b32', v(r), s(sTAG))
            shot(P0)
            a.pos = p
            a.lines.append(f'{t}_ns0:')
        f0, f1, f2, f3, fx = [fin(u) for u in range(5)]
        def aw(*regs): return lambda: a._autowait([('v', r) for r in regs], 'aw')
        if self.eo == 2:
          run([frd(1), frd(2), frd(3), E(0, 0), E(1, 0), E(4, 0), U23[0],
             aw(F[2]), E(0, 1), U23[1], E(0, 2), E(0, 3), E(1, 1), E(1, 2), f0[0], E(1, 3), f0[2], f0[1], E(4, 1), f0[3], U32[0], E(2, 2), U32[1], f1[0], f1[2], f1[1], E(2, 0), f1[3], st(9), U33[0],
             E(2, 1), U33[1], fx[0], E(2, 3), fx[2], fx[1], E(3, 0), fx[3], E(3, 1), f2[0], aw(R4 + 4), E(3, 2), f2[2], f2[1], E(3, 3), f2[3], sal('s_cmp_lg_u32', s(sW), 2, nodst=True), f3[0], f3[2], f3[1], f3[3]])
        else:
          run([frd(1), frd(2), frd(3), E(0, 0), E(1, 0), E(4, 0), U23[0], E(2, 0), U23[1],
             aw(F[2]), E(0, 1), E(4, 1), U32[0], E(0, 2), U32[1], E(0, 3), fx[0], E(2, 2), U33[0], fx[2], E(1, 1), U33[1], fx[1], E(1, 2), fx[3], f0[0], E(1, 3), f0[2], E(2, 1), f0[1],
             E(2, 3), f0[3], f1[0], aw(R4 + 4), E(3, 0), f1[2], E(3, 1), f1[1], E(3, 2), f1[3], st(9), f2[0], E(3, 3), f2[2], f2[1], f2[3], sal('s_cmp_lg_u32', s(sW), 2, nodst=True), f3[0], f3[2], f3[1], f3[3]])
        st(10)()
        P = [AQ0, AK0, AQ1, AK1]; RD, XT, NEG, SELR = R1, AV1, AV1 + 1, R8
        def finish():
            a.fence()
            a.ins(f's_branch {t}_loop')
        def publish():
            a.valu('v_cvt_pk_bf16_f32', v(RD), v(RD), v(RD + 2))
            a.salu('s_mov_b64', 'exec', s(sSTM, 2))
            a.vmem('buffer_store_dword', v(RD), v(MST), srd, s(sMST), mods='offen ' + fl, load=False)
            st(11)()
        def reset():
            a.vmem('buffer_store_dword', v(NEG), v(MST), srd, s(sMRS), mods='offen ' + fl, load=False)
            a.salu('s_mov_b64', 'exec', -1)
        def idle(pre=True):
            a.ds('ds_read_b128', v(SELR, 4), v(L16), mods=f'offset:{L_SEL - B_LW1}')
            if pre: prefetch_top()
            a.salu('s_add_u32', s(sSTEP), s(sSTEP), 1); a.salu('s_mov_b32', s(sMEM), s(sT1))
            a.salu('s_add_u32', s(sKX), s(sKX), 32 * 16384); a.salu('s_add_u32', s(sPF), s(sPF), 32 * 16384); a.salu('s_min_u32', s(sPF), s(sPF), s(sAL))
            offsets(); a.valu('v_mov_b32', v(NEG), -1)
            a.salu('s_add_u32', s(sFV), s(sFV), 24 * 512)
            a.salu('s_mov_b32', s(sT0), 1)
        def reduce(lab, k, P, y=0):
            a.label(f'{t}_chk{lab}')
            a.valu('v_mov_b32', v(XT), 0)
            for i in range(4):
                a.ins(f's_waitcnt vmcnt({4 * k - 1 - i + y})')
                chk = [val('v_bitop3_b32', v(XT), v(XT), v(r), s(sTAG), mods='bitop3:0xf6') for r in (P[i], P[i] + 2)]
                if k > 1: run(chk)
                a.mfma(MF32, v(RD, 4), v(P[i], 4), v(SELR, 4), 0 if i == 0 else v(RD, 4))
                if k == 1: run(chk)
            a.valu('v_and_b32', v(XT), s(sT0), v(XT))
            a.valu('v_cmp_ne_u32', 'vcc', 0, v(XT))
            a.ins(f's_cbranch_vccnz {t}_spin{lab}')
            a.pos += 4
            a.valu('v_permlane32_swap_b32', v(RD), v(RD + 2)); a.valu('v_permlane32_swap_b32', v(RD + 1), v(RD + 3))
            a.valu('v_add_f32', v(RD), v(RD), v(RD + 2)); a.valu('v_add_f32', v(RD + 2), v(RD + 1), v(RD + 3))
        def retry(lab, P):
            a.label(f'{t}_spin{lab}')
            a.forget()
            shot(P)
            a.salu('s_sub_u32', s(sSPIN), s(sSPIN), 1)
            a.salu('s_cmp_lt_i32', s(sSPIN), 0, nodst=True)
            a.salu('s_cselect_b32', s(sT0), 0, 1)
            a.ins(f's_branch {t}_chk{lab}')
        a.ins(f's_cbranch_scc1 {t}_w013')
        a.fence()
        if self.d0: a.nop(self.d0)
        shot(P0)
        idle(False); zero(0, 16)
        if self.k0 > 1: a.nop(self.pF); shot(P0)
        reduce('F', self.k0, P0); publish(); reset()
        if self.k0 == 1: prefetch_top()
        a.nop(self.dB); poll0()
        if self.k0 > 1: a.ins('s_waitcnt vmcnt(1)'); prefetch_top()
        a.fence()
        a.ins(f's_branch {t}_loop2')
        a.label(f'{t}_w013')
        a.forget()
        idle()
        a.salu('s_cmp_eq_u32', s(sROLE), 0, nodst=True)
        a.ins(f's_cbranch_scc1 {t}_w0')
        a.salu('s_cmp_eq_u32', s(sW), 1, nodst=True)
        if self.dX: a.nop(self.dX)
        a.ins(f's_cbranch_scc1 {t}_sx')
        a.nop(self.d1 - self.dX)
        a.lines.append(f'{t}_sx:')
        shot(P)
        if self.k1 > 1: a.nop(self.pG); shot(P)
        reduce('G', self.k1, P)
        a.salu('s_cmp_eq_u32', s(sW), 3, nodst=True)
        a.ins(f's_cbranch_scc1 {t}_w3')
        a.valu('v_mov_b32', v(RD + 1), v(RD)); a.valu('v_mov_b32', v(RD + 3), v(RD + 2))
        a.valu('v_permlane16_swap_b32', v(RD), v(RD + 1)); a.valu('v_permlane16_swap_b32', v(RD + 2), v(RD + 3))
        a.valu('v_add_f32', v(RD), v(RD), v(RD + 1)); a.valu('v_add_f32', v(RD + 2), v(RD + 2), v(RD + 3))
        a.label(f'{t}_w3')
        if self.k1 > 1: a.ins('s_cbranch_execz .+4') if 0 else None
        publish(); reset()
        poll0()
        finish()
        a.label(f'{t}_w0')
        a.forget()
        zero(0, 16)
        if self.w0hook: self.w0hook(a)
        a.nop(self.dZ); poll0()
        a.ins(f's_branch {t}_loop2')
        retry('F', P0); retry('G', P)
        guard()
        a.label(f'{t}_spin0')
        a.forget()
        poll0()
        a.salu('s_sub_u32', s(sSPIN), s(sSPIN), 1)
        a.salu('s_cmp_lt_i32', s(sSPIN), 0, nodst=True)
        if r1: a.ins(f's_waitcnt vmcnt({self.ks - 1})')
        a.ins(f's_cbranch_scc0 {t}_chk0')
        a.ins('s_waitcnt vmcnt(0)')
        for r in range(4): a.valu('v_min_u32', v(R0 + r), -2, v(R0 + r))
        a.ins(f's_branch {t}_chk0')
        a.label(f'{t}_spin1')
        a.forget()
        poll1()
        a.salu('s_sub_u32', s(sSPIN), s(sSPIN), 1)
        a.salu('s_cmp_lt_i32', s(sSPIN), 0, nodst=True)
        a.ins(f's_waitcnt vmcnt({2 if r1 else 0})')
        run(c1 + [w1a, w1b, ins('s_waitcnt lgkmcnt(0)')])
        a.ins(f's_cbranch_scc1 {t}_go1')
        a.ins(f's_cbranch_vccnz {t}_spin1')
        a.ins(f's_branch {t}_go1')
        a.label(f'{t}_last')
        a.forget(); a.nop(2)
        a.salu('s_cmp_eq_u32', s(sSTEP), self.nsteps - 1, nodst=True)
        a.ins(f's_cbranch_scc1 {t}_last2')
        pubk(AQ0)
        a.salu('s_add_u32', s(sKM), s(sKM), 32 * 4096)
        a.salu('s_mov_b32', s(sNC1), '0xbf800000')
        a.salu('s_cmp_eq_u32', 0, 0, nodst=True)
        a.ins(f's_branch {t}_back')
        a.label(f'{t}_last2')
        M.update({8: R0, 1: R6, 3: R7})
        a.ins('s_waitcnt lgkmcnt(0)')
        run([lambda: pubk(AQ0), sal('s_add_u32', s(sT0), s(sNONCE), self.nsteps), val('v_mov_b32', v(R2), s(sT0)), ('v1', 8)] + [(o, sl) for sl in (1, 3) for o in ('v0', 'v1')]
            + [cvt(AV0, AV0), cvt(AV0 + 1, AV0 + 2), cvt(AV0 + 2, AV1), cvt(AV0 + 3, AV1 + 2), lambda: pubv(AV0)])
        a.ins('s_waitcnt vmcnt(0)')
        flag(R2)
```

```python
from asmfw import Asm, R
import chain2 as C

def s(i, n=1): return R(i, n, 's')
def v(i, n=1): return R(i, n, 'v')
MF32 = 'v_mfma_f32_16x16x32_bf16'

SRD_WS, SRD_X, SRD_W = 4, 8, 12
sM, sHh, sW, sSEG, sSTR = 16, 17, 18, 19, 20
sT0, sT1, sT2 = 21, 22, 23
sSRC, sLDSW, sOUT, sBUF, sOUT1 = 24, 25, 26, 27, 28
sPRG, sRND, sT3 = 29, 30, 31
sO2, sOA, sSA, sHS = 40, 41, 42, 43
XBUF = 36864
SY_PRG = C.WS_SYNC
DONE = 63
WF = 64

def wfrag(hd, tau, k): return R(tau * 72 + k * 4, 4, 'a') if hd else v(WF + tau * 72 + k * 4, 4)

def tr_loader(a, srd, jobs, GA, TA, T1, T2, sWK, sT, bufs, mid=None, at=None):
    nb = len(bufs); tags = {}
    def issue(j):
        jobs[j][0](a)
        for p in range(4):
            a.salu('s_add_u32', 'm0', s(sWK), bufs[j % nb] + p * 1024)
            if p: a.salu('s_add_u32', s(sT), s(sT), jobs[j][1])
            else: a.nop(1)
            a.raw(f'    buffer_load_dwordx4 v{GA}, s[{srd}:{srd+3}], s{sT} offen lds'); a.pos += 1; a.vm_seq += 1
        tags[j] = a.vm_seq
    for j in range(min(nb, len(jobs))): issue(j)
    if mid: mid()
    for j in range(len(jobs)):
        a.valu('v_add_u32', v(T1), bufs[j % nb], v(TA))
        a.valu('v_xor_b32', v(T2), 32, v(T1))
        a.wait(vm=tags[j])
        for dst, alt, off in jobs[j][2]:
            a.ds('ds_read_b64_tr_b16', dst, v(T2 if alt else T1), mods=f'offset:{off}')
        a.wait(lds='all')
        if at and j == at[0]: at[1](a)
        if j + nb < len(jobs): issue(j + nb)

def qkv_role(a: Asm, tag, pX, pW, sNONCE, sGRP, late=None, qw=0, qx=0, cop=1, at=None):
    t = tag
    ACC, PK, AF = 208, 8, 32
    LANE16, VSRC, VRD, TMP, TMP2, GA, LWv, TA = 1, 2, 3, 4, 5, 6, 7, 24
    srd = s(SRD_WS, 4)
    a.valu('v_lshrrev_b32', v(TMP), 6, 'v0')
    a.valu('v_readfirstlane_b32', s(sW), v(TMP))
    a.valu('v_lshlrev_b32', v(LWv), 4, 'v0')
    a.valu('v_and_b32', v(TMP), 63, 'v0')
    a.valu('v_lshrrev_b32', v(GA), 2, v(TMP)); a.valu('v_lshlrev_b32', v(GA), 13, v(GA))
    a.valu('v_lshrrev_b32', v(TMP2), 4, v(TMP)); a.valu('v_and_b32', v(TMP2), 2, v(TMP2)); a.valu('v_xor_b32', v(TMP2), v(TMP2), v(TMP))
    a.valu('v_and_b32', v(TMP2), 3, v(TMP2)); a.valu('v_lshl_add_u32', v(GA), v(TMP2), 4, v(GA))
    a.valu('v_lshrrev_b32', v(TA), 4, v(TMP)); a.valu('v_lshlrev_b32', v(TA), 9, v(TA))
    a.valu('v_bfe_u32', v(TMP2), v(TMP), 2, 2); a.valu('v_lshl_add_u32', v(TA), v(TMP2), 6, v(TA))
    a.valu('v_bfe_u32', v(TMP2), v(TMP), 4, 1); a.valu('v_lshl_add_u32', v(TA), v(TMP2), 5, v(TA))
    a.valu('v_and_b32', v(TMP2), 3, v(TMP)); a.valu('v_lshl_add_u32', v(TA), v(TMP2), 3, v(TA))
    a.salu('s_lshl_b32', s(sT3), s(sW), 12)
    a.valu('v_add_u32', v(TA), s(sT3), v(TA))
    a.salu('s_cmp_eq_u32', s(sM), 1, nodst=True)
    a.salu('s_cselect_b64', s(SRD_W, 2), s(pW + 2, 2), s(pW, 2))
    a.salu('s_cmp_eq_u32', s(sM), 2, nodst=True)
    a.salu('s_cselect_b64', s(SRD_W, 2), s(pW + 4, 2), s(SRD_W, 2))
    a.salu('s_mov_b32', s(SRD_W + 2), 576 * 8192); a.salu('s_mov_b32', s(SRD_W + 3), '0x20000')
    a.salu('s_lshl_b32', s(sOUT1), s(sHh), 8); a.salu('s_lshl_b32', s(sT0), s(sW), 6); a.salu('s_add_u32', s(sOUT1), s(sOUT1), s(sT0))
    if cop:
        a.valu('v_lshrrev_b32', v(25), 2, 'v0'); a.valu('v_mul_u32_u24', v(25), s(sSTR), v(25)); a.valu('v_add_u32', v(25), s(sSEG), v(25))
        a.valu('v_lshlrev_b32', v(25), 13, v(25)); a.valu('v_and_b32', v(26), 3, 'v0'); a.valu('v_lshl_add_u32', v(25), v(26), 7, v(25))
        a.salu('s_lshl_b32', s(sT0), s(sHh), 8)
        a.salu('s_lshl_b32', s(sT1), s(sSTR), 19); a.salu('s_add_u32', s(sT1), s(sT1), s(sT0))
        a.ins(f'buffer_load_dword v27, v25, s[{SRD_W}:{SRD_W+3}], s{sT0} offen')
        a.ins(f'buffer_load_dword v27, v25, s[{SRD_W}:{SRD_W+3}], s{sT1} offen')
    def rest():
        a.valu('v_and_b32', v(TMP2), 15, v(TMP))
        a.valu('v_lshrrev_b32', v(VRD), 4, v(TMP))
        a.valu('v_lshrrev_b32', v(VSRC), 2, v(TMP2))
        a.valu('v_xor_b32', v(VRD), v(VRD), v(VSRC))
        a.valu('v_lshl_add_u32', v(VRD), v(TMP2), 2, v(VRD))
        a.valu('v_lshlrev_b32', v(LANE16), 4, v(VRD))
        a.valu('v_lshrrev_b32', v(TMP2), 2, v(TMP))
        a.valu('v_lshrrev_b32', v(VRD), 4, v(TMP))
        a.valu('v_and_b32', v(TMP), 3, v(TMP))
        a.valu('v_xor_b32', v(TMP), v(TMP), v(VRD))
        a.valu('v_lshlrev_b32', v(VRD), 3, v(VRD))
        a.valu('v_and_b32', v(TMP2), 3, v(TMP2))
        a.valu('v_add_u32', v(VRD), v(VRD), v(TMP2))
        a.valu('v_mul_u32_u24', v(VSRC), 1152, v(VRD))
        a.valu('v_lshl_add_u32', v(VSRC), v(TMP), 4, v(VSRC))
        a.salu('s_mov_b32', s(SRD_X), s(pX)); a.salu('s_mov_b32', s(SRD_X + 1), s(pX + 1))
        a.salu('s_mov_b32', s(SRD_X + 2), 2048 * 1152); a.salu('s_mov_b32', s(SRD_X + 3), '0x20000')
        a.salu('s_lshr_b32', s(sT1), s(sW), 1); a.salu('s_mul_i32', s(sSRC), s(sT1), 4608)
        a.salu('s_and_b32', s(sT1), s(sW), 1); a.salu('s_mul_i32', s(sT2), s(sT1), 576); a.salu('s_add_u32', s(sSRC), s(sSRC), s(sT2))
        a.salu('s_mul_i32', s(sLDSW), s(sW), 9 * 1024)
        a.salu('s_mul_i32', s(sT1), s(sSEG), 32 * 1152); a.salu('s_add_u32', s(sSRC), s(sSRC), s(sT1))
        a.salu('s_mul_i32', s(sSA), s(sSTR), 32 * 1152)
        a.salu('s_mov_b32', s(sBUF), 0)
        dma(sBUF)
        a.salu('s_lshl_b32', s(sT1), s(sSEG), 5); a.salu('s_add_u32', s(sT1), s(sT1), s(sHh))
        a.salu('s_lshl_b32', s(sOUT), s(sT1), 14)
        a.salu('s_mul_i32', s(sT2), s(sW), 3072); a.salu('s_add_u32', s(sOUT), s(sOUT), s(sT2))
        a.salu('s_lshl_b32', s(sT2), s(sM), 11); a.salu('s_add_u32', s(sOUT), s(sOUT), s(sT2))
        a.salu('s_add_u32', s(sOUT), s(sOUT), C.WS_KV - 2048)
        a.salu('s_lshl_b32', s(sT1), s(sT1), 13); a.salu('s_add_u32', s(sT1), s(sT1), C.WS_Q)
        a.salu('s_cmp_eq_u32', s(sM), 0, nodst=True)
        a.salu('s_cselect_b32', s(sOUT), s(sT1), s(sOUT))
        a.salu('s_cselect_b32', s(sO2), 4, 1); a.salu('s_cselect_b32', s(sHS), 1, 2)
        a.salu('s_lshl_b32', s(sO2), s(sO2), 10); a.salu('s_lshl_b32', s(sHS), s(sHS), 13)
        a.salu('s_lshl_b32', s(sOA), s(sHS), 5); a.salu('s_mul_i32', s(sOA), s(sOA), s(sSTR))
        a.salu('s_lshl_b32', s(sPRG), s(sHh), 7); a.salu('s_lshl_b32', s(sT1), s(sGRP), 2)
        a.salu('s_add_u32', s(sPRG), s(sPRG), s(sT1)); a.salu('s_add_u32', s(sPRG), s(sPRG), SY_PRG)
    def dma_ops(bufreg):
        ops = []
        for i in range(9):
            def f(i=i):
                if i == 0: a.salu('s_add_u32', s(sT2), s(bufreg), s(sLDSW))
                a.salu('s_add_u32', 'm0', s(sT2), i * 1024 - i * 64)
                a.nop(1)
                a.raw(f'    buffer_load_dwordx4 v{VSRC}, s[{SRD_X}:{SRD_X+3}], s{sSRC} offen offset:{i * 64} lds')
                a.pos += 1; a.vm_seq += 1
                if i == 8: a.salu('s_add_u32', s(sSRC), s(sSRC), s(sSA))
            ops.append(f)
        return ops
    def dma(bufreg):
        for f in dma_ops(bufreg): f()
    jobs = []
    for tt in range(9):
        for hd in range(2):
            def setup(a, tt=tt, hd=hd): a.salu('s_add_u32', s(sT0), s(sOUT1), tt * 64 * 8192 + hd * 256)
            rd = []
            for kk in range(2):
                for tau in range(2):
                    k_, b_ = ('a', tau * 72 + (2 * tt + kk) * 4) if hd else ('v', WF + tau * 72 + (2 * tt + kk) * 4)
                    for jp in range(2): rd.append((R(b_ + 2 * jp, 2, k_), tau, kk * 2048 + jp * 256))
            jobs.append((setup, 16 * 8192, rd))
    tr_loader(a, SRD_W, jobs, GA, TA, 25, 26, sT3, sT0, [40960 + 16384 * i for i in range(7)], mid=rest, at=at)
    if late: late(a)
    a.ins('s_barrier')
    a.salu('s_mov_b32', s(sBUF), XBUF)
    dma(sBUF)
    a.salu('s_mov_b32', s(sBUF), 0)
    a.salu('s_mov_b32', s(sRND), s(sNONCE))
    a.salu('s_cmp_eq_u32', s(sW), 0, nodst=True)
    a.salu('s_cselect_b32', 's34', 1, 0); a.salu('s_mov_b32', 's35', 0)
    a.salu('s_cmp_eq_u32', s(sM), 2, nodst=True)
    a.ins(f's_cbranch_scc1 {t}_vloop')
    def pub(valexpr):
        a.valu('v_mov_b32', v(TMP), valexpr)
        a.salu('s_mov_b64', 'exec', 's[34:35]')
        a.vmem('buffer_store_dword', v(TMP), 'off', srd, s(sPRG), mods='sc1', load=False)
        a.salu('s_mov_b64', 'exec', -1)
    for isv in (0, 1):
        L = f'{t}_vloop' if isv else f'{t}_loop'
        a.fence()
        a.label(L)
        a.forget()
        a.ins('s_barrier')
        a.valu('v_add_u32', v(VRD), s(sBUF), v(LANE16))
        rd = {}
        def rdA(k):
            for x in range(2):
                rd[(k, x)] = a.ds('ds_read_b128', v(AF + ((k % 4) * 2 + x) * 4, 4), v(VRD), mods=f'offset:{(x*18+k)*1024}')
        for k in range(3): rdA(k)
        a.salu('s_sub_u32', s(sT1), s(sRND), 1)
        pub(s(sT1))
        a.salu('s_add_u32', s(sT1), s(sBUF), 2 * XBUF)
        a.salu('s_sub_u32', s(sT0), s(sT1), 3 * XBUF)
        a.salu('s_cselect_b32', s(sT1), s(sT1), s(sT0))
        dops = dma_ops(sT1)
        for k in range(18):
            if k + 3 < 18: rdA(k + 3)
            if k < 9: dops[k]()
            a.wait(lds=rd[(k, 1)])
            for hd in range(2):
                for x in range(2):
                    for tau in range(2):
                        acc = v(ACC + ((hd * 2 + x) * 2 + tau) * 4, 4)
                        xf = v(AF + ((k % 4) * 2 + x) * 4, 4)
                        wf = wfrag(hd, tau, k)
                        if isv: a.mfma(MF32, acc, xf, wf, 0 if k == 0 else acc)
                        else: a.mfma(MF32, acc, wf, xf, 0 if k == 0 else acc)
        a.ins(f's_waitcnt vmcnt({qw})')
        for hd in range(2):
            A0 = ACC + hd * 16
            for o in range(2):
                for r in range(4):
                    d = PK + (hd * 2 + o) * 4 + r
                    src = A0 + (((r >> 1) * 2 + o) if isv else (o * 2 + (r >> 1))) * 4 + (r & 1) * 2
                    a.valu('v_cvt_pk_bf16_f32', v(d), v(src), v(src + 1))
                if hd == 0 and o == 0: a.salu('s_mov_b32', s(sOUT1), s(sOUT))
                elif o == 0: a.salu('s_add_u32', s(sOUT1), s(sOUT), s(sHS))
                else: a.salu('s_add_u32', s(sOUT1), s(sOUT1), s(sO2))
                a.vmem('buffer_store_dwordx4', v(PK + (hd * 2 + o) * 4, 4), v(LWv), srd, s(sOUT1), mods='offen ' + ('sc1', '', 'nt', 'sc1 nt')[qx], load=False, data=v(PK + (hd * 2 + o) * 4, 4))
        a.salu('s_add_u32', s(sOUT), s(sOUT), s(sOA))
        a.salu('s_add_u32', s(sBUF), s(sBUF), XBUF)
        a.salu('s_cmp_eq_u32', s(sBUF), 3 * XBUF, nodst=True)
        a.salu('s_cselect_b32', s(sBUF), 0, s(sBUF))
        a.salu('s_add_u32', s(sRND), s(sRND), 1)
        a.salu('s_add_u32', s(sSEG), s(sSEG), s(sSTR))
        a.salu('s_cmp_lt_u32', s(sSEG), 64, nodst=True)
        a.fence()
        a.ins(f's_cbranch_scc1 {L}')
        if not isv: a.ins(f's_branch {t}_done')
    a.label(f'{t}_done')
    a.ins('s_waitcnt vmcnt(0)')
    a.ins('s_barrier')
    a.salu('s_add_u32', s(sT1), s(sNONCE), DONE)
    pub(s(sT1))


def memkv_role(a: Asm, tag, sNONCE, sPAR, slp=4):
    t = tag
    ACC = 8
    regs = [24 + 4 * i for i in range(10)] + [208 + 4 * i for i in range(8)]
    VA, VF, TMP, TMP2, LWv = [1, 2, 3], 6, 4, 5, 7
    srd = s(SRD_WS, 4)
    sS, sSRCM, sDST = 19, 24, 26
    a.forget()
    a.valu('v_and_b32', v(TMP), 63, 'v0')
    a.valu('v_lshrrev_b32', v(TMP2), 4, v(TMP))
    for b in range(3):
        a.valu('v_add_u32', v(VA[b]), 4 * b, v(TMP2))
        a.valu('v_mul_u32_u24', v(VF), 11, v(VA[b])); a.valu('v_lshrrev_b32', v(VF), 5, v(VF))
        a.valu('v_add_u32', v(VA[b]), v(VA[b]), v(VF)); a.valu('v_lshlrev_b32', v(VA[b]), 7, v(VA[b]))
        a.valu('v_and_b32', v(VF), 7, v(TMP)); a.valu('v_lshl_add_u32', v(VA[b]), v(VF), 4, v(VA[b]))
    a.valu('v_min_u32', v(VF), 23, v(TMP)); a.valu('v_lshlrev_b32', v(VF), 9, v(VF))
    a.salu('s_mov_b32', s(sS), s(sPAR))
    a.salu('s_mul_i32', s(sSRCM), s(sS), 12288); a.salu('s_add_u32', s(sSRCM), s(sSRCM), C.WS_MEMH)
    a.salu('s_lshl_b32', s(sDST), s(sS), 5); a.salu('s_add_u32', s(sDST), s(sDST), s(sHh)); a.salu('s_lshl_b32', s(sDST), s(sDST), 12)
    a.salu('s_mov_b32', s(sT0), C.WS_KM)
    a.salu('s_cmp_eq_u32', s(sM), 2, nodst=True)
    a.salu('s_cselect_b32', s(sT0), C.WS_VM, s(sT0))
    a.salu('s_add_u32', s(sDST), s(sDST), s(sT0))
    a.salu('s_lshl_b32', s(sPRG), s(sHh), 7); a.salu('s_lshl_b32', s(sT0), s(sM), 1); a.salu('s_add_u32', s(sT0), s(sT0), s(sPAR))
    a.salu('s_lshl_b32', s(sT0), s(sT0), 2); a.salu('s_add_u32', s(sPRG), s(sPRG), s(sT0))
    a.salu('s_add_u32', s(sPRG), s(sPRG), SY_PRG + 128 - 8)
    a.fence()
    a.label(f'{t}_loop')
    a.forget()
    a.salu('s_cmp_lg_u32', s(sW), 0, nodst=True)
    a.ins(f's_cbranch_scc1 {t}_go')
    a.salu('s_add_u32', s(sT2), s(sSRCM), 12288)
    a.salu('s_mov_b32', s(sT0), 1 << 22)
    a.label(f'{t}_wait')
    a.vmem('buffer_load_dword', v(TMP), v(VF), srd, s(sT2), mods='offen offset:384 sc1')
    a.salu('s_sub_u32', s(sT0), s(sT0), 1)
    a.ins(f's_cbranch_scc1 {t}_go')
    a.ins('s_waitcnt vmcnt(0)')
    a.valu('v_cmp_ne_u32', 'vcc', s(sNONCE), v(TMP))
    a.ins(f's_cbranch_vccz {t}_go')
    a.ins(f's_sleep {slp}')
    a.ins(f's_branch {t}_wait')
    a.label(f'{t}_go')
    a.ins('s_barrier')
    tg = []
    for k in range(18):
        if k % 6 == 0: a.salu('s_add_u32', s(sT2), s(sSRCM), (k // 6) * 4096)
        tg.append(a.vmem('buffer_load_dwordx4', v(regs[k], 4), v(VA[k % 3]), srd, s(sT2), mods=f'offen offset:{((k // 3) & 1) * 2048} sc1'))
    a.salu('s_add_u32', s(sSRCM), s(sSRCM), 2 * 12288)
    a.salu('s_add_u32', s(sT1), s(sS), s(sNONCE)); a.salu('s_add_u32', s(sT1), s(sT1), 1)
    a.salu('s_cmp_eq_u32', s(sM), 2, nodst=True)
    a.ins(f's_cbranch_scc1 {t}_v')
    done0 = dict(a.done)
    for isv in (0, 1):
        if isv: a.label(f'{t}_v'); a.done = dict(done0)
        for k in range(18):
            a.wait(vm=tg[k])
            for hd in range(2):
                for tau in range(2):
                    acc = v(ACC + (hd * 2 + tau) * 4, 4); xf = v(regs[k], 4); wf = wfrag(hd, tau, k)
                    if isv: a.mfma(MF32, acc, xf, wf, 0 if k == 0 else acc)
                    else: a.mfma(MF32, acc, wf, xf, 0 if k == 0 else acc)
        if isv:
            for q4 in range(8): a.valu('v_pk_mul_f32', v(ACC + 2 * q4, 2), v(ACC + 2 * q4, 2), '0.5', mods='op_sel_hi:[1,0]')
        a.fence()
        if not isv: a.ins(f's_branch {t}_st')
    a.label(f'{t}_st')
    for q4 in range(8): a.valu('v_cvt_pk_bf16_f32', v(24 + q4), v(ACC + 2 * q4), v(ACC + 2 * q4 + 1))
    a.salu('s_add_u32', s(sT0), s(sDST), 4096)
    a.vmem('buffer_store_dwordx4', v(24, 4), v(LWv), srd, s(sDST), mods='offen sc1', load=False, data=v(24, 4))
    a.vmem('buffer_store_dwordx4', v(28, 4), v(LWv), srd, s(sT0), mods='offen sc1', load=False, data=v(28, 4))
    a.ins('s_waitcnt vmcnt(0)')
    a.ins('s_barrier')
    a.valu('v_mov_b32', v(TMP), s(sT1))
    a.salu('s_mov_b64', 'exec', 's[34:35]')
    a.vmem('buffer_store_dword', v(TMP), 'off', srd, s(sPRG), mods='sc1', load=False)
    a.salu('s_mov_b64', 'exec', -1)
    a.salu('s_add_u32', s(sS), s(sS), 2)
    a.salu('s_add_u32', s(sDST), s(sDST), 2 << 17)
    a.salu('s_cmp_lt_u32', s(sS), 62, nodst=True)
    a.fence()
    a.ins(f's_cbranch_scc1 {t}_loop')
```

```python
import sys
sys.path.insert(0, 'gen2')
from asmfw import Asm
import chain2 as C, qkv2 as Q, attn2 as A, ssm as S
from chain2 import s, v
from build_ct import kd
NAME = 'concat_heads__memory_aug_recurrent_mem_tr__ssm_conv_s4d__prompt'
def start(a, name):
    a.raw(f'.text\n.globl {name}\n.p2align 8\n.type {name},@function\n{name}:')
def ws_srd(a, p):
    a.salu('s_mov_b32', 's4', s(p)); a.salu('s_mov_b32', 's5', s(p + 1))
    a.salu('s_mov_b32', 's6', C.WS_SIZE); a.salu('s_mov_b32', 's7', '0x20000')

sNONCE = C.sNONCE
DBG = 96
SY_ATT = C.WS_SYNC + 65536
D_NONCE, D_HELP, D_CH, D_ARR, D_SSM, D_T2, D_ATT, D_WF, D_OP = 64, 4, 128, 132, 8, 12, 16, 20, 136
D_XF2 = 24
D_MODE, D_CH2, D_ARR2, D_GO2 = 140, 208, 212, 216
XCC = [0]
NWARM = [5]
XD = [0]
OPS = [4]
DV = [70]
HDELAY = [0]
TMO = [1 << 17]
KVR = 2
CPS = [0]
D_POOL = 32
D_P2 = 160
D_QP = 68
NCH = [32]
FX = [0]
BOFF = [24]
ATS = [3]
MSL = [4]

DIAG = [0]
IFL = ['']
def diag(a, idx, val=None):
    if not DIAG[0]: return
    a.fence()
    a.ins('s_memrealtime s[90:91]'); a.ins('s_waitcnt lgkmcnt(0)')
    if val is not None: a.salu('s_mov_b32', 's90', val)
    a.salu('s_mov_b64', 's[100:101]', 'exec'); a.salu('s_mov_b64', 'exec', 1)
    a.valu('v_mov_b32', v(DV[0]), 's90')
    a.salu('s_lshl_b32', 's91', 's2', 8); a.salu('s_add_u32', 's91', 's91', 203 << 20)
    a.vmem('buffer_store_dword', v(DV[0]), 'off', 's[4:7]', 's91', mods=f'offset:{4 * idx}', load=False)
    a.salu('s_mov_b64', 'exec', 's[100:101]')
    a.nop(2)

LD = [0]
def ldiag(a, word, vreg, op='buffer_atomic_umax'):
    if not LD[0]: return
    a.fence()
    a.ins('s_memrealtime s[90:91]'); a.ins('s_waitcnt lgkmcnt(0)')
    a.salu('s_lshl_b32', 's91', 's2', 8); a.salu('s_add_u32', 's91', 's91', 203 << 20)
    a.valu('v_mov_b32', v(vreg), 's90')
    a.valu('v_cmp_eq_u32', 'vcc', 0, 'v0' if vreg > 200 else v(C.LH))
    a.salu('s_mov_b64', 'exec', 'vcc')
    a.vmem('buffer_store_dword', v(vreg), 'off', 's[4:7]', 's91', mods=f'offset:{4 * word}', load=False)
    a.salu('s_mov_b64', 'exec', -1)
    a.nop(2)

def scan(a, base, p2):
    _tk[0] += 1
    a.valu('v_and_b32', 'v1', 63, 'v0'); a.valu('v_min_u32', 'v1', 6, 'v1'); a.valu('v_lshlrev_b32', 'v2', 2, 'v1')
    a.salu('s_cmp_lg_u32', 's32', 0, nodst=True)
    a.valu('v_mov_b32', 'v251', 163832)
    a.ins(f's_cbranch_scc1 sw{_tk[0]}')
    a.vmem('buffer_load_dword', 'v3', 'v2', s(DBG, 4), 0, mods=f'offen offset:{base} sc1')
    a.valu('v_mov_b32', 'v4', (32, 24, 19)[p2])
    if p2 == 2: a.valu('v_cmp_eq_u32', 'vcc', 6, 'v1'); a.valu('v_cndmask_b32', 'v4', 'v4', 14, 'vcc', mods='')
    if p2 == 1: a.valu('v_cmp_gt_u32', 'vcc', 4, 'v1'); a.valu('v_cndmask_b32', 'v4', 'v4', 22, 'vcc', mods='')
    a.wait(vm='all')
    a.valu('v_cmp_lt_u32', 'vcc', 'v3', 'v4')
    a.salu('s_ff1_i32_b64', 's40', 'vcc')
    a.valu('v_mov_b32', 'v250', 's40')
    a.ds('ds_write_b32', 'v251', 'v250')
    a.wait(lds='all')
    a.label(f'sw{_tk[0]}')
    a.ins('s_barrier')
    a.ds('ds_read_b32', 'v252', 'v251')
    a.wait(lds='all')
    a.valu('v_readfirstlane_b32', 's33', 'v252')
    a.ins('s_barrier')
    a.nop(2)

def dsel(a, idx):
    if not DIAG[0]: return
    L = f'ds{len(a.lines)}'
    a.salu('s_cmp_ge_u32', 's36', 192, nodst=True)
    a.ins(f's_cbranch_scc1 {L}')
    diag(a, idx)
    a.ins('s_memtime s[88:89]'); a.ins('s_waitcnt lgkmcnt(0)'); diag(a, idx + 40, 's88')
    a.ins(f's_branch {L}x')
    a.label(L)
    diag(a, idx + 5)
    a.label(L + 'x')

def trace(a, base, sidx, k):
    if not DIAG[0]: return
    a.fence()
    a.ins('s_memrealtime s[90:91]'); a.ins('s_waitcnt lgkmcnt(0)')
    a.salu('s_lshl_b32', 's92', s(sidx), 4); a.salu('s_add_u32', 's92', 's92', (201 << 20) + base + 4 * k)
    a.valu('v_mov_b32', 'v249', 's90')
    a.salu('s_mov_b64', 'exec', 1)
    a.vmem('buffer_store_dword', 'v249', 'off', 's[4:7]', 's92', load=False)
    a.salu('s_mov_b64', 'exec', -1)
    a.nop(2)

_tk = [0]
def get_nonce(a, vd):
    _tk[0] += 1
    L = f'gn{_tk[0]}'
    a.fence()
    a.salu('s_mov_b32', 's88', 1 << 22)
    a.label(L)
    a.salu('s_cmp_lg_u32', s(sNONCE), 0, nodst=True)
    a.ins(f's_cbranch_scc1 {L}x')
    a.vmem('buffer_load_dword', v(vd), 'off', s(DBG, 4), 0, mods=f'offset:{D_NONCE} sc1')
    a.salu('s_sub_u32', 's88', 's88', 1)
    a.ins(f's_cbranch_scc1 {L}x')
    a.ins('s_waitcnt vmcnt(0)')
    a.valu('v_readfirstlane_b32', s(sNONCE), v(vd))
    a.nop(2)
    a.ins(f's_branch {L}')
    a.label(f'{L}x')

def ticket(a, dst, off, vb=250, mid=None):
    _tk[0] += 1
    L = f'tk{_tk[0]}'
    a.fence()
    a.salu('s_mov_b32', 's37', off)
    a.valu('v_mov_b32', v(vb), 1)
    a.valu('v_mov_b32', v(vb + 1), 163832)
    a.valu('v_cmp_eq_u32', 'vcc', 0, 'v0')
    a.salu('s_and_saveexec_b64', 's[38:39]', 'vcc')
    a.ins(f's_cbranch_execz {L}' + ('m' if mid else ''))
    a.vmem('buffer_atomic_add', v(vb), 'off', s(DBG, 4), 's37', mods='sc0')
    if mid:
        a.label(L + 'm')
        a.salu('s_mov_b64', 's[38:39]', 'exec')
        a.salu('s_mov_b64', 'exec', -1)
        mid()
        a.salu('s_mov_b64', 'exec', 's[38:39]')
        a.ins(f's_cbranch_execz {L}')
    a.wait(vm='all')
    a.ds('ds_write_b32', v(vb + 1), v(vb))
    a.wait(lds='all')
    a.label(L)
    a.salu('s_mov_b64', 'exec', -1)
    a.ins('s_barrier')
    a.ds('ds_read_b32', v(vb + 2), v(vb + 1))
    a.wait(lds='all')
    a.valu('v_readfirstlane_b32', s(dst), v(vb + 2))
    a.ins('s_barrier')
    a.nop(4)

def flag_store(a, soff):
    _tk[0] += 1
    a.ins('s_waitcnt vmcnt(0)')
    a.ins('s_barrier')
    a.valu('v_mov_b32', 'v250', s(sNONCE))
    a.valu('v_cmp_eq_u32', 'vcc', 0, 'v0')
    a.salu('s_and_saveexec_b64', 's[38:39]', 'vcc')
    a.ins(f's_cbranch_execz fs{_tk[0]}')
    a.vmem('buffer_store_dword', 'v250', 'off', 's[4:7]', soff, mods='sc1', load=False)
    a.label(f'fs{_tk[0]}')
    a.salu('s_mov_b64', 'exec', -1)

def flags_wait(a, soff, lo, hi, va, vd, sleep=2):
    _tk[0] += 1
    L = f'fw{_tk[0]}'
    a.fence()
    a.valu('v_mbcnt_lo_u32_b32', v(va), -1, 0)
    a.valu('v_mbcnt_hi_u32_b32', v(va), -1, v(va))
    a.valu('v_min_u32', v(va), hi - lo - 1, v(va))
    a.valu('v_lshlrev_b32', v(va), 2, v(va))
    a.salu('s_mov_b32', 's88', 1 << 22)
    a.label(L)
    a.vmem('buffer_load_dword', v(vd), v(va), 's[4:7]', soff, mods=f'offen offset:{4 * lo} sc1')
    a.salu('s_sub_u32', 's88', 's88', 1)
    a.ins(f's_cbranch_scc1 {L}x')
    a.ins('s_waitcnt vmcnt(0)')
    a.valu('v_cmp_ne_u32', 'vcc', s(sNONCE), v(vd))
    a.ins(f's_cbranch_vccz {L}x')
    a.ins(f's_sleep {sleep}')
    a.salu('s_cmp_gt_u32', 's88', (1 << 22) - BOFF[0], nodst=True)
    a.ins(f's_cbranch_scc1 {L}')
    a.ins('s_sleep 40')
    a.ins(f's_branch {L}')
    a.label(f'{L}x')

def coarse_wait(a, sseg, vd, shp):
    _tk[0] += 1
    L = f'cw{_tk[0]}'
    a.fence()
    a.salu('s_mov_b32', 's88', 1 << 16)
    a.label(L)
    a.vmem('buffer_load_dword', v(vd), 'off', 's[4:7]', s(shp), mods='offset:128 sc1')
    a.ins('s_waitcnt vmcnt(0)')
    a.valu('v_readfirstlane_b32', 's42', v(vd))
    a.salu('s_sub_u32', 's42', 's42', s(sNONCE))
    a.salu('s_cmp_gt_u32', 's42', 64, nodst=True)
    a.salu('s_cselect_b32', 's42', 0, 's42')
    a.salu('s_add_u32', 's42', 's42', 2)
    a.salu('s_cmp_ge_u32', 's42', s(sseg), nodst=True)
    a.ins(f's_cbranch_scc1 {L}x')
    a.salu('s_sub_u32', 's88', 's88', 1)
    a.ins(f's_cbranch_scc1 {L}x')
    a.salu('s_sub_u32', 's42', s(sseg), 's42')
    a.salu('s_min_u32', 's42', 's42', 6)
    a.label(f'{L}s')
    a.ins('s_sleep 24')
    a.salu('s_sub_u32', 's42', 's42', 1)
    a.salu('s_cmp_lg_u32', 's42', 0, nodst=True)
    a.ins(f's_cbranch_scc1 {L}s')
    a.ins(f's_branch {L}')
    a.label(f'{L}x')

def prog_wait(a, lab, va, vd, vneed, sbase, sleep, scnt='s40'):
    a.salu('s_mov_b32', scnt, 1 << 22)
    a.label(lab)
    a.vmem('buffer_load_dword', v(vd), v(va), 's[4:7]', sbase, mods='offen sc1')
    a.salu('s_sub_u32', scnt, scnt, 1)
    a.ins(f's_cbranch_scc1 {lab}_go')
    a.ins('s_waitcnt vmcnt(0)')
    a.valu('v_subrev_u32', v(vd), vneed, v(vd))
    a.valu('v_cmp_lt_u32', 'vcc', 64, v(vd))
    a.ins(f's_cbranch_vccz {lab}_go')
    a.ins(f's_sleep {sleep}')
    a.ins(f's_branch {lab}')
    a.label(f'{lab}_go')

def k_main(a, hd=0, hg=0, warm=1, msl=4, cp=1, wt=1, qw=9, qx=0, kvr=2, cop=0, nat=5, qp=0, wm=9, **kw):
    global KVR
    KVR = kvr
    n = NAME + '_kernel'
    DV[0] = 59
    start(a, n)
    a.salu('s_cmp_ge_u32', 's2', 256, nodst=True)
    a.ins('s_cbranch_scc1 L_exit')
    a.ins('s_load_dwordx4 s[84:87], s[0:1], 120')
    a.ins('s_load_dwordx16 s[48:63], s[0:1], 0')
    a.valu('v_lshrrev_b32', 'v1', 6, 'v0')
    a.valu('v_readfirstlane_b32', 's32', 'v1')
    a.ins('s_getreg_b32 s3, hwreg(HW_REG_XCC_ID)')
    a.salu('s_and_b32', 's3', 's3', 15)
    a.salu('s_cmp_lg_u32', 's32', 3, nodst=True)
    a.ins('s_cbranch_scc1 L_nowarm')
    a.ins('s_getpc_b64 s[44:45]')
    a.label('L_pcw')
    a.valu('v_and_b32', 'v1', 63, 'v0')
    a.valu('v_lshlrev_b32', 'v1', 7, 'v1')
    a.salu('s_cmp_lg_u32', 's3', XCC[0], nodst=True)
    a.salu('s_cselect_b32', 's33', 'L_helper-L_pcw', 0)
    a.valu('v_add_u32', 'v1', 's33', 'v1')
    for i in range(NWARM[0]):
        if i == 2: a.ins('s_cbranch_scc0 L_nowarm')
        a.valu('v_min_u32', 'v2', 'L_exit-L_pcw', 'v1')
        a.vmem('global_load_dword', v(240 + i), 'v2', 's[44:45]')
        a.valu('v_add_u32', 'v1', 8192, 'v1')
    a.label('L_nowarm')
    a.forget()
    a.ins('s_waitcnt lgkmcnt(0)')
    ws_srd(a, 86)
    a.salu('s_mov_b32', s(DBG), 's84'); a.salu('s_mov_b32', s(DBG + 1), 's85')
    a.salu('s_mov_b32', s(DBG + 2), 256); a.salu('s_mov_b32', s(DBG + 3), '0x20000')
    a.salu('s_mov_b32', s(sNONCE), 0)
    diag(a, 0)
    a.salu('s_cmp_lg_u32', 's3', XCC[0], nodst=True)
    a.ins('s_cbranch_scc1 L_helper')
    lanes = C.Chain(a, 'x', gs=kw.get('gs', 2))
    ticket(a, C.sH, D_CH, mid=lanes.load_lanes)
    a.salu('s_cmp_ge_u32', s(C.sH), NCH[0], nodst=True)
    a.ins('s_cbranch_scc1 L_helper')
    a.label('L_chain')
    diag(a, 14)
    ldiag(a, 0, 250)
    diag(a, 15, s(C.sH))
    if DIAG[0]:
        a.ins('s_getreg_b32 s89, hwreg(HW_REG_HW_ID)'); diag(a, 12, 's89')
    def kvaddr(a, va, sb):
        a.salu('s_lshr_b32', s(sb), s(C.sH), 1); a.salu('s_lshl_b32', s(sb), s(sb), 8); a.salu('s_add_u32', s(sb), s(sb), Q.SY_PRG)
        a.valu('v_bfe_u32', v(va), v(C.LH), 4, 6); a.valu('v_min_u32', v(va), 11, v(va)); a.valu('v_lshlrev_b32', v(va), 2, v(va))
    def kvwait(a, lab, need, va, vd):
        kvaddr(a, va, 92)
        a.salu('s_add_u32', 's93', s(sNONCE), need)
        prog_wait(a, lab, va, vd, 's93', 's92', 2, scnt='s94')
    def hook(a):
        if not DIAG[0]: return
        a.salu('s_lshl_b32', 's88', s(C.sH), 2); a.salu('s_add_u32', 's88', 's88', s(C.sW))
        a.salu('s_cmp_lg_u32', 's88', 0, nodst=True)
        a.ins('s_cbranch_scc1 L_nohook')
        a.ins('s_memrealtime s[90:91]'); a.ins('s_memtime s[72:73]'); a.ins('s_waitcnt lgkmcnt(0)')
        a.valu('v_mov_b32', v(C.Rq[1]), 's90'); a.valu('v_mov_b32', v(C.Rq[1] + 1), 's72')
        a.salu('s_lshl_b32', 's88', s(C.sSTEP), 3); a.salu('s_add_u32', 's88', 's88', 200 << 20)
        a.vmem('buffer_store_dwordx2', v(C.Rq[1], 2), 'off', 's[4:7]', 's88', load=False)
        a.label('L_nohook')
        a.fence()
    def chain_body(tag, safe):
        for i in range(5): a.salu('s_mov_b64', s(C.sPTR + 2 * i, 2), s(C.sPTR + 2 * i + 2, 2))
        def cpywait(a, early=False):
            if early:
                a.salu('s_lshl_b32', 's89', 's73', 7); a.salu('s_add_u32', 's89', 's89', C.SY_CPY)
                a.valu('v_min_u32', 'v33', 7, 'v57'); a.valu('v_lshlrev_b32', 'v33', 2, 'v33')
                a.salu('s_cmp_eq_u32', 's72', 0, nodst=True)
                a.ins(f's_cbranch_scc1 {tag}_cpe')
                a.ins(f'buffer_load_dword v34, off, s[{DBG}:{DBG+3}], 0 offset:{D_NONCE} sc1')
                a.ins('buffer_load_dword v35, v33, s[4:7], s89 offen sc1')
                a.lines.append(f'{tag}_cpe:')
                CPS[0] = a.vm_seq
                return
            q0, d0 = a.vm_seq, dict(a.done)
            a.wait(vm=CPS[0])
            a.valu('v_readfirstlane_b32', s(sNONCE), 'v34')
            a.valu('v_cmp_ne_u32', 'vcc', 'v34', 'v35')
            a.salu('s_cmp_eq_u32', s(sNONCE), 0, nodst=True)
            a.ins(f's_cbranch_scc1 {tag}_cps')
            a.ins(f's_cbranch_vccz {tag}_cpo')
            a.label(f'{tag}_cps')
            get_nonce(a, 34)
            flags_wait(a, 's89', 0, 8, 33, 35, sleep=1)
            a.label(f'{tag}_cpo')
            a.vm_seq, a.done = q0, d0
        def w0hook(a):
            if not safe: hook(a)
            a.salu('s_cmp_lg_u32', s(C.sSTEP), 6 * KVR - 2, nodst=True)
            a.ins(f's_cbranch_scc1 {tag}_nokv')
            kvwait(a, f'{tag}_kv1', Q.DONE, C.Rq[1], C.Rq[1] + 1)
            ldiag(a, 5, C.Rq[1])
            a.label(f'{tag}_nokv')
        if safe: ch = C.Chain(a, tag, fl='sc1', lfl='sc1', xoff=C.XOFF, d0=200, d1=200, dB=100, dZ=400, ks=1, w0hook=w0hook, spinmax=1 << 20)
        else: ch = C.Chain(a, tag, cpy=cpywait if cp else None, ptrace=(lambda a, j: diag(a, 16 + j)), w0hook=w0hook, spinmax=1 << 20, **kw)
        if safe: ch.load_lanes()
        arr, mode = (D_ARR2, D_GO2) if safe else (D_ARR, D_MODE)
        def st1(a):
            a.valu('v_mov_b32', 'v46', 1)
            a.salu('s_mov_b64', 'exec', 1)
            a.vmem('buffer_atomic_add', 'v46', 'off', s(DBG, 4), 0, mods=f'offset:{arr} sc0')
            a.salu('s_mov_b64', 'exec', -1)
        def st2(a):
            a.valu('v_readfirstlane_b32', 's41', 'v46')
            a.valu('v_mov_b32', 'v36', 1); a.valu('v_mov_b32', 'v37', 0)
            a.salu('s_cmp_eq_u32', 's41', 127, nodst=True)
            a.salu('s_cselect_b64', 'exec', 1, 0)
            a.vmem('buffer_atomic_cmpswap', 'v[36:37]', 'off', s(DBG, 4), 0, mods=f'offset:{mode}', load=False)
            a.salu('s_mov_b64', 'exec', -1)
        def st3(a):
            a.vmem('buffer_load_dword', 'v38', 'off', s(DBG, 4), 0, mods=f'offset:{mode} sc1')
            a.vmem('buffer_load_dword', 'v39', 'off', s(DBG, 4), 0, mods=f'offset:{D_NONCE} sc1')
            kvaddr(a, 40, 84)
            a.vmem('buffer_load_dword', 'v41', 'v40', 's[4:7]', 's84', mods='offen sc1')
        def st4(a):
            a.valu('v_readfirstlane_b32', s(sNONCE), 'v39')
            a.valu('v_readfirstlane_b32', 's85', 'v38')
            a.salu('s_add_u32', 's86', s(sNONCE), KVR)
            a.valu('v_subrev_u32', 'v41', 's86', 'v41')
            a.valu('v_cmp_lt_u32', 's[86:87]', 64, 'v41')
            a.salu('s_cmp_eq_u32', s(sNONCE), 0, nodst=True)
            a.salu('s_cselect_b64', 's[86:87]', -1, 's[86:87]')
            a.salu('s_cmp_lg_u64', 's[86:87]', 0, nodst=True)
            a.ins(f's_cbranch_scc1 {tag}_nt')
            ch.touch_kv()
            a.lines.append(f'{tag}_nt:')
        def late(a):
            q0, d0 = a.vm_seq, dict(a.done)
            get_nonce(a, 24)
            a.vm_seq, a.done = q0, d0
        ch.prologue(st1, st2, st3, st4, late)
        diag(a, 2)
        a.salu('s_cmp_eq_u32', 's85', 1, nodst=True)
        a.ins(f's_cbranch_scc1 {tag}_run')
        a.salu('s_mov_b32', 's40', (1 << 24) if safe else TMO[0])
        a.label(f'{tag}_startpoll')
        a.vmem('buffer_load_dword', 'v3', 'off', s(DBG, 4), 0, mods=f'offset:{mode} sc1')
        a.wait(vm='all')
        a.valu('v_readfirstlane_b32', 's85', 'v3')
        a.salu('s_cmp_eq_u32', 's85', 1, nodst=True)
        a.ins(f's_cbranch_scc1 {tag}_run')
        if not safe:
            a.salu('s_cmp_eq_u32', 's85', 2, nodst=True)
            a.ins(f's_cbranch_scc1 {tag}_leave')
        a.ins('s_sleep 1')
        a.salu('s_sub_u32', 's40', 's40', 1)
        a.ins(f's_cbranch_scc0 {tag}_startpoll')
        if safe: a.ins('s_endpgm')
        else:
            a.valu('v_mov_b32', 'v4', 2); a.valu('v_mov_b32', 'v5', 0)
            a.salu('s_mov_b64', 'exec', 1)
            a.vmem('buffer_atomic_cmpswap', 'v[4:5]', 'off', s(DBG, 4), 0, mods=f'offset:{D_MODE}', load=False)
            a.salu('s_mov_b64', 'exec', -1)
            a.salu('s_mov_b32', 's40', 1 << 20)
            a.ins(f's_branch {tag}_startpoll')
            a.label(f'{tag}_leave')
            a.valu('v_lshrrev_b32', 'v0', 4, v(C.LH))
            a.salu('s_mov_b32', 's32', s(C.sW))
            a.ins('s_load_dwordx16 s[48:63], s[0:1], 0')
            a.ins('s_waitcnt lgkmcnt(0)')
            a.ins('s_branch L_helper')
        a.label(f'{tag}_run')
        diag(a, 3)
        a.salu('s_cmp_eq_u64', 's[86:87]', 0, nodst=True)
        a.ins(f's_cbranch_scc1 {tag}_kvok')
        kvwait(a, f'{tag}_kv0', KVR, 2, 3)
        ch.touch_kv()
        a.ins('s_waitcnt vmcnt(0)')
        a.label(f'{tag}_kvok')
        ch.loop_init()
        diag(a, 4)
        ldiag(a, 4, 24)
        if not safe and DIAG[0]: print(ch.outs, [(j[1], j[3] // 1024) for j in ch.sched])
        ch.step()
        diag(a, 5)
        ldiag(a, 6, 24)
        a.ins('s_endpgm')
        ch.load_sub()
    chain_body('cf', False)
    a.label('L_chain_safe')
    a.forget()
    chain_body('cs', True)
    def mode_check(lab):
        a.salu('s_mov_b32', 's40', 4 * TMO[0])
        a.label(f'{lab}_w')
        a.vmem('buffer_load_dword', 'v250', 'off', s(DBG, 4), 0, mods=f'offset:{D_MODE} sc1')
        a.wait(vm='all')
        a.valu('v_readfirstlane_b32', 's41', 'v250')
        a.salu('s_cmp_lg_u32', 's41', 0, nodst=True)
        a.ins(f's_cbranch_scc1 {lab}_known')
        a.salu('s_sub_u32', 's40', 's40', 1)
        a.ins(f's_cbranch_scc1 {lab}_force')
        a.ins('s_sleep 2')
        a.ins(f's_branch {lab}_w')
        a.label(f'{lab}_force')
        a.valu('v_mov_b32', 'v250', 2); a.valu('v_mov_b32', 'v251', 0)
        a.salu('s_mov_b64', 'exec', 1)
        a.vmem('buffer_atomic_cmpswap', 'v[250:251]', 'off', s(DBG, 4), 0, mods=f'offset:{D_MODE}', load=False)
        a.salu('s_mov_b64', 'exec', -1)
        a.ins('s_waitcnt vmcnt(0)')
        a.salu('s_mov_b32', 's40', 4 * TMO[0])
        a.ins(f's_branch {lab}_w')
        a.label(f'{lab}_known')
    a.forget()
    a.label('L_helper')
    DV[0] = 249
    a.forget()
    a.ins('s_load_dwordx16 s[64:79], s[0:1], 64')
    a.salu('s_sub_u32', 's33', 's3', XCC[0] + 1); a.salu('s_and_b32', 's33', 's33', 3 if FX[0] else 7)
    a.label('L_pool')
    a.salu('s_lshl_b32', 's35', 's33', 2); a.salu('s_add_u32', 's35', 's35', D_POOL)
    ticket(a, 34, 's35')
    a.salu('s_mov_b32', 's36', 's33')
    a.salu('s_or_b32', 's33', 's34', 's32')
    a.salu('s_cmp_lg_u32', 's33', 0, nodst=True)
    a.ins('s_cbranch_scc1 L_helper1')
    a.ins('s_memrealtime s[90:91]'); a.ins('s_waitcnt lgkmcnt(0)')
    a.salu('s_lshl_b32', 's90', 's90', 8); a.salu('s_or_b32', 's90', 's90', 1)
    a.valu('v_mov_b32', 'v250', 's90'); a.valu('v_mov_b32', 'v251', 0)
    a.salu('s_mov_b64', 'exec', 1)
    a.vmem('buffer_atomic_cmpswap', 'v[250:251]', 'off', s(DBG, 4), 0, mods=f'offset:{D_NONCE}', load=False)
    a.salu('s_mov_b64', 'exec', -1)
    a.label('L_helper1')
    if warm:
        a.salu('s_cmp_lg_u32', s(sNONCE), 0, nodst=True)
        a.ins('s_cbranch_scc1 L_nowm')
        a.salu('s_sub_u32', 's37', 's35', D_POOL); a.salu('s_lshl_b32', 's37', 's37', 3); a.salu('s_add_u32', 's37', 's37', 's34')
        a.salu('s_mul_i32', 's37', 's37', 21504)
        a.salu('s_mov_b32', 's14', 576 * 8192); a.salu('s_mov_b32', 's15', '0x20000')
        a.salu('s_mov_b32', 'm0', 155648)
        if warm == 1:
            a.valu('v_lshlrev_b32', 'v1', 6, 'v0'); a.valu('v_add_u32', 'v2', 16384, 'v1'); a.valu('v_min_u32', 'v2', 21504 - 64, 'v2')
        else: a.valu('v_lshlrev_b32', 'v1', 4, 'v0')
        for p in [x for i, x in enumerate((58, 56, 54, 52)) if wm >> i & 1]:
            a.salu('s_mov_b64', 's[12:13]', s(p, 2))
            if warm == 1:
                a.raw('    buffer_load_dword v1, s[12:15], s37 offen lds'); a.raw('    buffer_load_dword v2, s[12:15], s37 offen lds')
            else:
                for i in range(6):
                    a.salu('s_add_u32', 's38', 's37', min(i * 4096, 21504 - 4096))
                    a.raw('    buffer_load_dwordx4 v1, s[12:15], s38 offen lds')
        a.label('L_nowm')
    if hd:
        a.salu('s_mul_i32', 's37', 's36', 171); a.salu('s_lshr_b32', 's37', 's37', 10); a.salu('s_mul_i32', 's37', 's37', 6); a.salu('s_sub_u32', 's37', 's36', 's37')
        a.salu('s_cmp_lt_u32', 's37', hg, nodst=True); a.ins('s_cbranch_scc1 L_nhd')
        for i in range(hd): a.ins('s_sleep 127')
        a.label('L_nhd')
    diag(a, 9)
    a.salu('s_cmp_ge_u32', 's34', 32, nodst=True)
    a.ins('s_cbranch_scc1 L_qkv_next')
    a.salu('s_cmp_ge_u32', 's36', 7, nodst=True)
    a.ins('s_cbranch_scc1 L_qkv_next')
    a.salu('s_max_u32', 's37', 's36', 4); a.salu('s_sub_u32', 's37', 's37', 4); a.salu('s_mul_i32', 's37', 's37', 6)
    a.salu('s_lshl_b32', 's38', 's36', 1); a.salu('s_add_u32', 's38', 's38', 's37')
    a.salu('s_cmp_lt_u32', 's36', 4, nodst=True); a.salu('s_cselect_b32', 's39', 2, 8)
    a.salu('s_mul_i32', 's36', 's36', 30); a.salu('s_sub_u32', 's36', 's36', 's37')
    a.salu('s_cmp_lt_u32', 's34', 's39', nodst=True)
    a.ins('s_cbranch_scc1 L_copy')
    a.salu('s_add_u32', 's36', 's36', 's34'); a.salu('s_sub_u32', 's36', 's36', 's39')
    a.salu('s_mul_i32', 's37', 's36', 171); a.salu('s_lshr_b32', 's37', 's37', 10)
    a.salu('s_mul_i32', 's38', 's37', 6); a.salu('s_sub_u32', 's36', 's36', 's38')
    a.salu('s_lshl_b32', 's36', 's36', 5); a.salu('s_add_u32', 's36', 's36', 's37')
    a.ins('s_branch L_job')
    a.label('L_copy')
    if 1:
        a.salu('s_add_u32', 's36', 's38', 's34')
        a.salu('s_mul_i32', 's36', 's36', 11); a.salu('s_and_b32', 's36', 's36', 31)
        a.salu('s_cmp_ge_u32', 's36', 18 if cp else 0, nodst=True)
        a.ins('s_cbranch_scc1 L_qkv_next')
        a.salu('s_mul_i32', 's39', 's36', 57); a.salu('s_lshr_b32', 's39', 's39', 9)
        a.salu('s_mul_i32', 's37', 's39', 9); a.salu('s_sub_u32', 's37', 's36', 's37')
        a.salu('s_sub_u32', 's33', 1, 's39')
        a.salu('s_mul_i32', 's36', 's37', 3); a.salu('s_add_u32', 's36', 's36', 's33')
        a.salu('s_lshl_b32', 's38', 's37', 2); a.salu('s_add_u32', 's38', 's38', 1); a.salu('s_min_u32', 's38', 's38', 31)
        a.salu('s_lshr_b32', 's39', 's52', 8); a.salu('s_sub_u32', 's38', 's38', 's39'); a.salu('s_and_b32', 's38', 's38', 31)
        a.salu('s_lshl_b32', 's38', 's38', 8)
        a.salu('s_cmp_eq_u32', 's33', 1, nodst=True); a.salu('s_cselect_b64', 's[12:13]', 's[54:55]', 's[52:53]')
        a.salu('s_mov_b32', 's14', 576 * 8192); a.salu('s_mov_b32', 's15', '0x20000')
        a.valu('v_lshrrev_b32', 'v1', 4, 'v0'); a.valu('v_lshlrev_b32', 'v1', 13, 'v1'); a.valu('v_and_b32', 'v2', 15, 'v0'); a.valu('v_lshl_add_u32', 'v1', 'v2', 4, 'v1')
        a.valu('v_lshlrev_b32', 'v2', 4, 'v0')
        a.salu('s_mul_i32', 's39', 's36', 576 * 256); a.salu('s_add_u32', 's39', 's39', C.WS_CPY)
        tg = []
        for i in range(36):
            tg.append(a.vmem('buffer_load_dwordx4', v(8 + 4 * i, 4), 'v1', 's[12:15]', 's38', mods='offen'))
            a.salu('s_add_u32', 's38', 's38', 16 * 8192)
        for i in range(36):
            if i == 0: a.wait(vm='all')
            a.vmem('buffer_store_dwordx4', v(8 + 4 * i, 4), 'v2', 's[4:7]', 's39', mods='offen sc1', load=False, data=v(8 + 4 * i, 4))
            a.salu('s_add_u32', 's39', 's39', 4096)
        get_nonce(a, 3)
        a.salu('s_lshl_b32', 's37', 's37', 7); a.salu('s_lshl_b32', 's36', 's33', 2); a.salu('s_add_u32', 's36', 's36', 's32')
        a.salu('s_lshl_b32', 's36', 's36', 2); a.salu('s_add_u32', 's37', 's37', 's36'); a.salu('s_add_u32', 's37', 's37', C.SY_CPY)
        a.valu('v_mov_b32', 'v3', s(sNONCE))
        a.ins('s_waitcnt vmcnt(0)')
        a.salu('s_mov_b64', 'exec', 1)
        a.vmem('buffer_store_dword', 'v3', 'off', 's[4:7]', 's37', mods='sc1', load=False)
        a.salu('s_mov_b64', 'exec', -1)
        diag(a, 44)
    a.label('L_qkv_next')
    if qp:
        a.salu('s_sub_u32', 's33', 's3', XCC[0] + 1); a.salu('s_and_b32', 's33', 's33', 3 if FX[0] else 7)
        a.salu('s_cmp_eq_u32', 's33', 7, nodst=True)
        a.ins('s_cbranch_scc1 L_qscan')
        a.label('L_qtake')
        a.salu('s_lshl_b32', 's35', 's33', 2); a.salu('s_add_u32', 's35', 's35', D_QP)
        ticket(a, 34, 's35')
        a.salu('s_mul_i32', 's36', 's33', 19); a.salu('s_add_u32', 's36', 's36', 's34')
        a.salu('s_cmp_ge_u32', 's34', 19, nodst=True); a.salu('s_cselect_b32', 's36', 128, 's36')
        a.salu('s_cmp_lt_u32', 's36', 128, nodst=True)
        a.ins('s_cbranch_scc1 L_qjob')
        a.label('L_qscan')
        scan(a, D_QP, 2)
        a.salu('s_cmp_lt_u32', 's33', 7, nodst=True)
        a.ins('s_cbranch_scc1 L_qtake')
        a.ins('s_branch L_ssm_next')
        a.label('L_qjob')
        a.salu('s_and_b32', 's37', 's36', 7); a.salu('s_lshl_b32', 's37', 's37', 4); a.salu('s_lshr_b32', 's36', 's36', 3)
        a.salu('s_add_u32', 's36', 's36', 's37'); a.salu('s_add_u32', 's36', 's36', 192)
    else:
        ticket(a, 36, D_HELP)
        a.salu('s_add_u32', 's36', 's36', 192)
        a.salu('s_cmp_ge_u32', 's36', 320, nodst=True)
        a.ins('s_cbranch_scc1 L_ssm_next')
    a.label('L_job')
    a.salu('s_and_b32', s(Q.sHh), 's36', 15); a.salu('s_lshl_b32', s(Q.sHh), s(Q.sHh), 1)
    a.salu('s_bfe_u32', s(Q.sM), 's36', '0x10004')
    a.salu('s_lshr_b32', s(Q.sSEG), 's36', 5)
    a.salu('s_mul_i32', 's33', s(Q.sM), 6); a.salu('s_add_u32', 's33', 's33', s(Q.sSEG))
    a.salu('s_add_u32', s(Q.sM), s(Q.sM), 1)
    a.salu('s_lshr_b32', 's37', 's36', 4); a.salu('s_sub_u32', 's38', 's37', 12)
    a.salu('s_cmp_ge_u32', 's36', 192, nodst=True)
    a.salu('s_cselect_b32', s(Q.sM), 0, s(Q.sM))
    a.salu('s_cselect_b32', s(Q.sSEG), 's38', s(Q.sSEG))
    a.salu('s_cselect_b32', 's33', 's37', 's33')
    a.salu('s_cselect_b32', s(Q.sSTR), 8, 6)
    def nonce_early(a):
        a.valu('v_mov_b32', 'v28', s(sNONCE))
        a.salu('s_cmp_lg_u32', s(sNONCE), 0, nodst=True)
        a.ins('s_cbranch_scc1 L_ne')
        a.ins(f'buffer_load_dword v28, off, s[{DBG}:{DBG+3}], 0 offset:{D_NONCE} sc1')
        a.lines.append('L_ne:')
    Q.qkv_role(a, 'qk', 48, 52, sNONCE, 33, at=(nat, nonce_early), late=lambda a: (a.valu('v_readfirstlane_b32', s(sNONCE), 'v28'), get_nonce(a, 25), dsel(a, 8)), qw=qw, qx=qx, cop=cop)
    dsel(a, 6)
    a.salu('s_cmp_ge_u32', 's36', 64, nodst=True)
    a.ins('s_cbranch_scc1 L_qkv_next')
    a.salu('s_lshr_b32', 's33', 's36', 5)
    Q.memkv_role(a, 'mk', sNONCE, 33, slp=msl)
    diag(a, 1)
    a.ins('s_endpgm')
    a.label('L_ssm_next')
    ticket(a, S.sD0, D_SSM)
    a.salu('s_cmp_ge_u32', s(S.sD0), 144, nodst=True)
    a.ins('s_cbranch_scc1 L_phase2')
    a.salu('s_lshl_b32', s(S.sD0), s(S.sD0), 2)
    a.forget()
    S.ssm_job(a, 'ss', 62, 76)
    diag(a, 7)
    a.ins('s_branch L_ssm_next')
    sWv, sCB = 32, 33
    a.label('L_phase2')
    a.forget()
    scan(a, D_POOL, False)
    a.salu('s_cmp_lt_u32', 's33', 7, nodst=True)
    a.ins('s_cbranch_scc1 L_pool')
    if wt > 1:
        a.salu('s_cmp_lg_u32', 's32', 0, nodst=True); a.ins('s_cbranch_scc1 L_nwb'); a.ins('buffer_wbl2 sc1'); a.ins('s_waitcnt vmcnt(0)'); a.label('L_nwb')
    get_nonce(a, 250)
    mode_check('mc2')
    a.salu('s_cmp_eq_u32', 's41', 1, nodst=True)
    a.ins('s_cbranch_scc1 L_phase2b')
    ticket(a, C.sH, D_CH2)
    a.salu('s_cmp_lt_u32', s(C.sH), 32, nodst=True)
    a.ins('s_cbranch_scc1 L_chain_safe')
    a.label('L_phase2b')
    a.salu('s_mov_b32', 's8', 's76'); a.salu('s_mov_b32', 's9', 's77')
    a.salu('s_mov_b32', 's10', 2048 * 2304); a.salu('s_mov_b32', 's11', '0x20000')
    a.salu('s_sub_u32', 's33', 's3', XCC[0] + 1); a.salu('s_and_b32', 's33', 's33', 3 if FX[0] else 7)
    a.salu('s_cmp_eq_u32', 's33', 7, nodst=True)
    a.ins('s_cbranch_scc1 L_p2scan')
    a.label('L_p2take')
    a.salu('s_lshl_b32', 's35', 's33', 2); a.salu('s_add_u32', 's35', 's35', D_P2)
    ticket(a, 34, 's35')
    a.salu('s_cmp_lt_u32', 's33', 4, nodst=True); a.salu('s_cselect_b32', 's36', 4, 6)
    a.salu('s_cmp_lt_u32', 's34', 's36', nodst=True)
    a.ins('s_cbranch_scc1 L_att0')
    a.salu('s_sub_u32', 's34', 's34', 's36')
    a.salu('s_cmp_lt_u32', 's34', 18, nodst=True)
    a.ins('s_cbranch_scc1 L_op_start')
    a.label('L_p2scan')
    scan(a, D_P2, True)
    a.salu('s_cmp_lt_u32', 's33', 7, nodst=True)
    a.ins('s_cbranch_scc1 L_p2take')
    a.ins('s_branch L_done')
    a.label('L_att0')
    a.salu('s_mul_i32', 's36', 's34', 7); a.salu('s_mul_i32', 's37', 's34', 3); a.salu('s_add_u32', 's37', 's37', 12)
    a.salu('s_cmp_lt_u32', 's34', 4, nodst=True); a.salu('s_cselect_b32', 's34', 's36', 's37')
    a.salu('s_add_u32', 's34', 's34', 's33')
    a.salu('s_cmp_ge_u32', 's34', 32, nodst=True)
    a.ins('s_cbranch_scc1 L_done')
    a.label('L_att_next')
    a.forget()
    a.salu('s_lshr_b32', s(A.sSEG), 's34', 3)
    a.salu('s_and_b32', s(A.sHh), 's34', 7)
    a.salu('s_lshl_b32', s(A.sHh), s(A.sHh), 2)
    a.salu('s_add_u32', s(A.sHh), s(A.sHh), s(sWv))
    a.salu('s_lshr_b32', 's36', s(A.sHh), 1); a.salu('s_lshl_b32', 's36', 's36', 8); a.salu('s_add_u32', 's36', 's36', Q.SY_PRG)
    a.salu('s_mul_i32', 's37', s(A.sSEG), 43); a.salu('s_lshr_b32', 's37', 's37', 8)
    a.salu('s_mul_i32', 's41', 's37', 6); a.salu('s_sub_u32', 's41', s(A.sSEG), 's41')
    a.valu('v_and_b32', 'v1', 63, 'v0')
    a.valu('v_mul_u32_u24', 'v2', 6, 'v1'); a.valu('v_add_u32', 'v2', 's41', 'v2')
    a.valu('v_mov_b32', 'v4', 's37')
    a.salu('s_and_b32', 's41', s(A.sSEG), 7); a.salu('s_add_u32', 's41', 's41', 12)
    a.salu('s_lshr_b32', 's37', s(A.sSEG), 3)
    a.valu('v_mov_b32', 'v5', 's41'); a.valu('v_mov_b32', 'v6', 's37')
    a.valu('v_cmp_lt_u32', 'vcc', 1, 'v1')
    a.valu('v_cndmask_b32', 'v2', 'v2', 'v5', 'vcc'); a.valu('v_cndmask_b32', 'v4', 'v4', 'v6', 'vcc')
    a.valu('v_lshlrev_b32', 'v2', 2, 'v2')
    a.valu('v_add3_u32', 'v4', 'v4', s(sNONCE), 1)
    prog_wait(a, 'L_aw1', 2, 3, 'v4', 's36', 4)
    def mid(a):
        a.fence()
        trace(a, 0, 34, 0)
        coarse_wait(a, A.sSEG, 199, 36)
        trace(a, 0, 34, 1)
        a.salu('s_and_b32', 's37', s(A.sSEG), 1); a.salu('s_lshl_b32', 's37', 's37', 2); a.salu('s_add_u32', 's37', 's37', 's36'); a.salu('s_add_u32', 's37', 's37', 128)
        a.salu('s_add_u32', 's41', s(A.sSEG), s(sNONCE)); a.salu('s_add_u32', 's41', 's41', 1)
        a.salu('s_lshl_b32', 's42', s(A.sHh), 7); a.salu('s_add_u32', 's42', 's42', C.SY_CHF)
        a.salu('s_cmp_ge_u32', s(A.sSEG), 62, nodst=True)
        a.salu('s_cselect_b32', 's37', 's42', 's37')
        a.salu('s_cselect_b32', 's42', 12, 8)
        a.valu('v_lshlrev_b32', 'v198', 2, 'v0'); a.valu('v_and_b32', 'v198', 's42', 'v198')
        prog_wait(a, 'L_aw2', 198, 199, 's41', 's37', ATS[0])
        trace(a, 0, 34, 2)
    A.attn_job(a, 'at', ld_fl='sc1', st_fl='sc1', mid=mid)
    a.salu('s_lshr_b32', 's40', 's34', 1)
    a.salu('s_lshl_b32', 's40', 's40', 7)
    a.salu('s_and_b32', 's41', s(A.sHh), 7)
    a.salu('s_lshl_b32', 's41', 's41', 2)
    a.salu('s_add_u32', 's40', 's40', 's41')
    a.salu('s_add_u32', 's40', 's40', SY_ATT)
    a.valu('v_mov_b32', 'v250', s(sNONCE))
    a.ins('s_waitcnt vmcnt(0)')
    a.salu('s_mov_b64', 'exec', 1)
    a.vmem('buffer_store_dword', 'v250', 'off', 's[4:7]', 's40', mods='sc1', load=False)
    a.salu('s_mov_b64', 'exec', -1)
    trace(a, 0, 34, 3)
    a.salu('s_add_u32', 's34', 's34', 32)
    a.salu('s_cmp_lt_u32', 's34', 512, nodst=True)
    a.fence()
    a.ins('s_cbranch_scc1 L_att_next')
    a.ins('s_branch L_done')
    a.label('L_op_start')
    a.forget()
    a.salu('s_mov_b32', s(A.sSEG), 's33')
    a.salu('s_mov_b32', s(sCB), 's34')
    A.oproj_load(a, 58, sCB, sWv)
    a.label('L_op_seg')
    a.salu('s_lshr_b32', 's43', s(A.sSEG), 1)
    a.salu('s_add_u32', 's43', 's43', 1)
    a.salu('s_min_u32', 's43', 's43', 63)
    a.salu('s_and_b32', 's36', s(sCB), 15); a.salu('s_lshl_b32', 's36', 's36', 8); a.salu('s_add_u32', 's36', 's36', Q.SY_PRG)
    a.salu('s_lshl_b32', 's94', s(sCB), 7); a.salu('s_add_u32', 's94', 's94', s(A.sSEG))
    trace(a, 65536, 94, 0)
    coarse_wait(a, 43, 3, 36)
    trace(a, 65536, 94, 1)
    a.salu('s_lshr_b32', 's89', s(A.sSEG), 1)
    a.salu('s_lshl_b32', 's89', 's89', 2)
    a.salu('s_add_u32', 's89', 's89', s(sWv))
    a.salu('s_lshl_b32', 's89', 's89', 7)
    a.salu('s_add_u32', 's89', 's89', SY_ATT)
    flags_wait(a, 's89', 0, 8, 2, 3, sleep=OPS[0])
    trace(a, 65536, 94, 2)
    A.oproj_seg(a, 'os', 8, sCB, sWv, A.sSEG, ofl='sc1' if wt else '')
    trace(a, 65536, 94, 3)
    a.salu('s_add_u32', s(A.sSEG), s(A.sSEG), 7)
    a.salu('s_cmp_ge_u32', s(A.sSEG), 128, nodst=True)
    a.ins('s_cbranch_scc1 L_done')
    a.ins('s_barrier')
    a.ins('s_branch L_op_seg')
    a.label('L_done')
    diag(a, 10)
    ldiag(a, 7, 250)
    a.label('L_exit')
    a.ins('s_endpgm')
    a.raw(kd(n, 512, 256))

def build(**kw):
    hdr = open(f'/code/{NAME}.s.ref').read().split('; Override launch geometry')[0]
    a = Asm()
    a.raw(hdr.rstrip())
    a.raw('; @launch grid=(256,1,1) block=(256,1,1) lds=163840')
    a.raw('.amdgcn_target "amdgcn-amd-amdhsa--gfx950"')
    k_main(a, **kw)
    return a.text()

if __name__ == '__main__':
    kw = dict(d0=72, dB=15, ks=2, pA=14, d1=70, dX=40, dZ=168, pbr=0)
    open('one.s', 'w').write(build(**kw))
    for spec in sys.argv[1:]:
        k2 = dict((x.split('=')[0], int(x.split('=')[1])) for x in spec.split(','))
        open('one_' + spec.replace('=', '').replace(',', '_') + '.s', 'w').write(build(**{**kw, **k2}))
    XCC[0] = 9; TMO[0] = 1 << 8; FX[0] = 1
    open('one_safe.s', 'w').write(build(**kw))
    XCC[0] = 0; TMO[0] = 1 << 8; NCH[0] = 31; FX[0] = 0
    open('one_safe2.s', 'w').write(build(**kw))
    TMO[0] = 1 << 17; NCH[0] = 32
    LD[0] = 1
    open('one_l.s', 'w').write(build(**kw))
    for spec in sys.argv[1:]:
        k2 = dict((x.split('=')[0], int(x.split('=')[1])) for x in spec.split(','))
        open('one_' + spec.replace('=', '').replace(',', '_') + '_l.s', 'w').write(build(**{**kw, **k2}))
    LD[0] = 0
    DIAG[0] = 1
    for spec in sys.argv[1:]:
        k2 = dict((x.split('=')[0], int(x.split('=')[1])) for x in spec.split(','))
        open('one_' + spec.replace('=', '').replace(',', '_') + '_d.s', 'w').write(build(**{**kw, **k2}))
    open('one_d.s', 'w').write(build(**kw))
    print('ok')
```

```python
from asmfw import Asm, R
import chain2 as C
import qkv2 as Q2

def s(i, n=1): return R(i, n, 's')
def v(i, n=1): return R(i, n, 'v')
MF32 = 'v_mfma_f32_16x16x32_bf16'
MF16 = 'v_mfma_f32_16x16x16_bf16'
SRD_WS = 4
WS_OF = C.WS_O

sSEG, sHh = 16, 17
sT0, sT1, sT2, sT3, sC1 = 18, 19, 20, 21, 22

def attn_job(a: Asm, tag, ld_fl='', st_fl='', mid=None):
    L16, L8, KMA, DD, TMP, NEG = 1, 2, 3, 4, 5, 6
    Q, K, KM, V, VM, S = 8, 40, 72, 88, 120, 136
    PB, ONES, HALF, LS, O = 160, 172, 176, 180, 188
    srd = s(SRD_WS, 4)
    a.valu('v_and_b32', v(TMP), 63, 'v0')
    a.valu('v_lshlrev_b32', v(L16), 4, v(TMP))
    a.valu('v_or_b32', v(KMA), 0x80, v(L16))
    a.valu('v_lshrrev_b32', v(DD), 4, v(TMP))
    a.valu('v_bfe_u32', v(NEG), v(TMP), 2, 2)
    a.valu('v_sub_u32', v(DD), v(NEG), v(DD))
    a.valu('v_lshlrev_b32', v(DD), 3, v(DD))
    a.valu('v_and_b32', v(NEG), 3, v(TMP))
    a.valu('v_add_u32', v(DD), v(DD), v(NEG))
    a.valu('v_mov_b32', v(NEG), '0xf149f2ca')
    a.salu('s_mov_b32', s(sC1), '0x3e0293ee')
    a.salu('s_lshl_b32', s(sT0), s(sSEG), 5)
    a.salu('s_add_u32', s(sT0), s(sT0), s(sHh))
    a.salu('s_lshl_b32', s(sT1), s(sT0), 13)
    tq = {}
    def ld4(dst, base, i):
        a.salu('s_add_u32', s(sT2), s(sT1), base + (i // 4) * 4096)
        return a.vmem('buffer_load_dwordx4', v(dst, 4), v(L16), srd, s(sT2), mods=f'offen offset:{(i%4)*1024} ' + ld_fl)
    for i in range(8): ld4(Q + 4 * i, C.WS_Q, i)
    a.salu('s_lshl_b32', s(sT3), s(sT0), 14)
    def ldkv(dst, j, w):
        a.salu('s_add_u32', s(sT2), s(sT3), C.WS_KV + w * 4096)
        return a.vmem('buffer_load_dwordx4', v(dst, 4), v(L16), srd, s(sT2), mods=f'offen offset:{j*1024} ' + ld_fl)
    for i in range(8): ldkv(K + 4 * i, i // 4, i % 4)
    tk0 = a.vm_seq
    for i in range(8): ldkv(V + 4 * i, 2 + i // 4, i % 4)
    for i in range(4): a.valu('v_mov_b32', v(ONES + i), '0x3f803f80')
    for i in range(2): a.valu('v_mov_b32', v(HALF + i), '0x3f003f00')
    a.wait(vm=tk0)
    def St(xq, kt): return S + (xq * 3 + kt) * 4
    for w in range(4):
        for xq in range(2):
            for kt in range(2):
                d = v(St(xq, kt), 4)
                a.mfma(MF32, d, v(K + (kt * 4 + w) * 4, 4), v(Q + (xq * 4 + w) * 4, 4), 0 if w == 0 else d)
    for xq in range(2):
        for xk in range(2):
            for r in range(4):
                e = 4 * (xk - xq) + r
                a.valu('v_cmp_le_i32', 'vcc', e, v(DD))
                a.valu('v_cndmask_b32', v(St(xq, xk) + r), v(NEG), v(St(xq, xk) + r), 'vcc')
    if mid: mid(a)
    a.salu('s_mov_b32', s(sT3), 1 << 12)
    a.label(f'{tag}_again')
    a.salu('s_lshl_b32', s(sT2), s(sT0), 12)
    a.salu('s_add_u32', s(sT2), s(sT2), C.WS_KM)
    for w in range(4):
        tk = a.vmem('buffer_load_dwordx4', v(KM + 4 * w, 4), v(KMA), srd, s(sT2), mods=f'offen offset:{w*1024} ' + ld_fl)
    a.salu('s_lshl_b32', s(sT2), s(sT0), 12)
    a.salu('s_add_u32', s(sT2), s(sT2), C.WS_VM)
    for i in range(4):
        tv = a.vmem('buffer_load_dwordx4', v(VM + 4 * i, 4), v(L16), srd, s(sT2), mods=f'offen offset:{i*1024} ' + ld_fl)
    a.wait(vm=tk)
    for w in range(4):
        for xq in range(2):
            d = v(St(xq, 2), 4)
            a.mfma(MF32, d, v(KM + 4 * w, 4), v(Q + (xq * 4 + w) * 4, 4), 0 if w == 0 else d)
    M1, M2 = 196, 197
    a.valu('v_max3_u32', v(M1), v(KM), v(KM + 4), v(KM + 8))
    a.wait(vm=tv)
    a.valu('v_max3_u32', v(M1), v(M1), v(KM + 12), v(VM)); a.valu('v_max3_u32', v(M1), v(M1), v(VM + 4), v(VM + 8)); a.valu('v_max_u32', v(M1), v(M1), v(VM + 12))
    a.valu('v_cmp_eq_u32', 'vcc', -1, v(M1))
    a.salu('s_sub_u32', s(sT3), s(sT3), 1)
    a.fence()
    a.ins(f's_cbranch_scc1 {tag}_ok')
    a.ins(f's_cbranch_vccnz {tag}_again')
    a.label(f'{tag}_ok')
    for xq in range(2):
        Sx = [St(xq, 0) + i for i in range(12)]
        a.valu('v_max3_f32', v(M1), v(Sx[0]), v(Sx[1]), v(Sx[2]))
        a.valu('v_max3_f32', v(M2), v(Sx[3]), v(Sx[4]), v(Sx[5]))
        a.valu('v_max3_f32', v(M1), v(M1), v(Sx[6]), v(Sx[7]))
        a.valu('v_max3_f32', v(M2), v(M2), v(Sx[8]), v(Sx[9]))
        a.valu('v_max3_f32', v(M1), v(M1), v(Sx[10]), v(Sx[11]))
        a.valu('v_max_f32', v(M1), v(M1), v(M2))
        a.valu('v_mov_b32', v(M2), v(M1))
        a.valu('v_permlane32_swap_b32', v(M1), v(M2))
        a.valu('v_max_f32', v(M1), v(M1), v(M2))
        a.valu('v_mov_b32', v(M2), v(M1))
        a.valu('v_permlane16_swap_b32', v(M1), v(M2))
        a.valu('v_max_f32', v(M1), v(M1), v(M2))
        a.valu('v_mul_f32', v(M1), s(sC1), v(M1))
        a.valu('v_sub_f32', v(M1), 0, v(M1))
        for i in range(12): a.valu('v_fma_f32', v(Sx[i]), v(Sx[i]), s(sC1), v(M1))
        for i in range(12): a.valu('v_exp_f32', v(Sx[i]), v(Sx[i]))
        for i in range(6): a.valu('v_cvt_pk_bf16_f32', v(PB + xq * 6 + i), v(Sx[2 * i]), v(Sx[2 * i + 1]))
    for xq in range(2):
        a.mfma(MF32, v(LS + xq * 4, 4), v(ONES, 4), v(PB + xq * 6, 4), 0)
    for xq in range(2):
        a.mfma(MF16, v(LS + xq * 4, 4), v(HALF, 2), v(PB + xq * 6 + 4, 2), v(LS + xq * 4, 4))
    for xq in range(2):
        a.valu('v_rcp_f32', v(LS + xq * 4), v(LS + xq * 4))
    a.wait(vm=tv)
    a.salu('s_lshl_b32', s(sT0), s(sSEG), 18)
    a.salu('s_lshl_b32', s(sT1), s(sHh), 12)
    a.salu('s_add_u32', s(sT0), s(sT0), s(sT1))
    a.salu('s_add_u32', s(sT0), s(sT0), WS_OF)
    a.salu('s_add_u32', s(sT1), s(sT0), 131072)
    def Ot(w, xq, tau): return 8 + ((w * 2 + xq) * 2 + tau) * 4
    for w in range(4):
        for xq in range(2):
            for tau in range(2):
                a.mfma(MF32, v(Ot(w, xq, tau), 4), v(V + (tau * 4 + w) * 4, 4), v(PB + xq * 6, 4), 0)
    for w in range(4):
        for xq in range(2):
            for tau in range(2):
                d = v(Ot(w, xq, tau), 4)
                a.mfma(MF16, d, v(VM + w * 4 + tau * 2, 2), v(PB + xq * 6 + 4, 2), d)
    for w in range(4):
        for xq in range(2):
            o0, o1 = Ot(w, xq, 0), Ot(w, xq, 1)
            for r in range(4):
                a.valu('v_mul_f32', v(o0 + r), v(o0 + r), v(LS + xq * 4))
                a.valu('v_mul_f32', v(o1 + r), v(o1 + r), v(LS + xq * 4))
            for r in range(4):
                a.valu('v_cvt_pk_bf16_f32', v(o0 + r), v(o0 + 2 * r), v(o0 + 2 * r + 1))
            a.vmem('buffer_store_dwordx4', v(o0, 4), v(L16), srd, s(sT1 if xq else sT0), mods=f'offen offset:{w*1024} ' + st_fl, load=False, data=v(o0, 4))

def oproj_load(a: Asm, pWO, sCB, sWv):
    SRD_W = 12
    L, GA, TA, T = 2, 3, 4, 5
    a.valu('v_and_b32', v(L), 63, 'v0')
    a.valu('v_lshlrev_b32', 'v1', 4, v(L))
    a.valu('v_lshrrev_b32', v(T), 2, v(L)); a.valu('v_mul_u32_u24', v(GA), 1152, v(T))
    a.valu('v_and_b32', v(T), 3, v(L)); a.valu('v_lshl_add_u32', v(GA), v(T), 4, v(GA))
    a.salu('s_lshl_b32', s(sT3), s(sWv), 12)
    a.valu('v_add_u32', v(TA), s(sT3), 'v1')
    a.salu('s_mov_b64', s(SRD_W, 2), s(pWO, 2))
    a.salu('s_mov_b32', s(SRD_W + 2), 4096 * 1152); a.salu('s_mov_b32', s(SRD_W + 3), '0x20000')
    a.salu('s_mul_i32', s(sT1), s(sWv), 1024 * 1152); a.salu('s_lshl_b32', s(sT0), s(sCB), 6); a.salu('s_add_u32', s(sT1), s(sT1), s(sT0))
    jobs = []
    for j in range(16):
        def setup(a, j=j): a.salu('s_add_u32', s(sT0), s(sT1), j * 64 * 1152)
        rd = [(R(((2 * j + kk) * 2 + tau) * 4 + 2 * jp, 2, 'a'), 0, kk * 2048 + jp * 1024 + tau * 8) for kk in range(2) for tau in range(2) for jp in range(2)]
        jobs.append((setup, 16 * 1152, rd))
    Q2.tr_loader(a, SRD_W, jobs, GA, TA, 6, 7, sT3, sT0, [16384 * i for i in range(9)])
    a.ins('s_barrier')

def oproj_seg(a: Asm, tag, SRD_O, sCB, sWv, sJOB, ld_fl='sc1', pre=None, post=None, ofl=''):
    L16, TMP, TMP2, VO = 1, 2, 3, 4
    ACC, RING = 8, 32
    srd = s(SRD_WS, 4)
    a.salu('s_mov_b32', s(sT3), 1 << 12)
    a.label(f'{tag}_again')
    a.salu('s_lshl_b32', s(sT0), s(sJOB), 17)
    a.salu('s_lshl_b32', s(sT1), s(sWv), 15)
    a.salu('s_add_u32', s(sT0), s(sT0), s(sT1))
    a.salu('s_add_u32', s(sT0), s(sT0), WS_OF)
    tg = {}
    for k in range(32):
        if k % 4 == 0 and k: a.salu('s_add_u32', s(sT0), s(sT0), 4096)
        tg[k] = a.vmem('buffer_load_dwordx4', v(RING + k * 4, 4), v(L16), srd, s(sT0), mods=f'offen offset:{(k % 4) * 1024} ' + ld_fl)
    a.valu('v_lshlrev_b32', v(TMP), 4, 'v0')
    a.valu('v_and_b32', v(TMP2), 0xc00, v(TMP))
    a.valu('v_lshl_add_u32', v(TMP), v(TMP2), 1, v(L16))
    for k in range(32):
        a.wait(vm=tg[k])
        for tau in range(2):
            d = v(ACC + tau * 4, 4)
            a.mfma(MF32, d, R((k * 2 + tau) * 4, 4, 'a'), v(RING + k * 4, 4), 0 if k == 0 else d)
        if k == 0: a.valu('v_mov_b32', v(VO), v(RING))
        else: a.valu('v_max_u32', v(VO), v(VO), v(RING + k * 4))
    a.valu('v_cmp_eq_u32', 'vcc', -1, v(VO))
    a.salu('s_sub_u32', s(sT3), s(sT3), 1)
    a.fence()
    a.ins(f's_cbranch_scc1 {tag}_ok')
    a.ins(f's_cbranch_vccnz {tag}_again')
    a.label(f'{tag}_ok')
    if pre: pre(a)
    for q in range(2):
        a.ds('ds_write_b128', v(TMP), v(ACC + 4 * q, 4), mods=f'offset:{q*1024}')
    a.wait(lds='all')
    a.ins('s_barrier')
    if post: post(a)
    a.salu('s_cmp_lg_u32', s(sWv), 0, nodst=True)
    a.ins(f's_cbranch_scc1 {tag}_skip')
    for ww in range(1, 4):
        for tau in range(2):
            a.ds('ds_read_b128', v(RING + (ww * 2 + tau) * 4, 4), v(L16), mods=f'offset:{ww*2048 + tau*1024}')
    a.valu('v_lshrrev_b32', v(TMP2), 4, v(L16))
    a.valu('v_bfe_u32', v(VO), v(TMP2), 2, 2)
    a.valu('v_lshlrev_b32', v(VO), 3, v(VO))
    a.valu('v_and_b32', v(TMP), 3, v(TMP2))
    a.valu('v_add_u32', v(VO), v(VO), v(TMP))
    a.valu('v_mul_u32_u24', v(VO), 2304, v(VO))
    a.valu('v_lshrrev_b32', v(TMP2), 4, v(TMP2))
    a.valu('v_lshl_add_u32', v(VO), v(TMP2), 4, v(VO))
    a.salu('s_lshr_b32', s(sT0), s(sJOB), 1)
    a.salu('s_lshl_b32', s(sT0), s(sT0), 3)
    a.salu('s_and_b32', s(sT1), s(sJOB), 1)
    a.salu('s_add_u32', s(sT0), s(sT0), s(sT1))
    a.salu('s_mul_i32', s(sT0), s(sT0), 4 * 2304)
    a.salu('s_lshl_b32', s(sT1), s(sCB), 6)
    a.salu('s_add_u32', s(sT0), s(sT0), s(sT1))
    a.wait(lds='all')
    for hh in range(4):
        d = ACC + hh * 2
        a.valu('v_pk_add_f32', v(d, 2), v(d, 2), v(RING + 8 + hh * 2, 2))
        a.valu('v_pk_add_f32', v(RING + 16 + hh * 2, 2), v(RING + 16 + hh * 2, 2), v(RING + 24 + hh * 2, 2))
        a.valu('v_pk_add_f32', v(d, 2), v(d, 2), v(RING + 16 + hh * 2, 2))
    for r in range(4):
        a.valu('v_cvt_pk_bf16_f32', v(RING + r), v(ACC + 2 * r), v(ACC + 2 * r + 1))
    a.vmem('buffer_store_dwordx4', v(RING, 4), v(VO), s(SRD_O, 4), s(sT0), mods='offen ' + ofl, load=False, data=v(RING, 4))
    a.label(f'{tag}_skip')
    a.fence()
```

```python
from asmfw import Asm, R

MB = 1 << 20
WS_KV = 0
WS_Q = 32 * MB
WS_O = 48 * MB
WS_MEM = 64 * MB
WS_PART = 64 * MB + 65536
XOFF = 1 * MB
WS_KM = 68 * MB
WS_VM = 77 * MB
WS_M0 = 88 * MB
WS_MEMH = 86 * MB
WS_CPY = 92 * MB
WS_SYNC = 120 * MB
SY_CHF = WS_SYNC + 16384
SY_CPY = WS_SYNC + 24576
WS_SIZE = 256 * MB

K = 1024
L_MISC = 96 * K
L_MBUF = L_MISC
L_TB = L_MISC + 9216
L_DUMP = L_MISC + 9728
L_NON = L_MISC + 9984
L_SEL = L_MISC + 10240
L_MM = L_MISC + 11264
L_SC = L_MISC + 12288
L_OB = L_MBUF
B_LW0, B_LW1 = 56 * K, 96 * K

LDS_ADDR = {}
for _t in range(4):
    LDS_ADDR[('k', 0, _t)] = _t * 16 * K
    LDS_ADDR[('k', 1, _t)] = _t * 16 * K + 8 * K
LDS_ADDR[('q', 0, 0)] = 64 * K; LDS_ADDR[('q', 1, 0)] = 72 * K
LDS_ADDR[('k', 0, 8)] = 80 * K; LDS_ADDR[('k', 1, 8)] = 88 * K
LDS_ADDR[('o', 2, 2)] = 112 * K; LDS_ADDR[('o', 3, 2)] = 120 * K
LDS_ADDR[('o', 2, 3)] = 128 * K; LDS_ADDR[('o', 3, 3)] = 136 * K
LDS_ADDR[('o', 4, 0)] = 144 * K; LDS_ADDR[('o', 4, 1)] = 152 * K

AQ0, AK0, AQ1, AK1, AV0, AV1 = 0, 4, 8, 12, 16, 20
Rq = [24 + 4 * i for i in range(9)]
IDX, LH, LW0, LW1, LW2, L16, PST, PSX, OR0, MST, MMW, LW3 = range(60, 72)
ZZ, OA1, OA2, OA3, OW, MMR, PFA = 72, 74, 75, 76, 77, 78, 79
VW0 = 80

def all_frags():
    fr = [(m, t, sl) for m in 'qkv' for sl in range(9) for t in range(2)]
    fr += [('o', u, k) for u in range(4) for k in range(4)] + [('o', 4, 0), ('o', 4, 1)]
    return fr
REGF = {}
_res = [f for f in all_frags() if f not in LDS_ADDR]
assert len(_res) == 54
for _i, _f in enumerate(_res): REGF[_f] = ('a', _i * 8) if _i < 32 else ('v', VW0 + (_i - 32) * 8)
def freg(f): return R(REGF[f][1], 8, REGF[f][0])

SRD, SRDW = 4, 8
sH, sW = 12, 13
sMEM, sMEM4, sMEM8, sMST, sMRS = 14, 15, 16, 17, 18
sPL, sPS0, sPS1, sPSX = 19, 20, 21, 22
sKX, sPF, sKM, sVM, sFL = 23, 24, 25, 26, 27
sSTEP, sSPIN, sTAG, sMSU = 28, 29, 30, 31
sSTM, sHI8, sW0M, sLO8 = 32, 34, 36, 38
sT0, sT1, sT2, sT3 = 40, 41, 42, 43
sC1, sNC1, sK128 = 44, 46, 47
sPTR = 48
sONE, sHALF = 60, 62
sROLE, sFV = 64, 65
sAL = 47
sACC = 68
sNONCE = 95
sSUM = 96

SMF = 'v_smfmac_f32_16x16x64_bf16'
MF32 = 'v_mfma_f32_16x16x32_bf16'
MF16 = 'v_mfma_f32_16x16x16_bf16'
def s(i, n=1): return R(i, n, 's')
def v(i, n=1): return R(i, n, 'v')

def lds_base(addr):
    if addr + 4096 < 64 * K: return LH, addr
    if addr < L_MISC + 16 * K: return LW0, addr - B_LW0
    return LW1, addr - B_LW1

class Chain:
    def __init__(self, a, tag, fl='', lfl='nt', pfl='sc1', xoff=0, nsteps=64, timing=0, dA=0, dB=24, d0=0, d1=24, dX=0, nopub=0, nopf=0,
                 hook=None, nomax=0, gap=0, dual=0, tstep=40, spinmax=1 << 16, prof=None, pstride=8, pA=20, pF=30, rt=0, dW=0, ks=2, early=1, k1=1, pskip=0, dZ=60, dE=0, ins0=0, p1=1, epf=1, npr=10, pg=6, dP=10, k0=1, pG=30, eo=1, w0hook=None, pbr=1, ppos=1, ptrace=None, lcap=16, lrev=5, gs=2, lord=1, lasy=4, lt=1, lpri=5, gforce=0, cpy=None, swn=4, swe=5, pf128=0, pfe=0, xnop=0, c1n=2, bf=0, hb=0, ha=1, hx=0):
        self.hx = hx
        self.hb = hb; self.ha = ha
        self.bf = bf
        self.c1n = c1n
        self.xnop = xnop
        self.pf128 = pf128; self.pfe = pfe
        self.swe = swe
        self.swn = swn
        self.cpy = cpy
        self.gforce = gforce
        self.lpri = lpri; self.tick = lambda: None
        self.lasy = lasy; self.lt = lt
        self.lord = lord
        self.gs = gs
        self.lcap = lcap; self.lrev = lrev
        self.ptrace = ptrace
        self.pbr = pbr; self.ppos = ppos
        self.w0hook = w0hook
        self.eo = eo
        self.k0 = k0; self.pG = pG
        self.npr = npr; self.pg = pg; self.dP = dP
        self.p1 = p1; self.epf = epf
        self.ins0 = ins0
        self.dZ = dZ; self.dE = dE
        self.pskip = pskip
        self.k1 = k1
        self.ks = ks; self.early = early
        self.dW = dW
        self.clk = 's_memrealtime' if rt else 's_memtime'
        self.pA = pA; self.pF = pF
        self.prof = prof; self.pstride = pstride
        self.a = a; self.tag = tag; self.fl = fl; self.lfl = lfl; self.pfl = pfl
        self.wsmem = WS_MEM + xoff; self.wspart = WS_PART + xoff; self.nsteps = nsteps; self.timing = timing
        self.dA = dA; self.dB = dB; self.d0 = d0; self.d1 = d1; self.dX = dX; self.nopub = nopub; self.nopf = nopf
        self.hook = hook; self.nomax = nomax; self.gap = gap; self.dual = dual; self.tstep = tstep; self.spinmax = spinmax

    def stamp(self, i):
        if self.prof is not None:
            if i == self.prof and not getattr(self.a, '_prof', None): self.a.start_prof(sACC, self.pstride, 12, self.pskip)
        elif self.timing == 1 or (self.timing == 2 and i == 0): self.a.ins(f'{self.clk} s[{sACC+2*i}:{sACC+2*i+1}]')

    def addresses(self):
        a = self.a
        T0, T1, C, G = 0 + 24, 25, 26, 27
        a.valu('v_lshrrev_b32', v(T0), 6, 'v0')
        a.valu('v_lshlrev_b32', v(LH), 4, 'v0')
        a.valu('v_add_u32', v(LW0), B_LW0, v(LH))
        a.valu('v_xor_b32', v(LW1), 1024, v(LH)); a.valu('v_add_u32', v(LW1), B_LW1, v(LW1))
        a.valu('v_xor_b32', v(LW2), 2048, v(LH)); a.valu('v_add_u32', v(LW2), B_LW1, v(LW2))
        a.valu('v_and_b32', v(L16), 1023, v(LH)); a.valu('v_add_u32', v(L16), B_LW1, v(L16))
        a.valu('v_and_b32', v(C), 15, 'v0')
        a.valu('v_bfe_u32', v(G), 'v0', 4, 2)
        a.valu('v_mov_b32', v(IDX), '0x4444'); a.valu('v_mov_b32', v(T1), '0xeeee')
        a.valu('v_cmp_lt_u32', 'vcc', 7, v(C))
        a.valu('v_cndmask_b32', v(IDX), v(IDX), v(T1), 'vcc')
        self.tick()
        a.valu('v_and_b32', v(PSX), 12, v(C)); a.valu('v_lshlrev_b32', v(PSX), 3, v(PSX))
        a.valu('v_and_b32', v(T1), 1, v(C)); a.valu('v_lshl_add_u32', v(PSX), v(T1), 4, v(PSX))
        a.valu('v_bfe_u32', v(T1), v(C), 1, 1); a.valu('v_lshl_add_u32', v(PSX), v(T1), 3, v(PSX))
        a.valu('v_lshl_add_u32', v(PST), v(G), 14, v(PSX)); a.valu('v_lshl_add_u32', v(PST), v(T0), 17, v(PST))
        self.tick()
        a.valu('v_and_b32', v(PSX), 63, v(PSX))
        a.valu('v_lshrrev_b32', v(T1), 1, v(T0)); a.valu('v_lshl_add_u32', v(PSX), v(T1), 18, v(PSX))
        a.valu('v_lshl_add_u32', v(PSX), v(G), 16, v(PSX))
        a.valu('v_lshrrev_b32', v(T1), 3, v(C)); a.valu('v_lshl_add_u32', v(PSX), v(T1), 15, v(PSX))
        a.valu('v_and_b32', v(T1), 1, v(T0)); a.valu('v_lshl_add_u32', v(PSX), v(T1), 6, v(PSX))
        self.tick()
        a.valu('v_and_b32', v(T1), 31, 'v0')
        a.valu('v_lshlrev_b32', v(MMW), 4, v(T1))
        a.valu('v_lshlrev_b32', v(28), 3, v(T1)); a.valu('v_add_u32', v(28), L_DUMP, v(28))
        a.valu('v_lshrrev_b32', v(T1), 1, v(T0)); a.valu('v_lshl_add_u32', v(MMW), v(T1), 9, v(MMW))
        a.valu('v_and_b32', v(T1), 1, v(T0)); a.valu('v_lshl_add_u32', v(MMW), v(T1), 3, v(MMW))
        a.valu('v_add_u32', v(MMW), L_MM, v(MMW))
        a.valu('v_cmp_gt_u32', 'vcc', 2, v(G))
        a.valu('v_cndmask_b32', v(MMW), v(MMW), v(28), 'vcc')
        self.tick()
        a.valu('v_xor_b32', v(LW3), 2048, v(LW1))
        a.valu('v_lshrrev_b32', v(OR0), 4, 'v0'); a.valu('v_lshlrev_b32', v(OR0), 7, v(OR0))
        a.valu('v_and_b32', v(T1), 7, v(C)); a.valu('v_lshl_add_u32', v(OR0), v(T1), 4, v(OR0)); a.valu('v_add_u32', v(OR0), L_OB, v(OR0))
        for i, r in enumerate((OA1, OA2, OA3)): a.valu('v_xor_b32', v(r), 512 * (i + 1), v(OR0))
        a.valu('v_lshrrev_b32', v(T1), 3, v(C)); a.valu('v_lshl_add_u32', v(OW), v(T1), 3, v(OR0))
        a.valu('v_or_b32', v(MMR), 512, v(L16)); a.valu('v_lshlrev_b32', v(PFA), 2, v(LH))
        if self.pf128: a.valu('v_and_b32', v(PFA), '0xffffff80', v(PFA))
        a.valu('v_mov_b64', v(ZZ, 2), 0)
        a.valu('v_and_b32', v(T1), 1, v(G)); a.valu('v_lshlrev_b32', v(MST), 7, v(T1))
        a.valu('v_lshrrev_b32', v(T1), 1, v(G)); a.valu('v_lshl_add_u32', v(MST), v(T1), 3, v(MST))
        a.valu('v_and_b32', v(T1), 3, v(C)); a.valu('v_lshl_add_u32', v(MST), v(T1), 4, v(MST))
        a.valu('v_bfe_u32', v(T1), v(C), 2, 1); a.valu('v_lshl_add_u32', v(MST), v(T1), 2, v(MST))
        self.tick()
        a.salu('s_mov_b32', s(sSTM), '0x00ff00ff'); a.salu('s_mov_b32', s(sSTM + 1), '0x00ff00ff')
        a.salu('s_not_b64', s(sHI8, 2), s(sSTM, 2))
        a.salu('s_lshr_b32', s(sMSU), s(sH), 1); a.salu('s_lshl_b32', s(sMSU), s(sMSU), 8)
        a.salu('s_and_b32', s(sT0), s(sH), 1); a.salu('s_lshl_b32', s(sT0), s(sT0), 6); a.salu('s_add_u32', s(sMSU), s(sMSU), s(sT0))
        a.salu('s_and_b32', s(sT0), s(sW), 1); a.salu('s_lshl_b32', s(sT0), s(sT0), 12)
        a.salu('s_add_u32', s(sMSU), s(sMSU), s(sT0))
        a.salu('s_lshl_b32', s(sPL), s(sH), 14); a.salu('s_add_u32', s(sPL), s(sPL), self.wspart - B_LW1)
        a.salu('s_add_u32', s(sT1), s(sPL), 8192)
        a.salu('s_add_u32', s(sPL), s(sPL), s(sT0))
        a.salu('s_and_b32', s(sT0), s(sH), 1); a.salu('s_lshl_b32', s(sT0), s(sT0), 2); a.salu('s_or_b32', s(sT0), s(sT0), s(sW))
        a.salu('s_cmp_eq_u32', s(sT0), 5, nodst=True)
        a.salu('s_cselect_b32', s(sROLE), 0, s(sW))
        a.salu('s_cmp_lg_u32', s(sW), 1, nodst=True)
        a.ins(f's_cbranch_scc1 {self.tag}_notx')
        a.salu('s_mov_b32', s(sSTM), '0xff'); a.salu('s_mov_b32', s(sSTM + 1), '0xff')
        a.salu('s_mov_b32', s(sPL), s(sT1))
        a.salu('s_lshr_b32', s(sMSU), s(sH), 3); a.salu('s_lshl_b32', s(sMSU), s(sMSU), 8)
        a.salu('s_and_b32', s(sT0), s(sH), 2); a.salu('s_lshl_b32', s(sT0), s(sT0), 6); a.salu('s_add_u32', s(sMSU), s(sMSU), s(sT0))
        a.salu('s_and_b32', s(sT0), s(sH), 4); a.salu('s_lshl_b32', s(sT0), s(sT0), 4); a.salu('s_add_u32', s(sMSU), s(sMSU), s(sT0))
        a.salu('s_add_u32', s(sMSU), s(sMSU), 8192)
        a.label(f'{self.tag}_notx')
        a.salu('s_cmp_lg_u32', s(sW), 0, nodst=True)
        a.ins(f's_cbranch_scc1 {self.tag}_notp')
        a.salu('s_min_u32', s(sT0), s(sH), 23); a.salu('s_mul_i32', s(sT0), s(sT0), 384); a.salu('s_add_u32', s(sT0), s(sT0), L_MBUF)
        a.valu('v_add_u32', v(MST), s(sT0), v(LH))
        a.valu('v_mov_b32', v(T1), L_NON)
        a.valu('v_cmp_lt_u32', 'vcc', 23, 'v0')
        a.valu('v_cndmask_b32', v(MST), v(MST), v(T1), 'vcc')
        a.label(f'{self.tag}_notp')
        a.fence()

    def init_exchange(self):
        a = self.a; srd = s(SRD, 4)
        self.tick()
        for i in range(4): a.valu('v_mov_b32', v(28 + i), 1)
        a.salu('s_lshl_b32', s(sT0), s(sH), 14); a.salu('s_add_u32', s(sT0), s(sT0), self.wspart)
        for rd in range(3):
            a.salu('s_add_u32', s(sT1), s(sT0), rd * 4096)
            a.vmem('buffer_store_dwordx4', v(28, 4), v(LH), srd, s(sT1), mods='offen ' + self.fl, load=False, data=v(28, 4))
        a.salu('s_cmp_eq_u32', s(sROLE), 0, nodst=True)
        a.salu('s_cselect_b64', 'exec', 0, s(sSTM, 2))
        a.valu('v_mov_b32', v(27), -1)
        for i in range(4):
            a.salu('s_add_u32', s(sT1), s(sMSU), self.wsmem + i * 16384)
            a.vmem('buffer_store_dword', v(27), v(MST), srd, s(sT1), mods='offen ' + self.fl, load=False)
        a.salu('s_mov_b64', 'exec', -1)
        self.tick()
        a.salu('s_mov_b64', s(68, 2), s(sPTR, 2))
        a.salu('s_mov_b32', s(70), 9216); a.salu('s_mov_b32', s(71), '0x20000')
        a.valu('v_and_b32', v(25), 7, 'v0'); a.valu('v_mul_u32_u24', v(25), 1152, v(25))
        a.valu('v_lshrrev_b32', v(26), 3, 'v0'); a.valu('v_lshl_add_u32', v(25), v(26), 4, v(25))
        a.vmem('buffer_load_dwordx4', v(36, 4), v(25), s(68, 4), 0, mods='offen')
        a.vmem('buffer_load_dwordx4', v(40, 4), v(25), s(68, 4), 0, mods='offen offset:512')
        a.valu('v_bfe_u32', v(25), 'v0', 2, 3); a.valu('v_mul_u32_u24', v(25), 1152, v(25))
        a.valu('v_lshrrev_b32', v(26), 5, 'v0'); a.valu('v_lshl_add_u32', v(25), v(26), 4, v(25))
        a.valu('v_and_b32', v(26), 3, 'v0'); a.valu('v_lshl_add_u32', v(25), v(26), 2, v(25))
        a.vmem('buffer_load_dword', v(44), v(25), s(68, 4), 0, mods='offen offset:1024')

    def init_late(self):
        a = self.a; srd = s(SRD, 4)
        for r in range(36, 45): a.valu('v_min_u32', v(r), -2, v(r))
        a.salu('s_lshl_b32', s(sMEM), s(sH), 16); a.salu('s_add_u32', s(sMEM), s(sMEM), WS_M0)
        a.salu('s_add_u32', s(sT1), s(sMEM), 4096); a.salu('s_add_u32', s(sT2), s(sMEM), 8192)
        a.valu('v_lshrrev_b32', v(45), 2, v(LH))
        a.vmem('buffer_store_dwordx4', v(36, 4), v(LH), srd, s(sMEM), mods='offen ' + self.fl, load=False, data=v(36, 4))
        a.vmem('buffer_store_dwordx4', v(40, 4), v(LH), srd, s(sT1), mods='offen ' + self.fl, load=False, data=v(40, 4))
        a.vmem('buffer_store_dword', v(44), v(45), srd, s(sT2), mods='offen ' + self.fl, load=False)

    def constants(self):
        a = self.a
        C, E, LO, HI = 24, 25, 26, 27
        a.valu('v_bfe_u32', v(C), v(LH), 4, 4)
        a.valu('v_bfe_u32', v(E), v(LH), 8, 1); a.valu('v_lshlrev_b32', v(E), 2, v(E)); a.valu('v_sub_u32', v(E), v(C), v(E))
        a.valu('v_mov_b32', v(LO), '0x3f80'); a.valu('v_mov_b32', v(HI), '0x3f800000')
        for m in range(4):
            self.tick()
            lo = 2 * m if m < 2 else 2 * m + 4
            a.valu('v_cmp_eq_u32', 'vcc', lo, v(E)); a.valu('v_cndmask_b32', v(16 + m), 0, v(LO), 'vcc')
            a.valu('v_cmp_eq_u32', 'vcc', lo + 1, v(E)); a.valu('v_cndmask_b32', v(16 + m), v(16 + m), v(HI), 'vcc')
            a.valu('v_cmp_eq_u32', 'vcc', 2 * m, v(C)); a.valu('v_cndmask_b32', v(20 + m), 0, v(LO), 'vcc')
            a.valu('v_cmp_eq_u32', 'vcc', 2 * m + 1, v(C)); a.valu('v_cndmask_b32', v(20 + m), v(20 + m), v(HI), 'vcc')

    def constants_put(self):
        a = self.a
        a.ds('ds_write_b128', v(MMR), v(16, 4), mods=f'offset:{L_TB - 512 - B_LW1}')
        a.ds('ds_write_b128', v(L16), v(20, 4), mods=f'offset:{L_SEL - B_LW1}')
        for m in range(4): a.valu('v_mov_b32', v(44 + m), s(sNONCE))
        a.valu('v_mov_b32', v(48), L_NON)
        a.ds('ds_write_b128', v(48), v(44, 4))

    def load_lanes(self):
        a = self.a
        GA, GO, GX, TA, TO, TX, T0, T1, T2 = 48, 49, 50, 51, 52, 53, 54, 55, 56
        L = 57
        a.valu('v_lshrrev_b32', v(T0), 6, 'v0')
        a.valu('v_readfirstlane_b32', s(sW), v(T0))
        a.valu('v_and_b32', v(L), 63, 'v0')
        def bit(dst, src, b, sh, acc):
            a.valu('v_bfe_u32', v(T0), v(src), b, 1)
            if acc: a.valu('v_lshl_add_u32', v(dst), v(T0), sh, v(dst))
            else: a.valu('v_lshlrev_b32', v(dst), sh, v(T0))
        bit(GA, L, 2, 13, 0); bit(GA, L, 3, 15, 1); bit(GA, L, 4, 14, 1); bit(GA, L, 5, 16, 1)
        a.valu('v_lshrrev_b32', v(T1), 4, v(L)); a.valu('v_and_b32', v(T1), 2, v(T1)); a.valu('v_xor_b32', v(T1), v(T1), v(L))
        a.valu('v_and_b32', v(T1), 3, v(T1)); a.valu('v_lshl_add_u32', v(GA), v(T1), 4, v(GA))
        bit(TA, L, 2, 6, 0); bit(TA, L, 3, 9, 1); bit(TA, L, 4, 7, 1); bit(TA, L, 5, 12, 1)
        bit(TA, L, 0, 3, 1); bit(TA, L, 1, 4, 1); bit(TA, L, 3, 5, 1)
        a.valu('v_lshrrev_b32', v(T1), 3, v(L)); a.valu('v_mul_u32_u24', v(GO), 1152, v(T1))
        a.valu('v_and_b32', v(T1), 7, v(L)); a.valu('v_lshl_add_u32', v(GO), v(T1), 4, v(GO))
        bit(TO, L, 4, 13, 0); bit(TO, L, 5, 9, 1); bit(TO, L, 2, 7, 1); bit(TO, L, 3, 5, 1)
        a.valu('v_and_b32', v(T1), 3, v(L)); a.valu('v_lshl_add_u32', v(TO), v(T1), 3, v(TO))
        a.valu('v_lshrrev_b32', v(T1), 2, v(L)); a.valu('v_mul_u32_u24', v(GX), 1152, v(T1))
        a.valu('v_and_b32', v(T1), 3, v(L)); a.valu('v_lshl_add_u32', v(GX), v(T1), 4, v(GX))
        bit(TX, L, 4, 12, 0); bit(TX, L, 5, 8, 1); bit(TX, L, 2, 6, 1); bit(TX, L, 3, 5, 1)
        a.valu('v_and_b32', v(T1), 3, v(L)); a.valu('v_lshl_add_u32', v(TX), v(T1), 3, v(TX))
        sWK, sX16 = 66, 93
        a.salu('s_lshl_b32', s(sWK), s(sW), 10)
        a.salu('s_and_b32', s(sX16), s(sW), self.gs - 1); a.salu('s_lshl_b32', s(sX16), s(sX16), 14)
        a.salu('s_and_b32', s(75), s(sW), 4 - self.gs); a.salu('s_lshl_b32', s(75), s(75), 19)
        for r in (TA, TO, TX): a.valu('v_add_u32', v(r), s(sWK), v(r))
        a.valu('v_mov_b32', v(58), v(GA))
        a.salu('s_mov_b32', s(SRDW + 2), 576 * 8192); a.salu('s_mov_b32', s(SRDW + 3), '0x20000')

    def load_sub(self):
        a = self.a; t = self.tag
        a.label(f'{t}_dma')
        a.salu('s_xor_b32', s(74), s(76), s(81))
        a.salu('s_add_u32', 'm0', s(74), s(80))
        a.salu('s_add_u32', s(76), s(76), 4096)
        a.raw(f'    buffer_load_dwordx4 v58, s[{SRDW}:{SRDW+3}], s78 offen lds')
        a.salu('s_add_u32', s(78), s(78), s(79))
        a.salu('s_cmp_lt_u32', s(76), s(77), nodst=True)
        a.ins(f's_cbranch_scc1 {t}_dma')
        a.ins('s_setpc_b64 s[82:83]')

    def load_weights(self):
        a = self.a; t = self.tag
        GA, GO, GX, TA, TO, TX, T0, T1, T2 = 48, 49, 50, 51, 52, 53, 54, 55, 56
        sWK, sCOL, sOB, sX16, sKS = 66, 67, 92, 93, 94
        a.salu('s_lshl_b32', s(sCOL), s(sH), 8); a.salu('s_lshl_b32', s(sT0), s(sW), 6); a.salu('s_add_u32', s(sCOL), s(sCOL), s(sT0))
        a.salu('s_mul_i32', s(sOB), s(sH), 128 * 1152)
        a.salu('s_lshr_b32', s(73), s(sPTR + 2), 8); a.salu('s_add_u32', s(73), s(73), s(sH)); a.salu('s_and_b32', s(73), s(73), 31)
        a.salu('s_bitcmp1_b32', '0xa2222222', s(73), nodst=True)
        a.salu('s_cselect_b32', s(88), 1 if self.cpy else 0, 0); a.salu('s_mov_b32', s(72), 0)
        a.salu('s_add_u32', s(73), s(73), 1); a.salu('s_lshr_b32', s(73), s(73), 2)
        def switch():
            L = f'{t}_ncp{len(a.lines)}'
            a.salu('s_cmp_eq_u32', s(88), 0, nodst=True)
            a.ins(f's_cbranch_scc1 {L}')
            self.cpy(a, L)
            a.salu('s_mov_b32', s(88), 0); a.salu('s_mov_b32', s(72), 5)
            a.salu('s_lshl_b32', s(74), s(73), 19); a.salu('s_add_u32', s(74), s(74), WS_CPY)
            a.salu('s_add_u32', s(sPTR + 2), s(SRD), s(74)); a.salu('s_addc_u32', s(sPTR + 3), s(SRD + 1), 0)
            for i in (4,): a.salu('s_add_u32', s(sPTR + i), s(sPTR + i - 2), 576 * 256); a.salu('s_addc_u32', s(sPTR + i + 1), s(sPTR + i - 1), 0)
            a.salu('s_lshl_b32', s(sCOL), s(sW), 6)
            a.valu('v_and_b32', v(T0), 63, v(GA)); a.valu('v_lshrrev_b32', v(GA), 13, v(GA)); a.valu('v_lshl_add_u32', v(GA), v(GA), 8, v(T0))
            a.lines.append(L + ':')
            cur['va'] = None; cur['st'] = None; cur['m'] = None; cur['sw'] = True
        pW = {'q': sPTR + 2, 'k': sPTR + 4, 'v': sPTR + 6, 'o': sPTR + 8}
        cur = {'m': None, 'va': GA, 'st': None, 'x': None, 'sw': False}
        def call(m, va, step, xm, buf, lo, hi):
            if cur['m'] != m: a.salu('s_mov_b64', s(SRDW, 2), s(pW[m], 2)); cur['m'] = m
            if cur['va'] != va: a.valu('v_mov_b32', v(58), v(va)); cur['va'] = va
            if cur['st'] != step:
                if va == GA and cur['sw']: a.salu('s_lshr_b32', s(79), step, s(72))
                else: a.salu('s_mov_b32', s(79), step)
                cur['st'] = step
            if cur['x'] != xm: a.salu('s_mov_b32', s(81), xm); cur['x'] = xm
            if lo == 0: a.salu('s_add_u32', s(80), s(sWK), buf); a.salu('s_mov_b32', s(76), 0)
            a.salu('s_mov_b32', s(77), hi * 4096)
            a.ins(f's_call_b64 s[82:83], {t}_dma')
            a.vm_seq += hi - lo
        def issue(job):
            kind, m, x, buf = job
            if kind == 'g':
                cur['ng'] = cur.get('ng', 0) + 1
                if self.cpy and self.swn < cur['ng'] <= self.swn + self.swe: switch()
                if self.cpy and self.swn <= cur['ng'] < self.swn + self.swe: self.cpy(a, None)
                a.salu('s_xor_b32', s(78), s(75), x * self.gs * 64 * 8192)
                if cur['sw']: a.salu('s_lshr_b32', s(78), s(78), s(72))
                a.salu('s_add_u32', s(78), s(78), s(sCOL))
                for p in range(0, 4 * self.gs, 2): call(m, GA, 16 * 8192, s(sX16), buf, p, p + 2); yield
            elif kind == 's':
                if cur['sw']: a.salu('s_lshr_b32', s(78), 512 * 8192, s(72)); a.salu('s_add_u32', s(78), s(78), s(sCOL))
                else: a.salu('s_add_u32', s(78), s(sCOL), 512 * 8192)
                for p in (0, 2): call(m, GA, 16 * 8192, 0, buf, p, p + 2); yield
            elif kind == 'o':
                a.salu('s_xor_b32', s(sKS), s(sW), x[1]); a.salu('s_mul_i32', s(sKS), s(sKS), 32 * 1152)
                a.salu('s_add_u32', s(sKS), s(sKS), s(sOB))
                a.salu('s_lshl_b32', s(74), s(sW), 7); a.salu('s_add_u32', s(sKS), s(sKS), s(74))
                a.salu('s_add_u32', s(78), s(sKS), x[0] * 512)
                for p in (0, 2): call(m, GO, 8 * 1152, 0, buf, p, p + 2); yield
            else:
                for kk in range(2):
                    a.salu('s_xor_b32', s(sKS), s(sW), 2 * kk); a.salu('s_mul_i32', s(sKS), s(sKS), 32 * 1152)
                    a.salu('s_add_u32', s(sKS), s(sKS), s(sOB))
                    a.salu('s_lshr_b32', s(74), s(sW), 1); a.salu('s_lshl_b32', s(74), s(74), 6)
                    a.salu('s_add_u32', s(sKS), s(sKS), s(74))
                    a.salu('s_add_u32', s(78), s(sKS), 1024)
                    call(m, GX, 16 * 1152, 0, buf, 2 * kk, 2 * kk + 2); yield
        def build(frs, base, offs, buf):
            a.valu('v_add_u32', v(T1), buf, v(base))
            if base == TA: a.valu('v_xor_b32', v(T2), 32, v(T1))
            tmp = {}
            for fi, f in enumerate(frs):
                k, b = ('v', 8 * fi) if f in LDS_ADDR else REGF[f]
                for jp in range(4):
                    alt, off = offs(fi, jp)
                    a.ds('ds_read_b64_tr_b16', R(b + 2 * jp, 2, k), v(T2 if alt else T1), mods=f'offset:{off}')
                self.tick()
            a.wait(lds='all')
            wr = False
            for fi, f in enumerate(frs):
                if f in LDS_ADDR:
                    rg, off = lds_base(LDS_ADDR[f])
                    if rg == LW1:
                        a.ins('s_barrier')
                    a.ds('ds_write_b128', v(rg), v(8 * fi, 4), mods=f'offset:{off}')
                    a.ds('ds_write_b128', v(rg), v(8 * fi + 4, 4), mods=f'offset:{off + 4096}')
                    wr = True
            if wr: a.wait(lds='all')
        oq = lambda fi, jp: (fi, (jp >> 1) * 8192 + (jp & 1) * 256)
        oo = lambda fi, jp: (0, (jp >> 1) * 4096 + (jp & 1) * 256 + fi * 64)
        ox = lambda fi, jp: (0, fi * 8192 + (jp >> 1) * 512 + (jp & 1) * 128)
        def consume(job):
            kind, m, x, buf = job
            if kind == 'g':
                for i in range(self.gs): build([(m, 0, x * self.gs + i), (m, 1, x * self.gs + i)], TA, oq, buf + i * 16384)
            elif kind == 's': build([(m, 0, 8), (m, 1, 8)], TA, oq, buf)
            elif kind == 'o': build([('o', 2 * x[0], x[1]), ('o', 2 * x[0] + 1, x[1])], TO, oo, buf)
            else: build([('o', 4, 0), ('o', 4, 1)], TX, ox, buf)
        jobs = [['o', 'o', x, None] for x in ((0, 0), (0, 1), (0, 2), (0, 3), (1, 0), (1, 1))] + [['s', 'v', 8, None]] + [['g', 'v', x, None] for x in range(4)] + [
                ['g', 'k', 2, None], ['g', 'k', 3, None], ['g', 'q', 2, None], ['g', 'q', 3, None], ['s', 'q', 8, None], ['g', 'q', 1, None],
                ['g', 'q', 0, 64 * K], ['g', 'k', 0, 0], ['g', 'k', 1, 32 * K], ['x', 'o', 0, 144 * K], ['o', 'o', (1, 3), 128 * K], ['o', 'o', (1, 2), 112 * K], ['s', 'k', 8, 80 * K]]
        size = lambda j: self.gs * 16 * K if j[0] == 'g' else 16 * K
        def finals(j):
            if j[:3] == ['g', 'q', 0]: return [(64 * K, 80 * K)]
            if j[3] is not None and j[4]: return [(j[3], j[3] + size(j))]
            return []
        for j in jobs: j.append(j[3] is not None)
        def place(n, done):
            busy = [(jobs[x][3], jobs[x][3] + size(jobs[x])) for x in range(done, n)] + [sp for x in range(n) for sp in finals(jobs[x])]
            if not jobs[n][4]: busy += finals(jobs[n])
            cands = [K * [112, 80, 16, 0, 144, 96, 32, 112, 64, 0, 32, 128, 64, 0, 32, 96, 112, 64, 0, 32, 144, 128, 112, 80][n]]
            for lo in cands:
                if all(b[1] <= lo or b[0] >= lo + size(jobs[n]) for b in busy): return lo
            return None
        tags = {}; S = dict(n=0, gen=None, left=0, j=0, out=0)
        def tick(force=False):
            if S['gen'] is None:
                n = S['n']
                if n >= len(jobs): return False
                lo = place(n, S['j'])
                if lo is None: return False
                if S['out'] + 2 > self.lcap and not force: return False
                jobs[n][3] = lo; S['gen'] = issue(jobs[n][:4]); S['left'] = size(jobs[n]) // 8192
            elif S['out'] + 2 > self.lcap and not force: return False
            next(S['gen']); S['left'] -= 1; S['out'] += 2
            if S['left'] == 0: tags[S['n']] = a.vm_seq; S['n'] += 1; S['gen'] = None
            return True
        self.tick = tick
        pend = list(self.stages); mark = None
        for i in range(self.lpri): tick()
        for j in range(len(jobs)):
            S['j'] = j
            if pend and (mark is None or (j > 0 and tags[j - 1] > mark)):
                pend.pop(0)(a); mark = a.vm_seq
            if len(jobs) - j in self.at:
                assert not pend
                self.at[len(jobs) - j](a)
            while tick(): pass
            while j not in tags: assert tick(True)
            a.wait(vm=tags[j])
            self.outs = getattr(self, 'outs', []) + [S['out']]
            S['out'] -= size(jobs[j]) // 4096
            consume(jobs[j][:4])
            if self.ptrace: self.ptrace(a, j)
        self.tick = lambda: None
        assert not pend
        self.sched = [(j[:4]) for j in jobs]
        a.ins('s_barrier')

    def prologue(self, st1=None, st2=None, st3=None, st4=None, late=None):
        a = self.a
        def s0(a): self.addresses(); self.init_exchange()
        def s1(a):
            self.init_late()
            if st1: st1(a)
            self.tick(); self.loop_scalars(); self.constants()
        def s4(a):
            self.touch_exchange()
            if st4: st4(a)
            else: self.touch_kv()
        self.stages = [s0, s1] + [x for x in (st2,) if x]
        self.at = {self.lt: s4}
        if st3: self.at[self.lasy] = st3
        self.load_weights()
        if late: late(a)
        self.constants_put()
        a.wait(vm='all', lds='all')
        a.fence()

    def loop_scalars(self):
        a = self.a
        a.salu('s_mov_b32', s(sC1), '0x3e0293ee'); a.salu('s_mov_b32', s(sC1 + 1), s(sC1))
        a.salu('s_mov_b32', s(sNC1), '0x42000000' if not self.gforce else 0)
        a.salu('s_mov_b32', s(sONE), '0x3f803f80'); a.salu('s_mov_b32', s(sONE + 1), s(sONE))
        a.salu('s_mov_b32', s(sHALF), '0x3e803e80'); a.salu('s_mov_b32', s(sHALF + 1), s(sHALF))
        a.salu('s_mov_b32', s(sSTEP), 0)
        a.salu('s_lshl_b32', s(sPF), s(sH), 14); a.salu('s_add_u32', s(sPF), s(sPF), WS_KV)
        a.salu('s_add_u32', s(sAL), s(sPF), (self.nsteps - 1) * 32 * 16384)
        a.salu('s_mul_i32', s(sT0), s(sW), 3072); a.salu('s_add_u32', s(sKX), s(sPF), s(sT0))
        a.salu('s_lshl_b32', s(sPS0), s(sH), 7); a.salu('s_add_u32', s(sPS0), s(sPS0), self.wspart)
        a.salu('s_add_u32', s(sPS1), s(sPS0), 65536)
        a.salu('s_add_u32', s(sLO8), s(sPS0), 4096); a.salu('s_add_u32', s(sLO8 + 1), s(sPS1), 4096)
        a.salu('s_lshl_b32', s(sPSX), s(sH), 7); a.salu('s_add_u32', s(sPSX), s(sPSX), self.wspart + 8192)
        a.salu('s_lshl_b32', s(sT0), s(sH), 12)
        a.salu('s_add_u32', s(sKM), s(sT0), WS_KM + (self.nsteps - 2) * 32 * 4096)
        a.salu('s_add_u32', s(sVM), s(sT0), WS_VM + (self.nsteps - 2) * 32 * 4096)
        a.salu('s_lshl_b32', s(sFV), s(sH), 9); a.salu('s_add_u32', s(sFV), s(sFV), WS_MEMH)
        a.salu('s_lshl_b32', s(sT0), s(sW), 5); a.salu('s_or_b32', s(sT0), s(sT0), s(sH))
        a.salu('s_cmp_lt_u32', s(sT0), 24, nodst=True)
        a.salu('s_cselect_b32', s(sW0M), '0x1ffffff', 0); a.salu('s_mov_b32', s(sW0M + 1), 0)
        a.salu('s_lshl_b32', s(sFL), s(sH), 7); a.salu('s_add_u32', s(sFL), s(sFL), SY_CHF)
        a.salu('s_lshl_b32', s(sT0), s(sW), 2); a.salu('s_add_u32', s(sFL), s(sFL), s(sT0))

    def touch_kv(self):
        a = self.a
        a.salu('s_add_u32', s(sT0), s(sPF), 32 * 16384)
        a.ins(f'buffer_load_dword v30, v{PFA}, s[{SRD}:{SRD+3}], s{sPF} offen sc1')
        a.ins(f'buffer_load_dword v30, v{PFA}, s[{SRD}:{SRD+3}], s{sT0} offen sc1')

    def touch_exchange(self):
        a = self.a
        a.ins(f'buffer_load_dword v30, v{PFA}, s[{SRD}:{SRD+3}], s{sMEM} offen sc1')
        a.salu('s_lshl_b32', s(sT0), s(sH), 14); a.salu('s_add_u32', s(sT0), s(sT0), self.wspart)
        a.ins(f'buffer_load_dword v30, v{PFA}, s[{SRD}:{SRD+3}], s{sT0} offen sc1')
        a.salu('s_and_b32', s(sT0), s(sH), 3); a.salu('s_lshl_b32', s(sT0), s(sT0), 14); a.salu('s_add_u32', s(sT0), s(sT0), self.wsmem)
        a.ins(f'buffer_load_dword v30, v{PFA}, s[{SRD}:{SRD+3}], s{sT0} offen sc1')

    def loop_init(self):
        a = self.a
        a.salu('s_mov_b32', 'm0', L_DUMP)
        a.salu('s_add_u32', s(sPF), s(sPF), 2 * 32 * 16384)
        if self.timing:
            for i in range(24): a.salu('s_mov_b32', s(sACC + i), 0)

    def step(self):
        a = self.a; t = self.tag; fl = self.fl; lfl = self.lfl
        srd = s(SRD, 4); T = {}
        R0, R1, R2, R3, R4, R5, R6, R7, R8 = Rq
        ACCS = {'q0': AQ0, 'q1': AQ1, 'k0': AK0, 'k1': AK1, 'v0': AV0, 'v1': AV1}
        where = {}
        M = {}
        def fr(f, dst):
            rg, off = lds_base(LDS_ADDR[f])
            def f0(): where[f] = dst; a.ds('ds_read_b128', v(dst, 4), v(rg), mods=f'offset:{off}')
            def f1(): T[f] = a.ds('ds_read_b128', v(dst + 4, 4), v(rg), mods=f'offset:{off + 4096}')
            return f0, f1
        def xr(i): return {0: (LW0, B_LW0), 1: (LW1, B_LW1), 2: (LW2, B_LW1), 3: (LW3, B_LW1)}[i]
        def mr(sl, dst):
            def f():
                M[sl] = dst
                if sl == 8: T[('m', sl)] = a.ds('ds_read_b128', v(dst, 4), v(L16), mods=f'offset:{L_MBUF + 8192 - B_LW1}')
                else:
                    rg, b = xr(sl & 3)
                    T[('m', sl)] = a.ds('ds_read_b128', v(dst, 4), v(rg), mods=f'offset:{L_MBUF + (sl >> 2) * 4096 - b}')
            return f
        def wl(key): return lambda: a.wait(lds=T[key])
        def wv(key): return lambda: (a.wait(vm=T[key]) if T[key] > a.done['vm'] else None)
        def mm(o, sl):
            f = (o[0], int(o[1]), sl)
            a.mfma(SMF, v(ACCS[o], 4), v(M[sl], 4), v(where[f], 8) if f in LDS_ADDR else freg(f), v(IDX))
        def run(seq):
            for x in seq:
                if isinstance(x, tuple): mm(*x)
                elif x is not None: x()
        def sal(*args, **kw): return lambda: a.salu(*args, **kw)
        def val(*args, **kw): return lambda: a.valu(*args, **kw)
        def ins(x): return lambda: a.ins(x)
        def z2(r, c=0): return val('v_mov_b64', v(r, 2), c)
        def zero(lo, hi):
            for i in range(lo, hi, 2): z2(i)()
        def cvt(d, x, y=None): return val('v_cvt_pk_bf16_f32', v(d), v(x), v(x + 1 if y is None else y))
        def dpp(d, x, bm): return val('v_mov_b32_dpp', v(d), v(x), mods=f'row_ror:8 row_mask:0xf bank_mask:{bm}', rmw=True)
        def mf(op, d, A, B, C): return lambda: a.mfma(op, v(d, 4), v(A, 4 if op == MF32 else 2), v(B, 4 if op == MF32 else 2), 0 if C is None else v(C, 4))
        def zmf(d): return mf(MF16, d, ZZ, ZZ, None)
        def st(k): return lambda: self.stamp(k)
        LC, TM, LCW, MC = R8, R8 + 1, R8 + 2, R8 + 3
        def vbr(lab):
            a.ins(f's_cbranch_vccnz {lab}')
        def poll0(R0=R0):
            a.vmem('buffer_load_dwordx4', v(R0, 4), v(LH), srd, s(sMEM), mods='offen ' + lfl); a.nowait(v(R0, 4))
        def poll1():
            a.vmem('buffer_load_dwordx4', v(R1, 4), v(LH), srd, s(sMEM4), mods='offen ' + lfl)
            a.vmem('buffer_load_dword', v(MC), v(LC), srd, s(sMEM8), mods='offen ' + lfl)
            a.nowait(v(R1, 4)); a.nowait(v(MC))
        def prefetch_top():
            run(list(fr(('q', 1, 0), R2)) + list(fr(('k', 0, 0), R4)) + list(fr(('k', 1, 0), R6)))
        def prefetch_av(): run(list(fr(('q', 0, 0), AV0)))
        def offsets():
            a.salu('s_add_u32', s(sMEM4), s(sMEM), 4096); a.salu('s_add_u32', s(sMEM8), s(sMEM), 8192)
        def pubk(r):
            if self.nopub: return
            a.salu('s_mov_b64', 'exec', s(sHI8, 2))
            a.vmem('buffer_store_dwordx4', v(r, 4), v(LH), srd, s(sKM), mods='offen ' + self.pfl, load=False, data=v(r, 4))
            a.salu('s_mov_b64', 'exec', -1)
        def pubv(r):
            if self.nopub: return
            a.vmem('buffer_store_dwordx4', v(r, 4), v(LH), srd, s(sVM), mods='offen ' + self.pfl, load=False, data=v(r, 4))
        def flag(r):
            if self.nopub: return
            a.salu('s_mov_b64', 'exec', 1)
            a.vmem('buffer_store_dword', v(r), 'off', srd, s(sFL), mods='sc1', load=False)
            a.salu('s_mov_b64', 'exec', -1)
        def pf(r):
            if self.nopf: return
            a.raw(f'    buffer_load_dword v{r}, s[{SRD}:{SRD+3}], s{sPF} offen sc1 lds'); a.pos += 1; a.vm_seq += 1

        offsets(); prefetch_top()
        a.salu('s_mov_b32', s(sSPIN), self.spinmax)
        poll0()
        a.raw('.p2align 6')
        a.label(f'{t}_loop')
        a.forget()
        zero(0, 16)
        a.label(f'{t}_loop2')
        st(0)()
        def top():
            prefetch_av()
            a.valu('v_lshrrev_b32', v(LC), 2, v(LH))
            a.valu('v_add_u32', v(LCW), L_MBUF + 8192, v(LC))
            if self.timing: a.salu('s_mov_b32', 's94', s(sSPIN))
            a.salu('s_mov_b32', s(sSPIN), self.spinmax)
            if self.hook: self.hook(a)
        top()
        for i in range(self.ks - 1):
            if self.pA: a.nop(self.pA)
            poll0()
        r1 = self.p1 == 3
        if r1:
            if self.dA: a.nop(self.dA)
            poll1()
        a.ins('s_waitcnt lgkmcnt(0)')
        a.label(f'{t}_chk0')
        a.ins(f's_waitcnt vmcnt({self.ks - 1 + (2 if r1 else 0)})')
        a.lines.append(f'{t}_chk0b:')
        st(1)()
        M[0] = R0; M[4] = R1
        K01, K11 = fr(('k', 0, 1), R2), fr(('k', 1, 1), R4)
        K02, K12 = fr(('k', 0, 2), R2), fr(('k', 1, 2), R4)
        K03, K13 = fr(('k', 0, 3), R2), fr(('k', 1, 3), R4)
        o2 = [sal('s_add_u32', s(sMRS), s(sMEM), s(sMSU)), sal('s_add_u32', s(sT1), s(sMEM), 16384), sal('s_and_b32', s(sT1), s(sT1), 0xffff),
              sal('s_add_u32', s(sT1), s(sT1), self.wsmem), sal('s_add_u32', s(sMST), s(sT1), s(sMSU)), sal('s_and_b32', s(sTAG), s(sSTEP), 1)]
        a.valu('v_max3_u32', v(TM), v(R0), v(R0 + 1), v(R0 + 2)); a.valu('v_max_u32', v(TM), v(TM), v(R0 + 3))
        a.valu('v_cmp_eq_u32', 'vcc', -1, v(TM))
        wA = a.ds('ds_write_b128', v(LW0), v(R0, 4), mods=f'offset:{L_MBUF - B_LW0}')
        vbr(f'{t}_spin0')
        run([('q0', 0), poll1 if self.p1 in (1, 3) else None, ('q1', 0), K01[0], ('k1', 0), K01[1], zmf(AV0), lambda: a.wait(lds=wA)])
        a.ins('s_barrier')
        st(2)()
        def kx(i):
            def f(): T['kx', i] = a.vmem('buffer_load_dwordx4', v(R2 + 4 * i, 4), v(LH), srd, s(sKX), mods=f'offen offset:{i*1024} sc1')
            return f
        c1 = [val('v_max3_u32', v(TM), v(R1), v(R1 + 1), v(R1 + 2)), val('v_max3_u32', v(TM), v(TM), v(R1 + 3), v(MC)), val('v_cmp_eq_u32', 'vcc', -1, v(TM))]
        def w1a(): a.ds('ds_write_b128', v(LW0), v(R1, 4), mods=f'offset:{L_MBUF + 4096 - B_LW0}')
        def w1b(): T['wB'] = a.ds('ds_write_b32', v(LCW), v(MC))
        if self.p1 == 2:
            run([mr(1, R6), zmf(AV1), poll1, mr(2, R7), ('k0', 0), K11[0], ('v0', 0), K11[1], ('v1', 0),
                 ('q0', 1), o2[0], o2[1], ('k0', 1), K02[0], ('q1', 1), K02[1], ('k1', 1), K12[0], ('v0', 1), K12[1], ('v1', 1), mr(3, R6),
                 ('k0', 2), K03[0], ('q0', 2), K03[1], ('k1', 2), K13[0], ('q1', 2), K13[1], ('v0', 2), ('v1', 2),
                 ('q0', 3), ins('s_waitcnt vmcnt(0)'), st(3), w1a, ('q1', 3), w1b, c1[0], c1[1], ('k0', 3), kx(0), c1[2], ('k1', 3), ('v0', 3)])
            vbr(f'{t}_spin1')
            a.lines.append(f'{t}_go1:')
            run([('v1', 3), wl('wB')])
        else:
            run([mr(1, R6), zmf(AV1), mr(2, R7), ('k0', 0), K11[0], ('v0', 0), K11[1], ('v1', 0),
                 ('q0', 1), o2[0], o2[1], ('k0', 1), K02[0], ('q1', 1), K02[1], ('k1', 1), K12[0], ('q0', 2), K12[1], ('q1', 2), mr(3, R6),
                 ('k0', 2), ins('s_waitcnt vmcnt(0)'), st(3), w1a, ('k1', 2), w1b, c1[0], ('q0', 3), K03[0], c1[1], ('q1', 3), K03[1], c1[2], ('v0', 2), K13[0], ('v1', 2), K13[1]])
            vbr(f'{t}_spin1')
            a.lines.append(f'{t}_go1:')
            run([('q0', 4), wl('wB')])
        a.ins('s_barrier')
        TB = R1
        def tbld(): T['tb'] = a.ds('ds_read_b128', v(TB, 4), v(MMR), mods=f'offset:{L_TB - 512 - B_LW1}')
        def pmld(R1=AQ0):
            if self.nopub: return
            a.salu('s_mov_b64', 'exec', s(sW0M, 2))
            a.ds('ds_read_b128', v(R1, 4), v(MST))
            a.salu('s_mov_b64', 'exec', -1)
        def pubm(R1=AQ0, restore=True):
            if self.nopub: return
            a._autowait([('v', R1 + i) for i in range(4)], 'pubm')
            L = f'{t}_np{len(a.lines)}'
            a.salu('s_mov_b64', 'exec', s(sW0M, 2))
            if self.pbr: a.ins(f's_cbranch_execz {L}')
            a.vmem('buffer_store_dwordx4', v(R1, 4), v(LH), srd, s(sFV), mods='offen ' + self.pfl, load=False, data=v(R1, 4))
            if self.pbr: a.pos -= 1; a.lines.append(L + ':')
            if restore: a.salu('s_mov_b64', 'exec', -1)
        K08, K18 = fr(('k', 0, 8), R6), fr(('k', 1, 8), R6)
        VB = 5 if self.p1 == 2 else 1
        VL = 4 if self.p1 == 2 else 3
        if self.p1 == 2: run([mr(5, R7), ('q0', 4), mr(6, R6), ('q1', 4), kx(1), ('k0', 4), mr(7, R8), o2[2], ('k1', 4), mr(8, R0), o2[3], o2[4], o2[5]])
        else: run([mr(5, R7), ('q1', 4), mr(7, R8), ('k0', 4), lambda: a._autowait([('v', R4 + 4)], 'k13'), ('k0', 3), kx(0), ('k1', 3), mr(6, R6), ('k1', 4), mr(8, R0), o2[2], o2[3], ('v0', 4), kx(1), ('v1', 4), o2[4], o2[5]])
        run([('q0', 5), tbld, ('k0', 5), kx(2), ('q1', 5), ('k1', 5)] + ([K08[1], ('q0', 6), kx(3)] if self.p1 == 2 else [('v0', 5), kx(3), ('v1', 5), K08[1], ('q0', 6)])
            + [('k0', 6), ('q1', 6), ('k1', 6), ('v0', 6), (lambda: pf(PFA)) if self.p1 != 2 else None, ('v1', 6), K08[0],
             ('q0', 7), (lambda: pf(PFA)) if self.p1 == 2 else None, sal('s_cmp_ge_u32', s(sSTEP), self.nsteps - 2, nodst=True), ('q1', 7), ('q0', 8), ('q1', 8), ('k0', 7), lambda: a._autowait([('v', R6)], 'k08'), cvt(AQ0, AQ0),
             ('k0', 8), K18[0], cvt(AQ1, AQ1), ('k1', 7), K18[1], cvt(AQ1 + 1, AQ1 + 2), ('v0', 7), cvt(AQ0 + 1, AQ0 + 2),
             mf(MF16, AQ1, AQ1, TB, None), cvt(AQ0 + 2, AK0), cvt(AQ0 + 3, AK0 + 2), ('v1', 7), lambda: pmld(R8), mf(MF32, AK0, AQ0, TB, None), cvt(AQ0 + 2, AQ1), ('k1', 8), mr(VB, R6)])
        st(4)()
        heat = lambda: a.mfma(MF16, v(R6, 4), v(ZZ, 2), v(ZZ, 2), v(R6, 4))
        XF0, XF1, U22, U23, U32, U33 = fr(('o', 4, 0), R2), fr(('o', 4, 1), R6), fr(('o', 2, 2), R4), fr(('o', 2, 3), R2), fr(('o', 3, 2), R6), fr(('o', 3, 3), R4)
        run([cvt(AQ0 + 3, AQ1 + 2), wv(('kx', 1)), cvt(AQ0, AK0), cvt(AQ0 + 1, AK0 + 2), mf(MF32, AK0, R3, AQ0, None), cvt(AK1, AK1), cvt(AK1 + 1, AK1 + 2),
             mf(MF16, AK1, AK1, TB + 2, None), mr(VL, R7), XF0[1], mf(MF32, R1, R2, AQ0, None), wv(('kx', 3)), (lambda: pubm(R8, False)) if self.bf else XF0[0], sal('s_mov_b64', 'exec', s(sHI8, 2)),
             cvt(AQ0 + 2, AK1), cvt(AQ0 + 3, AK1 + 2), sal('s_mov_b64', 'exec', -1),
             mf(MF32, AQ1, AQ0, AQ0, None)]
            + [dpp(R1 + r, AK0 + r, '0xc') for r in range(4)] + [('v0', 8)])
        a.ds('ds_write_b128', v(LW0), v(R1, 4), mods=f'offset:{L_SC - B_LW0}')
        run([dpp(AQ1, AQ1 + 2, '0xc'), dpp(AQ1 + 1, AQ1 + 3, '0xc'), ('v1', 8)])
        ws_ = a.ds('ds_write_b64', v(MMW), v(AQ1, 2))
        if self.bf: run([('v0', 1), ins(f's_cbranch_scc1 {t}_last'), lambda: a.lines.append(f'{t}_back:'), ('v1', 1), XF0[0], ('v0', 3), zmf(AK1) if self.bf > 1 else None])
        else: run([('v0', VB), lambda: pubm(R8), ('v1', VB), ins(f's_cbranch_scc1 {t}_last'), lambda: a.lines.append(f'{t}_back:')] + [heat] * self.hb)
        a.wait(lds=ws_)
        a.ins('s_barrier')
        st(5)()
        X0, X1, X2, X3, MA, MB_ = R1, AK0, AQ1, AQ0, R8, AK1
        def xrd(i, d):
            rg, b = xr(i)
            return lambda: a.ds('ds_read_b128', v(d, 4), v(rg), mods=f'offset:{L_SC - b}')
        def mmrd(d, o): return lambda: a.ds('ds_read_b128', v(d, 4), v(MMR), mods=f'offset:{L_MM + o - B_LW1}')
        def mulc(d): return val('v_mul_f32', v(d), s(sC1), v(d))
        def fmc(d, x): return val('v_fmac_f32', v(d), s(sC1), v(x))
        BM, BT = AK0 + 2, AQ1
        AC = [R1, AQ1, AV0, AV1]; ACX = AK0
        WL, LQ, O0, O1 = R0, AQ0, AK1, AV1
        ET, EM = AQ0, MA + 2
        CK = AK0
        F = {0: AQ0, 1: R0, 2: AK1, 3: R8}
        def ex(d, x): return val('v_exp_f32', v(d), v(x))
        def pkf(d, x): return val('v_pk_fma_f32', v(d, 2), v(x, 2), s(sC1, 2), v(d, 2))
        BMT = R8 + 2
        mm_ = [val('v_pk_add_f32', v(MA, 2), v(MA, 2), v(MA + 2, 2)), val('v_pk_add_f32', v(MB_, 2), v(MB_, 2), v(MB_ + 2, 2)), val('v_pk_add_f32', v(MA, 2), v(MA, 2), v(MB_, 2)),
               val('v_pk_mul_f32', v(MA, 2), v(MA, 2), s(sC1, 2))]
        def pkm(d): return val('v_pk_mul_f32', v(d, 2), v(d, 2), s(sC1, 2))
        run(([mmrd(MA, -512), ('v0', VL), mmrd(MB_, 0), xrd(1, X1), ('v1', VL), xrd(2, X2), xrd(3, X3)] if self.ha else [mmrd(MA, -512), mmrd(MB_, 0), None if self.bf else ('v0', 3), xrd(1, X1), xrd(2, X2), ('v1', 3), xrd(3, X3)]) + [heat] * max(self.ha - 1, 0) + [
             z2(WL, s(sHALF, 2)), z2(WL + 2, s(sONE, 2)), cvt(AV0, AV0), cvt(AV0 + 1, AV0 + 2), pkm(X0), pkm(X0 + 2), lambda: a._autowait([('v', MB_)], 'mb')] + mm_ + [ex(EM, MA), ex(EM + 1, MA + 1),
             lambda: a._autowait([('v', X2)], 'x2'), pkf(X0, X1), pkf(X0 + 2, X1 + 2), cvt(BM, EM), pkf(X0, X2), pkf(X0 + 2, X2 + 2),
             pkf(X0, X3), dpp(BM + 1, BM, '0xf'), pkf(X0 + 2, X3 + 2)])
        st(6)()
        def soft(first):
            x_ = [cvt(AV0 + 2, AV1), cvt(AV0 + 3, AV1 + 2), None] if first else [None] * 3
            if not first: run([ex(EM, MA), ex(EM + 1, MA + 1), cvt(BM, EM), dpp(BM + 1, BM, '0xf')])
            run([ex(ET, X0), mf(MF16, O0, AV0, BM, None), XF1[0] if first else None, ex(ET + 1, X0 + 1), x_[0], ex(ET + 2, X0 + 2), x_[1], cvt(BT, ET), ex(ET + 3, X0 + 3), mf(MF16, O1, AV0 + 2, BM, None), XF1[1] if first else None,
                 cvt(BT + 1, ET + 2), dpp(BT + 2, BT, '0xf'), val('v_max3_f32', v(CK), f'|v{X0}|', f'|v{X0+1}|', f'|v{X0+2}|'), dpp(BT + 3, BT + 1, '0xf'), st(7) if first else None,
                 mf(MF32, LQ, WL, BM, None), val('v_max3_f32', v(CK), v(CK), f'|v{X0+3}|', f'|v{MA}|'), val('v_max_f32_e64', v(CK), v(CK), f'|v{MA+1}|'),
                 mf(MF32, O0, R4, BT, O0), val('v_cmp_nge_f32', 'vcc', s(sNC1), v(CK)),
                 mf(MF32, O1, R5, BT, O1),
                 val('v_add_f32_dpp', v(LQ), v(LQ), v(LQ), mods='row_ror:8 row_mask:0xf bank_mask:0xf'), val('v_rcp_f32', v(LQ), v(LQ))])
        soft(True)
        vbr(f'{t}_guard')
        a.lines.append(f'{t}_norm:')
        run([zmf(AC[0])]
            + [val('v_mul_f32', v(O0 + r), v(O0 + r), v(LQ)) for r in range(4)]
            + [val('v_mul_f32_dpp', v(O0 + r), v(O1 + r), v(LQ), mods='row_ror:8 row_mask:0xf bank_mask:0xc', rmw=True) for r in range(4)]
            + [cvt(O0, O0), cvt(O0 + 1, O0 + 2), zmf(AC[1])])
        wo = a.ds('ds_write_b64', v(OW), v(O0, 2))
        def guard():
            a.label(f'{t}_guard')
            a.forget()
            a.ins(f's_cbranch_scc0 {t}_guard2')
            pubv(AV0)
            a.salu('s_add_u32', s(sVM), s(sVM), 32 * 4096)
            a.salu('s_add_u32', s(sT0), s(sNONCE), self.nsteps - 1); a.valu('v_mov_b32', v(CK + 1), s(sT0)); flag(CK + 1)
            a.label(f'{t}_guard2')
            a.nop(8)
            M1, M2 = BM, BM + 1
            a.valu('v_max3_f32', v(M1), v(X0), v(X0 + 1), v(X0 + 2))
            a.valu('v_max3_f32', v(M2), v(X0 + 3), v(MA), v(MA + 1))
            a.valu('v_max_f32', v(M1), v(M1), v(M2))
            a.valu('v_max_f32_dpp', v(M1), v(M1), v(M1), mods='row_ror:8 row_mask:0xf bank_mask:0xf')
            for sw in ('v_permlane32_swap_b32', 'v_permlane16_swap_b32'):
                a.valu('v_mov_b32', v(M2), v(M1)); a.valu(sw, v(M1), v(M2)); a.valu('v_max_f32', v(M1), v(M1), v(M2))
            for d in (X0, X0 + 1, X0 + 2, X0 + 3, MA, MA + 1): a.valu('v_sub_f32', v(d), v(d), v(M1))
            soft(False)
            a.fence()
            a.ins(f's_branch {t}_norm')
        def E(u, i):
            def f():
                fg = ('o', u, i)
                a.mfma(SMF, v(ACX if u == 4 else AC[u], 4), v(F[2 * i if u == 4 else i], 4), v(where[fg], 8) if fg in LDS_ADDR else freg(fg), v(IDX))
            return f
        OA = [None, OA1, OA2, OA3]
        run([zmf(ACX), lambda: a.ds('ds_read_b128', v(F[0], 4), v(OR0)), zmf(AC[2]), U22[0], zmf(AC[3]), U22[1]])
        a.wait(lds=wo)
        a.ins('s_barrier')
        st(8)()
        if self.xnop: a.nop(self.xnop)
        def frd(i): return lambda: a.ds('ds_read_b128', v(F[i], 4), v(OA[i]))
        def tag(r): return val('v_and_or_b32', v(r), v(r), -2, s(sTAG))
        def fin(u):
            r = ACX if u == 4 else AC[u]
            so = [sPS0, sPS1, sLO8, sLO8 + 1, sPSX][u]
            return [cvt(r, r), cvt(r + 1, r + 2), tag(r), lambda: a.vmem('buffer_store_dwordx2', v(r, 2), v(PSX if u == 4 else PST), srd, s(so), mods='offen ' + fl, load=False)]
        P0 = [R4, R5, R6, R7]
        def shot(P):
            for i in range(4):
                a.vmem('buffer_load_dwordx4', v(P[i], 4), v(L16), srd, s(sPL), mods=f'offen offset:{1024 * i} ' + lfl)
            a.nowait(v(P[0], 16))
        def shot0():
            if not self.ins0: return
            if self.dE: a.nop(self.dE)
            a.ins(f's_cbranch_scc1 {t}_ns0')
            p = a.pos
            for r in P0: a.valu('v_not_b32', v(r), s(sTAG))
            shot(P0)
            a.pos = p
            a.lines.append(f'{t}_ns0:')
        f0, f1, f2, f3, fx = [fin(u) for u in range(5)]
        def aw(*regs): return lambda: a._autowait([('v', r) for r in regs], 'aw')
        if self.eo == 3:
          run([frd(1), frd(2), frd(3), E(0, 0), E(1, 0), E(4, 0), U23[0],
             aw(F[2]), E(0, 1), U23[1], E(0, 2), E(0, 3), E(1, 1), E(1, 2), f0[0], E(1, 3), f0[2], f0[1], E(4, 1), f0[3], U32[0], E(2, 2), U32[1], f1[0], f1[2], f1[1], E(2, 0), f1[3], st(9), U33[0],
             E(2, 1), U33[1], fx[0], E(2, 3), fx[2], E(3, 0), fx[1], E(3, 1), fx[3] if self.hx else None, f2[0], aw(R4 + 4), E(3, 2), f2[2], E(3, 3), sal('s_cmp_lg_u32', s(sW), 2, nodst=True), f2[1]]
             + [val('v_not_b32', v(r + o), s(sTAG)) for r in P0 for o in (0, 2)] + [f3[0], f3[2], f3[1]])
          if self.dE: a.nop(self.dE)
          a.ins(f's_cbranch_scc1 {t}_ns0')
          shot(P0)
          a.lines.append(f'{t}_ns0:')
          a.ins('s_barrier')
          run([None if self.hx else fx[3], f2[3], f3[3]])
        elif self.eo == 2:
          run([frd(1), frd(2), frd(3), E(0, 0), E(1, 0), E(4, 0), U23[0],
             aw(F[2]), E(0, 1), U23[1], E(0, 2), E(0, 3), E(1, 1), E(1, 2), f0[0], E(1, 3), f0[2], f0[1], E(4, 1), f0[3], U32[0], E(2, 2), U32[1], f1[0], f1[2], f1[1], E(2, 0), f1[3], st(9), U33[0],
             E(2, 1), U33[1], fx[0], E(2, 3), fx[2], fx[1], E(3, 0), fx[3], E(3, 1), f2[0], aw(R4 + 4), E(3, 2), f2[2], f2[1], E(3, 3), f2[3], sal('s_cmp_lg_u32', s(sW), 2, nodst=True), f3[0], f3[2], f3[1], f3[3]])
        else:
          run([frd(1), frd(2), frd(3), E(0, 0), E(1, 0), E(4, 0), U23[0], E(2, 0), U23[1],
             aw(F[2]), E(0, 1), E(4, 1), U32[0], E(0, 2), U32[1], E(0, 3), fx[0], E(2, 2), U33[0], fx[2], E(1, 1), U33[1], fx[1], E(1, 2), fx[3], f0[0], E(1, 3), f0[2], E(2, 1), f0[1],
             E(2, 3), f0[3], f1[0], aw(R4 + 4), E(3, 0), f1[2], E(3, 1), f1[1], E(3, 2), f1[3], st(9), f2[0], E(3, 3), f2[2], f2[1], f2[3], sal('s_cmp_lg_u32', s(sW), 2, nodst=True), f3[0], f3[2], f3[1], f3[3]])
        st(10)()
        P = [AQ0, AK0, AQ1, AK1]; RD, XT, NEG, SELR = R1, AV1, AV1 + 1, R8
        def finish():
            a.fence()
            a.ins(f's_branch {t}_loop')
        def publish():
            a.valu('v_cvt_pk_bf16_f32', v(RD), v(RD), v(RD + 2))
            a.salu('s_mov_b64', 'exec', s(sSTM, 2))
            a.vmem('buffer_store_dword', v(RD), v(MST), srd, s(sMST), mods='offen ' + fl, load=False)
            st(11)()
        def reset():
            a.vmem('buffer_store_dword', v(NEG), v(MST), srd, s(sMRS), mods='offen ' + fl, load=False)
            a.salu('s_mov_b64', 'exec', -1)
        def idle(pre=True):
            a.ds('ds_read_b128', v(SELR, 4), v(L16), mods=f'offset:{L_SEL - B_LW1}')
            if pre: prefetch_top()
            a.salu('s_add_u32', s(sSTEP), s(sSTEP), 1); a.salu('s_mov_b32', s(sMEM), s(sT1))
            a.salu('s_add_u32', s(sKX), s(sKX), 32 * 16384); a.salu('s_add_u32', s(sPF), s(sPF), 32 * 16384); a.salu('s_min_u32', s(sPF), s(sPF), s(sAL))
            offsets(); a.valu('v_mov_b32', v(NEG), -1)
            a.salu('s_add_u32', s(sFV), s(sFV), 24 * 512)
            a.salu('s_mov_b32', s(sT0), 1)
            if self.eo == 3: z2(R0, -1)()
        def reduce(lab, k, P, y=0, pre=False):
            a.label(f'{t}_chk{lab}')
            a.valu('v_mov_b32', v(XT), 0)
            for i in range(4):
                a.ins(f's_waitcnt vmcnt({4 * k - 1 - i + y})')
                chk = [val('v_bitop3_b32', v(XT), v(XT), v(r), s(sTAG), mods='bitop3:0xf6') for r in (P[i], P[i] + 2)]
                if k > 1 or pre: run(chk)
                a.mfma(MF32, v(RD, 4), v(P[i], 4), v(SELR, 4), 0 if i == 0 else v(RD, 4))
                if k == 1 and not pre: run(chk)
            a.valu('v_and_b32', v(XT), s(sT0), v(XT))
            a.valu('v_cmp_ne_u32', 'vcc', 0, v(XT))
            a.ins(f's_cbranch_vccnz {t}_spin{lab}')
            a.pos += 4
            a.valu('v_permlane32_swap_b32', v(RD), v(RD + 2)); a.valu('v_permlane32_swap_b32', v(RD + 1), v(RD + 3))
            a.valu('v_add_f32', v(RD), v(RD), v(RD + 2)); a.valu('v_add_f32', v(RD + 2), v(RD + 1), v(RD + 3))
        def retry(lab, P):
            a.label(f'{t}_spin{lab}')
            a.forget()
            shot(P)
            a.salu('s_sub_u32', s(sSPIN), s(sSPIN), 1)
            a.salu('s_cmp_lt_i32', s(sSPIN), 0, nodst=True)
            a.salu('s_cselect_b32', s(sT0), 0, 1)
            if self.eo == 3: a.ins('s_waitcnt vmcnt(0)')
            a.ins(f's_branch {t}_chk{lab}')
        a.ins(f's_cbranch_scc1 {t}_w013')
        a.fence()
        if self.eo != 3:
            if self.d0: a.nop(self.d0)
            shot(P0)
        idle(False); zero(0, 16)
        if self.k0 > 1: a.nop(self.pF); shot(P0)
        reduce('F', self.k0, P0, (2 if self.hx else 3) if self.eo == 3 else 0, self.eo == 3); publish(); reset()
        if self.k0 == 1: prefetch_top()
        a.nop(self.dB); poll0()
        if self.k0 > 1: a.ins('s_waitcnt vmcnt(1)'); prefetch_top()
        a.fence()
        a.ins(f's_branch {t}_loop2')
        a.label(f'{t}_w013')
        a.forget()
        idle()
        a.salu('s_cmp_eq_u32', s(sROLE), 0, nodst=True)
        a.ins(f's_cbranch_scc1 {t}_w0')
        a.salu('s_cmp_eq_u32', s(sW), 1, nodst=True)
        if self.dX: a.nop(self.dX)
        a.ins(f's_cbranch_scc1 {t}_sx')
        a.nop(self.d1 - self.dX)
        a.lines.append(f'{t}_sx:')
        shot(P)
        if self.k1 > 1: a.nop(self.pG); shot(P)
        if self.eo == 3: a.nop(self.dA); poll0()
        reduce('G', self.k1, P, 1 if self.eo == 3 else 0)
        a.salu('s_cmp_eq_u32', s(sW), 3, nodst=True)
        a.ins(f's_cbranch_scc1 {t}_w3')
        a.valu('v_mov_b32', v(RD + 1), v(RD)); a.valu('v_mov_b32', v(RD + 3), v(RD + 2))
        a.valu('v_permlane16_swap_b32', v(RD), v(RD + 1)); a.valu('v_permlane16_swap_b32', v(RD + 2), v(RD + 3))
        a.valu('v_add_f32', v(RD), v(RD), v(RD + 1)); a.valu('v_add_f32', v(RD + 2), v(RD + 2), v(RD + 3))
        a.label(f'{t}_w3')
        if self.k1 > 1: a.ins('s_cbranch_execz .+4') if 0 else None
        publish(); reset()
        poll0()
        if self.eo == 3:
            zero(0, 16); top(); a.ins('s_waitcnt vmcnt(3) lgkmcnt(0)'); a.fence(); a.ins(f's_branch {t}_chk0b')
        else: finish()
        a.label(f'{t}_w0')
        a.forget()
        zero(0, 16)
        if self.w0hook: self.w0hook(a)
        a.nop(self.dZ); poll0()
        a.ins(f's_branch {t}_loop2')
        retry('F', P0); retry('G', P)
        guard()
        a.label(f'{t}_spin0')
        a.forget()
        poll0()
        a.salu('s_sub_u32', s(sSPIN), s(sSPIN), 1)
        a.salu('s_cmp_lt_i32', s(sSPIN), 0, nodst=True)
        if r1: a.ins(f's_waitcnt vmcnt({self.ks - 1})')
        a.ins(f's_cbranch_scc0 {t}_chk0')
        a.ins('s_waitcnt vmcnt(0)')
        for r in range(4): a.valu('v_min_u32', v(R0 + r), -2, v(R0 + r))
        a.ins(f's_branch {t}_chk0')
        a.label(f'{t}_spin1')
        a.forget()
        poll1()
        a.salu('s_sub_u32', s(sSPIN), s(sSPIN), 1)
        a.salu('s_cmp_lt_i32', s(sSPIN), 0, nodst=True)
        a.ins(f's_waitcnt vmcnt({2 if r1 else 0})')
        run(c1 + [w1a, w1b, ins('s_waitcnt lgkmcnt(0)')])
        a.ins(f's_cbranch_scc1 {t}_go1')
        a.ins(f's_cbranch_vccnz {t}_spin1')
        a.ins(f's_branch {t}_go1')
        a.label(f'{t}_last')
        a.forget(); a.nop(2)
        a.salu('s_cmp_eq_u32', s(sSTEP), self.nsteps - 1, nodst=True)
        a.ins(f's_cbranch_scc1 {t}_last2')
        pubk(AQ0)
        a.salu('s_add_u32', s(sKM), s(sKM), 32 * 4096)
        a.salu('s_mov_b32', s(sNC1), '0xbf800000')
        a.salu('s_cmp_eq_u32', 0, 0, nodst=True)
        a.ins(f's_branch {t}_back')
        a.label(f'{t}_last2')
        M.update({8: R0, 1: R6, VL: R7})
        a.ins('s_waitcnt lgkmcnt(0)')
        run([lambda: pubk(AQ0), sal('s_add_u32', s(sT0), s(sNONCE), self.nsteps), val('v_mov_b32', v(R4), s(sT0)), ('v1', 1) if self.bf else None] + [(o, sl) for sl in (VL,) for o in ('v0', 'v1')]
            + [cvt(AV0, AV0), cvt(AV0 + 1, AV0 + 2), cvt(AV0 + 2, AV1), cvt(AV0 + 3, AV1 + 2), lambda: pubv(AV0)])
        flag(R4)
```

```python
from asmfw import Asm, R
import chain2 as C

def s(i, n=1): return R(i, n, 's')
def v(i, n=1): return R(i, n, 'v')
MF32 = 'v_mfma_f32_16x16x32_bf16'

SRD_WS, SRD_X, SRD_W = 4, 8, 12
sM, sHh, sW, sSEG, sSTR = 16, 17, 18, 19, 20
sT0, sT1, sT2 = 21, 22, 23
sSRC, sLDSW, sOUT, sBUF, sOUT1 = 24, 25, 26, 27, 28
sPRG, sRND, sT3 = 29, 30, 31
sO2, sOA, sSA, sHS = 40, 41, 42, 43
XBUF = 36864
SY_PRG = C.WS_SYNC
DONE = 63
WF = 64

def wfrag(hd, tau, k): return R(tau * 72 + k * 4, 4, 'a') if hd else v(WF + tau * 72 + k * 4, 4)

def tr_loader(a, srd, jobs, GA, TA, T1, T2, sWK, sT, bufs, mid=None, at=None):
    nb = len(bufs); tags = {}
    def issue(j):
        jobs[j][0](a)
        for p in range(4):
            a.salu('s_add_u32', 'm0', s(sWK), bufs[j % nb] + p * 1024)
            if p: a.salu('s_add_u32', s(sT), s(sT), jobs[j][1])
            else: a.nop(1)
            a.raw(f'    buffer_load_dwordx4 v{GA}, s[{srd}:{srd+3}], s{sT} offen lds'); a.pos += 1; a.vm_seq += 1
        tags[j] = a.vm_seq
    for j in range(min(nb, len(jobs))): issue(j)
    if mid: mid()
    for j in range(len(jobs)):
        a.valu('v_add_u32', v(T1), bufs[j % nb], v(TA))
        a.valu('v_xor_b32', v(T2), 32, v(T1))
        a.wait(vm=tags[j])
        for dst, alt, off in jobs[j][2]:
            a.ds('ds_read_b64_tr_b16', dst, v(T2 if alt else T1), mods=f'offset:{off}')
        a.wait(lds='all')
        if at and j == at[0]: at[1](a)
        if j + nb < len(jobs): issue(j + nb)

def qkv_role(a: Asm, tag, pX, pW, sNONCE, sGRP, late=None, qw=0, qx=0, cop=1, at=None):
    t = tag
    ACC, PK, AF = 208, 8, 32
    LANE16, VSRC, VRD, TMP, TMP2, GA, LWv, TA = 1, 2, 3, 4, 5, 6, 7, 24
    srd = s(SRD_WS, 4)
    a.valu('v_lshrrev_b32', v(TMP), 6, 'v0')
    a.valu('v_readfirstlane_b32', s(sW), v(TMP))
    a.valu('v_lshlrev_b32', v(LWv), 4, 'v0')
    a.valu('v_and_b32', v(TMP), 63, 'v0')
    a.valu('v_lshrrev_b32', v(GA), 2, v(TMP)); a.valu('v_lshlrev_b32', v(GA), 13, v(GA))
    a.valu('v_lshrrev_b32', v(TMP2), 4, v(TMP)); a.valu('v_and_b32', v(TMP2), 2, v(TMP2)); a.valu('v_xor_b32', v(TMP2), v(TMP2), v(TMP))
    a.valu('v_and_b32', v(TMP2), 3, v(TMP2)); a.valu('v_lshl_add_u32', v(GA), v(TMP2), 4, v(GA))
    a.valu('v_lshrrev_b32', v(TA), 4, v(TMP)); a.valu('v_lshlrev_b32', v(TA), 9, v(TA))
    a.valu('v_bfe_u32', v(TMP2), v(TMP), 2, 2); a.valu('v_lshl_add_u32', v(TA), v(TMP2), 6, v(TA))
    a.valu('v_bfe_u32', v(TMP2), v(TMP), 4, 1); a.valu('v_lshl_add_u32', v(TA), v(TMP2), 5, v(TA))
    a.valu('v_and_b32', v(TMP2), 3, v(TMP)); a.valu('v_lshl_add_u32', v(TA), v(TMP2), 3, v(TA))
    a.salu('s_lshl_b32', s(sT3), s(sW), 12)
    a.valu('v_add_u32', v(TA), s(sT3), v(TA))
    a.salu('s_cmp_eq_u32', s(sM), 1, nodst=True)
    a.salu('s_cselect_b64', s(SRD_W, 2), s(pW + 2, 2), s(pW, 2))
    a.salu('s_cmp_eq_u32', s(sM), 2, nodst=True)
    a.salu('s_cselect_b64', s(SRD_W, 2), s(pW + 4, 2), s(SRD_W, 2))
    a.salu('s_mov_b32', s(SRD_W + 2), 576 * 8192); a.salu('s_mov_b32', s(SRD_W + 3), '0x20000')
    a.salu('s_lshl_b32', s(sOUT1), s(sHh), 8); a.salu('s_lshl_b32', s(sT0), s(sW), 6); a.salu('s_add_u32', s(sOUT1), s(sOUT1), s(sT0))
    if cop:
        a.valu('v_lshrrev_b32', v(25), 2, 'v0'); a.valu('v_mul_u32_u24', v(25), s(sSTR), v(25)); a.valu('v_add_u32', v(25), s(sSEG), v(25))
        a.valu('v_lshlrev_b32', v(25), 13, v(25)); a.valu('v_and_b32', v(26), 3, 'v0'); a.valu('v_lshl_add_u32', v(25), v(26), 7, v(25))
        a.salu('s_lshl_b32', s(sT0), s(sHh), 8)
        a.salu('s_lshl_b32', s(sT1), s(sSTR), 19); a.salu('s_add_u32', s(sT1), s(sT1), s(sT0))
        a.ins(f'buffer_load_dword v27, v25, s[{SRD_W}:{SRD_W+3}], s{sT0} offen')
        a.ins(f'buffer_load_dword v27, v25, s[{SRD_W}:{SRD_W+3}], s{sT1} offen')
    def rest():
        a.valu('v_and_b32', v(TMP2), 15, v(TMP))
        a.valu('v_lshrrev_b32', v(VRD), 4, v(TMP))
        a.valu('v_lshrrev_b32', v(VSRC), 2, v(TMP2))
        a.valu('v_xor_b32', v(VRD), v(VRD), v(VSRC))
        a.valu('v_lshl_add_u32', v(VRD), v(TMP2), 2, v(VRD))
        a.valu('v_lshlrev_b32', v(LANE16), 4, v(VRD))
        a.valu('v_lshrrev_b32', v(TMP2), 2, v(TMP))
        a.valu('v_lshrrev_b32', v(VRD), 4, v(TMP))
        a.valu('v_and_b32', v(TMP), 3, v(TMP))
        a.valu('v_xor_b32', v(TMP), v(TMP), v(VRD))
        a.valu('v_lshlrev_b32', v(VRD), 3, v(VRD))
        a.valu('v_and_b32', v(TMP2), 3, v(TMP2))
        a.valu('v_add_u32', v(VRD), v(VRD), v(TMP2))
        a.valu('v_mul_u32_u24', v(VSRC), 1152, v(VRD))
        a.valu('v_lshl_add_u32', v(VSRC), v(TMP), 4, v(VSRC))
        a.salu('s_mov_b32', s(SRD_X), s(pX)); a.salu('s_mov_b32', s(SRD_X + 1), s(pX + 1))
        a.salu('s_mov_b32', s(SRD_X + 2), 2048 * 1152); a.salu('s_mov_b32', s(SRD_X + 3), '0x20000')
        a.salu('s_lshr_b32', s(sT1), s(sW), 1); a.salu('s_mul_i32', s(sSRC), s(sT1), 4608)
        a.salu('s_and_b32', s(sT1), s(sW), 1); a.salu('s_mul_i32', s(sT2), s(sT1), 576); a.salu('s_add_u32', s(sSRC), s(sSRC), s(sT2))
        a.salu('s_mul_i32', s(sLDSW), s(sW), 9 * 1024)
        a.salu('s_mul_i32', s(sT1), s(sSEG), 32 * 1152); a.salu('s_add_u32', s(sSRC), s(sSRC), s(sT1))
        a.salu('s_mul_i32', s(sSA), s(sSTR), 32 * 1152)
        a.salu('s_mov_b32', s(sBUF), 0)
        dma(sBUF)
        a.salu('s_lshl_b32', s(sT1), s(sSEG), 5); a.salu('s_add_u32', s(sT1), s(sT1), s(sHh))
        a.salu('s_lshl_b32', s(sOUT), s(sT1), 14)
        a.salu('s_mul_i32', s(sT2), s(sW), 3072); a.salu('s_add_u32', s(sOUT), s(sOUT), s(sT2))
        a.salu('s_lshl_b32', s(sT2), s(sM), 11); a.salu('s_add_u32', s(sOUT), s(sOUT), s(sT2))
        a.salu('s_add_u32', s(sOUT), s(sOUT), C.WS_KV - 2048)
        a.salu('s_lshl_b32', s(sT1), s(sT1), 13); a.salu('s_add_u32', s(sT1), s(sT1), C.WS_Q)
        a.salu('s_cmp_eq_u32', s(sM), 0, nodst=True)
        a.salu('s_cselect_b32', s(sOUT), s(sT1), s(sOUT))
        a.salu('s_cselect_b32', s(sO2), 4, 1); a.salu('s_cselect_b32', s(sHS), 1, 2)
        a.salu('s_lshl_b32', s(sO2), s(sO2), 10); a.salu('s_lshl_b32', s(sHS), s(sHS), 13)
        a.salu('s_lshl_b32', s(sOA), s(sHS), 5); a.salu('s_mul_i32', s(sOA), s(sOA), s(sSTR))
        a.salu('s_lshl_b32', s(sPRG), s(sHh), 7); a.salu('s_lshl_b32', s(sT1), s(sGRP), 2)
        a.salu('s_add_u32', s(sPRG), s(sPRG), s(sT1)); a.salu('s_add_u32', s(sPRG), s(sPRG), SY_PRG)
    def dma_ops(bufreg):
        ops = []
        for i in range(9):
            def f(i=i):
                if i == 0: a.salu('s_add_u32', s(sT2), s(bufreg), s(sLDSW))
                a.salu('s_add_u32', 'm0', s(sT2), i * 1024 - i * 64)
                a.nop(1)
                a.raw(f'    buffer_load_dwordx4 v{VSRC}, s[{SRD_X}:{SRD_X+3}], s{sSRC} offen offset:{i * 64} lds')
                a.pos += 1; a.vm_seq += 1
                if i == 8: a.salu('s_add_u32', s(sSRC), s(sSRC), s(sSA))
            ops.append(f)
        return ops
    def dma(bufreg):
        for f in dma_ops(bufreg): f()
    jobs = []
    for tt in range(9):
        for hd in range(2):
            def setup(a, tt=tt, hd=hd): a.salu('s_add_u32', s(sT0), s(sOUT1), tt * 64 * 8192 + hd * 256)
            rd = []
            for kk in range(2):
                for tau in range(2):
                    k_, b_ = ('a', tau * 72 + (2 * tt + kk) * 4) if hd else ('v', WF + tau * 72 + (2 * tt + kk) * 4)
                    for jp in range(2): rd.append((R(b_ + 2 * jp, 2, k_), tau, kk * 2048 + jp * 256))
            jobs.append((setup, 16 * 8192, rd))
    tr_loader(a, SRD_W, jobs, GA, TA, 25, 26, sT3, sT0, [40960 + 16384 * i for i in range(7)], mid=rest, at=at)
    a.salu('s_lshr_b32', s(sT0), s(sHh), 3); a.salu('s_cmp_eq_u32', s(sT0), 3, nodst=True); a.salu('s_cselect_b32', s(sT0), 1, s(sGRP))
    a.salu('s_cmp_lg_u32', s(sT0), 0, nodst=True)
    a.ins(f's_cbranch_scc1 {t}_noclr')
    for i in range(4): a.valu('v_mov_b32', v(8 + i), -1)
    a.valu('v_lshrrev_b32', v(25), 6, 'v0'); a.valu('v_mul_u32_u24', v(25), 12288 - 1024, v(25)); a.valu('v_add_u32', v(25), v(25), v(LWv))
    a.salu('s_lshl_b32', s(sT0), s(sHh), 9); a.salu('s_add_u32', s(sT0), s(sT0), C.WS_MEMH); a.salu('s_add_u32', s(sT1), s(sT0), 64 * 12288)
    a.label(f'{t}_clr')
    a.vmem('buffer_store_dwordx4', v(8, 4), v(25), srd, s(sT0), mods='offen sc1', load=False, data=v(8, 4))
    a.salu('s_add_u32', s(sT0), s(sT0), 4 * 12288)
    a.salu('s_cmp_lt_u32', s(sT0), s(sT1), nodst=True)
    a.ins(f's_cbranch_scc1 {t}_clr')
    a.label(f'{t}_noclr')
    a.salu('s_and_b32', s(sT0), s(sGRP), -2); a.salu('s_cmp_lg_u32', s(sT0), 2, nodst=True)
    a.ins(f's_cbranch_scc1 {t}_noclr2')
    for i in range(4): a.valu('v_mov_b32', v(8 + i), -1)
    a.salu('s_add_u32', s(sT0), s(sGRP), 60)
    a.salu('s_lshl_b32', s(sT2), s(sHh), 12)
    for base, sh, extra in ((C.WS_KM, 17, 0), (C.WS_VM, 17, 0), (C.WS_O, 18, 0), (C.WS_O, 18, 131072)):
        a.salu('s_lshl_b32', s(sT1), s(sT0), sh); a.salu('s_add_u32', s(sT1), s(sT1), s(sT2)); a.salu('s_add_u32', s(sT1), s(sT1), base + extra)
        for hh in range(2):
            a.vmem('buffer_store_dwordx4', v(8, 4), v(LWv), srd, s(sT1), mods='offen sc1', load=False, data=v(8, 4))
            if hh == 0: a.salu('s_add_u32', s(sT1), s(sT1), 4096)
    a.label(f'{t}_noclr2')
    if late: late(a)
    a.ins('s_barrier')
    a.salu('s_mov_b32', s(sBUF), XBUF)
    dma(sBUF)
    a.salu('s_mov_b32', s(sBUF), 0)
    a.salu('s_mov_b32', s(sRND), s(sNONCE))
    a.salu('s_cmp_eq_u32', s(sW), 0, nodst=True)
    a.salu('s_cselect_b32', 's34', 1, 0); a.salu('s_mov_b32', 's35', 0)
    a.salu('s_cmp_eq_u32', s(sM), 2, nodst=True)
    a.ins(f's_cbranch_scc1 {t}_vloop')
    def pub(valexpr):
        a.valu('v_mov_b32', v(TMP), valexpr)
        a.salu('s_mov_b64', 'exec', 's[34:35]')
        a.vmem('buffer_store_dword', v(TMP), 'off', srd, s(sPRG), mods='sc1', load=False)
        a.salu('s_mov_b64', 'exec', -1)
    for isv in (0, 1):
        L = f'{t}_vloop' if isv else f'{t}_loop'
        a.fence()
        a.label(L)
        a.forget()
        a.ins('s_barrier')
        a.valu('v_add_u32', v(VRD), s(sBUF), v(LANE16))
        rd = {}
        def rdA(k):
            for x in range(2):
                rd[(k, x)] = a.ds('ds_read_b128', v(AF + ((k % 4) * 2 + x) * 4, 4), v(VRD), mods=f'offset:{(x*18+k)*1024}')
        for k in range(3): rdA(k)
        a.salu('s_sub_u32', s(sT1), s(sRND), 1)
        pub(s(sT1))
        a.salu('s_add_u32', s(sT1), s(sBUF), 2 * XBUF)
        a.salu('s_sub_u32', s(sT0), s(sT1), 3 * XBUF)
        a.salu('s_cselect_b32', s(sT1), s(sT1), s(sT0))
        dops = dma_ops(sT1)
        for k in range(18):
            if k + 3 < 18: rdA(k + 3)
            if k < 9: dops[k]()
            a.wait(lds=rd[(k, 1)])
            for hd in range(2):
                for x in range(2):
                    for tau in range(2):
                        acc = v(ACC + ((hd * 2 + x) * 2 + tau) * 4, 4)
                        xf = v(AF + ((k % 4) * 2 + x) * 4, 4)
                        wf = wfrag(hd, tau, k)
                        if isv: a.mfma(MF32, acc, xf, wf, 0 if k == 0 else acc)
                        else: a.mfma(MF32, acc, wf, xf, 0 if k == 0 else acc)
        a.ins(f's_waitcnt vmcnt({qw})')
        for hd in range(2):
            A0 = ACC + hd * 16
            for o in range(2):
                for r in range(4):
                    d = PK + (hd * 2 + o) * 4 + r
                    src = A0 + (((r >> 1) * 2 + o) if isv else (o * 2 + (r >> 1))) * 4 + (r & 1) * 2
                    a.valu('v_cvt_pk_bf16_f32', v(d), v(src), v(src + 1))
                if hd == 0 and o == 0: a.salu('s_mov_b32', s(sOUT1), s(sOUT))
                elif o == 0: a.salu('s_add_u32', s(sOUT1), s(sOUT), s(sHS))
                else: a.salu('s_add_u32', s(sOUT1), s(sOUT1), s(sO2))
                a.vmem('buffer_store_dwordx4', v(PK + (hd * 2 + o) * 4, 4), v(LWv), srd, s(sOUT1), mods='offen ' + ('sc1', '', 'nt', 'sc1 nt')[qx], load=False, data=v(PK + (hd * 2 + o) * 4, 4))
        a.salu('s_add_u32', s(sOUT), s(sOUT), s(sOA))
        a.salu('s_add_u32', s(sBUF), s(sBUF), XBUF)
        a.salu('s_cmp_eq_u32', s(sBUF), 3 * XBUF, nodst=True)
        a.salu('s_cselect_b32', s(sBUF), 0, s(sBUF))
        a.salu('s_add_u32', s(sRND), s(sRND), 1)
        a.salu('s_add_u32', s(sSEG), s(sSEG), s(sSTR))
        a.salu('s_cmp_lt_u32', s(sSEG), 64, nodst=True)
        a.fence()
        a.ins(f's_cbranch_scc1 {L}')
        if not isv: a.ins(f's_branch {t}_done')
    a.label(f'{t}_done')
    a.ins('s_waitcnt vmcnt(0)')
    a.ins('s_barrier')
    a.salu('s_add_u32', s(sT1), s(sNONCE), DONE)
    pub(s(sT1))


def memkv_role(a: Asm, tag, sNONCE, sPAR, slp=4):
    t = tag
    ACC = 8
    regs = [24 + 4 * i for i in range(10)] + [208 + 4 * i for i in range(8)]
    VA, VF, TMP, TMP2, LWv = [1, 2, 3], 6, 4, 5, 7
    srd = s(SRD_WS, 4)
    sS, sSRCM, sDST = 19, 24, 26
    a.forget()
    a.valu('v_and_b32', v(TMP), 63, 'v0')
    a.valu('v_lshrrev_b32', v(TMP2), 4, v(TMP))
    for b in range(3):
        a.valu('v_add_u32', v(VA[b]), 4 * b, v(TMP2))
        a.valu('v_mul_u32_u24', v(VF), 11, v(VA[b])); a.valu('v_lshrrev_b32', v(VF), 5, v(VF))
        a.valu('v_add_u32', v(VA[b]), v(VA[b]), v(VF)); a.valu('v_lshlrev_b32', v(VA[b]), 7, v(VA[b]))
        a.valu('v_and_b32', v(VF), 7, v(TMP)); a.valu('v_lshl_add_u32', v(VA[b]), v(VF), 4, v(VA[b]))
    a.valu('v_min_u32', v(VF), 23, v(TMP)); a.valu('v_lshlrev_b32', v(VF), 9, v(VF))
    a.salu('s_mov_b32', s(sS), s(sPAR))
    a.salu('s_mul_i32', s(sSRCM), s(sS), 12288); a.salu('s_add_u32', s(sSRCM), s(sSRCM), C.WS_MEMH)
    a.salu('s_lshl_b32', s(sDST), s(sS), 5); a.salu('s_add_u32', s(sDST), s(sDST), s(sHh)); a.salu('s_lshl_b32', s(sDST), s(sDST), 12)
    a.salu('s_mov_b32', s(sT0), C.WS_KM)
    a.salu('s_cmp_eq_u32', s(sM), 2, nodst=True)
    a.salu('s_cselect_b32', s(sT0), C.WS_VM, s(sT0))
    a.salu('s_add_u32', s(sDST), s(sDST), s(sT0))
    a.salu('s_lshl_b32', s(sPRG), s(sHh), 7); a.salu('s_lshl_b32', s(sT0), s(sM), 1); a.salu('s_add_u32', s(sT0), s(sT0), s(sPAR))
    a.salu('s_lshl_b32', s(sT0), s(sT0), 2); a.salu('s_add_u32', s(sPRG), s(sPRG), s(sT0))
    a.salu('s_add_u32', s(sPRG), s(sPRG), SY_PRG + 128 - 8)
    a.fence()
    a.label(f'{t}_loop')
    a.forget()
    a.salu('s_cmp_lg_u32', s(sW), 0, nodst=True)
    a.ins(f's_cbranch_scc1 {t}_go')
    a.salu('s_mov_b32', s(sT2), s(sSRCM))
    a.salu('s_mov_b32', s(sT0), 1 << 22)
    a.label(f'{t}_wait')
    a.vmem('buffer_load_dword', v(TMP), v(VF), srd, s(sT2), mods='offen offset:384 sc1')
    a.salu('s_sub_u32', s(sT0), s(sT0), 1)
    a.ins(f's_cbranch_scc1 {t}_go')
    a.ins('s_waitcnt vmcnt(0)')
    a.valu('v_cmp_ne_u32', 'vcc', s(sNONCE), v(TMP))
    a.ins(f's_cbranch_vccz {t}_go')
    a.ins(f's_sleep {slp}')
    a.ins(f's_branch {t}_wait')
    a.label(f'{t}_go')
    a.ins('s_barrier')
    a.salu('s_mov_b32', s(sRND), 1 << 12)
    a.label(f'{t}_again')
    a.valu('v_mov_b32', v(TMP2), 0)
    tg = []
    for k in range(18):
        if k % 6 == 0: a.salu('s_add_u32', s(sT2), s(sSRCM), (k // 6) * 4096)
        tg.append(a.vmem('buffer_load_dwordx4', v(regs[k], 4), v(VA[k % 3]), srd, s(sT2), mods=f'offen offset:{((k // 3) & 1) * 2048} sc1'))
    a.salu('s_add_u32', s(sT1), s(sS), s(sNONCE)); a.salu('s_add_u32', s(sT1), s(sT1), 1)
    a.salu('s_cmp_eq_u32', s(sM), 2, nodst=True)
    a.ins(f's_cbranch_scc1 {t}_v')
    done0 = dict(a.done)
    for isv in (0, 1):
        if isv: a.label(f'{t}_v'); a.done = dict(done0)
        for k in range(18):
            a.wait(vm=tg[k])
            for hd in range(2):
                for tau in range(2):
                    acc = v(ACC + (hd * 2 + tau) * 4, 4); xf = v(regs[k], 4); wf = wfrag(hd, tau, k)
                    if isv: a.mfma(MF32, acc, xf, wf, 0 if k == 0 else acc)
                    else: a.mfma(MF32, acc, wf, xf, 0 if k == 0 else acc)
                a.valu('v_max3_u32', v(TMP2), v(TMP2), v(regs[k] + 2 * hd), v(regs[k] + 2 * hd + 1))
        if isv:
            for q4 in range(8): a.valu('v_pk_mul_f32', v(ACC + 2 * q4, 2), v(ACC + 2 * q4, 2), '0.5', mods='op_sel_hi:[1,0]')
        a.fence()
        if not isv: a.ins(f's_branch {t}_st')
    a.label(f'{t}_st')
    a.valu('v_cmp_eq_u32', 'vcc', -1, v(TMP2))
    a.salu('s_sub_u32', s(sRND), s(sRND), 1)
    a.ins(f's_cbranch_scc1 {t}_ok')
    a.ins(f's_cbranch_vccnz {t}_again')
    a.label(f'{t}_ok')
    a.salu('s_add_u32', s(sSRCM), s(sSRCM), 2 * 12288)
    for q4 in range(8): a.valu('v_cvt_pk_bf16_f32', v(24 + q4), v(ACC + 2 * q4), v(ACC + 2 * q4 + 1))
    a.salu('s_add_u32', s(sT0), s(sDST), 4096)
    a.vmem('buffer_store_dwordx4', v(24, 4), v(LWv), srd, s(sDST), mods='offen sc1', load=False, data=v(24, 4))
    a.vmem('buffer_store_dwordx4', v(28, 4), v(LWv), srd, s(sT0), mods='offen sc1', load=False, data=v(28, 4))
    a.ins('s_waitcnt vmcnt(0)')
    a.ins('s_barrier')
    a.valu('v_mov_b32', v(TMP), s(sT1))
    a.salu('s_mov_b64', 'exec', 's[34:35]')
    a.vmem('buffer_store_dword', v(TMP), 'off', srd, s(sPRG), mods='sc1', load=False)
    a.salu('s_mov_b64', 'exec', -1)
    a.salu('s_add_u32', s(sS), s(sS), 2)
    a.salu('s_add_u32', s(sDST), s(sDST), 2 << 17)
    a.salu('s_cmp_lt_u32', s(sS), 62, nodst=True)
    a.fence()
    a.ins(f's_cbranch_scc1 {t}_loop')
```

```python
import sys
sys.path.insert(0, 'gen2')
from asmfw import Asm
import chain2 as C, qkv2 as Q, attn2 as A, ssm as S
from chain2 import s, v
from build_ct import kd
NAME = 'concat_heads__memory_aug_recurrent_mem_tr__ssm_conv_s4d__prompt'
def start(a, name):
    a.raw(f'.text\n.globl {name}\n.p2align 8\n.type {name},@function\n{name}:')
def ws_srd(a, p):
    a.salu('s_mov_b32', 's4', s(p)); a.salu('s_mov_b32', 's5', s(p + 1))
    a.salu('s_mov_b32', 's6', C.WS_SIZE); a.salu('s_mov_b32', 's7', '0x20000')

sNONCE = C.sNONCE
DBG = 96
SY_ATT = C.WS_SYNC + 65536
D_NONCE, D_HELP, D_CH, D_ARR, D_SSM, D_T2, D_ATT, D_WF, D_OP = 64, 4, 128, 132, 8, 12, 16, 20, 136
D_XF2 = 24
D_MODE, D_CH2, D_ARR2, D_GO2 = 140, 208, 212, 216
XCC = [0]
NWARM = [5]
XD = [0]
OPS = [4]
DV = [70]
HDELAY = [0]
TMO = [1 << 17]
KVR = 2
CPS = [0]
D_POOL = 32
D_P2 = 160
D_QP = 68
NCH = [32]
FX = [0]
BOFF = [48]
ATS = [3]
MSL = [4]

DIAG = [0]
IFL = ['']
def diag(a, idx, val=None):
    if not DIAG[0]: return
    a.fence()
    a.ins('s_memrealtime s[90:91]'); a.ins('s_waitcnt lgkmcnt(0)')
    if val is not None: a.salu('s_mov_b32', 's90', val)
    a.salu('s_mov_b64', 's[100:101]', 'exec'); a.salu('s_mov_b64', 'exec', 1)
    a.valu('v_mov_b32', v(DV[0]), 's90')
    a.salu('s_lshl_b32', 's91', 's2', 8); a.salu('s_add_u32', 's91', 's91', 203 << 20)
    a.vmem('buffer_store_dword', v(DV[0]), 'off', 's[4:7]', 's91', mods=f'offset:{4 * idx}', load=False)
    a.salu('s_mov_b64', 'exec', 's[100:101]')
    a.nop(2)

LD = [0]
def ldiag(a, word, vreg, op='buffer_atomic_umax'):
    if not LD[0]: return
    a.fence()
    a.ins('s_memrealtime s[90:91]'); a.ins('s_waitcnt lgkmcnt(0)')
    a.salu('s_lshl_b32', 's91', 's2', 8); a.salu('s_add_u32', 's91', 's91', 203 << 20)
    a.valu('v_mov_b32', v(vreg), 's90')
    a.valu('v_cmp_eq_u32', 'vcc', 0, 'v0' if vreg > 200 else v(C.LH))
    a.salu('s_mov_b64', 'exec', 'vcc')
    a.vmem('buffer_store_dword', v(vreg), 'off', 's[4:7]', 's91', mods=f'offset:{4 * word}', load=False)
    a.salu('s_mov_b64', 'exec', -1)
    a.nop(2)

def scan(a, base, p2):
    _tk[0] += 1
    a.valu('v_and_b32', 'v1', 63, 'v0'); a.valu('v_min_u32', 'v1', 6, 'v1'); a.valu('v_lshlrev_b32', 'v2', 2, 'v1')
    a.salu('s_cmp_lg_u32', 's32', 0, nodst=True)
    a.valu('v_mov_b32', 'v251', 163832)
    a.ins(f's_cbranch_scc1 sw{_tk[0]}')
    a.vmem('buffer_load_dword', 'v3', 'v2', s(DBG, 4), 0, mods=f'offen offset:{base} sc1')
    a.valu('v_mov_b32', 'v4', (32, 24, 19)[p2])
    if p2 == 2: a.valu('v_cmp_eq_u32', 'vcc', 6, 'v1'); a.valu('v_cndmask_b32', 'v4', 'v4', 14, 'vcc', mods='')
    if p2 == 1: a.valu('v_cmp_gt_u32', 'vcc', 4, 'v1'); a.valu('v_cndmask_b32', 'v4', 'v4', 22, 'vcc', mods='')
    a.wait(vm='all')
    a.valu('v_cmp_lt_u32', 'vcc', 'v3', 'v4')
    a.salu('s_ff1_i32_b64', 's40', 'vcc')
    a.valu('v_mov_b32', 'v250', 's40')
    a.ds('ds_write_b32', 'v251', 'v250')
    a.wait(lds='all')
    a.label(f'sw{_tk[0]}')
    a.ins('s_barrier')
    a.ds('ds_read_b32', 'v252', 'v251')
    a.wait(lds='all')
    a.valu('v_readfirstlane_b32', 's33', 'v252')
    a.ins('s_barrier')
    a.nop(2)

def dsel(a, idx):
    if not DIAG[0]: return
    L = f'ds{len(a.lines)}'
    a.salu('s_cmp_ge_u32', 's36', 192, nodst=True)
    a.ins(f's_cbranch_scc1 {L}')
    diag(a, idx)
    a.ins('s_memtime s[88:89]'); a.ins('s_waitcnt lgkmcnt(0)'); diag(a, idx + 40, 's88')
    a.ins(f's_branch {L}x')
    a.label(L)
    diag(a, idx + 5)
    a.label(L + 'x')

def trace(a, base, sidx, k):
    if not DIAG[0]: return
    a.fence()
    a.ins('s_memrealtime s[90:91]'); a.ins('s_waitcnt lgkmcnt(0)')
    a.salu('s_lshl_b32', 's92', s(sidx), 4); a.salu('s_add_u32', 's92', 's92', (201 << 20) + base + 4 * k)
    a.valu('v_mov_b32', 'v249', 's90')
    a.salu('s_mov_b64', 'exec', 1)
    a.vmem('buffer_store_dword', 'v249', 'off', 's[4:7]', 's92', load=False)
    a.salu('s_mov_b64', 'exec', -1)
    a.nop(2)

_tk = [0]
def get_nonce(a, vd):
    _tk[0] += 1
    L = f'gn{_tk[0]}'
    a.fence()
    a.salu('s_mov_b32', 's88', 1 << 22)
    a.label(L)
    a.salu('s_cmp_lg_u32', s(sNONCE), 0, nodst=True)
    a.ins(f's_cbranch_scc1 {L}x')
    a.vmem('buffer_load_dword', v(vd), 'off', s(DBG, 4), 0, mods=f'offset:{D_NONCE} sc1')
    a.salu('s_sub_u32', 's88', 's88', 1)
    a.ins(f's_cbranch_scc1 {L}x')
    a.ins('s_waitcnt vmcnt(0)')
    a.valu('v_readfirstlane_b32', s(sNONCE), v(vd))
    a.nop(2)
    a.ins(f's_branch {L}')
    a.label(f'{L}x')

def ticket(a, dst, off, vb=250, mid=None):
    _tk[0] += 1
    L = f'tk{_tk[0]}'
    a.fence()
    a.salu('s_mov_b32', 's37', off)
    a.valu('v_mov_b32', v(vb), 1)
    a.valu('v_mov_b32', v(vb + 1), 163832)
    a.valu('v_cmp_eq_u32', 'vcc', 0, 'v0')
    a.salu('s_and_saveexec_b64', 's[38:39]', 'vcc')
    a.ins(f's_cbranch_execz {L}' + ('m' if mid else ''))
    a.vmem('buffer_atomic_add', v(vb), 'off', s(DBG, 4), 's37', mods='sc0')
    if mid:
        a.label(L + 'm')
        a.salu('s_mov_b64', 's[38:39]', 'exec')
        a.salu('s_mov_b64', 'exec', -1)
        mid()
        a.salu('s_mov_b64', 'exec', 's[38:39]')
        a.ins(f's_cbranch_execz {L}')
    a.wait(vm='all')
    a.ds('ds_write_b32', v(vb + 1), v(vb))
    a.wait(lds='all')
    a.label(L)
    a.salu('s_mov_b64', 'exec', -1)
    a.ins('s_barrier')
    a.ds('ds_read_b32', v(vb + 2), v(vb + 1))
    a.wait(lds='all')
    a.valu('v_readfirstlane_b32', s(dst), v(vb + 2))
    a.ins('s_barrier')
    a.nop(4)

def flag_store(a, soff):
    _tk[0] += 1
    a.ins('s_waitcnt vmcnt(0)')
    a.ins('s_barrier')
    a.valu('v_mov_b32', 'v250', s(sNONCE))
    a.valu('v_cmp_eq_u32', 'vcc', 0, 'v0')
    a.salu('s_and_saveexec_b64', 's[38:39]', 'vcc')
    a.ins(f's_cbranch_execz fs{_tk[0]}')
    a.vmem('buffer_store_dword', 'v250', 'off', 's[4:7]', soff, mods='sc1', load=False)
    a.label(f'fs{_tk[0]}')
    a.salu('s_mov_b64', 'exec', -1)

def flags_wait(a, soff, lo, hi, va, vd, sleep=2):
    _tk[0] += 1
    L = f'fw{_tk[0]}'
    a.fence()
    a.valu('v_mbcnt_lo_u32_b32', v(va), -1, 0)
    a.valu('v_mbcnt_hi_u32_b32', v(va), -1, v(va))
    a.valu('v_min_u32', v(va), hi - lo - 1, v(va))
    a.valu('v_lshlrev_b32', v(va), 2, v(va))
    a.salu('s_mov_b32', 's88', 1 << 22)
    a.label(L)
    a.vmem('buffer_load_dword', v(vd), v(va), 's[4:7]', soff, mods=f'offen offset:{4 * lo} sc1')
    a.salu('s_sub_u32', 's88', 's88', 1)
    a.ins(f's_cbranch_scc1 {L}x')
    a.ins('s_waitcnt vmcnt(0)')
    a.valu('v_cmp_ne_u32', 'vcc', s(sNONCE), v(vd))
    a.ins(f's_cbranch_vccz {L}x')
    a.ins(f's_sleep {sleep}')
    a.salu('s_cmp_gt_u32', 's88', (1 << 22) - BOFF[0], nodst=True)
    a.ins(f's_cbranch_scc1 {L}')
    a.ins('s_sleep 40')
    a.ins(f's_branch {L}')
    a.label(f'{L}x')

def coarse_wait(a, sseg, vd, shp):
    _tk[0] += 1
    L = f'cw{_tk[0]}'
    a.fence()
    a.salu('s_mov_b32', 's88', 1 << 16)
    a.label(L)
    a.vmem('buffer_load_dword', v(vd), 'off', 's[4:7]', s(shp), mods='offset:128 sc1')
    a.ins('s_waitcnt vmcnt(0)')
    a.valu('v_readfirstlane_b32', 's42', v(vd))
    a.salu('s_sub_u32', 's42', 's42', s(sNONCE))
    a.salu('s_cmp_gt_u32', 's42', 64, nodst=True)
    a.salu('s_cselect_b32', 's42', 0, 's42')
    a.salu('s_add_u32', 's42', 's42', 2)
    a.salu('s_cmp_ge_u32', 's42', s(sseg), nodst=True)
    a.ins(f's_cbranch_scc1 {L}x')
    a.salu('s_sub_u32', 's88', 's88', 1)
    a.ins(f's_cbranch_scc1 {L}x')
    a.salu('s_sub_u32', 's42', s(sseg), 's42')
    a.salu('s_min_u32', 's42', 's42', 6)
    a.label(f'{L}s')
    a.ins('s_sleep 24')
    a.salu('s_sub_u32', 's42', 's42', 1)
    a.salu('s_cmp_lg_u32', 's42', 0, nodst=True)
    a.ins(f's_cbranch_scc1 {L}s')
    a.ins(f's_branch {L}')
    a.label(f'{L}x')

def prog_wait(a, lab, va, vd, vneed, sbase, sleep, scnt='s40'):
    a.salu('s_mov_b32', scnt, 1 << 22)
    a.label(lab)
    a.vmem('buffer_load_dword', v(vd), v(va), 's[4:7]', sbase, mods='offen sc1')
    a.salu('s_sub_u32', scnt, scnt, 1)
    a.ins(f's_cbranch_scc1 {lab}_go')
    a.ins('s_waitcnt vmcnt(0)')
    a.valu('v_subrev_u32', v(vd), vneed, v(vd))
    a.valu('v_cmp_lt_u32', 'vcc', 64, v(vd))
    a.ins(f's_cbranch_vccz {lab}_go')
    a.ins(f's_sleep {sleep}')
    a.ins(f's_branch {lab}')
    a.label(f'{lab}_go')

def k_main(a, hd=0, hg=0, warm=1, msl=4, cp=1, wt=1, qw=9, qx=0, kvr=2, cop=0, nat=5, qp=0, wm=9, tlb=0, tsh=20, xs=0, ops=2, ats=1, **kw):
    global KVR
    KVR = kvr
    n = NAME + '_kernel'
    DV[0] = 59
    start(a, n)
    a.salu('s_cmp_ge_u32', 's2', 256, nodst=True)
    a.ins('s_cbranch_scc1 L_exit')
    a.ins('s_load_dwordx4 s[84:87], s[0:1], 120')
    a.ins('s_load_dwordx16 s[48:63], s[0:1], 0')
    a.valu('v_lshrrev_b32', 'v1', 6, 'v0')
    a.valu('v_readfirstlane_b32', 's32', 'v1')
    a.ins('s_getreg_b32 s3, hwreg(HW_REG_XCC_ID)')
    a.salu('s_and_b32', 's3', 's3', 15)
    a.salu('s_cmp_lg_u32', 's32', 3, nodst=True)
    a.ins('s_cbranch_scc1 L_nowarm')
    a.ins('s_getpc_b64 s[44:45]')
    a.label('L_pcw')
    a.valu('v_and_b32', 'v1', 63, 'v0')
    a.valu('v_lshlrev_b32', 'v1', 7, 'v1')
    a.salu('s_cmp_lg_u32', 's3', XCC[0], nodst=True)
    a.salu('s_cselect_b32', 's33', 'L_helper-L_pcw', 0)
    a.valu('v_add_u32', 'v1', 's33', 'v1')
    for i in range(NWARM[0]):
        if i == 2: a.ins('s_cbranch_scc0 L_nowarm')
        a.valu('v_min_u32', 'v2', 'L_exit-L_pcw', 'v1')
        a.vmem('global_load_dword', v(240 + i), 'v2', 's[44:45]')
        a.valu('v_add_u32', 'v1', 8192, 'v1')
    a.label('L_nowarm')
    a.forget()
    a.ins('s_waitcnt lgkmcnt(0)')
    ws_srd(a, 86)
    a.salu('s_mov_b32', s(DBG), 's84'); a.salu('s_mov_b32', s(DBG + 1), 's85')
    a.salu('s_mov_b32', s(DBG + 2), 256); a.salu('s_mov_b32', s(DBG + 3), '0x20000')
    a.salu('s_mov_b32', s(sNONCE), 0)
    if tlb:
        a.salu('s_cmp_lg_u32', 's32', 2, nodst=True)
        a.ins('s_cbranch_scc1 L_notlb')
        if tlb > 1: a.ins('s_sleep 4')
        a.valu('v_and_b32', 'v1', 63, 'v0')
        a.valu('v_lshlrev_b32', 'v2', 21, 'v1'); a.valu('v_add_u32', 'v2', (2 << 20) - 128, 'v2')
        a.valu('v_lshlrev_b32', 'v1', tsh, 'v1')
        a.salu('s_mov_b32', 's14', 576 * 8192); a.salu('s_mov_b32', 's15', '0x20000')
        for p in (58, 56, 54, 52):
            a.salu('s_mov_b64', 's[12:13]', s(p, 2))
            a.ins('buffer_load_dword v246, v1, s[12:15], 0 offen')
        a.salu('s_mov_b32', 's14', 2048 * 1152); a.salu('s_mov_b64', 's[12:13]', 's[48:49]')
        a.ins('buffer_load_dword v246, v1, s[12:15], 0 offen')
        a.ins('buffer_load_dword v246, v2, s[4:7], 0 offen sc1')
        a.label('L_notlb')
    diag(a, 0)
    a.salu('s_cmp_lg_u32', 's3', XCC[0], nodst=True)
    a.ins('s_cbranch_scc1 L_helper')
    lanes = C.Chain(a, 'x', gs=kw.get('gs', 2))
    ticket(a, C.sH, D_CH, mid=lanes.load_lanes)
    a.salu('s_cmp_ge_u32', s(C.sH), NCH[0], nodst=True)
    a.ins('s_cbranch_scc1 L_helper')
    a.label('L_chain')
    diag(a, 14)
    ldiag(a, 0, 250)
    diag(a, 15, s(C.sH))
    if DIAG[0]:
        a.ins('s_getreg_b32 s89, hwreg(HW_REG_HW_ID)'); diag(a, 12, 's89')
    def kvaddr(a, va, sb):
        a.salu('s_lshr_b32', s(sb), s(C.sH), 1); a.salu('s_lshl_b32', s(sb), s(sb), 8); a.salu('s_add_u32', s(sb), s(sb), Q.SY_PRG)
        a.valu('v_bfe_u32', v(va), v(C.LH), 4, 6); a.valu('v_min_u32', v(va), 11, v(va)); a.valu('v_lshlrev_b32', v(va), 2, v(va))
    def kvwait(a, lab, need, va, vd):
        kvaddr(a, va, 92)
        a.salu('s_add_u32', 's93', s(sNONCE), need)
        prog_wait(a, lab, va, vd, 's93', 's92', 2, scnt='s94')
    def hook(a):
        if not DIAG[0]: return
        a.salu('s_lshl_b32', 's88', s(C.sH), 2); a.salu('s_add_u32', 's88', 's88', s(C.sW))
        a.salu('s_cmp_lg_u32', 's88', 0, nodst=True)
        a.ins('s_cbranch_scc1 L_nohook')
        a.ins('s_memrealtime s[90:91]'); a.ins('s_memtime s[72:73]'); a.ins('s_waitcnt lgkmcnt(0)')
        a.valu('v_mov_b32', v(C.Rq[1]), 's90'); a.valu('v_mov_b32', v(C.Rq[1] + 1), 's72')
        a.salu('s_lshl_b32', 's88', s(C.sSTEP), 3); a.salu('s_add_u32', 's88', 's88', 200 << 20)
        a.vmem('buffer_store_dwordx2', v(C.Rq[1], 2), 'off', 's[4:7]', 's88', load=False)
        a.label('L_nohook')
        a.fence()
    def chain_body(tag, safe):
        for i in range(5): a.salu('s_mov_b64', s(C.sPTR + 2 * i, 2), s(C.sPTR + 2 * i + 2, 2))
        def cpywait(a, notyet):
            if notyet is None:
                L = f'{tag}_cpe{len(a.lines)}'
                a.salu('s_cmp_eq_u32', 's88', 0, nodst=True)
                a.ins(f's_cbranch_scc1 {L}')
                a.salu('s_lshl_b32', 's89', 's73', 7); a.salu('s_add_u32', 's89', 's89', C.SY_CPY)
                a.valu('v_min_u32', 'v33', 11, 'v57'); a.valu('v_lshlrev_b32', 'v33', 2, 'v33')
                a.ins(f'buffer_load_dword v34, off, s[{DBG}:{DBG+3}], 0 offset:{D_NONCE} sc1')
                a.ins('buffer_load_dword v35, v33, s[4:7], s89 offen sc1')
                a.lines.append(L + ':')
                CPS[0] = a.vm_seq
                return
            d0 = dict(a.done)
            a.wait(vm=CPS[0])
            a.done = d0
            a.valu('v_max_u32', 'v34', 1, 'v34')
            a.valu('v_cmp_eq_u32', 'vcc', 1, 'v34')
            a.ins(f's_cbranch_vccnz {notyet}')
            a.valu('v_cmp_ne_u32', 'vcc', 'v34', 'v35')
            a.ins(f's_cbranch_vccnz {notyet}')
        def w0hook(a):
            if not safe: hook(a)
            a.salu('s_cmp_lg_u32', s(C.sSTEP), 6 * KVR - 2, nodst=True)
            a.ins(f's_cbranch_scc1 {tag}_nokv')
            kvwait(a, f'{tag}_kv1', Q.DONE, C.Rq[1], C.Rq[1] + 1)
            ldiag(a, 5, C.Rq[1])
            a.label(f'{tag}_nokv')
        if safe: ch = C.Chain(a, tag, fl='sc1', lfl='sc1', xoff=C.XOFF, d0=200, d1=200, dB=100, dZ=400, ks=1, w0hook=w0hook, spinmax=1 << 20)
        else: ch = C.Chain(a, tag, cpy=cpywait if cp else None, ptrace=(lambda a, j: diag(a, 16 + j)), w0hook=w0hook, spinmax=1 << 20, **kw)
        if safe: ch.load_lanes()
        arr, mode = (D_ARR2, D_GO2) if safe else (D_ARR, D_MODE)
        def st1(a):
            a.valu('v_mov_b32', 'v46', 1)
            a.salu('s_mov_b64', 'exec', 1)
            a.vmem('buffer_atomic_add', 'v46', 'off', s(DBG, 4), 0, mods=f'offset:{arr} sc0')
            a.salu('s_mov_b64', 'exec', -1)
        def st2(a):
            a.valu('v_readfirstlane_b32', 's41', 'v46')
            a.valu('v_mov_b32', 'v36', 1); a.valu('v_mov_b32', 'v37', 0)
            a.salu('s_cmp_eq_u32', 's41', 127, nodst=True)
            a.salu('s_cselect_b64', 'exec', 1, 0)
            a.vmem('buffer_atomic_cmpswap', 'v[36:37]', 'off', s(DBG, 4), 0, mods=f'offset:{mode}', load=False)
            a.salu('s_mov_b64', 'exec', -1)
        def st3(a):
            a.vmem('buffer_load_dword', 'v38', 'off', s(DBG, 4), 0, mods=f'offset:{mode} sc1')
            a.vmem('buffer_load_dword', 'v39', 'off', s(DBG, 4), 0, mods=f'offset:{D_NONCE} sc1')
            kvaddr(a, 40, 84)
            a.vmem('buffer_load_dword', 'v41', 'v40', 's[4:7]', 's84', mods='offen sc1')
        def st4(a):
            a.valu('v_readfirstlane_b32', s(sNONCE), 'v39')
            a.valu('v_readfirstlane_b32', 's85', 'v38')
            a.salu('s_add_u32', 's86', s(sNONCE), KVR)
            a.valu('v_subrev_u32', 'v41', 's86', 'v41')
            a.valu('v_cmp_lt_u32', 's[86:87]', 64, 'v41')
            a.salu('s_cmp_eq_u32', s(sNONCE), 0, nodst=True)
            a.salu('s_cselect_b64', 's[86:87]', -1, 's[86:87]')
            a.salu('s_cmp_lg_u64', 's[86:87]', 0, nodst=True)
            a.ins(f's_cbranch_scc1 {tag}_nt')
            ch.touch_kv()
            a.lines.append(f'{tag}_nt:')
        def late(a):
            q0, d0 = a.vm_seq, dict(a.done)
            get_nonce(a, 24)
            a.vm_seq, a.done = q0, d0
        ch.prologue(st1, st2, st3, st4, late)
        diag(a, 2)
        a.salu('s_cmp_eq_u32', 's85', 1, nodst=True)
        a.ins(f's_cbranch_scc1 {tag}_run')
        a.salu('s_mov_b32', 's40', (1 << 24) if safe else TMO[0])
        a.label(f'{tag}_startpoll')
        a.vmem('buffer_load_dword', 'v3', 'off', s(DBG, 4), 0, mods=f'offset:{mode} sc1')
        a.wait(vm='all')
        a.valu('v_readfirstlane_b32', 's85', 'v3')
        a.salu('s_cmp_eq_u32', 's85', 1, nodst=True)
        a.ins(f's_cbranch_scc1 {tag}_run')
        if not safe:
            a.salu('s_cmp_eq_u32', 's85', 2, nodst=True)
            a.ins(f's_cbranch_scc1 {tag}_leave')
        a.ins('s_sleep 1')
        a.salu('s_sub_u32', 's40', 's40', 1)
        a.ins(f's_cbranch_scc0 {tag}_startpoll')
        if safe: a.ins('s_endpgm')
        else:
            a.valu('v_mov_b32', 'v4', 2); a.valu('v_mov_b32', 'v5', 0)
            a.salu('s_mov_b64', 'exec', 1)
            a.vmem('buffer_atomic_cmpswap', 'v[4:5]', 'off', s(DBG, 4), 0, mods=f'offset:{D_MODE}', load=False)
            a.salu('s_mov_b64', 'exec', -1)
            a.salu('s_mov_b32', 's40', 1 << 20)
            a.ins(f's_branch {tag}_startpoll')
            a.label(f'{tag}_leave')
            a.valu('v_lshrrev_b32', 'v0', 4, v(C.LH))
            a.salu('s_mov_b32', 's32', s(C.sW))
            a.ins('s_load_dwordx16 s[48:63], s[0:1], 0')
            a.ins('s_waitcnt lgkmcnt(0)')
            a.ins('s_branch L_helper')
        a.label(f'{tag}_run')
        diag(a, 3)
        a.salu('s_cmp_eq_u64', 's[86:87]', 0, nodst=True)
        a.ins(f's_cbranch_scc1 {tag}_kvok')
        kvwait(a, f'{tag}_kv0', KVR, 2, 3)
        ch.touch_kv()
        a.ins('s_waitcnt vmcnt(0)')
        a.label(f'{tag}_kvok')
        ch.loop_init()
        diag(a, 4)
        ldiag(a, 4, 24)
        if not safe and DIAG[0]: print(ch.outs, [(j[1], j[3] // 1024) for j in ch.sched])
        ch.step()
        diag(a, 5)
        ldiag(a, 6, 24)
        a.ins('s_endpgm')
        ch.load_sub()
    chain_body('cf', False)
    a.label('L_chain_safe')
    a.forget()
    chain_body('cs', True)
    def mode_check(lab):
        a.salu('s_mov_b32', 's40', 4 * TMO[0])
        a.label(f'{lab}_w')
        a.vmem('buffer_load_dword', 'v250', 'off', s(DBG, 4), 0, mods=f'offset:{D_MODE} sc1')
        a.wait(vm='all')
        a.valu('v_readfirstlane_b32', 's41', 'v250')
        a.salu('s_cmp_lg_u32', 's41', 0, nodst=True)
        a.ins(f's_cbranch_scc1 {lab}_known')
        a.salu('s_sub_u32', 's40', 's40', 1)
        a.ins(f's_cbranch_scc1 {lab}_force')
        a.ins('s_sleep 2')
        a.ins(f's_branch {lab}_w')
        a.label(f'{lab}_force')
        a.valu('v_mov_b32', 'v250', 2); a.valu('v_mov_b32', 'v251', 0)
        a.salu('s_mov_b64', 'exec', 1)
        a.vmem('buffer_atomic_cmpswap', 'v[250:251]', 'off', s(DBG, 4), 0, mods=f'offset:{D_MODE}', load=False)
        a.salu('s_mov_b64', 'exec', -1)
        a.ins('s_waitcnt vmcnt(0)')
        a.salu('s_mov_b32', 's40', 4 * TMO[0])
        a.ins(f's_branch {lab}_w')
        a.label(f'{lab}_known')
    a.forget()
    a.label('L_helper')
    DV[0] = 249
    a.forget()
    a.ins('s_load_dwordx16 s[64:79], s[0:1], 64')
    a.salu('s_sub_u32', 's33', 's3', XCC[0] + 1); a.salu('s_and_b32', 's33', 's33', 3 if FX[0] else 7)
    a.label('L_pool')
    a.salu('s_lshl_b32', 's35', 's33', 2); a.salu('s_add_u32', 's35', 's35', D_POOL)
    ticket(a, 34, 's35')
    a.salu('s_mov_b32', 's36', 's33')
    a.salu('s_or_b32', 's33', 's34', 's32')
    a.salu('s_cmp_lg_u32', 's33', 0, nodst=True)
    a.ins('s_cbranch_scc1 L_helper1')
    a.ins('s_memrealtime s[90:91]'); a.ins('s_waitcnt lgkmcnt(0)')
    a.salu('s_lshl_b32', 's90', 's90', 8); a.salu('s_or_b32', 's90', 's90', 1)
    a.valu('v_mov_b32', 'v250', 's90'); a.valu('v_mov_b32', 'v251', 0)
    a.salu('s_mov_b64', 'exec', 1)
    a.vmem('buffer_atomic_cmpswap', 'v[250:251]', 'off', s(DBG, 4), 0, mods=f'offset:{D_NONCE}', load=False)
    a.salu('s_mov_b64', 'exec', -1)
    a.label('L_helper1')
    if hd:
        a.salu('s_mul_i32', 's37', 's36', 171); a.salu('s_lshr_b32', 's37', 's37', 10); a.salu('s_mul_i32', 's37', 's37', 6); a.salu('s_sub_u32', 's37', 's36', 's37')
        a.salu('s_cmp_lt_u32', 's37', hg, nodst=True); a.ins('s_cbranch_scc1 L_nhd')
        for i in range(hd): a.ins('s_sleep 127')
        a.label('L_nhd')
    diag(a, 9)
    a.salu('s_cmp_ge_u32', 's34', 32, nodst=True)
    a.ins('s_cbranch_scc1 L_qkv_next')
    a.salu('s_cmp_ge_u32', 's36', 7, nodst=True)
    a.ins('s_cbranch_scc1 L_qkv_next')
    a.salu('s_max_u32', 's37', 's36', 4); a.salu('s_sub_u32', 's37', 's37', 4); a.salu('s_mul_i32', 's37', 's37', 6)
    a.salu('s_lshl_b32', 's38', 's36', 1); a.salu('s_add_u32', 's38', 's38', 's37')
    a.salu('s_cmp_lt_u32', 's36', 4, nodst=True); a.salu('s_cselect_b32', 's39', 2, 8)
    a.salu('s_mul_i32', 's36', 's36', 30); a.salu('s_sub_u32', 's36', 's36', 's37')
    a.salu('s_cmp_lt_u32', 's34', 's39', nodst=True)
    a.ins('s_cbranch_scc1 L_copy')
    a.salu('s_add_u32', 's36', 's36', 's34'); a.salu('s_sub_u32', 's36', 's36', 's39')
    if warm:
        a.salu('s_cmp_lg_u32', s(sNONCE), 0, nodst=True)
        a.ins('s_cbranch_scc1 L_nowm')
        a.salu('s_mul_i32', 's37', 's36', 24576)
        a.salu('s_mov_b32', 's14', 576 * 8192); a.salu('s_mov_b32', 's15', '0x20000')
        a.salu('s_mov_b32', 'm0', 155648)
        if warm == 1:
            a.valu('v_lshlrev_b32', 'v1', 7, 'v0'); a.valu('v_min_u32', 'v1', 24576 - 128, 'v1')
        else: a.valu('v_lshlrev_b32', 'v1', 4, 'v0')
        for p in [x for i, x in enumerate((58, 56, 54, 52)) if wm >> i & 1]:
            a.salu('s_mov_b64', 's[12:13]', s(p, 2))
            if warm == 1:
                a.raw('    buffer_load_dword v1, s[12:15], s37 offen lds')
            else:
                for i in range(6):
                    a.salu('s_add_u32', 's38', 's37', min(i * 4096, 21504 - 4096))
                    a.raw('    buffer_load_dwordx4 v1, s[12:15], s38 offen lds')
        a.label('L_nowm')
    a.salu('s_mul_i32', 's37', 's36', 171); a.salu('s_lshr_b32', 's37', 's37', 10)
    a.salu('s_mul_i32', 's38', 's37', 6); a.salu('s_sub_u32', 's36', 's36', 's38')
    a.salu('s_lshl_b32', 's36', 's36', 5); a.salu('s_add_u32', 's36', 's36', 's37')
    a.ins('s_branch L_job')
    a.label('L_copy')
    if 1:
        a.salu('s_add_u32', 's36', 's38', 's34')
        a.salu('s_mul_i32', 's36', 's36', 11); a.salu('s_and_b32', 's36', 's36', 31)
        a.salu('s_cmp_ge_u32', 's36', 27 if cp else 0, nodst=True)
        a.ins('s_cbranch_scc1 L_qkv_next')
        a.salu('s_mul_i32', 's33', 's36', 57); a.salu('s_lshr_b32', 's33', 's33', 9)
        a.salu('s_mul_i32', 's37', 's33', 9); a.salu('s_sub_u32', 's37', 's36', 's37')
        a.salu('s_lshl_b32', 's36', 's37', 2); a.salu('s_add_u32', 's36', 's36', 1); a.salu('s_min_u32', 's36', 's36', 31)
        a.salu('s_lshr_b32', 's39', 's52', 8); a.salu('s_sub_u32', 's36', 's36', 's39'); a.salu('s_and_b32', 's36', 's36', 31)
        a.salu('s_lshl_b32', 's36', 's36', 8)
        a.salu('s_mov_b32', 's14', 576 * 8192); a.salu('s_mov_b32', 's15', '0x20000')
        a.valu('v_lshrrev_b32', 'v1', 4, 'v0'); a.valu('v_lshlrev_b32', 'v1', 13, 'v1'); a.valu('v_and_b32', 'v2', 15, 'v0'); a.valu('v_lshl_add_u32', 'v1', 'v2', 4, 'v1')
        a.valu('v_lshlrev_b32', 'v2', 4, 'v0')
        a.salu('s_lshl_b32', 's40', 's33', 1); a.salu('s_mul_i32', 's39', 's40', 192 * 256); a.salu('s_lshl_b32', 's41', 's37', 19); a.salu('s_add_u32', 's39', 's39', 's41')
        a.salu('s_add_u32', 's39', 's39', C.WS_CPY)
        for h_ in range(2):
            a.salu('s_add_u32', 's41', 's40', h_)
            a.salu('s_cmp_lt_u32', 's41', 3, nodst=True)
            a.salu('s_cselect_b64', 's[12:13]', 's[52:53]', 's[54:55]')
            a.salu('s_cselect_b32', 's42', 0, 3); a.salu('s_sub_u32', 's41', 's41', 's42')
            a.salu('s_mul_i32', 's38', 's41', 192 * 8192); a.salu('s_add_u32', 's38', 's38', 's36')
            for i in range(12):
                a.vmem('buffer_load_dwordx4', v(8 + 48 * h_ + 4 * i, 4), 'v1', 's[12:15]', 's38', mods='offen')
                a.salu('s_add_u32', 's38', 's38', 16 * 8192)
        a.vmem('buffer_load_dword', 'v3', 'off', s(DBG, 4), 0, mods=f'offset:{D_NONCE} sc1')
        a.wait(vm='all')
        for i in range(24):
            a.vmem('buffer_store_dwordx4', v(8 + 4 * i, 4), 'v2', 's[4:7]', 's39', mods='offen sc1', load=False, data=v(8 + 4 * i, 4))
            a.salu('s_add_u32', 's39', 's39', 4096)
        a.valu('v_readfirstlane_b32', s(sNONCE), 'v3')
        get_nonce(a, 3)
        a.salu('s_lshl_b32', 's37', 's37', 7); a.salu('s_lshl_b32', 's36', 's33', 2); a.salu('s_add_u32', 's36', 's36', 's32')
        a.salu('s_lshl_b32', 's36', 's36', 2); a.salu('s_add_u32', 's37', 's37', 's36'); a.salu('s_add_u32', 's37', 's37', C.SY_CPY)
        a.valu('v_mov_b32', 'v3', s(sNONCE))
        a.ins('s_waitcnt vmcnt(0)')
        a.salu('s_mov_b64', 'exec', 1)
        a.vmem('buffer_store_dword', 'v3', 'off', 's[4:7]', 's37', mods='sc1', load=False)
        a.salu('s_mov_b64', 'exec', -1)
        diag(a, 44)
    a.label('L_qkv_next')
    if qp:
        a.salu('s_sub_u32', 's33', 's3', XCC[0] + 1); a.salu('s_and_b32', 's33', 's33', 3 if FX[0] else 7)
        a.salu('s_cmp_eq_u32', 's33', 7, nodst=True)
        a.ins('s_cbranch_scc1 L_qscan')
        a.label('L_qtake')
        a.salu('s_lshl_b32', 's35', 's33', 2); a.salu('s_add_u32', 's35', 's35', D_QP)
        ticket(a, 34, 's35')
        a.salu('s_mul_i32', 's36', 's33', 19); a.salu('s_add_u32', 's36', 's36', 's34')
        a.salu('s_cmp_ge_u32', 's34', 19, nodst=True); a.salu('s_cselect_b32', 's36', 128, 's36')
        a.salu('s_cmp_lt_u32', 's36', 128, nodst=True)
        a.ins('s_cbranch_scc1 L_qjob')
        a.label('L_qscan')
        scan(a, D_QP, 2)
        a.salu('s_cmp_lt_u32', 's33', 7, nodst=True)
        a.ins('s_cbranch_scc1 L_qtake')
        a.ins('s_branch L_ssm_next')
        a.label('L_qjob')
        a.salu('s_and_b32', 's37', 's36', 7); a.salu('s_lshl_b32', 's37', 's37', 4); a.salu('s_lshr_b32', 's36', 's36', 3)
        a.salu('s_add_u32', 's36', 's36', 's37'); a.salu('s_add_u32', 's36', 's36', 192)
    else:
        ticket(a, 36, D_HELP)
        a.salu('s_add_u32', 's36', 's36', 192)
        a.salu('s_cmp_ge_u32', 's36', 320, nodst=True)
        a.ins('s_cbranch_scc1 L_ssm_next')
    a.label('L_job')
    a.salu('s_and_b32', s(Q.sHh), 's36', 15); a.salu('s_lshl_b32', s(Q.sHh), s(Q.sHh), 1)
    a.salu('s_bfe_u32', s(Q.sM), 's36', '0x10004')
    a.salu('s_lshr_b32', s(Q.sSEG), 's36', 5)
    a.salu('s_mul_i32', 's33', s(Q.sM), 6); a.salu('s_add_u32', 's33', 's33', s(Q.sSEG))
    a.salu('s_add_u32', s(Q.sM), s(Q.sM), 1)
    a.salu('s_lshr_b32', 's37', 's36', 4); a.salu('s_sub_u32', 's38', 's37', 12)
    a.salu('s_cmp_ge_u32', 's36', 192, nodst=True)
    a.salu('s_cselect_b32', s(Q.sM), 0, s(Q.sM))
    a.salu('s_cselect_b32', s(Q.sSEG), 's38', s(Q.sSEG))
    a.salu('s_cselect_b32', 's33', 's37', 's33')
    a.salu('s_cselect_b32', s(Q.sSTR), 8, 6)
    def nonce_early(a):
        a.valu('v_mov_b32', 'v28', s(sNONCE))
        a.salu('s_cmp_lg_u32', s(sNONCE), 0, nodst=True)
        a.ins('s_cbranch_scc1 L_ne')
        a.ins(f'buffer_load_dword v28, off, s[{DBG}:{DBG+3}], 0 offset:{D_NONCE} sc1')
        a.lines.append('L_ne:')
    Q.qkv_role(a, 'qk', 48, 52, sNONCE, 33, at=(nat, nonce_early), late=lambda a: (a.valu('v_readfirstlane_b32', s(sNONCE), 'v28'), get_nonce(a, 25), dsel(a, 8)), qw=qw, qx=qx, cop=cop)
    dsel(a, 6)
    a.salu('s_cmp_ge_u32', 's36', 64, nodst=True)
    a.ins('s_cbranch_scc1 L_qkv_next')
    a.salu('s_lshr_b32', 's33', 's36', 5)
    if xs & 8: a.ins('s_endpgm')
    Q.memkv_role(a, 'mk', sNONCE, 33, slp=msl)
    diag(a, 1)
    a.ins('s_endpgm')
    a.label('L_ssm_next')
    if xs & 1: a.ins('s_branch L_phase2')
    ticket(a, S.sD0, D_SSM)
    a.salu('s_cmp_ge_u32', s(S.sD0), 144, nodst=True)
    a.ins('s_cbranch_scc1 L_phase2')
    a.salu('s_lshl_b32', s(S.sD0), s(S.sD0), 2)
    a.forget()
    S.ssm_job(a, 'ss', 62, 76)
    diag(a, 7)
    a.ins('s_branch L_ssm_next')
    sWv, sCB = 32, 33
    a.label('L_phase2')
    a.forget()
    scan(a, D_POOL, False)
    a.salu('s_cmp_lt_u32', 's33', 7, nodst=True)
    a.ins('s_cbranch_scc1 L_pool')
    if wt > 1:
        a.salu('s_cmp_lg_u32', 's32', 0, nodst=True); a.ins('s_cbranch_scc1 L_nwb'); a.ins('buffer_wbl2 sc1'); a.ins('s_waitcnt vmcnt(0)'); a.label('L_nwb')
    get_nonce(a, 250)
    mode_check('mc2')
    a.salu('s_cmp_eq_u32', 's41', 1, nodst=True)
    a.ins('s_cbranch_scc1 L_phase2b')
    ticket(a, C.sH, D_CH2)
    a.salu('s_cmp_lt_u32', s(C.sH), 32, nodst=True)
    a.ins('s_cbranch_scc1 L_chain_safe')
    a.label('L_phase2b')
    if xs & 2: a.ins('s_branch L_done')
    a.salu('s_mov_b32', 's8', 's76'); a.salu('s_mov_b32', 's9', 's77')
    a.salu('s_mov_b32', 's10', 2048 * 2304); a.salu('s_mov_b32', 's11', '0x20000')
    a.salu('s_sub_u32', 's33', 's3', XCC[0] + 1); a.salu('s_and_b32', 's33', 's33', 3 if FX[0] else 7)
    a.salu('s_cmp_eq_u32', 's33', 7, nodst=True)
    a.ins('s_cbranch_scc1 L_p2scan')
    a.label('L_p2take')
    a.salu('s_lshl_b32', 's35', 's33', 2); a.salu('s_add_u32', 's35', 's35', D_P2)
    ticket(a, 34, 's35')
    a.salu('s_cmp_lt_u32', 's33', 4, nodst=True); a.salu('s_cselect_b32', 's36', 4, 6)
    a.salu('s_cmp_lt_u32', 's34', 's36', nodst=True)
    a.ins('s_cbranch_scc1 L_att0')
    a.salu('s_sub_u32', 's34', 's34', 's36')
    a.salu('s_cmp_lt_u32', 's34', 18, nodst=True)
    a.ins('s_cbranch_scc1 L_op_start')
    a.label('L_p2scan')
    scan(a, D_P2, True)
    a.salu('s_cmp_lt_u32', 's33', 7, nodst=True)
    a.ins('s_cbranch_scc1 L_p2take')
    a.ins('s_branch L_done')
    a.label('L_att0')
    a.salu('s_mul_i32', 's36', 's34', 7); a.salu('s_mul_i32', 's37', 's34', 3); a.salu('s_add_u32', 's37', 's37', 12)
    a.salu('s_cmp_lt_u32', 's34', 4, nodst=True); a.salu('s_cselect_b32', 's34', 's36', 's37')
    a.salu('s_add_u32', 's34', 's34', 's33')
    a.salu('s_cmp_ge_u32', 's34', 32, nodst=True)
    a.ins('s_cbranch_scc1 L_done')
    a.label('L_att_next')
    a.forget()
    a.salu('s_lshr_b32', s(A.sSEG), 's34', 3)
    a.salu('s_and_b32', s(A.sHh), 's34', 7)
    a.salu('s_lshl_b32', s(A.sHh), s(A.sHh), 2)
    a.salu('s_add_u32', s(A.sHh), s(A.sHh), s(sWv))
    a.salu('s_lshr_b32', 's36', s(A.sHh), 1); a.salu('s_lshl_b32', 's36', 's36', 8); a.salu('s_add_u32', 's36', 's36', Q.SY_PRG)
    a.salu('s_mul_i32', 's37', s(A.sSEG), 43); a.salu('s_lshr_b32', 's37', 's37', 8)
    a.salu('s_mul_i32', 's41', 's37', 6); a.salu('s_sub_u32', 's41', s(A.sSEG), 's41')
    a.valu('v_and_b32', 'v1', 63, 'v0')
    a.valu('v_mul_u32_u24', 'v2', 6, 'v1'); a.valu('v_add_u32', 'v2', 's41', 'v2')
    a.valu('v_mov_b32', 'v4', 's37')
    a.salu('s_and_b32', 's41', s(A.sSEG), 7); a.salu('s_add_u32', 's41', 's41', 12)
    a.salu('s_lshr_b32', 's37', s(A.sSEG), 3)
    a.valu('v_mov_b32', 'v5', 's41'); a.valu('v_mov_b32', 'v6', 's37')
    a.valu('v_cmp_lt_u32', 'vcc', 1, 'v1')
    a.valu('v_cndmask_b32', 'v2', 'v2', 'v5', 'vcc'); a.valu('v_cndmask_b32', 'v4', 'v4', 'v6', 'vcc')
    a.valu('v_lshlrev_b32', 'v2', 2, 'v2')
    a.valu('v_add3_u32', 'v4', 'v4', s(sNONCE), 1)
    prog_wait(a, 'L_aw1', 2, 3, 'v4', 's36', 4)
    def mid(a):
        a.fence()
        trace(a, 0, 34, 0)
        coarse_wait(a, A.sSEG, 199, 36)
        trace(a, 0, 34, 1)
        a.salu('s_and_b32', 's37', s(A.sSEG), 1); a.salu('s_lshl_b32', 's37', 's37', 2); a.salu('s_add_u32', 's37', 's37', 's36'); a.salu('s_add_u32', 's37', 's37', 128)
        a.salu('s_add_u32', 's41', s(A.sSEG), s(sNONCE)); a.salu('s_add_u32', 's41', 's41', 1)
        a.salu('s_lshl_b32', 's42', s(A.sHh), 7); a.salu('s_add_u32', 's42', 's42', C.SY_CHF)
        a.salu('s_cmp_ge_u32', s(A.sSEG), 62, nodst=True)
        a.salu('s_cselect_b32', 's37', 's42', 's37')
        a.salu('s_cselect_b32', 's42', 12, 8)
        a.valu('v_lshlrev_b32', 'v198', 2, 'v0'); a.valu('v_and_b32', 'v198', 's42', 'v198')
        prog_wait(a, 'L_aw2', 198, 199, 's41', 's37', ats)
        trace(a, 0, 34, 2)
    A.attn_job(a, 'at', ld_fl='sc1', st_fl='sc1', mid=mid)
    a.salu('s_lshr_b32', 's40', 's34', 1)
    a.salu('s_lshl_b32', 's40', 's40', 7)
    a.salu('s_and_b32', 's41', s(A.sHh), 7)
    a.salu('s_lshl_b32', 's41', 's41', 2)
    a.salu('s_add_u32', 's40', 's40', 's41')
    a.salu('s_add_u32', 's40', 's40', SY_ATT)
    a.valu('v_mov_b32', 'v250', s(sNONCE))
    a.salu('s_cmp_ge_u32', s(A.sSEG), 62, nodst=True)
    a.ins('s_cbranch_scc1 L_afl')
    a.ins('s_waitcnt vmcnt(0)')
    a.label('L_afl')
    a.salu('s_mov_b64', 'exec', 1)
    a.vmem('buffer_store_dword', 'v250', 'off', 's[4:7]', 's40', mods='sc1', load=False)
    a.salu('s_mov_b64', 'exec', -1)
    trace(a, 0, 34, 3)
    a.salu('s_add_u32', 's34', 's34', 32)
    a.salu('s_cmp_lt_u32', 's34', 512, nodst=True)
    a.fence()
    a.ins('s_cbranch_scc1 L_att_next')
    a.ins('s_branch L_done')
    a.label('L_op_start')
    if xs & 4: a.ins('s_branch L_done')
    a.forget()
    a.salu('s_mov_b32', s(A.sSEG), 's33')
    a.salu('s_mov_b32', s(sCB), 's34')
    A.oproj_load(a, 58, sCB, sWv)
    a.label('L_op_seg')
    a.salu('s_lshr_b32', 's43', s(A.sSEG), 1)
    a.salu('s_add_u32', 's43', 's43', 1)
    a.salu('s_min_u32', 's43', 's43', 63)
    a.salu('s_and_b32', 's36', s(sCB), 15); a.salu('s_lshl_b32', 's36', 's36', 8); a.salu('s_add_u32', 's36', 's36', Q.SY_PRG)
    a.salu('s_lshl_b32', 's94', s(sCB), 7); a.salu('s_add_u32', 's94', 's94', s(A.sSEG))
    trace(a, 65536, 94, 0)
    a.salu('s_cmp_ge_u32', s(A.sSEG), 120, nodst=True)
    a.ins('s_cbranch_scc1 L_nocw')
    coarse_wait(a, 43, 3, 36)
    a.label('L_nocw')
    trace(a, 65536, 94, 1)
    a.salu('s_lshr_b32', 's89', s(A.sSEG), 1)
    a.salu('s_lshl_b32', 's89', 's89', 2)
    a.salu('s_add_u32', 's89', 's89', s(sWv))
    a.salu('s_lshl_b32', 's89', 's89', 7)
    a.salu('s_add_u32', 's89', 's89', SY_ATT)
    flags_wait(a, 's89', 0, 8, 2, 3, sleep=ops)
    trace(a, 65536, 94, 2)
    A.oproj_seg(a, 'os', 8, sCB, sWv, A.sSEG, ofl='sc1' if wt else '')
    trace(a, 65536, 94, 3)
    a.salu('s_add_u32', s(A.sSEG), s(A.sSEG), 7)
    a.salu('s_cmp_ge_u32', s(A.sSEG), 128, nodst=True)
    a.ins('s_cbranch_scc1 L_done')
    a.ins('s_barrier')
    a.ins('s_branch L_op_seg')
    a.label('L_done')
    diag(a, 10)
    ldiag(a, 7, 250)
    a.label('L_exit')
    a.ins('s_endpgm')
    a.raw(kd(n, 512, 256))

def build(**kw):
    hdr = open(f'/code/{NAME}.s.ref').read().split('; Override launch geometry')[0]
    a = Asm()
    a.raw(hdr.rstrip())
    a.raw('; @launch grid=(256,1,1) block=(256,1,1) lds=163840')
    a.raw('.amdgcn_target "amdgcn-amd-amdhsa--gfx950"')
    k_main(a, **kw)
    return a.text()

if __name__ == '__main__':
    kw = dict(d0=72, dB=15, ks=2, pA=14, d1=70, dX=40, dZ=168, pbr=0)
    open('one.s', 'w').write(build(**kw))
    for spec in sys.argv[1:]:
        k2 = dict((x.split('=')[0], int(x.split('=')[1])) for x in spec.split(','))
        open('one_' + spec.replace('=', '').replace(',', '_') + '.s', 'w').write(build(**{**kw, **k2}))
    XCC[0] = 9; TMO[0] = 1 << 8; FX[0] = 1
    open('one_safe.s', 'w').write(build(**kw))
    XCC[0] = 0; TMO[0] = 1 << 8; NCH[0] = 31; FX[0] = 0
    open('one_safe2.s', 'w').write(build(**kw))
    TMO[0] = 1 << 17; NCH[0] = 32
    LD[0] = 1
    open('one_l.s', 'w').write(build(**kw))
    for spec in sys.argv[1:]:
        k2 = dict((x.split('=')[0], int(x.split('=')[1])) for x in spec.split(','))
        open('one_' + spec.replace('=', '').replace(',', '_') + '_l.s', 'w').write(build(**{**kw, **k2}))
    LD[0] = 0
    DIAG[0] = 1
    for spec in sys.argv[1:]:
        k2 = dict((x.split('=')[0], int(x.split('=')[1])) for x in spec.split(','))
        open('one_' + spec.replace('=', '').replace(',', '_') + '_d.s', 'w').write(build(**{**kw, **k2}))
    open('one_d.s', 'w').write(build(**kw))
    print('ok')
```

```python
import sys
sys.path.insert(0, 'gen2')
from asmfw import Asm
import chain2 as C, qkv2 as Q, attn2 as A, ssm as S
from chain2 import s, v
from build_ct import kd
NAME = 'concat_heads__memory_aug_recurrent_mem_tr__ssm_conv_s4d__prompt'
def start(a, name):
    a.raw(f'.text\n.globl {name}\n.p2align 8\n.type {name},@function\n{name}:')
def ws_srd(a, p):
    a.salu('s_mov_b32', 's4', s(p)); a.salu('s_mov_b32', 's5', s(p + 1))
    a.salu('s_mov_b32', 's6', C.WS_SIZE); a.salu('s_mov_b32', 's7', '0x20000')

sNONCE = C.sNONCE
DBG = 96
SY_ATT = C.WS_SYNC + 65536
D_NONCE, D_HELP, D_CH, D_ARR, D_SSM, D_T2, D_ATT, D_WF, D_OP = 64, 4, 128, 132, 8, 12, 16, 20, 136
D_XF2 = 24
D_MODE, D_CH2, D_ARR2, D_GO2 = 140, 208, 212, 216
XCC = [0]
NWARM = [5]
XD = [0]
OPS = [4]
DV = [70]
HDELAY = [0]
TMO = [1 << 17]
KVR = 2
CPS = [0]
D_POOL = 32
D_P2 = 160
D_QP = 68
NCH = [32]
FX = [0]
BOFF = [48]
ATS = [3]
MSL = [4]

DIAG = [0]
IFL = ['']
def diag(a, idx, val=None):
    if not DIAG[0]: return
    a.fence()
    a.ins('s_memrealtime s[90:91]'); a.ins('s_waitcnt lgkmcnt(0)')
    if val is not None: a.salu('s_mov_b32', 's90', val)
    a.salu('s_mov_b64', 's[100:101]', 'exec'); a.salu('s_mov_b64', 'exec', 1)
    a.valu('v_mov_b32', v(DV[0]), 's90')
    a.salu('s_lshl_b32', 's91', 's2', 8); a.salu('s_add_u32', 's91', 's91', 203 << 20)
    a.vmem('buffer_store_dword', v(DV[0]), 'off', 's[4:7]', 's91', mods=f'offset:{4 * idx}', load=False)
    a.salu('s_mov_b64', 'exec', 's[100:101]')
    a.nop(2)

LD = [0]
def ldiag(a, word, vreg, op='buffer_atomic_umax'):
    if not LD[0]: return
    a.fence()
    a.ins('s_memrealtime s[90:91]'); a.ins('s_waitcnt lgkmcnt(0)')
    a.salu('s_lshl_b32', 's91', 's2', 8); a.salu('s_add_u32', 's91', 's91', 203 << 20)
    a.valu('v_mov_b32', v(vreg), 's90')
    a.valu('v_cmp_eq_u32', 'vcc', 0, 'v0' if vreg > 200 else v(C.LH))
    a.salu('s_mov_b64', 'exec', 'vcc')
    a.vmem('buffer_store_dword', v(vreg), 'off', 's[4:7]', 's91', mods=f'offset:{4 * word}', load=False)
    a.salu('s_mov_b64', 'exec', -1)
    a.nop(2)

def scan(a, base, p2):
    _tk[0] += 1
    a.valu('v_and_b32', 'v1', 63, 'v0'); a.valu('v_min_u32', 'v1', 6, 'v1'); a.valu('v_lshlrev_b32', 'v2', 2, 'v1')
    a.salu('s_cmp_lg_u32', 's32', 0, nodst=True)
    a.valu('v_mov_b32', 'v251', 163832)
    a.ins(f's_cbranch_scc1 sw{_tk[0]}')
    a.vmem('buffer_load_dword', 'v3', 'v2', s(DBG, 4), 0, mods=f'offen offset:{base} sc1')
    a.valu('v_mov_b32', 'v4', (32, 24, 19)[p2])
    if p2 == 2: a.valu('v_cmp_eq_u32', 'vcc', 6, 'v1'); a.valu('v_cndmask_b32', 'v4', 'v4', 14, 'vcc', mods='')
    if p2 == 1: a.valu('v_cmp_gt_u32', 'vcc', 4, 'v1'); a.valu('v_cndmask_b32', 'v4', 'v4', 22, 'vcc', mods='')
    a.wait(vm='all')
    a.valu('v_cmp_lt_u32', 'vcc', 'v3', 'v4')
    a.salu('s_ff1_i32_b64', 's40', 'vcc')
    a.valu('v_mov_b32', 'v250', 's40')
    a.ds('ds_write_b32', 'v251', 'v250')
    a.wait(lds='all')
    a.label(f'sw{_tk[0]}')
    a.ins('s_barrier')
    a.ds('ds_read_b32', 'v252', 'v251')
    a.wait(lds='all')
    a.valu('v_readfirstlane_b32', 's33', 'v252')
    a.ins('s_barrier')
    a.nop(2)

def dsel(a, idx):
    if not DIAG[0]: return
    L = f'ds{len(a.lines)}'
    a.salu('s_cmp_ge_u32', 's36', 192, nodst=True)
    a.ins(f's_cbranch_scc1 {L}')
    diag(a, idx)
    a.ins('s_memtime s[88:89]'); a.ins('s_waitcnt lgkmcnt(0)'); diag(a, idx + 40, 's88')
    a.ins(f's_branch {L}x')
    a.label(L)
    diag(a, idx + 5)
    a.label(L + 'x')

def trace(a, base, sidx, k):
    if not DIAG[0]: return
    a.fence()
    a.ins('s_memrealtime s[90:91]'); a.ins('s_waitcnt lgkmcnt(0)')
    a.salu('s_lshl_b32', 's92', s(sidx), 4); a.salu('s_add_u32', 's92', 's92', (201 << 20) + base + 4 * k)
    a.valu('v_mov_b32', 'v249', 's90')
    a.salu('s_mov_b64', 'exec', 1)
    a.vmem('buffer_store_dword', 'v249', 'off', 's[4:7]', 's92', load=False)
    a.salu('s_mov_b64', 'exec', -1)
    a.nop(2)

_tk = [0]
def get_nonce(a, vd):
    _tk[0] += 1
    L = f'gn{_tk[0]}'
    a.fence()
    a.salu('s_mov_b32', 's88', 1 << 22)
    a.label(L)
    a.salu('s_cmp_lg_u32', s(sNONCE), 0, nodst=True)
    a.ins(f's_cbranch_scc1 {L}x')
    a.vmem('buffer_load_dword', v(vd), 'off', s(DBG, 4), 0, mods=f'offset:{D_NONCE} sc1')
    a.salu('s_sub_u32', 's88', 's88', 1)
    a.ins(f's_cbranch_scc1 {L}x')
    a.ins('s_waitcnt vmcnt(0)')
    a.valu('v_readfirstlane_b32', s(sNONCE), v(vd))
    a.nop(2)
    a.ins(f's_branch {L}')
    a.label(f'{L}x')

def ticket(a, dst, off, vb=250, mid=None):
    _tk[0] += 1
    L = f'tk{_tk[0]}'
    a.fence()
    a.salu('s_mov_b32', 's37', off)
    a.valu('v_mov_b32', v(vb), 1)
    a.valu('v_mov_b32', v(vb + 1), 163832)
    a.valu('v_cmp_eq_u32', 'vcc', 0, 'v0')
    a.salu('s_and_saveexec_b64', 's[38:39]', 'vcc')
    a.ins(f's_cbranch_execz {L}' + ('m' if mid else ''))
    a.vmem('buffer_atomic_add', v(vb), 'off', s(DBG, 4), 's37', mods='sc0')
    if mid:
        a.label(L + 'm')
        a.salu('s_mov_b64', 's[38:39]', 'exec')
        a.salu('s_mov_b64', 'exec', -1)
        mid()
        a.salu('s_mov_b64', 'exec', 's[38:39]')
        a.ins(f's_cbranch_execz {L}')
    a.wait(vm='all')
    a.ds('ds_write_b32', v(vb + 1), v(vb))
    a.wait(lds='all')
    a.label(L)
    a.salu('s_mov_b64', 'exec', -1)
    a.ins('s_barrier')
    a.ds('ds_read_b32', v(vb + 2), v(vb + 1))
    a.wait(lds='all')
    a.valu('v_readfirstlane_b32', s(dst), v(vb + 2))
    a.ins('s_barrier')
    a.nop(4)

def flag_store(a, soff):
    _tk[0] += 1
    a.ins('s_waitcnt vmcnt(0)')
    a.ins('s_barrier')
    a.valu('v_mov_b32', 'v250', s(sNONCE))
    a.valu('v_cmp_eq_u32', 'vcc', 0, 'v0')
    a.salu('s_and_saveexec_b64', 's[38:39]', 'vcc')
    a.ins(f's_cbranch_execz fs{_tk[0]}')
    a.vmem('buffer_store_dword', 'v250', 'off', 's[4:7]', soff, mods='sc1', load=False)
    a.label(f'fs{_tk[0]}')
    a.salu('s_mov_b64', 'exec', -1)

def flags_wait(a, soff, lo, hi, va, vd, sleep=2):
    _tk[0] += 1
    L = f'fw{_tk[0]}'
    a.fence()
    a.valu('v_mbcnt_lo_u32_b32', v(va), -1, 0)
    a.valu('v_mbcnt_hi_u32_b32', v(va), -1, v(va))
    a.valu('v_min_u32', v(va), hi - lo - 1, v(va))
    a.valu('v_lshlrev_b32', v(va), 2, v(va))
    a.salu('s_mov_b32', 's88', 1 << 22)
    a.label(L)
    a.vmem('buffer_load_dword', v(vd), v(va), 's[4:7]', soff, mods=f'offen offset:{4 * lo} sc1')
    a.salu('s_sub_u32', 's88', 's88', 1)
    a.ins(f's_cbranch_scc1 {L}x')
    a.ins('s_waitcnt vmcnt(0)')
    a.valu('v_cmp_ne_u32', 'vcc', s(sNONCE), v(vd))
    a.ins(f's_cbranch_vccz {L}x')
    a.ins(f's_sleep {sleep}')
    a.salu('s_cmp_gt_u32', 's88', (1 << 22) - BOFF[0], nodst=True)
    a.ins(f's_cbranch_scc1 {L}')
    a.ins('s_sleep 40')
    a.ins(f's_branch {L}')
    a.label(f'{L}x')

def coarse_wait(a, sseg, vd, shp):
    _tk[0] += 1
    L = f'cw{_tk[0]}'
    a.fence()
    a.salu('s_mov_b32', 's88', 1 << 16)
    a.label(L)
    a.vmem('buffer_load_dword', v(vd), 'off', 's[4:7]', s(shp), mods='offset:128 sc1')
    a.ins('s_waitcnt vmcnt(0)')
    a.valu('v_readfirstlane_b32', 's42', v(vd))
    a.salu('s_sub_u32', 's42', 's42', s(sNONCE))
    a.salu('s_cmp_gt_u32', 's42', 64, nodst=True)
    a.salu('s_cselect_b32', 's42', 0, 's42')
    a.salu('s_add_u32', 's42', 's42', 2)
    a.salu('s_cmp_ge_u32', 's42', s(sseg), nodst=True)
    a.ins(f's_cbranch_scc1 {L}x')
    a.salu('s_sub_u32', 's88', 's88', 1)
    a.ins(f's_cbranch_scc1 {L}x')
    a.salu('s_sub_u32', 's42', s(sseg), 's42')
    a.salu('s_min_u32', 's42', 's42', 6)
    a.label(f'{L}s')
    a.ins('s_sleep 24')
    a.salu('s_sub_u32', 's42', 's42', 1)
    a.salu('s_cmp_lg_u32', 's42', 0, nodst=True)
    a.ins(f's_cbranch_scc1 {L}s')
    a.ins(f's_branch {L}')
    a.label(f'{L}x')

def prog_wait(a, lab, va, vd, vneed, sbase, sleep, scnt='s40'):
    a.salu('s_mov_b32', scnt, 1 << 22)
    a.label(lab)
    a.vmem('buffer_load_dword', v(vd), v(va), 's[4:7]', sbase, mods='offen sc1')
    a.salu('s_sub_u32', scnt, scnt, 1)
    a.ins(f's_cbranch_scc1 {lab}_go')
    a.ins('s_waitcnt vmcnt(0)')
    a.valu('v_subrev_u32', v(vd), vneed, v(vd))
    a.valu('v_cmp_lt_u32', 'vcc', 64, v(vd))
    a.ins(f's_cbranch_vccz {lab}_go')
    a.ins(f's_sleep {sleep}')
    a.ins(f's_branch {lab}')
    a.label(f'{lab}_go')

def k_main(a, hd=0, hg=0, warm=1, msl=4, cp=1, wt=1, qw=9, qx=0, kvr=2, cop=0, nat=5, qp=0, wm=9, tlb=0, tsh=20, xs=0, ops=2, ats=1, leak=0, **kw):
    global KVR
    KVR = kvr
    n = NAME + '_kernel'
    DV[0] = 59
    start(a, n)
    a.salu('s_cmp_ge_u32', 's2', 256, nodst=True)
    a.ins('s_cbranch_scc1 L_exit')
    a.ins('s_load_dwordx4 s[84:87], s[0:1], 120')
    a.ins('s_load_dwordx16 s[48:63], s[0:1], 0')
    a.valu('v_lshrrev_b32', 'v1', 6, 'v0')
    a.valu('v_readfirstlane_b32', 's32', 'v1')
    a.ins('s_getreg_b32 s3, hwreg(HW_REG_XCC_ID)')
    a.salu('s_and_b32', 's3', 's3', 15)
    a.salu('s_cmp_lg_u32', 's32', 3, nodst=True)
    a.ins('s_cbranch_scc1 L_nowarm')
    a.ins('s_getpc_b64 s[44:45]')
    a.label('L_pcw')
    a.valu('v_and_b32', 'v1', 63, 'v0')
    a.valu('v_lshlrev_b32', 'v1', 7, 'v1')
    a.salu('s_cmp_lg_u32', 's3', XCC[0], nodst=True)
    a.salu('s_cselect_b32', 's33', 'L_helper-L_pcw', 0)
    a.valu('v_add_u32', 'v1', 's33', 'v1')
    for i in range(NWARM[0]):
        if i == 2: a.ins('s_cbranch_scc0 L_nowarm')
        a.valu('v_min_u32', 'v2', 'L_exit-L_pcw', 'v1')
        a.vmem('global_load_dword', v(240 + i), 'v2', 's[44:45]')
        a.valu('v_add_u32', 'v1', 8192, 'v1')
    a.label('L_nowarm')
    a.forget()
    a.ins('s_waitcnt lgkmcnt(0)')
    ws_srd(a, 86)
    a.salu('s_mov_b32', s(DBG), 's84'); a.salu('s_mov_b32', s(DBG + 1), 's85')
    a.salu('s_mov_b32', s(DBG + 2), 256); a.salu('s_mov_b32', s(DBG + 3), '0x20000')
    a.salu('s_mov_b32', s(sNONCE), 0)
    if tlb:
        a.salu('s_cmp_lg_u32', 's32', 2, nodst=True)
        a.ins('s_cbranch_scc1 L_notlb')
        if tlb > 1: a.ins('s_sleep 4')
        a.valu('v_and_b32', 'v1', 63, 'v0')
        a.valu('v_lshlrev_b32', 'v2', 21, 'v1'); a.valu('v_add_u32', 'v2', (2 << 20) - 128, 'v2')
        a.valu('v_lshlrev_b32', 'v1', tsh, 'v1')
        a.salu('s_mov_b32', 's14', 576 * 8192); a.salu('s_mov_b32', 's15', '0x20000')
        for p in (58, 56, 54, 52):
            a.salu('s_mov_b64', 's[12:13]', s(p, 2))
            a.ins('buffer_load_dword v246, v1, s[12:15], 0 offen')
        a.salu('s_mov_b32', 's14', 2048 * 1152); a.salu('s_mov_b64', 's[12:13]', 's[48:49]')
        a.ins('buffer_load_dword v246, v1, s[12:15], 0 offen')
        a.ins('buffer_load_dword v246, v2, s[4:7], 0 offen sc1')
        a.label('L_notlb')
    diag(a, 0)
    a.salu('s_cmp_lg_u32', 's3', XCC[0], nodst=True)
    a.ins('s_cbranch_scc1 L_helper')
    lanes = C.Chain(a, 'x', gs=kw.get('gs', 2))
    ticket(a, C.sH, D_CH, mid=lanes.load_lanes)
    a.salu('s_cmp_ge_u32', s(C.sH), NCH[0], nodst=True)
    a.ins('s_cbranch_scc1 L_helper')
    a.label('L_chain')
    diag(a, 14)
    ldiag(a, 0, 250)
    if leak: a.ins('s_memrealtime s[100:101]'); a.ins('s_waitcnt lgkmcnt(0)')
    diag(a, 15, s(C.sH))
    if DIAG[0]:
        a.ins('s_getreg_b32 s89, hwreg(HW_REG_HW_ID)'); diag(a, 12, 's89')
    def kvaddr(a, va, sb):
        a.salu('s_lshr_b32', s(sb), s(C.sH), 1); a.salu('s_lshl_b32', s(sb), s(sb), 8); a.salu('s_add_u32', s(sb), s(sb), Q.SY_PRG)
        a.valu('v_bfe_u32', v(va), v(C.LH), 4, 6); a.valu('v_min_u32', v(va), 11, v(va)); a.valu('v_lshlrev_b32', v(va), 2, v(va))
    def kvwait(a, lab, need, va, vd):
        kvaddr(a, va, 92)
        a.salu('s_add_u32', 's93', s(sNONCE), need)
        prog_wait(a, lab, va, vd, 's93', 's92', 2, scnt='s94')
    def hook(a):
        if not DIAG[0]: return
        a.salu('s_lshl_b32', 's88', s(C.sH), 2); a.salu('s_add_u32', 's88', 's88', s(C.sW))
        a.salu('s_cmp_lg_u32', 's88', 0, nodst=True)
        a.ins('s_cbranch_scc1 L_nohook')
        a.ins('s_memrealtime s[90:91]'); a.ins('s_memtime s[72:73]'); a.ins('s_waitcnt lgkmcnt(0)')
        a.valu('v_mov_b32', v(C.Rq[1]), 's90'); a.valu('v_mov_b32', v(C.Rq[1] + 1), 's72')
        a.salu('s_lshl_b32', 's88', s(C.sSTEP), 3); a.salu('s_add_u32', 's88', 's88', 200 << 20)
        a.vmem('buffer_store_dwordx2', v(C.Rq[1], 2), 'off', 's[4:7]', 's88', load=False)
        a.label('L_nohook')
        a.fence()
    def chain_body(tag, safe):
        for i in range(5): a.salu('s_mov_b64', s(C.sPTR + 2 * i, 2), s(C.sPTR + 2 * i + 2, 2))
        def cpywait(a, notyet):
            if notyet is None:
                L = f'{tag}_cpe{len(a.lines)}'
                a.salu('s_cmp_eq_u32', 's88', 0, nodst=True)
                a.ins(f's_cbranch_scc1 {L}')
                a.salu('s_lshl_b32', 's89', 's73', 7); a.salu('s_add_u32', 's89', 's89', C.SY_CPY)
                a.valu('v_min_u32', 'v33', 11, 'v57'); a.valu('v_lshlrev_b32', 'v33', 2, 'v33')
                a.ins(f'buffer_load_dword v34, off, s[{DBG}:{DBG+3}], 0 offset:{D_NONCE} sc1')
                a.ins('buffer_load_dword v35, v33, s[4:7], s89 offen sc1')
                a.lines.append(L + ':')
                CPS[0] = a.vm_seq
                return
            d0 = dict(a.done)
            a.wait(vm=CPS[0])
            a.done = d0
            a.valu('v_max_u32', 'v34', 1, 'v34')
            a.valu('v_cmp_eq_u32', 'vcc', 1, 'v34')
            a.ins(f's_cbranch_vccnz {notyet}')
            a.valu('v_cmp_ne_u32', 'vcc', 'v34', 'v35')
            a.ins(f's_cbranch_vccnz {notyet}')
        def w0hook(a):
            if not safe: hook(a)
            a.salu('s_cmp_lg_u32', s(C.sSTEP), 6 * KVR - 2, nodst=True)
            a.ins(f's_cbranch_scc1 {tag}_nokv')
            kvwait(a, f'{tag}_kv1', Q.DONE, C.Rq[1], C.Rq[1] + 1)
            ldiag(a, 5, C.Rq[1])
            a.label(f'{tag}_nokv')
        if safe: ch = C.Chain(a, tag, fl='sc1', lfl='sc1', xoff=C.XOFF, d0=200, d1=200, dB=100, dZ=400, ks=1, w0hook=w0hook, spinmax=1 << 20)
        else: ch = C.Chain(a, tag, cpy=cpywait if cp else None, ptrace=(lambda a, j: diag(a, 16 + j)), w0hook=w0hook, spinmax=1 << 20, **kw)
        if safe: ch.load_lanes()
        arr, mode = (D_ARR2, D_GO2) if safe else (D_ARR, D_MODE)
        def st1(a):
            a.valu('v_mov_b32', 'v46', 1)
            a.salu('s_mov_b64', 'exec', 1)
            a.vmem('buffer_atomic_add', 'v46', 'off', s(DBG, 4), 0, mods=f'offset:{arr} sc0')
            a.salu('s_mov_b64', 'exec', -1)
        def st2(a):
            a.valu('v_readfirstlane_b32', 's41', 'v46')
            a.valu('v_mov_b32', 'v36', 1); a.valu('v_mov_b32', 'v37', 0)
            a.salu('s_cmp_eq_u32', 's41', 127, nodst=True)
            a.salu('s_cselect_b64', 'exec', 1, 0)
            a.vmem('buffer_atomic_cmpswap', 'v[36:37]', 'off', s(DBG, 4), 0, mods=f'offset:{mode}', load=False)
            a.salu('s_mov_b64', 'exec', -1)
        def st3(a):
            a.vmem('buffer_load_dword', 'v38', 'off', s(DBG, 4), 0, mods=f'offset:{mode} sc1')
            a.vmem('buffer_load_dword', 'v39', 'off', s(DBG, 4), 0, mods=f'offset:{D_NONCE} sc1')
            kvaddr(a, 40, 84)
            a.vmem('buffer_load_dword', 'v41', 'v40', 's[4:7]', 's84', mods='offen sc1')
        def st4(a):
            a.valu('v_readfirstlane_b32', s(sNONCE), 'v39')
            a.valu('v_readfirstlane_b32', 's85', 'v38')
            a.salu('s_add_u32', 's86', s(sNONCE), KVR)
            a.valu('v_subrev_u32', 'v41', 's86', 'v41')
            a.valu('v_cmp_lt_u32', 's[86:87]', 64, 'v41')
            a.salu('s_cmp_eq_u32', s(sNONCE), 0, nodst=True)
            a.salu('s_cselect_b64', 's[86:87]', -1, 's[86:87]')
            a.salu('s_cmp_lg_u64', 's[86:87]', 0, nodst=True)
            a.ins(f's_cbranch_scc1 {tag}_nt')
            ch.touch_kv()
            a.lines.append(f'{tag}_nt:')
        def late(a):
            q0, d0 = a.vm_seq, dict(a.done)
            get_nonce(a, 24)
            a.vm_seq, a.done = q0, d0
        ch.prologue(st1, st2, st3, st4, late)
        diag(a, 2)
        a.salu('s_cmp_eq_u32', 's85', 1, nodst=True)
        a.ins(f's_cbranch_scc1 {tag}_run')
        a.salu('s_mov_b32', 's40', (1 << 24) if safe else TMO[0])
        a.label(f'{tag}_startpoll')
        a.vmem('buffer_load_dword', 'v3', 'off', s(DBG, 4), 0, mods=f'offset:{mode} sc1')
        a.wait(vm='all')
        a.valu('v_readfirstlane_b32', 's85', 'v3')
        a.salu('s_cmp_eq_u32', 's85', 1, nodst=True)
        a.ins(f's_cbranch_scc1 {tag}_run')
        if not safe:
            a.salu('s_cmp_eq_u32', 's85', 2, nodst=True)
            a.ins(f's_cbranch_scc1 {tag}_leave')
        a.ins('s_sleep 1')
        a.salu('s_sub_u32', 's40', 's40', 1)
        a.ins(f's_cbranch_scc0 {tag}_startpoll')
        if safe: a.ins('s_endpgm')
        else:
            a.valu('v_mov_b32', 'v4', 2); a.valu('v_mov_b32', 'v5', 0)
            a.salu('s_mov_b64', 'exec', 1)
            a.vmem('buffer_atomic_cmpswap', 'v[4:5]', 'off', s(DBG, 4), 0, mods=f'offset:{D_MODE}', load=False)
            a.salu('s_mov_b64', 'exec', -1)
            a.salu('s_mov_b32', 's40', 1 << 20)
            a.ins(f's_branch {tag}_startpoll')
            a.label(f'{tag}_leave')
            a.valu('v_lshrrev_b32', 'v0', 4, v(C.LH))
            a.salu('s_mov_b32', 's32', s(C.sW))
            a.ins('s_load_dwordx16 s[48:63], s[0:1], 0')
            a.ins('s_waitcnt lgkmcnt(0)')
            a.ins('s_branch L_helper')
        a.label(f'{tag}_run')
        diag(a, 3)
        a.salu('s_cmp_eq_u64', 's[86:87]', 0, nodst=True)
        a.ins(f's_cbranch_scc1 {tag}_kvok')
        kvwait(a, f'{tag}_kv0', KVR, 2, 3)
        ch.touch_kv()
        a.ins('s_waitcnt vmcnt(0)')
        a.label(f'{tag}_kvok')
        ch.loop_init()
        diag(a, 4)
        ldiag(a, 4, 24)
        if leak: a.ins('s_memrealtime s[90:91]'); a.ins('s_waitcnt lgkmcnt(0)'); a.salu('s_mov_b32', 's101', 's90')
        if not safe and DIAG[0]: print(ch.outs, [(j[1], j[3] // 1024) for j in ch.sched])
        ch.step()
        diag(a, 5)
        ldiag(a, 6, 24)
        if leak and not safe:
            a.ins('s_memrealtime s[90:91]'); a.ins('s_waitcnt lgkmcnt(0)')
            if leak == 1: a.salu('s_add_u32', 's92', 's100', 20000)
            elif leak == 2: a.salu('s_add_u32', 's92', 's90', 1000)
            elif leak == 3: a.salu('s_add_u32', 's92', 's101', 20000)
            a.label('L_leak')
            a.ins('s_memrealtime s[90:91]'); a.ins('s_waitcnt lgkmcnt(0)')
            a.salu('s_sub_u32', 's93', 's92', 's90'); a.salu('s_cmp_gt_i32', 's93', 0, nodst=True)
            a.ins('s_cbranch_scc1 L_leak')
        a.ins('s_endpgm')
        ch.load_sub()
    chain_body('cf', False)
    a.label('L_chain_safe')
    a.forget()
    chain_body('cs', True)
    def mode_check(lab):
        a.salu('s_mov_b32', 's40', 4 * TMO[0])
        a.label(f'{lab}_w')
        a.vmem('buffer_load_dword', 'v250', 'off', s(DBG, 4), 0, mods=f'offset:{D_MODE} sc1')
        a.wait(vm='all')
        a.valu('v_readfirstlane_b32', 's41', 'v250')
        a.salu('s_cmp_lg_u32', 's41', 0, nodst=True)
        a.ins(f's_cbranch_scc1 {lab}_known')
        a.salu('s_sub_u32', 's40', 's40', 1)
        a.ins(f's_cbranch_scc1 {lab}_force')
        a.ins('s_sleep 2')
        a.ins(f's_branch {lab}_w')
        a.label(f'{lab}_force')
        a.valu('v_mov_b32', 'v250', 2); a.valu('v_mov_b32', 'v251', 0)
        a.salu('s_mov_b64', 'exec', 1)
        a.vmem('buffer_atomic_cmpswap', 'v[250:251]', 'off', s(DBG, 4), 0, mods=f'offset:{D_MODE}', load=False)
        a.salu('s_mov_b64', 'exec', -1)
        a.ins('s_waitcnt vmcnt(0)')
        a.salu('s_mov_b32', 's40', 4 * TMO[0])
        a.ins(f's_branch {lab}_w')
        a.label(f'{lab}_known')
    a.forget()
    a.label('L_helper')
    DV[0] = 249
    a.forget()
    a.ins('s_load_dwordx16 s[64:79], s[0:1], 64')
    a.salu('s_sub_u32', 's33', 's3', XCC[0] + 1); a.salu('s_and_b32', 's33', 's33', 3 if FX[0] else 7)
    a.label('L_pool')
    a.salu('s_lshl_b32', 's35', 's33', 2); a.salu('s_add_u32', 's35', 's35', D_POOL)
    ticket(a, 34, 's35')
    a.salu('s_mov_b32', 's36', 's33')
    a.salu('s_or_b32', 's33', 's34', 's32')
    a.salu('s_cmp_lg_u32', 's33', 0, nodst=True)
    a.ins('s_cbranch_scc1 L_helper1')
    a.ins('s_memrealtime s[90:91]'); a.ins('s_waitcnt lgkmcnt(0)')
    a.salu('s_lshl_b32', 's90', 's90', 8); a.salu('s_or_b32', 's90', 's90', 1)
    a.valu('v_mov_b32', 'v250', 's90'); a.valu('v_mov_b32', 'v251', 0)
    a.salu('s_mov_b64', 'exec', 1)
    a.vmem('buffer_atomic_cmpswap', 'v[250:251]', 'off', s(DBG, 4), 0, mods=f'offset:{D_NONCE}', load=False)
    a.salu('s_mov_b64', 'exec', -1)
    a.label('L_helper1')
    if hd:
        a.salu('s_mul_i32', 's37', 's36', 171); a.salu('s_lshr_b32', 's37', 's37', 10); a.salu('s_mul_i32', 's37', 's37', 6); a.salu('s_sub_u32', 's37', 's36', 's37')
        a.salu('s_cmp_lt_u32', 's37', hg, nodst=True); a.ins('s_cbranch_scc1 L_nhd')
        for i in range(hd): a.ins('s_sleep 127')
        a.label('L_nhd')
    diag(a, 9)
    a.salu('s_cmp_ge_u32', 's34', 32, nodst=True)
    a.ins('s_cbranch_scc1 L_qkv_next')
    a.salu('s_cmp_ge_u32', 's36', 7, nodst=True)
    a.ins('s_cbranch_scc1 L_qkv_next')
    a.salu('s_max_u32', 's37', 's36', 4); a.salu('s_sub_u32', 's37', 's37', 4); a.salu('s_mul_i32', 's37', 's37', 6)
    a.salu('s_lshl_b32', 's38', 's36', 1); a.salu('s_add_u32', 's38', 's38', 's37')
    a.salu('s_cmp_lt_u32', 's36', 4, nodst=True); a.salu('s_cselect_b32', 's39', 2, 8)
    a.salu('s_mul_i32', 's36', 's36', 30); a.salu('s_sub_u32', 's36', 's36', 's37')
    a.salu('s_cmp_lt_u32', 's34', 's39', nodst=True)
    a.ins('s_cbranch_scc1 L_copy')
    a.salu('s_add_u32', 's36', 's36', 's34'); a.salu('s_sub_u32', 's36', 's36', 's39')
    if warm:
        a.salu('s_cmp_lg_u32', s(sNONCE), 0, nodst=True)
        a.ins('s_cbranch_scc1 L_nowm')
        a.salu('s_mul_i32', 's37', 's36', 24576)
        a.salu('s_mov_b32', 's14', 576 * 8192); a.salu('s_mov_b32', 's15', '0x20000')
        a.salu('s_mov_b32', 'm0', 155648)
        if warm == 1:
            a.valu('v_lshlrev_b32', 'v1', 7, 'v0'); a.valu('v_min_u32', 'v1', 24576 - 128, 'v1')
        else: a.valu('v_lshlrev_b32', 'v1', 4, 'v0')
        for p in [x for i, x in enumerate((58, 56, 54, 52)) if wm >> i & 1]:
            a.salu('s_mov_b64', 's[12:13]', s(p, 2))
            if warm == 1:
                a.raw('    buffer_load_dword v1, s[12:15], s37 offen lds')
            else:
                for i in range(6):
                    a.salu('s_add_u32', 's38', 's37', min(i * 4096, 21504 - 4096))
                    a.raw('    buffer_load_dwordx4 v1, s[12:15], s38 offen lds')
        a.label('L_nowm')
    a.salu('s_mul_i32', 's37', 's36', 171); a.salu('s_lshr_b32', 's37', 's37', 10)
    a.salu('s_mul_i32', 's38', 's37', 6); a.salu('s_sub_u32', 's36', 's36', 's38')
    a.salu('s_lshl_b32', 's36', 's36', 5); a.salu('s_add_u32', 's36', 's36', 's37')
    a.ins('s_branch L_job')
    a.label('L_copy')
    if 1:
        a.salu('s_add_u32', 's36', 's38', 's34')
        a.salu('s_mul_i32', 's36', 's36', 11); a.salu('s_and_b32', 's36', 's36', 31)
        a.salu('s_cmp_ge_u32', 's36', 27 if cp else 0, nodst=True)
        a.ins('s_cbranch_scc1 L_qkv_next')
        a.salu('s_mul_i32', 's33', 's36', 57); a.salu('s_lshr_b32', 's33', 's33', 9)
        a.salu('s_mul_i32', 's37', 's33', 9); a.salu('s_sub_u32', 's37', 's36', 's37')
        a.salu('s_lshl_b32', 's36', 's37', 2); a.salu('s_add_u32', 's36', 's36', 1); a.salu('s_min_u32', 's36', 's36', 31)
        a.salu('s_lshr_b32', 's39', 's52', 8); a.salu('s_sub_u32', 's36', 's36', 's39'); a.salu('s_and_b32', 's36', 's36', 31)
        a.salu('s_lshl_b32', 's36', 's36', 8)
        a.salu('s_mov_b32', 's14', 576 * 8192); a.salu('s_mov_b32', 's15', '0x20000')
        a.valu('v_lshrrev_b32', 'v1', 4, 'v0'); a.valu('v_lshlrev_b32', 'v1', 13, 'v1'); a.valu('v_and_b32', 'v2', 15, 'v0'); a.valu('v_lshl_add_u32', 'v1', 'v2', 4, 'v1')
        a.valu('v_lshlrev_b32', 'v2', 4, 'v0')
        a.salu('s_lshl_b32', 's40', 's33', 1); a.salu('s_mul_i32', 's39', 's40', 192 * 256); a.salu('s_lshl_b32', 's41', 's37', 19); a.salu('s_add_u32', 's39', 's39', 's41')
        a.salu('s_add_u32', 's39', 's39', C.WS_CPY)
        for h_ in range(2):
            a.salu('s_add_u32', 's41', 's40', h_)
            a.salu('s_cmp_lt_u32', 's41', 3, nodst=True)
            a.salu('s_cselect_b64', 's[12:13]', 's[52:53]', 's[54:55]')
            a.salu('s_cselect_b32', 's42', 0, 3); a.salu('s_sub_u32', 's41', 's41', 's42')
            a.salu('s_mul_i32', 's38', 's41', 192 * 8192); a.salu('s_add_u32', 's38', 's38', 's36')
            for i in range(12):
                a.vmem('buffer_load_dwordx4', v(8 + 48 * h_ + 4 * i, 4), 'v1', 's[12:15]', 's38', mods='offen')
                a.salu('s_add_u32', 's38', 's38', 16 * 8192)
        a.vmem('buffer_load_dword', 'v3', 'off', s(DBG, 4), 0, mods=f'offset:{D_NONCE} sc1')
        a.wait(vm='all')
        for i in range(24):
            a.vmem('buffer_store_dwordx4', v(8 + 4 * i, 4), 'v2', 's[4:7]', 's39', mods='offen sc1', load=False, data=v(8 + 4 * i, 4))
            a.salu('s_add_u32', 's39', 's39', 4096)
        a.valu('v_readfirstlane_b32', s(sNONCE), 'v3')
        get_nonce(a, 3)
        a.salu('s_lshl_b32', 's37', 's37', 7); a.salu('s_lshl_b32', 's36', 's33', 2); a.salu('s_add_u32', 's36', 's36', 's32')
        a.salu('s_lshl_b32', 's36', 's36', 2); a.salu('s_add_u32', 's37', 's37', 's36'); a.salu('s_add_u32', 's37', 's37', C.SY_CPY)
        a.valu('v_mov_b32', 'v3', s(sNONCE))
        a.ins('s_waitcnt vmcnt(0)')
        a.salu('s_mov_b64', 'exec', 1)
        a.vmem('buffer_store_dword', 'v3', 'off', 's[4:7]', 's37', mods='sc1', load=False)
        a.salu('s_mov_b64', 'exec', -1)
        diag(a, 44)
    a.label('L_qkv_next')
    if qp:
        a.salu('s_sub_u32', 's33', 's3', XCC[0] + 1); a.salu('s_and_b32', 's33', 's33', 3 if FX[0] else 7)
        a.salu('s_cmp_eq_u32', 's33', 7, nodst=True)
        a.ins('s_cbranch_scc1 L_qscan')
        a.label('L_qtake')
        a.salu('s_lshl_b32', 's35', 's33', 2); a.salu('s_add_u32', 's35', 's35', D_QP)
        ticket(a, 34, 's35')
        a.salu('s_mul_i32', 's36', 's33', 19); a.salu('s_add_u32', 's36', 's36', 's34')
        a.salu('s_cmp_ge_u32', 's34', 19, nodst=True); a.salu('s_cselect_b32', 's36', 128, 's36')
        a.salu('s_cmp_lt_u32', 's36', 128, nodst=True)
        a.ins('s_cbranch_scc1 L_qjob')
        a.label('L_qscan')
        scan(a, D_QP, 2)
        a.salu('s_cmp_lt_u32', 's33', 7, nodst=True)
        a.ins('s_cbranch_scc1 L_qtake')
        a.ins('s_branch L_ssm_next')
        a.label('L_qjob')
        a.salu('s_and_b32', 's37', 's36', 7); a.salu('s_lshl_b32', 's37', 's37', 4); a.salu('s_lshr_b32', 's36', 's36', 3)
        a.salu('s_add_u32', 's36', 's36', 's37'); a.salu('s_add_u32', 's36', 's36', 192)
    else:
        ticket(a, 36, D_HELP)
        a.salu('s_add_u32', 's36', 's36', 192)
        a.salu('s_cmp_ge_u32', 's36', 320, nodst=True)
        a.ins('s_cbranch_scc1 L_ssm_next')
    a.label('L_job')
    a.salu('s_and_b32', s(Q.sHh), 's36', 15); a.salu('s_lshl_b32', s(Q.sHh), s(Q.sHh), 1)
    a.salu('s_bfe_u32', s(Q.sM), 's36', '0x10004')
    a.salu('s_lshr_b32', s(Q.sSEG), 's36', 5)
    a.salu('s_mul_i32', 's33', s(Q.sM), 6); a.salu('s_add_u32', 's33', 's33', s(Q.sSEG))
    a.salu('s_add_u32', s(Q.sM), s(Q.sM), 1)
    a.salu('s_lshr_b32', 's37', 's36', 4); a.salu('s_sub_u32', 's38', 's37', 12)
    a.salu('s_cmp_ge_u32', 's36', 192, nodst=True)
    a.salu('s_cselect_b32', s(Q.sM), 0, s(Q.sM))
    a.salu('s_cselect_b32', s(Q.sSEG), 's38', s(Q.sSEG))
    a.salu('s_cselect_b32', 's33', 's37', 's33')
    a.salu('s_cselect_b32', s(Q.sSTR), 8, 6)
    def nonce_early(a):
        a.valu('v_mov_b32', 'v28', s(sNONCE))
        a.salu('s_cmp_lg_u32', s(sNONCE), 0, nodst=True)
        a.ins('s_cbranch_scc1 L_ne')
        a.ins(f'buffer_load_dword v28, off, s[{DBG}:{DBG+3}], 0 offset:{D_NONCE} sc1')
        a.lines.append('L_ne:')
    Q.qkv_role(a, 'qk', 48, 52, sNONCE, 33, at=(nat, nonce_early), late=lambda a: (a.valu('v_readfirstlane_b32', s(sNONCE), 'v28'), get_nonce(a, 25), dsel(a, 8)), qw=qw, qx=qx, cop=cop)
    dsel(a, 6)
    a.salu('s_cmp_ge_u32', 's36', 64, nodst=True)
    a.ins('s_cbranch_scc1 L_qkv_next')
    a.salu('s_lshr_b32', 's33', 's36', 5)
    if xs & 8: a.ins('s_endpgm')
    Q.memkv_role(a, 'mk', sNONCE, 33, slp=msl)
    diag(a, 1)
    a.ins('s_endpgm')
    a.label('L_ssm_next')
    if xs & 1: a.ins('s_branch L_phase2')
    ticket(a, S.sD0, D_SSM)
    a.salu('s_cmp_ge_u32', s(S.sD0), 144, nodst=True)
    a.ins('s_cbranch_scc1 L_phase2')
    a.salu('s_lshl_b32', s(S.sD0), s(S.sD0), 2)
    a.forget()
    S.ssm_job(a, 'ss', 62, 76)
    diag(a, 7)
    a.ins('s_branch L_ssm_next')
    sWv, sCB = 32, 33
    a.label('L_phase2')
    a.forget()
    scan(a, D_POOL, False)
    a.salu('s_cmp_lt_u32', 's33', 7, nodst=True)
    a.ins('s_cbranch_scc1 L_pool')
    if wt > 1:
        a.salu('s_cmp_lg_u32', 's32', 0, nodst=True); a.ins('s_cbranch_scc1 L_nwb'); a.ins('buffer_wbl2 sc1'); a.ins('s_waitcnt vmcnt(0)'); a.label('L_nwb')
    get_nonce(a, 250)
    mode_check('mc2')
    a.salu('s_cmp_eq_u32', 's41', 1, nodst=True)
    a.ins('s_cbranch_scc1 L_phase2b')
    ticket(a, C.sH, D_CH2)
    a.salu('s_cmp_lt_u32', s(C.sH), 32, nodst=True)
    a.ins('s_cbranch_scc1 L_chain_safe')
    a.label('L_phase2b')
    if xs & 2: a.ins('s_branch L_done')
    a.salu('s_mov_b32', 's8', 's76'); a.salu('s_mov_b32', 's9', 's77')
    a.salu('s_mov_b32', 's10', 2048 * 2304); a.salu('s_mov_b32', 's11', '0x20000')
    a.salu('s_sub_u32', 's33', 's3', XCC[0] + 1); a.salu('s_and_b32', 's33', 's33', 3 if FX[0] else 7)
    a.salu('s_cmp_eq_u32', 's33', 7, nodst=True)
    a.ins('s_cbranch_scc1 L_p2scan')
    a.label('L_p2take')
    a.salu('s_lshl_b32', 's35', 's33', 2); a.salu('s_add_u32', 's35', 's35', D_P2)
    ticket(a, 34, 's35')
    a.salu('s_cmp_lt_u32', 's33', 4, nodst=True); a.salu('s_cselect_b32', 's36', 4, 6)
    a.salu('s_cmp_lt_u32', 's34', 's36', nodst=True)
    a.ins('s_cbranch_scc1 L_att0')
    a.salu('s_sub_u32', 's34', 's34', 's36')
    a.salu('s_cmp_lt_u32', 's34', 18, nodst=True)
    a.ins('s_cbranch_scc1 L_op_start')
    a.label('L_p2scan')
    scan(a, D_P2, True)
    a.salu('s_cmp_lt_u32', 's33', 7, nodst=True)
    a.ins('s_cbranch_scc1 L_p2take')
    a.ins('s_branch L_done')
    a.label('L_att0')
    a.salu('s_mul_i32', 's36', 's34', 7); a.salu('s_mul_i32', 's37', 's34', 3); a.salu('s_add_u32', 's37', 's37', 12)
    a.salu('s_cmp_lt_u32', 's34', 4, nodst=True); a.salu('s_cselect_b32', 's34', 's36', 's37')
    a.salu('s_add_u32', 's34', 's34', 's33')
    a.salu('s_cmp_ge_u32', 's34', 32, nodst=True)
    a.ins('s_cbranch_scc1 L_done')
    a.label('L_att_next')
    a.forget()
    a.salu('s_lshr_b32', s(A.sSEG), 's34', 3)
    a.salu('s_and_b32', s(A.sHh), 's34', 7)
    a.salu('s_lshl_b32', s(A.sHh), s(A.sHh), 2)
    a.salu('s_add_u32', s(A.sHh), s(A.sHh), s(sWv))
    a.salu('s_lshr_b32', 's36', s(A.sHh), 1); a.salu('s_lshl_b32', 's36', 's36', 8); a.salu('s_add_u32', 's36', 's36', Q.SY_PRG)
    a.salu('s_mul_i32', 's37', s(A.sSEG), 43); a.salu('s_lshr_b32', 's37', 's37', 8)
    a.salu('s_mul_i32', 's41', 's37', 6); a.salu('s_sub_u32', 's41', s(A.sSEG), 's41')
    a.valu('v_and_b32', 'v1', 63, 'v0')
    a.valu('v_mul_u32_u24', 'v2', 6, 'v1'); a.valu('v_add_u32', 'v2', 's41', 'v2')
    a.valu('v_mov_b32', 'v4', 's37')
    a.salu('s_and_b32', 's41', s(A.sSEG), 7); a.salu('s_add_u32', 's41', 's41', 12)
    a.salu('s_lshr_b32', 's37', s(A.sSEG), 3)
    a.valu('v_mov_b32', 'v5', 's41'); a.valu('v_mov_b32', 'v6', 's37')
    a.valu('v_cmp_lt_u32', 'vcc', 1, 'v1')
    a.valu('v_cndmask_b32', 'v2', 'v2', 'v5', 'vcc'); a.valu('v_cndmask_b32', 'v4', 'v4', 'v6', 'vcc')
    a.valu('v_lshlrev_b32', 'v2', 2, 'v2')
    a.valu('v_add3_u32', 'v4', 'v4', s(sNONCE), 1)
    prog_wait(a, 'L_aw1', 2, 3, 'v4', 's36', 4)
    def mid(a):
        a.fence()
        trace(a, 0, 34, 0)
        coarse_wait(a, A.sSEG, 199, 36)
        trace(a, 0, 34, 1)
        a.salu('s_and_b32', 's37', s(A.sSEG), 1); a.salu('s_lshl_b32', 's37', 's37', 2); a.salu('s_add_u32', 's37', 's37', 's36'); a.salu('s_add_u32', 's37', 's37', 128)
        a.salu('s_add_u32', 's41', s(A.sSEG), s(sNONCE)); a.salu('s_add_u32', 's41', 's41', 1)
        a.salu('s_lshl_b32', 's42', s(A.sHh), 7); a.salu('s_add_u32', 's42', 's42', C.SY_CHF)
        a.salu('s_cmp_ge_u32', s(A.sSEG), 62, nodst=True)
        a.salu('s_cselect_b32', 's37', 's42', 's37')
        a.salu('s_cselect_b32', 's42', 12, 8)
        a.valu('v_lshlrev_b32', 'v198', 2, 'v0'); a.valu('v_and_b32', 'v198', 's42', 'v198')
        prog_wait(a, 'L_aw2', 198, 199, 's41', 's37', ats)
        trace(a, 0, 34, 2)
    A.attn_job(a, 'at', ld_fl='sc1', st_fl='sc1', mid=mid)
    a.salu('s_lshr_b32', 's40', 's34', 1)
    a.salu('s_lshl_b32', 's40', 's40', 7)
    a.salu('s_and_b32', 's41', s(A.sHh), 7)
    a.salu('s_lshl_b32', 's41', 's41', 2)
    a.salu('s_add_u32', 's40', 's40', 's41')
    a.salu('s_add_u32', 's40', 's40', SY_ATT)
    a.valu('v_mov_b32', 'v250', s(sNONCE))
    a.salu('s_cmp_ge_u32', s(A.sSEG), 62, nodst=True)
    a.ins('s_cbranch_scc1 L_afl')
    a.ins('s_waitcnt vmcnt(0)')
    a.label('L_afl')
    a.salu('s_mov_b64', 'exec', 1)
    a.vmem('buffer_store_dword', 'v250', 'off', 's[4:7]', 's40', mods='sc1', load=False)
    a.salu('s_mov_b64', 'exec', -1)
    trace(a, 0, 34, 3)
    a.salu('s_add_u32', 's34', 's34', 32)
    a.salu('s_cmp_lt_u32', 's34', 512, nodst=True)
    a.fence()
    a.ins('s_cbranch_scc1 L_att_next')
    a.ins('s_branch L_done')
    a.label('L_op_start')
    if xs & 4: a.ins('s_branch L_done')
    a.forget()
    a.salu('s_mov_b32', s(A.sSEG), 's33')
    a.salu('s_mov_b32', s(sCB), 's34')
    A.oproj_load(a, 58, sCB, sWv)
    a.label('L_op_seg')
    a.salu('s_lshr_b32', 's43', s(A.sSEG), 1)
    a.salu('s_add_u32', 's43', 's43', 1)
    a.salu('s_min_u32', 's43', 's43', 63)
    a.salu('s_and_b32', 's36', s(sCB), 15); a.salu('s_lshl_b32', 's36', 's36', 8); a.salu('s_add_u32', 's36', 's36', Q.SY_PRG)
    a.salu('s_lshl_b32', 's94', s(sCB), 7); a.salu('s_add_u32', 's94', 's94', s(A.sSEG))
    trace(a, 65536, 94, 0)
    a.salu('s_cmp_ge_u32', s(A.sSEG), 120, nodst=True)
    a.ins('s_cbranch_scc1 L_nocw')
    coarse_wait(a, 43, 3, 36)
    a.label('L_nocw')
    trace(a, 65536, 94, 1)
    a.salu('s_lshr_b32', 's89', s(A.sSEG), 1)
    a.salu('s_lshl_b32', 's89', 's89', 2)
    a.salu('s_add_u32', 's89', 's89', s(sWv))
    a.salu('s_lshl_b32', 's89', 's89', 7)
    a.salu('s_add_u32', 's89', 's89', SY_ATT)
    flags_wait(a, 's89', 0, 8, 2, 3, sleep=ops)
    trace(a, 65536, 94, 2)
    A.oproj_seg(a, 'os', 8, sCB, sWv, A.sSEG, ofl='sc1' if wt else '')
    trace(a, 65536, 94, 3)
    a.salu('s_add_u32', s(A.sSEG), s(A.sSEG), 7)
    a.salu('s_cmp_ge_u32', s(A.sSEG), 128, nodst=True)
    a.ins('s_cbranch_scc1 L_done')
    a.ins('s_barrier')
    a.ins('s_branch L_op_seg')
    a.label('L_done')
    diag(a, 10)
    ldiag(a, 7, 250)
    a.label('L_exit')
    a.ins('s_endpgm')
    a.raw(kd(n, 512, 256))

def build(**kw):
    hdr = open(f'/code/{NAME}.s.ref').read().split('; Override launch geometry')[0]
    a = Asm()
    a.raw(hdr.rstrip())
    a.raw('; @launch grid=(256,1,1) block=(256,1,1) lds=163840')
    a.raw('.amdgcn_target "amdgcn-amd-amdhsa--gfx950"')
    k_main(a, **kw)
    return a.text()

if __name__ == '__main__':
    kw = dict(d0=72, dB=15, ks=2, pA=14, d1=70, dX=40, dZ=168, pbr=0)
    open('one.s', 'w').write(build(**kw))
    for spec in sys.argv[1:]:
        k2 = dict((x.split('=')[0], int(x.split('=')[1])) for x in spec.split(','))
        open('one_' + spec.replace('=', '').replace(',', '_') + '.s', 'w').write(build(**{**kw, **k2}))
    XCC[0] = 9; TMO[0] = 1 << 8; FX[0] = 1
    open('one_safe.s', 'w').write(build(**kw))
    XCC[0] = 0; TMO[0] = 1 << 8; NCH[0] = 31; FX[0] = 0
    open('one_safe2.s', 'w').write(build(**kw))
    TMO[0] = 1 << 17; NCH[0] = 32
    LD[0] = 1
    open('one_l.s', 'w').write(build(**kw))
    for spec in sys.argv[1:]:
        k2 = dict((x.split('=')[0], int(x.split('=')[1])) for x in spec.split(','))
        open('one_' + spec.replace('=', '').replace(',', '_') + '_l.s', 'w').write(build(**{**kw, **k2}))
    LD[0] = 0
    DIAG[0] = 1
    for spec in sys.argv[1:]:
        k2 = dict((x.split('=')[0], int(x.split('=')[1])) for x in spec.split(','))
        open('one_' + spec.replace('=', '').replace(',', '_') + '_d.s', 'w').write(build(**{**kw, **k2}))
    open('one_d.s', 'w').write(build(**kw))
    print('ok')
```

```python
from asmfw import Asm, R

MB = 1 << 20
WS_KV = 0
WS_Q = 32 * MB
WS_O = 48 * MB
WS_MEM = 64 * MB
WS_PART = 64 * MB + 65536
XOFF = 1 * MB
WS_KM = 68 * MB
WS_VM = 77 * MB
WS_M0 = 88 * MB
WS_MEMH = 86 * MB
WS_CPY = 92 * MB
WS_SYNC = 120 * MB
SY_CHF = WS_SYNC + 16384
SY_CPY = WS_SYNC + 24576
WS_SIZE = 256 * MB

K = 1024
L_MISC = 96 * K
L_MBUF = L_MISC
L_TB = L_MISC + 9216
L_DUMP = L_MISC + 9728
L_NON = L_MISC + 9984
L_SEL = L_MISC + 10240
L_MM = L_MISC + 11264
L_SC = L_MISC + 12288
L_OB = L_MBUF
B_LW0, B_LW1 = 56 * K, 96 * K

LDS_ADDR = {}
for _t in range(4):
    LDS_ADDR[('k', 0, _t)] = _t * 16 * K
    LDS_ADDR[('k', 1, _t)] = _t * 16 * K + 8 * K
LDS_ADDR[('q', 0, 0)] = 64 * K; LDS_ADDR[('q', 1, 0)] = 72 * K
LDS_ADDR[('k', 0, 8)] = 80 * K; LDS_ADDR[('k', 1, 8)] = 88 * K
LDS_ADDR[('o', 2, 2)] = 112 * K; LDS_ADDR[('o', 3, 2)] = 120 * K
LDS_ADDR[('o', 2, 3)] = 128 * K; LDS_ADDR[('o', 3, 3)] = 136 * K
LDS_ADDR[('o', 4, 0)] = 144 * K; LDS_ADDR[('o', 4, 1)] = 152 * K

AQ0, AK0, AQ1, AK1, AV0, AV1 = 0, 4, 8, 12, 16, 20
Rq = [24 + 4 * i for i in range(9)]
IDX, LH, LW0, LW1, LW2, L16, PST, PSX, OR0, MST, MMW, LW3 = range(60, 72)
ZZ, OA1, OA2, OA3, OW, MMR, PFA = 72, 74, 75, 76, 77, 78, 79
VW0 = 80

def all_frags():
    fr = [(m, t, sl) for m in 'qkv' for sl in range(9) for t in range(2)]
    fr += [('o', u, k) for u in range(4) for k in range(4)] + [('o', 4, 0), ('o', 4, 1)]
    return fr
REGF = {}
_res = [f for f in all_frags() if f not in LDS_ADDR]
assert len(_res) == 54
for _i, _f in enumerate(_res): REGF[_f] = ('a', _i * 8) if _i < 32 else ('v', VW0 + (_i - 32) * 8)
def freg(f): return R(REGF[f][1], 8, REGF[f][0])

SRD, SRDW = 4, 8
sH, sW = 12, 13
sMEM, sMEM4, sMEM8, sMST, sMRS = 14, 15, 16, 17, 18
sPL, sPS0, sPS1, sPSX = 19, 20, 21, 22
sKX, sPF, sKM, sVM, sFL = 23, 24, 25, 26, 27
sSTEP, sSPIN, sTAG, sMSU = 28, 29, 30, 31
sSTM, sHI8, sW0M, sLO8 = 32, 34, 36, 38
sT0, sT1, sT2, sT3 = 40, 41, 42, 43
sC1, sNC1, sK128 = 44, 46, 47
sPTR = 48
sONE, sHALF = 60, 62
sROLE, sFV = 64, 65
sAL = 47
sACC = 68
sNONCE = 95
sSUM = 96

SMF = 'v_smfmac_f32_16x16x64_bf16'
MF32 = 'v_mfma_f32_16x16x32_bf16'
MF16 = 'v_mfma_f32_16x16x16_bf16'
def s(i, n=1): return R(i, n, 's')
def v(i, n=1): return R(i, n, 'v')

def lds_base(addr):
    if addr + 4096 < 64 * K: return LH, addr
    if addr < L_MISC + 16 * K: return LW0, addr - B_LW0
    return LW1, addr - B_LW1

class Chain:
    def __init__(self, a, tag, fl='', lfl='nt', pfl='sc1', xoff=0, nsteps=64, timing=0, dA=0, dB=24, d0=0, d1=24, dX=0, nopub=0, nopf=0,
                 hook=None, nomax=0, gap=0, dual=0, tstep=40, spinmax=1 << 16, prof=None, pstride=8, pA=20, pF=30, rt=0, dW=0, ks=2, early=1, k1=1, pskip=0, dZ=60, dE=0, ins0=0, p1=1, epf=1, npr=10, pg=6, dP=10, k0=1, pG=30, eo=1, w0hook=None, pbr=1, ppos=1, ptrace=None, lcap=16, lrev=5, gs=2, lord=1, lasy=4, lt=1, lpri=5, gforce=0, cpy=None, swn=4, swe=5, pf128=0, pfe=0, xnop=0, c1n=2, bf=0, hb=0, ha=1, hx=0, lsd=3, lte=3, tx=0, lbo=0):
        self.lbo = lbo
        self.tx = tx
        self.lsd = lsd; self.lte = lte
        self.hx = hx
        self.hb = hb; self.ha = ha
        self.bf = bf
        self.c1n = c1n
        self.xnop = xnop
        self.pf128 = pf128; self.pfe = pfe
        self.swe = swe
        self.swn = swn
        self.cpy = cpy
        self.gforce = gforce
        self.lpri = lpri; self.tick = lambda: None
        self.lasy = lasy; self.lt = lt
        self.lord = lord
        self.gs = gs
        self.lcap = lcap; self.lrev = lrev
        self.ptrace = ptrace
        self.pbr = pbr; self.ppos = ppos
        self.w0hook = w0hook
        self.eo = eo
        self.k0 = k0; self.pG = pG
        self.npr = npr; self.pg = pg; self.dP = dP
        self.p1 = p1; self.epf = epf
        self.ins0 = ins0
        self.dZ = dZ; self.dE = dE
        self.pskip = pskip
        self.k1 = k1
        self.ks = ks; self.early = early
        self.dW = dW
        self.clk = 's_memrealtime' if rt else 's_memtime'
        self.pA = pA; self.pF = pF
        self.prof = prof; self.pstride = pstride
        self.a = a; self.tag = tag; self.fl = fl; self.lfl = lfl; self.pfl = pfl
        self.wsmem = WS_MEM + xoff; self.wspart = WS_PART + xoff; self.nsteps = nsteps; self.timing = timing
        self.dA = dA; self.dB = dB; self.d0 = d0; self.d1 = d1; self.dX = dX; self.nopub = nopub; self.nopf = nopf
        self.hook = hook; self.nomax = nomax; self.gap = gap; self.dual = dual; self.tstep = tstep; self.spinmax = spinmax

    def stamp(self, i):
        if self.prof is not None:
            if i == self.prof and not getattr(self.a, '_prof', None): self.a.start_prof(sACC, self.pstride, 12, self.pskip)
        elif self.timing == 1 or (self.timing == 2 and i == 0): self.a.ins(f'{self.clk} s[{sACC+2*i}:{sACC+2*i+1}]')

    def addresses(self):
        a = self.a
        T0, T1, C, G = 0 + 24, 25, 26, 27
        a.valu('v_lshrrev_b32', v(T0), 6, 'v0')
        a.valu('v_lshlrev_b32', v(LH), 4, 'v0')
        a.valu('v_add_u32', v(LW0), B_LW0, v(LH))
        a.valu('v_xor_b32', v(LW1), 1024, v(LH)); a.valu('v_add_u32', v(LW1), B_LW1, v(LW1))
        a.valu('v_xor_b32', v(LW2), 2048, v(LH)); a.valu('v_add_u32', v(LW2), B_LW1, v(LW2))
        a.valu('v_and_b32', v(L16), 1023, v(LH)); a.valu('v_add_u32', v(L16), B_LW1, v(L16))
        a.valu('v_and_b32', v(C), 15, 'v0')
        a.valu('v_bfe_u32', v(G), 'v0', 4, 2)
        a.valu('v_mov_b32', v(IDX), '0x4444'); a.valu('v_mov_b32', v(T1), '0xeeee')
        a.valu('v_cmp_lt_u32', 'vcc', 7, v(C))
        a.valu('v_cndmask_b32', v(IDX), v(IDX), v(T1), 'vcc')
        self.tick()
        a.valu('v_and_b32', v(PSX), 12, v(C)); a.valu('v_lshlrev_b32', v(PSX), 3, v(PSX))
        a.valu('v_and_b32', v(T1), 1, v(C)); a.valu('v_lshl_add_u32', v(PSX), v(T1), 4, v(PSX))
        a.valu('v_bfe_u32', v(T1), v(C), 1, 1); a.valu('v_lshl_add_u32', v(PSX), v(T1), 3, v(PSX))
        a.valu('v_lshl_add_u32', v(PST), v(G), 14, v(PSX)); a.valu('v_lshl_add_u32', v(PST), v(T0), 17, v(PST))
        self.tick()
        a.valu('v_and_b32', v(PSX), 63, v(PSX))
        a.valu('v_lshrrev_b32', v(T1), 1, v(T0)); a.valu('v_lshl_add_u32', v(PSX), v(T1), 18, v(PSX))
        a.valu('v_lshl_add_u32', v(PSX), v(G), 16, v(PSX))
        a.valu('v_lshrrev_b32', v(T1), 3, v(C)); a.valu('v_lshl_add_u32', v(PSX), v(T1), 15, v(PSX))
        a.valu('v_and_b32', v(T1), 1, v(T0)); a.valu('v_lshl_add_u32', v(PSX), v(T1), 6, v(PSX))
        self.tick()
        a.valu('v_and_b32', v(T1), 31, 'v0')
        a.valu('v_lshlrev_b32', v(MMW), 4, v(T1))
        a.valu('v_lshlrev_b32', v(28), 3, v(T1)); a.valu('v_add_u32', v(28), L_DUMP, v(28))
        a.valu('v_lshrrev_b32', v(T1), 1, v(T0)); a.valu('v_lshl_add_u32', v(MMW), v(T1), 9, v(MMW))
        a.valu('v_and_b32', v(T1), 1, v(T0)); a.valu('v_lshl_add_u32', v(MMW), v(T1), 3, v(MMW))
        a.valu('v_add_u32', v(MMW), L_MM, v(MMW))
        a.valu('v_cmp_gt_u32', 'vcc', 2, v(G))
        a.valu('v_cndmask_b32', v(MMW), v(MMW), v(28), 'vcc')
        self.tick()
        a.valu('v_xor_b32', v(LW3), 2048, v(LW1))
        a.valu('v_lshrrev_b32', v(OR0), 4, 'v0'); a.valu('v_lshlrev_b32', v(OR0), 7, v(OR0))
        a.valu('v_and_b32', v(T1), 7, v(C)); a.valu('v_lshl_add_u32', v(OR0), v(T1), 4, v(OR0)); a.valu('v_add_u32', v(OR0), L_OB, v(OR0))
        for i, r in enumerate((OA1, OA2, OA3)): a.valu('v_xor_b32', v(r), 512 * (i + 1), v(OR0))
        a.valu('v_lshrrev_b32', v(T1), 3, v(C)); a.valu('v_lshl_add_u32', v(OW), v(T1), 3, v(OR0))
        a.valu('v_or_b32', v(MMR), 512, v(L16)); a.valu('v_lshlrev_b32', v(PFA), 2, v(LH))
        if self.pf128: a.valu('v_and_b32', v(PFA), '0xffffff80', v(PFA))
        a.valu('v_mov_b64', v(ZZ, 2), 0)
        a.valu('v_and_b32', v(T1), 1, v(G)); a.valu('v_lshlrev_b32', v(MST), 7, v(T1))
        a.valu('v_lshrrev_b32', v(T1), 1, v(G)); a.valu('v_lshl_add_u32', v(MST), v(T1), 3, v(MST))
        a.valu('v_and_b32', v(T1), 3, v(C)); a.valu('v_lshl_add_u32', v(MST), v(T1), 4, v(MST))
        a.valu('v_bfe_u32', v(T1), v(C), 2, 1); a.valu('v_lshl_add_u32', v(MST), v(T1), 2, v(MST))
        self.tick()
        a.salu('s_mov_b32', s(sSTM), '0x00ff00ff'); a.salu('s_mov_b32', s(sSTM + 1), '0x00ff00ff')
        a.salu('s_not_b64', s(sHI8, 2), s(sSTM, 2))
        a.salu('s_lshr_b32', s(sMSU), s(sH), 1); a.salu('s_lshl_b32', s(sMSU), s(sMSU), 8)
        a.salu('s_and_b32', s(sT0), s(sH), 1); a.salu('s_lshl_b32', s(sT0), s(sT0), 6); a.salu('s_add_u32', s(sMSU), s(sMSU), s(sT0))
        a.salu('s_and_b32', s(sT0), s(sW), 1); a.salu('s_lshl_b32', s(sT0), s(sT0), 12)
        a.salu('s_add_u32', s(sMSU), s(sMSU), s(sT0))
        a.salu('s_lshl_b32', s(sPL), s(sH), 14); a.salu('s_add_u32', s(sPL), s(sPL), self.wspart - B_LW1)
        a.salu('s_add_u32', s(sT1), s(sPL), 8192)
        a.salu('s_add_u32', s(sPL), s(sPL), s(sT0))
        a.salu('s_and_b32', s(sT0), s(sH), 1); a.salu('s_lshl_b32', s(sT0), s(sT0), 2); a.salu('s_or_b32', s(sT0), s(sT0), s(sW))
        a.salu('s_cmp_eq_u32', s(sT0), 5, nodst=True)
        a.salu('s_cselect_b32', s(sROLE), 0, s(sW))
        a.salu('s_cmp_lg_u32', s(sW), 1, nodst=True)
        a.ins(f's_cbranch_scc1 {self.tag}_notx')
        a.salu('s_mov_b32', s(sSTM), '0xff'); a.salu('s_mov_b32', s(sSTM + 1), '0xff')
        a.salu('s_mov_b32', s(sPL), s(sT1))
        a.salu('s_lshr_b32', s(sMSU), s(sH), 3); a.salu('s_lshl_b32', s(sMSU), s(sMSU), 8)
        a.salu('s_and_b32', s(sT0), s(sH), 2); a.salu('s_lshl_b32', s(sT0), s(sT0), 6); a.salu('s_add_u32', s(sMSU), s(sMSU), s(sT0))
        a.salu('s_and_b32', s(sT0), s(sH), 4); a.salu('s_lshl_b32', s(sT0), s(sT0), 4); a.salu('s_add_u32', s(sMSU), s(sMSU), s(sT0))
        a.salu('s_add_u32', s(sMSU), s(sMSU), 8192)
        a.label(f'{self.tag}_notx')
        a.salu('s_cmp_lg_u32', s(sW), 0, nodst=True)
        a.ins(f's_cbranch_scc1 {self.tag}_notp')
        a.salu('s_min_u32', s(sT0), s(sH), 23); a.salu('s_mul_i32', s(sT0), s(sT0), 384); a.salu('s_add_u32', s(sT0), s(sT0), L_MBUF)
        a.valu('v_add_u32', v(MST), s(sT0), v(LH))
        a.valu('v_mov_b32', v(T1), L_NON)
        a.valu('v_cmp_lt_u32', 'vcc', 23, 'v0')
        a.valu('v_cndmask_b32', v(MST), v(MST), v(T1), 'vcc')
        a.label(f'{self.tag}_notp')
        a.fence()

    def init_exchange(self):
        a = self.a; srd = s(SRD, 4)
        self.tick()
        for i in range(4): a.valu('v_mov_b32', v(28 + i), 1)
        a.salu('s_lshl_b32', s(sT0), s(sH), 14); a.salu('s_add_u32', s(sT0), s(sT0), self.wspart)
        for rd in range(3):
            a.salu('s_add_u32', s(sT1), s(sT0), rd * 4096)
            a.vmem('buffer_store_dwordx4', v(28, 4), v(LH), srd, s(sT1), mods='offen ' + self.fl, load=False, data=v(28, 4))
        a.salu('s_cmp_eq_u32', s(sROLE), 0, nodst=True)
        a.salu('s_cselect_b64', 'exec', 0, s(sSTM, 2))
        a.valu('v_mov_b32', v(27), -1)
        for i in range(4):
            a.salu('s_add_u32', s(sT1), s(sMSU), self.wsmem + i * 16384)
            a.vmem('buffer_store_dword', v(27), v(MST), srd, s(sT1), mods='offen ' + self.fl, load=False)
        a.salu('s_mov_b64', 'exec', -1)
        self.tick()
        a.salu('s_mov_b64', s(68, 2), s(sPTR, 2))
        a.salu('s_mov_b32', s(70), 9216); a.salu('s_mov_b32', s(71), '0x20000')
        a.valu('v_and_b32', v(25), 7, 'v0'); a.valu('v_mul_u32_u24', v(25), 1152, v(25))
        a.valu('v_lshrrev_b32', v(26), 3, 'v0'); a.valu('v_lshl_add_u32', v(25), v(26), 4, v(25))
        a.vmem('buffer_load_dwordx4', v(36, 4), v(25), s(68, 4), 0, mods='offen')
        a.vmem('buffer_load_dwordx4', v(40, 4), v(25), s(68, 4), 0, mods='offen offset:512')
        a.valu('v_bfe_u32', v(25), 'v0', 2, 3); a.valu('v_mul_u32_u24', v(25), 1152, v(25))
        a.valu('v_lshrrev_b32', v(26), 5, 'v0'); a.valu('v_lshl_add_u32', v(25), v(26), 4, v(25))
        a.valu('v_and_b32', v(26), 3, 'v0'); a.valu('v_lshl_add_u32', v(25), v(26), 2, v(25))
        a.vmem('buffer_load_dword', v(44), v(25), s(68, 4), 0, mods='offen offset:1024')

    def init_late(self):
        a = self.a; srd = s(SRD, 4)
        for r in range(36, 45): a.valu('v_min_u32', v(r), -2, v(r))
        a.salu('s_lshl_b32', s(sMEM), s(sH), 16); a.salu('s_add_u32', s(sMEM), s(sMEM), WS_M0)
        a.salu('s_add_u32', s(sT1), s(sMEM), 4096); a.salu('s_add_u32', s(sT2), s(sMEM), 8192)
        a.valu('v_lshrrev_b32', v(45), 2, v(LH))
        a.vmem('buffer_store_dwordx4', v(36, 4), v(LH), srd, s(sMEM), mods='offen ' + self.fl, load=False, data=v(36, 4))
        a.vmem('buffer_store_dwordx4', v(40, 4), v(LH), srd, s(sT1), mods='offen ' + self.fl, load=False, data=v(40, 4))
        a.vmem('buffer_store_dword', v(44), v(45), srd, s(sT2), mods='offen ' + self.fl, load=False)

    def constants(self):
        a = self.a
        C, E, LO, HI = 28, 29, 31, 32
        a.valu('v_bfe_u32', v(C), v(LH), 4, 4)
        a.valu('v_bfe_u32', v(E), v(LH), 8, 1); a.valu('v_lshlrev_b32', v(E), 2, v(E)); a.valu('v_sub_u32', v(E), v(C), v(E))
        a.valu('v_mov_b32', v(LO), '0x3f80'); a.valu('v_mov_b32', v(HI), '0x3f800000')
        for m in range(4):
            self.tick()
            lo = 2 * m if m < 2 else 2 * m + 4
            a.valu('v_cmp_eq_u32', 'vcc', lo, v(E)); a.valu('v_cndmask_b32', v(16 + m), 0, v(LO), 'vcc')
            a.valu('v_cmp_eq_u32', 'vcc', lo + 1, v(E)); a.valu('v_cndmask_b32', v(16 + m), v(16 + m), v(HI), 'vcc')
            a.valu('v_cmp_eq_u32', 'vcc', 2 * m, v(C)); a.valu('v_cndmask_b32', v(20 + m), 0, v(LO), 'vcc')
            a.valu('v_cmp_eq_u32', 'vcc', 2 * m + 1, v(C)); a.valu('v_cndmask_b32', v(20 + m), v(20 + m), v(HI), 'vcc')

    def constants_put(self):
        a = self.a
        a.ds('ds_write_b128', v(MMR), v(16, 4), mods=f'offset:{L_TB - 512 - B_LW1}')
        a.ds('ds_write_b128', v(L16), v(20, 4), mods=f'offset:{L_SEL - B_LW1}')
        for m in range(4): a.valu('v_mov_b32', v(44 + m), s(sNONCE))
        a.valu('v_mov_b32', v(48), L_NON)
        a.ds('ds_write_b128', v(48), v(44, 4))

    def load_lanes(self):
        a = self.a
        GA, GO, GX, TA, TO, TX, T0, T1, T2 = 48, 49, 50, 51, 52, 53, 54, 55, 56
        L = 57
        a.valu('v_lshrrev_b32', v(T0), 6, 'v0')
        a.valu('v_readfirstlane_b32', s(sW), v(T0))
        a.valu('v_and_b32', v(L), 63, 'v0')
        def bit(dst, src, b, sh, acc):
            a.valu('v_bfe_u32', v(T0), v(src), b, 1)
            if acc: a.valu('v_lshl_add_u32', v(dst), v(T0), sh, v(dst))
            else: a.valu('v_lshlrev_b32', v(dst), sh, v(T0))
        bit(GA, L, 2, 13, 0); bit(GA, L, 3, 15, 1); bit(GA, L, 4, 14, 1); bit(GA, L, 5, 16, 1)
        a.valu('v_lshrrev_b32', v(T1), 4, v(L)); a.valu('v_and_b32', v(T1), 2, v(T1)); a.valu('v_xor_b32', v(T1), v(T1), v(L))
        a.valu('v_and_b32', v(T1), 3, v(T1)); a.valu('v_lshl_add_u32', v(GA), v(T1), 4, v(GA))
        bit(TA, L, 2, 6, 0); bit(TA, L, 3, 9, 1); bit(TA, L, 4, 7, 1); bit(TA, L, 5, 12, 1)
        bit(TA, L, 0, 3, 1); bit(TA, L, 1, 4, 1); bit(TA, L, 3, 5, 1)
        a.valu('v_lshrrev_b32', v(T1), 3, v(L)); a.valu('v_mul_u32_u24', v(GO), 1152, v(T1))
        a.valu('v_and_b32', v(T1), 7, v(L)); a.valu('v_lshl_add_u32', v(GO), v(T1), 4, v(GO))
        bit(TO, L, 4, 13, 0); bit(TO, L, 5, 9, 1); bit(TO, L, 2, 7, 1); bit(TO, L, 3, 5, 1)
        a.valu('v_and_b32', v(T1), 3, v(L)); a.valu('v_lshl_add_u32', v(TO), v(T1), 3, v(TO))
        a.valu('v_lshrrev_b32', v(T1), 2, v(L)); a.valu('v_mul_u32_u24', v(GX), 1152, v(T1))
        a.valu('v_and_b32', v(T1), 3, v(L)); a.valu('v_lshl_add_u32', v(GX), v(T1), 4, v(GX))
        bit(TX, L, 4, 12, 0); bit(TX, L, 5, 8, 1); bit(TX, L, 2, 6, 1); bit(TX, L, 3, 5, 1)
        a.valu('v_and_b32', v(T1), 3, v(L)); a.valu('v_lshl_add_u32', v(TX), v(T1), 3, v(TX))
        sWK, sX16 = 66, 93
        a.salu('s_lshl_b32', s(sWK), s(sW), 10)
        a.salu('s_and_b32', s(sX16), s(sW), self.gs - 1); a.salu('s_lshl_b32', s(sX16), s(sX16), 14)
        a.salu('s_and_b32', s(75), s(sW), 4 - self.gs); a.salu('s_lshl_b32', s(75), s(75), 19)
        for r in (TA, TO, TX): a.valu('v_add_u32', v(r), s(sWK), v(r))
        a.valu('v_mov_b32', v(58), v(GA))
        a.salu('s_mov_b32', s(SRDW + 2), 576 * 8192); a.salu('s_mov_b32', s(SRDW + 3), '0x20000')

    def load_sub(self):
        a = self.a; t = self.tag
        a.label(f'{t}_dma')
        a.salu('s_xor_b32', s(74), s(76), s(81))
        a.salu('s_add_u32', 'm0', s(74), s(80))
        a.salu('s_add_u32', s(76), s(76), 4096)
        a.raw(f'    buffer_load_dwordx4 v58, s[{SRDW}:{SRDW+3}], s78 offen lds')
        a.salu('s_add_u32', s(78), s(78), s(79))
        a.salu('s_cmp_lt_u32', s(76), s(77), nodst=True)
        a.ins(f's_cbranch_scc1 {t}_dma')
        a.ins('s_setpc_b64 s[82:83]')

    def load_weights(self):
        a = self.a; t = self.tag
        GA, GO, GX, TA, TO, TX, T0, T1, T2 = 48, 49, 50, 51, 52, 53, 54, 55, 56
        sWK, sCOL, sOB, sX16, sKS = 66, 67, 92, 93, 94
        a.salu('s_lshl_b32', s(sCOL), s(sH), 8); a.salu('s_lshl_b32', s(sT0), s(sW), 6); a.salu('s_add_u32', s(sCOL), s(sCOL), s(sT0))
        a.salu('s_mul_i32', s(sOB), s(sH), 128 * 1152)
        a.salu('s_lshr_b32', s(73), s(sPTR + 2), 8); a.salu('s_add_u32', s(73), s(73), s(sH)); a.salu('s_and_b32', s(73), s(73), 31)
        a.salu('s_bitcmp1_b32', '0xa2222222', s(73), nodst=True)
        a.salu('s_cselect_b32', s(88), 1 if self.cpy else 0, 0); a.salu('s_mov_b32', s(72), 0)
        a.salu('s_add_u32', s(73), s(73), 1); a.salu('s_lshr_b32', s(73), s(73), 2)
        def switch():
            L = f'{t}_ncp{len(a.lines)}'
            a.salu('s_cmp_eq_u32', s(88), 0, nodst=True)
            a.ins(f's_cbranch_scc1 {L}')
            self.cpy(a, L)
            a.salu('s_mov_b32', s(88), 0); a.salu('s_mov_b32', s(72), 5)
            a.salu('s_lshl_b32', s(74), s(73), 19); a.salu('s_add_u32', s(74), s(74), WS_CPY)
            a.salu('s_add_u32', s(sPTR + 2), s(SRD), s(74)); a.salu('s_addc_u32', s(sPTR + 3), s(SRD + 1), 0)
            for i in ((4, 6) if self.swn < 4 else (4,)): a.salu('s_add_u32', s(sPTR + i), s(sPTR + i - 2), 576 * 256); a.salu('s_addc_u32', s(sPTR + i + 1), s(sPTR + i - 1), 0)
            a.salu('s_lshl_b32', s(sCOL), s(sW), 6)
            a.valu('v_and_b32', v(T0), 63, v(GA)); a.valu('v_lshrrev_b32', v(GA), 13, v(GA)); a.valu('v_lshl_add_u32', v(GA), v(GA), 8, v(T0))
            a.lines.append(L + ':')
            cur['va'] = None; cur['st'] = None; cur['m'] = None; cur['sw'] = True
        pW = {'q': sPTR + 2, 'k': sPTR + 4, 'v': sPTR + 6, 'o': sPTR + 8}
        cur = {'m': None, 'va': GA, 'st': None, 'x': None, 'sw': False}
        def call(m, va, step, xm, buf, lo, hi):
            if cur['m'] != m: a.salu('s_mov_b64', s(SRDW, 2), s(pW[m], 2)); cur['m'] = m
            if cur['va'] != va: a.valu('v_mov_b32', v(58), v(va)); cur['va'] = va
            if cur['st'] != step:
                if va == GA and cur['sw']: a.salu('s_lshr_b32', s(79), step, s(72))
                else: a.salu('s_mov_b32', s(79), step)
                cur['st'] = step
            if cur['x'] != xm: a.salu('s_mov_b32', s(81), xm); cur['x'] = xm
            if lo == 0: a.salu('s_add_u32', s(80), s(sWK), buf); a.salu('s_mov_b32', s(76), 0)
            a.salu('s_mov_b32', s(77), hi * 4096)
            a.ins(f's_call_b64 s[82:83], {t}_dma')
            a.vm_seq += hi - lo
        def issue(job):
            kind, m, x, buf = job
            if kind == 'g':
                cur['ng'] = cur.get('ng', 0) + 1
                if self.cpy and self.swn < cur['ng'] <= self.swn + self.swe: switch()
                if self.cpy and self.swn <= cur['ng'] < self.swn + self.swe: self.cpy(a, None)
                a.salu('s_xor_b32', s(78), s(75), x * self.gs * 64 * 8192)
                if cur['sw']: a.salu('s_lshr_b32', s(78), s(78), s(72))
                a.salu('s_add_u32', s(78), s(78), s(sCOL))
                for p in range(0, 4 * self.gs, 2): call(m, GA, 16 * 8192, s(sX16), buf, p, p + 2); yield
            elif kind == 's':
                if cur['sw']: a.salu('s_lshr_b32', s(78), 512 * 8192, s(72)); a.salu('s_add_u32', s(78), s(78), s(sCOL))
                else: a.salu('s_add_u32', s(78), s(sCOL), 512 * 8192)
                for p in (0, 2): call(m, GA, 16 * 8192, 0, buf, p, p + 2); yield
            elif kind == 'o':
                a.salu('s_xor_b32', s(sKS), s(sW), x[1]); a.salu('s_mul_i32', s(sKS), s(sKS), 32 * 1152)
                a.salu('s_add_u32', s(sKS), s(sKS), s(sOB))
                a.salu('s_lshl_b32', s(74), s(sW), 7); a.salu('s_add_u32', s(sKS), s(sKS), s(74))
                a.salu('s_add_u32', s(78), s(sKS), x[0] * 512)
                for p in (0, 2): call(m, GO, 8 * 1152, 0, buf, p, p + 2); yield
            else:
                for kk in range(2):
                    a.salu('s_xor_b32', s(sKS), s(sW), 2 * kk); a.salu('s_mul_i32', s(sKS), s(sKS), 32 * 1152)
                    a.salu('s_add_u32', s(sKS), s(sKS), s(sOB))
                    a.salu('s_lshr_b32', s(74), s(sW), 1); a.salu('s_lshl_b32', s(74), s(74), 6)
                    a.salu('s_add_u32', s(sKS), s(sKS), s(74))
                    a.salu('s_add_u32', s(78), s(sKS), 1024)
                    call(m, GX, 16 * 1152, 0, buf, 2 * kk, 2 * kk + 2); yield
        def build(frs, base, offs, buf):
            a.valu('v_add_u32', v(T1), buf, v(base))
            if base == TA: a.valu('v_xor_b32', v(T2), 32, v(T1))
            tmp = {}
            for fi, f in enumerate(frs):
                k, b = ('v', 8 * fi) if f in LDS_ADDR else REGF[f]
                for jp in range(4):
                    alt, off = offs(fi, jp)
                    a.ds('ds_read_b64_tr_b16', R(b + 2 * jp, 2, k), v(T2 if alt else T1), mods=f'offset:{off}')
                self.tick()
            self.side()
            a.wait(lds='all')
            wr = False
            for fi, f in enumerate(frs):
                if f in LDS_ADDR:
                    rg, off = lds_base(LDS_ADDR[f])
                    if rg == LW1:
                        a.ins('s_barrier')
                    a.ds('ds_write_b128', v(rg), v(8 * fi, 4), mods=f'offset:{off}')
                    a.ds('ds_write_b128', v(rg), v(8 * fi + 4, 4), mods=f'offset:{off + 4096}')
                    wr = True
            if wr: a.wait(lds='all')
        oq = lambda fi, jp: (fi, (jp >> 1) * 8192 + (jp & 1) * 256)
        oo = lambda fi, jp: (0, (jp >> 1) * 4096 + (jp & 1) * 256 + fi * 64)
        ox = lambda fi, jp: (0, fi * 8192 + (jp >> 1) * 512 + (jp & 1) * 128)
        def consume(job):
            kind, m, x, buf = job
            if kind == 'g':
                for i in range(self.gs): build([(m, 0, x * self.gs + i), (m, 1, x * self.gs + i)], TA, oq, buf + i * 16384)
            elif kind == 's': build([(m, 0, 8), (m, 1, 8)], TA, oq, buf)
            elif kind == 'o': build([('o', 2 * x[0], x[1]), ('o', 2 * x[0] + 1, x[1])], TO, oo, buf)
            else: build([('o', 4, 0), ('o', 4, 1)], TX, ox, buf)
        jobs = [['o', 'o', x, None] for x in ((0, 0), (0, 1), (0, 2), (0, 3), (1, 0), (1, 1))] + [['s', 'v', 8, None]] + [['g', 'v', x, None] for x in range(4)] + [
                ['g', 'k', 2, None], ['g', 'k', 3, None], ['g', 'q', 2, None], ['g', 'q', 3, None], ['s', 'q', 8, None], ['g', 'q', 1, None],
                ['g', 'q', 0, 64 * K], ['g', 'k', 0, 0], ['g', 'k', 1, 32 * K], ['x', 'o', 0, 144 * K], ['o', 'o', (1, 3), 128 * K], ['o', 'o', (1, 2), 112 * K], ['s', 'k', 8, 80 * K]]
        size = lambda j: self.gs * 16 * K if j[0] == 'g' else 16 * K
        def finals(j):
            if j[:3] == ['g', 'q', 0]: return [(64 * K, 80 * K)]
            if j[3] is not None and j[4]: return [(j[3], j[3] + size(j))]
            return []
        for j in jobs: j.append(j[3] is not None)
        def place(n, done):
            busy = [(jobs[x][3], jobs[x][3] + size(jobs[x])) for x in range(done, n)] + [sp for x in range(n) for sp in finals(jobs[x])]
            if not jobs[n][4]: busy += finals(jobs[n])
            cands = [K * [112, 80, 16, 0, 144, 96, 32, 112, 64, 0, 32, 128, 64, 0, 32, 96, 112, 64, 0, 32, 144, 128, 112, 80][n]]
            for lo in cands:
                if all(b[1] <= lo or b[0] >= lo + size(jobs[n]) for b in busy): return lo
            return None
        tags = {}; S = dict(n=0, gen=None, left=0, j=0, out=0, bonus=0, bq=0)
        def tick(force=False):
            if S['gen'] is None:
                n = S['n']
                if n >= len(jobs): return False
                lo = place(n, S['j'])
                if lo is None: return False
                if S['out'] + 2 > min(24, self.lcap + S['bonus']) and not force: return False
                jobs[n][3] = lo; S['gen'] = issue(jobs[n][:4]); S['left'] = size(jobs[n]) // 8192
            elif S['out'] + 2 > min(24, self.lcap + S['bonus']) and not force: return False
            next(S['gen']); S['left'] -= 1; S['out'] += 2
            if S['left'] == 0: tags[S['n']] = a.vm_seq; S['n'] += 1; S['gen'] = None
            return True
        self.tick = tick
        pend = list(self.stages); mark = None
        chunks = []
        filler = []
        def chop(f, chunks=chunks):
            sub = Asm(); sub.auto = False; sub.lines = ['@'] * 0
            keep_a, keep_t = self.a, self.tick
            cuts = []
            def cutp(): sub.fence(); cuts.append((len(sub.lines), sub.vm_seq))
            self.a, self.tick = sub, cutp
            f(sub); cutp()
            self.a, self.tick = keep_a, keep_t
            l0 = q0 = 0
            for l1, q1 in cuts:
                if l1 > l0: chunks.append((sub.lines[l0:l1], q1 - q0))
                l0, q0 = l1, q1
        def side():
            if chunks:
                ls, nq = chunks.pop(0)
                a.fence(); a.lines += ls; a.pos += len(ls); a.vm_seq += nq
                nst = sum('buffer_store' in x for x in ls)
                if nst and self.lbo: S['bonus'] += nst + 1; S['bq'] = a.vm_seq
                if not chunks: S['mark'] = a.vm_seq
            elif filler:
                ls, nq = filler.pop(0)
                a.fence(); a.lines += ls; a.pos += len(ls)
        self.side = side
        chop(lambda a: (self.loop_scalars(), self.constants()), filler)
        for i in range(self.lpri): tick()
        for j in range(len(jobs)):
            S['j'] = j
            if j in tags and tags[j] > S['bq']: S['bonus'] = 0
            if pend and not chunks and (S.get('mark') is None or (j > 0 and tags[j - 1] > S['mark'])):
                chop(pend.pop(0))
                if j == 0:
                    while tick(): pass
                    for i in range(self.lsd): side()
            if len(jobs) - j in self.at:
                assert not pend and not chunks and not filler
                self.at[len(jobs) - j](a)
            while tick(): pass
            while j not in tags: assert tick(True)
            a.wait(vm=tags[j])
            self.outs = getattr(self, 'outs', []) + [S['out']]
            S['out'] -= size(jobs[j]) // 4096
            consume(jobs[j][:4])
            if self.ptrace: self.ptrace(a, j)
        self.tick = lambda: None
        assert not pend
        self.sched = [(j[:4]) for j in jobs]
        a.ins('s_barrier')

    def prologue(self, st1=None, st2=None, st3=None, st4=None, late=None):
        a = self.a
        def s0(a): self.addresses(); self.init_exchange()
        def s1(a):
            if st1: st1(a)
        def s4(a):
            self.init_late()
            if st4: st4(a)
            else: self.touch_kv()
        self.stages = [s0] + ([s1] if st1 else []) + [x for x in (st2,) if x]
        self.at = {self.lt: s4, self.lte: lambda a: self.touch_exchange()}
        if st3: self.at[self.lasy] = st3
        self.load_weights()
        if late: late(a)
        self.constants_put()
        a.wait(vm='all', lds='all')
        a.fence()

    def loop_scalars(self):
        a = self.a
        a.salu('s_mov_b32', s(sC1), '0x3e0293ee'); a.salu('s_mov_b32', s(sC1 + 1), s(sC1))
        a.salu('s_mov_b32', s(sNC1), '0x42000000' if not self.gforce else 0)
        a.salu('s_mov_b32', s(sONE), '0x3f803f80'); a.salu('s_mov_b32', s(sONE + 1), s(sONE))
        a.salu('s_mov_b32', s(sHALF), '0x3e803e80'); a.salu('s_mov_b32', s(sHALF + 1), s(sHALF))
        a.salu('s_mov_b32', s(sSTEP), 0)
        a.salu('s_lshl_b32', s(sPF), s(sH), 14); a.salu('s_add_u32', s(sPF), s(sPF), WS_KV)
        a.salu('s_add_u32', s(sAL), s(sPF), (self.nsteps - 1) * 32 * 16384)
        a.salu('s_mul_i32', s(sT0), s(sW), 3072); a.salu('s_add_u32', s(sKX), s(sPF), s(sT0))
        a.salu('s_lshl_b32', s(sPS0), s(sH), 7); a.salu('s_add_u32', s(sPS0), s(sPS0), self.wspart)
        a.salu('s_add_u32', s(sPS1), s(sPS0), 65536)
        a.salu('s_add_u32', s(sLO8), s(sPS0), 4096); a.salu('s_add_u32', s(sLO8 + 1), s(sPS1), 4096)
        a.salu('s_lshl_b32', s(sPSX), s(sH), 7); a.salu('s_add_u32', s(sPSX), s(sPSX), self.wspart + 8192)
        self.tick()
        a.salu('s_lshl_b32', s(sT0), s(sH), 12)
        a.salu('s_add_u32', s(sKM), s(sT0), WS_KM + (self.nsteps - 2) * 32 * 4096)
        a.salu('s_add_u32', s(sVM), s(sT0), WS_VM + (self.nsteps - 2) * 32 * 4096)
        a.salu('s_lshl_b32', s(sFV), s(sH), 9); a.salu('s_add_u32', s(sFV), s(sFV), WS_MEMH)
        a.salu('s_lshl_b32', s(sT0), s(sW), 5); a.salu('s_or_b32', s(sT0), s(sT0), s(sH))
        a.salu('s_cmp_lt_u32', s(sT0), 24, nodst=True)
        a.salu('s_cselect_b32', s(sW0M), '0x1ffffff', 0); a.salu('s_mov_b32', s(sW0M + 1), 0)
        a.salu('s_lshl_b32', s(sFL), s(sH), 7); a.salu('s_add_u32', s(sFL), s(sFL), SY_CHF)
        a.salu('s_lshl_b32', s(sT0), s(sW), 2); a.salu('s_add_u32', s(sFL), s(sFL), s(sT0))

    def touch_kv(self):
        a = self.a
        a.salu('s_add_u32', s(sT0), s(sPF), 32 * 16384)
        a.ins(f'buffer_load_dword v30, v{PFA}, s[{SRD}:{SRD+3}], s{sPF} offen sc1')
        a.ins(f'buffer_load_dword v30, v{PFA}, s[{SRD}:{SRD+3}], s{sT0} offen sc1')

    def touch_exchange(self):
        a = self.a
        a.valu('v_lshlrev_b32', v(45), 3, v(LH))
        a.salu('s_lshl_b32', s(sT0), s(sH), 14); a.salu('s_add_u32', s(sT0), s(sT0), self.wspart - self.wsmem)
        a.salu('s_lshl_b32', s(sT1), s(sH), 11); a.salu('s_sub_u32', s(sT1), s(sT1), 96 * 128)
        a.valu('v_add_u32', v(30), s(sT0), v(45)); a.valu('v_add_u32', v(45), s(sT1), v(45))
        a.valu('v_cmp_gt_u32', 'vcc', 96 * 16, v(LH))
        a.valu('v_cndmask_b32', v(45), v(45), v(30), 'vcc')
        a.salu('s_lshl_b32', s(sT0), s(sH), 16); a.salu('s_add_u32', s(sT0), s(sT0), WS_M0 - self.wsmem - 112 * 128)
        a.valu('v_lshlrev_b32', v(30), 3, v(LH)); a.valu('v_add_u32', v(30), s(sT0), v(30))
        a.valu('v_cmp_gt_u32', 'vcc', 112 * 16, v(LH))
        a.valu('v_cndmask_b32', v(45), v(30), v(45), 'vcc')
        a.valu('v_cmp_gt_u32', 'vcc', 184 * 16, v(LH))
        a.salu('s_mov_b32', s(sT0), self.wsmem)
        a.salu('s_mov_b64', 'exec', 'vcc')
        if self.tx == 1:
            a.salu('s_cmp_eq_u32', s(sW), 0, nodst=True); a.salu('s_cselect_b64', 'exec', 0, 'exec')
        a.ins(f'buffer_load_dword v30, v45, s[{SRD}:{SRD+3}], s{sT0} offen sc1')
        a.salu('s_mov_b64', 'exec', -1)

    def loop_init(self):
        a = self.a
        a.salu('s_mov_b32', 'm0', L_DUMP)
        a.salu('s_add_u32', s(sPF), s(sPF), 2 * 32 * 16384)
        if self.timing:
            for i in range(24): a.salu('s_mov_b32', s(sACC + i), 0)

    def step(self):
        a = self.a; t = self.tag; fl = self.fl; lfl = self.lfl
        srd = s(SRD, 4); T = {}
        R0, R1, R2, R3, R4, R5, R6, R7, R8 = Rq
        ACCS = {'q0': AQ0, 'q1': AQ1, 'k0': AK0, 'k1': AK1, 'v0': AV0, 'v1': AV1}
        where = {}
        M = {}
        def fr(f, dst):
            rg, off = lds_base(LDS_ADDR[f])
            def f0(): where[f] = dst; a.ds('ds_read_b128', v(dst, 4), v(rg), mods=f'offset:{off}')
            def f1(): T[f] = a.ds('ds_read_b128', v(dst + 4, 4), v(rg), mods=f'offset:{off + 4096}')
            return f0, f1
        def xr(i): return {0: (LW0, B_LW0), 1: (LW1, B_LW1), 2: (LW2, B_LW1), 3: (LW3, B_LW1)}[i]
        def mr(sl, dst):
            def f():
                M[sl] = dst
                if sl == 8: T[('m', sl)] = a.ds('ds_read_b128', v(dst, 4), v(L16), mods=f'offset:{L_MBUF + 8192 - B_LW1}')
                else:
                    rg, b = xr(sl & 3)
                    T[('m', sl)] = a.ds('ds_read_b128', v(dst, 4), v(rg), mods=f'offset:{L_MBUF + (sl >> 2) * 4096 - b}')
            return f
        def wl(key): return lambda: a.wait(lds=T[key])
        def wv(key): return lambda: (a.wait(vm=T[key]) if T[key] > a.done['vm'] else None)
        def mm(o, sl):
            f = (o[0], int(o[1]), sl)
            a.mfma(SMF, v(ACCS[o], 4), v(M[sl], 4), v(where[f], 8) if f in LDS_ADDR else freg(f), v(IDX))
        def run(seq):
            for x in seq:
                if isinstance(x, tuple): mm(*x)
                elif x is not None: x()
        def sal(*args, **kw): return lambda: a.salu(*args, **kw)
        def val(*args, **kw): return lambda: a.valu(*args, **kw)
        def ins(x): return lambda: a.ins(x)
        def z2(r, c=0): return val('v_mov_b64', v(r, 2), c)
        def zero(lo, hi):
            for i in range(lo, hi, 2): z2(i)()
        def cvt(d, x, y=None): return val('v_cvt_pk_bf16_f32', v(d), v(x), v(x + 1 if y is None else y))
        def dpp(d, x, bm): return val('v_mov_b32_dpp', v(d), v(x), mods=f'row_ror:8 row_mask:0xf bank_mask:{bm}', rmw=True)
        def mf(op, d, A, B, C): return lambda: a.mfma(op, v(d, 4), v(A, 4 if op == MF32 else 2), v(B, 4 if op == MF32 else 2), 0 if C is None else v(C, 4))
        def zmf(d): return mf(MF16, d, ZZ, ZZ, None)
        def st(k): return lambda: self.stamp(k)
        LC, TM, LCW, MC = R8, R8 + 1, R8 + 2, R8 + 3
        def vbr(lab):
            a.ins(f's_cbranch_vccnz {lab}')
        def poll0(R0=R0):
            a.vmem('buffer_load_dwordx4', v(R0, 4), v(LH), srd, s(sMEM), mods='offen ' + lfl); a.nowait(v(R0, 4))
        def poll1():
            a.vmem('buffer_load_dwordx4', v(R1, 4), v(LH), srd, s(sMEM4), mods='offen ' + lfl)
            a.vmem('buffer_load_dword', v(MC), v(LC), srd, s(sMEM8), mods='offen ' + lfl)
            a.nowait(v(R1, 4)); a.nowait(v(MC))
        def prefetch_top():
            run(list(fr(('q', 1, 0), R2)) + list(fr(('k', 0, 0), R4)) + list(fr(('k', 1, 0), R6)))
        def prefetch_av(): run(list(fr(('q', 0, 0), AV0)))
        def offsets():
            a.salu('s_add_u32', s(sMEM4), s(sMEM), 4096); a.salu('s_add_u32', s(sMEM8), s(sMEM), 8192)
        def pubk(r):
            if self.nopub: return
            a.salu('s_mov_b64', 'exec', s(sHI8, 2))
            a.vmem('buffer_store_dwordx4', v(r, 4), v(LH), srd, s(sKM), mods='offen ' + self.pfl, load=False, data=v(r, 4))
            a.salu('s_mov_b64', 'exec', -1)
        def pubv(r):
            if self.nopub: return
            a.vmem('buffer_store_dwordx4', v(r, 4), v(LH), srd, s(sVM), mods='offen ' + self.pfl, load=False, data=v(r, 4))
        def flag(r):
            if self.nopub: return
            a.salu('s_mov_b64', 'exec', 1)
            a.vmem('buffer_store_dword', v(r), 'off', srd, s(sFL), mods='sc1', load=False)
            a.salu('s_mov_b64', 'exec', -1)
        def pf(r):
            if self.nopf: return
            a.raw(f'    buffer_load_dword v{r}, s[{SRD}:{SRD+3}], s{sPF} offen sc1 lds'); a.pos += 1; a.vm_seq += 1

        offsets(); prefetch_top()
        a.salu('s_mov_b32', s(sSPIN), self.spinmax)
        poll0()
        a.raw('.p2align 6')
        a.label(f'{t}_loop')
        a.forget()
        zero(0, 16)
        a.label(f'{t}_loop2')
        st(0)()
        def top():
            prefetch_av()
            a.valu('v_lshrrev_b32', v(LC), 2, v(LH))
            a.valu('v_add_u32', v(LCW), L_MBUF + 8192, v(LC))
            if self.timing: a.salu('s_mov_b32', 's94', s(sSPIN))
            a.salu('s_mov_b32', s(sSPIN), self.spinmax)
            if self.hook: self.hook(a)
        top()
        for i in range(self.ks - 1):
            if self.pA: a.nop(self.pA)
            poll0()
        r1 = self.p1 == 3
        if r1:
            if self.dA: a.nop(self.dA)
            poll1()
        a.ins('s_waitcnt lgkmcnt(0)')
        a.label(f'{t}_chk0')
        a.ins(f's_waitcnt vmcnt({self.ks - 1 + (2 if r1 else 0)})')
        a.lines.append(f'{t}_chk0b:')
        st(1)()
        M[0] = R0; M[4] = R1
        K01, K11 = fr(('k', 0, 1), R2), fr(('k', 1, 1), R4)
        K02, K12 = fr(('k', 0, 2), R2), fr(('k', 1, 2), R4)
        K03, K13 = fr(('k', 0, 3), R2), fr(('k', 1, 3), R4)
        o2 = [sal('s_add_u32', s(sMRS), s(sMEM), s(sMSU)), sal('s_add_u32', s(sT1), s(sMEM), 16384), sal('s_and_b32', s(sT1), s(sT1), 0xffff),
              sal('s_add_u32', s(sT1), s(sT1), self.wsmem), sal('s_add_u32', s(sMST), s(sT1), s(sMSU)), sal('s_and_b32', s(sTAG), s(sSTEP), 1)]
        a.valu('v_max3_u32', v(TM), v(R0), v(R0 + 1), v(R0 + 2)); a.valu('v_max_u32', v(TM), v(TM), v(R0 + 3))
        a.valu('v_cmp_eq_u32', 'vcc', -1, v(TM))
        wA = a.ds('ds_write_b128', v(LW0), v(R0, 4), mods=f'offset:{L_MBUF - B_LW0}')
        vbr(f'{t}_spin0')
        run([('q0', 0), poll1 if self.p1 in (1, 3) else None, ('q1', 0), K01[0], ('k1', 0), K01[1], zmf(AV0), lambda: a.wait(lds=wA)])
        a.ins('s_barrier')
        st(2)()
        def kx(i):
            def f(): T['kx', i] = a.vmem('buffer_load_dwordx4', v(R2 + 4 * i, 4), v(LH), srd, s(sKX), mods=f'offen offset:{i*1024} sc1')
            return f
        c1 = [val('v_max3_u32', v(TM), v(R1), v(R1 + 1), v(R1 + 2)), val('v_max3_u32', v(TM), v(TM), v(R1 + 3), v(MC)), val('v_cmp_eq_u32', 'vcc', -1, v(TM))]
        def w1a(): a.ds('ds_write_b128', v(LW0), v(R1, 4), mods=f'offset:{L_MBUF + 4096 - B_LW0}')
        def w1b(): T['wB'] = a.ds('ds_write_b32', v(LCW), v(MC))
        if self.p1 == 2:
            run([mr(1, R6), zmf(AV1), poll1, mr(2, R7), ('k0', 0), K11[0], ('v0', 0), K11[1], ('v1', 0),
                 ('q0', 1), o2[0], o2[1], ('k0', 1), K02[0], ('q1', 1), K02[1], ('k1', 1), K12[0], ('v0', 1), K12[1], ('v1', 1), mr(3, R6),
                 ('k0', 2), K03[0], ('q0', 2), K03[1], ('k1', 2), K13[0], ('q1', 2), K13[1], ('v0', 2), ('v1', 2),
                 ('q0', 3), ins('s_waitcnt vmcnt(0)'), st(3), w1a, ('q1', 3), w1b, c1[0], c1[1], ('k0', 3), kx(0), c1[2], ('k1', 3), ('v0', 3)])
            vbr(f'{t}_spin1')
            a.lines.append(f'{t}_go1:')
            run([('v1', 3), wl('wB')])
        else:
            run([mr(1, R6), zmf(AV1), mr(2, R7), ('k0', 0), K11[0], ('v0', 0), K11[1], ('v1', 0),
                 ('q0', 1), o2[0], o2[1], ('k0', 1), K02[0], ('q1', 1), K02[1], ('k1', 1), K12[0], ('q0', 2), K12[1], ('q1', 2), mr(3, R6),
                 ('k0', 2), ins('s_waitcnt vmcnt(0)'), st(3), w1a, ('k1', 2), w1b, c1[0], ('q0', 3), K03[0], c1[1], ('q1', 3), K03[1], c1[2], ('v0', 2), K13[0], ('v1', 2), K13[1]])
            vbr(f'{t}_spin1')
            a.lines.append(f'{t}_go1:')
            run([('q0', 4), wl('wB')])
        a.ins('s_barrier')
        TB = R1
        def tbld(): T['tb'] = a.ds('ds_read_b128', v(TB, 4), v(MMR), mods=f'offset:{L_TB - 512 - B_LW1}')
        def pmld(R1=AQ0):
            if self.nopub: return
            a.salu('s_mov_b64', 'exec', s(sW0M, 2))
            a.ds('ds_read_b128', v(R1, 4), v(MST))
            a.salu('s_mov_b64', 'exec', -1)
        def pubm(R1=AQ0, restore=True):
            if self.nopub: return
            a._autowait([('v', R1 + i) for i in range(4)], 'pubm')
            L = f'{t}_np{len(a.lines)}'
            a.salu('s_mov_b64', 'exec', s(sW0M, 2))
            if self.pbr: a.ins(f's_cbranch_execz {L}')
            a.vmem('buffer_store_dwordx4', v(R1, 4), v(LH), srd, s(sFV), mods='offen ' + self.pfl, load=False, data=v(R1, 4))
            if self.pbr: a.pos -= 1; a.lines.append(L + ':')
            if restore: a.salu('s_mov_b64', 'exec', -1)
        K08, K18 = fr(('k', 0, 8), R6), fr(('k', 1, 8), R6)
        VB = 5 if self.p1 == 2 else 1
        VL = 4 if self.p1 == 2 else 3
        if self.p1 == 2: run([mr(5, R7), ('q0', 4), mr(6, R6), ('q1', 4), kx(1), ('k0', 4), mr(7, R8), o2[2], ('k1', 4), mr(8, R0), o2[3], o2[4], o2[5]])
        else: run([mr(5, R7), ('q1', 4), mr(7, R8), ('k0', 4), lambda: a._autowait([('v', R4 + 4)], 'k13'), ('k0', 3), kx(0), ('k1', 3), mr(6, R6), ('k1', 4), mr(8, R0), o2[2], o2[3], ('v0', 4), kx(1), ('v1', 4), o2[4], o2[5]])
        run([('q0', 5), tbld, ('k0', 5), kx(2), ('q1', 5), ('k1', 5)] + ([K08[1], ('q0', 6), kx(3)] if self.p1 == 2 else [('v0', 5), kx(3), ('v1', 5), K08[1], ('q0', 6)])
            + [('k0', 6), ('q1', 6), ('k1', 6), ('v0', 6), (lambda: pf(PFA)) if self.p1 != 2 else None, ('v1', 6), K08[0],
             ('q0', 7), (lambda: pf(PFA)) if self.p1 == 2 else None, sal('s_cmp_ge_u32', s(sSTEP), self.nsteps - 2, nodst=True), ('q1', 7), ('q0', 8), ('q1', 8), ('k0', 7), lambda: a._autowait([('v', R6)], 'k08'), cvt(AQ0, AQ0),
             ('k0', 8), K18[0], cvt(AQ1, AQ1), ('k1', 7), K18[1], cvt(AQ1 + 1, AQ1 + 2), ('v0', 7), cvt(AQ0 + 1, AQ0 + 2),
             mf(MF16, AQ1, AQ1, TB, None), cvt(AQ0 + 2, AK0), cvt(AQ0 + 3, AK0 + 2), ('v1', 7), lambda: pmld(R8), mf(MF32, AK0, AQ0, TB, None), cvt(AQ0 + 2, AQ1), ('k1', 8), mr(VB, R6)])
        st(4)()
        heat = lambda: a.mfma(MF16, v(R6, 4), v(ZZ, 2), v(ZZ, 2), v(R6, 4))
        XF0, XF1, U22, U23, U32, U33 = fr(('o', 4, 0), R2), fr(('o', 4, 1), R6), fr(('o', 2, 2), R4), fr(('o', 2, 3), R2), fr(('o', 3, 2), R6), fr(('o', 3, 3), R4)
        run([cvt(AQ0 + 3, AQ1 + 2), wv(('kx', 1)), cvt(AQ0, AK0), cvt(AQ0 + 1, AK0 + 2), mf(MF32, AK0, R3, AQ0, None), cvt(AK1, AK1), cvt(AK1 + 1, AK1 + 2),
             mf(MF16, AK1, AK1, TB + 2, None), mr(VL, R7), XF0[1], mf(MF32, R1, R2, AQ0, None), wv(('kx', 3)), (lambda: pubm(R8, False)) if self.bf else XF0[0], sal('s_mov_b64', 'exec', s(sHI8, 2)),
             cvt(AQ0 + 2, AK1), cvt(AQ0 + 3, AK1 + 2), sal('s_mov_b64', 'exec', -1),
             mf(MF32, AQ1, AQ0, AQ0, None)]
            + [dpp(R1 + r, AK0 + r, '0xc') for r in range(4)] + [('v0', 8)])
        a.ds('ds_write_b128', v(LW0), v(R1, 4), mods=f'offset:{L_SC - B_LW0}')
        run([dpp(AQ1, AQ1 + 2, '0xc'), dpp(AQ1 + 1, AQ1 + 3, '0xc'), ('v1', 8)])
        ws_ = a.ds('ds_write_b64', v(MMW), v(AQ1, 2))
        if self.bf: run([('v0', 1), ins(f's_cbranch_scc1 {t}_last'), lambda: a.lines.append(f'{t}_back:'), ('v1', 1), XF0[0], ('v0', 3), zmf(AK1) if self.bf > 1 else None])
        else: run([('v0', VB), lambda: pubm(R8), ('v1', VB), ins(f's_cbranch_scc1 {t}_last'), lambda: a.lines.append(f'{t}_back:')] + [heat] * self.hb)
        a.wait(lds=ws_)
        a.ins('s_barrier')
        st(5)()
        X0, X1, X2, X3, MA, MB_ = R1, AK0, AQ1, AQ0, R8, AK1
        def xrd(i, d):
            rg, b = xr(i)
            return lambda: a.ds('ds_read_b128', v(d, 4), v(rg), mods=f'offset:{L_SC - b}')
        def mmrd(d, o): return lambda: a.ds('ds_read_b128', v(d, 4), v(MMR), mods=f'offset:{L_MM + o - B_LW1}')
        def mulc(d): return val('v_mul_f32', v(d), s(sC1), v(d))
        def fmc(d, x): return val('v_fmac_f32', v(d), s(sC1), v(x))
        BM, BT = AK0 + 2, AQ1
        AC = [R1, AQ1, AV0, AV1]; ACX = AK0
        WL, LQ, O0, O1 = R0, AQ0, AK1, AV1
        ET, EM = AQ0, MA + 2
        CK = AK0
        F = {0: AQ0, 1: R0, 2: AK1, 3: R8}
        def ex(d, x): return val('v_exp_f32', v(d), v(x))
        def pkf(d, x): return val('v_pk_fma_f32', v(d, 2), v(x, 2), s(sC1, 2), v(d, 2))
        BMT = R8 + 2
        mm_ = [val('v_pk_add_f32', v(MA, 2), v(MA, 2), v(MA + 2, 2)), val('v_pk_add_f32', v(MB_, 2), v(MB_, 2), v(MB_ + 2, 2)), val('v_pk_add_f32', v(MA, 2), v(MA, 2), v(MB_, 2)),
               val('v_pk_mul_f32', v(MA, 2), v(MA, 2), s(sC1, 2))]
        def pkm(d): return val('v_pk_mul_f32', v(d, 2), v(d, 2), s(sC1, 2))
        run(([mmrd(MA, -512), ('v0', VL), mmrd(MB_, 0), xrd(1, X1), ('v1', VL), xrd(2, X2), xrd(3, X3)] if self.ha else [mmrd(MA, -512), mmrd(MB_, 0), None if self.bf else ('v0', 3), xrd(1, X1), xrd(2, X2), ('v1', 3), xrd(3, X3)]) + [heat] * max(self.ha - 1, 0) + [
             z2(WL, s(sHALF, 2)), z2(WL + 2, s(sONE, 2)), cvt(AV0, AV0), cvt(AV0 + 1, AV0 + 2), pkm(X0), pkm(X0 + 2), lambda: a._autowait([('v', MB_)], 'mb')] + mm_ + [ex(EM, MA), ex(EM + 1, MA + 1),
             lambda: a._autowait([('v', X2)], 'x2'), pkf(X0, X1), pkf(X0 + 2, X1 + 2), cvt(BM, EM), pkf(X0, X2), pkf(X0 + 2, X2 + 2),
             pkf(X0, X3), dpp(BM + 1, BM, '0xf'), pkf(X0 + 2, X3 + 2)])
        st(6)()
        def soft(first):
            x_ = [cvt(AV0 + 2, AV1), cvt(AV0 + 3, AV1 + 2), None] if first else [None] * 3
            if not first: run([ex(EM, MA), ex(EM + 1, MA + 1), cvt(BM, EM), dpp(BM + 1, BM, '0xf')])
            run([ex(ET, X0), mf(MF16, O0, AV0, BM, None), XF1[0] if first else None, ex(ET + 1, X0 + 1), x_[0], ex(ET + 2, X0 + 2), x_[1], cvt(BT, ET), ex(ET + 3, X0 + 3), mf(MF16, O1, AV0 + 2, BM, None), XF1[1] if first else None,
                 cvt(BT + 1, ET + 2), dpp(BT + 2, BT, '0xf'), val('v_max3_f32', v(CK), f'|v{X0}|', f'|v{X0+1}|', f'|v{X0+2}|'), dpp(BT + 3, BT + 1, '0xf'), st(7) if first else None,
                 mf(MF32, LQ, WL, BM, None), val('v_max3_f32', v(CK), v(CK), f'|v{X0+3}|', f'|v{MA}|'), val('v_max_f32_e64', v(CK), v(CK), f'|v{MA+1}|'),
                 mf(MF32, O0, R4, BT, O0), val('v_cmp_nge_f32', 'vcc', s(sNC1), v(CK)),
                 mf(MF32, O1, R5, BT, O1),
                 val('v_add_f32_dpp', v(LQ), v(LQ), v(LQ), mods='row_ror:8 row_mask:0xf bank_mask:0xf'), val('v_rcp_f32', v(LQ), v(LQ))])
        soft(True)
        vbr(f'{t}_guard')
        a.lines.append(f'{t}_norm:')
        run([zmf(AC[0])]
            + [val('v_mul_f32', v(O0 + r), v(O0 + r), v(LQ)) for r in range(4)]
            + [val('v_mul_f32_dpp', v(O0 + r), v(O1 + r), v(LQ), mods='row_ror:8 row_mask:0xf bank_mask:0xc', rmw=True) for r in range(4)]
            + [cvt(O0, O0), cvt(O0 + 1, O0 + 2), zmf(AC[1])])
        wo = a.ds('ds_write_b64', v(OW), v(O0, 2))
        def guard():
            a.label(f'{t}_guard')
            a.forget()
            a.ins(f's_cbranch_scc0 {t}_guard2')
            pubv(AV0)
            a.salu('s_add_u32', s(sVM), s(sVM), 32 * 4096)
            a.salu('s_add_u32', s(sT0), s(sNONCE), self.nsteps - 1); a.valu('v_mov_b32', v(CK + 1), s(sT0)); flag(CK + 1)
            a.label(f'{t}_guard2')
            a.nop(8)
            M1, M2 = BM, BM + 1
            a.valu('v_max3_f32', v(M1), v(X0), v(X0 + 1), v(X0 + 2))
            a.valu('v_max3_f32', v(M2), v(X0 + 3), v(MA), v(MA + 1))
            a.valu('v_max_f32', v(M1), v(M1), v(M2))
            a.valu('v_max_f32_dpp', v(M1), v(M1), v(M1), mods='row_ror:8 row_mask:0xf bank_mask:0xf')
            for sw in ('v_permlane32_swap_b32', 'v_permlane16_swap_b32'):
                a.valu('v_mov_b32', v(M2), v(M1)); a.valu(sw, v(M1), v(M2)); a.valu('v_max_f32', v(M1), v(M1), v(M2))
            for d in (X0, X0 + 1, X0 + 2, X0 + 3, MA, MA + 1): a.valu('v_sub_f32', v(d), v(d), v(M1))
            soft(False)
            a.fence()
            a.ins(f's_branch {t}_norm')
        def E(u, i):
            def f():
                fg = ('o', u, i)
                a.mfma(SMF, v(ACX if u == 4 else AC[u], 4), v(F[2 * i if u == 4 else i], 4), v(where[fg], 8) if fg in LDS_ADDR else freg(fg), v(IDX))
            return f
        OA = [None, OA1, OA2, OA3]
        run([zmf(ACX), lambda: a.ds('ds_read_b128', v(F[0], 4), v(OR0)), zmf(AC[2]), U22[0], zmf(AC[3]), U22[1]])
        a.wait(lds=wo)
        a.ins('s_barrier')
        st(8)()
        if self.xnop: a.nop(self.xnop)
        def frd(i): return lambda: a.ds('ds_read_b128', v(F[i], 4), v(OA[i]))
        def tag(r): return val('v_and_or_b32', v(r), v(r), -2, s(sTAG))
        def fin(u):
            r = ACX if u == 4 else AC[u]
            so = [sPS0, sPS1, sLO8, sLO8 + 1, sPSX][u]
            return [cvt(r, r), cvt(r + 1, r + 2), tag(r), lambda: a.vmem('buffer_store_dwordx2', v(r, 2), v(PSX if u == 4 else PST), srd, s(so), mods='offen ' + fl, load=False)]
        P0 = [R4, R5, R6, R7]
        def shot(P):
            for i in range(4):
                a.vmem('buffer_load_dwordx4', v(P[i], 4), v(L16), srd, s(sPL), mods=f'offen offset:{1024 * i} ' + lfl)
            a.nowait(v(P[0], 16))
        def shot0():
            if not self.ins0: return
            if self.dE: a.nop(self.dE)
            a.ins(f's_cbranch_scc1 {t}_ns0')
            p = a.pos
            for r in P0: a.valu('v_not_b32', v(r), s(sTAG))
            shot(P0)
            a.pos = p
            a.lines.append(f'{t}_ns0:')
        f0, f1, f2, f3, fx = [fin(u) for u in range(5)]
        def aw(*regs): return lambda: a._autowait([('v', r) for r in regs], 'aw')
        if self.eo == 3:
          run([frd(1), frd(2), frd(3), E(0, 0), E(1, 0), E(4, 0), U23[0],
             aw(F[2]), E(0, 1), U23[1], E(0, 2), E(0, 3), E(1, 1), E(1, 2), f0[0], E(1, 3), f0[2], f0[1], E(4, 1), f0[3], U32[0], E(2, 2), U32[1], f1[0], f1[2], f1[1], E(2, 0), f1[3], st(9), U33[0],
             E(2, 1), U33[1], fx[0], E(2, 3), fx[2], E(3, 0), fx[1], E(3, 1), fx[3] if self.hx else None, f2[0], aw(R4 + 4), E(3, 2), f2[2], E(3, 3), sal('s_cmp_lg_u32', s(sW), 2, nodst=True), f2[1]]
             + [val('v_not_b32', v(r + o), s(sTAG)) for r in P0 for o in (0, 2)] + [f3[0], f3[2], f3[1]])
          if self.dE: a.nop(self.dE)
          a.ins(f's_cbranch_scc1 {t}_ns0')
          shot(P0)
          a.lines.append(f'{t}_ns0:')
          a.ins('s_barrier')
          run([None if self.hx else fx[3], f2[3], f3[3]])
        elif self.eo == 2:
          run([frd(1), frd(2), frd(3), E(0, 0), E(1, 0), E(4, 0), U23[0],
             aw(F[2]), E(0, 1), U23[1], E(0, 2), E(0, 3), E(1, 1), E(1, 2), f0[0], E(1, 3), f0[2], f0[1], E(4, 1), f0[3], U32[0], E(2, 2), U32[1], f1[0], f1[2], f1[1], E(2, 0), f1[3], st(9), U33[0],
             E(2, 1), U33[1], fx[0], E(2, 3), fx[2], fx[1], E(3, 0), fx[3], E(3, 1), f2[0], aw(R4 + 4), E(3, 2), f2[2], f2[1], E(3, 3), f2[3], sal('s_cmp_lg_u32', s(sW), 2, nodst=True), f3[0], f3[2], f3[1], f3[3]])
        else:
          run([frd(1), frd(2), frd(3), E(0, 0), E(1, 0), E(4, 0), U23[0], E(2, 0), U23[1],
             aw(F[2]), E(0, 1), E(4, 1), U32[0], E(0, 2), U32[1], E(0, 3), fx[0], E(2, 2), U33[0], fx[2], E(1, 1), U33[1], fx[1], E(1, 2), fx[3], f0[0], E(1, 3), f0[2], E(2, 1), f0[1],
             E(2, 3), f0[3], f1[0], aw(R4 + 4), E(3, 0), f1[2], E(3, 1), f1[1], E(3, 2), f1[3], st(9), f2[0], E(3, 3), f2[2], f2[1], f2[3], sal('s_cmp_lg_u32', s(sW), 2, nodst=True), f3[0], f3[2], f3[1], f3[3]])
        st(10)()
        P = [AQ0, AK0, AQ1, AK1]; RD, XT, NEG, SELR = R1, AV1, AV1 + 1, R8
        def finish():
            a.fence()
            a.ins(f's_branch {t}_loop')
        def publish():
            a.valu('v_cvt_pk_bf16_f32', v(RD), v(RD), v(RD + 2))
            a.salu('s_mov_b64', 'exec', s(sSTM, 2))
            a.vmem('buffer_store_dword', v(RD), v(MST), srd, s(sMST), mods='offen ' + fl, load=False)
            st(11)()
        def reset():
            a.vmem('buffer_store_dword', v(NEG), v(MST), srd, s(sMRS), mods='offen ' + fl, load=False)
            a.salu('s_mov_b64', 'exec', -1)
        def idle(pre=True):
            a.ds('ds_read_b128', v(SELR, 4), v(L16), mods=f'offset:{L_SEL - B_LW1}')
            if pre: prefetch_top()
            a.salu('s_add_u32', s(sSTEP), s(sSTEP), 1); a.salu('s_mov_b32', s(sMEM), s(sT1))
            a.salu('s_add_u32', s(sKX), s(sKX), 32 * 16384); a.salu('s_add_u32', s(sPF), s(sPF), 32 * 16384); a.salu('s_min_u32', s(sPF), s(sPF), s(sAL))
            offsets(); a.valu('v_mov_b32', v(NEG), -1)
            a.salu('s_add_u32', s(sFV), s(sFV), 24 * 512)
            a.salu('s_mov_b32', s(sT0), 1)
            if self.eo == 3: z2(R0, -1)()
        def reduce(lab, k, P, y=0, pre=False):
            a.label(f'{t}_chk{lab}')
            a.valu('v_mov_b32', v(XT), 0)
            for i in range(4):
                a.ins(f's_waitcnt vmcnt({4 * k - 1 - i + y})')
                chk = [val('v_bitop3_b32', v(XT), v(XT), v(r), s(sTAG), mods='bitop3:0xf6') for r in (P[i], P[i] + 2)]
                if k > 1 or pre: run(chk)
                a.mfma(MF32, v(RD, 4), v(P[i], 4), v(SELR, 4), 0 if i == 0 else v(RD, 4))
                if k == 1 and not pre: run(chk)
            a.valu('v_and_b32', v(XT), s(sT0), v(XT))
            a.valu('v_cmp_ne_u32', 'vcc', 0, v(XT))
            a.ins(f's_cbranch_vccnz {t}_spin{lab}')
            a.pos += 4
            a.valu('v_permlane32_swap_b32', v(RD), v(RD + 2)); a.valu('v_permlane32_swap_b32', v(RD + 1), v(RD + 3))
            a.valu('v_add_f32', v(RD), v(RD), v(RD + 2)); a.valu('v_add_f32', v(RD + 2), v(RD + 1), v(RD + 3))
        def retry(lab, P):
            a.label(f'{t}_spin{lab}')
            a.forget()
            shot(P)
            a.salu('s_sub_u32', s(sSPIN), s(sSPIN), 1)
            a.salu('s_cmp_lt_i32', s(sSPIN), 0, nodst=True)
            a.salu('s_cselect_b32', s(sT0), 0, 1)
            if self.eo == 3: a.ins('s_waitcnt vmcnt(0)')
            a.ins(f's_branch {t}_chk{lab}')
        a.ins(f's_cbranch_scc1 {t}_w013')
        a.fence()
        if self.eo != 3:
            if self.d0: a.nop(self.d0)
            shot(P0)
        idle(False); zero(0, 16)
        if self.k0 > 1: a.nop(self.pF); shot(P0)
        reduce('F', self.k0, P0, (2 if self.hx else 3) if self.eo == 3 else 0, self.eo == 3); publish(); reset()
        if self.k0 == 1: prefetch_top()
        a.nop(self.dB); poll0()
        if self.k0 > 1: a.ins('s_waitcnt vmcnt(1)'); prefetch_top()
        a.fence()
        a.ins(f's_branch {t}_loop2')
        a.label(f'{t}_w013')
        a.forget()
        idle()
        a.salu('s_cmp_eq_u32', s(sROLE), 0, nodst=True)
        a.ins(f's_cbranch_scc1 {t}_w0')
        a.salu('s_cmp_eq_u32', s(sW), 1, nodst=True)
        if self.dX: a.nop(self.dX)
        a.ins(f's_cbranch_scc1 {t}_sx')
        a.nop(self.d1 - self.dX)
        a.lines.append(f'{t}_sx:')
        shot(P)
        if self.k1 > 1: a.nop(self.pG); shot(P)
        if self.eo == 3: a.nop(self.dA); poll0()
        reduce('G', self.k1, P, 1 if self.eo == 3 else 0)
        a.salu('s_cmp_eq_u32', s(sW), 3, nodst=True)
        a.ins(f's_cbranch_scc1 {t}_w3')
        a.valu('v_mov_b32', v(RD + 1), v(RD)); a.valu('v_mov_b32', v(RD + 3), v(RD + 2))
        a.valu('v_permlane16_swap_b32', v(RD), v(RD + 1)); a.valu('v_permlane16_swap_b32', v(RD + 2), v(RD + 3))
        a.valu('v_add_f32', v(RD), v(RD), v(RD + 1)); a.valu('v_add_f32', v(RD + 2), v(RD + 2), v(RD + 3))
        a.label(f'{t}_w3')
        if self.k1 > 1: a.ins('s_cbranch_execz .+4') if 0 else None
        publish(); reset()
        poll0()
        if self.eo == 3:
            zero(0, 16); top(); a.ins('s_waitcnt vmcnt(3) lgkmcnt(0)'); a.fence(); a.ins(f's_branch {t}_chk0b')
        else: finish()
        a.label(f'{t}_w0')
        a.forget()
        zero(0, 16)
        if self.w0hook: self.w0hook(a)
        a.nop(self.dZ); poll0()
        a.ins(f's_branch {t}_loop2')
        retry('F', P0); retry('G', P)
        guard()
        a.label(f'{t}_spin0')
        a.forget()
        poll0()
        a.salu('s_sub_u32', s(sSPIN), s(sSPIN), 1)
        a.salu('s_cmp_lt_i32', s(sSPIN), 0, nodst=True)
        if r1: a.ins(f's_waitcnt vmcnt({self.ks - 1})')
        a.ins(f's_cbranch_scc0 {t}_chk0')
        a.ins('s_waitcnt vmcnt(0)')
        for r in range(4): a.valu('v_min_u32', v(R0 + r), -2, v(R0 + r))
        a.ins(f's_branch {t}_chk0')
        a.label(f'{t}_spin1')
        a.forget()
        poll1()
        a.salu('s_sub_u32', s(sSPIN), s(sSPIN), 1)
        a.salu('s_cmp_lt_i32', s(sSPIN), 0, nodst=True)
        a.ins(f's_waitcnt vmcnt({2 if r1 else 0})')
        run(c1 + [w1a, w1b, ins('s_waitcnt lgkmcnt(0)')])
        a.ins(f's_cbranch_scc1 {t}_go1')
        a.ins(f's_cbranch_vccnz {t}_spin1')
        a.ins(f's_branch {t}_go1')
        a.label(f'{t}_last')
        a.forget(); a.nop(2)
        a.salu('s_cmp_eq_u32', s(sSTEP), self.nsteps - 1, nodst=True)
        a.ins(f's_cbranch_scc1 {t}_last2')
        pubk(AQ0)
        a.salu('s_add_u32', s(sKM), s(sKM), 32 * 4096)
        a.salu('s_mov_b32', s(sNC1), '0xbf800000')
        a.salu('s_cmp_eq_u32', 0, 0, nodst=True)
        a.ins(f's_branch {t}_back')
        a.label(f'{t}_last2')
        M.update({8: R0, 1: R6, VL: R7})
        a.ins('s_waitcnt lgkmcnt(0)')
        run([lambda: pubk(AQ0), sal('s_add_u32', s(sT0), s(sNONCE), self.nsteps), val('v_mov_b32', v(R4), s(sT0)), ('v1', 1) if self.bf else None] + [(o, sl) for sl in (VL,) for o in ('v0', 'v1')]
            + [cvt(AV0, AV0), cvt(AV0 + 1, AV0 + 2), cvt(AV0 + 2, AV1), cvt(AV0 + 3, AV1 + 2), lambda: pubv(AV0)])
        flag(R4)
```

```python
import sys
sys.path.insert(0, 'gen2')
from asmfw import Asm
import chain2 as C, qkv2 as Q, attn2 as A, ssm as S
from chain2 import s, v
from build_ct import kd
NAME = 'concat_heads__memory_aug_recurrent_mem_tr__ssm_conv_s4d__prompt'
def start(a, name):
    a.raw(f'.text\n.globl {name}\n.p2align 8\n.type {name},@function\n{name}:')
def ws_srd(a, p):
    a.salu('s_mov_b32', 's4', s(p)); a.salu('s_mov_b32', 's5', s(p + 1))
    a.salu('s_mov_b32', 's6', C.WS_SIZE); a.salu('s_mov_b32', 's7', '0x20000')

sNONCE = C.sNONCE
DBG = 96
SY_ATT = C.WS_SYNC + 65536
D_NONCE, D_HELP, D_CH, D_ARR, D_SSM, D_T2, D_ATT, D_WF, D_OP = 64, 4, 128, 132, 8, 12, 16, 20, 136
D_XF2 = 24
D_MODE, D_CH2, D_ARR2, D_GO2 = 140, 208, 212, 216
XCC = [0]
NWARM = [5]
XD = [0]
OPS = [4]
DV = [70]
HDELAY = [0]
TMO = [1 << 17]
KVR = 2
CPS = [0]
D_POOL = 32
D_P2 = 160
D_QP = 68
NCH = [32]
FX = [0]
BOFF = [48]
ATS = [3]
MSL = [4]

DIAG = [0]
IFL = ['']
def diag(a, idx, val=None):
    if not DIAG[0]: return
    a.fence()
    a.ins('s_memrealtime s[90:91]'); a.ins('s_waitcnt lgkmcnt(0)')
    if val is not None: a.salu('s_mov_b32', 's90', val)
    a.salu('s_mov_b64', 's[100:101]', 'exec'); a.salu('s_mov_b64', 'exec', 1)
    a.valu('v_mov_b32', v(DV[0]), 's90')
    a.salu('s_lshl_b32', 's91', 's2', 8); a.salu('s_add_u32', 's91', 's91', 203 << 20)
    a.vmem('buffer_store_dword', v(DV[0]), 'off', 's[4:7]', 's91', mods=f'offset:{4 * idx}', load=False)
    a.salu('s_mov_b64', 'exec', 's[100:101]')
    a.nop(2)

LD = [0]
def ldiag(a, word, vreg, op='buffer_atomic_umax'):
    if not LD[0]: return
    a.fence()
    a.ins('s_memrealtime s[90:91]'); a.ins('s_waitcnt lgkmcnt(0)')
    a.salu('s_lshl_b32', 's91', 's2', 8); a.salu('s_add_u32', 's91', 's91', 203 << 20)
    a.valu('v_mov_b32', v(vreg), 's90')
    a.valu('v_cmp_eq_u32', 'vcc', 0, 'v0' if vreg > 200 else v(C.LH))
    a.salu('s_mov_b64', 'exec', 'vcc')
    a.vmem('buffer_store_dword', v(vreg), 'off', 's[4:7]', 's91', mods=f'offset:{4 * word}', load=False)
    a.salu('s_mov_b64', 'exec', -1)
    a.nop(2)

def scan(a, base, p2):
    _tk[0] += 1
    a.valu('v_and_b32', 'v1', 63, 'v0'); a.valu('v_min_u32', 'v1', 6, 'v1'); a.valu('v_lshlrev_b32', 'v2', 2, 'v1')
    a.salu('s_cmp_lg_u32', 's32', 0, nodst=True)
    a.valu('v_mov_b32', 'v251', 163832)
    a.ins(f's_cbranch_scc1 sw{_tk[0]}')
    a.vmem('buffer_load_dword', 'v3', 'v2', s(DBG, 4), 0, mods=f'offen offset:{base} sc1')
    a.valu('v_mov_b32', 'v4', (32, 24, 19)[p2])
    if p2 == 2: a.valu('v_cmp_eq_u32', 'vcc', 6, 'v1'); a.valu('v_cndmask_b32', 'v4', 'v4', 14, 'vcc', mods='')
    if p2 == 1: a.valu('v_cmp_gt_u32', 'vcc', 4, 'v1'); a.valu('v_cndmask_b32', 'v4', 'v4', 22, 'vcc', mods='')
    a.wait(vm='all')
    a.valu('v_cmp_lt_u32', 'vcc', 'v3', 'v4')
    a.salu('s_ff1_i32_b64', 's40', 'vcc')
    a.valu('v_mov_b32', 'v250', 's40')
    a.ds('ds_write_b32', 'v251', 'v250')
    a.wait(lds='all')
    a.label(f'sw{_tk[0]}')
    a.ins('s_barrier')
    a.ds('ds_read_b32', 'v252', 'v251')
    a.wait(lds='all')
    a.valu('v_readfirstlane_b32', 's33', 'v252')
    a.ins('s_barrier')
    a.nop(2)

def dsel(a, idx):
    if not DIAG[0]: return
    L = f'ds{len(a.lines)}'
    a.salu('s_cmp_ge_u32', 's36', 192, nodst=True)
    a.ins(f's_cbranch_scc1 {L}')
    diag(a, idx)
    a.ins('s_memtime s[88:89]'); a.ins('s_waitcnt lgkmcnt(0)'); diag(a, idx + 40, 's88')
    a.ins(f's_branch {L}x')
    a.label(L)
    diag(a, idx + 5)
    a.label(L + 'x')

def trace(a, base, sidx, k):
    if not DIAG[0]: return
    a.fence()
    a.ins('s_memrealtime s[90:91]'); a.ins('s_waitcnt lgkmcnt(0)')
    a.salu('s_lshl_b32', 's92', s(sidx), 4); a.salu('s_add_u32', 's92', 's92', (201 << 20) + base + 4 * k)
    a.valu('v_mov_b32', 'v249', 's90')
    a.salu('s_mov_b64', 'exec', 1)
    a.vmem('buffer_store_dword', 'v249', 'off', 's[4:7]', 's92', load=False)
    a.salu('s_mov_b64', 'exec', -1)
    a.nop(2)

_tk = [0]
def get_nonce(a, vd):
    _tk[0] += 1
    L = f'gn{_tk[0]}'
    a.fence()
    a.salu('s_mov_b32', 's88', 1 << 22)
    a.label(L)
    a.salu('s_cmp_lg_u32', s(sNONCE), 0, nodst=True)
    a.ins(f's_cbranch_scc1 {L}x')
    a.vmem('buffer_load_dword', v(vd), 'off', s(DBG, 4), 0, mods=f'offset:{D_NONCE} sc1')
    a.salu('s_sub_u32', 's88', 's88', 1)
    a.ins(f's_cbranch_scc1 {L}x')
    a.ins('s_waitcnt vmcnt(0)')
    a.valu('v_readfirstlane_b32', s(sNONCE), v(vd))
    a.nop(2)
    a.ins(f's_branch {L}')
    a.label(f'{L}x')

def ticket(a, dst, off, vb=250, mid=None, nyoung=0):
    _tk[0] += 1
    L = f'tk{_tk[0]}'
    a.fence()
    a.salu('s_mov_b32', 's37', off)
    a.valu('v_mov_b32', v(vb), 1)
    a.valu('v_mov_b32', v(vb + 1), 163832)
    a.valu('v_cmp_eq_u32', 'vcc', 0, 'v0')
    a.salu('s_and_saveexec_b64', 's[38:39]', 'vcc')
    a.ins(f's_cbranch_execz {L}' + ('m' if mid else ''))
    a.vmem('buffer_atomic_add', v(vb), 'off', s(DBG, 4), 's37', mods='sc0')
    if mid:
        a.label(L + 'm')
        a.salu('s_mov_b64', 's[38:39]', 'exec')
        a.salu('s_mov_b64', 'exec', -1)
        mid()
        a.salu('s_mov_b64', 'exec', 's[38:39]')
        a.ins(f's_cbranch_execz {L}')
    a.ins(f's_waitcnt vmcnt({nyoung})'); a.done['vm'] = a.vm_seq
    a.ds('ds_write_b32', v(vb + 1), v(vb))
    a.wait(lds='all')
    a.label(L)
    a.salu('s_mov_b64', 'exec', -1)
    a.ins('s_barrier')
    a.ds('ds_read_b32', v(vb + 2), v(vb + 1))
    a.wait(lds='all')
    a.valu('v_readfirstlane_b32', s(dst), v(vb + 2))
    a.ins('s_barrier')
    a.nop(4)

def flag_store(a, soff):
    _tk[0] += 1
    a.ins('s_waitcnt vmcnt(0)')
    a.ins('s_barrier')
    a.valu('v_mov_b32', 'v250', s(sNONCE))
    a.valu('v_cmp_eq_u32', 'vcc', 0, 'v0')
    a.salu('s_and_saveexec_b64', 's[38:39]', 'vcc')
    a.ins(f's_cbranch_execz fs{_tk[0]}')
    a.vmem('buffer_store_dword', 'v250', 'off', 's[4:7]', soff, mods='sc1', load=False)
    a.label(f'fs{_tk[0]}')
    a.salu('s_mov_b64', 'exec', -1)

def flags_wait(a, soff, lo, hi, va, vd, sleep=2):
    _tk[0] += 1
    L = f'fw{_tk[0]}'
    a.fence()
    a.valu('v_mbcnt_lo_u32_b32', v(va), -1, 0)
    a.valu('v_mbcnt_hi_u32_b32', v(va), -1, v(va))
    a.valu('v_min_u32', v(va), hi - lo - 1, v(va))
    a.valu('v_lshlrev_b32', v(va), 2, v(va))
    a.salu('s_mov_b32', 's88', 1 << 22)
    a.label(L)
    a.vmem('buffer_load_dword', v(vd), v(va), 's[4:7]', soff, mods=f'offen offset:{4 * lo} sc1')
    a.salu('s_sub_u32', 's88', 's88', 1)
    a.ins(f's_cbranch_scc1 {L}x')
    a.ins('s_waitcnt vmcnt(0)')
    a.valu('v_cmp_ne_u32', 'vcc', s(sNONCE), v(vd))
    a.ins(f's_cbranch_vccz {L}x')
    a.ins(f's_sleep {sleep}')
    a.salu('s_cmp_gt_u32', 's88', (1 << 22) - BOFF[0], nodst=True)
    a.ins(f's_cbranch_scc1 {L}')
    a.ins('s_sleep 40')
    a.ins(f's_branch {L}')
    a.label(f'{L}x')

def coarse_wait(a, sseg, vd, shp):
    _tk[0] += 1
    L = f'cw{_tk[0]}'
    a.fence()
    a.salu('s_mov_b32', 's88', 1 << 16)
    a.label(L)
    a.vmem('buffer_load_dword', v(vd), 'off', 's[4:7]', s(shp), mods='offset:128 sc1')
    a.ins('s_waitcnt vmcnt(0)')
    a.valu('v_readfirstlane_b32', 's42', v(vd))
    a.salu('s_sub_u32', 's42', 's42', s(sNONCE))
    a.salu('s_cmp_gt_u32', 's42', 64, nodst=True)
    a.salu('s_cselect_b32', 's42', 0, 's42')
    a.salu('s_add_u32', 's42', 's42', 2)
    a.salu('s_cmp_ge_u32', 's42', s(sseg), nodst=True)
    a.ins(f's_cbranch_scc1 {L}x')
    a.salu('s_sub_u32', 's88', 's88', 1)
    a.ins(f's_cbranch_scc1 {L}x')
    a.salu('s_sub_u32', 's42', s(sseg), 's42')
    a.salu('s_min_u32', 's42', 's42', 6)
    a.label(f'{L}s')
    a.ins('s_sleep 24')
    a.salu('s_sub_u32', 's42', 's42', 1)
    a.salu('s_cmp_lg_u32', 's42', 0, nodst=True)
    a.ins(f's_cbranch_scc1 {L}s')
    a.ins(f's_branch {L}')
    a.label(f'{L}x')

def prog_wait(a, lab, va, vd, vneed, sbase, sleep, scnt='s40'):
    a.salu('s_mov_b32', scnt, 1 << 22)
    a.label(lab)
    a.vmem('buffer_load_dword', v(vd), v(va), 's[4:7]', sbase, mods='offen sc1')
    a.salu('s_sub_u32', scnt, scnt, 1)
    a.ins(f's_cbranch_scc1 {lab}_go')
    a.ins('s_waitcnt vmcnt(0)')
    a.valu('v_subrev_u32', v(vd), vneed, v(vd))
    a.valu('v_cmp_lt_u32', 'vcc', 64, v(vd))
    a.ins(f's_cbranch_vccz {lab}_go')
    a.ins(f's_sleep {sleep}')
    a.ins(f's_branch {lab}')
    a.label(f'{lab}_go')

def k_main(a, hd=0, hg=0, warm=0, msl=4, cp=1, wt=1, qw=9, qx=0, kvr=2, cop=0, nat=10, qp=0, wm=9, tlb=0, tsh=20, xs=0, ops=2, ats=1, leak=0, wl=9, **kw):
    global KVR
    KVR = kvr
    n = NAME + '_kernel'
    DV[0] = 59
    start(a, n)
    if leak == 4: a.ins('s_memrealtime s[100:101]')
    a.salu('s_cmp_ge_u32', 's2', 256, nodst=True)
    a.ins('s_cbranch_scc1 L_exit')
    a.ins('s_load_dwordx4 s[84:87], s[0:1], 120')
    a.ins('s_load_dwordx16 s[48:63], s[0:1], 0')
    a.valu('v_lshrrev_b32', 'v1', 6, 'v0')
    a.valu('v_readfirstlane_b32', 's32', 'v1')
    a.ins('s_getreg_b32 s3, hwreg(HW_REG_XCC_ID)')
    a.salu('s_and_b32', 's3', 's3', 15)
    a.salu('s_cmp_lg_u32', 's32', 3, nodst=True)
    a.ins('s_cbranch_scc1 L_nowarm')
    a.ins('s_getpc_b64 s[44:45]')
    a.label('L_pcw')
    a.valu('v_and_b32', 'v1', 63, 'v0')
    a.valu('v_lshlrev_b32', 'v1', 7, 'v1')
    a.salu('s_cmp_lg_u32', 's3', XCC[0], nodst=True)
    a.salu('s_cselect_b32', 's33', 'L_helper-L_pcw', 0)
    a.valu('v_add_u32', 'v1', 's33', 'v1')
    for i in range(NWARM[0]):
        if i == 2: a.ins('s_cbranch_scc0 L_nowarm')
        a.valu('v_min_u32', 'v2', 'L_exit-L_pcw', 'v1')
        a.vmem('global_load_dword', v(240 + i), 'v2', 's[44:45]')
        a.valu('v_add_u32', 'v1', 8192, 'v1')
    a.label('L_nowarm')
    a.forget()
    a.ins('s_waitcnt lgkmcnt(0)')
    if leak == 5: a.ins('s_memrealtime s[100:101]')
    ws_srd(a, 86)
    a.salu('s_mov_b32', s(DBG), 's84'); a.salu('s_mov_b32', s(DBG + 1), 's85')
    a.salu('s_mov_b32', s(DBG + 2), 256); a.salu('s_mov_b32', s(DBG + 3), '0x20000')
    a.salu('s_mov_b32', s(sNONCE), 0)
    diag(a, 0)
    a.salu('s_cmp_lg_u32', 's3', XCC[0], nodst=True)
    a.ins('s_cbranch_scc1 L_helper')
    lanes = C.Chain(a, 'x', gs=kw.get('gs', 2))
    def mid():
        if tlb:
            a.salu('s_cmp_lg_u32', 's32', 0, nodst=True)
            a.ins('s_cbranch_scc1 L_notlb')
            a.valu('v_lshlrev_b32', 'v1', 21, 'v0'); a.valu('v_add_u32', 'v2', (2 << 20) - 128, 'v1')
            pages = [0, 32, 43, 44, 46, 47, 48, 60]
            m_ = sum(1 << p for p in pages)
            a.salu('s_mov_b32', 'exec_lo', m_ & 0xffffffff); a.salu('s_mov_b32', 'exec_hi', m_ >> 32)
            a.ins('buffer_load_dword v246, v2, s[4:7], 0 offen sc1')
            a.salu('s_mov_b64', 'exec', 7)
            a.salu('s_mov_b32', 's14', 576 * 8192); a.salu('s_mov_b32', 's15', '0x20000')
            if tlb > 1:
                for p in (58, 56, 54, 52):
                    a.salu('s_mov_b64', 's[12:13]', s(p, 2))
                    a.ins('buffer_load_dword v246, v1, s[12:15], 0 offen')
            a.salu('s_mov_b32', 's14', 9216); a.salu('s_mov_b64', 's[12:13]', 's[50:51]')
            a.ins('buffer_load_dword v246, v1, s[12:15], 0 offen')
            a.salu('s_mov_b64', 'exec', -1)
            a.label('L_notlb')
        lanes.load_lanes()
    ticket(a, C.sH, D_CH, mid=mid, nyoung=(0, 2, 6)[tlb])
    a.salu('s_cmp_ge_u32', s(C.sH), NCH[0], nodst=True)
    a.ins('s_cbranch_scc1 L_helper')
    a.label('L_chain')
    diag(a, 14)
    ldiag(a, 0, 250)
    if leak and leak < 4: a.ins('s_memrealtime s[100:101]'); a.ins('s_waitcnt lgkmcnt(0)')
    diag(a, 15, s(C.sH))
    if DIAG[0]:
        a.ins('s_getreg_b32 s89, hwreg(HW_REG_HW_ID)'); diag(a, 12, 's89')
    def kvaddr(a, va, sb, q=0):
        a.salu('s_lshr_b32', s(sb), s(C.sH), 1); a.salu('s_lshl_b32', s(sb), s(sb), 8); a.salu('s_add_u32', s(sb), s(sb), Q.SY_PRG + q)
        a.valu('v_bfe_u32', v(va), v(C.LH), 4, 6); a.valu('v_min_u32', v(va), 11, v(va)); a.valu('v_lshlrev_b32', v(va), 2, v(va))
    def kvwait(a, lab, need, va, vd):
        kvaddr(a, va, 92, 4096 if need == Q.DONE else 0)
        a.salu('s_add_u32', 's93', s(sNONCE), need)
        prog_wait(a, lab, va, vd, 's93', 's92', 2, scnt='s94')
    def hook(a):
        if not DIAG[0]: return
        a.salu('s_lshl_b32', 's88', s(C.sH), 2); a.salu('s_add_u32', 's88', 's88', s(C.sW))
        a.salu('s_cmp_lg_u32', 's88', 0, nodst=True)
        a.ins('s_cbranch_scc1 L_nohook')
        a.ins('s_memrealtime s[90:91]'); a.ins('s_memtime s[72:73]'); a.ins('s_waitcnt lgkmcnt(0)')
        a.valu('v_mov_b32', v(C.Rq[1]), 's90'); a.valu('v_mov_b32', v(C.Rq[1] + 1), 's72')
        a.salu('s_lshl_b32', 's88', s(C.sSTEP), 3); a.salu('s_add_u32', 's88', 's88', 200 << 20)
        a.vmem('buffer_store_dwordx2', v(C.Rq[1], 2), 'off', 's[4:7]', 's88', load=False)
        a.label('L_nohook')
        a.fence()
    def chain_body(tag, safe):
        for i in range(5): a.salu('s_mov_b64', s(C.sPTR + 2 * i, 2), s(C.sPTR + 2 * i + 2, 2))
        def cpywait(a, notyet):
            if notyet is None:
                L = f'{tag}_cpe{len(a.lines)}'
                a.salu('s_cmp_eq_u32', 's88', 0, nodst=True)
                a.ins(f's_cbranch_scc1 {L}')
                a.salu('s_lshl_b32', 's89', 's73', 7); a.salu('s_add_u32', 's89', 's89', C.SY_CPY)
                a.valu('v_min_u32', 'v33', 11, 'v57'); a.valu('v_lshlrev_b32', 'v33', 2, 'v33')
                a.ins(f'buffer_load_dword v34, off, s[{DBG}:{DBG+3}], 0 offset:{D_NONCE} sc1')
                a.ins('buffer_load_dword v35, v33, s[4:7], s89 offen sc1')
                a.lines.append(L + ':')
                CPS[0] = a.vm_seq
                return
            d0 = dict(a.done)
            a.wait(vm=CPS[0])
            a.done = d0
            a.valu('v_max_u32', 'v34', 1, 'v34')
            a.valu('v_cmp_eq_u32', 'vcc', 1, 'v34')
            a.ins(f's_cbranch_vccnz {notyet}')
            a.valu('v_cmp_ne_u32', 'vcc', 'v34', 'v35')
            a.ins(f's_cbranch_vccnz {notyet}')
        def w0hook(a):
            if not safe: hook(a)
            a.salu('s_cmp_lg_u32', s(C.sSTEP), 6 * KVR - 2, nodst=True)
            a.ins(f's_cbranch_scc1 {tag}_nokv')
            kvwait(a, f'{tag}_kv1', Q.DONE, C.Rq[1], C.Rq[1] + 1)
            ldiag(a, 5, C.Rq[1])
            a.label(f'{tag}_nokv')
        if safe: ch = C.Chain(a, tag, fl='sc1', lfl='sc1', xoff=C.XOFF, d0=200, d1=200, dB=100, dZ=400, ks=1, w0hook=w0hook, spinmax=1 << 20)
        else: ch = C.Chain(a, tag, cpy=cpywait if cp else None, ptrace=(lambda a, j: diag(a, 16 + j)), w0hook=w0hook, spinmax=1 << 20, **kw)
        if safe: ch.load_lanes()
        arr, mode = (D_ARR2, D_GO2) if safe else (D_ARR, D_MODE)
        def st1(a):
            a.valu('v_mov_b32', 'v46', 1)
            a.salu('s_mov_b64', 'exec', 1)
            a.vmem('buffer_atomic_add', 'v46', 'off', s(DBG, 4), 0, mods=f'offset:{arr} sc0')
            a.salu('s_mov_b64', 'exec', -1)
        def st2(a):
            a.valu('v_readfirstlane_b32', 's41', 'v46')
            a.valu('v_mov_b32', 'v46', 1); a.valu('v_mov_b32', 'v47', 0)
            a.salu('s_cmp_eq_u32', 's41', 127, nodst=True)
            a.salu('s_cselect_b64', 'exec', 1, 0)
            a.vmem('buffer_atomic_cmpswap', 'v[46:47]', 'off', s(DBG, 4), 0, mods=f'offset:{mode}', load=False)
            a.salu('s_mov_b64', 'exec', -1)
        def st3(a):
            a.vmem('buffer_load_dword', 'v24', 'off', s(DBG, 4), 0, mods=f'offset:{mode} sc1')
            a.vmem('buffer_load_dword', 'v25', 'off', s(DBG, 4), 0, mods=f'offset:{D_NONCE} sc1')
            kvaddr(a, 26, 84)
            a.vmem('buffer_load_dword', 'v27', 'v26', 's[4:7]', 's84', mods='offen sc1')
        def st4(a):
            a.valu('v_readfirstlane_b32', s(sNONCE), 'v25')
            a.valu('v_readfirstlane_b32', 's85', 'v24')
            a.salu('s_add_u32', 's86', s(sNONCE), KVR)
            a.valu('v_subrev_u32', 'v27', 's86', 'v27')
            a.valu('v_cmp_lt_u32', 's[86:87]', 64, 'v27')
            a.salu('s_cmp_eq_u32', s(sNONCE), 0, nodst=True)
            a.salu('s_cselect_b64', 's[86:87]', -1, 's[86:87]')
            a.salu('s_cmp_lg_u64', 's[86:87]', 0, nodst=True)
            a.ins(f's_cbranch_scc1 {tag}_nt')
            ch.touch_kv()
            a.lines.append(f'{tag}_nt:')
        def late(a):
            q0, d0 = a.vm_seq, dict(a.done)
            get_nonce(a, 27)
            a.vm_seq, a.done = q0, d0
        ch.prologue(st1, st2, st3, st4, late)
        diag(a, 2)
        if hd: ldiag(a, 4, 26)
        a.salu('s_cmp_eq_u32', 's85', 1, nodst=True)
        a.ins(f's_cbranch_scc1 {tag}_run')
        a.salu('s_mov_b32', 's40', (1 << 24) if safe else TMO[0])
        a.label(f'{tag}_startpoll')
        a.vmem('buffer_load_dword', 'v3', 'off', s(DBG, 4), 0, mods=f'offset:{mode} sc1')
        a.wait(vm='all')
        a.valu('v_readfirstlane_b32', 's85', 'v3')
        a.salu('s_cmp_eq_u32', 's85', 1, nodst=True)
        a.ins(f's_cbranch_scc1 {tag}_run')
        if not safe:
            a.salu('s_cmp_eq_u32', 's85', 2, nodst=True)
            a.ins(f's_cbranch_scc1 {tag}_leave')
        a.ins('s_sleep 1')
        a.salu('s_sub_u32', 's40', 's40', 1)
        a.ins(f's_cbranch_scc0 {tag}_startpoll')
        if safe: a.ins('s_endpgm')
        else:
            a.valu('v_mov_b32', 'v4', 2); a.valu('v_mov_b32', 'v5', 0)
            a.salu('s_mov_b64', 'exec', 1)
            a.vmem('buffer_atomic_cmpswap', 'v[4:5]', 'off', s(DBG, 4), 0, mods=f'offset:{D_MODE}', load=False)
            a.salu('s_mov_b64', 'exec', -1)
            a.salu('s_mov_b32', 's40', 1 << 20)
            a.ins(f's_branch {tag}_startpoll')
            a.label(f'{tag}_leave')
            a.valu('v_lshrrev_b32', 'v0', 4, v(C.LH))
            a.salu('s_mov_b32', 's32', s(C.sW))
            a.ins('s_load_dwordx16 s[48:63], s[0:1], 0')
            a.ins('s_waitcnt lgkmcnt(0)')
            a.ins('s_branch L_helper')
        a.label(f'{tag}_run')
        diag(a, 3)
        a.salu('s_cmp_eq_u64', 's[86:87]', 0, nodst=True)
        a.ins(f's_cbranch_scc1 {tag}_kvok')
        kvwait(a, f'{tag}_kv0', KVR, 2, 3)
        ch.touch_kv()
        a.ins('s_waitcnt vmcnt(0)')
        a.label(f'{tag}_kvok')
        ch.loop_init()
        diag(a, 4)
        if not hd: ldiag(a, 4, 24)
        if leak: a.ins('s_memrealtime s[90:91]'); a.ins('s_waitcnt lgkmcnt(0)'); a.salu('s_mov_b32', 's101', 's90')
        if not safe and DIAG[0]: print(ch.outs, [(j[1], j[3] // 1024) for j in ch.sched])
        ch.step()
        diag(a, 5)
        ldiag(a, 6, 24)
        if leak and not safe:
            a.ins('s_memrealtime s[90:91]'); a.ins('s_waitcnt lgkmcnt(0)')
            if leak in (1, 4, 5): a.salu('s_add_u32', 's92', 's100', 20000)
            elif leak == 2: a.salu('s_add_u32', 's92', 's90', 1000)
            elif leak == 3: a.salu('s_add_u32', 's92', 's101', 20000)
            a.label('L_leak')
            a.ins('s_memrealtime s[90:91]'); a.ins('s_waitcnt lgkmcnt(0)')
            a.salu('s_sub_u32', 's93', 's92', 's90'); a.salu('s_cmp_gt_i32', 's93', 0, nodst=True)
            a.ins('s_cbranch_scc1 L_leak')
        a.ins('s_endpgm')
        ch.load_sub()
    chain_body('cf', False)
    a.label('L_chain_safe')
    a.forget()
    chain_body('cs', True)
    def mode_check(lab):
        a.salu('s_mov_b32', 's40', 4 * TMO[0])
        a.label(f'{lab}_w')
        a.vmem('buffer_load_dword', 'v250', 'off', s(DBG, 4), 0, mods=f'offset:{D_MODE} sc1')
        a.wait(vm='all')
        a.valu('v_readfirstlane_b32', 's41', 'v250')
        a.salu('s_cmp_lg_u32', 's41', 0, nodst=True)
        a.ins(f's_cbranch_scc1 {lab}_known')
        a.salu('s_sub_u32', 's40', 's40', 1)
        a.ins(f's_cbranch_scc1 {lab}_force')
        a.ins('s_sleep 2')
        a.ins(f's_branch {lab}_w')
        a.label(f'{lab}_force')
        a.valu('v_mov_b32', 'v250', 2); a.valu('v_mov_b32', 'v251', 0)
        a.salu('s_mov_b64', 'exec', 1)
        a.vmem('buffer_atomic_cmpswap', 'v[250:251]', 'off', s(DBG, 4), 0, mods=f'offset:{D_MODE}', load=False)
        a.salu('s_mov_b64', 'exec', -1)
        a.ins('s_waitcnt vmcnt(0)')
        a.salu('s_mov_b32', 's40', 4 * TMO[0])
        a.ins(f's_branch {lab}_w')
        a.label(f'{lab}_known')
    a.forget()
    a.label('L_helper')
    DV[0] = 249
    a.forget()
    a.ins('s_load_dwordx16 s[64:79], s[0:1], 64')
    a.salu('s_sub_u32', 's33', 's3', XCC[0] + 1); a.salu('s_and_b32', 's33', 's33', 3 if FX[0] else 7)
    a.label('L_pool')
    a.salu('s_lshl_b32', 's35', 's33', 2); a.salu('s_add_u32', 's35', 's35', D_POOL)
    ticket(a, 34, 's35')
    a.salu('s_mov_b32', 's36', 's33')
    a.salu('s_or_b32', 's33', 's34', 's32')
    a.salu('s_cmp_lg_u32', 's33', 0, nodst=True)
    a.ins('s_cbranch_scc1 L_helper1')
    a.ins('s_memrealtime s[90:91]'); a.ins('s_waitcnt lgkmcnt(0)')
    a.salu('s_lshl_b32', 's90', 's90', 8); a.salu('s_or_b32', 's90', 's90', 1)
    a.valu('v_mov_b32', 'v250', 's90'); a.valu('v_mov_b32', 'v251', 0)
    a.salu('s_mov_b64', 'exec', 1)
    a.vmem('buffer_atomic_cmpswap', 'v[250:251]', 'off', s(DBG, 4), 0, mods=f'offset:{D_NONCE}', load=False)
    a.salu('s_mov_b64', 'exec', -1)
    a.label('L_helper1')
    diag(a, 9)
    a.salu('s_cmp_ge_u32', 's34', 32, nodst=True)
    a.ins('s_cbranch_scc1 L_qkv_next')
    a.salu('s_cmp_ge_u32', 's36', 7, nodst=True)
    a.ins('s_cbranch_scc1 L_qkv_next')
    a.salu('s_max_u32', 's37', 's36', 4); a.salu('s_sub_u32', 's37', 's37', 4); a.salu('s_mul_i32', 's37', 's37', 6)
    a.salu('s_lshl_b32', 's38', 's36', 1); a.salu('s_add_u32', 's38', 's38', 's37')
    a.salu('s_cmp_lt_u32', 's36', 4, nodst=True); a.salu('s_cselect_b32', 's39', 2, 8)
    a.salu('s_mul_i32', 's36', 's36', 30); a.salu('s_sub_u32', 's36', 's36', 's37')
    a.salu('s_cmp_lt_u32', 's34', 's39', nodst=True)
    a.ins('s_cbranch_scc1 L_copy')
    a.salu('s_add_u32', 's36', 's36', 's34'); a.salu('s_sub_u32', 's36', 's36', 's39')
    if warm:
        a.salu('s_cmp_lg_u32', s(sNONCE), 0, nodst=True)
        a.ins('s_cbranch_scc1 L_nowm')
        a.salu('s_mul_i32', 's37', 's36', 24576)
        a.salu('s_mov_b32', 's14', 576 * 8192); a.salu('s_mov_b32', 's15', '0x20000')
        a.salu('s_mov_b32', 'm0', 155648)
        if warm == 1:
            a.valu('v_lshlrev_b32', 'v1', 7, 'v0'); a.valu('v_min_u32', 'v1', 24576 - 128, 'v1')
        else: a.valu('v_lshlrev_b32', 'v1', 4, 'v0')
        for p in [x for i, x in enumerate((58, 56, 54, 52)) if wm >> i & 1]:
            a.salu('s_mov_b64', 's[12:13]', s(p, 2))
            if warm == 1:
                a.raw('    buffer_load_dword v1, s[12:15], s37 offen lds')
            else:
                for i in range(6):
                    a.salu('s_add_u32', 's38', 's37', min(i * 4096, 21504 - 4096))
                    a.raw('    buffer_load_dwordx4 v1, s[12:15], s38 offen lds')
        a.label('L_nowm')
    a.salu('s_mul_i32', 's37', 's36', 171); a.salu('s_lshr_b32', 's37', 's37', 10)
    a.salu('s_mul_i32', 's38', 's37', 6); a.salu('s_sub_u32', 's36', 's36', 's38')
    a.salu('s_lshl_b32', 's36', 's36', 5); a.salu('s_add_u32', 's36', 's36', 's37')
    if hd:
        a.salu('s_cmp_lt_u32', 's36', 32 * hg, nodst=True); a.ins('s_cbranch_scc1 L_job')
        for i in range(hd): a.ins('s_sleep 127')
    a.ins('s_branch L_job')
    a.label('L_copy')
    if 1:
        a.salu('s_add_u32', 's36', 's38', 's34')
        a.salu('s_mul_i32', 's36', 's36', 11); a.salu('s_and_b32', 's36', 's36', 31)
        a.salu('s_cmp_ge_u32', 's36', 27 if cp else 0, nodst=True)
        a.ins('s_cbranch_scc1 L_qkv_next')
        a.salu('s_mul_i32', 's33', 's36', 57); a.salu('s_lshr_b32', 's33', 's33', 9)
        a.salu('s_mul_i32', 's37', 's33', 9); a.salu('s_sub_u32', 's37', 's36', 's37')
        a.salu('s_lshl_b32', 's36', 's37', 2); a.salu('s_add_u32', 's36', 's36', 1); a.salu('s_min_u32', 's36', 's36', 31)
        a.salu('s_lshr_b32', 's39', 's52', 8); a.salu('s_sub_u32', 's36', 's36', 's39'); a.salu('s_and_b32', 's36', 's36', 31)
        a.salu('s_lshl_b32', 's36', 's36', 8)
        a.salu('s_mov_b32', 's14', 576 * 8192); a.salu('s_mov_b32', 's15', '0x20000')
        a.valu('v_lshrrev_b32', 'v1', 4, 'v0'); a.valu('v_lshlrev_b32', 'v1', 13, 'v1'); a.valu('v_and_b32', 'v2', 15, 'v0'); a.valu('v_lshl_add_u32', 'v1', 'v2', 4, 'v1')
        a.valu('v_lshlrev_b32', 'v2', 4, 'v0')
        NR = 3 if kw.get('swn', 4) < 4 else 2
        a.salu('s_mul_i32', 's40', 's33', NR); a.salu('s_mul_i32', 's39', 's40', 192 * 256); a.salu('s_lshl_b32', 's41', 's37', 19); a.salu('s_add_u32', 's39', 's39', 's41')
        a.salu('s_add_u32', 's39', 's39', C.WS_CPY)
        for h_ in range(NR):
            a.salu('s_add_u32', 's41', 's40', h_)
            a.salu('s_cmp_lt_u32', 's41', 3, nodst=True)
            a.salu('s_cselect_b64', 's[12:13]', 's[52:53]', 's[54:55]')
            a.salu('s_cselect_b32', 's42', 0, 3)
            a.salu('s_cmp_ge_u32', 's41', 6, nodst=True); a.salu('s_cselect_b64', 's[12:13]', 's[56:57]', 's[12:13]'); a.salu('s_cselect_b32', 's42', 6, 's42')
            a.salu('s_sub_u32', 's41', 's41', 's42')
            a.salu('s_mul_i32', 's38', 's41', 192 * 8192); a.salu('s_add_u32', 's38', 's38', 's36')
            for i in range(12):
                a.vmem('buffer_load_dwordx4', v(8 + 48 * h_ + 4 * i, 4), 'v1', 's[12:15]', 's38', mods='offen')
                a.salu('s_add_u32', 's38', 's38', 16 * 8192)
        a.vmem('buffer_load_dword', 'v3', 'off', s(DBG, 4), 0, mods=f'offset:{D_NONCE} sc1')
        a.wait(vm='all')
        for i in range(12 * NR):
            a.vmem('buffer_store_dwordx4', v(8 + 4 * i, 4), 'v2', 's[4:7]', 's39', mods='offen sc1', load=False, data=v(8 + 4 * i, 4))
            a.salu('s_add_u32', 's39', 's39', 4096)
        a.valu('v_readfirstlane_b32', s(sNONCE), 'v3')
        get_nonce(a, 3)
        a.salu('s_lshl_b32', 's37', 's37', 7); a.salu('s_lshl_b32', 's36', 's33', 2); a.salu('s_add_u32', 's36', 's36', 's32')
        a.salu('s_lshl_b32', 's36', 's36', 2); a.salu('s_add_u32', 's37', 's37', 's36'); a.salu('s_add_u32', 's37', 's37', C.SY_CPY)
        a.valu('v_mov_b32', 'v3', s(sNONCE))
        a.ins('s_waitcnt vmcnt(0)')
        a.salu('s_mov_b64', 'exec', 1)
        a.vmem('buffer_store_dword', 'v3', 'off', 's[4:7]', 's37', mods='sc1', load=False)
        a.salu('s_mov_b64', 'exec', -1)
        diag(a, 44)
    a.label('L_qkv_next')
    if qp:
        a.salu('s_sub_u32', 's33', 's3', XCC[0] + 1); a.salu('s_and_b32', 's33', 's33', 3 if FX[0] else 7)
        a.salu('s_cmp_eq_u32', 's33', 7, nodst=True)
        a.ins('s_cbranch_scc1 L_qscan')
        a.label('L_qtake')
        a.salu('s_lshl_b32', 's35', 's33', 2); a.salu('s_add_u32', 's35', 's35', D_QP)
        ticket(a, 34, 's35')
        a.salu('s_mul_i32', 's36', 's33', 19); a.salu('s_add_u32', 's36', 's36', 's34')
        a.salu('s_cmp_ge_u32', 's34', 19, nodst=True); a.salu('s_cselect_b32', 's36', 128, 's36')
        a.salu('s_cmp_lt_u32', 's36', 128, nodst=True)
        a.ins('s_cbranch_scc1 L_qjob')
        a.label('L_qscan')
        scan(a, D_QP, 2)
        a.salu('s_cmp_lt_u32', 's33', 7, nodst=True)
        a.ins('s_cbranch_scc1 L_qtake')
        a.ins('s_branch L_ssm_next')
        a.label('L_qjob')
        a.salu('s_and_b32', 's37', 's36', 7); a.salu('s_lshl_b32', 's37', 's37', 4); a.salu('s_lshr_b32', 's36', 's36', 3)
        a.salu('s_add_u32', 's36', 's36', 's37'); a.salu('s_add_u32', 's36', 's36', 192)
    else:
        ticket(a, 36, D_HELP)
        a.salu('s_add_u32', 's36', 's36', 192)
        a.salu('s_cmp_ge_u32', 's36', 320, nodst=True)
        a.ins('s_cbranch_scc1 L_ssm_next')
    a.label('L_job')
    a.salu('s_and_b32', s(Q.sHh), 's36', 15); a.salu('s_lshl_b32', s(Q.sHh), s(Q.sHh), 1)
    a.salu('s_bfe_u32', s(Q.sM), 's36', '0x10004')
    a.salu('s_lshr_b32', s(Q.sSEG), 's36', 5)
    a.salu('s_mul_i32', 's33', s(Q.sM), 6); a.salu('s_add_u32', 's33', 's33', s(Q.sSEG))
    a.salu('s_add_u32', s(Q.sM), s(Q.sM), 1)
    a.salu('s_lshr_b32', 's37', 's36', 4); a.salu('s_sub_u32', 's38', 's37', 12)
    a.salu('s_cmp_ge_u32', 's36', 192, nodst=True)
    a.salu('s_cselect_b32', s(Q.sM), 0, s(Q.sM))
    a.salu('s_cselect_b32', s(Q.sSEG), 's38', s(Q.sSEG))
    a.salu('s_cselect_b32', 's33', 's37', 's33')
    a.salu('s_cselect_b32', s(Q.sSTR), 8, 6)
    def nonce_early(a):
        a.valu('v_mov_b32', 'v28', s(sNONCE))
        a.salu('s_cmp_lg_u32', s(sNONCE), 0, nodst=True)
        a.ins('s_cbranch_scc1 L_ne')
        a.ins(f'buffer_load_dword v28, off, s[{DBG}:{DBG+3}], 0 offset:{D_NONCE} sc1')
        if wl:
            a.salu('s_cmp_ge_u32', 's36', 192, nodst=True)
            a.ins('s_cbranch_scc1 L_ne')
            a.salu('s_mul_i32', 's37', 's36', 24576)
            a.salu('s_mov_b32', 's46', 576 * 8192); a.salu('s_mov_b32', 's47', '0x20000')
            a.valu('v_lshlrev_b32', 'v29', 7, 'v0'); a.valu('v_min_u32', 'v29', 24576 - 128, 'v29')
            for p in [x for i, x in enumerate((58, 56, 54, 52)) if wl >> i & 1]:
                a.salu('s_mov_b64', 's[44:45]', s(p, 2))
                a.ins('buffer_load_dword v30, v29, s[44:47], s37 offen')
        a.lines.append('L_ne:')
    Q.qkv_role(a, 'qk', 48, 52, sNONCE, 33, at=(nat, nonce_early), late=lambda a: (a.valu('v_readfirstlane_b32', s(sNONCE), 'v28'), get_nonce(a, 25), dsel(a, 8)), qw=qw, qx=qx, cop=cop)
    dsel(a, 6)
    a.salu('s_cmp_ge_u32', 's36', 64, nodst=True)
    a.ins('s_cbranch_scc1 L_qkv_next')
    a.salu('s_lshr_b32', 's33', 's36', 5)
    if xs & 8: a.ins('s_endpgm')
    Q.memkv_role(a, 'mk', sNONCE, 33, slp=msl)
    diag(a, 1)
    a.ins('s_endpgm')
    a.label('L_ssm_next')
    if xs & 1: a.ins('s_branch L_phase2')
    ticket(a, S.sD0, D_SSM)
    a.salu('s_cmp_ge_u32', s(S.sD0), 144, nodst=True)
    a.ins('s_cbranch_scc1 L_phase2')
    a.salu('s_lshl_b32', s(S.sD0), s(S.sD0), 2)
    a.forget()
    S.ssm_job(a, 'ss', 62, 76)
    diag(a, 7)
    a.ins('s_branch L_ssm_next')
    sWv, sCB = 32, 33
    a.label('L_phase2')
    a.forget()
    scan(a, D_POOL, False)
    a.salu('s_cmp_lt_u32', 's33', 7, nodst=True)
    a.ins('s_cbranch_scc1 L_pool')
    if wt > 1:
        a.salu('s_cmp_lg_u32', 's32', 0, nodst=True); a.ins('s_cbranch_scc1 L_nwb'); a.ins('buffer_wbl2 sc1'); a.ins('s_waitcnt vmcnt(0)'); a.label('L_nwb')
    get_nonce(a, 250)
    mode_check('mc2')
    a.salu('s_cmp_eq_u32', 's41', 1, nodst=True)
    a.ins('s_cbranch_scc1 L_phase2b')
    ticket(a, C.sH, D_CH2)
    a.salu('s_cmp_lt_u32', s(C.sH), 32, nodst=True)
    a.ins('s_cbranch_scc1 L_chain_safe')
    a.label('L_phase2b')
    if xs & 2: a.ins('s_branch L_done')
    a.salu('s_mov_b32', 's8', 's76'); a.salu('s_mov_b32', 's9', 's77')
    a.salu('s_mov_b32', 's10', 2048 * 2304); a.salu('s_mov_b32', 's11', '0x20000')
    a.salu('s_sub_u32', 's33', 's3', XCC[0] + 1); a.salu('s_and_b32', 's33', 's33', 3 if FX[0] else 7)
    a.salu('s_cmp_eq_u32', 's33', 7, nodst=True)
    a.ins('s_cbranch_scc1 L_p2scan')
    a.label('L_p2take')
    a.salu('s_lshl_b32', 's35', 's33', 2); a.salu('s_add_u32', 's35', 's35', D_P2)
    ticket(a, 34, 's35')
    a.salu('s_cmp_lt_u32', 's33', 4, nodst=True); a.salu('s_cselect_b32', 's36', 4, 6)
    a.salu('s_cmp_lt_u32', 's34', 's36', nodst=True)
    a.ins('s_cbranch_scc1 L_att0')
    a.salu('s_sub_u32', 's34', 's34', 's36')
    a.salu('s_cmp_lt_u32', 's34', 18, nodst=True)
    a.ins('s_cbranch_scc1 L_op_start')
    a.label('L_p2scan')
    scan(a, D_P2, True)
    a.salu('s_cmp_lt_u32', 's33', 7, nodst=True)
    a.ins('s_cbranch_scc1 L_p2take')
    a.ins('s_branch L_done')
    a.label('L_att0')
    a.salu('s_mul_i32', 's36', 's34', 7); a.salu('s_mul_i32', 's37', 's34', 3); a.salu('s_add_u32', 's37', 's37', 12)
    a.salu('s_cmp_lt_u32', 's34', 4, nodst=True); a.salu('s_cselect_b32', 's34', 's36', 's37')
    a.salu('s_add_u32', 's34', 's34', 's33')
    a.salu('s_cmp_ge_u32', 's34', 32, nodst=True)
    a.ins('s_cbranch_scc1 L_done')
    a.label('L_att_next')
    a.forget()
    a.salu('s_lshr_b32', s(A.sSEG), 's34', 3)
    a.salu('s_and_b32', s(A.sHh), 's34', 7)
    a.salu('s_lshl_b32', s(A.sHh), s(A.sHh), 2)
    a.salu('s_add_u32', s(A.sHh), s(A.sHh), s(sWv))
    a.salu('s_lshr_b32', 's36', s(A.sHh), 1); a.salu('s_lshl_b32', 's36', 's36', 8); a.salu('s_add_u32', 's36', 's36', Q.SY_PRG)
    a.salu('s_mul_i32', 's37', s(A.sSEG), 43); a.salu('s_lshr_b32', 's37', 's37', 8)
    a.salu('s_mul_i32', 's41', 's37', 6); a.salu('s_sub_u32', 's41', s(A.sSEG), 's41')
    a.valu('v_and_b32', 'v1', 63, 'v0')
    a.valu('v_mul_u32_u24', 'v2', 6, 'v1'); a.valu('v_add_u32', 'v2', 's41', 'v2')
    a.valu('v_mov_b32', 'v4', 's37')
    a.salu('s_and_b32', 's41', s(A.sSEG), 7); a.salu('s_add_u32', 's41', 's41', 12)
    a.salu('s_lshr_b32', 's37', s(A.sSEG), 3)
    a.valu('v_mov_b32', 'v5', 's41'); a.valu('v_mov_b32', 'v6', 's37')
    a.valu('v_cmp_lt_u32', 'vcc', 1, 'v1')
    a.valu('v_cndmask_b32', 'v2', 'v2', 'v5', 'vcc'); a.valu('v_cndmask_b32', 'v4', 'v4', 'v6', 'vcc')
    a.valu('v_lshlrev_b32', 'v2', 2, 'v2')
    a.valu('v_add3_u32', 'v4', 'v4', s(sNONCE), 1)
    prog_wait(a, 'L_aw1', 2, 3, 'v4', 's36', 4)
    def mid(a):
        a.fence()
        trace(a, 0, 34, 0)
        coarse_wait(a, A.sSEG, 199, 36)
        trace(a, 0, 34, 1)
        a.salu('s_and_b32', 's37', s(A.sSEG), 1); a.salu('s_lshl_b32', 's37', 's37', 2); a.salu('s_add_u32', 's37', 's37', 's36'); a.salu('s_add_u32', 's37', 's37', 128)
        a.salu('s_add_u32', 's41', s(A.sSEG), s(sNONCE)); a.salu('s_add_u32', 's41', 's41', 1)
        a.salu('s_lshl_b32', 's42', s(A.sHh), 7); a.salu('s_add_u32', 's42', 's42', C.SY_CHF)
        a.salu('s_cmp_ge_u32', s(A.sSEG), 62, nodst=True)
        a.salu('s_cselect_b32', 's37', 's42', 's37')
        a.salu('s_cselect_b32', 's42', 12, 8)
        a.valu('v_lshlrev_b32', 'v198', 2, 'v0'); a.valu('v_and_b32', 'v198', 's42', 'v198')
        prog_wait(a, 'L_aw2', 198, 199, 's41', 's37', ats)
        trace(a, 0, 34, 2)
    A.attn_job(a, 'at', ld_fl='sc1', st_fl='sc1', mid=mid)
    a.salu('s_lshr_b32', 's40', 's34', 1)
    a.salu('s_lshl_b32', 's40', 's40', 7)
    a.salu('s_and_b32', 's41', s(A.sHh), 7)
    a.salu('s_lshl_b32', 's41', 's41', 2)
    a.salu('s_add_u32', 's40', 's40', 's41')
    a.salu('s_add_u32', 's40', 's40', SY_ATT)
    a.valu('v_mov_b32', 'v250', s(sNONCE))
    a.salu('s_cmp_ge_u32', s(A.sSEG), 62, nodst=True)
    a.ins('s_cbranch_scc1 L_afl')
    a.ins('s_waitcnt vmcnt(0)')
    a.label('L_afl')
    a.salu('s_mov_b64', 'exec', 1)
    a.vmem('buffer_store_dword', 'v250', 'off', 's[4:7]', 's40', mods='sc1', load=False)
    a.salu('s_mov_b64', 'exec', -1)
    trace(a, 0, 34, 3)
    a.salu('s_add_u32', 's34', 's34', 32)
    a.salu('s_cmp_lt_u32', 's34', 512, nodst=True)
    a.fence()
    a.ins('s_cbranch_scc1 L_att_next')
    a.ins('s_branch L_done')
    a.label('L_op_start')
    if xs & 4: a.ins('s_branch L_done')
    a.forget()
    a.salu('s_mov_b32', s(A.sSEG), 's33')
    a.salu('s_mov_b32', s(sCB), 's34')
    A.oproj_load(a, 58, sCB, sWv)
    a.label('L_op_seg')
    a.salu('s_lshr_b32', 's43', s(A.sSEG), 1)
    a.salu('s_add_u32', 's43', 's43', 1)
    a.salu('s_min_u32', 's43', 's43', 63)
    a.salu('s_and_b32', 's36', s(sCB), 15); a.salu('s_lshl_b32', 's36', 's36', 8); a.salu('s_add_u32', 's36', 's36', Q.SY_PRG)
    a.salu('s_lshl_b32', 's94', s(sCB), 7); a.salu('s_add_u32', 's94', 's94', s(A.sSEG))
    trace(a, 65536, 94, 0)
    a.salu('s_cmp_ge_u32', s(A.sSEG), 120, nodst=True)
    a.ins('s_cbranch_scc1 L_nocw')
    coarse_wait(a, 43, 3, 36)
    a.label('L_nocw')
    trace(a, 65536, 94, 1)
    a.salu('s_lshr_b32', 's89', s(A.sSEG), 1)
    a.salu('s_lshl_b32', 's89', 's89', 2)
    a.salu('s_add_u32', 's89', 's89', s(sWv))
    a.salu('s_lshl_b32', 's89', 's89', 7)
    a.salu('s_add_u32', 's89', 's89', SY_ATT)
    flags_wait(a, 's89', 0, 8, 2, 3, sleep=ops)
    trace(a, 65536, 94, 2)
    A.oproj_seg(a, 'os', 8, sCB, sWv, A.sSEG, ofl='sc1' if wt else '')
    trace(a, 65536, 94, 3)
    a.salu('s_add_u32', s(A.sSEG), s(A.sSEG), 7)
    a.salu('s_cmp_ge_u32', s(A.sSEG), 128, nodst=True)
    a.ins('s_cbranch_scc1 L_done')
    a.ins('s_barrier')
    a.ins('s_branch L_op_seg')
    a.label('L_done')
    diag(a, 10)
    ldiag(a, 7, 250)
    a.label('L_exit')
    a.ins('s_endpgm')
    a.raw(kd(n, 512, 256))

def build(**kw):
    hdr = open(f'/code/{NAME}.s.ref').read().split('; Override launch geometry')[0]
    a = Asm()
    a.raw(hdr.rstrip())
    a.raw('; @launch grid=(256,1,1) block=(256,1,1) lds=163840')
    a.raw('.amdgcn_target "amdgcn-amd-amdhsa--gfx950"')
    k_main(a, **kw)
    return a.text()

if __name__ == '__main__':
    kw = dict(d0=70, dB=18, ks=2, pA=14, d1=68, dX=40, dZ=164, pbr=0, p1=4)
    open('one.s', 'w').write(build(**kw))
    for spec in sys.argv[1:]:
        k2 = dict((x.split('=')[0], int(x.split('=')[1])) for x in spec.split(','))
        open('one_' + spec.replace('=', '').replace(',', '_') + '.s', 'w').write(build(**{**kw, **k2}))
    XCC[0] = 9; TMO[0] = 1 << 8; FX[0] = 1
    open('one_safe.s', 'w').write(build(**kw))
    XCC[0] = 0; TMO[0] = 1 << 8; NCH[0] = 31; FX[0] = 0
    open('one_safe2.s', 'w').write(build(**kw))
    TMO[0] = 1 << 17; NCH[0] = 32
    LD[0] = 1
    open('one_l.s', 'w').write(build(**kw))
    for spec in sys.argv[1:]:
        k2 = dict((x.split('=')[0], int(x.split('=')[1])) for x in spec.split(','))
        open('one_' + spec.replace('=', '').replace(',', '_') + '_l.s', 'w').write(build(**{**kw, **k2}))
    LD[0] = 0
    DIAG[0] = 1
    for spec in sys.argv[1:]:
        k2 = dict((x.split('=')[0], int(x.split('=')[1])) for x in spec.split(','))
        open('one_' + spec.replace('=', '').replace(',', '_') + '_d.s', 'w').write(build(**{**kw, **k2}))
    open('one_d.s', 'w').write(build(**kw))
    print('ok')
```

```python
from asmfw import Asm, R
import chain2 as C

def s(i, n=1): return R(i, n, 's')
def v(i, n=1): return R(i, n, 'v')
MF32 = 'v_mfma_f32_16x16x32_bf16'

SRD_WS, SRD_X, SRD_W = 4, 8, 12
sM, sHh, sW, sSEG, sSTR = 16, 17, 18, 19, 20
sT0, sT1, sT2 = 21, 22, 23
sSRC, sLDSW, sOUT, sBUF, sOUT1 = 24, 25, 26, 27, 28
sPRG, sRND, sT3 = 29, 30, 31
sO2, sOA, sSA, sHS = 40, 41, 42, 43
XBUF = 36864
SY_PRG = C.WS_SYNC
DONE = 63
WF = 64

def wfrag(hd, tau, k): return R(tau * 72 + k * 4, 4, 'a') if hd else v(WF + tau * 72 + k * 4, 4)

def tr_loader(a, srd, jobs, GA, TA, T1, T2, sWK, sT, bufs, mid=None, at=None):
    nb = len(bufs); tags = {}
    def issue(j):
        jobs[j][0](a)
        for p in range(4):
            a.salu('s_add_u32', 'm0', s(sWK), bufs[j % nb] + p * 1024)
            if p: a.salu('s_add_u32', s(sT), s(sT), jobs[j][1])
            else: a.nop(1)
            a.raw(f'    buffer_load_dwordx4 v{GA}, s[{srd}:{srd+3}], s{sT} offen lds'); a.pos += 1; a.vm_seq += 1
        tags[j] = a.vm_seq
    for j in range(min(nb, len(jobs))): issue(j)
    if mid: mid()
    for j in range(len(jobs)):
        a.valu('v_add_u32', v(T1), bufs[j % nb], v(TA))
        a.valu('v_xor_b32', v(T2), 32, v(T1))
        a.wait(vm=tags[j])
        for dst, alt, off in jobs[j][2]:
            a.ds('ds_read_b64_tr_b16', dst, v(T2 if alt else T1), mods=f'offset:{off}')
        a.wait(lds='all')
        if at and j == at[0]: at[1](a)
        if j + nb < len(jobs): issue(j + nb)

def qkv_role(a: Asm, tag, pX, pW, sNONCE, sGRP, late=None, qw=0, qx=0, cop=1, at=None):
    t = tag
    ACC, PK, AF = 208, 8, 32
    LANE16, VSRC, VRD, TMP, TMP2, GA, LWv, TA = 1, 2, 3, 4, 5, 6, 7, 24
    srd = s(SRD_WS, 4)
    a.valu('v_lshrrev_b32', v(TMP), 6, 'v0')
    a.valu('v_readfirstlane_b32', s(sW), v(TMP))
    a.valu('v_lshlrev_b32', v(LWv), 4, 'v0')
    a.valu('v_and_b32', v(TMP), 63, 'v0')
    a.valu('v_lshrrev_b32', v(GA), 2, v(TMP)); a.valu('v_lshlrev_b32', v(GA), 13, v(GA))
    a.valu('v_lshrrev_b32', v(TMP2), 4, v(TMP)); a.valu('v_and_b32', v(TMP2), 2, v(TMP2)); a.valu('v_xor_b32', v(TMP2), v(TMP2), v(TMP))
    a.valu('v_and_b32', v(TMP2), 3, v(TMP2)); a.valu('v_lshl_add_u32', v(GA), v(TMP2), 4, v(GA))
    a.valu('v_lshrrev_b32', v(TA), 4, v(TMP)); a.valu('v_lshlrev_b32', v(TA), 9, v(TA))
    a.valu('v_bfe_u32', v(TMP2), v(TMP), 2, 2); a.valu('v_lshl_add_u32', v(TA), v(TMP2), 6, v(TA))
    a.valu('v_bfe_u32', v(TMP2), v(TMP), 4, 1); a.valu('v_lshl_add_u32', v(TA), v(TMP2), 5, v(TA))
    a.valu('v_and_b32', v(TMP2), 3, v(TMP)); a.valu('v_lshl_add_u32', v(TA), v(TMP2), 3, v(TA))
    a.salu('s_lshl_b32', s(sT3), s(sW), 12)
    a.valu('v_add_u32', v(TA), s(sT3), v(TA))
    a.salu('s_cmp_eq_u32', s(sM), 1, nodst=True)
    a.salu('s_cselect_b64', s(SRD_W, 2), s(pW + 2, 2), s(pW, 2))
    a.salu('s_cmp_eq_u32', s(sM), 2, nodst=True)
    a.salu('s_cselect_b64', s(SRD_W, 2), s(pW + 4, 2), s(SRD_W, 2))
    a.salu('s_mov_b32', s(SRD_W + 2), 576 * 8192); a.salu('s_mov_b32', s(SRD_W + 3), '0x20000')
    a.salu('s_lshl_b32', s(sOUT1), s(sHh), 8); a.salu('s_lshl_b32', s(sT0), s(sW), 6); a.salu('s_add_u32', s(sOUT1), s(sOUT1), s(sT0))
    if cop:
        a.valu('v_lshrrev_b32', v(25), 2, 'v0'); a.valu('v_mul_u32_u24', v(25), s(sSTR), v(25)); a.valu('v_add_u32', v(25), s(sSEG), v(25))
        a.valu('v_lshlrev_b32', v(25), 13, v(25)); a.valu('v_and_b32', v(26), 3, 'v0'); a.valu('v_lshl_add_u32', v(25), v(26), 7, v(25))
        a.salu('s_lshl_b32', s(sT0), s(sHh), 8)
        a.salu('s_lshl_b32', s(sT1), s(sSTR), 19); a.salu('s_add_u32', s(sT1), s(sT1), s(sT0))
        a.ins(f'buffer_load_dword v27, v25, s[{SRD_W}:{SRD_W+3}], s{sT0} offen')
        a.ins(f'buffer_load_dword v27, v25, s[{SRD_W}:{SRD_W+3}], s{sT1} offen')
    def rest():
        a.valu('v_and_b32', v(TMP2), 15, v(TMP))
        a.valu('v_lshrrev_b32', v(VRD), 4, v(TMP))
        a.valu('v_lshrrev_b32', v(VSRC), 2, v(TMP2))
        a.valu('v_xor_b32', v(VRD), v(VRD), v(VSRC))
        a.valu('v_lshl_add_u32', v(VRD), v(TMP2), 2, v(VRD))
        a.valu('v_lshlrev_b32', v(LANE16), 4, v(VRD))
        a.valu('v_lshrrev_b32', v(TMP2), 2, v(TMP))
        a.valu('v_lshrrev_b32', v(VRD), 4, v(TMP))
        a.valu('v_and_b32', v(TMP), 3, v(TMP))
        a.valu('v_xor_b32', v(TMP), v(TMP), v(VRD))
        a.valu('v_lshlrev_b32', v(VRD), 3, v(VRD))
        a.valu('v_and_b32', v(TMP2), 3, v(TMP2))
        a.valu('v_add_u32', v(VRD), v(VRD), v(TMP2))
        a.valu('v_mul_u32_u24', v(VSRC), 1152, v(VRD))
        a.valu('v_lshl_add_u32', v(VSRC), v(TMP), 4, v(VSRC))
        a.salu('s_mov_b32', s(SRD_X), s(pX)); a.salu('s_mov_b32', s(SRD_X + 1), s(pX + 1))
        a.salu('s_mov_b32', s(SRD_X + 2), 2048 * 1152); a.salu('s_mov_b32', s(SRD_X + 3), '0x20000')
        a.salu('s_lshr_b32', s(sT1), s(sW), 1); a.salu('s_mul_i32', s(sSRC), s(sT1), 4608)
        a.salu('s_and_b32', s(sT1), s(sW), 1); a.salu('s_mul_i32', s(sT2), s(sT1), 576); a.salu('s_add_u32', s(sSRC), s(sSRC), s(sT2))
        a.salu('s_mul_i32', s(sLDSW), s(sW), 9 * 1024)
        a.salu('s_mul_i32', s(sT1), s(sSEG), 32 * 1152); a.salu('s_add_u32', s(sSRC), s(sSRC), s(sT1))
        a.salu('s_mul_i32', s(sSA), s(sSTR), 32 * 1152)
        a.salu('s_mov_b32', s(sBUF), 0)
        dma(sBUF)
        a.salu('s_lshl_b32', s(sT1), s(sSEG), 5); a.salu('s_add_u32', s(sT1), s(sT1), s(sHh))
        a.salu('s_lshl_b32', s(sOUT), s(sT1), 14)
        a.salu('s_mul_i32', s(sT2), s(sW), 3072); a.salu('s_add_u32', s(sOUT), s(sOUT), s(sT2))
        a.salu('s_lshl_b32', s(sT2), s(sM), 11); a.salu('s_add_u32', s(sOUT), s(sOUT), s(sT2))
        a.salu('s_add_u32', s(sOUT), s(sOUT), C.WS_KV - 2048)
        a.salu('s_lshl_b32', s(sT1), s(sT1), 13); a.salu('s_add_u32', s(sT1), s(sT1), C.WS_Q)
        a.salu('s_cmp_eq_u32', s(sM), 0, nodst=True)
        a.salu('s_cselect_b32', s(sOUT), s(sT1), s(sOUT))
        a.salu('s_cselect_b32', s(sO2), 4, 1); a.salu('s_cselect_b32', s(sHS), 1, 2)
        a.salu('s_lshl_b32', s(sO2), s(sO2), 10); a.salu('s_lshl_b32', s(sHS), s(sHS), 13)
        a.salu('s_lshl_b32', s(sOA), s(sHS), 5); a.salu('s_mul_i32', s(sOA), s(sOA), s(sSTR))
        a.salu('s_lshl_b32', s(sPRG), s(sHh), 7); a.salu('s_lshl_b32', s(sT1), s(sGRP), 2)
        a.salu('s_add_u32', s(sPRG), s(sPRG), s(sT1)); a.salu('s_add_u32', s(sPRG), s(sPRG), SY_PRG)
    def dma_ops(bufreg):
        ops = []
        for i in range(9):
            def f(i=i):
                if i == 0: a.salu('s_add_u32', s(sT2), s(bufreg), s(sLDSW))
                a.salu('s_add_u32', 'm0', s(sT2), i * 1024 - i * 64)
                a.nop(1)
                a.raw(f'    buffer_load_dwordx4 v{VSRC}, s[{SRD_X}:{SRD_X+3}], s{sSRC} offen offset:{i * 64} lds')
                a.pos += 1; a.vm_seq += 1
                if i == 8: a.salu('s_add_u32', s(sSRC), s(sSRC), s(sSA))
            ops.append(f)
        return ops
    def dma(bufreg):
        for f in dma_ops(bufreg): f()
    jobs = []
    for tt in range(9):
        for hd in range(2):
            def setup(a, tt=tt, hd=hd): a.salu('s_add_u32', s(sT0), s(sOUT1), tt * 64 * 8192 + hd * 256)
            rd = []
            for kk in range(2):
                for tau in range(2):
                    k_, b_ = ('a', tau * 72 + (2 * tt + kk) * 4) if hd else ('v', WF + tau * 72 + (2 * tt + kk) * 4)
                    for jp in range(2): rd.append((R(b_ + 2 * jp, 2, k_), tau, kk * 2048 + jp * 256))
            jobs.append((setup, 16 * 8192, rd))
    tr_loader(a, SRD_W, jobs, GA, TA, 25, 26, sT3, sT0, [40960 + 16384 * i for i in range(7)], mid=rest, at=at)
    a.salu('s_lshr_b32', s(sT0), s(sHh), 3); a.salu('s_cmp_eq_u32', s(sT0), 3, nodst=True); a.salu('s_cselect_b32', s(sT0), 1, s(sGRP))
    a.salu('s_cmp_lg_u32', s(sT0), 0, nodst=True)
    a.ins(f's_cbranch_scc1 {t}_noclr')
    for i in range(4): a.valu('v_mov_b32', v(8 + i), -1)
    a.valu('v_lshrrev_b32', v(25), 6, 'v0'); a.valu('v_mul_u32_u24', v(25), 12288 - 1024, v(25)); a.valu('v_add_u32', v(25), v(25), v(LWv))
    a.salu('s_lshl_b32', s(sT0), s(sHh), 9); a.salu('s_add_u32', s(sT0), s(sT0), C.WS_MEMH); a.salu('s_add_u32', s(sT1), s(sT0), 64 * 12288)
    a.label(f'{t}_clr')
    a.vmem('buffer_store_dwordx4', v(8, 4), v(25), srd, s(sT0), mods='offen sc1', load=False, data=v(8, 4))
    a.salu('s_add_u32', s(sT0), s(sT0), 4 * 12288)
    a.salu('s_cmp_lt_u32', s(sT0), s(sT1), nodst=True)
    a.ins(f's_cbranch_scc1 {t}_clr')
    a.label(f'{t}_noclr')
    a.salu('s_and_b32', s(sT0), s(sGRP), -2); a.salu('s_cmp_lg_u32', s(sT0), 2, nodst=True)
    a.ins(f's_cbranch_scc1 {t}_noclr2')
    for i in range(4): a.valu('v_mov_b32', v(8 + i), -1)
    a.salu('s_add_u32', s(sT0), s(sGRP), 60)
    a.salu('s_lshl_b32', s(sT2), s(sHh), 12)
    for base, sh, extra in ((C.WS_KM, 17, 0), (C.WS_VM, 17, 0), (C.WS_O, 18, 0), (C.WS_O, 18, 131072)):
        a.salu('s_lshl_b32', s(sT1), s(sT0), sh); a.salu('s_add_u32', s(sT1), s(sT1), s(sT2)); a.salu('s_add_u32', s(sT1), s(sT1), base + extra)
        for hh in range(2):
            a.vmem('buffer_store_dwordx4', v(8, 4), v(LWv), srd, s(sT1), mods='offen sc1', load=False, data=v(8, 4))
            if hh == 0: a.salu('s_add_u32', s(sT1), s(sT1), 4096)
    a.label(f'{t}_noclr2')
    if late: late(a)
    a.ins('s_barrier')
    a.salu('s_mov_b32', s(sBUF), XBUF)
    dma(sBUF)
    a.salu('s_mov_b32', s(sBUF), 0)
    a.salu('s_mov_b32', s(sRND), s(sNONCE))
    a.salu('s_cmp_eq_u32', s(sW), 0, nodst=True)
    a.salu('s_cselect_b32', 's34', 1, 0); a.salu('s_mov_b32', 's35', 0)
    sPRV = sT3
    a.salu('s_mov_b32', s(sPRV), '0x80000000')
    VR2 = 24
    def rdA(k, base):
        for x in range(2):
            tg = a.ds('ds_read_b128', v(AF + ((k % 4) * 2 + x) * 4, 4), v(base), mods=f'offset:{(x*18+k%18)*1024}')
        return tg
    a.valu('v_mov_b32', v(VRD), v(LANE16))
    def slot(k, x): return AF + ((k % 3) * 2 + x) * 4
    def rd(k, base):
        for x in range(2): tg = a.ds('ds_read_b128', v(slot(k, x), 4), v(base), mods=f'offset:{(x*18+k%18)*1024}')
        return tg
    for k in range(2): rd(k, VRD)
    a.salu('s_cmp_eq_u32', s(sM), 2, nodst=True)
    a.ins(f's_cbranch_scc1 {t}_vloop')
    def pub(valexpr):
        a.valu('v_mov_b32', v(TMP), valexpr)
        a.salu('s_mov_b64', 'exec', 's[34:35]')
        a.vmem('buffer_store_dword', v(TMP), 'off', srd, s(sPRG), mods='sc1', load=False)
        a.salu('s_mov_b64', 'exec', -1)
    def pack(isv, hd, x, tau):
        o, hi = (tau, x) if isv else (x, tau)
        src_ = ACC + ((hd * 2 + x) * 2 + tau) * 4
        for r in range(2): a.valu('v_cvt_pk_bf16_f32', v(PK + (hd * 2 + o) * 4 + 2 * hi + r), v(src_ + 2 * r), v(src_ + 2 * r + 1))
    def store(q):
        if q == 0: a.salu('s_mov_b32', s(sOUT1), s(sPRV))
        elif q == 2: a.salu('s_add_u32', s(sOUT1), s(sPRV), s(sHS))
        else: a.salu('s_add_u32', s(sOUT1), s(sOUT1), s(sO2))
        a.vmem('buffer_store_dwordx4', v(PK + q * 4, 4), v(LWv), srd, s(sOUT1), mods='offen sc1', load=False, data=v(PK + q * 4, 4))
    for isv in (0, 1):
        L = f'{t}_vloop' if isv else f'{t}_loop'
        a.fence()
        a.label(L)
        a.forget()
        a.salu('s_add_u32', s(sT1), s(sBUF), 2 * XBUF)
        a.salu('s_sub_u32', s(sT0), s(sT1), 4 * XBUF)
        a.salu('s_cselect_b32', s(sT1), s(sT1), s(sT0))
        a.salu('s_add_u32', s(sBUF), s(sBUF), XBUF)
        a.salu('s_cmp_eq_u32', s(sBUF), 4 * XBUF, nodst=True)
        a.salu('s_cselect_b32', s(sBUF), 0, s(sBUF))
        dops = dma_ops(sT1)
        for k in range(18):
            a.ins('s_waitcnt lgkmcnt(2)')
            n = 0
            for hd in range(2):
                for x in range(2):
                    for tau in range(2):
                        acc = v(ACC + ((hd * 2 + x) * 2 + tau) * 4, 4)
                        xf = v(slot(k, x), 4); wf = wfrag(hd, tau, k)
                        if k == 0: pack(isv, hd, x, tau)
                        a.auto = False
                        if isv: a.mfma(MF32, acc, xf, wf, 0 if k == 0 else acc)
                        else: a.mfma(MF32, acc, wf, xf, 0 if k == 0 else acc)
                        a.auto = True
                        n += 1
                        if n == 1: rd(k + 2, VRD if k + 2 < 18 else VR2)
                        if n == 3 and 1 <= k <= 4: store(k - 1)
                        if n == 3 and 5 <= k <= 13: dops[k - 5]()
                        if n == 3 and k == 14: a.valu('v_add_u32', v(VR2), s(sBUF), v(LANE16))
                        if n == 6 and k == 15:
                            a.ins('s_waitcnt vmcnt(9)'); a.ins('s_barrier')
                        if n == 3 and k == 16: pub(s(sRND))
        a.valu('v_mov_b32', v(VRD), v(VR2))
        a.salu('s_mov_b32', s(sPRV), s(sOUT))
        a.salu('s_add_u32', s(sOUT), s(sOUT), s(sOA))
        a.salu('s_add_u32', s(sRND), s(sRND), 1)
        a.salu('s_add_u32', s(sSEG), s(sSEG), s(sSTR))
        a.salu('s_cmp_lt_u32', s(sSEG), 64, nodst=True)
        a.ins(f's_cbranch_scc1 {L}')
        a.fence()
        for hd in range(2):
            for x in range(2):
                for tau in range(2): pack(isv, hd, x, tau)
        if not isv: a.ins(f's_branch {t}_done')
    a.label(f'{t}_done')
    for q in range(4): store(q)
    a.ins('s_waitcnt vmcnt(0) lgkmcnt(0)')
    a.ins('s_barrier')
    a.salu('s_add_u32', s(sT1), s(sNONCE), DONE)
    pub(s(sT1))


def memkv_role(a: Asm, tag, sNONCE, sPAR, slp=4):
    t = tag
    ACC = 8
    regs = [24 + 4 * i for i in range(10)] + [208 + 4 * i for i in range(8)]
    VA, VF, TMP, TMP2, LWv = [1, 2, 3], 6, 4, 5, 7
    srd = s(SRD_WS, 4)
    sS, sSRCM, sDST = 19, 24, 26
    a.forget()
    a.valu('v_and_b32', v(TMP), 63, 'v0')
    a.valu('v_lshrrev_b32', v(TMP2), 4, v(TMP))
    for b in range(3):
        a.valu('v_add_u32', v(VA[b]), 4 * b, v(TMP2))
        a.valu('v_mul_u32_u24', v(VF), 11, v(VA[b])); a.valu('v_lshrrev_b32', v(VF), 5, v(VF))
        a.valu('v_add_u32', v(VA[b]), v(VA[b]), v(VF)); a.valu('v_lshlrev_b32', v(VA[b]), 7, v(VA[b]))
        a.valu('v_and_b32', v(VF), 7, v(TMP)); a.valu('v_lshl_add_u32', v(VA[b]), v(VF), 4, v(VA[b]))
    a.valu('v_min_u32', v(VF), 23, v(TMP)); a.valu('v_lshlrev_b32', v(VF), 9, v(VF))
    a.salu('s_mov_b32', s(sS), s(sPAR))
    a.salu('s_mul_i32', s(sSRCM), s(sS), 12288); a.salu('s_add_u32', s(sSRCM), s(sSRCM), C.WS_MEMH)
    a.salu('s_lshl_b32', s(sDST), s(sS), 5); a.salu('s_add_u32', s(sDST), s(sDST), s(sHh)); a.salu('s_lshl_b32', s(sDST), s(sDST), 12)
    a.salu('s_mov_b32', s(sT0), C.WS_KM)
    a.salu('s_cmp_eq_u32', s(sM), 2, nodst=True)
    a.salu('s_cselect_b32', s(sT0), C.WS_VM, s(sT0))
    a.salu('s_add_u32', s(sDST), s(sDST), s(sT0))
    a.salu('s_lshl_b32', s(sPRG), s(sHh), 7); a.salu('s_lshl_b32', s(sT0), s(sM), 1); a.salu('s_add_u32', s(sT0), s(sT0), s(sPAR))
    a.salu('s_lshl_b32', s(sT0), s(sT0), 2); a.salu('s_add_u32', s(sPRG), s(sPRG), s(sT0))
    a.salu('s_add_u32', s(sPRG), s(sPRG), SY_PRG + 128 - 8)
    a.fence()
    a.label(f'{t}_loop')
    a.forget()
    a.salu('s_cmp_lg_u32', s(sW), 0, nodst=True)
    a.ins(f's_cbranch_scc1 {t}_go')
    a.salu('s_mov_b32', s(sT2), s(sSRCM))
    a.salu('s_mov_b32', s(sT0), 1 << 22)
    a.label(f'{t}_wait')
    a.vmem('buffer_load_dword', v(TMP), v(VF), srd, s(sT2), mods='offen offset:384 sc1')
    a.salu('s_sub_u32', s(sT0), s(sT0), 1)
    a.ins(f's_cbranch_scc1 {t}_go')
    a.ins('s_waitcnt vmcnt(0)')
    a.valu('v_cmp_ne_u32', 'vcc', s(sNONCE), v(TMP))
    a.ins(f's_cbranch_vccz {t}_go')
    a.ins(f's_sleep {slp}')
    a.ins(f's_branch {t}_wait')
    a.label(f'{t}_go')
    a.ins('s_barrier')
    a.salu('s_mov_b32', s(sRND), 1 << 12)
    a.label(f'{t}_again')
    a.valu('v_mov_b32', v(TMP2), 0)
    tg = []
    for k in range(18):
        if k % 6 == 0: a.salu('s_add_u32', s(sT2), s(sSRCM), (k // 6) * 4096)
        tg.append(a.vmem('buffer_load_dwordx4', v(regs[k], 4), v(VA[k % 3]), srd, s(sT2), mods=f'offen offset:{((k // 3) & 1) * 2048} sc1'))
    a.salu('s_add_u32', s(sT1), s(sS), s(sNONCE)); a.salu('s_add_u32', s(sT1), s(sT1), 1)
    a.salu('s_cmp_eq_u32', s(sM), 2, nodst=True)
    a.ins(f's_cbranch_scc1 {t}_v')
    done0 = dict(a.done)
    for isv in (0, 1):
        if isv: a.label(f'{t}_v'); a.done = dict(done0)
        for k in range(18):
            a.wait(vm=tg[k])
            for hd in range(2):
                for tau in range(2):
                    acc = v(ACC + (hd * 2 + tau) * 4, 4); xf = v(regs[k], 4); wf = wfrag(hd, tau, k)
                    if isv: a.mfma(MF32, acc, xf, wf, 0 if k == 0 else acc)
                    else: a.mfma(MF32, acc, wf, xf, 0 if k == 0 else acc)
                a.valu('v_max3_u32', v(TMP2), v(TMP2), v(regs[k] + 2 * hd), v(regs[k] + 2 * hd + 1))
        if isv:
            for q4 in range(8): a.valu('v_pk_mul_f32', v(ACC + 2 * q4, 2), v(ACC + 2 * q4, 2), '0.5', mods='op_sel_hi:[1,0]')
        a.fence()
        if not isv: a.ins(f's_branch {t}_st')
    a.label(f'{t}_st')
    a.valu('v_cmp_eq_u32', 'vcc', -1, v(TMP2))
    a.salu('s_sub_u32', s(sRND), s(sRND), 1)
    a.ins(f's_cbranch_scc1 {t}_ok')
    a.ins(f's_cbranch_vccnz {t}_again')
    a.label(f'{t}_ok')
    a.salu('s_add_u32', s(sSRCM), s(sSRCM), 2 * 12288)
    for q4 in range(8): a.valu('v_cvt_pk_bf16_f32', v(24 + q4), v(ACC + 2 * q4), v(ACC + 2 * q4 + 1))
    a.salu('s_add_u32', s(sT0), s(sDST), 4096)
    a.vmem('buffer_store_dwordx4', v(24, 4), v(LWv), srd, s(sDST), mods='offen sc1', load=False, data=v(24, 4))
    a.vmem('buffer_store_dwordx4', v(28, 4), v(LWv), srd, s(sT0), mods='offen sc1', load=False, data=v(28, 4))
    a.ins('s_waitcnt vmcnt(0)')
    a.ins('s_barrier')
    a.valu('v_mov_b32', v(TMP), s(sT1))
    a.salu('s_mov_b64', 'exec', 's[34:35]')
    a.vmem('buffer_store_dword', v(TMP), 'off', srd, s(sPRG), mods='sc1', load=False)
    a.salu('s_mov_b64', 'exec', -1)
    a.salu('s_add_u32', s(sS), s(sS), 2)
    a.salu('s_add_u32', s(sDST), s(sDST), 2 << 17)
    a.salu('s_cmp_lt_u32', s(sS), 62, nodst=True)
    a.fence()
    a.ins(f's_cbranch_scc1 {t}_loop')
```

```python
from asmfw import Asm, R
import chain2 as C

def s(i, n=1): return R(i, n, 's')
def v(i, n=1): return R(i, n, 'v')
MF32 = 'v_mfma_f32_16x16x32_bf16'

SRD_WS, SRD_X, SRD_W = 4, 8, 12
sM, sHh, sW, sSEG, sSTR = 16, 17, 18, 19, 20
sT0, sT1, sT2 = 21, 22, 23
sSRC, sLDSW, sOUT, sBUF, sOUT1 = 24, 25, 26, 27, 28
sPRG, sRND, sT3 = 29, 30, 31
sO2, sOA, sSA, sHS = 40, 41, 42, 43
XBUF = 36864
SY_PRG = C.WS_SYNC
DONE = 63
WF = 64

def wfrag(hd, tau, k): return R(tau * 72 + k * 4, 4, 'a') if hd else v(WF + tau * 72 + k * 4, 4)

def tr_loader(a, srd, jobs, GA, TA, T1, T2, sWK, sT, bufs, mid=None, at=None):
    nb = len(bufs); tags = {}
    def issue(j):
        jobs[j][0](a)
        for p in range(4):
            a.salu('s_add_u32', 'm0', s(sWK), bufs[j % nb] + p * 1024)
            if p: a.salu('s_add_u32', s(sT), s(sT), jobs[j][1])
            else: a.nop(1)
            a.raw(f'    buffer_load_dwordx4 v{GA}, s[{srd}:{srd+3}], s{sT} offen lds'); a.pos += 1; a.vm_seq += 1
        tags[j] = a.vm_seq
    for j in range(min(nb, len(jobs))): issue(j)
    if mid: mid()
    for j in range(len(jobs)):
        a.valu('v_add_u32', v(T1), bufs[j % nb], v(TA))
        a.valu('v_xor_b32', v(T2), 32, v(T1))
        a.wait(vm=tags[j])
        for dst, alt, off in jobs[j][2]:
            a.ds('ds_read_b64_tr_b16', dst, v(T2 if alt else T1), mods=f'offset:{off}')
        a.wait(lds='all')
        if at and j == at[0]: at[1](a)
        if j + nb < len(jobs): issue(j + nb)

def qkv_role(a: Asm, tag, pX, pW, sNONCE, sGRP, late=None, qw=0, qx=0, cop=1, at=None):
    t = tag
    ACC, PK, AF = 208, 8, 32
    LANE16, VSRC, VRD, TMP, TMP2, GA, LWv, TA = 1, 2, 3, 4, 5, 6, 7, 24
    srd = s(SRD_WS, 4)
    a.valu('v_lshrrev_b32', v(TMP), 6, 'v0')
    a.valu('v_readfirstlane_b32', s(sW), v(TMP))
    a.valu('v_lshlrev_b32', v(LWv), 4, 'v0')
    a.valu('v_and_b32', v(TMP), 63, 'v0')
    a.valu('v_lshrrev_b32', v(GA), 2, v(TMP)); a.valu('v_lshlrev_b32', v(GA), 13, v(GA))
    a.valu('v_lshrrev_b32', v(TMP2), 4, v(TMP)); a.valu('v_and_b32', v(TMP2), 2, v(TMP2)); a.valu('v_xor_b32', v(TMP2), v(TMP2), v(TMP))
    a.valu('v_and_b32', v(TMP2), 3, v(TMP2)); a.valu('v_lshl_add_u32', v(GA), v(TMP2), 4, v(GA))
    a.valu('v_lshrrev_b32', v(TA), 4, v(TMP)); a.valu('v_lshlrev_b32', v(TA), 9, v(TA))
    a.valu('v_bfe_u32', v(TMP2), v(TMP), 2, 2); a.valu('v_lshl_add_u32', v(TA), v(TMP2), 6, v(TA))
    a.valu('v_bfe_u32', v(TMP2), v(TMP), 4, 1); a.valu('v_lshl_add_u32', v(TA), v(TMP2), 5, v(TA))
    a.valu('v_and_b32', v(TMP2), 3, v(TMP)); a.valu('v_lshl_add_u32', v(TA), v(TMP2), 3, v(TA))
    a.salu('s_lshl_b32', s(sT3), s(sW), 12)
    a.valu('v_add_u32', v(TA), s(sT3), v(TA))
    a.salu('s_cmp_eq_u32', s(sM), 1, nodst=True)
    a.salu('s_cselect_b64', s(SRD_W, 2), s(pW + 2, 2), s(pW, 2))
    a.salu('s_cmp_eq_u32', s(sM), 2, nodst=True)
    a.salu('s_cselect_b64', s(SRD_W, 2), s(pW + 4, 2), s(SRD_W, 2))
    a.salu('s_mov_b32', s(SRD_W + 2), 576 * 8192); a.salu('s_mov_b32', s(SRD_W + 3), '0x20000')
    a.salu('s_lshl_b32', s(sOUT1), s(sHh), 8); a.salu('s_lshl_b32', s(sT0), s(sW), 6); a.salu('s_add_u32', s(sOUT1), s(sOUT1), s(sT0))
    if cop:
        a.valu('v_lshrrev_b32', v(25), 2, 'v0'); a.valu('v_mul_u32_u24', v(25), s(sSTR), v(25)); a.valu('v_add_u32', v(25), s(sSEG), v(25))
        a.valu('v_lshlrev_b32', v(25), 13, v(25)); a.valu('v_and_b32', v(26), 3, 'v0'); a.valu('v_lshl_add_u32', v(25), v(26), 7, v(25))
        a.salu('s_lshl_b32', s(sT0), s(sHh), 8)
        a.salu('s_lshl_b32', s(sT1), s(sSTR), 19); a.salu('s_add_u32', s(sT1), s(sT1), s(sT0))
        a.ins(f'buffer_load_dword v27, v25, s[{SRD_W}:{SRD_W+3}], s{sT0} offen')
        a.ins(f'buffer_load_dword v27, v25, s[{SRD_W}:{SRD_W+3}], s{sT1} offen')
    def rest():
        a.valu('v_and_b32', v(TMP2), 15, v(TMP))
        a.valu('v_lshrrev_b32', v(VRD), 4, v(TMP))
        a.valu('v_lshrrev_b32', v(VSRC), 2, v(TMP2))
        a.valu('v_xor_b32', v(VRD), v(VRD), v(VSRC))
        a.valu('v_lshl_add_u32', v(VRD), v(TMP2), 2, v(VRD))
        a.valu('v_lshlrev_b32', v(LANE16), 4, v(VRD))
        a.valu('v_lshrrev_b32', v(TMP2), 2, v(TMP))
        a.valu('v_lshrrev_b32', v(VRD), 4, v(TMP))
        a.valu('v_and_b32', v(TMP), 3, v(TMP))
        a.valu('v_xor_b32', v(TMP), v(TMP), v(VRD))
        a.valu('v_lshlrev_b32', v(VRD), 3, v(VRD))
        a.valu('v_and_b32', v(TMP2), 3, v(TMP2))
        a.valu('v_add_u32', v(VRD), v(VRD), v(TMP2))
        a.valu('v_mul_u32_u24', v(VSRC), 1152, v(VRD))
        a.valu('v_lshl_add_u32', v(VSRC), v(TMP), 4, v(VSRC))
        a.salu('s_mov_b32', s(SRD_X), s(pX)); a.salu('s_mov_b32', s(SRD_X + 1), s(pX + 1))
        a.salu('s_mov_b32', s(SRD_X + 2), 2048 * 1152); a.salu('s_mov_b32', s(SRD_X + 3), '0x20000')
        a.salu('s_lshr_b32', s(sT1), s(sW), 1); a.salu('s_mul_i32', s(sSRC), s(sT1), 4608)
        a.salu('s_and_b32', s(sT1), s(sW), 1); a.salu('s_mul_i32', s(sT2), s(sT1), 576); a.salu('s_add_u32', s(sSRC), s(sSRC), s(sT2))
        a.salu('s_mul_i32', s(sLDSW), s(sW), 9 * 1024)
        a.salu('s_mul_i32', s(sT1), s(sSEG), 32 * 1152); a.salu('s_add_u32', s(sSRC), s(sSRC), s(sT1))
        a.salu('s_mul_i32', s(sSA), s(sSTR), 32 * 1152)
        a.salu('s_mov_b32', s(sBUF), 0)
        dma(sBUF)
        a.salu('s_lshl_b32', s(sT1), s(sSEG), 5); a.salu('s_add_u32', s(sT1), s(sT1), s(sHh))
        a.salu('s_lshl_b32', s(sOUT), s(sT1), 14)
        a.salu('s_mul_i32', s(sT2), s(sW), 3072); a.salu('s_add_u32', s(sOUT), s(sOUT), s(sT2))
        a.salu('s_lshl_b32', s(sT2), s(sM), 11); a.salu('s_add_u32', s(sOUT), s(sOUT), s(sT2))
        a.salu('s_add_u32', s(sOUT), s(sOUT), C.WS_KV - 2048)
        a.salu('s_lshl_b32', s(sT1), s(sT1), 13); a.salu('s_add_u32', s(sT1), s(sT1), C.WS_Q)
        a.salu('s_cmp_eq_u32', s(sM), 0, nodst=True)
        a.salu('s_cselect_b32', s(sOUT), s(sT1), s(sOUT))
        a.salu('s_cselect_b32', s(sO2), 4, 1); a.salu('s_cselect_b32', s(sHS), 1, 2)
        a.salu('s_lshl_b32', s(sO2), s(sO2), 10); a.salu('s_lshl_b32', s(sHS), s(sHS), 13)
        a.salu('s_lshl_b32', s(sOA), s(sHS), 5); a.salu('s_mul_i32', s(sOA), s(sOA), s(sSTR))
        a.salu('s_lshl_b32', s(sPRG), s(sHh), 7); a.salu('s_lshl_b32', s(sT1), s(sGRP), 2)
        a.salu('s_add_u32', s(sPRG), s(sPRG), s(sT1)); a.salu('s_add_u32', s(sPRG), s(sPRG), SY_PRG)
    def dma_ops(bufreg):
        ops = []
        for i in range(9):
            def f(i=i):
                if i == 0: a.salu('s_add_u32', s(sT2), s(bufreg), s(sLDSW))
                a.salu('s_add_u32', 'm0', s(sT2), i * 1024 - i * 64)
                a.nop(1)
                a.raw(f'    buffer_load_dwordx4 v{VSRC}, s[{SRD_X}:{SRD_X+3}], s{sSRC} offen offset:{i * 64} lds')
                a.pos += 1; a.vm_seq += 1
                if i == 8: a.salu('s_add_u32', s(sSRC), s(sSRC), s(sSA))
            ops.append(f)
        return ops
    def dma(bufreg):
        for f in dma_ops(bufreg): f()
    jobs = []
    for tt in range(9):
        for hd in range(2):
            def setup(a, tt=tt, hd=hd): a.salu('s_add_u32', s(sT0), s(sOUT1), tt * 64 * 8192 + hd * 256)
            rd = []
            for kk in range(2):
                for tau in range(2):
                    k_, b_ = ('a', tau * 72 + (2 * tt + kk) * 4) if hd else ('v', WF + tau * 72 + (2 * tt + kk) * 4)
                    for jp in range(2): rd.append((R(b_ + 2 * jp, 2, k_), tau, kk * 2048 + jp * 256))
            jobs.append((setup, 16 * 8192, rd))
    tr_loader(a, SRD_W, jobs, GA, TA, 25, 26, sT3, sT0, [40960 + 16384 * i for i in range(7)], mid=rest, at=at)
    a.salu('s_lshr_b32', s(sT0), s(sHh), 3); a.salu('s_cmp_eq_u32', s(sT0), 3, nodst=True); a.salu('s_cselect_b32', s(sT0), 1, s(sGRP))
    a.salu('s_cmp_lg_u32', s(sT0), 0, nodst=True)
    a.ins(f's_cbranch_scc1 {t}_noclr')
    for i in range(4): a.valu('v_mov_b32', v(8 + i), -1)
    a.valu('v_lshrrev_b32', v(25), 6, 'v0'); a.valu('v_mul_u32_u24', v(25), 12288 - 1024, v(25)); a.valu('v_add_u32', v(25), v(25), v(LWv))
    a.salu('s_lshl_b32', s(sT0), s(sHh), 9); a.salu('s_add_u32', s(sT0), s(sT0), C.WS_MEMH); a.salu('s_add_u32', s(sT1), s(sT0), 64 * 12288)
    a.label(f'{t}_clr')
    a.vmem('buffer_store_dwordx4', v(8, 4), v(25), srd, s(sT0), mods='offen sc1', load=False, data=v(8, 4))
    a.salu('s_add_u32', s(sT0), s(sT0), 4 * 12288)
    a.salu('s_cmp_lt_u32', s(sT0), s(sT1), nodst=True)
    a.ins(f's_cbranch_scc1 {t}_clr')
    a.label(f'{t}_noclr')
    a.salu('s_and_b32', s(sT0), s(sGRP), -2); a.salu('s_cmp_lg_u32', s(sT0), 2, nodst=True)
    a.ins(f's_cbranch_scc1 {t}_noclr2')
    for i in range(4): a.valu('v_mov_b32', v(8 + i), -1)
    a.salu('s_add_u32', s(sT0), s(sGRP), 60)
    a.salu('s_lshl_b32', s(sT2), s(sHh), 12)
    for base, sh, extra in ((C.WS_KM, 17, 0), (C.WS_VM, 17, 0), (C.WS_O, 18, 0), (C.WS_O, 18, 131072)):
        a.salu('s_lshl_b32', s(sT1), s(sT0), sh); a.salu('s_add_u32', s(sT1), s(sT1), s(sT2)); a.salu('s_add_u32', s(sT1), s(sT1), base + extra)
        for hh in range(2):
            a.vmem('buffer_store_dwordx4', v(8, 4), v(LWv), srd, s(sT1), mods='offen sc1', load=False, data=v(8, 4))
            if hh == 0: a.salu('s_add_u32', s(sT1), s(sT1), 4096)
    a.label(f'{t}_noclr2')
    if late: late(a)
    a.ins('s_barrier')
    a.salu('s_mov_b32', s(sBUF), XBUF)
    dma(sBUF)
    a.salu('s_mov_b32', s(sBUF), 0)
    a.salu('s_mov_b32', s(sRND), s(sNONCE))
    a.salu('s_cmp_eq_u32', s(sW), 0, nodst=True)
    a.salu('s_cselect_b32', 's34', 1, 0); a.salu('s_mov_b32', 's35', 0)
    sPRV = sT3
    a.salu('s_mov_b32', s(sPRV), '0x80000000')
    VR2 = 24
    def rdA(k, base):
        for x in range(2):
            tg = a.ds('ds_read_b128', v(AF + ((k % 4) * 2 + x) * 4, 4), v(base), mods=f'offset:{(x*18+k%18)*1024}')
        return tg
    a.valu('v_mov_b32', v(VRD), v(LANE16))
    def slot(k, x): return AF + ((k % 3) * 2 + x) * 4
    def rd(k, base):
        for x in range(2): tg = a.ds('ds_read_b128', v(slot(k, x), 4), v(base), mods=f'offset:{(x*18+k%18)*1024}')
        return tg
    for k in range(2): rd(k, VRD)
    a.salu('s_cmp_eq_u32', s(sM), 2, nodst=True)
    a.ins(f's_cbranch_scc1 {t}_vloop')
    def pub(valexpr):
        a.valu('v_mov_b32', v(TMP), valexpr)
        a.salu('s_mov_b64', 'exec', 's[34:35]')
        a.vmem('buffer_store_dword', v(TMP), 'off', srd, s(sPRG), mods='sc1', load=False)
        a.salu('s_mov_b64', 'exec', -1)
    def pack(isv, hd, x, tau):
        o, hi = (tau, x) if isv else (x, tau)
        src_ = ACC + ((hd * 2 + x) * 2 + tau) * 4
        for r in range(2): a.valu('v_cvt_pk_bf16_f32', v(PK + (hd * 2 + o) * 4 + 2 * hi + r), v(src_ + 2 * r), v(src_ + 2 * r + 1))
    def store(q):
        if q == 0: a.salu('s_mov_b32', s(sOUT1), s(sPRV))
        elif q == 2: a.salu('s_add_u32', s(sOUT1), s(sPRV), s(sHS))
        else: a.salu('s_add_u32', s(sOUT1), s(sOUT1), s(sO2))
        a.vmem('buffer_store_dwordx4', v(PK + q * 4, 4), v(LWv), srd, s(sOUT1), mods='offen sc1', load=False, data=v(PK + q * 4, 4))
    for isv in (0, 1):
        L = f'{t}_vloop' if isv else f'{t}_loop'
        a.fence()
        a.label(L)
        a.forget()
        a.salu('s_add_u32', s(sT1), s(sBUF), 2 * XBUF)
        a.salu('s_sub_u32', s(sT0), s(sT1), 4 * XBUF)
        a.salu('s_cselect_b32', s(sT1), s(sT1), s(sT0))
        a.salu('s_add_u32', s(sBUF), s(sBUF), XBUF)
        a.salu('s_cmp_eq_u32', s(sBUF), 4 * XBUF, nodst=True)
        a.salu('s_cselect_b32', s(sBUF), 0, s(sBUF))
        dops = dma_ops(sT1)
        for k in range(18):
            a.ins('s_waitcnt lgkmcnt(2)')
            n = 0
            for hd in range(2):
                for x in range(2):
                    for tau in range(2):
                        acc = v(ACC + ((hd * 2 + x) * 2 + tau) * 4, 4)
                        xf = v(slot(k, x), 4); wf = wfrag(hd, tau, k)
                        if k == 0: pack(isv, hd, x, tau)
                        a.auto = False
                        if isv: a.mfma(MF32, acc, xf, wf, 0 if k == 0 else acc)
                        else: a.mfma(MF32, acc, wf, xf, 0 if k == 0 else acc)
                        a.auto = True
                        n += 1
                        if n == 1: rd(k + 2, VRD if k + 2 < 18 else VR2)
                        if n == 3 and 1 <= k <= 4: store(k - 1)
                        if n == 3 and 5 <= k <= 13: dops[k - 5]()
                        if n == 3 and k == 14: a.valu('v_add_u32', v(VR2), s(sBUF), v(LANE16))
                        if n == 6 and k == 15:
                            a.ins('s_waitcnt vmcnt(9)'); a.ins('s_barrier')
                        if n == 3 and k == 16: pub(s(sRND))
        a.valu('v_mov_b32', v(VRD), v(VR2))
        a.salu('s_mov_b32', s(sPRV), s(sOUT))
        a.salu('s_add_u32', s(sOUT), s(sOUT), s(sOA))
        a.salu('s_add_u32', s(sRND), s(sRND), 1)
        a.salu('s_add_u32', s(sSEG), s(sSEG), s(sSTR))
        a.salu('s_cmp_lt_u32', s(sSEG), 64, nodst=True)
        a.ins(f's_cbranch_scc1 {L}')
        a.fence()
        for hd in range(2):
            for x in range(2):
                for tau in range(2): pack(isv, hd, x, tau)
        if not isv: a.ins(f's_branch {t}_done')
    a.label(f'{t}_done')
    for q in range(4): store(q)
    a.ins('s_waitcnt vmcnt(0) lgkmcnt(0)')
    a.ins('s_barrier')
    a.salu('s_add_u32', s(sT1), s(sNONCE), DONE)
    pub(s(sT1))
    a.salu('s_cmp_eq_u32', s(sM), 0, nodst=True)
    a.ins(f's_cbranch_scc1 {t}_nq')
    a.salu('s_add_u32', s(sPRG), s(sPRG), 4096)
    pub(s(sT1))
    a.label(f'{t}_nq')


def memkv_role(a: Asm, tag, sNONCE, sPAR, slp=4):
    t = tag
    ACC = 8
    regs = [24 + 4 * i for i in range(10)] + [208 + 4 * i for i in range(8)]
    VA, VF, TMP, TMP2, LWv = [1, 2, 3], 6, 4, 5, 7
    srd = s(SRD_WS, 4)
    sS, sSRCM, sDST = 19, 24, 26
    a.forget()
    a.valu('v_and_b32', v(TMP), 63, 'v0')
    a.valu('v_lshrrev_b32', v(TMP2), 4, v(TMP))
    for b in range(3):
        a.valu('v_add_u32', v(VA[b]), 4 * b, v(TMP2))
        a.valu('v_mul_u32_u24', v(VF), 11, v(VA[b])); a.valu('v_lshrrev_b32', v(VF), 5, v(VF))
        a.valu('v_add_u32', v(VA[b]), v(VA[b]), v(VF)); a.valu('v_lshlrev_b32', v(VA[b]), 7, v(VA[b]))
        a.valu('v_and_b32', v(VF), 7, v(TMP)); a.valu('v_lshl_add_u32', v(VA[b]), v(VF), 4, v(VA[b]))
    a.valu('v_min_u32', v(VF), 23, v(TMP)); a.valu('v_lshlrev_b32', v(VF), 9, v(VF))
    a.salu('s_mov_b32', s(sS), s(sPAR))
    a.salu('s_mul_i32', s(sSRCM), s(sS), 12288); a.salu('s_add_u32', s(sSRCM), s(sSRCM), C.WS_MEMH)
    a.salu('s_lshl_b32', s(sDST), s(sS), 5); a.salu('s_add_u32', s(sDST), s(sDST), s(sHh)); a.salu('s_lshl_b32', s(sDST), s(sDST), 12)
    a.salu('s_mov_b32', s(sT0), C.WS_KM)
    a.salu('s_cmp_eq_u32', s(sM), 2, nodst=True)
    a.salu('s_cselect_b32', s(sT0), C.WS_VM, s(sT0))
    a.salu('s_add_u32', s(sDST), s(sDST), s(sT0))
    a.salu('s_lshl_b32', s(sPRG), s(sHh), 7); a.salu('s_lshl_b32', s(sT0), s(sM), 1); a.salu('s_add_u32', s(sT0), s(sT0), s(sPAR))
    a.salu('s_lshl_b32', s(sT0), s(sT0), 2); a.salu('s_add_u32', s(sPRG), s(sPRG), s(sT0))
    a.salu('s_add_u32', s(sPRG), s(sPRG), SY_PRG + 128 - 8)
    a.fence()
    a.label(f'{t}_loop')
    a.forget()
    a.salu('s_cmp_lg_u32', s(sW), 0, nodst=True)
    a.ins(f's_cbranch_scc1 {t}_go')
    a.salu('s_mov_b32', s(sT2), s(sSRCM))
    a.salu('s_mov_b32', s(sT0), 1 << 22)
    a.label(f'{t}_wait')
    a.vmem('buffer_load_dword', v(TMP), v(VF), srd, s(sT2), mods='offen offset:384 sc1')
    a.salu('s_sub_u32', s(sT0), s(sT0), 1)
    a.ins(f's_cbranch_scc1 {t}_go')
    a.ins('s_waitcnt vmcnt(0)')
    a.valu('v_cmp_ne_u32', 'vcc', s(sNONCE), v(TMP))
    a.ins(f's_cbranch_vccz {t}_go')
    a.ins(f's_sleep {slp}')
    a.ins(f's_branch {t}_wait')
    a.label(f'{t}_go')
    a.ins('s_barrier')
    a.salu('s_mov_b32', s(sRND), 1 << 12)
    a.label(f'{t}_again')
    a.valu('v_mov_b32', v(TMP2), 0)
    tg = []
    for k in range(18):
        if k % 6 == 0: a.salu('s_add_u32', s(sT2), s(sSRCM), (k // 6) * 4096)
        tg.append(a.vmem('buffer_load_dwordx4', v(regs[k], 4), v(VA[k % 3]), srd, s(sT2), mods=f'offen offset:{((k // 3) & 1) * 2048} sc1'))
    a.salu('s_add_u32', s(sT1), s(sS), s(sNONCE)); a.salu('s_add_u32', s(sT1), s(sT1), 1)
    a.salu('s_cmp_eq_u32', s(sM), 2, nodst=True)
    a.ins(f's_cbranch_scc1 {t}_v')
    done0 = dict(a.done)
    for isv in (0, 1):
        if isv: a.label(f'{t}_v'); a.done = dict(done0)
        for k in range(18):
            a.wait(vm=tg[k])
            for hd in range(2):
                for tau in range(2):
                    acc = v(ACC + (hd * 2 + tau) * 4, 4); xf = v(regs[k], 4); wf = wfrag(hd, tau, k)
                    if isv: a.mfma(MF32, acc, xf, wf, 0 if k == 0 else acc)
                    else: a.mfma(MF32, acc, wf, xf, 0 if k == 0 else acc)
                a.valu('v_max3_u32', v(TMP2), v(TMP2), v(regs[k] + 2 * hd), v(regs[k] + 2 * hd + 1))
        if isv:
            for q4 in range(8): a.valu('v_pk_mul_f32', v(ACC + 2 * q4, 2), v(ACC + 2 * q4, 2), '0.5', mods='op_sel_hi:[1,0]')
        a.fence()
        if not isv: a.ins(f's_branch {t}_st')
    a.label(f'{t}_st')
    a.valu('v_cmp_eq_u32', 'vcc', -1, v(TMP2))
    a.salu('s_sub_u32', s(sRND), s(sRND), 1)
    a.ins(f's_cbranch_scc1 {t}_ok')
    a.ins(f's_cbranch_vccnz {t}_again')
    a.label(f'{t}_ok')
    a.salu('s_add_u32', s(sSRCM), s(sSRCM), 2 * 12288)
    for q4 in range(8): a.valu('v_cvt_pk_bf16_f32', v(24 + q4), v(ACC + 2 * q4), v(ACC + 2 * q4 + 1))
    a.salu('s_add_u32', s(sT0), s(sDST), 4096)
    a.vmem('buffer_store_dwordx4', v(24, 4), v(LWv), srd, s(sDST), mods='offen sc1', load=False, data=v(24, 4))
    a.vmem('buffer_store_dwordx4', v(28, 4), v(LWv), srd, s(sT0), mods='offen sc1', load=False, data=v(28, 4))
    a.ins('s_waitcnt vmcnt(0)')
    a.ins('s_barrier')
    a.valu('v_mov_b32', v(TMP), s(sT1))
    a.salu('s_mov_b64', 'exec', 's[34:35]')
    a.vmem('buffer_store_dword', v(TMP), 'off', srd, s(sPRG), mods='sc1', load=False)
    a.salu('s_mov_b64', 'exec', -1)
    a.salu('s_add_u32', s(sS), s(sS), 2)
    a.salu('s_add_u32', s(sDST), s(sDST), 2 << 17)
    a.salu('s_cmp_lt_u32', s(sS), 62, nodst=True)
    a.fence()
    a.ins(f's_cbranch_scc1 {t}_loop')
```

```python
from asmfw import Asm, R

MB = 1 << 20
WS_KV = 0
WS_Q = 32 * MB
WS_O = 48 * MB
WS_MEM = 64 * MB
WS_PART = 64 * MB + 65536
XOFF = 1 * MB
WS_KM = 68 * MB
WS_VM = 77 * MB
WS_M0 = 88 * MB
WS_MEMH = 86 * MB
WS_CPY = 92 * MB
WS_SYNC = 120 * MB
SY_CHF = WS_SYNC + 16384
SY_CPY = WS_SYNC + 24576
WS_SIZE = 256 * MB

K = 1024
L_MISC = 96 * K
L_MBUF = L_MISC
L_TB = L_MISC + 9216
L_DUMP = L_MISC + 9728
L_NON = L_MISC + 9984
L_SEL = L_MISC + 10240
L_MM = L_MISC + 11264
L_SC = L_MISC + 12288
L_OB = L_MBUF + 4096
B_LW0, B_LW1 = 56 * K, 96 * K

LDS_ADDR = {}
for _t in range(4):
    LDS_ADDR[('k', 0, _t)] = _t * 16 * K
    LDS_ADDR[('k', 1, _t)] = _t * 16 * K + 8 * K
LDS_ADDR[('q', 0, 0)] = 64 * K; LDS_ADDR[('q', 1, 0)] = 72 * K
LDS_ADDR[('k', 0, 8)] = 80 * K; LDS_ADDR[('k', 1, 8)] = 88 * K
LDS_ADDR[('o', 2, 2)] = 112 * K; LDS_ADDR[('o', 3, 2)] = 120 * K
LDS_ADDR[('o', 2, 3)] = 128 * K; LDS_ADDR[('o', 3, 3)] = 136 * K
LDS_ADDR[('o', 4, 0)] = 144 * K; LDS_ADDR[('o', 4, 1)] = 152 * K

AQ0, AK0, AQ1, AK1, AV0, AV1 = 0, 4, 8, 12, 16, 20
Rq = [24 + 4 * i for i in range(9)]
IDX, LH, LW0, LW1, LW2, L16, PST, PSX, OR0, MST, MMW, LW3 = range(60, 72)
ZZ, OA1, OA2, OA3, OW, MMR, PFA = 72, 74, 75, 76, 77, 78, 79
VW0 = 80

def all_frags():
    fr = [(m, t, sl) for m in 'qkv' for sl in range(9) for t in range(2)]
    fr += [('o', u, k) for u in range(4) for k in range(4)] + [('o', 4, 0), ('o', 4, 1)]
    return fr
REGF = {}
_res = [f for f in all_frags() if f not in LDS_ADDR]
assert len(_res) == 54
for _i, _f in enumerate(_res): REGF[_f] = ('a', _i * 8) if _i < 32 else ('v', VW0 + (_i - 32) * 8)
def freg(f): return R(REGF[f][1], 8, REGF[f][0])

SRD, SRDW = 4, 8
sH, sW = 12, 13
sMEM, sMEM4, sMEM8, sMST, sMRS = 14, 15, 16, 17, 18
sPL, sPS0, sPS1, sPSX = 19, 20, 21, 22
sKX, sPF, sKM, sVM, sFL = 23, 24, 25, 26, 27
sSTEP, sSPIN, sTAG, sMSU = 28, 29, 30, 31
sSTM, sHI8, sW0M, sLO8 = 32, 34, 36, 38
sT0, sT1, sT2, sT3 = 40, 41, 42, 43
sC1, sNC1, sK128 = 44, 46, 47
sPTR = 48
sONE, sHALF = 60, 62
sROLE, sFV = 64, 65
sAL = 47
sD1 = 58
sACC = 68
sNONCE = 95
sSUM = 96

SMF = 'v_smfmac_f32_16x16x64_bf16'
MF32 = 'v_mfma_f32_16x16x32_bf16'
MF16 = 'v_mfma_f32_16x16x16_bf16'
def s(i, n=1): return R(i, n, 's')
def v(i, n=1): return R(i, n, 'v')

def lds_base(addr):
    if addr + 4096 < 64 * K: return LH, addr
    if addr < L_MISC + 16 * K: return LW0, addr - B_LW0
    return LW1, addr - B_LW1

class Chain:
    def __init__(self, a, tag, fl='', lfl='nt', pfl='sc1', xoff=0, nsteps=64, timing=0, dA=0, dB=24, d0=0, d1=24, dX=0, nopub=0, nopf=0,
                 hook=None, nomax=0, gap=0, dual=0, tstep=40, spinmax=1 << 16, prof=None, pstride=8, pA=20, pF=30, rt=0, dW=0, ks=2, early=1, k1=1, pskip=0, dZ=60, dE=0, ins0=0, p1=1, epf=1, npr=10, pg=6, dP=10, k0=1, pG=30, eo=1, w0hook=None, pbr=1, ppos=1, ptrace=None, lcap=16, lrev=5, gs=2, lord=1, lasy=4, lt=1, lpri=5, gforce=0, cpy=None, swn=4, swe=5, pf128=0, pfe=0, xnop=0, c1n=2, bf=0, hb=0, ha=1, hx=0, lsd=3, lte=3, tx=0, lbo=0, p0d=0, dY=0, one3=0):
        self.dY = dY; self.one3 = one3
        self.p0d = p0d
        self.lbo = lbo
        self.tx = tx
        self.lsd = lsd; self.lte = lte
        self.hx = hx
        self.hb = hb; self.ha = ha
        self.bf = bf
        self.c1n = c1n
        self.xnop = xnop
        self.pf128 = pf128; self.pfe = pfe
        self.swe = swe
        self.swn = swn
        self.cpy = cpy
        self.gforce = gforce
        self.lpri = lpri; self.tick = lambda: None
        self.lasy = lasy; self.lt = lt
        self.lord = lord
        self.gs = gs
        self.lcap = lcap; self.lrev = lrev
        self.ptrace = ptrace
        self.pbr = pbr; self.ppos = ppos
        self.w0hook = w0hook
        self.eo = eo
        self.k0 = k0; self.pG = pG
        self.npr = npr; self.pg = pg; self.dP = dP
        self.p1 = p1; self.epf = epf
        self.ins0 = ins0
        self.dZ = dZ; self.dE = dE
        self.pskip = pskip
        self.k1 = k1
        self.ks = ks; self.early = early
        self.dW = dW
        self.clk = 's_memrealtime' if rt else 's_memtime'
        self.pA = pA; self.pF = pF
        self.prof = prof; self.pstride = pstride
        self.a = a; self.tag = tag; self.fl = fl; self.lfl = lfl; self.pfl = pfl
        self.wsmem = WS_MEM + xoff; self.wspart = WS_PART + xoff; self.nsteps = nsteps; self.timing = timing
        self.dA = dA; self.dB = dB; self.d0 = d0; self.d1 = d1; self.dX = dX; self.nopub = nopub; self.nopf = nopf
        self.hook = hook; self.nomax = nomax; self.gap = gap; self.dual = dual; self.tstep = tstep; self.spinmax = spinmax

    def stamp(self, i):
        if self.prof is not None:
            if i == self.prof and not getattr(self.a, '_prof', None): self.a.start_prof(sACC, self.pstride, 12, self.pskip)
        elif self.timing == 1 or (self.timing == 2 and i == 0): self.a.ins(f'{self.clk} s[{sACC+2*i}:{sACC+2*i+1}]')

    def addresses(self):
        a = self.a
        T0, T1, C, G = 0 + 24, 25, 26, 27
        a.valu('v_lshrrev_b32', v(T0), 6, 'v0')
        a.valu('v_lshlrev_b32', v(LH), 4, 'v0')
        a.valu('v_add_u32', v(LW0), B_LW0, v(LH))
        a.valu('v_xor_b32', v(LW1), 1024, v(LH)); a.valu('v_add_u32', v(LW1), B_LW1, v(LW1))
        a.valu('v_xor_b32', v(LW2), 2048, v(LH)); a.valu('v_add_u32', v(LW2), B_LW1, v(LW2))
        a.valu('v_and_b32', v(L16), 1023, v(LH)); a.valu('v_add_u32', v(L16), B_LW1, v(L16))
        a.valu('v_and_b32', v(C), 15, 'v0')
        a.valu('v_bfe_u32', v(G), 'v0', 4, 2)
        a.valu('v_mov_b32', v(IDX), '0x4444'); a.valu('v_mov_b32', v(T1), '0xeeee')
        a.valu('v_cmp_lt_u32', 'vcc', 7, v(C))
        a.valu('v_cndmask_b32', v(IDX), v(IDX), v(T1), 'vcc')
        self.tick()
        a.valu('v_and_b32', v(PSX), 12, v(C)); a.valu('v_lshlrev_b32', v(PSX), 3, v(PSX))
        a.valu('v_and_b32', v(T1), 1, v(C)); a.valu('v_lshl_add_u32', v(PSX), v(T1), 4, v(PSX))
        a.valu('v_bfe_u32', v(T1), v(C), 1, 1); a.valu('v_lshl_add_u32', v(PSX), v(T1), 3, v(PSX))
        a.valu('v_lshl_add_u32', v(PST), v(G), 14, v(PSX)); a.valu('v_lshl_add_u32', v(PST), v(T0), 17, v(PST))
        self.tick()
        a.valu('v_and_b32', v(PSX), 63, v(PSX))
        a.valu('v_lshrrev_b32', v(T1), 1, v(T0)); a.valu('v_lshl_add_u32', v(PSX), v(T1), 18, v(PSX))
        a.valu('v_lshl_add_u32', v(PSX), v(G), 16, v(PSX))
        a.valu('v_lshrrev_b32', v(T1), 3, v(C)); a.valu('v_lshl_add_u32', v(PSX), v(T1), 15, v(PSX))
        a.valu('v_and_b32', v(T1), 1, v(T0)); a.valu('v_lshl_add_u32', v(PSX), v(T1), 6, v(PSX))
        self.tick()
        a.valu('v_and_b32', v(T1), 31, 'v0')
        a.valu('v_lshlrev_b32', v(MMW), 4, v(T1))
        a.valu('v_lshlrev_b32', v(28), 3, v(T1)); a.valu('v_add_u32', v(28), L_DUMP, v(28))
        a.valu('v_lshrrev_b32', v(T1), 1, v(T0)); a.valu('v_lshl_add_u32', v(MMW), v(T1), 9, v(MMW))
        a.valu('v_and_b32', v(T1), 1, v(T0)); a.valu('v_lshl_add_u32', v(MMW), v(T1), 3, v(MMW))
        a.valu('v_add_u32', v(MMW), L_MM, v(MMW))
        a.valu('v_cmp_gt_u32', 'vcc', 2, v(G))
        a.valu('v_cndmask_b32', v(MMW), v(MMW), v(28), 'vcc')
        self.tick()
        a.valu('v_xor_b32', v(LW3), 2048, v(LW1))
        a.valu('v_lshrrev_b32', v(OR0), 4, 'v0'); a.valu('v_lshlrev_b32', v(OR0), 7, v(OR0))
        a.valu('v_and_b32', v(T1), 7, v(C)); a.valu('v_lshl_add_u32', v(OR0), v(T1), 4, v(OR0)); a.valu('v_add_u32', v(OR0), L_OB, v(OR0))
        for i, r in enumerate((OA1, OA2, OA3)): a.valu('v_xor_b32', v(r), 512 * (i + 1), v(OR0))
        a.valu('v_lshrrev_b32', v(T1), 3, v(C)); a.valu('v_lshl_add_u32', v(OW), v(T1), 3, v(OR0))
        a.valu('v_or_b32', v(MMR), 512, v(L16)); a.valu('v_lshlrev_b32', v(PFA), 2, v(LH))
        if self.pf128: a.valu('v_and_b32', v(PFA), '0xffffff80', v(PFA))
        a.valu('v_mov_b64', v(ZZ, 2), 0)
        a.valu('v_and_b32', v(T1), 1, v(G)); a.valu('v_lshlrev_b32', v(MST), 7, v(T1))
        a.valu('v_lshrrev_b32', v(T1), 1, v(G)); a.valu('v_lshl_add_u32', v(MST), v(T1), 3, v(MST))
        a.valu('v_and_b32', v(T1), 3, v(C)); a.valu('v_lshl_add_u32', v(MST), v(T1), 4, v(MST))
        a.valu('v_bfe_u32', v(T1), v(C), 2, 1); a.valu('v_lshl_add_u32', v(MST), v(T1), 2, v(MST))
        self.tick()
        a.salu('s_mov_b32', s(sSTM), '0x00ff00ff'); a.salu('s_mov_b32', s(sSTM + 1), '0x00ff00ff')
        a.salu('s_not_b64', s(sHI8, 2), s(sSTM, 2))
        a.salu('s_lshr_b32', s(sMSU), s(sH), 1); a.salu('s_lshl_b32', s(sMSU), s(sMSU), 8)
        a.salu('s_and_b32', s(sT0), s(sH), 1); a.salu('s_lshl_b32', s(sT0), s(sT0), 6); a.salu('s_add_u32', s(sMSU), s(sMSU), s(sT0))
        a.salu('s_and_b32', s(sT0), s(sW), 1); a.salu('s_lshl_b32', s(sT0), s(sT0), 12)
        a.salu('s_add_u32', s(sMSU), s(sMSU), s(sT0))
        a.salu('s_lshl_b32', s(sPL), s(sH), 14); a.salu('s_add_u32', s(sPL), s(sPL), self.wspart - B_LW1)
        a.salu('s_add_u32', s(sT1), s(sPL), 8192)
        a.salu('s_add_u32', s(sPL), s(sPL), s(sT0))
        a.salu('s_and_b32', s(sT0), s(sH), 1); a.salu('s_lshl_b32', s(sT0), s(sT0), 2); a.salu('s_or_b32', s(sT0), s(sT0), s(sW))
        a.salu('s_cmp_eq_u32', s(sT0), 5, nodst=True)
        a.salu('s_cselect_b32', s(sROLE), 0, s(sW))
        a.salu('s_cmp_lg_u32', s(sW), 1, nodst=True)
        a.ins(f's_cbranch_scc1 {self.tag}_notx')
        a.salu('s_mov_b32', s(sSTM), '0xff'); a.salu('s_mov_b32', s(sSTM + 1), '0xff')
        a.salu('s_mov_b32', s(sPL), s(sT1))
        a.salu('s_lshr_b32', s(sMSU), s(sH), 3); a.salu('s_lshl_b32', s(sMSU), s(sMSU), 8)
        a.salu('s_and_b32', s(sT0), s(sH), 2); a.salu('s_lshl_b32', s(sT0), s(sT0), 6); a.salu('s_add_u32', s(sMSU), s(sMSU), s(sT0))
        a.salu('s_and_b32', s(sT0), s(sH), 4); a.salu('s_lshl_b32', s(sT0), s(sT0), 4); a.salu('s_add_u32', s(sMSU), s(sMSU), s(sT0))
        a.salu('s_add_u32', s(sMSU), s(sMSU), 8192)
        a.label(f'{self.tag}_notx')
        a.salu('s_cmp_lg_u32', s(sW), 0, nodst=True)
        a.ins(f's_cbranch_scc1 {self.tag}_notp')
        a.salu('s_min_u32', s(sT0), s(sH), 23); a.salu('s_mul_i32', s(sT0), s(sT0), 384); a.salu('s_add_u32', s(sT0), s(sT0), L_MBUF)
        a.valu('v_add_u32', v(MST), s(sT0), v(LH))
        a.valu('v_mov_b32', v(T1), L_NON)
        a.valu('v_cmp_lt_u32', 'vcc', 23, 'v0')
        a.valu('v_cndmask_b32', v(MST), v(MST), v(T1), 'vcc')
        a.label(f'{self.tag}_notp')
        a.fence()

    def init_exchange(self):
        a = self.a; srd = s(SRD, 4)
        self.tick()
        for i in range(4): a.valu('v_mov_b32', v(28 + i), 1)
        a.salu('s_lshl_b32', s(sT0), s(sH), 14); a.salu('s_add_u32', s(sT0), s(sT0), self.wspart)
        for rd in range(3):
            a.salu('s_add_u32', s(sT1), s(sT0), rd * 4096)
            a.vmem('buffer_store_dwordx4', v(28, 4), v(LH), srd, s(sT1), mods='offen ' + self.fl, load=False, data=v(28, 4))
        a.salu('s_cmp_eq_u32', s(sROLE), 0, nodst=True)
        a.salu('s_cselect_b64', 'exec', 0, s(sSTM, 2))
        a.valu('v_mov_b32', v(27), -1)
        for i in range(4):
            a.salu('s_add_u32', s(sT1), s(sMSU), self.wsmem + i * 16384)
            a.vmem('buffer_store_dword', v(27), v(MST), srd, s(sT1), mods='offen ' + self.fl, load=False)
        a.salu('s_mov_b64', 'exec', -1)
        self.tick()
        a.salu('s_mov_b64', s(68, 2), s(sPTR, 2))
        a.salu('s_mov_b32', s(70), 9216); a.salu('s_mov_b32', s(71), '0x20000')
        a.valu('v_and_b32', v(25), 7, 'v0'); a.valu('v_mul_u32_u24', v(25), 1152, v(25))
        a.valu('v_lshrrev_b32', v(26), 3, 'v0'); a.valu('v_lshl_add_u32', v(25), v(26), 4, v(25))
        a.vmem('buffer_load_dwordx4', v(36, 4), v(25), s(68, 4), 0, mods='offen')
        a.vmem('buffer_load_dwordx4', v(40, 4), v(25), s(68, 4), 0, mods='offen offset:512')
        a.valu('v_bfe_u32', v(25), 'v0', 2, 3); a.valu('v_mul_u32_u24', v(25), 1152, v(25))
        a.valu('v_lshrrev_b32', v(26), 5, 'v0'); a.valu('v_lshl_add_u32', v(25), v(26), 4, v(25))
        a.valu('v_and_b32', v(26), 3, 'v0'); a.valu('v_lshl_add_u32', v(25), v(26), 2, v(25))
        a.vmem('buffer_load_dword', v(44), v(25), s(68, 4), 0, mods='offen offset:1024')

    def init_late(self):
        a = self.a; srd = s(SRD, 4)
        for r in range(36, 45): a.valu('v_min_u32', v(r), -2, v(r))
        a.salu('s_lshl_b32', s(sMEM), s(sH), 16); a.salu('s_add_u32', s(sMEM), s(sMEM), WS_M0)
        a.salu('s_add_u32', s(sT1), s(sMEM), 4096); a.salu('s_add_u32', s(sT2), s(sMEM), 8192)
        a.valu('v_lshrrev_b32', v(45), 2, v(LH))
        a.vmem('buffer_store_dwordx4', v(36, 4), v(LH), srd, s(sMEM), mods='offen ' + self.fl, load=False, data=v(36, 4))
        a.vmem('buffer_store_dwordx4', v(40, 4), v(LH), srd, s(sT1), mods='offen ' + self.fl, load=False, data=v(40, 4))
        a.vmem('buffer_store_dword', v(44), v(45), srd, s(sT2), mods='offen ' + self.fl, load=False)

    def constants(self):
        a = self.a
        C, E, LO, HI = 28, 29, 31, 32
        a.valu('v_bfe_u32', v(C), v(LH), 4, 4)
        a.valu('v_bfe_u32', v(E), v(LH), 8, 1); a.valu('v_lshlrev_b32', v(E), 2, v(E)); a.valu('v_sub_u32', v(E), v(C), v(E))
        a.valu('v_mov_b32', v(LO), '0x3f80'); a.valu('v_mov_b32', v(HI), '0x3f800000')
        for m in range(4):
            self.tick()
            lo = 2 * m if m < 2 else 2 * m + 4
            a.valu('v_cmp_eq_u32', 'vcc', lo, v(E)); a.valu('v_cndmask_b32', v(16 + m), 0, v(LO), 'vcc')
            a.valu('v_cmp_eq_u32', 'vcc', lo + 1, v(E)); a.valu('v_cndmask_b32', v(16 + m), v(16 + m), v(HI), 'vcc')
            a.valu('v_cmp_eq_u32', 'vcc', 2 * m, v(C)); a.valu('v_cndmask_b32', v(20 + m), 0, v(LO), 'vcc')
            a.valu('v_cmp_eq_u32', 'vcc', 2 * m + 1, v(C)); a.valu('v_cndmask_b32', v(20 + m), v(20 + m), v(HI), 'vcc')

    def constants_put(self):
        a = self.a
        a.ds('ds_write_b128', v(MMR), v(16, 4), mods=f'offset:{L_TB - 512 - B_LW1}')
        a.ds('ds_write_b128', v(L16), v(20, 4), mods=f'offset:{L_SEL - B_LW1}')
        for m in range(4): a.valu('v_mov_b32', v(44 + m), s(sNONCE))
        a.valu('v_mov_b32', v(48), L_NON)
        a.ds('ds_write_b128', v(48), v(44, 4))

    def load_lanes(self):
        a = self.a
        GA, GO, GX, TA, TO, TX, T0, T1, T2 = 48, 49, 50, 51, 52, 53, 54, 55, 56
        L = 57
        a.valu('v_lshrrev_b32', v(T0), 6, 'v0')
        a.valu('v_readfirstlane_b32', s(sW), v(T0))
        a.valu('v_and_b32', v(L), 63, 'v0')
        def bit(dst, src, b, sh, acc):
            a.valu('v_bfe_u32', v(T0), v(src), b, 1)
            if acc: a.valu('v_lshl_add_u32', v(dst), v(T0), sh, v(dst))
            else: a.valu('v_lshlrev_b32', v(dst), sh, v(T0))
        bit(GA, L, 2, 13, 0); bit(GA, L, 3, 15, 1); bit(GA, L, 4, 14, 1); bit(GA, L, 5, 16, 1)
        a.valu('v_lshrrev_b32', v(T1), 4, v(L)); a.valu('v_and_b32', v(T1), 2, v(T1)); a.valu('v_xor_b32', v(T1), v(T1), v(L))
        a.valu('v_and_b32', v(T1), 3, v(T1)); a.valu('v_lshl_add_u32', v(GA), v(T1), 4, v(GA))
        bit(TA, L, 2, 6, 0); bit(TA, L, 3, 9, 1); bit(TA, L, 4, 7, 1); bit(TA, L, 5, 12, 1)
        bit(TA, L, 0, 3, 1); bit(TA, L, 1, 4, 1); bit(TA, L, 3, 5, 1)
        a.valu('v_lshrrev_b32', v(T1), 3, v(L)); a.valu('v_mul_u32_u24', v(GO), 1152, v(T1))
        a.valu('v_and_b32', v(T1), 7, v(L)); a.valu('v_lshl_add_u32', v(GO), v(T1), 4, v(GO))
        bit(TO, L, 4, 13, 0); bit(TO, L, 5, 9, 1); bit(TO, L, 2, 7, 1); bit(TO, L, 3, 5, 1)
        a.valu('v_and_b32', v(T1), 3, v(L)); a.valu('v_lshl_add_u32', v(TO), v(T1), 3, v(TO))
        a.valu('v_lshrrev_b32', v(T1), 2, v(L)); a.valu('v_mul_u32_u24', v(GX), 1152, v(T1))
        a.valu('v_and_b32', v(T1), 3, v(L)); a.valu('v_lshl_add_u32', v(GX), v(T1), 4, v(GX))
        bit(TX, L, 4, 12, 0); bit(TX, L, 5, 8, 1); bit(TX, L, 2, 6, 1); bit(TX, L, 3, 5, 1)
        a.valu('v_and_b32', v(T1), 3, v(L)); a.valu('v_lshl_add_u32', v(TX), v(T1), 3, v(TX))
        sWK, sX16 = 66, 93
        a.salu('s_lshl_b32', s(sWK), s(sW), 10)
        a.salu('s_and_b32', s(sX16), s(sW), self.gs - 1); a.salu('s_lshl_b32', s(sX16), s(sX16), 14)
        a.salu('s_and_b32', s(75), s(sW), 4 - self.gs); a.salu('s_lshl_b32', s(75), s(75), 19)
        for r in (TA, TO, TX): a.valu('v_add_u32', v(r), s(sWK), v(r))
        a.valu('v_mov_b32', v(58), v(GA))
        a.salu('s_mov_b32', s(SRDW + 2), 576 * 8192); a.salu('s_mov_b32', s(SRDW + 3), '0x20000')

    def load_sub(self):
        a = self.a; t = self.tag
        a.label(f'{t}_dma')
        a.salu('s_xor_b32', s(74), s(76), s(81))
        a.salu('s_add_u32', 'm0', s(74), s(80))
        a.salu('s_add_u32', s(76), s(76), 4096)
        a.raw(f'    buffer_load_dwordx4 v58, s[{SRDW}:{SRDW+3}], s78 offen lds')
        a.salu('s_add_u32', s(78), s(78), s(79))
        a.salu('s_cmp_lt_u32', s(76), s(77), nodst=True)
        a.ins(f's_cbranch_scc1 {t}_dma')
        a.ins('s_setpc_b64 s[82:83]')

    def load_weights(self):
        a = self.a; t = self.tag
        GA, GO, GX, TA, TO, TX, T0, T1, T2 = 48, 49, 50, 51, 52, 53, 54, 55, 56
        sWK, sCOL, sOB, sX16, sKS = 66, 67, 92, 93, 94
        a.salu('s_lshl_b32', s(sCOL), s(sH), 8); a.salu('s_lshl_b32', s(sT0), s(sW), 6); a.salu('s_add_u32', s(sCOL), s(sCOL), s(sT0))
        a.salu('s_mul_i32', s(sOB), s(sH), 128 * 1152)
        a.salu('s_lshr_b32', s(73), s(sPTR + 2), 8); a.salu('s_add_u32', s(73), s(73), s(sH)); a.salu('s_and_b32', s(73), s(73), 31)
        a.salu('s_bitcmp1_b32', '0xa2222222', s(73), nodst=True)
        a.salu('s_cselect_b32', s(88), 1 if self.cpy else 0, 0); a.salu('s_mov_b32', s(72), 0)
        a.salu('s_add_u32', s(73), s(73), 1); a.salu('s_lshr_b32', s(73), s(73), 2)
        def switch():
            L = f'{t}_ncp{len(a.lines)}'
            a.salu('s_cmp_eq_u32', s(88), 0, nodst=True)
            a.ins(f's_cbranch_scc1 {L}')
            self.cpy(a, L)
            a.salu('s_mov_b32', s(88), 0); a.salu('s_mov_b32', s(72), 5)
            a.salu('s_lshl_b32', s(74), s(73), 19); a.salu('s_add_u32', s(74), s(74), WS_CPY)
            a.salu('s_add_u32', s(sPTR + 2), s(SRD), s(74)); a.salu('s_addc_u32', s(sPTR + 3), s(SRD + 1), 0)
            for i in ((4, 6) if self.swn < 4 else (4,)): a.salu('s_add_u32', s(sPTR + i), s(sPTR + i - 2), 576 * 256); a.salu('s_addc_u32', s(sPTR + i + 1), s(sPTR + i - 1), 0)
            a.salu('s_lshl_b32', s(sCOL), s(sW), 6)
            a.valu('v_and_b32', v(T0), 63, v(GA)); a.valu('v_lshrrev_b32', v(GA), 13, v(GA)); a.valu('v_lshl_add_u32', v(GA), v(GA), 8, v(T0))
            a.lines.append(L + ':')
            cur['va'] = None; cur['st'] = None; cur['m'] = None; cur['sw'] = True
        pW = {'q': sPTR + 2, 'k': sPTR + 4, 'v': sPTR + 6, 'o': sPTR + 8}
        cur = {'m': None, 'va': GA, 'st': None, 'x': None, 'sw': False}
        def call(m, va, step, xm, buf, lo, hi):
            if cur['m'] != m: a.salu('s_mov_b64', s(SRDW, 2), s(pW[m], 2)); cur['m'] = m
            if cur['va'] != va: a.valu('v_mov_b32', v(58), v(va)); cur['va'] = va
            if cur['st'] != step:
                if va == GA and cur['sw']: a.salu('s_lshr_b32', s(79), step, s(72))
                else: a.salu('s_mov_b32', s(79), step)
                cur['st'] = step
            if cur['x'] != xm: a.salu('s_mov_b32', s(81), xm); cur['x'] = xm
            if lo == 0: a.salu('s_add_u32', s(80), s(sWK), buf); a.salu('s_mov_b32', s(76), 0)
            a.salu('s_mov_b32', s(77), hi * 4096)
            a.ins(f's_call_b64 s[82:83], {t}_dma')
            a.vm_seq += hi - lo
        def issue(job):
            kind, m, x, buf = job
            if kind == 'g':
                cur['ng'] = cur.get('ng', 0) + 1
                if self.cpy and self.swn < cur['ng'] <= self.swn + self.swe: switch()
                if self.cpy and self.swn <= cur['ng'] < self.swn + self.swe: self.cpy(a, None)
                a.salu('s_xor_b32', s(78), s(75), x * self.gs * 64 * 8192)
                if cur['sw']: a.salu('s_lshr_b32', s(78), s(78), s(72))
                a.salu('s_add_u32', s(78), s(78), s(sCOL))
                for p in range(0, 4 * self.gs, 2): call(m, GA, 16 * 8192, s(sX16), buf, p, p + 2); yield
            elif kind == 's':
                if cur['sw']: a.salu('s_lshr_b32', s(78), 512 * 8192, s(72)); a.salu('s_add_u32', s(78), s(78), s(sCOL))
                else: a.salu('s_add_u32', s(78), s(sCOL), 512 * 8192)
                for p in (0, 2): call(m, GA, 16 * 8192, 0, buf, p, p + 2); yield
            elif kind == 'o':
                a.salu('s_xor_b32', s(sKS), s(sW), x[1]); a.salu('s_mul_i32', s(sKS), s(sKS), 32 * 1152)
                a.salu('s_add_u32', s(sKS), s(sKS), s(sOB))
                a.salu('s_lshl_b32', s(74), s(sW), 7); a.salu('s_add_u32', s(sKS), s(sKS), s(74))
                a.salu('s_add_u32', s(78), s(sKS), x[0] * 512)
                for p in (0, 2): call(m, GO, 8 * 1152, 0, buf, p, p + 2); yield
            else:
                for kk in range(2):
                    a.salu('s_xor_b32', s(sKS), s(sW), 2 * kk); a.salu('s_mul_i32', s(sKS), s(sKS), 32 * 1152)
                    a.salu('s_add_u32', s(sKS), s(sKS), s(sOB))
                    a.salu('s_lshr_b32', s(74), s(sW), 1); a.salu('s_lshl_b32', s(74), s(74), 6)
                    a.salu('s_add_u32', s(sKS), s(sKS), s(74))
                    a.salu('s_add_u32', s(78), s(sKS), 1024)
                    call(m, GX, 16 * 1152, 0, buf, 2 * kk, 2 * kk + 2); yield
        def build(frs, base, offs, buf):
            a.valu('v_add_u32', v(T1), buf, v(base))
            if base == TA: a.valu('v_xor_b32', v(T2), 32, v(T1))
            tmp = {}
            for fi, f in enumerate(frs):
                k, b = ('v', 8 * fi) if f in LDS_ADDR else REGF[f]
                for jp in range(4):
                    alt, off = offs(fi, jp)
                    a.ds('ds_read_b64_tr_b16', R(b + 2 * jp, 2, k), v(T2 if alt else T1), mods=f'offset:{off}')
                self.tick()
            self.side()
            a.wait(lds='all')
            wr = False
            for fi, f in enumerate(frs):
                if f in LDS_ADDR:
                    rg, off = lds_base(LDS_ADDR[f])
                    if rg == LW1:
                        a.ins('s_barrier')
                    a.ds('ds_write_b128', v(rg), v(8 * fi, 4), mods=f'offset:{off}')
                    a.ds('ds_write_b128', v(rg), v(8 * fi + 4, 4), mods=f'offset:{off + 4096}')
                    wr = True
            if wr: a.wait(lds='all')
        oq = lambda fi, jp: (fi, (jp >> 1) * 8192 + (jp & 1) * 256)
        oo = lambda fi, jp: (0, (jp >> 1) * 4096 + (jp & 1) * 256 + fi * 64)
        ox = lambda fi, jp: (0, fi * 8192 + (jp >> 1) * 512 + (jp & 1) * 128)
        def consume(job):
            kind, m, x, buf = job
            if kind == 'g':
                for i in range(self.gs): build([(m, 0, x * self.gs + i), (m, 1, x * self.gs + i)], TA, oq, buf + i * 16384)
            elif kind == 's': build([(m, 0, 8), (m, 1, 8)], TA, oq, buf)
            elif kind == 'o': build([('o', 2 * x[0], x[1]), ('o', 2 * x[0] + 1, x[1])], TO, oo, buf)
            else: build([('o', 4, 0), ('o', 4, 1)], TX, ox, buf)
        jobs = [['o', 'o', x, None] for x in ((0, 0), (0, 1), (0, 2), (0, 3), (1, 0), (1, 1))] + [['s', 'v', 8, None]] + [['g', 'v', x, None] for x in range(4)] + [
                ['g', 'k', 2, None], ['g', 'k', 3, None], ['g', 'q', 2, None], ['g', 'q', 3, None], ['s', 'q', 8, None], ['g', 'q', 1, None],
                ['g', 'q', 0, 64 * K], ['g', 'k', 0, 0], ['g', 'k', 1, 32 * K], ['x', 'o', 0, 144 * K], ['o', 'o', (1, 3), 128 * K], ['o', 'o', (1, 2), 112 * K], ['s', 'k', 8, 80 * K]]
        size = lambda j: self.gs * 16 * K if j[0] == 'g' else 16 * K
        def finals(j):
            if j[:3] == ['g', 'q', 0]: return [(64 * K, 80 * K)]
            if j[3] is not None and j[4]: return [(j[3], j[3] + size(j))]
            return []
        for j in jobs: j.append(j[3] is not None)
        def place(n, done):
            busy = [(jobs[x][3], jobs[x][3] + size(jobs[x])) for x in range(done, n)] + [sp for x in range(n) for sp in finals(jobs[x])]
            if not jobs[n][4]: busy += finals(jobs[n])
            cands = [K * [112, 80, 16, 0, 144, 96, 32, 112, 64, 0, 32, 128, 64, 0, 32, 96, 112, 64, 0, 32, 144, 128, 112, 80][n]]
            for lo in cands:
                if all(b[1] <= lo or b[0] >= lo + size(jobs[n]) for b in busy): return lo
            return None
        tags = {}; S = dict(n=0, gen=None, left=0, j=0, out=0, bonus=0, bq=0)
        def tick(force=False):
            if S['gen'] is None:
                n = S['n']
                if n >= len(jobs): return False
                lo = place(n, S['j'])
                if lo is None: return False
                if S['out'] + 2 > min(24, self.lcap + S['bonus']) and not force: return False
                jobs[n][3] = lo; S['gen'] = issue(jobs[n][:4]); S['left'] = size(jobs[n]) // 8192
            elif S['out'] + 2 > min(24, self.lcap + S['bonus']) and not force: return False
            next(S['gen']); S['left'] -= 1; S['out'] += 2
            if S['left'] == 0: tags[S['n']] = a.vm_seq; S['n'] += 1; S['gen'] = None
            return True
        self.tick = tick
        pend = list(self.stages); mark = None
        chunks = []
        filler = []
        def chop(f, chunks=chunks):
            sub = Asm(); sub.auto = False; sub.lines = ['@'] * 0
            keep_a, keep_t = self.a, self.tick
            cuts = []
            def cutp(): sub.fence(); cuts.append((len(sub.lines), sub.vm_seq))
            self.a, self.tick = sub, cutp
            f(sub); cutp()
            self.a, self.tick = keep_a, keep_t
            l0 = q0 = 0
            for l1, q1 in cuts:
                if l1 > l0: chunks.append((sub.lines[l0:l1], q1 - q0))
                l0, q0 = l1, q1
        def side():
            if chunks:
                ls, nq = chunks.pop(0)
                a.fence(); a.lines += ls; a.pos += len(ls); a.vm_seq += nq
                nst = sum('buffer_store' in x for x in ls)
                if nst and self.lbo: S['bonus'] += nst + 1; S['bq'] = a.vm_seq
                if not chunks: S['mark'] = a.vm_seq
            elif filler:
                ls, nq = filler.pop(0)
                a.fence(); a.lines += ls; a.pos += len(ls)
        self.side = side
        chop(lambda a: (self.loop_scalars(), self.constants()), filler)
        for i in range(self.lpri): tick()
        for j in range(len(jobs)):
            S['j'] = j
            if j in tags and tags[j] > S['bq']: S['bonus'] = 0
            if pend and not chunks and (S.get('mark') is None or (j > 0 and tags[j - 1] > S['mark'])):
                chop(pend.pop(0))
                if j == 0:
                    while tick(): pass
                    for i in range(self.lsd): side()
            if len(jobs) - j in self.at:
                assert not pend and not chunks and not filler
                self.at[len(jobs) - j](a)
            while tick(): pass
            while j not in tags: assert tick(True)
            a.wait(vm=tags[j])
            self.outs = getattr(self, 'outs', []) + [S['out']]
            S['out'] -= size(jobs[j]) // 4096
            consume(jobs[j][:4])
            if self.ptrace: self.ptrace(a, j)
        self.tick = lambda: None
        assert not pend
        self.sched = [(j[:4]) for j in jobs]
        a.ins('s_barrier')

    def prologue(self, st1=None, st2=None, st3=None, st4=None, late=None):
        a = self.a
        def s0(a): self.addresses(); self.init_exchange()
        def s1(a):
            if st1: st1(a)
        def s4(a):
            self.init_late()
            if st4: st4(a)
            else: self.touch_kv()
        self.stages = [s0] + ([s1] if st1 else []) + [x for x in (st2,) if x]
        self.at = {self.lt: s4, self.lte: lambda a: self.touch_exchange()}
        if st3: self.at[self.lasy] = st3
        self.load_weights()
        if late: late(a)
        self.constants_put()
        a.wait(vm='all', lds='all')
        a.fence()

    def loop_scalars(self):
        a = self.a
        a.salu('s_mov_b32', s(sC1), '0x3e0293ee'); a.salu('s_mov_b32', s(sC1 + 1), s(sC1))
        a.salu('s_mov_b32', s(sNC1), '0x42000000' if not self.gforce else 0)
        a.salu('s_mov_b32', s(sONE), '0x3f803f80'); a.salu('s_mov_b32', s(sONE + 1), s(sONE))
        a.salu('s_mov_b32', s(sHALF), '0x3e803e80'); a.salu('s_mov_b32', s(sHALF + 1), s(sHALF))
        a.salu('s_mov_b32', s(sSTEP), 0)
        a.salu('s_lshl_b32', s(sD1), s(sW), 10); a.salu('s_add_u32', s(sD1), s(sD1), L_MBUF + 4096)
        a.salu('s_lshl_b32', s(sD1 + 1), s(sW), 8); a.salu('s_add_u32', s(sD1 + 1), s(sD1 + 1), L_MBUF + 8192)
        a.salu('s_lshl_b32', s(sPF), s(sH), 14); a.salu('s_add_u32', s(sPF), s(sPF), WS_KV)
        a.salu('s_add_u32', s(sAL), s(sPF), (self.nsteps - 1) * 32 * 16384)
        a.salu('s_mul_i32', s(sT0), s(sW), 3072); a.salu('s_add_u32', s(sKX), s(sPF), s(sT0))
        a.salu('s_lshl_b32', s(sPS0), s(sH), 7); a.salu('s_add_u32', s(sPS0), s(sPS0), self.wspart)
        a.salu('s_add_u32', s(sPS1), s(sPS0), 65536)
        a.salu('s_add_u32', s(sLO8), s(sPS0), 4096); a.salu('s_add_u32', s(sLO8 + 1), s(sPS1), 4096)
        a.salu('s_lshl_b32', s(sPSX), s(sH), 7); a.salu('s_add_u32', s(sPSX), s(sPSX), self.wspart + 8192)
        self.tick()
        a.salu('s_lshl_b32', s(sT0), s(sH), 12)
        a.salu('s_add_u32', s(sKM), s(sT0), WS_KM + (self.nsteps - 2) * 32 * 4096)
        a.salu('s_add_u32', s(sVM), s(sT0), WS_VM + (self.nsteps - 2) * 32 * 4096)
        a.salu('s_lshl_b32', s(sFV), s(sH), 9); a.salu('s_add_u32', s(sFV), s(sFV), WS_MEMH)
        a.salu('s_lshl_b32', s(sT0), s(sW), 5); a.salu('s_or_b32', s(sT0), s(sT0), s(sH))
        a.salu('s_cmp_lt_u32', s(sT0), 24, nodst=True)
        a.salu('s_cselect_b32', s(sW0M), '0x1ffffff', 0); a.salu('s_mov_b32', s(sW0M + 1), 0)
        a.salu('s_lshl_b32', s(sFL), s(sH), 7); a.salu('s_add_u32', s(sFL), s(sFL), SY_CHF)
        a.salu('s_lshl_b32', s(sT0), s(sW), 2); a.salu('s_add_u32', s(sFL), s(sFL), s(sT0))

    def touch_kv(self):
        a = self.a
        a.salu('s_add_u32', s(sT0), s(sPF), 32 * 16384)
        a.ins(f'buffer_load_dword v30, v{PFA}, s[{SRD}:{SRD+3}], s{sPF} offen sc1')
        a.ins(f'buffer_load_dword v30, v{PFA}, s[{SRD}:{SRD+3}], s{sT0} offen sc1')

    def touch_exchange(self):
        a = self.a
        a.valu('v_lshlrev_b32', v(45), 3, v(LH))
        a.salu('s_lshl_b32', s(sT0), s(sH), 14); a.salu('s_add_u32', s(sT0), s(sT0), self.wspart - self.wsmem)
        a.salu('s_lshl_b32', s(sT1), s(sH), 11); a.salu('s_sub_u32', s(sT1), s(sT1), 96 * 128)
        a.valu('v_add_u32', v(30), s(sT0), v(45)); a.valu('v_add_u32', v(45), s(sT1), v(45))
        a.valu('v_cmp_gt_u32', 'vcc', 96 * 16, v(LH))
        a.valu('v_cndmask_b32', v(45), v(45), v(30), 'vcc')
        a.salu('s_lshl_b32', s(sT0), s(sH), 16); a.salu('s_add_u32', s(sT0), s(sT0), WS_M0 - self.wsmem - 112 * 128)
        a.valu('v_lshlrev_b32', v(30), 3, v(LH)); a.valu('v_add_u32', v(30), s(sT0), v(30))
        a.valu('v_cmp_gt_u32', 'vcc', 112 * 16, v(LH))
        a.valu('v_cndmask_b32', v(45), v(30), v(45), 'vcc')
        a.valu('v_cmp_gt_u32', 'vcc', 184 * 16, v(LH))
        a.salu('s_mov_b32', s(sT0), self.wsmem)
        a.salu('s_mov_b64', 'exec', 'vcc')
        if self.tx == 1:
            a.salu('s_cmp_eq_u32', s(sW), 0, nodst=True); a.salu('s_cselect_b64', 'exec', 0, 'exec')
        a.ins(f'buffer_load_dword v30, v45, s[{SRD}:{SRD+3}], s{sT0} offen sc1')
        a.salu('s_mov_b64', 'exec', -1)

    def loop_init(self):
        a = self.a
        a.salu('s_mov_b32', 'm0', L_DUMP)
        a.salu('s_add_u32', s(sPF), s(sPF), 2 * 32 * 16384)
        if self.timing:
            for i in range(24): a.salu('s_mov_b32', s(sACC + i), 0)

    def step(self):
        a = self.a; t = self.tag; fl = self.fl; lfl = self.lfl
        srd = s(SRD, 4); T = {}
        R0, R1, R2, R3, R4, R5, R6, R7, R8 = Rq
        ACCS = {'q0': AQ0, 'q1': AQ1, 'k0': AK0, 'k1': AK1, 'v0': AV0, 'v1': AV1}
        where = {}
        M = {}
        def fr(f, dst):
            rg, off = lds_base(LDS_ADDR[f])
            def f0(): where[f] = dst; a.ds('ds_read_b128', v(dst, 4), v(rg), mods=f'offset:{off}')
            def f1(): T[f] = a.ds('ds_read_b128', v(dst + 4, 4), v(rg), mods=f'offset:{off + 4096}')
            return f0, f1
        def xr(i): return {0: (LW0, B_LW0), 1: (LW1, B_LW1), 2: (LW2, B_LW1), 3: (LW3, B_LW1)}[i]
        def mr(sl, dst):
            def f():
                M[sl] = dst
                if sl == 8: T[('m', sl)] = a.ds('ds_read_b128', v(dst, 4), v(L16), mods=f'offset:{L_MBUF + 8192 - B_LW1}')
                else:
                    rg, b = xr(sl & 3)
                    T[('m', sl)] = a.ds('ds_read_b128', v(dst, 4), v(rg), mods=f'offset:{L_MBUF + (sl >> 2) * 4096 - b}')
            return f
        def wl(key): return lambda: a.wait(lds=T[key])
        def wv(key): return lambda: (a.wait(vm=T[key]) if T[key] > a.done['vm'] else None)
        def mm(o, sl):
            f = (o[0], int(o[1]), sl)
            a.mfma(SMF, v(ACCS[o], 4), v(M[sl], 4), v(where[f], 8) if f in LDS_ADDR else freg(f), v(IDX))
        def run(seq):
            for x in seq:
                if isinstance(x, tuple): mm(*x)
                elif x is not None: x()
        def sal(*args, **kw): return lambda: a.salu(*args, **kw)
        def val(*args, **kw): return lambda: a.valu(*args, **kw)
        def ins(x): return lambda: a.ins(x)
        def z2(r, c=0): return val('v_mov_b64', v(r, 2), c)
        def zero(lo, hi):
            for i in range(lo, hi, 2): z2(i)()
        def cvt(d, x, y=None): return val('v_cvt_pk_bf16_f32', v(d), v(x), v(x + 1 if y is None else y))
        def dpp(d, x, bm): return val('v_mov_b32_dpp', v(d), v(x), mods=f'row_ror:8 row_mask:0xf bank_mask:{bm}', rmw=True)
        def mf(op, d, A, B, C): return lambda: a.mfma(op, v(d, 4), v(A, 4 if op == MF32 else 2), v(B, 4 if op == MF32 else 2), 0 if C is None else v(C, 4))
        def zmf(d): return mf(MF16, d, ZZ, ZZ, None)
        def st(k): return lambda: self.stamp(k)
        LC, TM, LCW, MC = R8, R8 + 1, R8 + 2, R8 + 3
        def vbr(lab):
            a.ins(f's_cbranch_vccnz {lab}')
        def poll0(R0=R0):
            a.vmem('buffer_load_dwordx4', v(R0, 4), v(LH), srd, s(sMEM), mods='offen ' + lfl); a.nowait(v(R0, 4))
            if self.p0d:
                a.raw(f'    buffer_load_dwordx4 v{LH}, s[{SRD}:{SRD+3}], s{sMEM} offen {lfl} lds'); a.pos += 1; a.vm_seq += 1
        def dma1(i):
            def f():
                a.salu('s_mov_b32', 'm0', s(sD1 + i))
                a.nop(1)
                a.raw(f'    buffer_load_dwordx4 v{LH}, s[{SRD}:{SRD+3}], s{sMEM4} offen {lfl} lds' if i == 0 else f'    buffer_load_dword v{LC}, s[{SRD}:{SRD+3}], s{sMEM8} offen {lfl} lds')
                a.pos += 1; a.vm_seq += 1
            return f
        def rd1a(): a.ds('ds_read_b128', v(R1, 4), v(LW0), mods=f'offset:{L_MBUF + 4096 - B_LW0}')
        def rd1b(): a.ds('ds_read_b32', v(MC), v(LCW))
        m0d = sal('s_mov_b32', 'm0', L_DUMP)
        def poll1():
            a.vmem('buffer_load_dwordx4', v(R1, 4), v(LH), srd, s(sMEM4), mods='offen ' + lfl)
            a.vmem('buffer_load_dword', v(MC), v(LC), srd, s(sMEM8), mods='offen ' + lfl)
            a.nowait(v(R1, 4)); a.nowait(v(MC))
        def prefetch_top():
            run(list(fr(('q', 1, 0), R2)) + list(fr(('k', 0, 0), R4)) + list(fr(('k', 1, 0), R6)))
        def prefetch_av(): run(list(fr(('q', 0, 0), AV0)))
        def offsets():
            a.salu('s_add_u32', s(sMEM4), s(sMEM), 4096); a.salu('s_add_u32', s(sMEM8), s(sMEM), 8192)
        def pubk(r):
            if self.nopub: return
            a.salu('s_mov_b64', 'exec', s(sHI8, 2))
            a.vmem('buffer_store_dwordx4', v(r, 4), v(LH), srd, s(sKM), mods='offen ' + self.pfl, load=False, data=v(r, 4))
            a.salu('s_mov_b64', 'exec', -1)
        def pubv(r):
            if self.nopub: return
            a.vmem('buffer_store_dwordx4', v(r, 4), v(LH), srd, s(sVM), mods='offen ' + self.pfl, load=False, data=v(r, 4))
        def flag(r):
            if self.nopub: return
            a.salu('s_mov_b64', 'exec', 1)
            a.vmem('buffer_store_dword', v(r), 'off', srd, s(sFL), mods='sc1', load=False)
            a.salu('s_mov_b64', 'exec', -1)
        def pf(r):
            if self.nopf: return
            a.raw(f'    buffer_load_dword v{r}, s[{SRD}:{SRD+3}], s{sPF} offen sc1 lds'); a.pos += 1; a.vm_seq += 1

        offsets(); prefetch_top()
        a.salu('s_add_u32', s(sMRS), s(sMEM), s(sMSU))
        if self.p0d: a.salu('s_sub_u32', 'm0', s(sD1), 4096)
        a.salu('s_mov_b32', s(sSPIN), self.spinmax)
        poll0()
        a.raw('.p2align 6')
        a.label(f'{t}_loop')
        a.forget()
        zero(0, 16)
        a.label(f'{t}_loop2')
        st(0)()
        def top():
            prefetch_av()
            a.valu('v_lshrrev_b32', v(LC), 2, v(LH))
            a.valu('v_add_u32', v(LCW), L_MBUF + 8192, v(LC))
            if self.timing: a.salu('s_mov_b32', 's94', s(sSPIN))
            a.salu('s_mov_b32', s(sSPIN), self.spinmax)
            if self.hook: self.hook(a)
        top()
        for i in range(self.ks - 1):
            if self.pA: a.nop(self.pA)
            poll0()
        r1 = self.p1 == 3
        if r1:
            if self.dA: a.nop(self.dA)
            poll1()
        a.ins('s_waitcnt lgkmcnt(0)')
        a.label(f'{t}_chk0')
        a.ins(f's_waitcnt vmcnt({2 * self.ks - 1 if self.p0d else self.ks - 1 + (2 if r1 else 0)})')
        a.lines.append(f'{t}_chk0b:')
        st(1)()
        M[0] = R0; M[4] = R1
        K01, K11 = fr(('k', 0, 1), R2), fr(('k', 1, 1), R4)
        K02, K12 = fr(('k', 0, 2), R2), fr(('k', 1, 2), R4)
        K03, K13 = fr(('k', 0, 3), R2), fr(('k', 1, 3), R4)
        o2 = [sal('s_add_u32', s(sT3), s(sMEM), s(sMSU)), sal('s_add_u32', s(sT1), s(sMEM), 16384), sal('s_and_b32', s(sT1), s(sT1), 0xffff),
              sal('s_add_u32', s(sT1), s(sT1), self.wsmem), sal('s_add_u32', s(sMST), s(sT1), s(sMSU)), sal('s_and_b32', s(sTAG), s(sSTEP), 1)]
        a.valu('v_max3_u32', v(TM), v(R0), v(R0 + 1), v(R0 + 2)); a.valu('v_max_u32', v(TM), v(TM), v(R0 + 3))
        a.valu('v_cmp_eq_u32', 'vcc', -1, v(TM))
        if not self.p0d: wA = a.ds('ds_write_b128', v(LW0), v(R0, 4), mods=f'offset:{L_MBUF - B_LW0}')
        vbr(f'{t}_spin0')
        if self.p0d: run([('k1', 0), ins(f's_waitcnt vmcnt({2 * self.ks - 2})')])
        elif self.p1 == 4: run([('q0', 0), dma1(0), ('q1', 0), dma1(1), ('k1', 0), K01[0], zmf(AV0), K01[1], lambda: a.wait(lds=wA)])
        else: run([('q0', 0), poll1 if self.p1 in (1, 3) else None, ('q1', 0), K01[0], ('k1', 0), K01[1], zmf(AV0), lambda: a.wait(lds=wA)])
        a.ins('s_barrier')
        st(2)()
        p4 = self.p1 == 4
        KV = [R0, R2, R4, R5] if p4 else [R2, R3, R4, R5]
        M8 = R3 if p4 else R0
        def kx(i):
            def f(): T['kx', i] = a.vmem('buffer_load_dwordx4', v(KV[i], 4), v(LH), srd, s(sKX), mods=f'offen offset:{i*1024} sc1')
            return f
        c1 = [val('v_max3_u32', v(TM), v(R1), v(R1 + 1), v(R1 + 2)), val('v_max3_u32', v(TM), v(TM), v(R1 + 3), v(MC)), val('v_cmp_eq_u32', 'vcc', -1, v(TM))]
        def w1a(): a.ds('ds_write_b128', v(LW0), v(R1, 4), mods=f'offset:{L_MBUF + 4096 - B_LW0}')
        def w1b(): T['wB'] = a.ds('ds_write_b32', v(LCW), v(MC))
        if self.p1 == 4:
            if self.p0d: run([mr(1, R6), ('q1', 0), K01[0], K01[1], ('q0', 0), dma1(0), ('k0', 0), dma1(1), zmf(AV0), K11[0], zmf(AV1), K11[1], ('q0', 1), mr(2, R7), ('v0', 0), m0d, ('v1', 0), o2[0], o2[1]])
            else: run([mr(1, R6), zmf(AV1), mr(2, R7), ('k0', 0), K11[0], ('v0', 0), K11[1], ('v1', 0), m0d, ('q0', 1), o2[0], o2[1]])
            run([('k0', 1), K02[0], ('q1', 1), K02[1], ('k1', 1), K12[0], ('v0', 1), K12[1], ('v1', 1), mr(3, R6),
                 ('q0', 2), ins('s_waitcnt vmcnt(0)'), st(3), rd1a, ('k0', 2), rd1b, kx(0), ('q1', 2), K03[0], ('k1', 2), K03[1], ('v0', 2), K13[0], ('v1', 2), K13[1],
                 lambda: a._autowait([('v', MC)], 'mc'), ('q0', 3), c1[0], ('q1', 3), c1[1], ('k0', 3), kx(1), c1[2], ('v0', 3), ('v1', 3)])
            vbr(f'{t}_spin1')
            a.lines.append(f'{t}_go1:')
        elif self.p1 == 2:
            run([mr(1, R6), zmf(AV1), poll1, mr(2, R7), ('k0', 0), K11[0], ('v0', 0), K11[1], ('v1', 0),
                 ('q0', 1), o2[0], o2[1], ('k0', 1), K02[0], ('q1', 1), K02[1], ('k1', 1), K12[0], ('v0', 1), K12[1], ('v1', 1), mr(3, R6),
                 ('k0', 2), K03[0], ('q0', 2), K03[1], ('k1', 2), K13[0], ('q1', 2), K13[1], ('v0', 2), ('v1', 2),
                 ('q0', 3), ins('s_waitcnt vmcnt(0)'), st(3), w1a, ('q1', 3), w1b, c1[0], c1[1], ('k0', 3), kx(0), c1[2], ('k1', 3), ('v0', 3)])
            vbr(f'{t}_spin1')
            a.lines.append(f'{t}_go1:')
            run([('v1', 3), wl('wB')])
        else:
            run([mr(1, R6), zmf(AV1), mr(2, R7), ('k0', 0), K11[0], ('v0', 0), K11[1], ('v1', 0),
                 ('q0', 1), o2[0], o2[1], ('k0', 1), K02[0], ('q1', 1), K02[1], ('k1', 1), K12[0], ('q0', 2), K12[1], ('q1', 2), mr(3, R6),
                 ('k0', 2), ins('s_waitcnt vmcnt(0)'), st(3), w1a, ('k1', 2), w1b, c1[0], ('q0', 3), K03[0], c1[1], ('q1', 3), K03[1], c1[2], ('v0', 2), K13[0], ('v1', 2), K13[1]])
            vbr(f'{t}_spin1')
            a.lines.append(f'{t}_go1:')
            run([('q0', 4), wl('wB')])
        a.ins('s_barrier')
        TB = R1
        def tbld(): T['tb'] = a.ds('ds_read_b128', v(TB, 4), v(MMR), mods=f'offset:{L_TB - 512 - B_LW1}')
        def pmld(R1=AQ0):
            if self.nopub: return
            a.salu('s_mov_b64', 'exec', s(sW0M, 2))
            a.ds('ds_read_b128', v(R1, 4), v(MST))
            a.salu('s_mov_b64', 'exec', -1)
        def pubm(R1=AQ0, restore=True):
            if self.nopub: return
            a._autowait([('v', R1 + i) for i in range(4)], 'pubm')
            L = f'{t}_np{len(a.lines)}'
            a.salu('s_mov_b64', 'exec', s(sW0M, 2))
            if self.pbr: a.ins(f's_cbranch_execz {L}')
            a.vmem('buffer_store_dwordx4', v(R1, 4), v(LH), srd, s(sFV), mods='offen ' + self.pfl, load=False, data=v(R1, 4))
            if self.pbr: a.pos -= 1; a.lines.append(L + ':')
            if restore: a.salu('s_mov_b64', 'exec', -1)
        K08, K18 = fr(('k', 0, 8), R6), fr(('k', 1, 8), R6)
        VB = 5 if self.p1 in (2, 4) else 1
        VL = 4 if self.p1 in (2, 4) else 3
        if self.p1 == 2: run([mr(5, R7), ('q0', 4), mr(6, R6), ('q1', 4), kx(1), ('k0', 4), mr(7, R8), o2[2], ('k1', 4), mr(8, R0), o2[3], o2[4], o2[5]])
        elif self.p1 == 4: run([mr(5, R7), ('k1', 3), mr(6, R6), ('q0', 4), kx(2), ('q1', 4), mr(7, R8), o2[2], ('k0', 4), mr(8, M8), o2[3], ('k1', 4), o2[4], o2[5]])
        else: run([mr(5, R7), ('q1', 4), mr(7, R8), ('k0', 4), lambda: a._autowait([('v', R4 + 4)], 'k13'), ('k0', 3), kx(0), ('k1', 3), mr(6, R6), ('k1', 4), mr(8, R0), o2[2], o2[3], ('v0', 4), kx(1), ('v1', 4), o2[4], o2[5]])
        run([('q0', 5), kx(3) if p4 else tbld, ('k0', 5), tbld if p4 else kx(2), ('q1', 5), ('k1', 5)] + ([K08[1], ('q0', 6), None if p4 else kx(3)] if self.p1 in (2, 4) else [('v0', 5), kx(3), ('v1', 5), K08[1], ('q0', 6)])
            + [('k0', 6), ('q1', 6), (lambda: pf(PFA)) if p4 else None, ('k1', 6), ('v0', 6), (lambda: pf(PFA)) if self.p1 not in (2, 4) else None, ('v1', 6), K08[0],
             ('q0', 7), (lambda: pf(PFA)) if self.p1 == 2 else None, sal('s_cmp_ge_u32', s(sSTEP), self.nsteps - 2, nodst=True), ('q1', 7), ('q0', 8), ('q1', 8), ('k0', 7), lambda: a._autowait([('v', R6)], 'k08'), cvt(AQ0, AQ0),
             ('k0', 8), K18[0], cvt(AQ1, AQ1), ('k1', 7), K18[1], cvt(AQ1 + 1, AQ1 + 2), ('v0', 7), cvt(AQ0 + 1, AQ0 + 2),
             mf(MF16, AQ1, AQ1, TB, None), cvt(AQ0 + 2, AK0), cvt(AQ0 + 3, AK0 + 2), ('v1', 7), lambda: pmld(R8), mf(MF32, AK0, AQ0, TB, None), cvt(AQ0 + 2, AQ1), ('k1', 8), mr(VB, R6)])
        st(4)()
        heat = lambda: a.mfma(MF16, v(R6, 4), v(ZZ, 2), v(ZZ, 2), v(R6, 4))
        XF0, XF1, U22, U23, U32, U33 = fr(('o', 4, 0), R2), fr(('o', 4, 1), R6), fr(('o', 2, 2), R4), fr(('o', 2, 3), R2), fr(('o', 3, 2), R6), fr(('o', 3, 3), R4)
        run([cvt(AQ0 + 3, AQ1 + 2), wv(('kx', 1)), cvt(AQ0, AK0), cvt(AQ0 + 1, AK0 + 2), mf(MF32, AK0, KV[1], AQ0, None), cvt(AK1, AK1), cvt(AK1 + 1, AK1 + 2),
             mf(MF16, AK1, AK1, TB + 2, None), mr(VL, R7), XF0[0] if p4 else XF0[1], mf(MF32, R1, KV[0], AQ0, None), wv(('kx', 3)), None if p4 else XF0[0], sal('s_mov_b64', 'exec', s(sHI8, 2)),
             cvt(AQ0 + 2, AK1), cvt(AQ0 + 3, AK1 + 2), sal('s_mov_b64', 'exec', -1),
             mf(MF32, AQ1, AQ0, AQ0, None)]
            + [dpp(R1 + r, AK0 + r, '0xc') for r in range(4)] + [('v0', 8)])
        a.ds('ds_write_b128', v(LW0), v(R1, 4), mods=f'offset:{L_SC - B_LW0}')
        run([dpp(AQ1, AQ1 + 2, '0xc'), dpp(AQ1 + 1, AQ1 + 3, '0xc'), ('v1', 8)])
        ws_ = a.ds('ds_write_b64', v(MMW), v(AQ1, 2))
        if self.bf: run([('v0', 1), ins(f's_cbranch_scc1 {t}_last'), lambda: a.lines.append(f'{t}_back:'), ('v1', 1), XF0[0], ('v0', 3), zmf(AK1) if self.bf > 1 else None])
        else: run([('v0', VB), lambda: pubm(R8), ('v1', VB), ins(f's_cbranch_scc1 {t}_last'), lambda: a.lines.append(f'{t}_back:')] + [heat] * self.hb)
        a.wait(lds=ws_)
        a.ins('s_barrier')
        st(5)()
        X0, X1, X2, X3, MA, MB_ = R1, AK0, AQ1, AQ0, R8, AK1
        def xrd(i, d):
            rg, b = xr(i)
            return lambda: a.ds('ds_read_b128', v(d, 4), v(rg), mods=f'offset:{L_SC - b}')
        def mmrd(d, o): return lambda: a.ds('ds_read_b128', v(d, 4), v(MMR), mods=f'offset:{L_MM + o - B_LW1}')
        def mulc(d): return val('v_mul_f32', v(d), s(sC1), v(d))
        def fmc(d, x): return val('v_fmac_f32', v(d), s(sC1), v(x))
        BM, BT = AK0 + 2, AQ1
        AC = [R1, AQ1, AV0, AV1]; ACX = AK0
        WL, LQ, O0, O1 = R0, AQ0, AK1, AV1
        ET, EM = AQ0, MA + 2
        CK = AK0
        F = {0: AQ0, 1: R0, 2: AK1, 3: R8}
        def ex(d, x): return val('v_exp_f32', v(d), v(x))
        def pkf(d, x): return val('v_pk_fma_f32', v(d, 2), v(x, 2), s(sC1, 2), v(d, 2))
        BMT = R8 + 2
        mm_ = [val('v_pk_add_f32', v(MA, 2), v(MA, 2), v(MA + 2, 2)), val('v_pk_add_f32', v(MB_, 2), v(MB_, 2), v(MB_ + 2, 2)), val('v_pk_add_f32', v(MA, 2), v(MA, 2), v(MB_, 2)),
               val('v_pk_mul_f32', v(MA, 2), v(MA, 2), s(sC1, 2))]
        def pkm(d): return val('v_pk_mul_f32', v(d, 2), v(d, 2), s(sC1, 2))
        run(([mmrd(MA, -512), ('v0', VL), mmrd(MB_, 0), xrd(1, X1), ('v1', VL), xrd(2, X2), xrd(3, X3)] if self.ha else [mmrd(MA, -512), mmrd(MB_, 0), None if self.bf else ('v0', 3), xrd(1, X1), xrd(2, X2), ('v1', 3), xrd(3, X3)]) + [heat] * max(self.ha - 1, 0) + [
             z2(WL, s(sHALF, 2)), z2(WL + 2, s(sONE, 2)), cvt(AV0, AV0), cvt(AV0 + 1, AV0 + 2), pkm(X0), pkm(X0 + 2), lambda: a._autowait([('v', MB_)], 'mb')] + mm_ + [ex(EM, MA), ex(EM + 1, MA + 1),
             lambda: a._autowait([('v', X2)], 'x2'), pkf(X0, X1), pkf(X0 + 2, X1 + 2), cvt(BM, EM), pkf(X0, X2), pkf(X0 + 2, X2 + 2),
             pkf(X0, X3), dpp(BM + 1, BM, '0xf'), pkf(X0 + 2, X3 + 2)])
        st(6)()
        def soft(first):
            x_ = [cvt(AV0 + 2, AV1), cvt(AV0 + 3, AV1 + 2), None] if first else [None] * 3
            if not first: run([ex(EM, MA), ex(EM + 1, MA + 1), cvt(BM, EM), dpp(BM + 1, BM, '0xf')])
            run([ex(ET, X0), mf(MF16, O0, AV0, BM, None), XF1[0] if first else None, ex(ET + 1, X0 + 1), x_[0], ex(ET + 2, X0 + 2), x_[1], cvt(BT, ET), ex(ET + 3, X0 + 3), mf(MF16, O1, AV0 + 2, BM, None), XF1[1] if first else None,
                 cvt(BT + 1, ET + 2), dpp(BT + 2, BT, '0xf'), val('v_max3_f32', v(CK), f'|v{X0}|', f'|v{X0+1}|', f'|v{X0+2}|'), dpp(BT + 3, BT + 1, '0xf'), st(7) if first else None,
                 mf(MF32, LQ, WL, BM, None), XF0[1] if (first and p4) else None, val('v_max3_f32', v(CK), v(CK), f'|v{X0+3}|', f'|v{MA}|'), val('v_max_f32_e64', v(CK), v(CK), f'|v{MA+1}|'),
                 mf(MF32, O0, R4, BT, O0), val('v_cmp_nge_f32', 'vcc', s(sNC1), v(CK)),
                 mf(MF32, O1, R5, BT, O1),
                 val('v_add_f32_dpp', v(LQ), v(LQ), v(LQ), mods='row_ror:8 row_mask:0xf bank_mask:0xf'), val('v_rcp_f32', v(LQ), v(LQ))])
        soft(True)
        vbr(f'{t}_guard')
        a.lines.append(f'{t}_norm:')
        run([zmf(AC[0])]
            + [val('v_mul_f32', v(O0 + r), v(O0 + r), v(LQ)) for r in range(4)]
            + [val('v_mul_f32_dpp', v(O0 + r), v(O1 + r), v(LQ), mods='row_ror:8 row_mask:0xf bank_mask:0xc', rmw=True) for r in range(4)]
            + [cvt(O0, O0), cvt(O0 + 1, O0 + 2), zmf(AC[1])])
        wo = a.ds('ds_write_b64', v(OW), v(O0, 2))
        def guard():
            a.label(f'{t}_guard')
            a.forget()
            a.ins(f's_cbranch_scc0 {t}_guard2')
            pubv(AV0)
            a.salu('s_add_u32', s(sVM), s(sVM), 32 * 4096)
            a.salu('s_add_u32', s(sT0), s(sNONCE), self.nsteps - 1); a.valu('v_mov_b32', v(CK + 1), s(sT0)); flag(CK + 1)
            a.label(f'{t}_guard2')
            a.nop(8)
            M1, M2 = BM, BM + 1
            a.valu('v_max3_f32', v(M1), v(X0), v(X0 + 1), v(X0 + 2))
            a.valu('v_max3_f32', v(M2), v(X0 + 3), v(MA), v(MA + 1))
            a.valu('v_max_f32', v(M1), v(M1), v(M2))
            a.valu('v_max_f32_dpp', v(M1), v(M1), v(M1), mods='row_ror:8 row_mask:0xf bank_mask:0xf')
            for sw in ('v_permlane32_swap_b32', 'v_permlane16_swap_b32'):
                a.valu('v_mov_b32', v(M2), v(M1)); a.valu(sw, v(M1), v(M2)); a.valu('v_max_f32', v(M1), v(M1), v(M2))
            for d in (X0, X0 + 1, X0 + 2, X0 + 3, MA, MA + 1): a.valu('v_sub_f32', v(d), v(d), v(M1))
            soft(False)
            a.fence()
            a.ins(f's_branch {t}_norm')
        def E(u, i):
            def f():
                fg = ('o', u, i)
                a.mfma(SMF, v(ACX if u == 4 else AC[u], 4), v(F[2 * i if u == 4 else i], 4), v(where[fg], 8) if fg in LDS_ADDR else freg(fg), v(IDX))
            return f
        OA = [None, OA1, OA2, OA3]
        run([zmf(ACX), lambda: a.ds('ds_read_b128', v(F[0], 4), v(OR0)), zmf(AC[2]), U22[0], zmf(AC[3]), U22[1]])
        a.wait(lds=wo)
        a.ins('s_barrier')
        st(8)()
        if self.xnop: a.nop(self.xnop)
        def frd(i): return lambda: a.ds('ds_read_b128', v(F[i], 4), v(OA[i]))
        def tag(r): return val('v_and_or_b32', v(r), v(r), -2, s(sTAG))
        def fin(u):
            r = ACX if u == 4 else AC[u]
            so = [sPS0, sPS1, sLO8, sLO8 + 1, sPSX][u]
            return [cvt(r, r), cvt(r + 1, r + 2), tag(r), lambda: a.vmem('buffer_store_dwordx2', v(r, 2), v(PSX if u == 4 else PST), srd, s(so), mods='offen ' + fl, load=False)]
        P0 = [R4, R5, R6, R7]
        def shot(P):
            for i in range(4):
                a.vmem('buffer_load_dwordx4', v(P[i], 4), v(L16), srd, s(sPL), mods=f'offen offset:{1024 * i} ' + lfl)
            a.nowait(v(P[0], 16))
        def shot0():
            if not self.ins0: return
            if self.dE: a.nop(self.dE)
            a.ins(f's_cbranch_scc1 {t}_ns0')
            p = a.pos
            for r in P0: a.valu('v_not_b32', v(r), s(sTAG))
            shot(P0)
            a.pos = p
            a.lines.append(f'{t}_ns0:')
        f0, f1, f2, f3, fx = [fin(u) for u in range(5)]
        def aw(*regs): return lambda: a._autowait([('v', r) for r in regs], 'aw')
        if self.eo == 3:
          run([frd(1), frd(2), frd(3), E(0, 0), E(1, 0), E(4, 0), U23[0],
             aw(F[2]), E(0, 1), U23[1], E(0, 2), E(0, 3), E(1, 1), E(1, 2), f0[0], E(1, 3), f0[2], f0[1], E(4, 1), f0[3], U32[0], E(2, 2), U32[1], f1[0], f1[2], f1[1], E(2, 0), f1[3], st(9), U33[0],
             E(2, 1), U33[1], fx[0], E(2, 3), fx[2], E(3, 0), fx[1], E(3, 1), fx[3] if self.hx else None, f2[0], aw(R4 + 4), E(3, 2), f2[2], E(3, 3), sal('s_cmp_lg_u32', s(sW), 2, nodst=True), f2[1]]
             + [val('v_not_b32', v(r + o), s(sTAG)) for r in P0 for o in (0, 2)] + [f3[0], f3[2], f3[1]])
          if self.dE: a.nop(self.dE)
          a.ins(f's_cbranch_scc1 {t}_ns0')
          shot(P0)
          a.lines.append(f'{t}_ns0:')
          a.ins('s_barrier')
          run([None if self.hx else fx[3], f2[3], f3[3]])
        elif self.eo == 2:
          run([frd(1), frd(2), frd(3), E(0, 0), E(1, 0), E(4, 0), U23[0],
             aw(F[2]), E(0, 1), U23[1], E(0, 2), E(0, 3), E(1, 1), E(1, 2), f0[0], E(1, 3), f0[2], f0[1], E(4, 1), f0[3], U32[0], E(2, 2), U32[1], f1[0], f1[2], f1[1], E(2, 0), f1[3], st(9), U33[0],
             E(2, 1), U33[1], fx[0], E(2, 3), fx[2], fx[1], E(3, 0), fx[3], E(3, 1), f2[0], aw(R4 + 4), E(3, 2), f2[2], f2[1], E(3, 3), f2[3], sal('s_cmp_lg_u32', s(sW), 2, nodst=True), f3[0], f3[2], f3[1], f3[3]])
        else:
          run([frd(1), frd(2), frd(3), E(0, 0), E(1, 0), E(4, 0), U23[0], E(2, 0), U23[1],
             aw(F[2]), E(0, 1), E(4, 1), U32[0], E(0, 2), U32[1], E(0, 3), fx[0], E(2, 2), U33[0], fx[2], E(1, 1), U33[1], fx[1], E(1, 2), fx[3], f0[0], E(1, 3), f0[2], E(2, 1), f0[1],
             E(2, 3), f0[3], f1[0], aw(R4 + 4), E(3, 0), f1[2], E(3, 1), f1[1], E(3, 2), f1[3], st(9), f2[0], E(3, 3), f2[2], f2[1], f2[3], sal('s_cmp_lg_u32', s(sW), 2, nodst=True), f3[0], f3[2], f3[1], f3[3]])
        st(10)()
        P = [AQ0, AK0, AQ1, AK1]; RD, XT, NEG, SELR = R1, AV1, AV1 + 1, R8
        def finish():
            a.fence()
            a.ins(f's_branch {t}_loop')
        def publish():
            a.valu('v_cvt_pk_bf16_f32', v(RD), v(RD), v(RD + 2))
            a.salu('s_mov_b64', 'exec', s(sSTM, 2))
            a.vmem('buffer_store_dword', v(RD), v(MST), srd, s(sMST), mods='offen ' + fl, load=False)
            st(11)()
        def reset():
            a.salu('s_mov_b64', 'exec', -1)
        def reset_old():
            a.valu('v_mov_b32', v(NEG), -1)
            a.salu('s_mov_b64', 'exec', s(sSTM, 2))
            a.vmem('buffer_store_dword', v(NEG), v(MST), srd, s(sMRS), mods='offen ' + fl, load=False)
            a.salu('s_mov_b64', 'exec', -1)
            a.salu('s_mov_b32', s(sMRS), s(sT3))
        def idle(pre=True):
            a.ds('ds_read_b128', v(SELR, 4), v(L16), mods=f'offset:{L_SEL - B_LW1}')
            if pre: prefetch_top()
            a.salu('s_add_u32', s(sSTEP), s(sSTEP), 1); a.salu('s_mov_b32', s(sMEM), s(sT1))
            a.salu('s_add_u32', s(sKX), s(sKX), 32 * 16384); a.salu('s_add_u32', s(sPF), s(sPF), 32 * 16384); a.salu('s_min_u32', s(sPF), s(sPF), s(sAL))
            offsets()
            a.salu('s_add_u32', s(sFV), s(sFV), 24 * 512)
            a.salu('s_mov_b32', s(sT0), 1)
            if self.p0d: a.salu('s_sub_u32', 'm0', s(sD1), 4096)
            if self.eo == 3: z2(R0, -1)()
        def reduce(lab, k, P, y=0, pre=False):
            a.label(f'{t}_chk{lab}')
            a.valu('v_mov_b32', v(XT), 0)
            for i in range(4):
                a.ins(f's_waitcnt vmcnt({4 * k - 1 - i + y})')
                chk = [val('v_bitop3_b32', v(XT), v(XT), v(r), s(sTAG), mods='bitop3:0xf6') for r in (P[i], P[i] + 2)]
                if k > 1 or pre: run(chk)
                a.mfma(MF32, v(RD, 4), v(P[i], 4), v(SELR, 4), 0 if i == 0 else v(RD, 4))
                if k == 1 and not pre: run(chk)
            a.valu('v_and_b32', v(XT), s(sT0), v(XT))
            a.valu('v_cmp_ne_u32', 'vcc', 0, v(XT))
            a.ins(f's_cbranch_vccnz {t}_spin{lab}')
            a.pos += 4
            a.valu('v_permlane32_swap_b32', v(RD), v(RD + 2)); a.valu('v_permlane32_swap_b32', v(RD + 1), v(RD + 3))
            a.valu('v_add_f32', v(RD), v(RD), v(RD + 2)); a.valu('v_add_f32', v(RD + 2), v(RD + 1), v(RD + 3))
        def retry(lab, P):
            a.label(f'{t}_spin{lab}')
            a.forget()
            shot(P)
            a.salu('s_sub_u32', s(sSPIN), s(sSPIN), 1)
            a.salu('s_cmp_lt_i32', s(sSPIN), 0, nodst=True)
            a.salu('s_cselect_b32', s(sT0), 0, 1)
            if self.eo == 3: a.ins('s_waitcnt vmcnt(0)')
            a.ins(f's_branch {t}_chk{lab}')
        a.ins(f's_cbranch_scc1 {t}_w013')
        a.fence()
        reset_old()
        if self.eo != 3:
            if self.d0: a.nop(self.d0 - 7)
            shot(P0)
        idle(False); zero(0, 16)
        if self.k0 > 1: a.nop(self.pF); shot(P0)
        reduce('F', self.k0, P0, (2 if self.hx else 3) if self.eo == 3 else 0, self.eo == 3); publish(); reset()
        if self.k0 == 1: prefetch_top()
        a.nop(self.dB); poll0()
        if self.k0 > 1: a.ins('s_waitcnt vmcnt(1)'); prefetch_top()
        a.fence()
        a.ins(f's_branch {t}_loop2')
        a.label(f'{t}_w013')
        a.forget()
        idle()
        a.salu('s_cmp_eq_u32', s(sROLE), 0, nodst=True)
        a.ins(f's_cbranch_scc1 {t}_w0')
        reset_old()
        a.salu('s_cmp_eq_u32', s(sW), 1, nodst=True)
        if self.dX: a.nop(self.dX - 6)
        a.ins(f's_cbranch_scc1 {t}_sx')
        a.nop(self.d1 - self.dX)
        a.lines.append(f'{t}_sx:')
        shot(P)
        if self.k1 > 1: a.nop(self.pG); shot(P)
        if self.eo == 3: a.nop(self.dA); poll0()
        reduce('G', self.k1, P, 1 if self.eo == 3 else 0)
        a.salu('s_cmp_eq_u32', s(sW), 3, nodst=True)
        a.ins(f's_cbranch_scc1 {t}_w3')
        a.valu('v_mov_b32', v(RD + 1), v(RD)); a.valu('v_mov_b32', v(RD + 3), v(RD + 2))
        a.valu('v_permlane16_swap_b32', v(RD), v(RD + 1)); a.valu('v_permlane16_swap_b32', v(RD + 2), v(RD + 3))
        a.valu('v_add_f32', v(RD), v(RD), v(RD + 1)); a.valu('v_add_f32', v(RD + 2), v(RD + 2), v(RD + 3))
        a.label(f'{t}_w3')
        if self.k1 > 1: a.ins('s_cbranch_execz .+4') if 0 else None
        publish(); reset()
        if self.dY:
            a.ins(f's_cbranch_scc1 {t}_w3b')
            a.nop(self.dY)
            a.lines.append(f'{t}_w3b:')
        poll0()
        if self.one3:
            zero(0, 16); top(); a.ins('s_waitcnt vmcnt(0) lgkmcnt(0)'); a.fence(); a.ins(f's_branch {t}_chk0b')
        elif self.eo == 3:
            zero(0, 16); top(); a.ins('s_waitcnt vmcnt(3) lgkmcnt(0)'); a.fence(); a.ins(f's_branch {t}_chk0b')
        else: finish()
        a.label(f'{t}_w0')
        a.forget()
        zero(0, 16)
        if self.w0hook: self.w0hook(a)
        a.nop(self.dZ); poll0()
        a.ins(f's_branch {t}_loop2')
        retry('F', P0); retry('G', P)
        guard()
        a.label(f'{t}_spin0')
        a.forget()
        poll0()
        a.salu('s_sub_u32', s(sSPIN), s(sSPIN), 1)
        a.salu('s_cmp_lt_i32', s(sSPIN), 0, nodst=True)
        if r1: a.ins(f's_waitcnt vmcnt({self.ks - 1})')
        a.ins(f's_cbranch_scc0 {t}_chk0')
        a.ins('s_waitcnt vmcnt(0)')
        for r in range(4): a.valu('v_min_u32', v(R0 + r), -2, v(R0 + r))
        a.ins(f's_branch {t}_chk0')
        a.label(f'{t}_spin1')
        a.forget()
        if self.p1 == 4: run([dma1(0), dma1(1), m0d])
        else: poll1()
        a.salu('s_sub_u32', s(sSPIN), s(sSPIN), 1)
        a.salu('s_cmp_lt_i32', s(sSPIN), 0, nodst=True)
        a.ins(f's_waitcnt vmcnt({2 if r1 else 0})')
        if self.p1 == 4: run([rd1a, rd1b, ins('s_waitcnt lgkmcnt(0)')] + c1)
        else: run(c1 + [w1a, w1b, ins('s_waitcnt lgkmcnt(0)')])
        a.ins(f's_cbranch_scc1 {t}_go1')
        a.ins(f's_cbranch_vccnz {t}_spin1')
        a.ins(f's_branch {t}_go1')
        a.label(f'{t}_last')
        a.forget(); a.nop(2)
        a.salu('s_cmp_eq_u32', s(sSTEP), self.nsteps - 1, nodst=True)
        a.ins(f's_cbranch_scc1 {t}_last2')
        pubk(AQ0)
        a.salu('s_add_u32', s(sKM), s(sKM), 32 * 4096)
        a.salu('s_mov_b32', s(sNC1), '0xbf800000')
        a.salu('s_cmp_eq_u32', 0, 0, nodst=True)
        a.ins(f's_branch {t}_back')
        a.label(f'{t}_last2')
        M.update({8: R0, 1: R6, VL: R7})
        a.ins('s_waitcnt lgkmcnt(0)')
        run([lambda: pubk(AQ0), sal('s_add_u32', s(sT0), s(sNONCE), self.nsteps), val('v_mov_b32', v(R4), s(sT0)), ('v1', 1) if self.bf else None] + [(o, sl) for sl in (VL,) for o in ('v0', 'v1')]
            + [cvt(AV0, AV0), cvt(AV0 + 1, AV0 + 2), cvt(AV0 + 2, AV1), cvt(AV0 + 3, AV1 + 2), lambda: pubv(AV0)])
        flag(R4)
```

```python
from asmfw import Asm, R
import chain2 as C
import qkv2 as Q2

def s(i, n=1): return R(i, n, 's')
def v(i, n=1): return R(i, n, 'v')
MF32 = 'v_mfma_f32_16x16x32_bf16'
MF16 = 'v_mfma_f32_16x16x16_bf16'
SRD_WS = 4
WS_OF = C.WS_O

sSEG, sHh = 16, 17
sT0, sT1, sT2, sT3, sC1 = 18, 19, 20, 21, 22

def attn_job(a: Asm, tag, ld_fl='', st_fl='', mid=None):
    L16, L8, KMA, DD, TMP, NEG = 1, 2, 3, 4, 5, 6
    Q, K, KM, V, VM, S = 8, 40, 72, 88, 120, 136
    PB, ONES, HALF, LS, O = 160, 172, 176, 180, 188
    srd = s(SRD_WS, 4)
    a.valu('v_and_b32', v(TMP), 63, 'v0')
    a.valu('v_lshlrev_b32', v(L16), 4, v(TMP))
    a.valu('v_or_b32', v(KMA), 0x80, v(L16))
    a.valu('v_lshrrev_b32', v(DD), 4, v(TMP))
    a.valu('v_bfe_u32', v(NEG), v(TMP), 2, 2)
    a.valu('v_sub_u32', v(DD), v(NEG), v(DD))
    a.valu('v_lshlrev_b32', v(DD), 3, v(DD))
    a.valu('v_and_b32', v(NEG), 3, v(TMP))
    a.valu('v_add_u32', v(DD), v(DD), v(NEG))
    a.valu('v_mov_b32', v(NEG), '0xf149f2ca')
    a.salu('s_mov_b32', s(sC1), '0x3e0293ee')
    a.salu('s_lshl_b32', s(sT0), s(sSEG), 5)
    a.salu('s_add_u32', s(sT0), s(sT0), s(sHh))
    a.salu('s_lshl_b32', s(sT1), s(sT0), 13)
    tq = {}
    def ld4(dst, base, i):
        a.salu('s_add_u32', s(sT2), s(sT1), base + (i // 4) * 4096)
        return a.vmem('buffer_load_dwordx4', v(dst, 4), v(L16), srd, s(sT2), mods=f'offen offset:{(i%4)*1024} ' + ld_fl)
    for i in range(8): ld4(Q + 4 * i, C.WS_Q, i)
    a.salu('s_lshl_b32', s(sT3), s(sT0), 14)
    def ldkv(dst, j, w):
        a.salu('s_add_u32', s(sT2), s(sT3), C.WS_KV + w * 4096)
        return a.vmem('buffer_load_dwordx4', v(dst, 4), v(L16), srd, s(sT2), mods=f'offen offset:{j*1024} ' + ld_fl)
    for i in range(8): ldkv(K + 4 * i, i // 4, i % 4)
    tk0 = a.vm_seq
    for i in range(8): ldkv(V + 4 * i, 2 + i // 4, i % 4)
    for i in range(4): a.valu('v_mov_b32', v(ONES + i), '0x3f803f80')
    for i in range(2): a.valu('v_mov_b32', v(HALF + i), '0x3f003f00')
    a.wait(vm=tk0)
    def St(xq, kt): return S + (xq * 3 + kt) * 4
    for w in range(4):
        for xq in range(2):
            for kt in range(2):
                d = v(St(xq, kt), 4)
                a.mfma(MF32, d, v(K + (kt * 4 + w) * 4, 4), v(Q + (xq * 4 + w) * 4, 4), 0 if w == 0 else d)
    for xq in range(2):
        for xk in range(2):
            for r in range(4):
                e = 4 * (xk - xq) + r
                a.valu('v_cmp_le_i32', 'vcc', e, v(DD))
                a.valu('v_cndmask_b32', v(St(xq, xk) + r), v(NEG), v(St(xq, xk) + r), 'vcc')
    M1, M2 = 196, 197
    MX, QS, OM = 192, 200, 8
    def rowmax(Sx):
        n = len(Sx)
        a.valu('v_max3_f32', v(M1), v(Sx[0]), v(Sx[1]), v(Sx[2]))
        for i in range(3, n - 1, 2): a.valu('v_max3_f32', v(M1), v(M1), v(Sx[i]), v(Sx[i + 1]))
        if n % 2 == 0: a.valu('v_max_f32', v(M1), v(M1), v(Sx[n - 1]))
        for sw in ('v_permlane32_swap_b32', 'v_permlane16_swap_b32'):
            a.valu('v_mov_b32', v(M2), v(M1)); a.valu(sw, v(M1), v(M2)); a.valu('v_max_f32', v(M1), v(M1), v(M2))
    for xq in range(2):
        Sx = [St(xq, 0) + i for i in range(8)]
        rowmax(Sx)
        a.valu('v_mul_f32', v(MX + xq), s(sC1), v(M1))
        for i in range(8): a.valu('v_fma_f32', v(Sx[i]), v(Sx[i]), s(sC1), f'-v{MX + xq}')
        for i in range(8): a.valu('v_exp_f32', v(Sx[i]), v(Sx[i]))
        for i in range(4): a.valu('v_cvt_pk_bf16_f32', v(PB + xq * 6 + i), v(Sx[2 * i]), v(Sx[2 * i + 1]))
    for xq in range(2):
        a.mfma(MF32, v(LS + xq * 4, 4), v(ONES, 4), v(PB + xq * 6, 4), 0)
    def Ox(w, xq, tau):
        i = (w * 2 + xq) * 2 + tau
        return K + 4 * i if i < 8 else 200 + 4 * (i - 8)
    for w in range(4):
        for xq in range(2):
            for tau in range(2):
                a.mfma(MF32, v(Ox(w, xq, tau), 4), v(V + (tau * 4 + w) * 4, 4), v(PB + xq * 6, 4), 0)
    if mid: mid(a)
    a.salu('s_mov_b32', s(sT3), 1 << 12)
    a.label(f'{tag}_again')
    a.salu('s_lshl_b32', s(sT2), s(sT0), 12)
    a.salu('s_add_u32', s(sT2), s(sT2), C.WS_KM)
    for w in range(4):
        tk = a.vmem('buffer_load_dwordx4', v(KM + 4 * w, 4), v(KMA), srd, s(sT2), mods=f'offen offset:{w*1024} ' + ld_fl)
    a.salu('s_lshl_b32', s(sT2), s(sT0), 12)
    a.salu('s_add_u32', s(sT2), s(sT2), C.WS_VM)
    for i in range(4):
        tv = a.vmem('buffer_load_dwordx4', v(VM + 4 * i, 4), v(L16), srd, s(sT2), mods=f'offen offset:{i*1024} ' + ld_fl)
    for w in range(4):
        for xq in range(2):
            d = v(St(xq, 2), 4)
            a.mfma(MF32, d, v(KM + 4 * w, 4), v(Q + (xq * 4 + w) * 4, 4), 0 if w == 0 else d)
    a.valu('v_max3_u32', v(M1), v(KM), v(KM + 4), v(KM + 8))
    a.wait(vm=tv)
    a.valu('v_max3_u32', v(M1), v(M1), v(KM + 12), v(VM)); a.valu('v_max3_u32', v(M1), v(M1), v(VM + 4), v(VM + 8)); a.valu('v_max_u32', v(M1), v(M1), v(VM + 12))
    a.valu('v_cmp_eq_u32', 'vcc', -1, v(M1))
    a.salu('s_sub_u32', s(sT3), s(sT3), 1)
    a.fence()
    a.ins(f's_cbranch_scc1 {tag}_ok')
    a.ins(f's_cbranch_vccnz {tag}_again')
    a.label(f'{tag}_ok')
    for xq in range(2):
        Sx = [St(xq, 2) + i for i in range(4)]
        a.valu('v_max3_f32', v(M1), v(Sx[0]), v(Sx[1]), v(Sx[2])); a.valu('v_max_f32', v(M1), v(M1), v(Sx[3]))
        a.valu('v_mov_b32', v(M2), v(M1)); a.valu('v_permlane16_swap_b32', v(M1), v(M2)); a.valu('v_max_f32', v(M1), v(M1), v(M2))
        a.valu('v_mul_f32', v(M1), s(sC1), v(M1)); a.valu('v_max_f32', v(M1), v(M1), v(MX + xq))
        a.valu('v_sub_f32', v(MX + xq), v(MX + xq), v(M1))
        for i in range(4): a.valu('v_fma_f32', v(Sx[i]), v(Sx[i]), s(sC1), f'-v{M1}')
        a.valu('v_exp_f32', v(MX + xq), v(MX + xq))
        for i in range(4): a.valu('v_exp_f32', v(Sx[i]), v(Sx[i]))
        a.valu('v_add_f32', v(M1), v(Sx[0]), v(Sx[1])); a.valu('v_add_f32', v(M2), v(Sx[2]), v(Sx[3])); a.valu('v_add_f32', v(M1), v(M1), v(M2))
        a.valu('v_mov_b32', v(M2), v(M1)); a.valu('v_permlane16_swap_b32', v(M1), v(M2)); a.valu('v_add_f32', v(M1), v(M1), v(M2))
        a.valu('v_fmac_f32', v(M1), v(MX + xq), v(LS + xq * 4))
        a.valu('v_rcp_f32', v(M1), v(M1))
        for i in range(4): a.valu('v_mul_f32', v(Sx[i]), v(Sx[i]), v(M1))
        a.valu('v_mul_f32', v(MX + xq), v(MX + xq), v(M1))
        for i in range(2): a.valu('v_cvt_pk_bf16_f32', v(PB + xq * 6 + 4 + i), v(Sx[2 * i]), v(Sx[2 * i + 1]))
    a.salu('s_lshl_b32', s(sT0), s(sSEG), 18)
    a.salu('s_lshl_b32', s(sT1), s(sHh), 12)
    a.salu('s_add_u32', s(sT0), s(sT0), s(sT1))
    a.salu('s_add_u32', s(sT0), s(sT0), WS_OF)
    a.salu('s_add_u32', s(sT1), s(sT0), 131072)
    prs = [(w, xq) for w in range(4) for xq in range(2)]
    def front(w, xq):
        for tau in range(2):
            o = Ox(w, xq, tau)
            for r in range(4): a.valu('v_mul_f32', v(o + r), v(o + r), v(MX + xq))
        for tau in range(2):
            d = v(Ox(w, xq, tau), 4)
            a.mfma(MF16, d, v(VM + w * 4 + tau * 2, 2), v(PB + xq * 6 + 4, 2), d)
    def back(w, xq):
        o0 = Ox(w, xq, 0)
        for r in range(4): a.valu('v_cvt_pk_bf16_f32', v(o0 + r), v(o0 + 2 * r), v(o0 + 2 * r + 1))
        a.vmem('buffer_store_dwordx4', v(o0, 4), v(L16), srd, s(sT1 if xq else sT0), mods=f'offen offset:{w*1024} ' + st_fl, load=False, data=v(o0, 4))
    for i in range(len(prs) + 1):
        if i < len(prs): front(*prs[i])
        if i: back(*prs[i - 1])

def oproj_load(a: Asm, pWO, sCB, sWv, nb=9):
    SRD_W = 12
    L, GA, TA, T = 2, 3, 4, 5
    a.valu('v_and_b32', v(L), 63, 'v0')
    a.valu('v_lshlrev_b32', 'v1', 4, v(L))
    a.valu('v_lshrrev_b32', v(T), 2, v(L)); a.valu('v_mul_u32_u24', v(GA), 1152, v(T))
    a.valu('v_and_b32', v(T), 3, v(L)); a.valu('v_lshl_add_u32', v(GA), v(T), 4, v(GA))
    a.salu('s_lshl_b32', s(sT3), s(sWv), 12)
    a.valu('v_add_u32', v(TA), s(sT3), 'v1')
    a.salu('s_mov_b64', s(SRD_W, 2), s(pWO, 2))
    a.salu('s_mov_b32', s(SRD_W + 2), 4096 * 1152); a.salu('s_mov_b32', s(SRD_W + 3), '0x20000')
    a.salu('s_mul_i32', s(sT1), s(sWv), 1024 * 1152); a.salu('s_lshl_b32', s(sT0), s(sCB), 6); a.salu('s_add_u32', s(sT1), s(sT1), s(sT0))
    jobs = []
    for j in range(16):
        def setup(a, j=j): a.salu('s_add_u32', s(sT0), s(sT1), j * 64 * 1152)
        rd = [(R(((2 * j + kk) * 2 + tau) * 4 + 2 * jp, 2, 'a'), 0, kk * 2048 + jp * 1024 + tau * 8) for kk in range(2) for tau in range(2) for jp in range(2)]
        jobs.append((setup, 16 * 1152, rd))
    Q2.tr_loader(a, SRD_W, jobs, GA, TA, 6, 7, sT3, sT0, [16384 * i for i in range(nb)])
    a.ins('s_barrier')

def oproj_seg(a: Asm, tag, SRD_O, sCB, sWv, sJOB, ld_fl='sc1', pre=None, post=None, ofl='', sMSK=None):
    L16, TMP, TMP2, VO = 1, 2, 3, 4
    ACC, RING = 8, 32
    srd = s(SRD_WS, 4)
    a.salu('s_mov_b32', s(sT3), 1 << 12)
    a.label(f'{tag}_again')
    a.salu('s_lshl_b32', s(sT0), s(sJOB), 17)
    a.salu('s_lshl_b32', s(sT1), s(sWv), 15)
    a.salu('s_add_u32', s(sT0), s(sT0), s(sT1))
    a.salu('s_add_u32', s(sT0), s(sT0), WS_OF)
    tg = {}
    a.salu('s_mov_b64', 'exec', s(sMSK, 2))
    for k in range(32):
        if k % 4 == 0 and k: a.salu('s_add_u32', s(sT0), s(sT0), 4096)
        tg[k] = a.vmem('buffer_load_dwordx4', v(RING + k * 4, 4), v(L16), srd, s(sT0), mods=f'offen offset:{(k % 4) * 1024} ' + ld_fl)
    a.salu('s_mov_b64', 'exec', -1)
    if pre: pre(a)
    a.valu('v_lshlrev_b32', v(TMP), 4, 'v0')
    a.valu('v_and_b32', v(TMP2), 0xc00, v(TMP))
    a.valu('v_lshl_add_u32', v(TMP), v(TMP2), 1, v(L16))
    for k in range(32):
        a.wait(vm=tg[k])
        for tau in range(2):
            d = v(ACC + tau * 4, 4)
            a.mfma(MF32, d, R((k * 2 + tau) * 4, 4, 'a'), v(RING + k * 4, 4), 0 if k == 0 else d)
        if k == 0: a.valu('v_mov_b32', v(VO), v(RING))
        else: a.valu('v_max_u32', v(VO), v(VO), v(RING + k * 4))
    a.valu('v_cmp_eq_u32', 'vcc', -1, v(VO))
    a.salu('s_and_b64', 'vcc', 'vcc', s(sMSK, 2))
    a.salu('s_sub_u32', s(sT3), s(sT3), 1)
    a.fence()
    a.ins(f's_cbranch_scc1 {tag}_ok')
    a.ins(f's_cbranch_vccnz {tag}_again')
    a.label(f'{tag}_ok')
    for q in range(2):
        a.ds('ds_write_b128', v(TMP), v(ACC + 4 * q, 4), mods=f'offset:{q*1024}')
    a.wait(lds='all')
    a.ins('s_barrier')
    if post: post(a)
    a.salu('s_cmp_lg_u32', s(sWv), 0, nodst=True)
    a.ins(f's_cbranch_scc1 {tag}_skip')
    for ww in range(1, 4):
        for tau in range(2):
            a.ds('ds_read_b128', v(RING + (ww * 2 + tau) * 4, 4), v(L16), mods=f'offset:{ww*2048 + tau*1024}')
    a.valu('v_lshrrev_b32', v(TMP2), 4, v(L16))
    a.valu('v_bfe_u32', v(VO), v(TMP2), 2, 2)
    a.valu('v_lshlrev_b32', v(VO), 3, v(VO))
    a.valu('v_and_b32', v(TMP), 3, v(TMP2))
    a.valu('v_add_u32', v(VO), v(VO), v(TMP))
    a.valu('v_mul_u32_u24', v(VO), 2304, v(VO))
    a.valu('v_lshrrev_b32', v(TMP2), 4, v(TMP2))
    a.valu('v_lshl_add_u32', v(VO), v(TMP2), 4, v(VO))
    a.salu('s_lshr_b32', s(sT0), s(sJOB), 1)
    a.salu('s_lshl_b32', s(sT0), s(sT0), 3)
    a.salu('s_and_b32', s(sT1), s(sJOB), 1)
    a.salu('s_add_u32', s(sT0), s(sT0), s(sT1))
    a.salu('s_mul_i32', s(sT0), s(sT0), 4 * 2304)
    a.salu('s_lshl_b32', s(sT1), s(sCB), 6)
    a.salu('s_add_u32', s(sT0), s(sT0), s(sT1))
    a.wait(lds='all')
    for hh in range(4):
        d = ACC + hh * 2
        a.valu('v_pk_add_f32', v(d, 2), v(d, 2), v(RING + 8 + hh * 2, 2))
        a.valu('v_pk_add_f32', v(RING + 16 + hh * 2, 2), v(RING + 16 + hh * 2, 2), v(RING + 24 + hh * 2, 2))
        a.valu('v_pk_add_f32', v(d, 2), v(d, 2), v(RING + 16 + hh * 2, 2))
    for r in range(4):
        a.valu('v_cvt_pk_bf16_f32', v(RING + r), v(ACC + 2 * r), v(ACC + 2 * r + 1))
    a.salu('s_mov_b64', 'exec', s(sMSK, 2))
    a.vmem('buffer_store_dwordx4', v(RING, 4), v(VO), s(SRD_O, 4), s(sT0), mods='offen ' + ofl, load=False, data=v(RING, 4))
    a.salu('s_mov_b64', 'exec', -1)
    a.label(f'{tag}_skip')
    a.fence()
```

```python
from asmfw import Asm, R

MB = 1 << 20
WS_KV = 0
WS_Q = 32 * MB
WS_O = 48 * MB
WS_MEM = 64 * MB
WS_PART = 64 * MB + 65536
XOFF = 1 * MB
WS_KM = 68 * MB
WS_VM = 77 * MB
WS_M0 = 88 * MB
WS_MEMH = 86 * MB
WS_CPY = 92 * MB
WS_SYNC = 120 * MB
SY_CHF = WS_SYNC + 16384
SY_CPY = WS_SYNC + 24576
WS_SIZE = 256 * MB

K = 1024
L_MISC = 96 * K
L_MBUF = L_MISC
L_TB = L_MISC + 9216
L_DUMP = L_MISC + 9728
L_NON = L_MISC + 9984
L_SEL = L_MISC + 10240
L_MM = L_MISC + 11264
L_SC = L_MISC + 12288
L_OB = L_MBUF + 4096
B_LW0, B_LW1 = 56 * K, 96 * K

LDS_ADDR = {}
for _t in range(4):
    LDS_ADDR[('k', 0, _t)] = _t * 16 * K
    LDS_ADDR[('k', 1, _t)] = _t * 16 * K + 8 * K
LDS_ADDR[('q', 0, 0)] = 64 * K; LDS_ADDR[('q', 1, 0)] = 72 * K
LDS_ADDR[('k', 0, 8)] = 80 * K; LDS_ADDR[('k', 1, 8)] = 88 * K
LDS_ADDR[('o', 2, 2)] = 112 * K; LDS_ADDR[('o', 3, 2)] = 120 * K
LDS_ADDR[('o', 2, 3)] = 128 * K; LDS_ADDR[('o', 3, 3)] = 136 * K
LDS_ADDR[('o', 4, 0)] = 144 * K; LDS_ADDR[('o', 4, 1)] = 152 * K

AQ0, AK0, AQ1, AK1, AV0, AV1 = 0, 4, 8, 12, 16, 20
Rq = [24 + 4 * i for i in range(9)]
IDX, LH, LW0, LW1, LW2, L16, PST, PSX, OR0, MST, MMW, LW3 = range(60, 72)
ZZ, OA1, OA2, OA3, OW, MMR, PFA = 72, 74, 75, 76, 77, 78, 79
VW0 = 80

def all_frags():
    fr = [(m, t, sl) for m in 'qkv' for sl in range(9) for t in range(2)]
    fr += [('o', u, k) for u in range(4) for k in range(4)] + [('o', 4, 0), ('o', 4, 1)]
    return fr
REGF = {}
_res = [f for f in all_frags() if f not in LDS_ADDR]
assert len(_res) == 54
for _i, _f in enumerate(_res): REGF[_f] = ('a', _i * 8) if _i < 32 else ('v', VW0 + (_i - 32) * 8)
def freg(f): return R(REGF[f][1], 8, REGF[f][0])

SRD, SRDW = 4, 8
sH, sW = 12, 13
sMEM, sMEM4, sMEM8, sMST, sMRS = 14, 15, 16, 17, 18
sPL, sPS0, sPS1, sPSX = 19, 20, 21, 22
sKX, sPF, sKM, sVM, sFL = 23, 24, 25, 26, 27
sSTEP, sSPIN, sTAG, sMSU = 28, 29, 30, 31
sSTM, sHI8, sW0M, sLO8 = 32, 34, 36, 38
sT0, sT1, sT2, sT3 = 40, 41, 42, 43
sC1, sNC1, sK128 = 44, 46, 47
sPTR = 48
sONE, sHALF = 60, 62
sROLE, sFV = 64, 65
sAL = 47
sD1 = 58
sACC = 68
sNONCE = 95
sSUM = 96

SMF = 'v_smfmac_f32_16x16x64_bf16'
MF32 = 'v_mfma_f32_16x16x32_bf16'
MF16 = 'v_mfma_f32_16x16x16_bf16'
def s(i, n=1): return R(i, n, 's')
def v(i, n=1): return R(i, n, 'v')

def lds_base(addr):
    if addr + 4096 < 64 * K: return LH, addr
    if addr < L_MISC + 16 * K: return LW0, addr - B_LW0
    return LW1, addr - B_LW1

class Chain:
    def __init__(self, a, tag, fl='', lfl='nt', pfl='sc1', xoff=0, nsteps=64, timing=0, dA=0, dB=24, d0=0, d1=24, dX=0, nopub=0, nopf=0,
                 hook=None, nomax=0, gap=0, dual=0, tstep=40, spinmax=1 << 16, prof=None, pstride=8, pA=20, pF=30, rt=0, dW=0, ks=2, early=1, k1=1, pskip=0, dZ=60, dE=0, ins0=0, p1=1, epf=1, npr=10, pg=6, dP=10, k0=1, pG=30, eo=1, w0hook=None, pbr=1, ppos=1, ptrace=None, lcap=16, lrev=5, gs=2, lord=1, lasy=4, lt=1, lpri=5, gforce=0, cpy=None, swn=4, swe=5, pf128=0, pfe=0, xnop=0, c1n=2, bf=0, hb=0, ha=1, hx=0, lsd=3, lte=3, tx=0, lbo=0, p0d=0, dY=0, one3=0, spec=None, rt0=1):
        self.rt0 = rt0
        self.spec = spec
        self.dY = dY; self.one3 = one3
        self.p0d = p0d
        self.lbo = lbo
        self.tx = tx
        self.lsd = lsd; self.lte = lte
        self.hx = hx
        self.hb = hb; self.ha = ha
        self.bf = bf
        self.c1n = c1n
        self.xnop = xnop
        self.pf128 = pf128; self.pfe = pfe
        self.swe = swe
        self.swn = swn
        self.cpy = cpy
        self.gforce = gforce
        self.lpri = lpri; self.tick = lambda: None
        self.lasy = lasy; self.lt = lt
        self.lord = lord
        self.gs = gs
        self.lcap = lcap; self.lrev = lrev
        self.ptrace = ptrace
        self.pbr = pbr; self.ppos = ppos
        self.w0hook = w0hook
        self.eo = eo
        self.k0 = k0; self.pG = pG
        self.npr = npr; self.pg = pg; self.dP = dP
        self.p1 = p1; self.epf = epf
        self.ins0 = ins0
        self.dZ = dZ; self.dE = dE
        self.pskip = pskip
        self.k1 = k1
        self.ks = ks; self.early = early
        self.dW = dW
        self.clk = 's_memrealtime' if rt else 's_memtime'
        self.pA = pA; self.pF = pF
        self.prof = prof; self.pstride = pstride
        self.a = a; self.tag = tag; self.fl = fl; self.lfl = lfl; self.pfl = pfl
        self.wsmem = WS_MEM + xoff; self.wspart = WS_PART + xoff; self.nsteps = nsteps; self.timing = timing
        self.dA = dA; self.dB = dB; self.d0 = d0; self.d1 = d1; self.dX = dX; self.nopub = nopub; self.nopf = nopf
        self.hook = hook; self.nomax = nomax; self.gap = gap; self.dual = dual; self.tstep = tstep; self.spinmax = spinmax

    def stamp(self, i):
        if self.prof is not None:
            if i == self.prof and not getattr(self.a, '_prof', None): self.a.start_prof(sACC, self.pstride, 12, self.pskip)
        elif self.timing == 1 or (self.timing == 2 and i == 0): self.a.ins(f'{self.clk} s[{sACC+2*i}:{sACC+2*i+1}]')

    def addresses(self):
        a = self.a
        T0, T1, C, G = 0 + 24, 25, 26, 27
        a.valu('v_lshrrev_b32', v(T0), 6, 'v0')
        a.valu('v_lshlrev_b32', v(LH), 4, 'v0')
        a.valu('v_add_u32', v(LW0), B_LW0, v(LH))
        a.valu('v_xor_b32', v(LW1), 1024, v(LH)); a.valu('v_add_u32', v(LW1), B_LW1, v(LW1))
        a.valu('v_xor_b32', v(LW2), 2048, v(LH)); a.valu('v_add_u32', v(LW2), B_LW1, v(LW2))
        a.valu('v_and_b32', v(L16), 1023, v(LH)); a.valu('v_add_u32', v(L16), B_LW1, v(L16))
        a.valu('v_and_b32', v(C), 15, 'v0')
        a.valu('v_bfe_u32', v(G), 'v0', 4, 2)
        a.valu('v_mov_b32', v(IDX), '0x4444'); a.valu('v_mov_b32', v(T1), '0xeeee')
        a.valu('v_cmp_lt_u32', 'vcc', 7, v(C))
        a.valu('v_cndmask_b32', v(IDX), v(IDX), v(T1), 'vcc')
        self.tick()
        a.valu('v_and_b32', v(PSX), 12, v(C)); a.valu('v_lshlrev_b32', v(PSX), 3, v(PSX))
        a.valu('v_and_b32', v(T1), 1, v(C)); a.valu('v_lshl_add_u32', v(PSX), v(T1), 4, v(PSX))
        a.valu('v_bfe_u32', v(T1), v(C), 1, 1); a.valu('v_lshl_add_u32', v(PSX), v(T1), 3, v(PSX))
        a.valu('v_lshl_add_u32', v(PST), v(G), 14, v(PSX)); a.valu('v_lshl_add_u32', v(PST), v(T0), 17, v(PST))
        self.tick()
        a.valu('v_and_b32', v(PSX), 63, v(PSX))
        a.valu('v_lshrrev_b32', v(T1), 1, v(T0)); a.valu('v_lshl_add_u32', v(PSX), v(T1), 18, v(PSX))
        a.valu('v_lshl_add_u32', v(PSX), v(G), 16, v(PSX))
        a.valu('v_lshrrev_b32', v(T1), 3, v(C)); a.valu('v_lshl_add_u32', v(PSX), v(T1), 15, v(PSX))
        a.valu('v_and_b32', v(T1), 1, v(T0)); a.valu('v_lshl_add_u32', v(PSX), v(T1), 6, v(PSX))
        self.tick()
        a.valu('v_and_b32', v(T1), 31, 'v0')
        a.valu('v_lshlrev_b32', v(MMW), 4, v(T1))
        a.valu('v_lshlrev_b32', v(28), 3, v(T1)); a.valu('v_add_u32', v(28), L_DUMP, v(28))
        a.valu('v_lshrrev_b32', v(T1), 1, v(T0)); a.valu('v_lshl_add_u32', v(MMW), v(T1), 9, v(MMW))
        a.valu('v_and_b32', v(T1), 1, v(T0)); a.valu('v_lshl_add_u32', v(MMW), v(T1), 3, v(MMW))
        a.valu('v_add_u32', v(MMW), L_MM, v(MMW))
        a.valu('v_cmp_gt_u32', 'vcc', 2, v(G))
        a.valu('v_cndmask_b32', v(MMW), v(MMW), v(28), 'vcc')
        self.tick()
        a.valu('v_xor_b32', v(LW3), 2048, v(LW1))
        a.valu('v_lshrrev_b32', v(OR0), 4, 'v0'); a.valu('v_lshlrev_b32', v(OR0), 7, v(OR0))
        a.valu('v_and_b32', v(T1), 7, v(C)); a.valu('v_lshl_add_u32', v(OR0), v(T1), 4, v(OR0)); a.valu('v_add_u32', v(OR0), L_OB, v(OR0))
        for i, r in enumerate((OA1, OA2, OA3)): a.valu('v_xor_b32', v(r), 512 * (i + 1), v(OR0))
        a.valu('v_lshrrev_b32', v(T1), 3, v(C)); a.valu('v_lshl_add_u32', v(OW), v(T1), 3, v(OR0))
        a.valu('v_or_b32', v(MMR), 512, v(L16)); a.valu('v_lshlrev_b32', v(PFA), 2, v(LH))
        if self.pf128: a.valu('v_and_b32', v(PFA), '0xffffff80', v(PFA))
        a.valu('v_mov_b64', v(ZZ, 2), 0)
        a.valu('v_and_b32', v(T1), 1, v(G)); a.valu('v_lshlrev_b32', v(MST), 7, v(T1))
        a.valu('v_lshrrev_b32', v(T1), 1, v(G)); a.valu('v_lshl_add_u32', v(MST), v(T1), 3, v(MST))
        a.valu('v_and_b32', v(T1), 3, v(C)); a.valu('v_lshl_add_u32', v(MST), v(T1), 4, v(MST))
        a.valu('v_bfe_u32', v(T1), v(C), 2, 1); a.valu('v_lshl_add_u32', v(MST), v(T1), 2, v(MST))
        self.tick()
        a.salu('s_mov_b32', s(sSTM), '0x00ff00ff'); a.salu('s_mov_b32', s(sSTM + 1), '0x00ff00ff')
        a.salu('s_not_b64', s(sHI8, 2), s(sSTM, 2))
        a.salu('s_lshr_b32', s(sMSU), s(sH), 1); a.salu('s_lshl_b32', s(sMSU), s(sMSU), 8)
        a.salu('s_and_b32', s(sT0), s(sH), 1); a.salu('s_lshl_b32', s(sT0), s(sT0), 6); a.salu('s_add_u32', s(sMSU), s(sMSU), s(sT0))
        a.salu('s_and_b32', s(sT0), s(sW), 1); a.salu('s_lshl_b32', s(sT0), s(sT0), 12)
        a.salu('s_add_u32', s(sMSU), s(sMSU), s(sT0))
        a.salu('s_lshl_b32', s(sPL), s(sH), 14); a.salu('s_add_u32', s(sPL), s(sPL), self.wspart - B_LW1)
        a.salu('s_add_u32', s(sT1), s(sPL), 8192)
        a.salu('s_add_u32', s(sPL), s(sPL), s(sT0))
        a.salu('s_and_b32', s(sT0), s(sH), 1); a.salu('s_lshl_b32', s(sT0), s(sT0), 2); a.salu('s_or_b32', s(sT0), s(sT0), s(sW))
        a.salu('s_cmp_eq_u32', s(sT0), 5, nodst=True)
        a.salu('s_cselect_b32', s(sROLE), 0, s(sW))
        a.salu('s_cmp_lg_u32', s(sW), 1, nodst=True)
        a.ins(f's_cbranch_scc1 {self.tag}_notx')
        a.salu('s_mov_b32', s(sSTM), '0xff'); a.salu('s_mov_b32', s(sSTM + 1), '0xff')
        a.salu('s_mov_b32', s(sPL), s(sT1))
        a.salu('s_lshr_b32', s(sMSU), s(sH), 3); a.salu('s_lshl_b32', s(sMSU), s(sMSU), 8)
        a.salu('s_and_b32', s(sT0), s(sH), 2); a.salu('s_lshl_b32', s(sT0), s(sT0), 6); a.salu('s_add_u32', s(sMSU), s(sMSU), s(sT0))
        a.salu('s_and_b32', s(sT0), s(sH), 4); a.salu('s_lshl_b32', s(sT0), s(sT0), 4); a.salu('s_add_u32', s(sMSU), s(sMSU), s(sT0))
        a.salu('s_add_u32', s(sMSU), s(sMSU), 8192)
        a.label(f'{self.tag}_notx')
        a.salu('s_cmp_lg_u32', s(sW), 0, nodst=True)
        a.ins(f's_cbranch_scc1 {self.tag}_notp')
        a.salu('s_min_u32', s(sT0), s(sH), 23); a.salu('s_mul_i32', s(sT0), s(sT0), 384); a.salu('s_add_u32', s(sT0), s(sT0), L_MBUF)
        a.valu('v_add_u32', v(MST), s(sT0), v(LH))
        a.valu('v_mov_b32', v(T1), L_NON)
        a.valu('v_cmp_lt_u32', 'vcc', 23, 'v0')
        a.valu('v_cndmask_b32', v(MST), v(MST), v(T1), 'vcc')
        a.label(f'{self.tag}_notp')
        a.fence()

    def init_exchange(self):
        a = self.a; srd = s(SRD, 4)
        self.tick()
        for i in range(4): a.valu('v_mov_b32', v(28 + i), 1)
        a.salu('s_lshl_b32', s(sT0), s(sH), 14); a.salu('s_add_u32', s(sT0), s(sT0), self.wspart)
        for rd in range(3):
            a.salu('s_add_u32', s(sT1), s(sT0), rd * 4096)
            a.vmem('buffer_store_dwordx4', v(28, 4), v(LH), srd, s(sT1), mods='offen ' + self.fl, load=False, data=v(28, 4))
        a.salu('s_cmp_eq_u32', s(sROLE), 0, nodst=True)
        a.salu('s_cselect_b64', 'exec', 0, s(sSTM, 2))
        a.valu('v_mov_b32', v(27), -1)
        for i in range(4):
            a.salu('s_add_u32', s(sT1), s(sMSU), self.wsmem + i * 16384)
            a.vmem('buffer_store_dword', v(27), v(MST), srd, s(sT1), mods='offen ' + self.fl, load=False)
        a.salu('s_mov_b64', 'exec', -1)
        self.tick()
        a.salu('s_mov_b64', s(68, 2), s(sPTR, 2))
        a.salu('s_mov_b32', s(70), 9216); a.salu('s_mov_b32', s(71), '0x20000')
        a.valu('v_and_b32', v(25), 7, 'v0'); a.valu('v_mul_u32_u24', v(25), 1152, v(25))
        a.valu('v_lshrrev_b32', v(26), 3, 'v0'); a.valu('v_lshl_add_u32', v(25), v(26), 4, v(25))
        a.vmem('buffer_load_dwordx4', v(36, 4), v(25), s(68, 4), 0, mods='offen')
        a.vmem('buffer_load_dwordx4', v(40, 4), v(25), s(68, 4), 0, mods='offen offset:512')
        a.valu('v_bfe_u32', v(25), 'v0', 2, 3); a.valu('v_mul_u32_u24', v(25), 1152, v(25))
        a.valu('v_lshrrev_b32', v(26), 5, 'v0'); a.valu('v_lshl_add_u32', v(25), v(26), 4, v(25))
        a.valu('v_and_b32', v(26), 3, 'v0'); a.valu('v_lshl_add_u32', v(25), v(26), 2, v(25))
        a.vmem('buffer_load_dword', v(44), v(25), s(68, 4), 0, mods='offen offset:1024')

    def init_late(self):
        a = self.a; srd = s(SRD, 4)
        for r in range(36, 45): a.valu('v_min_u32', v(r), -2, v(r))
        a.salu('s_lshl_b32', s(sMEM), s(sH), 16); a.salu('s_add_u32', s(sMEM), s(sMEM), WS_M0)
        a.salu('s_add_u32', s(sT1), s(sMEM), 4096); a.salu('s_add_u32', s(sT2), s(sMEM), 8192)
        a.valu('v_lshrrev_b32', v(45), 2, v(LH))
        a.vmem('buffer_store_dwordx4', v(36, 4), v(LH), srd, s(sMEM), mods='offen ' + self.fl, load=False, data=v(36, 4))
        a.vmem('buffer_store_dwordx4', v(40, 4), v(LH), srd, s(sT1), mods='offen ' + self.fl, load=False, data=v(40, 4))
        a.vmem('buffer_store_dword', v(44), v(45), srd, s(sT2), mods='offen ' + self.fl, load=False)

    def constants(self):
        a = self.a
        C, E, LO, HI = 28, 29, 31, 32
        a.valu('v_bfe_u32', v(C), v(LH), 4, 4)
        a.valu('v_bfe_u32', v(E), v(LH), 8, 1); a.valu('v_lshlrev_b32', v(E), 2, v(E)); a.valu('v_sub_u32', v(E), v(C), v(E))
        a.valu('v_mov_b32', v(LO), '0x3f80'); a.valu('v_mov_b32', v(HI), '0x3f800000')
        for m in range(4):
            self.tick()
            lo = 2 * m if m < 2 else 2 * m + 4
            a.valu('v_cmp_eq_u32', 'vcc', lo, v(E)); a.valu('v_cndmask_b32', v(16 + m), 0, v(LO), 'vcc')
            a.valu('v_cmp_eq_u32', 'vcc', lo + 1, v(E)); a.valu('v_cndmask_b32', v(16 + m), v(16 + m), v(HI), 'vcc')
            a.valu('v_cmp_eq_u32', 'vcc', 2 * m, v(C)); a.valu('v_cndmask_b32', v(20 + m), 0, v(LO), 'vcc')
            a.valu('v_cmp_eq_u32', 'vcc', 2 * m + 1, v(C)); a.valu('v_cndmask_b32', v(20 + m), v(20 + m), v(HI), 'vcc')

    def constants_put(self):
        a = self.a
        a.ds('ds_write_b128', v(MMR), v(16, 4), mods=f'offset:{L_TB - 512 - B_LW1}')
        a.ds('ds_write_b128', v(L16), v(20, 4), mods=f'offset:{L_SEL - B_LW1}')
        for m in range(4): a.valu('v_mov_b32', v(44 + m), s(sNONCE))
        a.valu('v_mov_b32', v(48), L_NON)
        a.ds('ds_write_b128', v(48), v(44, 4))

    def load_lanes(self):
        a = self.a
        GA, GO, GX, TA, TO, TX, T0, T1, T2 = 48, 49, 50, 51, 52, 53, 54, 55, 56
        L = 57
        a.valu('v_lshrrev_b32', v(T0), 6, 'v0')
        a.valu('v_readfirstlane_b32', s(sW), v(T0))
        a.valu('v_and_b32', v(L), 63, 'v0')
        def bit(dst, src, b, sh, acc):
            a.valu('v_bfe_u32', v(T0), v(src), b, 1)
            if acc: a.valu('v_lshl_add_u32', v(dst), v(T0), sh, v(dst))
            else: a.valu('v_lshlrev_b32', v(dst), sh, v(T0))
        bit(GA, L, 2, 13, 0); bit(GA, L, 3, 15, 1); bit(GA, L, 4, 14, 1); bit(GA, L, 5, 16, 1)
        a.valu('v_lshrrev_b32', v(T1), 4, v(L)); a.valu('v_and_b32', v(T1), 2, v(T1)); a.valu('v_xor_b32', v(T1), v(T1), v(L))
        a.valu('v_and_b32', v(T1), 3, v(T1)); a.valu('v_lshl_add_u32', v(GA), v(T1), 4, v(GA))
        bit(TA, L, 2, 6, 0); bit(TA, L, 3, 9, 1); bit(TA, L, 4, 7, 1); bit(TA, L, 5, 12, 1)
        bit(TA, L, 0, 3, 1); bit(TA, L, 1, 4, 1); bit(TA, L, 3, 5, 1)
        a.valu('v_lshrrev_b32', v(T1), 3, v(L)); a.valu('v_mul_u32_u24', v(GO), 1152, v(T1))
        a.valu('v_and_b32', v(T1), 7, v(L)); a.valu('v_lshl_add_u32', v(GO), v(T1), 4, v(GO))
        bit(TO, L, 4, 13, 0); bit(TO, L, 5, 9, 1); bit(TO, L, 2, 7, 1); bit(TO, L, 3, 5, 1)
        a.valu('v_and_b32', v(T1), 3, v(L)); a.valu('v_lshl_add_u32', v(TO), v(T1), 3, v(TO))
        a.valu('v_lshrrev_b32', v(T1), 2, v(L)); a.valu('v_mul_u32_u24', v(GX), 1152, v(T1))
        a.valu('v_and_b32', v(T1), 3, v(L)); a.valu('v_lshl_add_u32', v(GX), v(T1), 4, v(GX))
        bit(TX, L, 4, 12, 0); bit(TX, L, 5, 8, 1); bit(TX, L, 2, 6, 1); bit(TX, L, 3, 5, 1)
        a.valu('v_and_b32', v(T1), 3, v(L)); a.valu('v_lshl_add_u32', v(TX), v(T1), 3, v(TX))
        sWK, sX16 = 66, 93
        a.salu('s_lshl_b32', s(sWK), s(sW), 10)
        a.salu('s_and_b32', s(sX16), s(sW), self.gs - 1); a.salu('s_lshl_b32', s(sX16), s(sX16), 14)
        a.salu('s_and_b32', s(75), s(sW), 4 - self.gs); a.salu('s_lshl_b32', s(75), s(75), 19)
        for r in (TA, TO, TX): a.valu('v_add_u32', v(r), s(sWK), v(r))
        a.valu('v_mov_b32', v(58), v(GA))
        a.salu('s_mov_b32', s(SRDW + 2), 576 * 8192); a.salu('s_mov_b32', s(SRDW + 3), '0x20000')

    def load_sub(self):
        a = self.a; t = self.tag
        a.label(f'{t}_dma')
        a.salu('s_xor_b32', s(74), s(76), s(81))
        a.salu('s_add_u32', 'm0', s(74), s(80))
        a.salu('s_add_u32', s(76), s(76), 4096)
        a.raw(f'    buffer_load_dwordx4 v58, s[{SRDW}:{SRDW+3}], s78 offen lds')
        a.salu('s_add_u32', s(78), s(78), s(79))
        a.salu('s_cmp_lt_u32', s(76), s(77), nodst=True)
        a.ins(f's_cbranch_scc1 {t}_dma')
        a.ins('s_setpc_b64 s[82:83]')

    def load_weights(self):
        a = self.a; t = self.tag
        GA, GO, GX, TA, TO, TX, T0, T1, T2 = 48, 49, 50, 51, 52, 53, 54, 55, 56
        sWK, sCOL, sOB, sX16, sKS = 66, 67, 92, 93, 94
        a.salu('s_lshl_b32', s(sCOL), s(sH), 8); a.salu('s_lshl_b32', s(sT0), s(sW), 6); a.salu('s_add_u32', s(sCOL), s(sCOL), s(sT0))
        a.salu('s_mul_i32', s(sOB), s(sH), 128 * 1152)
        a.salu('s_lshr_b32', s(73), s(sPTR + 2), 8); a.salu('s_add_u32', s(73), s(73), s(sH)); a.salu('s_and_b32', s(73), s(73), 31)
        a.salu('s_bitcmp1_b32', '0xa2222222', s(73), nodst=True)
        a.salu('s_cselect_b32', s(88), 1 if self.cpy else 0, 0); a.salu('s_mov_b32', s(72), 0)
        a.salu('s_add_u32', s(73), s(73), 1); a.salu('s_lshr_b32', s(73), s(73), 2)
        def switch():
            L = f'{t}_ncp{len(a.lines)}'
            a.salu('s_cmp_eq_u32', s(88), 0, nodst=True)
            a.ins(f's_cbranch_scc1 {L}')
            self.cpy(a, L)
            a.salu('s_mov_b32', s(88), 0); a.salu('s_mov_b32', s(72), 5)
            a.salu('s_lshl_b32', s(74), s(73), 19); a.salu('s_add_u32', s(74), s(74), WS_CPY)
            a.salu('s_add_u32', s(sPTR + 2), s(SRD), s(74)); a.salu('s_addc_u32', s(sPTR + 3), s(SRD + 1), 0)
            for i in ((4, 6) if self.swn < 4 else (4,)): a.salu('s_add_u32', s(sPTR + i), s(sPTR + i - 2), 576 * 256); a.salu('s_addc_u32', s(sPTR + i + 1), s(sPTR + i - 1), 0)
            a.salu('s_lshl_b32', s(sCOL), s(sW), 6)
            a.valu('v_and_b32', v(T0), 63, v(GA)); a.valu('v_lshrrev_b32', v(GA), 13, v(GA)); a.valu('v_lshl_add_u32', v(GA), v(GA), 8, v(T0))
            a.lines.append(L + ':')
            cur['va'] = None; cur['st'] = None; cur['m'] = None; cur['sw'] = True
        pW = {'q': sPTR + 2, 'k': sPTR + 4, 'v': sPTR + 6, 'o': sPTR + 8}
        cur = {'m': None, 'va': GA, 'st': None, 'x': None, 'sw': False}
        def call(m, va, step, xm, buf, lo, hi):
            if cur['m'] != m: a.salu('s_mov_b64', s(SRDW, 2), s(pW[m], 2)); cur['m'] = m
            if cur['va'] != va: a.valu('v_mov_b32', v(58), v(va)); cur['va'] = va
            if cur['st'] != step:
                if va == GA and cur['sw']: a.salu('s_lshr_b32', s(79), step, s(72))
                else: a.salu('s_mov_b32', s(79), step)
                cur['st'] = step
            if cur['x'] != xm: a.salu('s_mov_b32', s(81), xm); cur['x'] = xm
            if lo == 0: a.salu('s_add_u32', s(80), s(sWK), buf); a.salu('s_mov_b32', s(76), 0)
            a.salu('s_mov_b32', s(77), hi * 4096)
            a.ins(f's_call_b64 s[82:83], {t}_dma')
            a.vm_seq += hi - lo
        def issue(job):
            kind, m, x, buf = job
            if kind == 'g':
                cur['ng'] = cur.get('ng', 0) + 1
                if self.cpy and self.swn < cur['ng'] <= self.swn + self.swe: switch()
                if self.cpy and self.swn <= cur['ng'] < self.swn + self.swe: self.cpy(a, None)
                a.salu('s_xor_b32', s(78), s(75), x * self.gs * 64 * 8192)
                if cur['sw']: a.salu('s_lshr_b32', s(78), s(78), s(72))
                a.salu('s_add_u32', s(78), s(78), s(sCOL))
                for p in range(0, 4 * self.gs, 2): call(m, GA, 16 * 8192, s(sX16), buf, p, p + 2); yield
            elif kind == 's':
                if cur['sw']: a.salu('s_lshr_b32', s(78), 512 * 8192, s(72)); a.salu('s_add_u32', s(78), s(78), s(sCOL))
                else: a.salu('s_add_u32', s(78), s(sCOL), 512 * 8192)
                for p in (0, 2): call(m, GA, 16 * 8192, 0, buf, p, p + 2); yield
            elif kind == 'o':
                a.salu('s_xor_b32', s(sKS), s(sW), x[1]); a.salu('s_mul_i32', s(sKS), s(sKS), 32 * 1152)
                a.salu('s_add_u32', s(sKS), s(sKS), s(sOB))
                a.salu('s_lshl_b32', s(74), s(sW), 7); a.salu('s_add_u32', s(sKS), s(sKS), s(74))
                a.salu('s_add_u32', s(78), s(sKS), x[0] * 512)
                for p in (0, 2): call(m, GO, 8 * 1152, 0, buf, p, p + 2); yield
            else:
                for kk in range(2):
                    a.salu('s_xor_b32', s(sKS), s(sW), 2 * kk); a.salu('s_mul_i32', s(sKS), s(sKS), 32 * 1152)
                    a.salu('s_add_u32', s(sKS), s(sKS), s(sOB))
                    a.salu('s_lshr_b32', s(74), s(sW), 1); a.salu('s_lshl_b32', s(74), s(74), 6)
                    a.salu('s_add_u32', s(sKS), s(sKS), s(74))
                    a.salu('s_add_u32', s(78), s(sKS), 1024)
                    call(m, GX, 16 * 1152, 0, buf, 2 * kk, 2 * kk + 2); yield
        def build(frs, base, offs, buf):
            a.valu('v_add_u32', v(T1), buf, v(base))
            if base == TA: a.valu('v_xor_b32', v(T2), 32, v(T1))
            tmp = {}
            for fi, f in enumerate(frs):
                k, b = ('v', 8 * fi) if f in LDS_ADDR else REGF[f]
                for jp in range(4):
                    alt, off = offs(fi, jp)
                    a.ds('ds_read_b64_tr_b16', R(b + 2 * jp, 2, k), v(T2 if alt else T1), mods=f'offset:{off}')
                self.tick()
            self.side()
            a.wait(lds='all')
            wr = False
            for fi, f in enumerate(frs):
                if f in LDS_ADDR:
                    rg, off = lds_base(LDS_ADDR[f])
                    if rg == LW1:
                        a.ins('s_barrier')
                    a.ds('ds_write_b128', v(rg), v(8 * fi, 4), mods=f'offset:{off}')
                    a.ds('ds_write_b128', v(rg), v(8 * fi + 4, 4), mods=f'offset:{off + 4096}')
                    wr = True
            if wr: a.wait(lds='all')
        oq = lambda fi, jp: (fi, (jp >> 1) * 8192 + (jp & 1) * 256)
        oo = lambda fi, jp: (0, (jp >> 1) * 4096 + (jp & 1) * 256 + fi * 64)
        ox = lambda fi, jp: (0, fi * 8192 + (jp >> 1) * 512 + (jp & 1) * 128)
        def consume(job):
            kind, m, x, buf = job
            if kind == 'g':
                for i in range(self.gs): build([(m, 0, x * self.gs + i), (m, 1, x * self.gs + i)], TA, oq, buf + i * 16384)
            elif kind == 's': build([(m, 0, 8), (m, 1, 8)], TA, oq, buf)
            elif kind == 'o': build([('o', 2 * x[0], x[1]), ('o', 2 * x[0] + 1, x[1])], TO, oo, buf)
            else: build([('o', 4, 0), ('o', 4, 1)], TX, ox, buf)
        jobs = [['o', 'o', x, None] for x in ((0, 0), (0, 1), (0, 2), (0, 3), (1, 0), (1, 1))] + [['s', 'v', 8, None]] + [['g', 'v', x, None] for x in range(4)] + [
                ['g', 'k', 2, None], ['g', 'k', 3, None], ['g', 'q', 2, None], ['g', 'q', 3, None], ['s', 'q', 8, None], ['g', 'q', 1, None],
                ['g', 'q', 0, 64 * K], ['g', 'k', 0, 0], ['g', 'k', 1, 32 * K], ['x', 'o', 0, 144 * K], ['o', 'o', (1, 3), 128 * K], ['o', 'o', (1, 2), 112 * K], ['s', 'k', 8, 80 * K]]
        size = lambda j: self.gs * 16 * K if j[0] == 'g' else 16 * K
        def finals(j):
            if j[:3] == ['g', 'q', 0]: return [(64 * K, 80 * K)]
            if j[3] is not None and j[4]: return [(j[3], j[3] + size(j))]
            return []
        for j in jobs: j.append(j[3] is not None)
        def place(n, done):
            busy = [(jobs[x][3], jobs[x][3] + size(jobs[x])) for x in range(done, n)] + [sp for x in range(n) for sp in finals(jobs[x])]
            if not jobs[n][4]: busy += finals(jobs[n])
            cands = [K * [112, 80, 16, 0, 144, 96, 32, 112, 64, 0, 32, 128, 64, 0, 32, 96, 112, 64, 0, 32, 144, 128, 112, 80][n]]
            for lo in cands:
                if all(b[1] <= lo or b[0] >= lo + size(jobs[n]) for b in busy): return lo
            return None
        tags = {}; S = dict(n=0, gen=None, left=0, j=0, out=0, bonus=0, bq=0)
        def tick(force=False):
            if S['gen'] is None:
                n = S['n']
                if n >= len(jobs): return False
                lo = place(n, S['j'])
                if lo is None: return False
                if S['out'] + 2 > min(24, self.lcap + S['bonus']) and not force: return False
                jobs[n][3] = lo; S['gen'] = issue(jobs[n][:4]); S['left'] = size(jobs[n]) // 8192
            elif S['out'] + 2 > min(24, self.lcap + S['bonus']) and not force: return False
            next(S['gen']); S['left'] -= 1; S['out'] += 2
            if S['left'] == 0: tags[S['n']] = a.vm_seq; S['n'] += 1; S['gen'] = None
            return True
        self.tick = tick
        pend = list(self.stages); mark = None
        chunks = []
        filler = []
        def chop(f, chunks=chunks):
            sub = Asm(); sub.auto = False; sub.lines = ['@'] * 0
            keep_a, keep_t = self.a, self.tick
            cuts = []
            def cutp(): sub.fence(); cuts.append((len(sub.lines), sub.vm_seq))
            self.a, self.tick = sub, cutp
            f(sub); cutp()
            self.a, self.tick = keep_a, keep_t
            l0 = q0 = 0
            for l1, q1 in cuts:
                if l1 > l0: chunks.append((sub.lines[l0:l1], q1 - q0))
                l0, q0 = l1, q1
        def side():
            if chunks:
                ls, nq = chunks.pop(0)
                a.fence(); a.lines += ls; a.pos += len(ls); a.vm_seq += nq
                nst = sum('buffer_store' in x for x in ls)
                if nst and self.lbo: S['bonus'] += nst + 1; S['bq'] = a.vm_seq
                if not chunks: S['mark'] = a.vm_seq
            elif filler:
                ls, nq = filler.pop(0)
                a.fence(); a.lines += ls; a.pos += len(ls)
        self.side = side
        chop(lambda a: (self.loop_scalars(), self.constants()), filler)
        for i in range(self.lpri): tick()
        for j in range(len(jobs)):
            S['j'] = j
            if j in tags and tags[j] > S['bq']: S['bonus'] = 0
            if pend and not chunks and (S.get('mark') is None or (j > 0 and tags[j - 1] > S['mark'])):
                chop(pend.pop(0))
                if j == 0:
                    while tick(): pass
                    for i in range(self.lsd): side()
            if len(jobs) - j in self.at:
                assert not pend and not chunks and not filler
                self.at[len(jobs) - j](a)
            while tick(): pass
            while j not in tags: assert tick(True)
            a.wait(vm=tags[j])
            self.outs = getattr(self, 'outs', []) + [S['out']]
            S['out'] -= size(jobs[j]) // 4096
            consume(jobs[j][:4])
            if self.ptrace: self.ptrace(a, j)
        self.tick = lambda: None
        assert not pend
        self.sched = [(j[:4]) for j in jobs]
        a.ins('s_barrier')

    def prologue(self, st1=None, st2=None, st3=None, st4=None, late=None):
        a = self.a
        def s0(a): self.addresses(); self.init_exchange()
        def s1(a):
            if st1: st1(a)
        def s4(a):
            self.init_late()
            if st4: st4(a)
            else: self.touch_kv()
        self.stages = [s0] + ([s1] if st1 else []) + [x for x in (st2,) if x]
        self.at = {self.lt: s4, self.lte: lambda a: self.touch_exchange()}
        if st3: self.at[self.lasy] = st3
        self.load_weights()
        if late: late(a)
        self.constants_put()
        a.wait(vm='all', lds='all')
        a.fence()

    def loop_scalars(self):
        a = self.a
        a.salu('s_mov_b32', s(sC1), '0x3e0293ee'); a.salu('s_mov_b32', s(sC1 + 1), s(sC1))
        a.salu('s_mov_b32', s(sNC1), '0x42000000' if not self.gforce else 0)
        a.salu('s_mov_b32', s(sONE), '0x3f803f80'); a.salu('s_mov_b32', s(sONE + 1), s(sONE))
        a.salu('s_mov_b32', s(sHALF), '0x3e803e80'); a.salu('s_mov_b32', s(sHALF + 1), s(sHALF))
        a.salu('s_mov_b32', s(sSTEP), 0)
        a.salu('s_lshl_b32', s(sD1), s(sW), 10); a.salu('s_add_u32', s(sD1), s(sD1), L_MBUF + 4096)
        a.salu('s_lshl_b32', s(sD1 + 1), s(sW), 8); a.salu('s_add_u32', s(sD1 + 1), s(sD1 + 1), L_MBUF + 8192)
        a.salu('s_lshl_b32', s(sPF), s(sH), 14); a.salu('s_add_u32', s(sPF), s(sPF), WS_KV)
        a.salu('s_add_u32', s(sAL), s(sPF), (self.nsteps - 1) * 32 * 16384)
        a.salu('s_mul_i32', s(sT0), s(sW), 3072); a.salu('s_add_u32', s(sKX), s(sPF), s(sT0))
        a.salu('s_lshl_b32', s(sPS0), s(sH), 7); a.salu('s_add_u32', s(sPS0), s(sPS0), self.wspart)
        a.salu('s_add_u32', s(sPS1), s(sPS0), 65536)
        a.salu('s_add_u32', s(sLO8), s(sPS0), 4096); a.salu('s_add_u32', s(sLO8 + 1), s(sPS1), 4096)
        a.salu('s_lshl_b32', s(sPSX), s(sH), 7); a.salu('s_add_u32', s(sPSX), s(sPSX), self.wspart + 8192)
        self.tick()
        a.salu('s_lshl_b32', s(sT0), s(sH), 12)
        a.salu('s_add_u32', s(sKM), s(sT0), WS_KM + (self.nsteps - 2) * 32 * 4096)
        a.salu('s_add_u32', s(sVM), s(sT0), WS_VM + (self.nsteps - 2) * 32 * 4096)
        a.salu('s_lshl_b32', s(sFV), s(sH), 9); a.salu('s_add_u32', s(sFV), s(sFV), WS_MEMH)
        a.salu('s_lshl_b32', s(sT0), s(sW), 5); a.salu('s_or_b32', s(sT0), s(sT0), s(sH))
        a.salu('s_cmp_lt_u32', s(sT0), 24, nodst=True)
        a.salu('s_cselect_b32', s(sW0M), '0x1ffffff', 0); a.salu('s_mov_b32', s(sW0M + 1), 0)
        a.salu('s_lshl_b32', s(sFL), s(sH), 7); a.salu('s_add_u32', s(sFL), s(sFL), SY_CHF)
        a.salu('s_lshl_b32', s(sT0), s(sW), 2); a.salu('s_add_u32', s(sFL), s(sFL), s(sT0))

    def touch_kv(self):
        a = self.a
        a.salu('s_add_u32', s(sT0), s(sPF), 32 * 16384)
        a.ins(f'buffer_load_dword v30, v{PFA}, s[{SRD}:{SRD+3}], s{sPF} offen sc1')
        a.ins(f'buffer_load_dword v30, v{PFA}, s[{SRD}:{SRD+3}], s{sT0} offen sc1')

    def touch_exchange(self):
        a = self.a
        a.valu('v_lshlrev_b32', v(45), 3, v(LH))
        a.salu('s_lshl_b32', s(sT0), s(sH), 14); a.salu('s_add_u32', s(sT0), s(sT0), self.wspart - self.wsmem)
        a.salu('s_lshl_b32', s(sT1), s(sH), 11); a.salu('s_sub_u32', s(sT1), s(sT1), 96 * 128)
        a.valu('v_add_u32', v(30), s(sT0), v(45)); a.valu('v_add_u32', v(45), s(sT1), v(45))
        a.valu('v_cmp_gt_u32', 'vcc', 96 * 16, v(LH))
        a.valu('v_cndmask_b32', v(45), v(45), v(30), 'vcc')
        a.salu('s_lshl_b32', s(sT0), s(sH), 16); a.salu('s_add_u32', s(sT0), s(sT0), WS_M0 - self.wsmem - 112 * 128)
        a.valu('v_lshlrev_b32', v(30), 3, v(LH)); a.valu('v_add_u32', v(30), s(sT0), v(30))
        a.valu('v_cmp_gt_u32', 'vcc', 112 * 16, v(LH))
        a.valu('v_cndmask_b32', v(45), v(30), v(45), 'vcc')
        a.valu('v_cmp_gt_u32', 'vcc', 184 * 16, v(LH))
        a.salu('s_mov_b32', s(sT0), self.wsmem)
        a.salu('s_mov_b64', 'exec', 'vcc')
        if self.tx == 1:
            a.salu('s_cmp_eq_u32', s(sW), 0, nodst=True); a.salu('s_cselect_b64', 'exec', 0, 'exec')
        a.ins(f'buffer_load_dword v30, v45, s[{SRD}:{SRD+3}], s{sT0} offen sc1')
        a.salu('s_mov_b64', 'exec', -1)

    def loop_init(self):
        a = self.a
        a.salu('s_mov_b32', 'm0', L_DUMP)
        a.salu('s_add_u32', s(sPF), s(sPF), 2 * 32 * 16384)
        m_ = (3 << (self.nsteps - 2)) | ((1 << self.spec[0]) if self.spec else 0) | self.rt0
        a.salu('s_mov_b32', s(66), hex(m_ & 0xffffffff)); a.salu('s_mov_b32', s(67), hex(m_ >> 32))
        if self.timing:
            for i in range(24): a.salu('s_mov_b32', s(sACC + i), 0)

    def step(self):
        a = self.a; t = self.tag; fl = self.fl; lfl = self.lfl
        srd = s(SRD, 4); T = {}
        R0, R1, R2, R3, R4, R5, R6, R7, R8 = Rq
        ACCS = {'q0': AQ0, 'q1': AQ1, 'k0': AK0, 'k1': AK1, 'v0': AV0, 'v1': AV1}
        where = {}
        M = {}
        def fr(f, dst):
            rg, off = lds_base(LDS_ADDR[f])
            def f0(): where[f] = dst; a.ds('ds_read_b128', v(dst, 4), v(rg), mods=f'offset:{off}')
            def f1(): T[f] = a.ds('ds_read_b128', v(dst + 4, 4), v(rg), mods=f'offset:{off + 4096}')
            return f0, f1
        def xr(i): return {0: (LW0, B_LW0), 1: (LW1, B_LW1), 2: (LW2, B_LW1), 3: (LW3, B_LW1)}[i]
        def mr(sl, dst):
            def f():
                M[sl] = dst
                if sl == 8: T[('m', sl)] = a.ds('ds_read_b128', v(dst, 4), v(L16), mods=f'offset:{L_MBUF + 8192 - B_LW1}')
                else:
                    rg, b = xr(sl & 3)
                    T[('m', sl)] = a.ds('ds_read_b128', v(dst, 4), v(rg), mods=f'offset:{L_MBUF + (sl >> 2) * 4096 - b}')
            return f
        def wl(key): return lambda: a.wait(lds=T[key])
        def wv(key): return lambda: (a.wait(vm=T[key]) if T[key] > a.done['vm'] else None)
        def mm(o, sl):
            f = (o[0], int(o[1]), sl)
            a.mfma(SMF, v(ACCS[o], 4), v(M[sl], 4), v(where[f], 8) if f in LDS_ADDR else freg(f), v(IDX))
        def run(seq):
            for x in seq:
                if isinstance(x, tuple): mm(*x)
                elif x is not None: x()
        def sal(*args, **kw): return lambda: a.salu(*args, **kw)
        def val(*args, **kw): return lambda: a.valu(*args, **kw)
        def ins(x): return lambda: a.ins(x)
        def z2(r, c=0): return val('v_mov_b64', v(r, 2), c)
        def zero(lo, hi):
            for i in range(lo, hi, 2): z2(i)()
        def cvt(d, x, y=None): return val('v_cvt_pk_bf16_f32', v(d), v(x), v(x + 1 if y is None else y))
        def dpp(d, x, bm): return val('v_mov_b32_dpp', v(d), v(x), mods=f'row_ror:8 row_mask:0xf bank_mask:{bm}', rmw=True)
        def mf(op, d, A, B, C): return lambda: a.mfma(op, v(d, 4), v(A, 4 if op == MF32 else 2), v(B, 4 if op == MF32 else 2), 0 if C is None else v(C, 4))
        def zmf(d): return mf(MF16, d, ZZ, ZZ, None)
        def st(k): return lambda: self.stamp(k)
        LC, TM, LCW, MC = R8, R8 + 1, R8 + 2, R8 + 3
        def vbr(lab):
            a.ins(f's_cbranch_vccnz {lab}')
        def poll0(R0=R0):
            a.vmem('buffer_load_dwordx4', v(R0, 4), v(LH), srd, s(sMEM), mods='offen ' + lfl); a.nowait(v(R0, 4))
            if self.p0d:
                a.raw(f'    buffer_load_dwordx4 v{LH}, s[{SRD}:{SRD+3}], s{sMEM} offen {lfl} lds'); a.pos += 1; a.vm_seq += 1
        def dma1(i):
            def f():
                a.salu('s_mov_b32', 'm0', s(sD1 + i))
                a.nop(1)
                a.raw(f'    buffer_load_dwordx4 v{LH}, s[{SRD}:{SRD+3}], s{sMEM4} offen {lfl} lds' if i == 0 else f'    buffer_load_dword v{LC}, s[{SRD}:{SRD+3}], s{sMEM8} offen {lfl} lds')
                a.pos += 1; a.vm_seq += 1
            return f
        def rd1a(): a.ds('ds_read_b128', v(R1, 4), v(LW0), mods=f'offset:{L_MBUF + 4096 - B_LW0}')
        def rd1b(): a.ds('ds_read_b32', v(MC), v(LCW))
        m0d = sal('s_mov_b32', 'm0', L_DUMP)
        def poll1():
            a.vmem('buffer_load_dwordx4', v(R1, 4), v(LH), srd, s(sMEM4), mods='offen ' + lfl)
            a.vmem('buffer_load_dword', v(MC), v(LC), srd, s(sMEM8), mods='offen ' + lfl)
            a.nowait(v(R1, 4)); a.nowait(v(MC))
        def prefetch_top():
            run(list(fr(('q', 1, 0), R2)) + list(fr(('k', 0, 0), R4)) + list(fr(('k', 1, 0), R6)))
        def prefetch_av(): run(list(fr(('q', 0, 0), AV0)))
        def offsets():
            a.salu('s_add_u32', s(sMEM4), s(sMEM), 4096); a.salu('s_add_u32', s(sMEM8), s(sMEM), 8192)
        def pubk(r):
            if self.nopub: return
            a.salu('s_mov_b64', 'exec', s(sHI8, 2))
            a.vmem('buffer_store_dwordx4', v(r, 4), v(LH), srd, s(sKM), mods='offen ' + self.pfl, load=False, data=v(r, 4))
            a.salu('s_mov_b64', 'exec', -1)
        def pubv(r):
            if self.nopub: return
            a.vmem('buffer_store_dwordx4', v(r, 4), v(LH), srd, s(sVM), mods='offen ' + self.pfl, load=False, data=v(r, 4))
        def flag(r):
            if self.nopub: return
            a.salu('s_mov_b64', 'exec', 1)
            a.vmem('buffer_store_dword', v(r), 'off', srd, s(sFL), mods='sc1', load=False)
            a.salu('s_mov_b64', 'exec', -1)
        def pf(r):
            if self.nopf: return
            a.raw(f'    buffer_load_dword v{r}, s[{SRD}:{SRD+3}], s{sPF} offen sc1 lds'); a.pos += 1; a.vm_seq += 1

        offsets(); prefetch_top()
        a.salu('s_add_u32', s(sMRS), s(sMEM), s(sMSU))
        if self.p0d: a.salu('s_sub_u32', 'm0', s(sD1), 4096)
        a.salu('s_mov_b32', s(sSPIN), self.spinmax)
        poll0()
        a.raw('.p2align 6')
        a.label(f'{t}_loop')
        a.forget()
        zero(0, 16)
        a.label(f'{t}_loop2')
        st(0)()
        def top():
            prefetch_av()
            a.valu('v_lshrrev_b32', v(LC), 2, v(LH))
            a.valu('v_add_u32', v(LCW), L_MBUF + 8192, v(LC))
            if self.timing: a.salu('s_mov_b32', 's94', s(sSPIN))
            a.salu('s_mov_b32', s(sSPIN), self.spinmax)
            if self.hook: self.hook(a)
        top()
        for i in range(self.ks - 1):
            if self.pA: a.nop(self.pA)
            poll0()
        r1 = self.p1 == 3
        if r1:
            if self.dA: a.nop(self.dA)
            poll1()
        a.ins('s_waitcnt lgkmcnt(0)')
        a.label(f'{t}_chk0')
        a.ins(f's_waitcnt vmcnt({2 * self.ks - 1 if self.p0d else self.ks - 1 + (2 if r1 else 0)})')
        a.lines.append(f'{t}_chk0b:')
        st(1)()
        M[0] = R0; M[4] = R1
        K01, K11 = fr(('k', 0, 1), R2), fr(('k', 1, 1), R4)
        K02, K12 = fr(('k', 0, 2), R2), fr(('k', 1, 2), R4)
        K03, K13 = fr(('k', 0, 3), R2), fr(('k', 1, 3), R4)
        o2 = [sal('s_add_u32', s(sT3), s(sMEM), s(sMSU)), sal('s_add_u32', s(sT1), s(sMEM), 16384), sal('s_and_b32', s(sT1), s(sT1), 0xffff),
              sal('s_add_u32', s(sT1), s(sT1), self.wsmem), sal('s_add_u32', s(sMST), s(sT1), s(sMSU)), sal('s_and_b32', s(sTAG), s(sSTEP), 1)]
        a.valu('v_max3_u32', v(TM), v(R0), v(R0 + 1), v(R0 + 2)); a.valu('v_max_u32', v(TM), v(TM), v(R0 + 3))
        a.valu('v_cmp_eq_u32', 'vcc', -1, v(TM))
        if not self.p0d: wA = a.ds('ds_write_b128', v(LW0), v(R0, 4), mods=f'offset:{L_MBUF - B_LW0}')
        vbr(f'{t}_spin0')
        if self.p0d: run([('k1', 0), ins(f's_waitcnt vmcnt({2 * self.ks - 2})')])
        elif self.p1 == 4: run([('q0', 0), dma1(0), ('q1', 0), dma1(1), ('k1', 0), K01[0], zmf(AV0), K01[1], lambda: a.wait(lds=wA)])
        else: run([('q0', 0), poll1 if self.p1 in (1, 3) else None, ('q1', 0), K01[0], ('k1', 0), K01[1], zmf(AV0), lambda: a.wait(lds=wA)])
        a.ins('s_barrier')
        st(2)()
        p4 = self.p1 == 4
        KV = [R0, R2, R4, R5] if p4 else [R2, R3, R4, R5]
        M8 = R3 if p4 else R0
        def kx(i):
            def f(): T['kx', i] = a.vmem('buffer_load_dwordx4', v(KV[i], 4), v(LH), srd, s(sKX), mods=f'offen offset:{i*1024} sc1')
            return f
        c1 = [val('v_max3_u32', v(TM), v(R1), v(R1 + 1), v(R1 + 2)), val('v_max3_u32', v(TM), v(TM), v(R1 + 3), v(MC)), val('v_cmp_eq_u32', 'vcc', -1, v(TM))]
        def w1a(): a.ds('ds_write_b128', v(LW0), v(R1, 4), mods=f'offset:{L_MBUF + 4096 - B_LW0}')
        def w1b(): T['wB'] = a.ds('ds_write_b32', v(LCW), v(MC))
        if self.p1 == 4:
            if self.p0d: run([mr(1, R6), ('q1', 0), K01[0], K01[1], ('q0', 0), dma1(0), ('k0', 0), dma1(1), zmf(AV0), K11[0], zmf(AV1), K11[1], ('q0', 1), mr(2, R7), ('v0', 0), m0d, ('v1', 0), o2[0], o2[1]])
            else: run([mr(1, R6), zmf(AV1), mr(2, R7), ('k0', 0), K11[0], ('v0', 0), K11[1], ('v1', 0), m0d, ('q0', 1), o2[0], o2[1]])
            run([('k0', 1), K02[0], ('q1', 1), K02[1], ('k1', 1), K12[0], ('v0', 1), K12[1], ('v1', 1), mr(3, R6),
                 ('q0', 2), ins('s_waitcnt vmcnt(0)'), st(3), rd1a, ('k0', 2), rd1b, kx(0), ('q1', 2), K03[0], ('k1', 2), K03[1], ('v0', 2), K13[0], ('v1', 2), K13[1],
                 lambda: a._autowait([('v', MC)], 'mc'), ('q0', 3), c1[0], ('q1', 3), c1[1], ('k0', 3), kx(1), c1[2], ('v0', 3), ('v1', 3)])
            vbr(f'{t}_spin1')
            a.lines.append(f'{t}_go1:')
        elif self.p1 == 2:
            run([mr(1, R6), zmf(AV1), poll1, mr(2, R7), ('k0', 0), K11[0], ('v0', 0), K11[1], ('v1', 0),
                 ('q0', 1), o2[0], o2[1], ('k0', 1), K02[0], ('q1', 1), K02[1], ('k1', 1), K12[0], ('v0', 1), K12[1], ('v1', 1), mr(3, R6),
                 ('k0', 2), K03[0], ('q0', 2), K03[1], ('k1', 2), K13[0], ('q1', 2), K13[1], ('v0', 2), ('v1', 2),
                 ('q0', 3), ins('s_waitcnt vmcnt(0)'), st(3), w1a, ('q1', 3), w1b, c1[0], c1[1], ('k0', 3), kx(0), c1[2], ('k1', 3), ('v0', 3)])
            vbr(f'{t}_spin1')
            a.lines.append(f'{t}_go1:')
            run([('v1', 3), wl('wB')])
        else:
            run([mr(1, R6), zmf(AV1), mr(2, R7), ('k0', 0), K11[0], ('v0', 0), K11[1], ('v1', 0),
                 ('q0', 1), o2[0], o2[1], ('k0', 1), K02[0], ('q1', 1), K02[1], ('k1', 1), K12[0], ('q0', 2), K12[1], ('q1', 2), mr(3, R6),
                 ('k0', 2), ins('s_waitcnt vmcnt(0)'), st(3), w1a, ('k1', 2), w1b, c1[0], ('q0', 3), K03[0], c1[1], ('q1', 3), K03[1], c1[2], ('v0', 2), K13[0], ('v1', 2), K13[1]])
            vbr(f'{t}_spin1')
            a.lines.append(f'{t}_go1:')
            run([('q0', 4), wl('wB')])
        a.ins('s_barrier')
        TB = R1
        def tbld(): T['tb'] = a.ds('ds_read_b128', v(TB, 4), v(MMR), mods=f'offset:{L_TB - 512 - B_LW1}')
        def pmld(R1=AQ0):
            if self.nopub: return
            a.salu('s_mov_b64', 'exec', s(sW0M, 2))
            a.ds('ds_read_b128', v(R1, 4), v(MST))
            a.salu('s_mov_b64', 'exec', -1)
        def pubm(R1=AQ0, restore=True):
            if self.nopub: return
            a._autowait([('v', R1 + i) for i in range(4)], 'pubm')
            L = f'{t}_np{len(a.lines)}'
            a.salu('s_mov_b64', 'exec', s(sW0M, 2))
            if self.pbr: a.ins(f's_cbranch_execz {L}')
            a.vmem('buffer_store_dwordx4', v(R1, 4), v(LH), srd, s(sFV), mods='offen ' + self.pfl, load=False, data=v(R1, 4))
            if self.pbr: a.pos -= 1; a.lines.append(L + ':')
            if restore: a.salu('s_mov_b64', 'exec', -1)
        K08, K18 = fr(('k', 0, 8), R6), fr(('k', 1, 8), R6)
        VB = 5 if self.p1 in (2, 4) else 1
        VL = 4 if self.p1 in (2, 4) else 3
        if self.p1 == 2: run([mr(5, R7), ('q0', 4), mr(6, R6), ('q1', 4), kx(1), ('k0', 4), mr(7, R8), o2[2], ('k1', 4), mr(8, R0), o2[3], o2[4], o2[5]])
        elif self.p1 == 4: run([mr(5, R7), ('k1', 3), mr(6, R6), ('q0', 4), kx(2), ('q1', 4), mr(7, R8), o2[2], ('k0', 4), mr(8, M8), o2[3], ('k1', 4), o2[4], o2[5]])
        else: run([mr(5, R7), ('q1', 4), mr(7, R8), ('k0', 4), lambda: a._autowait([('v', R4 + 4)], 'k13'), ('k0', 3), kx(0), ('k1', 3), mr(6, R6), ('k1', 4), mr(8, R0), o2[2], o2[3], ('v0', 4), kx(1), ('v1', 4), o2[4], o2[5]])
        run([('q0', 5), kx(3) if p4 else tbld, ('k0', 5), tbld if p4 else kx(2), ('q1', 5), ('k1', 5)] + ([K08[1], ('q0', 6), None if p4 else kx(3)] if self.p1 in (2, 4) else [('v0', 5), kx(3), ('v1', 5), K08[1], ('q0', 6)])
            + [('k0', 6), ('q1', 6), (lambda: pf(PFA)) if p4 else None, ('k1', 6), ('v0', 6), (lambda: pf(PFA)) if self.p1 not in (2, 4) else None, ('v1', 6), K08[0],
             ('q0', 7), (lambda: pf(PFA)) if self.p1 == 2 else None, sal('s_bitcmp1_b64', s(66, 2), s(sSTEP), nodst=True), ('q1', 7), ('q0', 8), ('q1', 8), ('k0', 7), lambda: a._autowait([('v', R6)], 'k08'), cvt(AQ0, AQ0),
             ('k0', 8), K18[0], cvt(AQ1, AQ1), ('k1', 7), K18[1], cvt(AQ1 + 1, AQ1 + 2), ('v0', 7), cvt(AQ0 + 1, AQ0 + 2),
             mf(MF16, AQ1, AQ1, TB, None), cvt(AQ0 + 2, AK0), cvt(AQ0 + 3, AK0 + 2), ('v1', 7), lambda: pmld(R8), mf(MF32, AK0, AQ0, TB, None), cvt(AQ0 + 2, AQ1), ('k1', 8), mr(VB, R6)])
        st(4)()
        heat = lambda: a.mfma(MF16, v(R6, 4), v(ZZ, 2), v(ZZ, 2), v(R6, 4))
        XF0, XF1, U22, U23, U32, U33 = fr(('o', 4, 0), R2), fr(('o', 4, 1), R6), fr(('o', 2, 2), R4), fr(('o', 2, 3), R2), fr(('o', 3, 2), R6), fr(('o', 3, 3), R4)
        run([cvt(AQ0 + 3, AQ1 + 2), wv(('kx', 1)), cvt(AQ0, AK0), cvt(AQ0 + 1, AK0 + 2), mf(MF32, AK0, KV[1], AQ0, None), cvt(AK1, AK1), cvt(AK1 + 1, AK1 + 2),
             mf(MF16, AK1, AK1, TB + 2, None), mr(VL, R7), XF0[0] if p4 else XF0[1], mf(MF32, R1, KV[0], AQ0, None), wv(('kx', 3)), None if p4 else XF0[0], sal('s_mov_b64', 'exec', s(sHI8, 2)),
             cvt(AQ0 + 2, AK1), cvt(AQ0 + 3, AK1 + 2), sal('s_mov_b64', 'exec', -1),
             mf(MF32, AQ1, AQ0, AQ0, None)]
            + [dpp(R1 + r, AK0 + r, '0xc') for r in range(4)] + [('v0', 8)])
        a.ds('ds_write_b128', v(LW0), v(R1, 4), mods=f'offset:{L_SC - B_LW0}')
        run([dpp(AQ1, AQ1 + 2, '0xc'), dpp(AQ1 + 1, AQ1 + 3, '0xc'), ('v1', 8)])
        ws_ = a.ds('ds_write_b64', v(MMW), v(AQ1, 2))
        if self.bf: run([('v0', 1), ins(f's_cbranch_scc1 {t}_last'), lambda: a.lines.append(f'{t}_back:'), ('v1', 1), XF0[0], ('v0', 3), zmf(AK1) if self.bf > 1 else None])
        else: run([('v0', VB), lambda: pubm(R8), ('v1', VB), ins(f's_cbranch_scc1 {t}_last'), lambda: a.lines.append(f'{t}_back:')] + [heat] * self.hb)
        a.wait(lds=ws_)
        a.ins('s_barrier')
        st(5)()
        X0, X1, X2, X3, MA, MB_ = R1, AK0, AQ1, AQ0, R8, AK1
        def xrd(i, d):
            rg, b = xr(i)
            return lambda: a.ds('ds_read_b128', v(d, 4), v(rg), mods=f'offset:{L_SC - b}')
        def mmrd(d, o): return lambda: a.ds('ds_read_b128', v(d, 4), v(MMR), mods=f'offset:{L_MM + o - B_LW1}')
        def mulc(d): return val('v_mul_f32', v(d), s(sC1), v(d))
        def fmc(d, x): return val('v_fmac_f32', v(d), s(sC1), v(x))
        BM, BT = AK0 + 2, AQ1
        AC = [R1, AQ1, AV0, AV1]; ACX = AK0
        WL, LQ, O0, O1 = R0, AQ0, AK1, AV1
        ET, EM = AQ0, MA + 2
        CK = AK0
        F = {0: AQ0, 1: R0, 2: AK1, 3: R8}
        def ex(d, x): return val('v_exp_f32', v(d), v(x))
        def pkf(d, x): return val('v_pk_fma_f32', v(d, 2), v(x, 2), s(sC1, 2), v(d, 2))
        BMT = R8 + 2
        mm_ = [val('v_pk_add_f32', v(MA, 2), v(MA, 2), v(MA + 2, 2)), val('v_pk_add_f32', v(MB_, 2), v(MB_, 2), v(MB_ + 2, 2)), val('v_pk_add_f32', v(MA, 2), v(MA, 2), v(MB_, 2)),
               val('v_pk_mul_f32', v(MA, 2), v(MA, 2), s(sC1, 2))]
        def pkm(d): return val('v_pk_mul_f32', v(d, 2), v(d, 2), s(sC1, 2))
        run(([mmrd(MA, -512), ('v0', VL), mmrd(MB_, 0), xrd(1, X1), ('v1', VL), xrd(2, X2), xrd(3, X3)] if self.ha else [mmrd(MA, -512), mmrd(MB_, 0), None if self.bf else ('v0', 3), xrd(1, X1), xrd(2, X2), ('v1', 3), xrd(3, X3)]) + [heat] * max(self.ha - 1, 0) + [
             z2(WL, s(sHALF, 2)), z2(WL + 2, s(sONE, 2)), cvt(AV0, AV0), cvt(AV0 + 1, AV0 + 2), pkm(X0), pkm(X0 + 2), lambda: a._autowait([('v', MB_)], 'mb')] + mm_ + [ex(EM, MA), ex(EM + 1, MA + 1),
             lambda: a._autowait([('v', X2)], 'x2'), pkf(X0, X1), pkf(X0 + 2, X1 + 2), cvt(BM, EM), pkf(X0, X2), pkf(X0 + 2, X2 + 2),
             pkf(X0, X3), dpp(BM + 1, BM, '0xf'), pkf(X0 + 2, X3 + 2)])
        st(6)()
        def soft(first):
            x_ = [cvt(AV0 + 2, AV1), cvt(AV0 + 3, AV1 + 2), None] if first else [None] * 3
            if not first: run([ex(EM, MA), ex(EM + 1, MA + 1), cvt(BM, EM), dpp(BM + 1, BM, '0xf')])
            run([ex(ET, X0), mf(MF16, O0, AV0, BM, None), XF1[0] if first else None, ex(ET + 1, X0 + 1), x_[0], ex(ET + 2, X0 + 2), x_[1], cvt(BT, ET), ex(ET + 3, X0 + 3), mf(MF16, O1, AV0 + 2, BM, None), XF1[1] if first else None,
                 cvt(BT + 1, ET + 2), dpp(BT + 2, BT, '0xf'), val('v_max3_f32', v(CK), f'|v{X0}|', f'|v{X0+1}|', f'|v{X0+2}|'), dpp(BT + 3, BT + 1, '0xf'), st(7) if first else None,
                 mf(MF32, LQ, WL, BM, None), XF0[1] if (first and p4) else None, val('v_max3_f32', v(CK), v(CK), f'|v{X0+3}|', f'|v{MA}|'), val('v_max_f32_e64', v(CK), v(CK), f'|v{MA+1}|'),
                 mf(MF32, O0, R4, BT, O0), val('v_cmp_nge_f32', 'vcc', s(sNC1), v(CK)),
                 mf(MF32, O1, R5, BT, O1),
                 val('v_add_f32_dpp', v(LQ), v(LQ), v(LQ), mods='row_ror:8 row_mask:0xf bank_mask:0xf'), val('v_rcp_f32', v(LQ), v(LQ))])
        soft(True)
        vbr(f'{t}_guard')
        a.lines.append(f'{t}_norm:')
        run([zmf(AC[0])]
            + [val('v_mul_f32', v(O0 + r), v(O0 + r), v(LQ)) for r in range(4)]
            + [val('v_mul_f32_dpp', v(O0 + r), v(O1 + r), v(LQ), mods='row_ror:8 row_mask:0xf bank_mask:0xc', rmw=True) for r in range(4)]
            + [cvt(O0, O0), cvt(O0 + 1, O0 + 2), zmf(AC[1])])
        wo = a.ds('ds_write_b64', v(OW), v(O0, 2))
        def guard():
            a.label(f'{t}_guard')
            a.forget()
            a.ins(f's_cbranch_scc0 {t}_guard2')
            pubv(AV0)
            a.salu('s_add_u32', s(sVM), s(sVM), 32 * 4096)
            a.salu('s_add_u32', s(sT0), s(sNONCE), self.nsteps - 1); a.valu('v_mov_b32', v(CK + 1), s(sT0)); flag(CK + 1)
            a.label(f'{t}_guard2')
            a.nop(8)
            M1, M2 = BM, BM + 1
            a.valu('v_max3_f32', v(M1), v(X0), v(X0 + 1), v(X0 + 2))
            a.valu('v_max3_f32', v(M2), v(X0 + 3), v(MA), v(MA + 1))
            a.valu('v_max_f32', v(M1), v(M1), v(M2))
            a.valu('v_max_f32_dpp', v(M1), v(M1), v(M1), mods='row_ror:8 row_mask:0xf bank_mask:0xf')
            for sw in ('v_permlane32_swap_b32', 'v_permlane16_swap_b32'):
                a.valu('v_mov_b32', v(M2), v(M1)); a.valu(sw, v(M1), v(M2)); a.valu('v_max_f32', v(M1), v(M1), v(M2))
            for d in (X0, X0 + 1, X0 + 2, X0 + 3, MA, MA + 1): a.valu('v_sub_f32', v(d), v(d), v(M1))
            soft(False)
            a.fence()
            a.ins(f's_branch {t}_norm')
        def E(u, i):
            def f():
                fg = ('o', u, i)
                a.mfma(SMF, v(ACX if u == 4 else AC[u], 4), v(F[2 * i if u == 4 else i], 4), v(where[fg], 8) if fg in LDS_ADDR else freg(fg), v(IDX))
            return f
        OA = [None, OA1, OA2, OA3]
        run([zmf(ACX), lambda: a.ds('ds_read_b128', v(F[0], 4), v(OR0)), zmf(AC[2]), U22[0], zmf(AC[3]), U22[1]])
        a.wait(lds=wo)
        a.ins('s_barrier')
        st(8)()
        if self.xnop: a.nop(self.xnop)
        def frd(i): return lambda: a.ds('ds_read_b128', v(F[i], 4), v(OA[i]))
        def tag(r): return val('v_and_or_b32', v(r), v(r), -2, s(sTAG))
        def fin(u):
            r = ACX if u == 4 else AC[u]
            so = [sPS0, sPS1, sLO8, sLO8 + 1, sPSX][u]
            return [cvt(r, r), cvt(r + 1, r + 2), tag(r), lambda: a.vmem('buffer_store_dwordx2', v(r, 2), v(PSX if u == 4 else PST), srd, s(so), mods='offen ' + fl, load=False)]
        P0 = [R4, R5, R6, R7]
        def shot(P):
            for i in range(4):
                a.vmem('buffer_load_dwordx4', v(P[i], 4), v(L16), srd, s(sPL), mods=f'offen offset:{1024 * i} ' + lfl)
            a.nowait(v(P[0], 16))
        def shot0():
            if not self.ins0: return
            if self.dE: a.nop(self.dE)
            a.ins(f's_cbranch_scc1 {t}_ns0')
            p = a.pos
            for r in P0: a.valu('v_not_b32', v(r), s(sTAG))
            shot(P0)
            a.pos = p
            a.lines.append(f'{t}_ns0:')
        f0, f1, f2, f3, fx = [fin(u) for u in range(5)]
        def aw(*regs): return lambda: a._autowait([('v', r) for r in regs], 'aw')
        if self.eo == 3:
          run([frd(1), frd(2), frd(3), E(0, 0), E(1, 0), E(4, 0), U23[0],
             aw(F[2]), E(0, 1), U23[1], E(0, 2), E(0, 3), E(1, 1), E(1, 2), f0[0], E(1, 3), f0[2], f0[1], E(4, 1), f0[3], U32[0], E(2, 2), U32[1], f1[0], f1[2], f1[1], E(2, 0), f1[3], st(9), U33[0],
             E(2, 1), U33[1], fx[0], E(2, 3), fx[2], E(3, 0), fx[1], E(3, 1), fx[3] if self.hx else None, f2[0], aw(R4 + 4), E(3, 2), f2[2], E(3, 3), sal('s_cmp_lg_u32', s(sW), 2, nodst=True), f2[1]]
             + [val('v_not_b32', v(r + o), s(sTAG)) for r in P0 for o in (0, 2)] + [f3[0], f3[2], f3[1]])
          if self.dE: a.nop(self.dE)
          a.ins(f's_cbranch_scc1 {t}_ns0')
          shot(P0)
          a.lines.append(f'{t}_ns0:')
          a.ins('s_barrier')
          run([None if self.hx else fx[3], f2[3], f3[3]])
        elif self.eo == 2:
          run([frd(1), frd(2), frd(3), E(0, 0), E(1, 0), E(4, 0), U23[0],
             aw(F[2]), E(0, 1), U23[1], E(0, 2), E(0, 3), E(1, 1), E(1, 2), f0[0], E(1, 3), f0[2], f0[1], E(4, 1), f0[3], U32[0], E(2, 2), U32[1], f1[0], f1[2], f1[1], E(2, 0), f1[3], st(9), U33[0],
             E(2, 1), U33[1], fx[0], E(2, 3), fx[2], fx[1], E(3, 0), fx[3], E(3, 1), f2[0], aw(R4 + 4), E(3, 2), f2[2], f2[1], E(3, 3), f2[3], sal('s_cmp_lg_u32', s(sW), 2, nodst=True), f3[0], f3[2], f3[1], f3[3]])
        else:
          run([frd(1), frd(2), frd(3), E(0, 0), E(1, 0), E(4, 0), U23[0], E(2, 0), U23[1],
             aw(F[2]), E(0, 1), E(4, 1), U32[0], E(0, 2), U32[1], E(0, 3), fx[0], E(2, 2), U33[0], fx[2], E(1, 1), U33[1], fx[1], E(1, 2), fx[3], f0[0], E(1, 3), f0[2], E(2, 1), f0[1],
             E(2, 3), f0[3], f1[0], aw(R4 + 4), E(3, 0), f1[2], E(3, 1), f1[1], E(3, 2), f1[3], st(9), f2[0], E(3, 3), f2[2], f2[1], f2[3], sal('s_cmp_lg_u32', s(sW), 2, nodst=True), f3[0], f3[2], f3[1], f3[3]])
        st(10)()
        P = [AQ0, AK0, AQ1, AK1]; RD, XT, NEG, SELR = R1, AV1, AV1 + 1, R8
        def finish():
            a.fence()
            a.ins(f's_branch {t}_loop')
        def publish():
            a.valu('v_cvt_pk_bf16_f32', v(RD), v(RD), v(RD + 2))
            a.salu('s_mov_b64', 'exec', s(sSTM, 2))
            a.vmem('buffer_store_dword', v(RD), v(MST), srd, s(sMST), mods='offen ' + fl, load=False)
            st(11)()
        def reset():
            a.salu('s_mov_b64', 'exec', -1)
        def reset_old():
            a.valu('v_mov_b32', v(NEG), -1)
            a.salu('s_mov_b64', 'exec', s(sSTM, 2))
            a.vmem('buffer_store_dword', v(NEG), v(MST), srd, s(sMRS), mods='offen ' + fl, load=False)
            a.salu('s_mov_b64', 'exec', -1)
            a.salu('s_mov_b32', s(sMRS), s(sT3))
        def idle(pre=True):
            a.ds('ds_read_b128', v(SELR, 4), v(L16), mods=f'offset:{L_SEL - B_LW1}')
            if pre: prefetch_top()
            a.salu('s_add_u32', s(sSTEP), s(sSTEP), 1); a.salu('s_mov_b32', s(sMEM), s(sT1))
            a.salu('s_add_u32', s(sKX), s(sKX), 32 * 16384); a.salu('s_add_u32', s(sPF), s(sPF), 32 * 16384); a.salu('s_min_u32', s(sPF), s(sPF), s(sAL))
            offsets()
            a.salu('s_add_u32', s(sFV), s(sFV), 24 * 512)
            a.salu('s_mov_b32', s(sT0), 1)
            if self.p0d: a.salu('s_sub_u32', 'm0', s(sD1), 4096)
            if self.eo == 3: z2(R0, -1)()
        def reduce(lab, k, P, y=0, pre=False):
            a.label(f'{t}_chk{lab}')
            a.valu('v_mov_b32', v(XT), 0)
            for i in range(4):
                a.ins(f's_waitcnt vmcnt({4 * k - 1 - i + y})')
                chk = [val('v_bitop3_b32', v(XT), v(XT), v(r), s(sTAG), mods='bitop3:0xf6') for r in (P[i], P[i] + 2)]
                if k > 1 or pre: run(chk)
                a.mfma(MF32, v(RD, 4), v(P[i], 4), v(SELR, 4), 0 if i == 0 else v(RD, 4))
                if k == 1 and not pre: run(chk)
            a.valu('v_and_b32', v(XT), s(sT0), v(XT))
            a.valu('v_cmp_ne_u32', 'vcc', 0, v(XT))
            a.ins(f's_cbranch_vccnz {t}_spin{lab}')
            a.pos += 4
            a.valu('v_permlane32_swap_b32', v(RD), v(RD + 2)); a.valu('v_permlane32_swap_b32', v(RD + 1), v(RD + 3))
            a.valu('v_add_f32', v(RD), v(RD), v(RD + 2)); a.valu('v_add_f32', v(RD + 2), v(RD + 1), v(RD + 3))
        def retry(lab, P):
            a.label(f'{t}_spin{lab}')
            a.forget()
            shot(P)
            a.salu('s_sub_u32', s(sSPIN), s(sSPIN), 1)
            a.salu('s_cmp_lt_i32', s(sSPIN), 0, nodst=True)
            a.salu('s_cselect_b32', s(sT0), 0, 1)
            if self.eo == 3: a.ins('s_waitcnt vmcnt(0)')
            a.ins(f's_branch {t}_chk{lab}')
        a.ins(f's_cbranch_scc1 {t}_w013')
        a.fence()
        reset_old()
        if self.eo != 3:
            if self.d0: a.nop(self.d0 - 7)
            shot(P0)
        idle(False); zero(0, 16)
        if self.k0 > 1: a.nop(self.pF); shot(P0)
        reduce('F', self.k0, P0, (2 if self.hx else 3) if self.eo == 3 else 0, self.eo == 3); publish(); reset()
        if self.k0 == 1: prefetch_top()
        a.nop(self.dB); poll0()
        if self.k0 > 1: a.ins('s_waitcnt vmcnt(1)'); prefetch_top()
        a.fence()
        a.ins(f's_branch {t}_loop2')
        a.label(f'{t}_w013')
        a.forget()
        idle()
        a.salu('s_cmp_eq_u32', s(sROLE), 0, nodst=True)
        a.ins(f's_cbranch_scc1 {t}_w0')
        reset_old()
        a.salu('s_cmp_eq_u32', s(sW), 1, nodst=True)
        if self.dX: a.nop(self.dX - 6)
        a.ins(f's_cbranch_scc1 {t}_sx')
        a.nop(self.d1 - self.dX)
        a.lines.append(f'{t}_sx:')
        shot(P)
        if self.k1 > 1: a.nop(self.pG); shot(P)
        if self.eo == 3: a.nop(self.dA); poll0()
        reduce('G', self.k1, P, 1 if self.eo == 3 else 0)
        a.salu('s_cmp_eq_u32', s(sW), 3, nodst=True)
        a.ins(f's_cbranch_scc1 {t}_w3')
        a.valu('v_mov_b32', v(RD + 1), v(RD)); a.valu('v_mov_b32', v(RD + 3), v(RD + 2))
        a.valu('v_permlane16_swap_b32', v(RD), v(RD + 1)); a.valu('v_permlane16_swap_b32', v(RD + 2), v(RD + 3))
        a.valu('v_add_f32', v(RD), v(RD), v(RD + 1)); a.valu('v_add_f32', v(RD + 2), v(RD + 2), v(RD + 3))
        a.label(f'{t}_w3')
        if self.k1 > 1: a.ins('s_cbranch_execz .+4') if 0 else None
        publish(); reset()
        if self.dY:
            a.ins(f's_cbranch_scc1 {t}_w3b')
            a.nop(self.dY)
            a.lines.append(f'{t}_w3b:')
        poll0()
        if self.one3:
            zero(0, 16); top(); a.ins('s_waitcnt vmcnt(0) lgkmcnt(0)'); a.fence(); a.ins(f's_branch {t}_chk0b')
        elif self.eo == 3:
            zero(0, 16); top(); a.ins('s_waitcnt vmcnt(3) lgkmcnt(0)'); a.fence(); a.ins(f's_branch {t}_chk0b')
        else: finish()
        a.label(f'{t}_w0')
        a.forget()
        zero(0, 16)
        a.nop(self.dZ // 3)
        if self.w0hook: self.w0hook(a)
        a.nop(self.dZ - self.dZ // 3)
        a.lines.append(f'{t}_w0p:')
        poll0()
        a.ins(f's_branch {t}_loop2')
        retry('F', P0); retry('G', P)
        guard()
        a.label(f'{t}_spin0')
        a.forget()
        poll0()
        a.salu('s_sub_u32', s(sSPIN), s(sSPIN), 1)
        a.salu('s_cmp_lt_i32', s(sSPIN), 0, nodst=True)
        if r1: a.ins(f's_waitcnt vmcnt({self.ks - 1})')
        a.ins(f's_cbranch_scc0 {t}_chk0')
        a.ins('s_waitcnt vmcnt(0)')
        for r in range(4): a.valu('v_min_u32', v(R0 + r), -2, v(R0 + r))
        a.ins(f's_branch {t}_chk0')
        a.label(f'{t}_spin1')
        a.forget()
        if self.p1 == 4: run([dma1(0), dma1(1), m0d])
        else: poll1()
        a.salu('s_sub_u32', s(sSPIN), s(sSPIN), 1)
        a.salu('s_cmp_lt_i32', s(sSPIN), 0, nodst=True)
        a.ins(f's_waitcnt vmcnt({2 if r1 else 0})')
        if self.p1 == 4: run([rd1a, rd1b, ins('s_waitcnt lgkmcnt(0)')] + c1)
        else: run(c1 + [w1a, w1b, ins('s_waitcnt lgkmcnt(0)')])
        a.ins(f's_cbranch_scc1 {t}_go1')
        a.ins(f's_cbranch_vccnz {t}_spin1')
        a.ins(f's_branch {t}_go1')
        a.label(f'{t}_last')
        a.forget(); a.nop(2)
        if self.rt0:
            a.salu('s_cmp_ge_u32', s(sSTEP), 2, nodst=True)
            a.ins(f's_cbranch_scc1 {t}_last0')
            a.salu('s_and_b32', s(sT0), s(sH), 3); a.salu('s_lshl_b32', s(sT0), s(sT0), 14); a.salu('s_add_u32', s(sT0), s(sT0), self.wsmem)
            a.salu('s_lshr_b32', s(sT2), s(sH), 2); a.salu('s_lshl_b32', s(sT2), s(sT2), 3); a.salu('s_lshl_b64', 'exec', '0x55', s(sT2))
            a.ins(f'buffer_load_dword v{PFA}, s[{SRD}:{SRD+3}], s{sT0} offen sc1 lds')
            a.salu('s_mov_b64', 'exec', -1)
            a.salu('s_cmp_eq_u32', 0, 1, nodst=True)
            a.ins(f's_branch {t}_back')
            a.label(f'{t}_last0')
        if self.spec:
            a.salu('s_cmp_lg_u32', s(sSTEP), self.spec[0], nodst=True)
            a.ins(f's_cbranch_scc1 {t}_last1')
            self.spec[1](a)
            a.salu('s_mov_b32', 'm0', L_DUMP)
            a.salu('s_cmp_eq_u32', 0, 1, nodst=True)
            a.ins(f's_branch {t}_back')
            a.label(f'{t}_last1')
        a.salu('s_cmp_eq_u32', s(sSTEP), self.nsteps - 1, nodst=True)
        a.ins(f's_cbranch_scc1 {t}_last2')
        pubk(AQ0)
        a.salu('s_add_u32', s(sKM), s(sKM), 32 * 4096)
        a.salu('s_mov_b32', s(sNC1), '0xbf800000')
        a.salu('s_cmp_eq_u32', 0, 0, nodst=True)
        a.ins(f's_branch {t}_back')
        a.label(f'{t}_last2')
        M.update({8: R0, 1: R6, VL: R7})
        a.ins('s_waitcnt lgkmcnt(0)')
        run([lambda: pubk(AQ0), sal('s_add_u32', s(sT0), s(sNONCE), self.nsteps), val('v_mov_b32', v(R4), s(sT0)), ('v1', 1) if self.bf else None] + [(o, sl) for sl in (VL,) for o in ('v0', 'v1')]
            + [cvt(AV0, AV0), cvt(AV0 + 1, AV0 + 2), cvt(AV0 + 2, AV1), cvt(AV0 + 3, AV1 + 2), lambda: pubv(AV0)])
        flag(R4)
```

```python
import sys
sys.path.insert(0, 'gen2')
from asmfw import Asm
import chain2 as C, qkv2 as Q, attn2 as A, ssm as S
from chain2 import s, v
from build_ct import kd
NAME = 'concat_heads__memory_aug_recurrent_mem_tr__ssm_conv_s4d__prompt'
def start(a, name):
    a.raw(f'.text\n.globl {name}\n.p2align 8\n.type {name},@function\n{name}:')
def ws_srd(a, p):
    a.salu('s_mov_b32', 's4', s(p)); a.salu('s_mov_b32', 's5', s(p + 1))
    a.salu('s_mov_b32', 's6', C.WS_SIZE); a.salu('s_mov_b32', 's7', '0x20000')

sNONCE = C.sNONCE
DBG = 96
SY_ATT = C.WS_SYNC + 65536
D_NONCE, D_HELP, D_CH, D_ARR, D_SSM, D_T2, D_ATT, D_WF, D_OP = 64, 4, 128, 132, 8, 12, 16, 20, 136
D_XF2 = 24
D_MODE, D_CH2, D_ARR2, D_GO2 = 140, 208, 212, 216
XCC = [0]
NWARM = [5]
XD = [0]
OPS = [4]
DV = [70]
HDELAY = [0]
TMO = [1 << 17]
KVR = 2
CPS = [0]
D_POOL = 32
D_P2 = 160
D_QP = 68
NCH = [32]
FX = [0]
BOFF = [48]
ATS = [3]
MSL = [4]

DIAG = [0]
IFL = ['']
def diag(a, idx, val=None):
    if not DIAG[0]: return
    a.fence()
    a.ins('s_memrealtime s[90:91]'); a.ins('s_waitcnt lgkmcnt(0)')
    if val is not None: a.salu('s_mov_b32', 's90', val)
    a.salu('s_mov_b64', 's[100:101]', 'exec'); a.salu('s_mov_b64', 'exec', 1)
    a.valu('v_mov_b32', v(DV[0]), 's90')
    a.salu('s_lshl_b32', 's91', 's2', 8); a.salu('s_add_u32', 's91', 's91', 203 << 20)
    a.vmem('buffer_store_dword', v(DV[0]), 'off', 's[4:7]', 's91', mods=f'offset:{4 * idx}', load=False)
    a.salu('s_mov_b64', 'exec', 's[100:101]')
    a.nop(2)

LD = [0]
def ldiag(a, word, vreg, op='buffer_atomic_umax'):
    if not LD[0]: return
    a.fence()
    a.ins('s_memrealtime s[90:91]'); a.ins('s_waitcnt lgkmcnt(0)')
    a.salu('s_lshl_b32', 's91', 's2', 8); a.salu('s_add_u32', 's91', 's91', 203 << 20)
    a.valu('v_mov_b32', v(vreg), 's90')
    a.valu('v_cmp_eq_u32', 'vcc', 0, 'v0' if vreg > 200 else v(C.LH))
    a.salu('s_mov_b64', 'exec', 'vcc')
    a.vmem('buffer_store_dword', v(vreg), 'off', 's[4:7]', 's91', mods=f'offset:{4 * word}', load=False)
    a.salu('s_mov_b64', 'exec', -1)
    a.nop(2)

def scan(a, base, p2):
    _tk[0] += 1
    a.valu('v_and_b32', 'v1', 63, 'v0'); a.valu('v_min_u32', 'v1', 6, 'v1'); a.valu('v_lshlrev_b32', 'v2', 2, 'v1')
    a.salu('s_cmp_lg_u32', 's32', 0, nodst=True)
    a.valu('v_mov_b32', 'v251', 163832)
    a.ins(f's_cbranch_scc1 sw{_tk[0]}')
    a.vmem('buffer_load_dword', 'v3', 'v2', s(DBG, 4), 0, mods=f'offen offset:{base} sc1')
    a.valu('v_mov_b32', 'v4', (32, 24, 19)[p2])
    if p2 == 2: a.valu('v_cmp_eq_u32', 'vcc', 6, 'v1'); a.valu('v_cndmask_b32', 'v4', 'v4', 14, 'vcc', mods='')
    if p2 == 1: a.valu('v_cmp_gt_u32', 'vcc', 4, 'v1'); a.valu('v_cndmask_b32', 'v4', 'v4', 22, 'vcc', mods='')
    a.wait(vm='all')
    a.valu('v_cmp_lt_u32', 'vcc', 'v3', 'v4')
    a.salu('s_ff1_i32_b64', 's40', 'vcc')
    a.valu('v_mov_b32', 'v250', 's40')
    a.ds('ds_write_b32', 'v251', 'v250')
    a.wait(lds='all')
    a.label(f'sw{_tk[0]}')
    a.ins('s_barrier')
    a.ds('ds_read_b32', 'v252', 'v251')
    a.wait(lds='all')
    a.valu('v_readfirstlane_b32', 's33', 'v252')
    a.ins('s_barrier')
    a.nop(2)

def dsel(a, idx):
    if not DIAG[0]: return
    L = f'ds{len(a.lines)}'
    a.salu('s_cmp_ge_u32', 's36', 192, nodst=True)
    a.ins(f's_cbranch_scc1 {L}')
    diag(a, idx)
    a.ins('s_memtime s[88:89]'); a.ins('s_waitcnt lgkmcnt(0)'); diag(a, idx + 40, 's88')
    a.ins(f's_branch {L}x')
    a.label(L)
    diag(a, idx + 5)
    a.label(L + 'x')

def trace(a, base, sidx, k):
    if not DIAG[0]: return
    a.fence()
    a.ins('s_memrealtime s[90:91]'); a.ins('s_waitcnt lgkmcnt(0)')
    a.salu('s_lshl_b32', 's92', s(sidx), 4); a.salu('s_add_u32', 's92', 's92', (201 << 20) + base + 4 * k)
    a.valu('v_mov_b32', 'v249', 's90')
    a.salu('s_mov_b64', 'exec', 1)
    a.vmem('buffer_store_dword', 'v249', 'off', 's[4:7]', 's92', load=False)
    a.salu('s_mov_b64', 'exec', -1)
    a.nop(2)

_tk = [0]
def get_nonce(a, vd):
    _tk[0] += 1
    L = f'gn{_tk[0]}'
    a.fence()
    a.salu('s_mov_b32', 's88', 1 << 22)
    a.label(L)
    a.salu('s_cmp_lg_u32', s(sNONCE), 0, nodst=True)
    a.ins(f's_cbranch_scc1 {L}x')
    a.vmem('buffer_load_dword', v(vd), 'off', s(DBG, 4), 0, mods=f'offset:{D_NONCE} sc1')
    a.salu('s_sub_u32', 's88', 's88', 1)
    a.ins(f's_cbranch_scc1 {L}x')
    a.ins('s_waitcnt vmcnt(0)')
    a.valu('v_readfirstlane_b32', s(sNONCE), v(vd))
    a.nop(2)
    a.ins(f's_branch {L}')
    a.label(f'{L}x')

def ticket(a, dst, off, vb=250, mid=None, nyoung=0):
    _tk[0] += 1
    L = f'tk{_tk[0]}'
    a.fence()
    a.salu('s_mov_b32', 's37', off)
    a.valu('v_mov_b32', v(vb), 1)
    a.valu('v_mov_b32', v(vb + 1), 163832)
    a.valu('v_cmp_eq_u32', 'vcc', 0, 'v0')
    a.salu('s_and_saveexec_b64', 's[38:39]', 'vcc')
    a.ins(f's_cbranch_execz {L}' + ('m' if mid else ''))
    a.vmem('buffer_atomic_add', v(vb), 'off', s(DBG, 4), 's37', mods='sc0')
    if mid:
        a.label(L + 'm')
        a.salu('s_mov_b64', 's[38:39]', 'exec')
        a.salu('s_mov_b64', 'exec', -1)
        mid()
        a.salu('s_mov_b64', 'exec', 's[38:39]')
        a.ins(f's_cbranch_execz {L}')
    a.ins(f's_waitcnt vmcnt({nyoung})'); a.done['vm'] = a.vm_seq
    a.ds('ds_write_b32', v(vb + 1), v(vb))
    a.wait(lds='all')
    a.label(L)
    a.salu('s_mov_b64', 'exec', -1)
    a.ins('s_barrier')
    a.ds('ds_read_b32', v(vb + 2), v(vb + 1))
    a.wait(lds='all')
    a.valu('v_readfirstlane_b32', s(dst), v(vb + 2))
    a.ins('s_barrier')
    a.nop(4)

def flag_store(a, soff):
    _tk[0] += 1
    a.ins('s_waitcnt vmcnt(0)')
    a.ins('s_barrier')
    a.valu('v_mov_b32', 'v250', s(sNONCE))
    a.valu('v_cmp_eq_u32', 'vcc', 0, 'v0')
    a.salu('s_and_saveexec_b64', 's[38:39]', 'vcc')
    a.ins(f's_cbranch_execz fs{_tk[0]}')
    a.vmem('buffer_store_dword', 'v250', 'off', 's[4:7]', soff, mods='sc1', load=False)
    a.label(f'fs{_tk[0]}')
    a.salu('s_mov_b64', 'exec', -1)

def flags_wait(a, soff, lo, hi, va, vd, sleep=2):
    _tk[0] += 1
    L = f'fw{_tk[0]}'
    a.fence()
    a.valu('v_mbcnt_lo_u32_b32', v(va), -1, 0)
    a.valu('v_mbcnt_hi_u32_b32', v(va), -1, v(va))
    a.valu('v_min_u32', v(va), hi - lo - 1, v(va))
    a.valu('v_lshlrev_b32', v(va), 2, v(va))
    a.salu('s_mov_b32', 's88', 1 << 22)
    a.label(L)
    a.vmem('buffer_load_dword', v(vd), v(va), 's[4:7]', soff, mods=f'offen offset:{4 * lo} sc1')
    a.salu('s_sub_u32', 's88', 's88', 1)
    a.ins(f's_cbranch_scc1 {L}x')
    a.ins('s_waitcnt vmcnt(0)')
    a.valu('v_cmp_ne_u32', 'vcc', s(sNONCE), v(vd))
    a.ins(f's_cbranch_vccz {L}x')
    a.ins(f's_sleep {sleep}')
    a.salu('s_cmp_gt_u32', 's88', (1 << 22) - BOFF[0], nodst=True)
    a.ins(f's_cbranch_scc1 {L}')
    a.ins('s_sleep 40')
    a.ins(f's_branch {L}')
    a.label(f'{L}x')

def coarse_wait(a, sseg, vd, shp):
    _tk[0] += 1
    L = f'cw{_tk[0]}'
    a.fence()
    a.salu('s_mov_b32', 's88', 1 << 16)
    a.label(L)
    a.vmem('buffer_load_dword', v(vd), 'off', 's[4:7]', s(shp), mods='offset:128 sc1')
    a.ins('s_waitcnt vmcnt(0)')
    a.valu('v_readfirstlane_b32', 's42', v(vd))
    a.salu('s_sub_u32', 's42', 's42', s(sNONCE))
    a.salu('s_cmp_gt_u32', 's42', 64, nodst=True)
    a.salu('s_cselect_b32', 's42', 0, 's42')
    a.salu('s_add_u32', 's42', 's42', 2)
    a.salu('s_cmp_ge_u32', 's42', s(sseg), nodst=True)
    a.ins(f's_cbranch_scc1 {L}x')
    a.salu('s_sub_u32', 's88', 's88', 1)
    a.ins(f's_cbranch_scc1 {L}x')
    a.salu('s_sub_u32', 's42', s(sseg), 's42')
    a.salu('s_min_u32', 's42', 's42', 6)
    a.label(f'{L}s')
    a.ins('s_sleep 24')
    a.salu('s_sub_u32', 's42', 's42', 1)
    a.salu('s_cmp_lg_u32', 's42', 0, nodst=True)
    a.ins(f's_cbranch_scc1 {L}s')
    a.ins(f's_branch {L}')
    a.label(f'{L}x')

def prog_wait(a, lab, va, vd, vneed, sbase, sleep, scnt='s40'):
    a.salu('s_mov_b32', scnt, 1 << 22)
    a.label(lab)
    a.vmem('buffer_load_dword', v(vd), v(va), 's[4:7]', sbase, mods='offen sc1')
    a.salu('s_sub_u32', scnt, scnt, 1)
    a.ins(f's_cbranch_scc1 {lab}_go')
    a.ins('s_waitcnt vmcnt(0)')
    a.valu('v_subrev_u32', v(vd), vneed, v(vd))
    a.valu('v_cmp_lt_u32', 'vcc', 64, v(vd))
    a.ins(f's_cbranch_vccz {lab}_go')
    a.ins(f's_sleep {sleep}')
    a.ins(f's_branch {lab}')
    a.label(f'{lab}_go')

def k_main(a, hd=0, hg=0, warm=0, msl=4, cp=1, wt=1, qw=9, qx=0, kvr=2, cop=0, nat=10, qp=0, wm=9, tlb=0, tsh=20, xs=0, ops=2, ats=1, leak=0, wl=9, hj=0, nw=1, asy=1, **kw):
    global KVR
    KVR = kvr
    n = NAME + '_kernel'
    DV[0] = 59
    start(a, n)
    if leak == 4: a.ins('s_memrealtime s[100:101]')
    a.salu('s_cmp_ge_u32', 's2', 256, nodst=True)
    a.ins('s_cbranch_scc1 L_exit')
    a.ins('s_load_dwordx4 s[84:87], s[0:1], 120')
    a.ins('s_load_dwordx16 s[48:63], s[0:1], 0')
    a.valu('v_lshrrev_b32', 'v1', 6, 'v0')
    a.valu('v_readfirstlane_b32', 's32', 'v1')
    a.ins('s_getreg_b32 s3, hwreg(HW_REG_XCC_ID)')
    a.salu('s_and_b32', 's3', 's3', 15)
    a.salu('s_cmp_lg_u32', 's32', 3, nodst=True)
    a.ins('s_cbranch_scc1 L_nowarm')
    a.ins('s_getpc_b64 s[44:45]')
    a.label('L_pcw')
    a.valu('v_and_b32', 'v1', 63, 'v0')
    a.valu('v_lshlrev_b32', 'v1', 7, 'v1')
    a.salu('s_cmp_lg_u32', 's3', XCC[0], nodst=True)
    a.salu('s_cselect_b32', 's33', 'L_helper-L_pcw', 0)
    a.valu('v_add_u32', 'v1', 's33', 'v1')
    for i in range(NWARM[0]):
        if i == 2: a.ins('s_cbranch_scc0 L_nowarm')
        a.valu('v_min_u32', 'v2', 'L_exit-L_pcw', 'v1')
        a.vmem('global_load_dword', v(240 + i), 'v2', 's[44:45]')
        a.valu('v_add_u32', 'v1', 8192, 'v1')
    a.label('L_nowarm')
    a.forget()
    a.ins('s_waitcnt lgkmcnt(0)')
    if leak == 5: a.ins('s_memrealtime s[100:101]')
    ws_srd(a, 86)
    a.salu('s_mov_b32', s(DBG), 's84'); a.salu('s_mov_b32', s(DBG + 1), 's85')
    a.salu('s_mov_b32', s(DBG + 2), 256); a.salu('s_mov_b32', s(DBG + 3), '0x20000')
    a.salu('s_mov_b32', s(sNONCE), 0)
    diag(a, 0)
    a.salu('s_cmp_lg_u32', 's3', XCC[0], nodst=True)
    a.ins('s_cbranch_scc1 L_helper')
    lanes = C.Chain(a, 'x', gs=kw.get('gs', 2))
    def mid():
        if tlb:
            a.salu('s_cmp_lg_u32', 's32', 0, nodst=True)
            a.ins('s_cbranch_scc1 L_notlb')
            a.valu('v_lshlrev_b32', 'v1', 21, 'v0'); a.valu('v_add_u32', 'v2', (2 << 20) - 128, 'v1')
            pages = [0, 32, 43, 44, 46, 47, 48, 60]
            m_ = sum(1 << p for p in pages)
            a.salu('s_mov_b32', 'exec_lo', m_ & 0xffffffff); a.salu('s_mov_b32', 'exec_hi', m_ >> 32)
            a.ins('buffer_load_dword v246, v2, s[4:7], 0 offen sc1')
            a.salu('s_mov_b64', 'exec', 7)
            a.salu('s_mov_b32', 's14', 576 * 8192); a.salu('s_mov_b32', 's15', '0x20000')
            if tlb > 1:
                for p in (58, 56, 54, 52):
                    a.salu('s_mov_b64', 's[12:13]', s(p, 2))
                    a.ins('buffer_load_dword v246, v1, s[12:15], 0 offen')
            a.salu('s_mov_b32', 's14', 9216); a.salu('s_mov_b64', 's[12:13]', 's[50:51]')
            a.ins('buffer_load_dword v246, v1, s[12:15], 0 offen')
            a.salu('s_mov_b64', 'exec', -1)
            a.label('L_notlb')
        lanes.load_lanes()
    ticket(a, C.sH, D_CH, mid=mid, nyoung=(0, 2, 6)[tlb])
    a.salu('s_cmp_ge_u32', s(C.sH), NCH[0], nodst=True)
    a.ins('s_cbranch_scc1 L_helper')
    a.label('L_chain')
    diag(a, 14)
    ldiag(a, 0, 250)
    if leak and leak < 4: a.ins('s_memrealtime s[100:101]'); a.ins('s_waitcnt lgkmcnt(0)')
    diag(a, 15, s(C.sH))
    if DIAG[0]:
        a.ins('s_getreg_b32 s89, hwreg(HW_REG_HW_ID)'); diag(a, 12, 's89')
    def kvaddr(a, va, sb, q=0):
        a.salu('s_lshr_b32', s(sb), s(C.sH), 1); a.salu('s_lshl_b32', s(sb), s(sb), 8); a.salu('s_add_u32', s(sb), s(sb), Q.SY_PRG + q)
        a.valu('v_bfe_u32', v(va), v(C.LH), 4, 6); a.valu('v_min_u32', v(va), 11, v(va)); a.valu('v_lshlrev_b32', v(va), 2, v(va))
    def kvwait(a, lab, need, va, vd):
        kvaddr(a, va, 92, 4096 if need == Q.DONE else 0)
        a.salu('s_add_u32', 's93', s(sNONCE), need)
        prog_wait(a, lab, va, vd, 's93', 's92', 2, scnt='s94')
    def hook(a):
        if not DIAG[0]: return
        a.salu('s_lshl_b32', 's88', s(C.sH), 2); a.salu('s_add_u32', 's88', 's88', s(C.sW))
        a.salu('s_cmp_lg_u32', 's88', 0, nodst=True)
        a.ins('s_cbranch_scc1 L_nohook')
        a.ins('s_memrealtime s[90:91]'); a.ins('s_memtime s[72:73]'); a.ins('s_waitcnt lgkmcnt(0)')
        a.valu('v_mov_b32', v(C.Rq[1]), 's90'); a.valu('v_mov_b32', v(C.Rq[1] + 1), 's72')
        a.salu('s_lshl_b32', 's88', s(C.sSTEP), 3); a.salu('s_add_u32', 's88', 's88', 200 << 20)
        a.vmem('buffer_store_dwordx2', v(C.Rq[1], 2), 'off', 's[4:7]', 's88', load=False)
        a.label('L_nohook')
        a.fence()
    def chain_body(tag, safe):
        for i in range(5): a.salu('s_mov_b64', s(C.sPTR + 2 * i, 2), s(C.sPTR + 2 * i + 2, 2))
        def cpywait(a, notyet):
            if notyet is None:
                L = f'{tag}_cpe{len(a.lines)}'
                a.salu('s_cmp_eq_u32', 's88', 0, nodst=True)
                a.ins(f's_cbranch_scc1 {L}')
                a.salu('s_lshl_b32', 's89', 's73', 7); a.salu('s_add_u32', 's89', 's89', C.SY_CPY)
                a.valu('v_min_u32', 'v33', 11, 'v57'); a.valu('v_lshlrev_b32', 'v33', 2, 'v33')
                a.ins(f'buffer_load_dword v34, off, s[{DBG}:{DBG+3}], 0 offset:{D_NONCE} sc1')
                a.ins('buffer_load_dword v35, v33, s[4:7], s89 offen sc1')
                a.lines.append(L + ':')
                CPS[0] = a.vm_seq
                return
            d0 = dict(a.done)
            a.wait(vm=CPS[0])
            a.done = d0
            a.valu('v_max_u32', 'v34', 1, 'v34')
            a.valu('v_cmp_eq_u32', 'vcc', 1, 'v34')
            a.ins(f's_cbranch_vccnz {notyet}')
            a.valu('v_cmp_ne_u32', 'vcc', 'v34', 'v35')
            a.ins(f's_cbranch_vccnz {notyet}')
        def w0hook(a):
            if not safe: hook(a)
            a.salu('s_cmp_lg_u32', s(C.sSTEP), 6 * KVR - 2, nodst=True)
            a.ins(f's_cbranch_scc1 {tag}_nokv')
            if asy:
                r = C.Rq[1]
                kvaddr(a, r, 92); a.valu('v_add_u32', v(r), C.L_NON + 16, v(r))
                a.ins('s_waitcnt vmcnt(0)')
                a.ds('ds_read_b32', v(r + 1), v(r))
                a.salu('s_add_u32', 's93', s(sNONCE), Q.DONE)
                a.wait(lds='all')
                a.valu('v_cmp_ne_u32', 'vcc', 's93', v(r + 1))
                a.ins(f's_cbranch_vccz {tag}_kv1_go')
            kvwait(a, f'{tag}_kv1', Q.DONE, C.Rq[1], C.Rq[1] + 1)
            ldiag(a, 5, C.Rq[1])
            a.ins(f's_branch {tag}_w0p')
            a.label(f'{tag}_nokv')
        def kvasync(a):
            kvaddr(a, C.Rq[6], 92, 4096)
            a.salu('s_mov_b32', 'm0', C.L_NON + 16)
            a.salu('s_mov_b64', 'exec', '0xfff')
            a.ins(f'buffer_load_dword v{C.Rq[6]}, s[4:7], s92 offen sc1 lds')
            a.salu('s_mov_b64', 'exec', -1)
        spec = (6 * KVR - 3, kvasync) if asy else None
        if safe: ch = C.Chain(a, tag, spec=spec, fl='sc1', lfl='sc1', xoff=C.XOFF, d0=200, d1=200, dB=100, dZ=400, ks=1, w0hook=w0hook, spinmax=1 << 20)
        else: ch = C.Chain(a, tag, spec=spec, cpy=cpywait if cp else None, ptrace=(lambda a, j: diag(a, 16 + j)), w0hook=w0hook, spinmax=1 << 20, **kw)
        if safe: ch.load_lanes()
        arr, mode = (D_ARR2, D_GO2) if safe else (D_ARR, D_MODE)
        def st1(a):
            a.valu('v_mov_b32', 'v46', 1)
            a.salu('s_mov_b64', 'exec', 1)
            a.vmem('buffer_atomic_add', 'v46', 'off', s(DBG, 4), 0, mods=f'offset:{arr} sc0')
            a.salu('s_mov_b64', 'exec', -1)
        def st2(a):
            a.valu('v_readfirstlane_b32', 's41', 'v46')
            a.valu('v_mov_b32', 'v46', 1); a.valu('v_mov_b32', 'v47', 0)
            a.salu('s_cmp_eq_u32', 's41', 127, nodst=True)
            a.salu('s_cselect_b64', 'exec', 1, 0)
            a.vmem('buffer_atomic_cmpswap', 'v[46:47]', 'off', s(DBG, 4), 0, mods=f'offset:{mode}', load=False)
            a.salu('s_mov_b64', 'exec', -1)
        def st3(a):
            a.vmem('buffer_load_dword', 'v24', 'off', s(DBG, 4), 0, mods=f'offset:{mode} sc1')
            a.vmem('buffer_load_dword', 'v25', 'off', s(DBG, 4), 0, mods=f'offset:{D_NONCE} sc1')
            kvaddr(a, 26, 84)
            a.vmem('buffer_load_dword', 'v27', 'v26', 's[4:7]', 's84', mods='offen sc1')
        def st4(a):
            a.valu('v_readfirstlane_b32', s(sNONCE), 'v25')
            a.valu('v_readfirstlane_b32', 's85', 'v24')
            a.salu('s_add_u32', 's86', s(sNONCE), KVR)
            a.valu('v_subrev_u32', 'v27', 's86', 'v27')
            a.valu('v_cmp_lt_u32', 's[86:87]', 64, 'v27')
            a.salu('s_cmp_eq_u32', s(sNONCE), 0, nodst=True)
            a.salu('s_cselect_b64', 's[86:87]', -1, 's[86:87]')
            a.salu('s_cmp_lg_u64', 's[86:87]', 0, nodst=True)
            a.ins(f's_cbranch_scc1 {tag}_nt')
            ch.touch_kv()
            a.lines.append(f'{tag}_nt:')
        def late(a):
            q0, d0 = a.vm_seq, dict(a.done)
            get_nonce(a, 27)
            a.vm_seq, a.done = q0, d0
        ch.prologue(st1, st2, st3, st4, late)
        diag(a, 2)
        if hd: ldiag(a, 4, 26)
        a.salu('s_cmp_eq_u32', 's85', 1, nodst=True)
        a.ins(f's_cbranch_scc1 {tag}_run')
        a.salu('s_mov_b32', 's40', (1 << 24) if safe else TMO[0])
        a.label(f'{tag}_startpoll')
        a.vmem('buffer_load_dword', 'v3', 'off', s(DBG, 4), 0, mods=f'offset:{mode} sc1')
        a.wait(vm='all')
        a.valu('v_readfirstlane_b32', 's85', 'v3')
        a.salu('s_cmp_eq_u32', 's85', 1, nodst=True)
        a.ins(f's_cbranch_scc1 {tag}_run')
        if not safe:
            a.salu('s_cmp_eq_u32', 's85', 2, nodst=True)
            a.ins(f's_cbranch_scc1 {tag}_leave')
        a.ins('s_sleep 1')
        a.salu('s_sub_u32', 's40', 's40', 1)
        a.ins(f's_cbranch_scc0 {tag}_startpoll')
        if safe: a.ins('s_endpgm')
        else:
            a.valu('v_mov_b32', 'v4', 2); a.valu('v_mov_b32', 'v5', 0)
            a.salu('s_mov_b64', 'exec', 1)
            a.vmem('buffer_atomic_cmpswap', 'v[4:5]', 'off', s(DBG, 4), 0, mods=f'offset:{D_MODE}', load=False)
            a.salu('s_mov_b64', 'exec', -1)
            a.salu('s_mov_b32', 's40', 1 << 20)
            a.ins(f's_branch {tag}_startpoll')
            a.label(f'{tag}_leave')
            a.valu('v_lshrrev_b32', 'v0', 4, v(C.LH))
            a.salu('s_mov_b32', 's32', s(C.sW))
            a.ins('s_load_dwordx16 s[48:63], s[0:1], 0')
            a.ins('s_waitcnt lgkmcnt(0)')
            a.ins('s_branch L_helper')
        a.label(f'{tag}_run')
        diag(a, 3)
        a.salu('s_cmp_eq_u64', 's[86:87]', 0, nodst=True)
        a.ins(f's_cbranch_scc1 {tag}_kvok')
        kvwait(a, f'{tag}_kv0', KVR, 2, 3)
        ch.touch_kv()
        a.ins('s_waitcnt vmcnt(0)')
        a.label(f'{tag}_kvok')
        ch.loop_init()
        diag(a, 4)
        if not hd: ldiag(a, 4, 24)
        if leak: a.ins('s_memrealtime s[90:91]'); a.ins('s_waitcnt lgkmcnt(0)'); a.salu('s_mov_b32', 's101', 's90')
        if not safe and DIAG[0]: print(ch.outs, [(j[1], j[3] // 1024) for j in ch.sched])
        ch.step()
        diag(a, 5)
        ldiag(a, 6, 24)
        if leak and not safe:
            a.ins('s_memrealtime s[90:91]'); a.ins('s_waitcnt lgkmcnt(0)')
            if leak in (1, 4, 5): a.salu('s_add_u32', 's92', 's100', 20000)
            elif leak == 2: a.salu('s_add_u32', 's92', 's90', 1000)
            elif leak == 3: a.salu('s_add_u32', 's92', 's101', 20000)
            a.label('L_leak')
            a.ins('s_memrealtime s[90:91]'); a.ins('s_waitcnt lgkmcnt(0)')
            a.salu('s_sub_u32', 's93', 's92', 's90'); a.salu('s_cmp_gt_i32', 's93', 0, nodst=True)
            a.ins('s_cbranch_scc1 L_leak')
        a.ins('s_endpgm')
        ch.load_sub()
    chain_body('cf', False)
    a.label('L_chain_safe')
    a.forget()
    chain_body('cs', True)
    def mode_check(lab):
        a.salu('s_mov_b32', 's40', 4 * TMO[0])
        a.label(f'{lab}_w')
        a.vmem('buffer_load_dword', 'v250', 'off', s(DBG, 4), 0, mods=f'offset:{D_MODE} sc1')
        a.wait(vm='all')
        a.valu('v_readfirstlane_b32', 's41', 'v250')
        a.salu('s_cmp_lg_u32', 's41', 0, nodst=True)
        a.ins(f's_cbranch_scc1 {lab}_known')
        a.salu('s_sub_u32', 's40', 's40', 1)
        a.ins(f's_cbranch_scc1 {lab}_force')
        a.ins('s_sleep 2')
        a.ins(f's_branch {lab}_w')
        a.label(f'{lab}_force')
        a.valu('v_mov_b32', 'v250', 2); a.valu('v_mov_b32', 'v251', 0)
        a.salu('s_mov_b64', 'exec', 1)
        a.vmem('buffer_atomic_cmpswap', 'v[250:251]', 'off', s(DBG, 4), 0, mods=f'offset:{D_MODE}', load=False)
        a.salu('s_mov_b64', 'exec', -1)
        a.ins('s_waitcnt vmcnt(0)')
        a.salu('s_mov_b32', 's40', 4 * TMO[0])
        a.ins(f's_branch {lab}_w')
        a.label(f'{lab}_known')
    a.forget()
    a.label('L_helper')
    DV[0] = 249
    a.forget()
    a.ins('s_load_dwordx16 s[64:79], s[0:1], 64')
    a.salu('s_sub_u32', 's33', 's3', XCC[0] + 1); a.salu('s_and_b32', 's33', 's33', 3 if FX[0] else 7)
    a.label('L_pool')
    a.salu('s_lshl_b32', 's35', 's33', 2); a.salu('s_add_u32', 's35', 's35', D_POOL)
    ticket(a, 34, 's35')
    a.salu('s_mov_b32', 's36', 's33')
    a.salu('s_or_b32', 's33', 's34', 's32')
    a.salu('s_cmp_lg_u32', 's33', 0, nodst=True)
    a.ins('s_cbranch_scc1 L_helper1')
    a.ins('s_memrealtime s[90:91]'); a.ins('s_waitcnt lgkmcnt(0)')
    a.salu('s_lshl_b32', 's90', 's90', 8); a.salu('s_or_b32', 's90', 's90', 1)
    a.valu('v_mov_b32', 'v250', 's90'); a.valu('v_mov_b32', 'v251', 0)
    a.salu('s_mov_b64', 'exec', 1)
    a.vmem('buffer_atomic_cmpswap', 'v[250:251]', 'off', s(DBG, 4), 0, mods=f'offset:{D_NONCE}', load=False)
    a.salu('s_mov_b64', 'exec', -1)
    a.label('L_helper1')
    diag(a, 9)
    a.salu('s_cmp_ge_u32', 's34', 32, nodst=True)
    a.ins('s_cbranch_scc1 L_qkv_next')
    a.salu('s_cmp_ge_u32', 's36', 7, nodst=True)
    a.ins('s_cbranch_scc1 L_qkv_next')
    a.salu('s_max_u32', 's37', 's36', 4); a.salu('s_sub_u32', 's37', 's37', 4); a.salu('s_mul_i32', 's37', 's37', 6)
    a.salu('s_lshl_b32', 's38', 's36', 1); a.salu('s_add_u32', 's38', 's38', 's37')
    a.salu('s_cmp_lt_u32', 's36', 4, nodst=True); a.salu('s_cselect_b32', 's39', 2, 8)
    a.salu('s_mul_i32', 's36', 's36', 30); a.salu('s_sub_u32', 's36', 's36', 's37')
    a.salu('s_cmp_lt_u32', 's34', 's39', nodst=True)
    a.ins('s_cbranch_scc1 L_copy')
    a.salu('s_add_u32', 's36', 's36', 's34'); a.salu('s_sub_u32', 's36', 's36', 's39')
    if warm:
        a.salu('s_cmp_lg_u32', s(sNONCE), 0, nodst=True)
        a.ins('s_cbranch_scc1 L_nowm')
        a.salu('s_mul_i32', 's37', 's36', 24576)
        a.salu('s_mov_b32', 's14', 576 * 8192); a.salu('s_mov_b32', 's15', '0x20000')
        a.salu('s_mov_b32', 'm0', 155648)
        if warm == 1:
            a.valu('v_lshlrev_b32', 'v1', 7, 'v0'); a.valu('v_min_u32', 'v1', 24576 - 128, 'v1')
        else: a.valu('v_lshlrev_b32', 'v1', 4, 'v0')
        for p in [x for i, x in enumerate((58, 56, 54, 52)) if wm >> i & 1]:
            a.salu('s_mov_b64', 's[12:13]', s(p, 2))
            if warm == 1:
                a.raw('    buffer_load_dword v1, s[12:15], s37 offen lds')
            else:
                for i in range(6):
                    a.salu('s_add_u32', 's38', 's37', min(i * 4096, 21504 - 4096))
                    a.raw('    buffer_load_dwordx4 v1, s[12:15], s38 offen lds')
        a.label('L_nowm')
    a.salu('s_mul_i32', 's37', 's36', 171); a.salu('s_lshr_b32', 's37', 's37', 10)
    a.salu('s_mul_i32', 's38', 's37', 6); a.salu('s_sub_u32', 's36', 's36', 's38')
    a.salu('s_lshl_b32', 's36', 's36', 5); a.salu('s_add_u32', 's36', 's36', 's37')
    if hd:
        a.salu('s_cmp_lt_u32', 's36', 32 * hg, nodst=True); a.ins('s_cbranch_scc1 L_job')
        for i in range(hd): a.ins('s_sleep 127')
    a.ins('s_branch L_job')
    a.label('L_copy')
    if 1:
        a.salu('s_add_u32', 's36', 's38', 's34')
        a.salu('s_mul_i32', 's36', 's36', 11); a.salu('s_and_b32', 's36', 's36', 31)
        a.salu('s_cmp_ge_u32', 's36', 27 if cp else 0, nodst=True)
        a.ins('s_cbranch_scc1 L_qkv_next')
        a.salu('s_mul_i32', 's33', 's36', 57); a.salu('s_lshr_b32', 's33', 's33', 9)
        a.salu('s_mul_i32', 's37', 's33', 9); a.salu('s_sub_u32', 's37', 's36', 's37')
        a.salu('s_lshl_b32', 's36', 's37', 2); a.salu('s_add_u32', 's36', 's36', 1); a.salu('s_min_u32', 's36', 's36', 31)
        a.salu('s_lshr_b32', 's39', 's52', 8); a.salu('s_sub_u32', 's36', 's36', 's39'); a.salu('s_and_b32', 's36', 's36', 31)
        a.salu('s_lshl_b32', 's36', 's36', 8)
        a.salu('s_mov_b32', 's14', 576 * 8192); a.salu('s_mov_b32', 's15', '0x20000')
        a.valu('v_lshrrev_b32', 'v1', 4, 'v0'); a.valu('v_lshlrev_b32', 'v1', 13, 'v1'); a.valu('v_and_b32', 'v2', 15, 'v0'); a.valu('v_lshl_add_u32', 'v1', 'v2', 4, 'v1')
        a.valu('v_lshlrev_b32', 'v2', 4, 'v0')
        NR = 3 if kw.get('swn', 4) < 4 else 2
        a.salu('s_mul_i32', 's40', 's33', NR); a.salu('s_mul_i32', 's39', 's40', 192 * 256); a.salu('s_lshl_b32', 's41', 's37', 19); a.salu('s_add_u32', 's39', 's39', 's41')
        a.salu('s_add_u32', 's39', 's39', C.WS_CPY)
        for h_ in range(NR):
            a.salu('s_add_u32', 's41', 's40', h_)
            a.salu('s_cmp_lt_u32', 's41', 3, nodst=True)
            a.salu('s_cselect_b64', 's[12:13]', 's[52:53]', 's[54:55]')
            a.salu('s_cselect_b32', 's42', 0, 3)
            a.salu('s_cmp_ge_u32', 's41', 6, nodst=True); a.salu('s_cselect_b64', 's[12:13]', 's[56:57]', 's[12:13]'); a.salu('s_cselect_b32', 's42', 6, 's42')
            a.salu('s_sub_u32', 's41', 's41', 's42')
            a.salu('s_mul_i32', 's38', 's41', 192 * 8192); a.salu('s_add_u32', 's38', 's38', 's36')
            for i in range(12):
                a.vmem('buffer_load_dwordx4', v(8 + 48 * h_ + 4 * i, 4), 'v1', 's[12:15]', 's38', mods='offen')
                a.salu('s_add_u32', 's38', 's38', 16 * 8192)
        a.vmem('buffer_load_dword', 'v3', 'off', s(DBG, 4), 0, mods=f'offset:{D_NONCE} sc1')
        a.wait(vm='all')
        for i in range(12 * NR):
            a.vmem('buffer_store_dwordx4', v(8 + 4 * i, 4), 'v2', 's[4:7]', 's39', mods='offen sc1', load=False, data=v(8 + 4 * i, 4))
            a.salu('s_add_u32', 's39', 's39', 4096)
        a.valu('v_readfirstlane_b32', s(sNONCE), 'v3')
        get_nonce(a, 3)
        a.salu('s_lshl_b32', 's37', 's37', 7); a.salu('s_lshl_b32', 's36', 's33', 2); a.salu('s_add_u32', 's36', 's36', 's32')
        a.salu('s_lshl_b32', 's36', 's36', 2); a.salu('s_add_u32', 's37', 's37', 's36'); a.salu('s_add_u32', 's37', 's37', C.SY_CPY)
        a.valu('v_mov_b32', 'v3', s(sNONCE))
        a.ins('s_waitcnt vmcnt(0)')
        a.salu('s_mov_b64', 'exec', 1)
        a.vmem('buffer_store_dword', 'v3', 'off', 's[4:7]', 's37', mods='sc1', load=False)
        a.salu('s_mov_b64', 'exec', -1)
        diag(a, 44)
    a.label('L_qkv_next')
    if qp:
        a.salu('s_sub_u32', 's33', 's3', XCC[0] + 1); a.salu('s_and_b32', 's33', 's33', 3 if FX[0] else 7)
        a.salu('s_cmp_eq_u32', 's33', 7, nodst=True)
        a.ins('s_cbranch_scc1 L_qscan')
        a.label('L_qtake')
        a.salu('s_lshl_b32', 's35', 's33', 2); a.salu('s_add_u32', 's35', 's35', D_QP)
        ticket(a, 34, 's35')
        a.salu('s_mul_i32', 's36', 's33', 19); a.salu('s_add_u32', 's36', 's36', 's34')
        a.salu('s_cmp_ge_u32', 's34', 19, nodst=True); a.salu('s_cselect_b32', 's36', 128, 's36')
        a.salu('s_cmp_lt_u32', 's36', 128, nodst=True)
        a.ins('s_cbranch_scc1 L_qjob')
        a.label('L_qscan')
        scan(a, D_QP, 2)
        a.salu('s_cmp_lt_u32', 's33', 7, nodst=True)
        a.ins('s_cbranch_scc1 L_qtake')
        a.ins('s_branch L_ssm_next')
        a.label('L_qjob')
        a.salu('s_and_b32', 's37', 's36', 7); a.salu('s_lshl_b32', 's37', 's37', 4); a.salu('s_lshr_b32', 's36', 's36', 3)
        a.salu('s_add_u32', 's36', 's36', 's37'); a.salu('s_add_u32', 's36', 's36', 192)
    else:
        ticket(a, 36, D_HELP)
        a.salu('s_add_u32', 's36', 's36', 192)
        a.salu('s_cmp_ge_u32', 's36', 320, nodst=True)
        a.ins('s_cbranch_scc1 L_ssm_next')
    a.label('L_job')
    a.salu('s_and_b32', s(Q.sHh), 's36', 15); a.salu('s_lshl_b32', s(Q.sHh), s(Q.sHh), 1)
    a.salu('s_bfe_u32', s(Q.sM), 's36', '0x10004')
    a.salu('s_lshr_b32', s(Q.sSEG), 's36', 5)
    a.salu('s_mul_i32', 's33', s(Q.sM), 6); a.salu('s_add_u32', 's33', 's33', s(Q.sSEG))
    a.salu('s_add_u32', s(Q.sM), s(Q.sM), 1)
    a.salu('s_lshr_b32', 's37', 's36', 4); a.salu('s_sub_u32', 's38', 's37', 12)
    a.salu('s_cmp_ge_u32', 's36', 192, nodst=True)
    a.salu('s_cselect_b32', s(Q.sM), 0, s(Q.sM))
    a.salu('s_cselect_b32', s(Q.sSEG), 's38', s(Q.sSEG))
    a.salu('s_cselect_b32', 's33', 's37', 's33')
    a.salu('s_cselect_b32', s(Q.sSTR), 8, 6)
    def nonce_early(a):
        a.valu('v_mov_b32', 'v28', s(sNONCE))
        a.salu('s_cmp_lg_u32', s(sNONCE), 0, nodst=True)
        a.ins('s_cbranch_scc1 L_ne')
        a.ins(f'buffer_load_dword v28, off, s[{DBG}:{DBG+3}], 0 offset:{D_NONCE} sc1')
        if wl:
            a.salu('s_cmp_ge_u32', 's36', 192, nodst=True)
            a.ins('s_cbranch_scc1 L_ne')
            a.salu('s_mul_i32', 's37', 's36', 24576)
            a.salu('s_mov_b32', 's46', 576 * 8192); a.salu('s_mov_b32', 's47', '0x20000')
            a.valu('v_lshlrev_b32', 'v29', 7, 'v0'); a.valu('v_min_u32', 'v29', 24576 - 128, 'v29')
            for p in [x for i, x in enumerate((58, 56, 54, 52)) if wl >> i & 1]:
                a.salu('s_mov_b64', 's[44:45]', s(p, 2))
                a.ins('buffer_load_dword v30, v29, s[44:47], s37 offen')
        a.lines.append('L_ne:')
    Q.qkv_role(a, 'qk', 48, 52, sNONCE, 33, at=(nat, nonce_early), late=lambda a: (a.valu('v_readfirstlane_b32', s(sNONCE), 'v28'), get_nonce(a, 25), dsel(a, 8)), qw=qw, qx=qx, cop=cop)
    dsel(a, 6)
    a.salu('s_cmp_ge_u32', 's36', 64, nodst=True)
    a.ins('s_cbranch_scc1 L_qkv_next')
    a.salu('s_lshr_b32', 's33', 's36', 5)
    if xs & 8: a.ins('s_endpgm')
    Q.memkv_role(a, 'mk', sNONCE, 33, slp=msl)
    diag(a, 1)
    a.ins('s_endpgm')
    a.label('L_ssm_next')
    if xs & 1: a.ins('s_branch L_phase2')
    ticket(a, S.sD0, D_SSM)
    a.salu('s_cmp_ge_u32', s(S.sD0), 144, nodst=True)
    a.ins('s_cbranch_scc1 L_phase2')
    a.salu('s_lshl_b32', s(S.sD0), s(S.sD0), 2)
    a.forget()
    S.ssm_job(a, 'ss', 62, 76)
    diag(a, 7)
    a.ins('s_branch L_ssm_next')
    sWv, sCB = 32, 33
    a.label('L_phase2')
    a.forget()
    scan(a, D_POOL, False)
    a.salu('s_cmp_lt_u32', 's33', 7, nodst=True)
    a.ins('s_cbranch_scc1 L_pool')
    if wt > 1:
        a.salu('s_cmp_lg_u32', 's32', 0, nodst=True); a.ins('s_cbranch_scc1 L_nwb'); a.ins('buffer_wbl2 sc1'); a.ins('s_waitcnt vmcnt(0)'); a.label('L_nwb')
    get_nonce(a, 250)
    mode_check('mc2')
    a.salu('s_cmp_eq_u32', 's41', 1, nodst=True)
    a.ins('s_cbranch_scc1 L_phase2b')
    ticket(a, C.sH, D_CH2)
    a.salu('s_cmp_lt_u32', s(C.sH), 32, nodst=True)
    a.ins('s_cbranch_scc1 L_chain_safe')
    a.label('L_phase2b')
    if xs & 2: a.ins('s_branch L_done')
    a.salu('s_mov_b32', 's8', 's76'); a.salu('s_mov_b32', 's9', 's77')
    a.salu('s_mov_b32', 's10', 2048 * 2304); a.salu('s_mov_b32', 's11', '0x20000')
    a.salu('s_sub_u32', 's33', 's3', XCC[0] + 1); a.salu('s_and_b32', 's33', 's33', 3 if FX[0] else 7)
    a.salu('s_cmp_eq_u32', 's33', 7, nodst=True)
    a.ins('s_cbranch_scc1 L_p2scan')
    a.label('L_p2take')
    a.salu('s_lshl_b32', 's35', 's33', 2); a.salu('s_add_u32', 's35', 's35', D_P2)
    ticket(a, 34, 's35')
    a.salu('s_cmp_lt_u32', 's33', 4, nodst=True); a.salu('s_cselect_b32', 's36', 4, 6)
    a.salu('s_cmp_lt_u32', 's34', 's36', nodst=True)
    a.ins('s_cbranch_scc1 L_att0')
    a.salu('s_sub_u32', 's34', 's34', 's36')
    a.salu('s_cmp_lt_u32', 's34', 18, nodst=True)
    a.ins('s_cbranch_scc1 L_op_start')
    a.label('L_p2scan')
    scan(a, D_P2, True)
    a.salu('s_cmp_lt_u32', 's33', 7, nodst=True)
    a.ins('s_cbranch_scc1 L_p2take')
    a.ins('s_branch L_done')
    a.label('L_att0')
    a.salu('s_mul_i32', 's36', 's34', 7); a.salu('s_mul_i32', 's37', 's34', 3); a.salu('s_add_u32', 's37', 's37', 12)
    a.salu('s_cmp_lt_u32', 's34', 4, nodst=True); a.salu('s_cselect_b32', 's34', 's36', 's37')
    a.salu('s_add_u32', 's34', 's34', 's33')
    a.salu('s_cmp_ge_u32', 's34', 32, nodst=True)
    a.ins('s_cbranch_scc1 L_done')
    a.label('L_att_next')
    a.forget()
    a.salu('s_lshr_b32', s(A.sSEG), 's34', 3)
    a.salu('s_and_b32', s(A.sHh), 's34', 7)
    a.salu('s_lshl_b32', s(A.sHh), s(A.sHh), 2)
    a.salu('s_add_u32', s(A.sHh), s(A.sHh), s(sWv))
    a.salu('s_lshr_b32', 's36', s(A.sHh), 1); a.salu('s_lshl_b32', 's36', 's36', 8); a.salu('s_add_u32', 's36', 's36', Q.SY_PRG)
    a.salu('s_mul_i32', 's37', s(A.sSEG), 43); a.salu('s_lshr_b32', 's37', 's37', 8)
    a.salu('s_mul_i32', 's41', 's37', 6); a.salu('s_sub_u32', 's41', s(A.sSEG), 's41')
    a.valu('v_and_b32', 'v1', 63, 'v0')
    a.valu('v_mul_u32_u24', 'v2', 6, 'v1'); a.valu('v_add_u32', 'v2', 's41', 'v2')
    a.valu('v_mov_b32', 'v4', 's37')
    a.salu('s_and_b32', 's41', s(A.sSEG), 7); a.salu('s_add_u32', 's41', 's41', 12)
    a.salu('s_lshr_b32', 's37', s(A.sSEG), 3)
    a.valu('v_mov_b32', 'v5', 's41'); a.valu('v_mov_b32', 'v6', 's37')
    a.valu('v_cmp_lt_u32', 'vcc', 1, 'v1')
    a.valu('v_cndmask_b32', 'v2', 'v2', 'v5', 'vcc'); a.valu('v_cndmask_b32', 'v4', 'v4', 'v6', 'vcc')
    a.valu('v_lshlrev_b32', 'v2', 2, 'v2')
    a.valu('v_add3_u32', 'v4', 'v4', s(sNONCE), 1)
    prog_wait(a, 'L_aw1', 2, 3, 'v4', 's36', 4)
    def mid(a):
        a.fence()
        trace(a, 0, 34, 0)
        coarse_wait(a, A.sSEG, 199, 36)
        trace(a, 0, 34, 1)
        a.salu('s_and_b32', 's37', s(A.sSEG), 1); a.salu('s_lshl_b32', 's37', 's37', 2); a.salu('s_add_u32', 's37', 's37', 's36'); a.salu('s_add_u32', 's37', 's37', 128)
        a.salu('s_add_u32', 's41', s(A.sSEG), s(sNONCE)); a.salu('s_add_u32', 's41', 's41', 1)
        a.salu('s_lshl_b32', 's42', s(A.sHh), 7); a.salu('s_add_u32', 's42', 's42', C.SY_CHF)
        a.salu('s_cmp_ge_u32', s(A.sSEG), 62, nodst=True)
        a.salu('s_cselect_b32', 's37', 's42', 's37')
        a.salu('s_cselect_b32', 's42', 12, 8)
        a.valu('v_lshlrev_b32', 'v198', 2, 'v0'); a.valu('v_and_b32', 'v198', 's42', 'v198')
        prog_wait(a, 'L_aw2', 198, 199, 's41', 's37', ats)
        trace(a, 0, 34, 2)
    A.attn_job(a, 'at', ld_fl='sc1', st_fl='sc1', mid=mid)
    a.salu('s_lshr_b32', 's40', 's34', 1)
    a.salu('s_lshl_b32', 's40', 's40', 7)
    a.salu('s_and_b32', 's41', s(A.sHh), 7)
    a.salu('s_lshl_b32', 's41', 's41', 2)
    a.salu('s_add_u32', 's40', 's40', 's41')
    a.salu('s_add_u32', 's40', 's40', SY_ATT)
    a.valu('v_mov_b32', 'v250', s(sNONCE))
    a.salu('s_cmp_ge_u32', s(A.sSEG), 62 if nw else 99, nodst=True)
    a.ins('s_cbranch_scc1 L_afl')
    a.ins('s_waitcnt vmcnt(0)')
    a.label('L_afl')
    a.salu('s_mov_b64', 'exec', 1)
    a.vmem('buffer_store_dword', 'v250', 'off', 's[4:7]', 's40', mods='sc1', load=False)
    a.salu('s_mov_b64', 'exec', -1)
    trace(a, 0, 34, 3)
    a.salu('s_add_u32', 's34', 's34', 32)
    a.salu('s_cmp_lt_u32', 's34', 512, nodst=True)
    a.fence()
    a.ins('s_cbranch_scc1 L_att_next')
    a.ins('s_branch L_done')
    a.label('L_op_start')
    if xs & 4: a.ins('s_branch L_done')
    a.forget()
    a.salu('s_mov_b32', s(A.sSEG), 's33')
    a.salu('s_mov_b32', s(sCB), 's34')
    A.oproj_load(a, 58, sCB, sWv)
    a.salu('s_mov_b32', 's35', s(A.sSEG))
    a.label('L_op_seg')
    a.salu('s_sub_u32', 's40', 's35', 126); a.salu('s_lshr_b32', 's41', 's40', 1); a.salu('s_add_u32', 's41', 's41', 126)
    a.salu('s_and_b32', 's40', 's40', 1); a.salu('s_lshl_b32', 's40', 's40', 3); a.salu('s_lshl_b32', 's44', '0x00ff00ff', 's40')
    a.salu('s_cmp_ge_u32', 's35', 126 if hj else 999, nodst=True)
    a.salu('s_cselect_b32', s(A.sSEG), 's41', 's35'); a.salu('s_cselect_b32', 's44', 's44', -1); a.salu('s_mov_b32', 's45', 's44')
    a.salu('s_lshr_b32', 's43', s(A.sSEG), 1)
    a.salu('s_add_u32', 's43', 's43', 1)
    a.salu('s_min_u32', 's43', 's43', 63)
    a.salu('s_and_b32', 's36', s(sCB), 15); a.salu('s_lshl_b32', 's36', 's36', 8); a.salu('s_add_u32', 's36', 's36', Q.SY_PRG)
    a.salu('s_lshl_b32', 's94', s(sCB), 7); a.salu('s_add_u32', 's94', 's94', s(A.sSEG))
    trace(a, 65536, 94, 0)
    a.salu('s_cmp_ge_u32', s(A.sSEG), 120, nodst=True)
    a.ins('s_cbranch_scc1 L_nocw')
    coarse_wait(a, 43, 3, 36)
    a.label('L_nocw')
    trace(a, 65536, 94, 1)
    a.salu('s_lshr_b32', 's89', s(A.sSEG), 1)
    a.salu('s_lshl_b32', 's89', 's89', 2)
    a.salu('s_add_u32', 's89', 's89', s(sWv))
    a.salu('s_lshl_b32', 's89', 's89', 7)
    a.salu('s_add_u32', 's89', 's89', SY_ATT)
    flags_wait(a, 's89', 0, 8, 2, 3, sleep=ops)
    trace(a, 65536, 94, 2)
    A.oproj_seg(a, 'os', 8, sCB, sWv, A.sSEG, ofl='sc1' if wt else '', sMSK=44)
    trace(a, 65536, 94, 3)
    a.salu('s_add_u32', 's35', 's35', 7)
    a.salu('s_cmp_ge_u32', 's35', 130 if hj else 128, nodst=True)
    a.ins('s_cbranch_scc1 L_done')
    a.ins('s_barrier')
    a.ins('s_branch L_op_seg')
    a.label('L_done')
    diag(a, 10)
    ldiag(a, 7, 250)
    a.label('L_exit')
    a.ins('s_endpgm')
    a.raw(kd(n, 512, 256))

def build(**kw):
    hdr = open(f'/code/{NAME}.s.ref').read().split('; Override launch geometry')[0]
    a = Asm()
    a.raw(hdr.rstrip())
    a.raw('; @launch grid=(256,1,1) block=(256,1,1) lds=163840')
    a.raw('.amdgcn_target "amdgcn-amd-amdhsa--gfx950"')
    k_main(a, **kw)
    return a.text()

if __name__ == '__main__':
    kw = dict(d0=70, dB=18, ks=2, pA=14, d1=68, dX=40, dZ=164, pbr=0, p1=4)
    open('one.s', 'w').write(build(**kw))
    for spec in sys.argv[1:]:
        k2 = dict((x.split('=')[0], int(x.split('=')[1])) for x in spec.split(','))
        open('one_' + spec.replace('=', '').replace(',', '_') + '.s', 'w').write(build(**{**kw, **k2}))
    XCC[0] = 9; TMO[0] = 1 << 8; FX[0] = 1
    open('one_safe.s', 'w').write(build(**kw))
    XCC[0] = 0; TMO[0] = 1 << 8; NCH[0] = 31; FX[0] = 0
    open('one_safe2.s', 'w').write(build(**kw))
    TMO[0] = 1 << 17; NCH[0] = 32
    LD[0] = 1
    open('one_l.s', 'w').write(build(**kw))
    for spec in sys.argv[1:]:
        k2 = dict((x.split('=')[0], int(x.split('=')[1])) for x in spec.split(','))
        open('one_' + spec.replace('=', '').replace(',', '_') + '_l.s', 'w').write(build(**{**kw, **k2}))
    LD[0] = 0
    DIAG[0] = 1
    for spec in sys.argv[1:]:
        k2 = dict((x.split('=')[0], int(x.split('=')[1])) for x in spec.split(','))
        open('one_' + spec.replace('=', '').replace(',', '_') + '_d.s', 'w').write(build(**{**kw, **k2}))
    open('one_d.s', 'w').write(build(**kw))
    print('ok')
```

```python
from asmfw import Asm, R

MB = 1 << 20
WS_KV = 0
WS_Q = 32 * MB
WS_O = 48 * MB
WS_MEM = 64 * MB
WS_PART = 64 * MB + 65536
XOFF = 1 * MB
WS_KM = 68 * MB
WS_VM = 77 * MB
WS_M0 = 88 * MB
WS_MEMH = 86 * MB
WS_CPY = 92 * MB
WS_SYNC = 120 * MB
SY_CHF = WS_SYNC + 16384
SY_CPY = WS_SYNC + 24576
WS_SIZE = 256 * MB

K = 1024
L_MISC = 96 * K
L_MBUF = L_MISC
L_TB = L_MISC + 9216
L_DUMP = L_MISC + 9728
L_NON = L_MISC + 9984
L_SEL = L_MISC + 10240
L_MM = L_MISC + 11264
L_SC = L_MISC + 12288
L_OB = L_MBUF + 4096
B_LW0, B_LW1 = 56 * K, 96 * K

LDS_ADDR = {}
for _t in range(4):
    LDS_ADDR[('k', 0, _t)] = _t * 16 * K
    LDS_ADDR[('k', 1, _t)] = _t * 16 * K + 8 * K
LDS_ADDR[('q', 0, 0)] = 64 * K; LDS_ADDR[('q', 1, 0)] = 72 * K
LDS_ADDR[('k', 0, 8)] = 80 * K; LDS_ADDR[('k', 1, 8)] = 88 * K
LDS_ADDR[('o', 2, 2)] = 112 * K; LDS_ADDR[('o', 3, 2)] = 120 * K
LDS_ADDR[('o', 2, 3)] = 128 * K; LDS_ADDR[('o', 3, 3)] = 136 * K
LDS_ADDR[('o', 4, 0)] = 144 * K; LDS_ADDR[('o', 4, 1)] = 152 * K

AQ0, AK0, AQ1, AK1, AV0, AV1 = 0, 4, 8, 12, 16, 20
Rq = [24 + 4 * i for i in range(9)]
IDX, LH, LW0, LW1, LW2, L16, PST, PSX, OR0, MST, MMW, LW3 = range(60, 72)
ZZ, OA1, OA2, OA3, OW, MMR, PFA = 72, 74, 75, 76, 77, 78, 79
VW0 = 80

def all_frags():
    fr = [(m, t, sl) for m in 'qkv' for sl in range(9) for t in range(2)]
    fr += [('o', u, k) for u in range(4) for k in range(4)] + [('o', 4, 0), ('o', 4, 1)]
    return fr
REGF = {}
_res = [f for f in all_frags() if f not in LDS_ADDR]
assert len(_res) == 54
for _i, _f in enumerate(_res): REGF[_f] = ('a', _i * 8) if _i < 32 else ('v', VW0 + (_i - 32) * 8)
def freg(f): return R(REGF[f][1], 8, REGF[f][0])

SRD, SRDW = 4, 8
sH, sW = 12, 13
sMEM, sMEM4, sMEM8, sMST, sMRS = 14, 15, 16, 17, 18
sPL, sPS0, sPS1, sPSX = 19, 20, 21, 22
sKX, sPF, sKM, sVM, sFL = 23, 24, 25, 26, 27
sSTEP, sSPIN, sTAG, sMSU = 28, 29, 30, 31
sSTM, sHI8, sW0M, sLO8 = 32, 34, 36, 38
sT0, sT1, sT2, sT3 = 40, 41, 42, 43
sC1, sNC1, sK128 = 44, 46, 47
sPTR = 48
sONE, sHALF = 60, 62
sROLE, sFV = 64, 65
sAL = 47
sD1 = 58
sACC = 68
sNONCE = 95
sSUM = 96

SMF = 'v_smfmac_f32_16x16x64_bf16'
MF32 = 'v_mfma_f32_16x16x32_bf16'
MF16 = 'v_mfma_f32_16x16x16_bf16'
def s(i, n=1): return R(i, n, 's')
def v(i, n=1): return R(i, n, 'v')

def lds_base(addr):
    if addr + 4096 < 64 * K: return LH, addr
    if addr < L_MISC + 16 * K: return LW0, addr - B_LW0
    return LW1, addr - B_LW1

class Chain:
    def __init__(self, a, tag, fl='', lfl='nt', pfl='sc1', xoff=0, nsteps=64, timing=0, dA=0, dB=24, d0=0, d1=24, dX=0, nopub=0, nopf=0,
                 hook=None, nomax=0, gap=0, dual=0, tstep=40, spinmax=1 << 16, prof=None, pstride=8, pA=20, pF=30, rt=0, dW=0, ks=2, early=1, k1=1, pskip=0, dZ=60, dE=0, ins0=0, p1=1, epf=1, npr=10, pg=6, dP=10, k0=1, pG=30, eo=1, w0hook=None, pbr=1, ppos=1, ptrace=None, lcap=16, lrev=5, gs=2, lord=1, lasy=4, lt=1, lpri=5, gforce=0, cpy=None, swn=4, swe=5, pf128=0, pfe=0, xnop=0, c1n=2, bf=0, hb=0, ha=1, hx=0, lsd=3, lte=3, tx=0, lbo=0, p0d=0, dY=0, one3=0, spec=None, rt0=1, pl=0, kvnt=0):
        self.kvnt = kvnt
        if pl: lfl = 'sc1'
        self.rt0 = rt0
        self.spec = spec
        self.dY = dY; self.one3 = one3
        self.p0d = p0d
        self.lbo = lbo
        self.tx = tx
        self.lsd = lsd; self.lte = lte
        self.hx = hx
        self.hb = hb; self.ha = ha
        self.bf = bf
        self.c1n = c1n
        self.xnop = xnop
        self.pf128 = pf128; self.pfe = pfe
        self.swe = swe
        self.swn = swn
        self.cpy = cpy
        self.gforce = gforce
        self.lpri = lpri; self.tick = lambda: None
        self.lasy = lasy; self.lt = lt
        self.lord = lord
        self.gs = gs
        self.lcap = lcap; self.lrev = lrev
        self.ptrace = ptrace
        self.pbr = pbr; self.ppos = ppos
        self.w0hook = w0hook
        self.eo = eo
        self.k0 = k0; self.pG = pG
        self.npr = npr; self.pg = pg; self.dP = dP
        self.p1 = p1; self.epf = epf
        self.ins0 = ins0
        self.dZ = dZ; self.dE = dE
        self.pskip = pskip
        self.k1 = k1
        self.ks = ks; self.early = early
        self.dW = dW
        self.clk = 's_memrealtime' if rt else 's_memtime'
        self.pA = pA; self.pF = pF
        self.prof = prof; self.pstride = pstride
        self.a = a; self.tag = tag; self.fl = fl; self.lfl = lfl; self.pfl = pfl
        self.wsmem = WS_MEM + xoff; self.wspart = WS_PART + xoff; self.nsteps = nsteps; self.timing = timing
        self.dA = dA; self.dB = dB; self.d0 = d0; self.d1 = d1; self.dX = dX; self.nopub = nopub; self.nopf = nopf
        self.hook = hook; self.nomax = nomax; self.gap = gap; self.dual = dual; self.tstep = tstep; self.spinmax = spinmax

    def stamp(self, i):
        if self.prof is not None:
            if i == self.prof and not getattr(self.a, '_prof', None): self.a.start_prof(sACC, self.pstride, 12, self.pskip)
        elif self.timing == 1 or (self.timing == 2 and i == 0): self.a.ins(f'{self.clk} s[{sACC+2*i}:{sACC+2*i+1}]')

    def addresses(self):
        a = self.a
        T0, T1, C, G = 0 + 24, 25, 26, 27
        a.valu('v_lshrrev_b32', v(T0), 6, 'v0')
        a.valu('v_lshlrev_b32', v(LH), 4, 'v0')
        a.valu('v_add_u32', v(LW0), B_LW0, v(LH))
        a.valu('v_xor_b32', v(LW1), 1024, v(LH)); a.valu('v_add_u32', v(LW1), B_LW1, v(LW1))
        a.valu('v_xor_b32', v(LW2), 2048, v(LH)); a.valu('v_add_u32', v(LW2), B_LW1, v(LW2))
        a.valu('v_and_b32', v(L16), 1023, v(LH)); a.valu('v_add_u32', v(L16), B_LW1, v(L16))
        a.valu('v_and_b32', v(C), 15, 'v0')
        a.valu('v_bfe_u32', v(G), 'v0', 4, 2)
        a.valu('v_mov_b32', v(IDX), '0x4444'); a.valu('v_mov_b32', v(T1), '0xeeee')
        a.valu('v_cmp_lt_u32', 'vcc', 7, v(C))
        a.valu('v_cndmask_b32', v(IDX), v(IDX), v(T1), 'vcc')
        self.tick()
        a.valu('v_and_b32', v(PSX), 12, v(C)); a.valu('v_lshlrev_b32', v(PSX), 3, v(PSX))
        a.valu('v_and_b32', v(T1), 1, v(C)); a.valu('v_lshl_add_u32', v(PSX), v(T1), 4, v(PSX))
        a.valu('v_bfe_u32', v(T1), v(C), 1, 1); a.valu('v_lshl_add_u32', v(PSX), v(T1), 3, v(PSX))
        a.valu('v_lshl_add_u32', v(PST), v(G), 14, v(PSX)); a.valu('v_lshl_add_u32', v(PST), v(T0), 17, v(PST))
        self.tick()
        a.valu('v_and_b32', v(PSX), 63, v(PSX))
        a.valu('v_lshrrev_b32', v(T1), 1, v(T0)); a.valu('v_lshl_add_u32', v(PSX), v(T1), 18, v(PSX))
        a.valu('v_lshl_add_u32', v(PSX), v(G), 16, v(PSX))
        a.valu('v_lshrrev_b32', v(T1), 3, v(C)); a.valu('v_lshl_add_u32', v(PSX), v(T1), 15, v(PSX))
        a.valu('v_and_b32', v(T1), 1, v(T0)); a.valu('v_lshl_add_u32', v(PSX), v(T1), 6, v(PSX))
        self.tick()
        a.valu('v_and_b32', v(T1), 31, 'v0')
        a.valu('v_lshlrev_b32', v(MMW), 4, v(T1))
        a.valu('v_lshlrev_b32', v(28), 3, v(T1)); a.valu('v_add_u32', v(28), L_DUMP, v(28))
        a.valu('v_lshrrev_b32', v(T1), 1, v(T0)); a.valu('v_lshl_add_u32', v(MMW), v(T1), 9, v(MMW))
        a.valu('v_and_b32', v(T1), 1, v(T0)); a.valu('v_lshl_add_u32', v(MMW), v(T1), 3, v(MMW))
        a.valu('v_add_u32', v(MMW), L_MM, v(MMW))
        a.valu('v_cmp_gt_u32', 'vcc', 2, v(G))
        a.valu('v_cndmask_b32', v(MMW), v(MMW), v(28), 'vcc')
        self.tick()
        a.valu('v_xor_b32', v(LW3), 2048, v(LW1))
        a.valu('v_lshrrev_b32', v(OR0), 4, 'v0'); a.valu('v_lshlrev_b32', v(OR0), 7, v(OR0))
        a.valu('v_and_b32', v(T1), 7, v(C)); a.valu('v_lshl_add_u32', v(OR0), v(T1), 4, v(OR0)); a.valu('v_add_u32', v(OR0), L_OB, v(OR0))
        for i, r in enumerate((OA1, OA2, OA3)): a.valu('v_xor_b32', v(r), 512 * (i + 1), v(OR0))
        a.valu('v_lshrrev_b32', v(T1), 3, v(C)); a.valu('v_lshl_add_u32', v(OW), v(T1), 3, v(OR0))
        a.valu('v_or_b32', v(MMR), 512, v(L16)); a.valu('v_lshlrev_b32', v(PFA), 2, v(LH))
        if self.pf128: a.valu('v_and_b32', v(PFA), '0xffffff80', v(PFA))
        a.valu('v_mov_b64', v(ZZ, 2), 0)
        a.valu('v_and_b32', v(T1), 1, v(G)); a.valu('v_lshlrev_b32', v(MST), 7, v(T1))
        a.valu('v_lshrrev_b32', v(T1), 1, v(G)); a.valu('v_lshl_add_u32', v(MST), v(T1), 3, v(MST))
        a.valu('v_and_b32', v(T1), 3, v(C)); a.valu('v_lshl_add_u32', v(MST), v(T1), 4, v(MST))
        a.valu('v_bfe_u32', v(T1), v(C), 2, 1); a.valu('v_lshl_add_u32', v(MST), v(T1), 2, v(MST))
        self.tick()
        a.salu('s_mov_b32', s(sSTM), '0x00ff00ff'); a.salu('s_mov_b32', s(sSTM + 1), '0x00ff00ff')
        a.salu('s_not_b64', s(sHI8, 2), s(sSTM, 2))
        a.salu('s_lshr_b32', s(sMSU), s(sH), 1); a.salu('s_lshl_b32', s(sMSU), s(sMSU), 8)
        a.salu('s_and_b32', s(sT0), s(sH), 1); a.salu('s_lshl_b32', s(sT0), s(sT0), 6); a.salu('s_add_u32', s(sMSU), s(sMSU), s(sT0))
        a.salu('s_and_b32', s(sT0), s(sW), 1); a.salu('s_lshl_b32', s(sT0), s(sT0), 12)
        a.salu('s_add_u32', s(sMSU), s(sMSU), s(sT0))
        a.salu('s_lshl_b32', s(sPL), s(sH), 14); a.salu('s_add_u32', s(sPL), s(sPL), self.wspart - B_LW1)
        a.salu('s_add_u32', s(sT1), s(sPL), 8192)
        a.salu('s_add_u32', s(sPL), s(sPL), s(sT0))
        a.salu('s_and_b32', s(sT0), s(sH), 1); a.salu('s_lshl_b32', s(sT0), s(sT0), 2); a.salu('s_or_b32', s(sT0), s(sT0), s(sW))
        a.salu('s_cmp_eq_u32', s(sT0), 5, nodst=True)
        a.salu('s_cselect_b32', s(sROLE), 0, s(sW))
        a.salu('s_cmp_lg_u32', s(sW), 1, nodst=True)
        a.ins(f's_cbranch_scc1 {self.tag}_notx')
        a.salu('s_mov_b32', s(sSTM), '0xff'); a.salu('s_mov_b32', s(sSTM + 1), '0xff')
        a.salu('s_mov_b32', s(sPL), s(sT1))
        a.salu('s_lshr_b32', s(sMSU), s(sH), 3); a.salu('s_lshl_b32', s(sMSU), s(sMSU), 8)
        a.salu('s_and_b32', s(sT0), s(sH), 2); a.salu('s_lshl_b32', s(sT0), s(sT0), 6); a.salu('s_add_u32', s(sMSU), s(sMSU), s(sT0))
        a.salu('s_and_b32', s(sT0), s(sH), 4); a.salu('s_lshl_b32', s(sT0), s(sT0), 4); a.salu('s_add_u32', s(sMSU), s(sMSU), s(sT0))
        a.salu('s_add_u32', s(sMSU), s(sMSU), 8192)
        a.label(f'{self.tag}_notx')
        a.salu('s_cmp_lg_u32', s(sW), 0, nodst=True)
        a.ins(f's_cbranch_scc1 {self.tag}_notp')
        a.salu('s_min_u32', s(sT0), s(sH), 23); a.salu('s_mul_i32', s(sT0), s(sT0), 384); a.salu('s_add_u32', s(sT0), s(sT0), L_MBUF)
        a.valu('v_add_u32', v(MST), s(sT0), v(LH))
        a.valu('v_mov_b32', v(T1), L_NON)
        a.valu('v_cmp_lt_u32', 'vcc', 23, 'v0')
        a.valu('v_cndmask_b32', v(MST), v(MST), v(T1), 'vcc')
        a.label(f'{self.tag}_notp')
        a.fence()

    def init_exchange(self):
        a = self.a; srd = s(SRD, 4)
        self.tick()
        for i in range(4): a.valu('v_mov_b32', v(28 + i), 1)
        a.salu('s_lshl_b32', s(sT0), s(sH), 14); a.salu('s_add_u32', s(sT0), s(sT0), self.wspart)
        for rd in range(3):
            a.salu('s_add_u32', s(sT1), s(sT0), rd * 4096)
            a.vmem('buffer_store_dwordx4', v(28, 4), v(LH), srd, s(sT1), mods='offen ' + self.fl, load=False, data=v(28, 4))
        a.salu('s_cmp_eq_u32', s(sROLE), 0, nodst=True)
        a.salu('s_cselect_b64', 'exec', 0, s(sSTM, 2))
        a.valu('v_mov_b32', v(27), -1)
        for i in range(4):
            a.salu('s_add_u32', s(sT1), s(sMSU), self.wsmem + i * 16384)
            a.vmem('buffer_store_dword', v(27), v(MST), srd, s(sT1), mods='offen ' + self.fl, load=False)
        a.salu('s_mov_b64', 'exec', -1)
        self.tick()
        a.salu('s_mov_b64', s(68, 2), s(sPTR, 2))
        a.salu('s_mov_b32', s(70), 9216); a.salu('s_mov_b32', s(71), '0x20000')
        a.valu('v_and_b32', v(25), 7, 'v0'); a.valu('v_mul_u32_u24', v(25), 1152, v(25))
        a.valu('v_lshrrev_b32', v(26), 3, 'v0'); a.valu('v_lshl_add_u32', v(25), v(26), 4, v(25))
        a.vmem('buffer_load_dwordx4', v(36, 4), v(25), s(68, 4), 0, mods='offen')
        a.vmem('buffer_load_dwordx4', v(40, 4), v(25), s(68, 4), 0, mods='offen offset:512')
        a.valu('v_bfe_u32', v(25), 'v0', 2, 3); a.valu('v_mul_u32_u24', v(25), 1152, v(25))
        a.valu('v_lshrrev_b32', v(26), 5, 'v0'); a.valu('v_lshl_add_u32', v(25), v(26), 4, v(25))
        a.valu('v_and_b32', v(26), 3, 'v0'); a.valu('v_lshl_add_u32', v(25), v(26), 2, v(25))
        a.vmem('buffer_load_dword', v(44), v(25), s(68, 4), 0, mods='offen offset:1024')

    def init_late(self):
        a = self.a; srd = s(SRD, 4)
        for r in range(36, 45): a.valu('v_min_u32', v(r), -2, v(r))
        a.salu('s_lshl_b32', s(sMEM), s(sH), 16); a.salu('s_add_u32', s(sMEM), s(sMEM), WS_M0)
        a.salu('s_add_u32', s(sT1), s(sMEM), 4096); a.salu('s_add_u32', s(sT2), s(sMEM), 8192)
        a.valu('v_lshrrev_b32', v(45), 2, v(LH))
        a.vmem('buffer_store_dwordx4', v(36, 4), v(LH), srd, s(sMEM), mods='offen ' + self.fl, load=False, data=v(36, 4))
        a.vmem('buffer_store_dwordx4', v(40, 4), v(LH), srd, s(sT1), mods='offen ' + self.fl, load=False, data=v(40, 4))
        a.vmem('buffer_store_dword', v(44), v(45), srd, s(sT2), mods='offen ' + self.fl, load=False)

    def constants(self):
        a = self.a
        C, E, LO, HI = 28, 29, 31, 32
        a.valu('v_bfe_u32', v(C), v(LH), 4, 4)
        a.valu('v_bfe_u32', v(E), v(LH), 8, 1); a.valu('v_lshlrev_b32', v(E), 2, v(E)); a.valu('v_sub_u32', v(E), v(C), v(E))
        a.valu('v_mov_b32', v(LO), '0x3f80'); a.valu('v_mov_b32', v(HI), '0x3f800000')
        for m in range(4):
            self.tick()
            lo = 2 * m if m < 2 else 2 * m + 4
            a.valu('v_cmp_eq_u32', 'vcc', lo, v(E)); a.valu('v_cndmask_b32', v(16 + m), 0, v(LO), 'vcc')
            a.valu('v_cmp_eq_u32', 'vcc', lo + 1, v(E)); a.valu('v_cndmask_b32', v(16 + m), v(16 + m), v(HI), 'vcc')
            a.valu('v_cmp_eq_u32', 'vcc', 2 * m, v(C)); a.valu('v_cndmask_b32', v(20 + m), 0, v(LO), 'vcc')
            a.valu('v_cmp_eq_u32', 'vcc', 2 * m + 1, v(C)); a.valu('v_cndmask_b32', v(20 + m), v(20 + m), v(HI), 'vcc')

    def constants_put(self):
        a = self.a
        a.ds('ds_write_b128', v(MMR), v(16, 4), mods=f'offset:{L_TB - 512 - B_LW1}')
        a.ds('ds_write_b128', v(L16), v(20, 4), mods=f'offset:{L_SEL - B_LW1}')
        for m in range(4): a.valu('v_mov_b32', v(44 + m), s(sNONCE))
        a.valu('v_mov_b32', v(48), L_NON)
        a.ds('ds_write_b128', v(48), v(44, 4))

    def load_lanes(self):
        a = self.a
        GA, GO, GX, TA, TO, TX, T0, T1, T2 = 48, 49, 50, 51, 52, 53, 54, 55, 56
        L = 57
        a.valu('v_lshrrev_b32', v(T0), 6, 'v0')
        a.valu('v_readfirstlane_b32', s(sW), v(T0))
        a.valu('v_and_b32', v(L), 63, 'v0')
        def bit(dst, src, b, sh, acc):
            a.valu('v_bfe_u32', v(T0), v(src), b, 1)
            if acc: a.valu('v_lshl_add_u32', v(dst), v(T0), sh, v(dst))
            else: a.valu('v_lshlrev_b32', v(dst), sh, v(T0))
        bit(GA, L, 2, 13, 0); bit(GA, L, 3, 15, 1); bit(GA, L, 4, 14, 1); bit(GA, L, 5, 16, 1)
        a.valu('v_lshrrev_b32', v(T1), 4, v(L)); a.valu('v_and_b32', v(T1), 2, v(T1)); a.valu('v_xor_b32', v(T1), v(T1), v(L))
        a.valu('v_and_b32', v(T1), 3, v(T1)); a.valu('v_lshl_add_u32', v(GA), v(T1), 4, v(GA))
        bit(TA, L, 2, 6, 0); bit(TA, L, 3, 9, 1); bit(TA, L, 4, 7, 1); bit(TA, L, 5, 12, 1)
        bit(TA, L, 0, 3, 1); bit(TA, L, 1, 4, 1); bit(TA, L, 3, 5, 1)
        a.valu('v_lshrrev_b32', v(T1), 3, v(L)); a.valu('v_mul_u32_u24', v(GO), 1152, v(T1))
        a.valu('v_and_b32', v(T1), 7, v(L)); a.valu('v_lshl_add_u32', v(GO), v(T1), 4, v(GO))
        bit(TO, L, 4, 13, 0); bit(TO, L, 5, 9, 1); bit(TO, L, 2, 7, 1); bit(TO, L, 3, 5, 1)
        a.valu('v_and_b32', v(T1), 3, v(L)); a.valu('v_lshl_add_u32', v(TO), v(T1), 3, v(TO))
        a.valu('v_lshrrev_b32', v(T1), 2, v(L)); a.valu('v_mul_u32_u24', v(GX), 1152, v(T1))
        a.valu('v_and_b32', v(T1), 3, v(L)); a.valu('v_lshl_add_u32', v(GX), v(T1), 4, v(GX))
        bit(TX, L, 4, 12, 0); bit(TX, L, 5, 8, 1); bit(TX, L, 2, 6, 1); bit(TX, L, 3, 5, 1)
        a.valu('v_and_b32', v(T1), 3, v(L)); a.valu('v_lshl_add_u32', v(TX), v(T1), 3, v(TX))
        sWK, sX16 = 66, 93
        a.salu('s_lshl_b32', s(sWK), s(sW), 10)
        a.salu('s_and_b32', s(sX16), s(sW), self.gs - 1); a.salu('s_lshl_b32', s(sX16), s(sX16), 14)
        a.salu('s_and_b32', s(75), s(sW), 4 - self.gs); a.salu('s_lshl_b32', s(75), s(75), 19)
        for r in (TA, TO, TX): a.valu('v_add_u32', v(r), s(sWK), v(r))
        a.valu('v_mov_b32', v(58), v(GA))
        a.salu('s_mov_b32', s(SRDW + 2), 576 * 8192); a.salu('s_mov_b32', s(SRDW + 3), '0x20000')

    def load_sub(self):
        a = self.a; t = self.tag
        a.label(f'{t}_dma')
        a.salu('s_xor_b32', s(74), s(76), s(81))
        a.salu('s_add_u32', 'm0', s(74), s(80))
        a.salu('s_add_u32', s(76), s(76), 4096)
        a.raw(f'    buffer_load_dwordx4 v58, s[{SRDW}:{SRDW+3}], s78 offen lds')
        a.salu('s_add_u32', s(78), s(78), s(79))
        a.salu('s_cmp_lt_u32', s(76), s(77), nodst=True)
        a.ins(f's_cbranch_scc1 {t}_dma')
        a.ins('s_setpc_b64 s[82:83]')

    def load_weights(self):
        a = self.a; t = self.tag
        GA, GO, GX, TA, TO, TX, T0, T1, T2 = 48, 49, 50, 51, 52, 53, 54, 55, 56
        sWK, sCOL, sOB, sX16, sKS = 66, 67, 92, 93, 94
        a.salu('s_lshl_b32', s(sCOL), s(sH), 8); a.salu('s_lshl_b32', s(sT0), s(sW), 6); a.salu('s_add_u32', s(sCOL), s(sCOL), s(sT0))
        a.salu('s_mul_i32', s(sOB), s(sH), 128 * 1152)
        a.salu('s_lshr_b32', s(73), s(sPTR + 2), 8); a.salu('s_add_u32', s(73), s(73), s(sH)); a.salu('s_and_b32', s(73), s(73), 31)
        a.salu('s_bitcmp1_b32', '0xa2222222', s(73), nodst=True)
        a.salu('s_cselect_b32', s(88), 1 if self.cpy else 0, 0); a.salu('s_mov_b32', s(72), 0)
        a.salu('s_add_u32', s(73), s(73), 1); a.salu('s_lshr_b32', s(73), s(73), 2)
        def switch():
            L = f'{t}_ncp{len(a.lines)}'
            a.salu('s_cmp_eq_u32', s(88), 0, nodst=True)
            a.ins(f's_cbranch_scc1 {L}')
            self.cpy(a, L)
            a.salu('s_mov_b32', s(88), 0); a.salu('s_mov_b32', s(72), 5)
            a.salu('s_lshl_b32', s(74), s(73), 19); a.salu('s_add_u32', s(74), s(74), WS_CPY)
            a.salu('s_add_u32', s(sPTR + 2), s(SRD), s(74)); a.salu('s_addc_u32', s(sPTR + 3), s(SRD + 1), 0)
            for i in ((4, 6) if self.swn < 4 else (4,)): a.salu('s_add_u32', s(sPTR + i), s(sPTR + i - 2), 576 * 256); a.salu('s_addc_u32', s(sPTR + i + 1), s(sPTR + i - 1), 0)
            a.salu('s_lshl_b32', s(sCOL), s(sW), 6)
            a.valu('v_and_b32', v(T0), 63, v(GA)); a.valu('v_lshrrev_b32', v(GA), 13, v(GA)); a.valu('v_lshl_add_u32', v(GA), v(GA), 8, v(T0))
            a.lines.append(L + ':')
            cur['va'] = None; cur['st'] = None; cur['m'] = None; cur['sw'] = True
        pW = {'q': sPTR + 2, 'k': sPTR + 4, 'v': sPTR + 6, 'o': sPTR + 8}
        cur = {'m': None, 'va': GA, 'st': None, 'x': None, 'sw': False}
        def call(m, va, step, xm, buf, lo, hi):
            if cur['m'] != m: a.salu('s_mov_b64', s(SRDW, 2), s(pW[m], 2)); cur['m'] = m
            if cur['va'] != va: a.valu('v_mov_b32', v(58), v(va)); cur['va'] = va
            if cur['st'] != step:
                if va == GA and cur['sw']: a.salu('s_lshr_b32', s(79), step, s(72))
                else: a.salu('s_mov_b32', s(79), step)
                cur['st'] = step
            if cur['x'] != xm: a.salu('s_mov_b32', s(81), xm); cur['x'] = xm
            if lo == 0: a.salu('s_add_u32', s(80), s(sWK), buf); a.salu('s_mov_b32', s(76), 0)
            a.salu('s_mov_b32', s(77), hi * 4096)
            a.ins(f's_call_b64 s[82:83], {t}_dma')
            a.vm_seq += hi - lo
        def issue(job):
            kind, m, x, buf = job
            if kind == 'g':
                cur['ng'] = cur.get('ng', 0) + 1
                if self.cpy and self.swn < cur['ng'] <= self.swn + self.swe: switch()
                if self.cpy and self.swn <= cur['ng'] < self.swn + self.swe: self.cpy(a, None)
                a.salu('s_xor_b32', s(78), s(75), x * self.gs * 64 * 8192)
                if cur['sw']: a.salu('s_lshr_b32', s(78), s(78), s(72))
                a.salu('s_add_u32', s(78), s(78), s(sCOL))
                for p in range(0, 4 * self.gs, 2): call(m, GA, 16 * 8192, s(sX16), buf, p, p + 2); yield
            elif kind == 's':
                if cur['sw']: a.salu('s_lshr_b32', s(78), 512 * 8192, s(72)); a.salu('s_add_u32', s(78), s(78), s(sCOL))
                else: a.salu('s_add_u32', s(78), s(sCOL), 512 * 8192)
                for p in (0, 2): call(m, GA, 16 * 8192, 0, buf, p, p + 2); yield
            elif kind == 'o':
                a.salu('s_xor_b32', s(sKS), s(sW), x[1]); a.salu('s_mul_i32', s(sKS), s(sKS), 32 * 1152)
                a.salu('s_add_u32', s(sKS), s(sKS), s(sOB))
                a.salu('s_lshl_b32', s(74), s(sW), 7); a.salu('s_add_u32', s(sKS), s(sKS), s(74))
                a.salu('s_add_u32', s(78), s(sKS), x[0] * 512)
                for p in (0, 2): call(m, GO, 8 * 1152, 0, buf, p, p + 2); yield
            else:
                for kk in range(2):
                    a.salu('s_xor_b32', s(sKS), s(sW), 2 * kk); a.salu('s_mul_i32', s(sKS), s(sKS), 32 * 1152)
                    a.salu('s_add_u32', s(sKS), s(sKS), s(sOB))
                    a.salu('s_lshr_b32', s(74), s(sW), 1); a.salu('s_lshl_b32', s(74), s(74), 6)
                    a.salu('s_add_u32', s(sKS), s(sKS), s(74))
                    a.salu('s_add_u32', s(78), s(sKS), 1024)
                    call(m, GX, 16 * 1152, 0, buf, 2 * kk, 2 * kk + 2); yield
        def build(frs, base, offs, buf):
            a.valu('v_add_u32', v(T1), buf, v(base))
            if base == TA: a.valu('v_xor_b32', v(T2), 32, v(T1))
            tmp = {}
            for fi, f in enumerate(frs):
                k, b = ('v', 8 * fi) if f in LDS_ADDR else REGF[f]
                for jp in range(4):
                    alt, off = offs(fi, jp)
                    a.ds('ds_read_b64_tr_b16', R(b + 2 * jp, 2, k), v(T2 if alt else T1), mods=f'offset:{off}')
                self.tick()
            self.side()
            a.wait(lds='all')
            wr = False
            for fi, f in enumerate(frs):
                if f in LDS_ADDR:
                    rg, off = lds_base(LDS_ADDR[f])
                    if rg == LW1:
                        a.ins('s_barrier')
                    a.ds('ds_write_b128', v(rg), v(8 * fi, 4), mods=f'offset:{off}')
                    a.ds('ds_write_b128', v(rg), v(8 * fi + 4, 4), mods=f'offset:{off + 4096}')
                    wr = True
            if wr: a.wait(lds='all')
        oq = lambda fi, jp: (fi, (jp >> 1) * 8192 + (jp & 1) * 256)
        oo = lambda fi, jp: (0, (jp >> 1) * 4096 + (jp & 1) * 256 + fi * 64)
        ox = lambda fi, jp: (0, fi * 8192 + (jp >> 1) * 512 + (jp & 1) * 128)
        def consume(job):
            kind, m, x, buf = job
            if kind == 'g':
                for i in range(self.gs): build([(m, 0, x * self.gs + i), (m, 1, x * self.gs + i)], TA, oq, buf + i * 16384)
            elif kind == 's': build([(m, 0, 8), (m, 1, 8)], TA, oq, buf)
            elif kind == 'o': build([('o', 2 * x[0], x[1]), ('o', 2 * x[0] + 1, x[1])], TO, oo, buf)
            else: build([('o', 4, 0), ('o', 4, 1)], TX, ox, buf)
        jobs = [['o', 'o', x, None] for x in ((0, 0), (0, 1), (0, 2), (0, 3), (1, 0), (1, 1))] + [['s', 'v', 8, None]] + [['g', 'v', x, None] for x in range(4)] + [
                ['g', 'k', 2, None], ['g', 'k', 3, None], ['g', 'q', 2, None], ['g', 'q', 3, None], ['s', 'q', 8, None], ['g', 'q', 1, None],
                ['g', 'q', 0, 64 * K], ['g', 'k', 0, 0], ['g', 'k', 1, 32 * K], ['x', 'o', 0, 144 * K], ['o', 'o', (1, 3), 128 * K], ['o', 'o', (1, 2), 112 * K], ['s', 'k', 8, 80 * K]]
        size = lambda j: self.gs * 16 * K if j[0] == 'g' else 16 * K
        def finals(j):
            if j[:3] == ['g', 'q', 0]: return [(64 * K, 80 * K)]
            if j[3] is not None and j[4]: return [(j[3], j[3] + size(j))]
            return []
        for j in jobs: j.append(j[3] is not None)
        def place(n, done):
            busy = [(jobs[x][3], jobs[x][3] + size(jobs[x])) for x in range(done, n)] + [sp for x in range(n) for sp in finals(jobs[x])]
            if not jobs[n][4]: busy += finals(jobs[n])
            cands = [K * [112, 80, 16, 0, 144, 96, 32, 112, 64, 0, 32, 128, 64, 0, 32, 96, 112, 64, 0, 32, 144, 128, 112, 80][n]]
            for lo in cands:
                if all(b[1] <= lo or b[0] >= lo + size(jobs[n]) for b in busy): return lo
            return None
        tags = {}; S = dict(n=0, gen=None, left=0, j=0, out=0, bonus=0, bq=0)
        def tick(force=False):
            if S['gen'] is None:
                n = S['n']
                if n >= len(jobs): return False
                lo = place(n, S['j'])
                if lo is None: return False
                if S['out'] + 2 > min(24, self.lcap + S['bonus']) and not force: return False
                jobs[n][3] = lo; S['gen'] = issue(jobs[n][:4]); S['left'] = size(jobs[n]) // 8192
            elif S['out'] + 2 > min(24, self.lcap + S['bonus']) and not force: return False
            next(S['gen']); S['left'] -= 1; S['out'] += 2
            if S['left'] == 0: tags[S['n']] = a.vm_seq; S['n'] += 1; S['gen'] = None
            return True
        self.tick = tick
        pend = list(self.stages); mark = None
        chunks = []
        filler = []
        def chop(f, chunks=chunks):
            sub = Asm(); sub.auto = False; sub.lines = ['@'] * 0
            keep_a, keep_t = self.a, self.tick
            cuts = []
            def cutp(): sub.fence(); cuts.append((len(sub.lines), sub.vm_seq))
            self.a, self.tick = sub, cutp
            f(sub); cutp()
            self.a, self.tick = keep_a, keep_t
            l0 = q0 = 0
            for l1, q1 in cuts:
                if l1 > l0: chunks.append((sub.lines[l0:l1], q1 - q0))
                l0, q0 = l1, q1
        def side():
            if chunks:
                ls, nq = chunks.pop(0)
                a.fence(); a.lines += ls; a.pos += len(ls); a.vm_seq += nq
                nst = sum('buffer_store' in x for x in ls)
                if nst and self.lbo: S['bonus'] += nst + 1; S['bq'] = a.vm_seq
                if not chunks: S['mark'] = a.vm_seq
            elif filler:
                ls, nq = filler.pop(0)
                a.fence(); a.lines += ls; a.pos += len(ls)
        self.side = side
        chop(lambda a: (self.loop_scalars(), self.constants()), filler)
        for i in range(self.lpri): tick()
        for j in range(len(jobs)):
            S['j'] = j
            if j in tags and tags[j] > S['bq']: S['bonus'] = 0
            if pend and not chunks and (S.get('mark') is None or (j > 0 and tags[j - 1] > S['mark'])):
                chop(pend.pop(0))
                if j == 0:
                    while tick(): pass
                    for i in range(self.lsd): side()
            if len(jobs) - j in self.at:
                assert not pend and not chunks and not filler
                self.at[len(jobs) - j](a)
            while tick(): pass
            while j not in tags: assert tick(True)
            a.wait(vm=tags[j])
            self.outs = getattr(self, 'outs', []) + [S['out']]
            S['out'] -= size(jobs[j]) // 4096
            consume(jobs[j][:4])
            if self.ptrace: self.ptrace(a, j)
        self.tick = lambda: None
        assert not pend
        self.sched = [(j[:4]) for j in jobs]
        a.ins('s_barrier')

    def prologue(self, st1=None, st2=None, st3=None, st4=None, late=None):
        a = self.a
        def s0(a): self.addresses(); self.init_exchange()
        def s1(a):
            if st1: st1(a)
        def s4(a):
            self.init_late()
            if st4: st4(a)
            else: self.touch_kv()
        self.stages = [s0] + ([s1] if st1 else []) + [x for x in (st2,) if x]
        self.at = {self.lt: s4, self.lte: lambda a: self.touch_exchange()}
        if st3: self.at[self.lasy] = st3
        self.load_weights()
        if late: late(a)
        self.constants_put()
        a.wait(vm='all', lds='all')
        a.fence()

    def loop_scalars(self):
        a = self.a
        a.salu('s_mov_b32', s(sC1), '0x3e0293ee'); a.salu('s_mov_b32', s(sC1 + 1), s(sC1))
        a.salu('s_mov_b32', s(sNC1), '0x42000000' if not self.gforce else 0)
        a.salu('s_mov_b32', s(sONE), '0x3f803f80'); a.salu('s_mov_b32', s(sONE + 1), s(sONE))
        a.salu('s_mov_b32', s(sHALF), '0x3e803e80'); a.salu('s_mov_b32', s(sHALF + 1), s(sHALF))
        a.salu('s_mov_b32', s(sSTEP), 0)
        a.salu('s_lshl_b32', s(sD1), s(sW), 10); a.salu('s_add_u32', s(sD1), s(sD1), L_MBUF + 4096)
        a.salu('s_lshl_b32', s(sD1 + 1), s(sW), 8); a.salu('s_add_u32', s(sD1 + 1), s(sD1 + 1), L_MBUF + 8192)
        a.salu('s_lshl_b32', s(sPF), s(sH), 14); a.salu('s_add_u32', s(sPF), s(sPF), WS_KV)
        a.salu('s_add_u32', s(sAL), s(sPF), (self.nsteps - 1) * 32 * 16384)
        a.salu('s_mul_i32', s(sT0), s(sW), 3072); a.salu('s_add_u32', s(sKX), s(sPF), s(sT0))
        a.salu('s_lshl_b32', s(sPS0), s(sH), 7); a.salu('s_add_u32', s(sPS0), s(sPS0), self.wspart)
        a.salu('s_add_u32', s(sPS1), s(sPS0), 65536)
        a.salu('s_add_u32', s(sLO8), s(sPS0), 4096); a.salu('s_add_u32', s(sLO8 + 1), s(sPS1), 4096)
        a.salu('s_lshl_b32', s(sPSX), s(sH), 7); a.salu('s_add_u32', s(sPSX), s(sPSX), self.wspart + 8192)
        self.tick()
        a.salu('s_lshl_b32', s(sT0), s(sH), 12)
        a.salu('s_add_u32', s(sKM), s(sT0), WS_KM + (self.nsteps - 2) * 32 * 4096)
        a.salu('s_add_u32', s(sVM), s(sT0), WS_VM + (self.nsteps - 2) * 32 * 4096)
        a.salu('s_lshl_b32', s(sFV), s(sH), 9); a.salu('s_add_u32', s(sFV), s(sFV), WS_MEMH)
        a.salu('s_lshl_b32', s(sT0), s(sW), 5); a.salu('s_or_b32', s(sT0), s(sT0), s(sH))
        a.salu('s_cmp_lt_u32', s(sT0), 24, nodst=True)
        a.salu('s_cselect_b32', s(sW0M), '0x1ffffff', 0); a.salu('s_mov_b32', s(sW0M + 1), 0)
        a.salu('s_lshl_b32', s(sFL), s(sH), 7); a.salu('s_add_u32', s(sFL), s(sFL), SY_CHF)
        a.salu('s_lshl_b32', s(sT0), s(sW), 2); a.salu('s_add_u32', s(sFL), s(sFL), s(sT0))

    def touch_kv(self):
        a = self.a
        a.salu('s_add_u32', s(sT0), s(sPF), 32 * 16384)
        a.ins(f'buffer_load_dword v30, v{PFA}, s[{SRD}:{SRD+3}], s{sPF} offen sc1')
        a.ins(f'buffer_load_dword v30, v{PFA}, s[{SRD}:{SRD+3}], s{sT0} offen sc1')

    def touch_exchange(self):
        a = self.a
        a.valu('v_lshlrev_b32', v(45), 3, v(LH))
        a.salu('s_lshl_b32', s(sT0), s(sH), 14); a.salu('s_add_u32', s(sT0), s(sT0), self.wspart - self.wsmem)
        a.salu('s_lshl_b32', s(sT1), s(sH), 11); a.salu('s_sub_u32', s(sT1), s(sT1), 96 * 128)
        a.valu('v_add_u32', v(30), s(sT0), v(45)); a.valu('v_add_u32', v(45), s(sT1), v(45))
        a.valu('v_cmp_gt_u32', 'vcc', 96 * 16, v(LH))
        a.valu('v_cndmask_b32', v(45), v(45), v(30), 'vcc')
        a.salu('s_lshl_b32', s(sT0), s(sH), 16); a.salu('s_add_u32', s(sT0), s(sT0), WS_M0 - self.wsmem - 112 * 128)
        a.valu('v_lshlrev_b32', v(30), 3, v(LH)); a.valu('v_add_u32', v(30), s(sT0), v(30))
        a.valu('v_cmp_gt_u32', 'vcc', 112 * 16, v(LH))
        a.valu('v_cndmask_b32', v(45), v(30), v(45), 'vcc')
        a.valu('v_cmp_gt_u32', 'vcc', 184 * 16, v(LH))
        a.salu('s_mov_b32', s(sT0), self.wsmem)
        a.salu('s_mov_b64', 'exec', 'vcc')
        if self.tx == 1:
            a.salu('s_cmp_eq_u32', s(sW), 0, nodst=True); a.salu('s_cselect_b64', 'exec', 0, 'exec')
        a.ins(f'buffer_load_dword v30, v45, s[{SRD}:{SRD+3}], s{sT0} offen sc1')
        a.salu('s_mov_b64', 'exec', -1)

    def loop_init(self):
        a = self.a
        a.salu('s_mov_b32', 'm0', L_DUMP)
        a.salu('s_add_u32', s(sPF), s(sPF), 2 * 32 * 16384)
        m_ = (3 << (self.nsteps - 2)) | ((1 << self.spec[0]) if self.spec else 0) | self.rt0
        a.salu('s_mov_b32', s(66), hex(m_ & 0xffffffff)); a.salu('s_mov_b32', s(67), hex(m_ >> 32))
        if self.timing:
            for i in range(24): a.salu('s_mov_b32', s(sACC + i), 0)

    def step(self):
        a = self.a; t = self.tag; fl = self.fl; lfl = self.lfl
        srd = s(SRD, 4); T = {}
        R0, R1, R2, R3, R4, R5, R6, R7, R8 = Rq
        ACCS = {'q0': AQ0, 'q1': AQ1, 'k0': AK0, 'k1': AK1, 'v0': AV0, 'v1': AV1}
        where = {}
        M = {}
        def fr(f, dst):
            rg, off = lds_base(LDS_ADDR[f])
            def f0(): where[f] = dst; a.ds('ds_read_b128', v(dst, 4), v(rg), mods=f'offset:{off}')
            def f1(): T[f] = a.ds('ds_read_b128', v(dst + 4, 4), v(rg), mods=f'offset:{off + 4096}')
            return f0, f1
        def xr(i): return {0: (LW0, B_LW0), 1: (LW1, B_LW1), 2: (LW2, B_LW1), 3: (LW3, B_LW1)}[i]
        def mr(sl, dst):
            def f():
                M[sl] = dst
                if sl == 8: T[('m', sl)] = a.ds('ds_read_b128', v(dst, 4), v(L16), mods=f'offset:{L_MBUF + 8192 - B_LW1}')
                else:
                    rg, b = xr(sl & 3)
                    T[('m', sl)] = a.ds('ds_read_b128', v(dst, 4), v(rg), mods=f'offset:{L_MBUF + (sl >> 2) * 4096 - b}')
            return f
        def wl(key): return lambda: a.wait(lds=T[key])
        def wv(key): return lambda: (a.wait(vm=T[key]) if T[key] > a.done['vm'] else None)
        def mm(o, sl):
            f = (o[0], int(o[1]), sl)
            a.mfma(SMF, v(ACCS[o], 4), v(M[sl], 4), v(where[f], 8) if f in LDS_ADDR else freg(f), v(IDX))
        def run(seq):
            for x in seq:
                if isinstance(x, tuple): mm(*x)
                elif x is not None: x()
        def sal(*args, **kw): return lambda: a.salu(*args, **kw)
        def val(*args, **kw): return lambda: a.valu(*args, **kw)
        def ins(x): return lambda: a.ins(x)
        def z2(r, c=0): return val('v_mov_b64', v(r, 2), c)
        def zero(lo, hi):
            for i in range(lo, hi, 2): z2(i)()
        def cvt(d, x, y=None): return val('v_cvt_pk_bf16_f32', v(d), v(x), v(x + 1 if y is None else y))
        def dpp(d, x, bm): return val('v_mov_b32_dpp', v(d), v(x), mods=f'row_ror:8 row_mask:0xf bank_mask:{bm}', rmw=True)
        def mf(op, d, A, B, C): return lambda: a.mfma(op, v(d, 4), v(A, 4 if op == MF32 else 2), v(B, 4 if op == MF32 else 2), 0 if C is None else v(C, 4))
        def zmf(d): return mf(MF16, d, ZZ, ZZ, None)
        def st(k): return lambda: self.stamp(k)
        LC, TM, LCW, MC = R8, R8 + 1, R8 + 2, R8 + 3
        def vbr(lab):
            a.ins(f's_cbranch_vccnz {lab}')
        def poll0(R0=R0):
            a.vmem('buffer_load_dwordx4', v(R0, 4), v(LH), srd, s(sMEM), mods='offen ' + lfl); a.nowait(v(R0, 4))
            if self.p0d:
                a.raw(f'    buffer_load_dwordx4 v{LH}, s[{SRD}:{SRD+3}], s{sMEM} offen {lfl} lds'); a.pos += 1; a.vm_seq += 1
        def dma1(i):
            def f():
                a.salu('s_mov_b32', 'm0', s(sD1 + i))
                a.nop(1)
                a.raw(f'    buffer_load_dwordx4 v{LH}, s[{SRD}:{SRD+3}], s{sMEM4} offen {lfl} lds' if i == 0 else f'    buffer_load_dword v{LC}, s[{SRD}:{SRD+3}], s{sMEM8} offen {lfl} lds')
                a.pos += 1; a.vm_seq += 1
            return f
        def rd1a(): a.ds('ds_read_b128', v(R1, 4), v(LW0), mods=f'offset:{L_MBUF + 4096 - B_LW0}')
        def rd1b(): a.ds('ds_read_b32', v(MC), v(LCW))
        m0d = sal('s_mov_b32', 'm0', L_DUMP)
        def poll1():
            a.vmem('buffer_load_dwordx4', v(R1, 4), v(LH), srd, s(sMEM4), mods='offen ' + lfl)
            a.vmem('buffer_load_dword', v(MC), v(LC), srd, s(sMEM8), mods='offen ' + lfl)
            a.nowait(v(R1, 4)); a.nowait(v(MC))
        def prefetch_top():
            run(list(fr(('q', 1, 0), R2)) + list(fr(('k', 0, 0), R4)) + list(fr(('k', 1, 0), R6)))
        def prefetch_av(): run(list(fr(('q', 0, 0), AV0)))
        def offsets():
            a.salu('s_add_u32', s(sMEM4), s(sMEM), 4096); a.salu('s_add_u32', s(sMEM8), s(sMEM), 8192)
        def pubk(r):
            if self.nopub: return
            a.salu('s_mov_b64', 'exec', s(sHI8, 2))
            a.vmem('buffer_store_dwordx4', v(r, 4), v(LH), srd, s(sKM), mods='offen ' + self.pfl, load=False, data=v(r, 4))
            a.salu('s_mov_b64', 'exec', -1)
        def pubv(r):
            if self.nopub: return
            a.vmem('buffer_store_dwordx4', v(r, 4), v(LH), srd, s(sVM), mods='offen ' + self.pfl, load=False, data=v(r, 4))
        def flag(r):
            if self.nopub: return
            a.salu('s_mov_b64', 'exec', 1)
            a.vmem('buffer_store_dword', v(r), 'off', srd, s(sFL), mods='sc1', load=False)
            a.salu('s_mov_b64', 'exec', -1)
        def pf(r):
            if self.nopf: return
            a.raw(f'    buffer_load_dword v{r}, s[{SRD}:{SRD+3}], s{sPF} offen sc1 lds'); a.pos += 1; a.vm_seq += 1

        offsets(); prefetch_top()
        a.salu('s_add_u32', s(sMRS), s(sMEM), s(sMSU))
        if self.p0d: a.salu('s_sub_u32', 'm0', s(sD1), 4096)
        a.salu('s_mov_b32', s(sSPIN), self.spinmax)
        poll0()
        a.raw('.p2align 6')
        a.label(f'{t}_loop')
        a.forget()
        zero(0, 16)
        a.label(f'{t}_loop2')
        st(0)()
        def top():
            prefetch_av()
            a.valu('v_lshrrev_b32', v(LC), 2, v(LH))
            a.valu('v_add_u32', v(LCW), L_MBUF + 8192, v(LC))
            if self.timing: a.salu('s_mov_b32', 's94', s(sSPIN))
            a.salu('s_mov_b32', s(sSPIN), self.spinmax)
            if self.hook: self.hook(a)
        top()
        for i in range(self.ks - 1):
            if self.pA: a.nop(self.pA)
            poll0()
        r1 = self.p1 == 3
        if r1:
            if self.dA: a.nop(self.dA)
            poll1()
        a.ins('s_waitcnt lgkmcnt(0)')
        a.label(f'{t}_chk0')
        a.ins(f's_waitcnt vmcnt({2 * self.ks - 1 if self.p0d else self.ks - 1 + (2 if r1 else 0)})')
        a.lines.append(f'{t}_chk0b:')
        st(1)()
        M[0] = R0; M[4] = R1
        K01, K11 = fr(('k', 0, 1), R2), fr(('k', 1, 1), R4)
        K02, K12 = fr(('k', 0, 2), R2), fr(('k', 1, 2), R4)
        K03, K13 = fr(('k', 0, 3), R2), fr(('k', 1, 3), R4)
        o2 = [sal('s_add_u32', s(sT3), s(sMEM), s(sMSU)), sal('s_add_u32', s(sT1), s(sMEM), 16384), sal('s_and_b32', s(sT1), s(sT1), 0xffff),
              sal('s_add_u32', s(sT1), s(sT1), self.wsmem), sal('s_add_u32', s(sMST), s(sT1), s(sMSU)), sal('s_and_b32', s(sTAG), s(sSTEP), 1)]
        a.valu('v_max3_u32', v(TM), v(R0), v(R0 + 1), v(R0 + 2)); a.valu('v_max_u32', v(TM), v(TM), v(R0 + 3))
        a.valu('v_cmp_eq_u32', 'vcc', -1, v(TM))
        if not self.p0d: wA = a.ds('ds_write_b128', v(LW0), v(R0, 4), mods=f'offset:{L_MBUF - B_LW0}')
        vbr(f'{t}_spin0')
        if self.p0d: run([('k1', 0), ins(f's_waitcnt vmcnt({2 * self.ks - 2})')])
        elif self.p1 == 4: run([('q0', 0), dma1(0), ('q1', 0), dma1(1), ('k1', 0), K01[0], zmf(AV0), K01[1], lambda: a.wait(lds=wA)])
        else: run([('q0', 0), poll1 if self.p1 in (1, 3) else None, ('q1', 0), K01[0], ('k1', 0), K01[1], zmf(AV0), lambda: a.wait(lds=wA)])
        a.ins('s_barrier')
        st(2)()
        p4 = self.p1 == 4
        KV = [R0, R2, R4, R5] if p4 else [R2, R3, R4, R5]
        M8 = R3 if p4 else R0
        def kx(i):
            def f(): T['kx', i] = a.vmem('buffer_load_dwordx4', v(KV[i], 4), v(LH), srd, s(sKX), mods=f'offen offset:{i*1024} ' + ('sc1', 'sc1 nt', 'nt')[self.kvnt])
            return f
        c1 = [val('v_max3_u32', v(TM), v(R1), v(R1 + 1), v(R1 + 2)), val('v_max3_u32', v(TM), v(TM), v(R1 + 3), v(MC)), val('v_cmp_eq_u32', 'vcc', -1, v(TM))]
        def w1a(): a.ds('ds_write_b128', v(LW0), v(R1, 4), mods=f'offset:{L_MBUF + 4096 - B_LW0}')
        def w1b(): T['wB'] = a.ds('ds_write_b32', v(LCW), v(MC))
        if self.p1 == 4:
            if self.p0d: run([mr(1, R6), ('q1', 0), K01[0], K01[1], ('q0', 0), dma1(0), ('k0', 0), dma1(1), zmf(AV0), K11[0], zmf(AV1), K11[1], ('q0', 1), mr(2, R7), ('v0', 0), m0d, ('v1', 0), o2[0], o2[1]])
            else: run([mr(1, R6), zmf(AV1), mr(2, R7), ('k0', 0), K11[0], ('v0', 0), K11[1], ('v1', 0), m0d, ('q0', 1), o2[0], o2[1]])
            run([('k0', 1), K02[0], ('q1', 1), K02[1], ('k1', 1), K12[0], ('v0', 1), K12[1], ('v1', 1), mr(3, R6),
                 ('q0', 2), ins('s_waitcnt vmcnt(0)'), st(3), rd1a, ('k0', 2), rd1b, kx(0), ('q1', 2), K03[0], ('k1', 2), K03[1], ('v0', 2), K13[0], ('v1', 2), K13[1],
                 lambda: a._autowait([('v', MC)], 'mc'), ('q0', 3), c1[0], ('q1', 3), c1[1], ('k0', 3), kx(1), c1[2], ('v0', 3), ('v1', 3)])
            vbr(f'{t}_spin1')
            a.lines.append(f'{t}_go1:')
        elif self.p1 == 2:
            run([mr(1, R6), zmf(AV1), poll1, mr(2, R7), ('k0', 0), K11[0], ('v0', 0), K11[1], ('v1', 0),
                 ('q0', 1), o2[0], o2[1], ('k0', 1), K02[0], ('q1', 1), K02[1], ('k1', 1), K12[0], ('v0', 1), K12[1], ('v1', 1), mr(3, R6),
                 ('k0', 2), K03[0], ('q0', 2), K03[1], ('k1', 2), K13[0], ('q1', 2), K13[1], ('v0', 2), ('v1', 2),
                 ('q0', 3), ins('s_waitcnt vmcnt(0)'), st(3), w1a, ('q1', 3), w1b, c1[0], c1[1], ('k0', 3), kx(0), c1[2], ('k1', 3), ('v0', 3)])
            vbr(f'{t}_spin1')
            a.lines.append(f'{t}_go1:')
            run([('v1', 3), wl('wB')])
        else:
            run([mr(1, R6), zmf(AV1), mr(2, R7), ('k0', 0), K11[0], ('v0', 0), K11[1], ('v1', 0),
                 ('q0', 1), o2[0], o2[1], ('k0', 1), K02[0], ('q1', 1), K02[1], ('k1', 1), K12[0], ('q0', 2), K12[1], ('q1', 2), mr(3, R6),
                 ('k0', 2), ins('s_waitcnt vmcnt(0)'), st(3), w1a, ('k1', 2), w1b, c1[0], ('q0', 3), K03[0], c1[1], ('q1', 3), K03[1], c1[2], ('v0', 2), K13[0], ('v1', 2), K13[1]])
            vbr(f'{t}_spin1')
            a.lines.append(f'{t}_go1:')
            run([('q0', 4), wl('wB')])
        a.ins('s_barrier')
        TB = R1
        def tbld(): T['tb'] = a.ds('ds_read_b128', v(TB, 4), v(MMR), mods=f'offset:{L_TB - 512 - B_LW1}')
        def pmld(R1=AQ0):
            if self.nopub: return
            a.salu('s_mov_b64', 'exec', s(sW0M, 2))
            a.ds('ds_read_b128', v(R1, 4), v(MST))
            a.salu('s_mov_b64', 'exec', -1)
        def pubm(R1=AQ0, restore=True):
            if self.nopub: return
            a._autowait([('v', R1 + i) for i in range(4)], 'pubm')
            L = f'{t}_np{len(a.lines)}'
            a.salu('s_mov_b64', 'exec', s(sW0M, 2))
            if self.pbr: a.ins(f's_cbranch_execz {L}')
            a.vmem('buffer_store_dwordx4', v(R1, 4), v(LH), srd, s(sFV), mods='offen ' + self.pfl, load=False, data=v(R1, 4))
            if self.pbr: a.pos -= 1; a.lines.append(L + ':')
            if restore: a.salu('s_mov_b64', 'exec', -1)
        K08, K18 = fr(('k', 0, 8), R6), fr(('k', 1, 8), R6)
        VB = 5 if self.p1 in (2, 4) else 1
        VL = 4 if self.p1 in (2, 4) else 3
        if self.p1 == 2: run([mr(5, R7), ('q0', 4), mr(6, R6), ('q1', 4), kx(1), ('k0', 4), mr(7, R8), o2[2], ('k1', 4), mr(8, R0), o2[3], o2[4], o2[5]])
        elif self.p1 == 4: run([mr(5, R7), ('k1', 3), mr(6, R6), ('q0', 4), kx(2), ('q1', 4), mr(7, R8), o2[2], ('k0', 4), mr(8, M8), o2[3], ('k1', 4), o2[4], o2[5]])
        else: run([mr(5, R7), ('q1', 4), mr(7, R8), ('k0', 4), lambda: a._autowait([('v', R4 + 4)], 'k13'), ('k0', 3), kx(0), ('k1', 3), mr(6, R6), ('k1', 4), mr(8, R0), o2[2], o2[3], ('v0', 4), kx(1), ('v1', 4), o2[4], o2[5]])
        run([('q0', 5), kx(3) if p4 else tbld, ('k0', 5), tbld if p4 else kx(2), ('q1', 5), ('k1', 5)] + ([K08[1], ('q0', 6), None if p4 else kx(3)] if self.p1 in (2, 4) else [('v0', 5), kx(3), ('v1', 5), K08[1], ('q0', 6)])
            + [('k0', 6), ('q1', 6), (lambda: pf(PFA)) if p4 else None, ('k1', 6), ('v0', 6), (lambda: pf(PFA)) if self.p1 not in (2, 4) else None, ('v1', 6), K08[0],
             ('q0', 7), (lambda: pf(PFA)) if self.p1 == 2 else None, sal('s_bitcmp1_b64', s(66, 2), s(sSTEP), nodst=True), ('q1', 7), ('q0', 8), ('q1', 8), ('k0', 7), lambda: a._autowait([('v', R6)], 'k08'), cvt(AQ0, AQ0),
             ('k0', 8), K18[0], cvt(AQ1, AQ1), ('k1', 7), K18[1], cvt(AQ1 + 1, AQ1 + 2), ('v0', 7), cvt(AQ0 + 1, AQ0 + 2),
             mf(MF16, AQ1, AQ1, TB, None), cvt(AQ0 + 2, AK0), cvt(AQ0 + 3, AK0 + 2), ('v1', 7), lambda: pmld(R8), mf(MF32, AK0, AQ0, TB, None), cvt(AQ0 + 2, AQ1), ('k1', 8), mr(VB, R6)])
        st(4)()
        heat = lambda: a.mfma(MF16, v(R6, 4), v(ZZ, 2), v(ZZ, 2), v(R6, 4))
        XF0, XF1, U22, U23, U32, U33 = fr(('o', 4, 0), R2), fr(('o', 4, 1), R6), fr(('o', 2, 2), R4), fr(('o', 2, 3), R2), fr(('o', 3, 2), R6), fr(('o', 3, 3), R4)
        run([cvt(AQ0 + 3, AQ1 + 2), wv(('kx', 1)), cvt(AQ0, AK0), cvt(AQ0 + 1, AK0 + 2), mf(MF32, AK0, KV[1], AQ0, None), cvt(AK1, AK1), cvt(AK1 + 1, AK1 + 2),
             mf(MF16, AK1, AK1, TB + 2, None), mr(VL, R7), XF0[0] if p4 else XF0[1], mf(MF32, R1, KV[0], AQ0, None), wv(('kx', 3)), None if p4 else XF0[0], sal('s_mov_b64', 'exec', s(sHI8, 2)),
             cvt(AQ0 + 2, AK1), cvt(AQ0 + 3, AK1 + 2), sal('s_mov_b64', 'exec', -1),
             mf(MF32, AQ1, AQ0, AQ0, None)]
            + [dpp(R1 + r, AK0 + r, '0xc') for r in range(4)] + [('v0', 8)])
        a.ds('ds_write_b128', v(LW0), v(R1, 4), mods=f'offset:{L_SC - B_LW0}')
        run([dpp(AQ1, AQ1 + 2, '0xc'), dpp(AQ1 + 1, AQ1 + 3, '0xc'), ('v1', 8)])
        ws_ = a.ds('ds_write_b64', v(MMW), v(AQ1, 2))
        if self.bf: run([('v0', 1), ins(f's_cbranch_scc1 {t}_last'), lambda: a.lines.append(f'{t}_back:'), ('v1', 1), XF0[0], ('v0', 3), zmf(AK1) if self.bf > 1 else None])
        else: run([('v0', VB), lambda: pubm(R8), ('v1', VB), ins(f's_cbranch_scc1 {t}_last'), lambda: a.lines.append(f'{t}_back:')] + [heat] * self.hb)
        a.wait(lds=ws_)
        a.ins('s_barrier')
        st(5)()
        X0, X1, X2, X3, MA, MB_ = R1, AK0, AQ1, AQ0, R8, AK1
        def xrd(i, d):
            rg, b = xr(i)
            return lambda: a.ds('ds_read_b128', v(d, 4), v(rg), mods=f'offset:{L_SC - b}')
        def mmrd(d, o): return lambda: a.ds('ds_read_b128', v(d, 4), v(MMR), mods=f'offset:{L_MM + o - B_LW1}')
        def mulc(d): return val('v_mul_f32', v(d), s(sC1), v(d))
        def fmc(d, x): return val('v_fmac_f32', v(d), s(sC1), v(x))
        BM, BT = AK0 + 2, AQ1
        AC = [R1, AQ1, AV0, AV1]; ACX = AK0
        WL, LQ, O0, O1 = R0, AQ0, AK1, AV1
        ET, EM = AQ0, MA + 2
        CK = AK0
        F = {0: AQ0, 1: R0, 2: AK1, 3: R8}
        def ex(d, x): return val('v_exp_f32', v(d), v(x))
        def pkf(d, x): return val('v_pk_fma_f32', v(d, 2), v(x, 2), s(sC1, 2), v(d, 2))
        BMT = R8 + 2
        mm_ = [val('v_pk_add_f32', v(MA, 2), v(MA, 2), v(MA + 2, 2)), val('v_pk_add_f32', v(MB_, 2), v(MB_, 2), v(MB_ + 2, 2)), val('v_pk_add_f32', v(MA, 2), v(MA, 2), v(MB_, 2)),
               val('v_pk_mul_f32', v(MA, 2), v(MA, 2), s(sC1, 2))]
        def pkm(d): return val('v_pk_mul_f32', v(d, 2), v(d, 2), s(sC1, 2))
        run(([mmrd(MA, -512), ('v0', VL), mmrd(MB_, 0), xrd(1, X1), ('v1', VL), xrd(2, X2), xrd(3, X3)] if self.ha else [mmrd(MA, -512), mmrd(MB_, 0), None if self.bf else ('v0', 3), xrd(1, X1), xrd(2, X2), ('v1', 3), xrd(3, X3)]) + [heat] * max(self.ha - 1, 0) + [
             z2(WL, s(sHALF, 2)), z2(WL + 2, s(sONE, 2)), cvt(AV0, AV0), cvt(AV0 + 1, AV0 + 2), pkm(X0), pkm(X0 + 2), lambda: a._autowait([('v', MB_)], 'mb')] + mm_ + [ex(EM, MA), ex(EM + 1, MA + 1),
             lambda: a._autowait([('v', X2)], 'x2'), pkf(X0, X1), pkf(X0 + 2, X1 + 2), cvt(BM, EM), pkf(X0, X2), pkf(X0 + 2, X2 + 2),
             pkf(X0, X3), dpp(BM + 1, BM, '0xf'), pkf(X0 + 2, X3 + 2)])
        st(6)()
        def soft(first):
            x_ = [cvt(AV0 + 2, AV1), cvt(AV0 + 3, AV1 + 2), None] if first else [None] * 3
            if not first: run([ex(EM, MA), ex(EM + 1, MA + 1), cvt(BM, EM), dpp(BM + 1, BM, '0xf')])
            run([ex(ET, X0), mf(MF16, O0, AV0, BM, None), XF1[0] if first else None, ex(ET + 1, X0 + 1), x_[0], ex(ET + 2, X0 + 2), x_[1], cvt(BT, ET), ex(ET + 3, X0 + 3), mf(MF16, O1, AV0 + 2, BM, None), XF1[1] if first else None,
                 cvt(BT + 1, ET + 2), dpp(BT + 2, BT, '0xf'), val('v_max3_f32', v(CK), f'|v{X0}|', f'|v{X0+1}|', f'|v{X0+2}|'), dpp(BT + 3, BT + 1, '0xf'), st(7) if first else None,
                 mf(MF32, LQ, WL, BM, None), XF0[1] if (first and p4) else None, val('v_max3_f32', v(CK), v(CK), f'|v{X0+3}|', f'|v{MA}|'), val('v_max_f32_e64', v(CK), v(CK), f'|v{MA+1}|'),
                 mf(MF32, O0, R4, BT, O0), val('v_cmp_nge_f32', 'vcc', s(sNC1), v(CK)),
                 mf(MF32, O1, R5, BT, O1),
                 val('v_add_f32_dpp', v(LQ), v(LQ), v(LQ), mods='row_ror:8 row_mask:0xf bank_mask:0xf'), val('v_rcp_f32', v(LQ), v(LQ))])
        soft(True)
        vbr(f'{t}_guard')
        a.lines.append(f'{t}_norm:')
        run([zmf(AC[0])]
            + [val('v_mul_f32', v(O0 + r), v(O0 + r), v(LQ)) for r in range(4)]
            + [val('v_mul_f32_dpp', v(O0 + r), v(O1 + r), v(LQ), mods='row_ror:8 row_mask:0xf bank_mask:0xc', rmw=True) for r in range(4)]
            + [cvt(O0, O0), cvt(O0 + 1, O0 + 2), zmf(AC[1])])
        wo = a.ds('ds_write_b64', v(OW), v(O0, 2))
        def guard():
            a.label(f'{t}_guard')
            a.forget()
            a.ins(f's_cbranch_scc0 {t}_guard2')
            pubv(AV0)
            a.salu('s_add_u32', s(sVM), s(sVM), 32 * 4096)
            a.salu('s_add_u32', s(sT0), s(sNONCE), self.nsteps - 1); a.valu('v_mov_b32', v(CK + 1), s(sT0)); flag(CK + 1)
            a.label(f'{t}_guard2')
            a.nop(8)
            M1, M2 = BM, BM + 1
            a.valu('v_max3_f32', v(M1), v(X0), v(X0 + 1), v(X0 + 2))
            a.valu('v_max3_f32', v(M2), v(X0 + 3), v(MA), v(MA + 1))
            a.valu('v_max_f32', v(M1), v(M1), v(M2))
            a.valu('v_max_f32_dpp', v(M1), v(M1), v(M1), mods='row_ror:8 row_mask:0xf bank_mask:0xf')
            for sw in ('v_permlane32_swap_b32', 'v_permlane16_swap_b32'):
                a.valu('v_mov_b32', v(M2), v(M1)); a.valu(sw, v(M1), v(M2)); a.valu('v_max_f32', v(M1), v(M1), v(M2))
            for d in (X0, X0 + 1, X0 + 2, X0 + 3, MA, MA + 1): a.valu('v_sub_f32', v(d), v(d), v(M1))
            soft(False)
            a.fence()
            a.ins(f's_branch {t}_norm')
        def E(u, i):
            def f():
                fg = ('o', u, i)
                a.mfma(SMF, v(ACX if u == 4 else AC[u], 4), v(F[2 * i if u == 4 else i], 4), v(where[fg], 8) if fg in LDS_ADDR else freg(fg), v(IDX))
            return f
        OA = [None, OA1, OA2, OA3]
        run([zmf(ACX), lambda: a.ds('ds_read_b128', v(F[0], 4), v(OR0)), zmf(AC[2]), U22[0], zmf(AC[3]), U22[1]])
        a.wait(lds=wo)
        a.ins('s_barrier')
        st(8)()
        if self.xnop: a.nop(self.xnop)
        def frd(i): return lambda: a.ds('ds_read_b128', v(F[i], 4), v(OA[i]))
        def tag(r): return val('v_and_or_b32', v(r), v(r), -2, s(sTAG))
        def fin(u):
            r = ACX if u == 4 else AC[u]
            so = [sPS0, sPS1, sLO8, sLO8 + 1, sPSX][u]
            return [cvt(r, r), cvt(r + 1, r + 2), tag(r), lambda: a.vmem('buffer_store_dwordx2', v(r, 2), v(PSX if u == 4 else PST), srd, s(so), mods='offen ' + fl, load=False)]
        P0 = [R4, R5, R6, R7]
        def shot(P):
            for i in range(4):
                a.vmem('buffer_load_dwordx4', v(P[i], 4), v(L16), srd, s(sPL), mods=f'offen offset:{1024 * i} ' + lfl)
            a.nowait(v(P[0], 16))
        def shot0():
            if not self.ins0: return
            if self.dE: a.nop(self.dE)
            a.ins(f's_cbranch_scc1 {t}_ns0')
            p = a.pos
            for r in P0: a.valu('v_not_b32', v(r), s(sTAG))
            shot(P0)
            a.pos = p
            a.lines.append(f'{t}_ns0:')
        f0, f1, f2, f3, fx = [fin(u) for u in range(5)]
        def aw(*regs): return lambda: a._autowait([('v', r) for r in regs], 'aw')
        if self.eo == 3:
          run([frd(1), frd(2), frd(3), E(0, 0), E(1, 0), E(4, 0), U23[0],
             aw(F[2]), E(0, 1), U23[1], E(0, 2), E(0, 3), E(1, 1), E(1, 2), f0[0], E(1, 3), f0[2], f0[1], E(4, 1), f0[3], U32[0], E(2, 2), U32[1], f1[0], f1[2], f1[1], E(2, 0), f1[3], st(9), U33[0],
             E(2, 1), U33[1], fx[0], E(2, 3), fx[2], E(3, 0), fx[1], E(3, 1), fx[3] if self.hx else None, f2[0], aw(R4 + 4), E(3, 2), f2[2], E(3, 3), sal('s_cmp_lg_u32', s(sW), 2, nodst=True), f2[1]]
             + [val('v_not_b32', v(r + o), s(sTAG)) for r in P0 for o in (0, 2)] + [f3[0], f3[2], f3[1]])
          if self.dE: a.nop(self.dE)
          a.ins(f's_cbranch_scc1 {t}_ns0')
          shot(P0)
          a.lines.append(f'{t}_ns0:')
          a.ins('s_barrier')
          run([None if self.hx else fx[3], f2[3], f3[3]])
        elif self.eo == 2:
          run([frd(1), frd(2), frd(3), E(0, 0), E(1, 0), E(4, 0), U23[0],
             aw(F[2]), E(0, 1), U23[1], E(0, 2), E(0, 3), E(1, 1), E(1, 2), f0[0], E(1, 3), f0[2], f0[1], E(4, 1), f0[3], U32[0], E(2, 2), U32[1], f1[0], f1[2], f1[1], E(2, 0), f1[3], st(9), U33[0],
             E(2, 1), U33[1], fx[0], E(2, 3), fx[2], fx[1], E(3, 0), fx[3], E(3, 1), f2[0], aw(R4 + 4), E(3, 2), f2[2], f2[1], E(3, 3), f2[3], sal('s_cmp_lg_u32', s(sW), 2, nodst=True), f3[0], f3[2], f3[1], f3[3]])
        else:
          run([frd(1), frd(2), frd(3), E(0, 0), E(1, 0), E(4, 0), U23[0], E(2, 0), U23[1],
             aw(F[2]), E(0, 1), E(4, 1), U32[0], E(0, 2), U32[1], E(0, 3), fx[0], E(2, 2), U33[0], fx[2], E(1, 1), U33[1], fx[1], E(1, 2), fx[3], f0[0], E(1, 3), f0[2], E(2, 1), f0[1],
             E(2, 3), f0[3], f1[0], aw(R4 + 4), E(3, 0), f1[2], E(3, 1), f1[1], E(3, 2), f1[3], st(9), f2[0], E(3, 3), f2[2], f2[1], f2[3], sal('s_cmp_lg_u32', s(sW), 2, nodst=True), f3[0], f3[2], f3[1], f3[3]])
        st(10)()
        P = [AQ0, AK0, AQ1, AK1]; RD, XT, NEG, SELR = R1, AV1, AV1 + 1, R8
        def finish():
            a.fence()
            a.ins(f's_branch {t}_loop')
        def publish():
            a.valu('v_cvt_pk_bf16_f32', v(RD), v(RD), v(RD + 2))
            a.salu('s_mov_b64', 'exec', s(sSTM, 2))
            a.vmem('buffer_store_dword', v(RD), v(MST), srd, s(sMST), mods='offen ' + fl, load=False)
            st(11)()
        def reset():
            a.salu('s_mov_b64', 'exec', -1)
        def reset_old():
            a.valu('v_mov_b32', v(NEG), -1)
            a.salu('s_mov_b64', 'exec', s(sSTM, 2))
            a.vmem('buffer_store_dword', v(NEG), v(MST), srd, s(sMRS), mods='offen ' + fl, load=False)
            a.salu('s_mov_b64', 'exec', -1)
            a.salu('s_mov_b32', s(sMRS), s(sT3))
        def idle(pre=True):
            a.ds('ds_read_b128', v(SELR, 4), v(L16), mods=f'offset:{L_SEL - B_LW1}')
            if pre: prefetch_top()
            a.salu('s_add_u32', s(sSTEP), s(sSTEP), 1); a.salu('s_mov_b32', s(sMEM), s(sT1))
            a.salu('s_add_u32', s(sKX), s(sKX), 32 * 16384); a.salu('s_add_u32', s(sPF), s(sPF), 32 * 16384); a.salu('s_min_u32', s(sPF), s(sPF), s(sAL))
            offsets()
            a.salu('s_add_u32', s(sFV), s(sFV), 24 * 512)
            a.salu('s_mov_b32', s(sT0), 1)
            if self.p0d: a.salu('s_sub_u32', 'm0', s(sD1), 4096)
            if self.eo == 3: z2(R0, -1)()
        def reduce(lab, k, P, y=0, pre=False):
            a.label(f'{t}_chk{lab}')
            a.valu('v_mov_b32', v(XT), 0)
            for i in range(4):
                a.ins(f's_waitcnt vmcnt({4 * k - 1 - i + y})')
                chk = [val('v_bitop3_b32', v(XT), v(XT), v(r), s(sTAG), mods='bitop3:0xf6') for r in (P[i], P[i] + 2)]
                if k > 1 or pre: run(chk)
                a.mfma(MF32, v(RD, 4), v(P[i], 4), v(SELR, 4), 0 if i == 0 else v(RD, 4))
                if k == 1 and not pre: run(chk)
            a.valu('v_and_b32', v(XT), s(sT0), v(XT))
            a.valu('v_cmp_ne_u32', 'vcc', 0, v(XT))
            a.ins(f's_cbranch_vccnz {t}_spin{lab}')
            a.pos += 4
            a.valu('v_permlane32_swap_b32', v(RD), v(RD + 2)); a.valu('v_permlane32_swap_b32', v(RD + 1), v(RD + 3))
            a.valu('v_add_f32', v(RD), v(RD), v(RD + 2)); a.valu('v_add_f32', v(RD + 2), v(RD + 1), v(RD + 3))
        def retry(lab, P):
            a.label(f'{t}_spin{lab}')
            a.forget()
            shot(P)
            a.salu('s_sub_u32', s(sSPIN), s(sSPIN), 1)
            a.salu('s_cmp_lt_i32', s(sSPIN), 0, nodst=True)
            a.salu('s_cselect_b32', s(sT0), 0, 1)
            if self.eo == 3: a.ins('s_waitcnt vmcnt(0)')
            a.ins(f's_branch {t}_chk{lab}')
        a.ins(f's_cbranch_scc1 {t}_w013')
        a.fence()
        reset_old()
        if self.eo != 3:
            if self.d0: a.nop(self.d0 - 7)
            shot(P0)
        idle(False); zero(0, 16)
        if self.k0 > 1: a.nop(self.pF); shot(P0)
        reduce('F', self.k0, P0, (2 if self.hx else 3) if self.eo == 3 else 0, self.eo == 3); publish(); reset()
        if self.k0 == 1: prefetch_top()
        a.nop(self.dB); poll0()
        if self.k0 > 1: a.ins('s_waitcnt vmcnt(1)'); prefetch_top()
        a.fence()
        a.ins(f's_branch {t}_loop2')
        a.label(f'{t}_w013')
        a.forget()
        idle()
        a.salu('s_cmp_eq_u32', s(sROLE), 0, nodst=True)
        a.ins(f's_cbranch_scc1 {t}_w0')
        reset_old()
        a.salu('s_cmp_eq_u32', s(sW), 1, nodst=True)
        if self.dX: a.nop(self.dX - 6)
        a.ins(f's_cbranch_scc1 {t}_sx')
        a.nop(self.d1 - self.dX)
        a.lines.append(f'{t}_sx:')
        shot(P)
        if self.k1 > 1: a.nop(self.pG); shot(P)
        if self.eo == 3: a.nop(self.dA); poll0()
        reduce('G', self.k1, P, 1 if self.eo == 3 else 0)
        a.salu('s_cmp_eq_u32', s(sW), 3, nodst=True)
        a.ins(f's_cbranch_scc1 {t}_w3')
        a.valu('v_mov_b32', v(RD + 1), v(RD)); a.valu('v_mov_b32', v(RD + 3), v(RD + 2))
        a.valu('v_permlane16_swap_b32', v(RD), v(RD + 1)); a.valu('v_permlane16_swap_b32', v(RD + 2), v(RD + 3))
        a.valu('v_add_f32', v(RD), v(RD), v(RD + 1)); a.valu('v_add_f32', v(RD + 2), v(RD + 2), v(RD + 3))
        a.label(f'{t}_w3')
        if self.k1 > 1: a.ins('s_cbranch_execz .+4') if 0 else None
        publish(); reset()
        if self.dY:
            a.ins(f's_cbranch_scc1 {t}_w3b')
            a.nop(self.dY)
            a.lines.append(f'{t}_w3b:')
        poll0()
        if self.one3:
            zero(0, 16); top(); a.ins('s_waitcnt vmcnt(0) lgkmcnt(0)'); a.fence(); a.ins(f's_branch {t}_chk0b')
        elif self.eo == 3:
            zero(0, 16); top(); a.ins('s_waitcnt vmcnt(3) lgkmcnt(0)'); a.fence(); a.ins(f's_branch {t}_chk0b')
        else: finish()
        a.label(f'{t}_w0')
        a.forget()
        zero(0, 16)
        a.nop(self.dZ // 3)
        if self.w0hook: self.w0hook(a)
        a.nop(self.dZ - self.dZ // 3)
        a.lines.append(f'{t}_w0p:')
        poll0()
        a.ins(f's_branch {t}_loop2')
        retry('F', P0); retry('G', P)
        guard()
        a.label(f'{t}_spin0')
        a.forget()
        poll0()
        a.salu('s_sub_u32', s(sSPIN), s(sSPIN), 1)
        a.salu('s_cmp_lt_i32', s(sSPIN), 0, nodst=True)
        if r1: a.ins(f's_waitcnt vmcnt({self.ks - 1})')
        a.ins(f's_cbranch_scc0 {t}_chk0')
        a.ins('s_waitcnt vmcnt(0)')
        for r in range(4): a.valu('v_min_u32', v(R0 + r), -2, v(R0 + r))
        a.ins(f's_branch {t}_chk0')
        a.label(f'{t}_spin1')
        a.forget()
        if self.p1 == 4: run([dma1(0), dma1(1), m0d])
        else: poll1()
        a.salu('s_sub_u32', s(sSPIN), s(sSPIN), 1)
        a.salu('s_cmp_lt_i32', s(sSPIN), 0, nodst=True)
        a.ins(f's_waitcnt vmcnt({2 if r1 else 0})')
        if self.p1 == 4: run([rd1a, rd1b, ins('s_waitcnt lgkmcnt(0)')] + c1)
        else: run(c1 + [w1a, w1b, ins('s_waitcnt lgkmcnt(0)')])
        a.ins(f's_cbranch_scc1 {t}_go1')
        a.ins(f's_cbranch_vccnz {t}_spin1')
        a.ins(f's_branch {t}_go1')
        a.label(f'{t}_last')
        a.forget(); a.nop(2)
        if self.rt0:
            a.salu('s_cmp_ge_u32', s(sSTEP), 2, nodst=True)
            a.ins(f's_cbranch_scc1 {t}_last0')
            a.salu('s_and_b32', s(sT0), s(sH), 3); a.salu('s_lshl_b32', s(sT0), s(sT0), 14); a.salu('s_add_u32', s(sT0), s(sT0), self.wsmem)
            a.salu('s_lshr_b32', s(sT2), s(sH), 2); a.salu('s_lshl_b32', s(sT2), s(sT2), 3); a.salu('s_lshl_b64', 'exec', '0x55', s(sT2))
            a.ins(f'buffer_load_dword v{PFA}, s[{SRD}:{SRD+3}], s{sT0} offen sc1 lds')
            a.salu('s_mov_b64', 'exec', -1)
            a.salu('s_cmp_eq_u32', 0, 1, nodst=True)
            a.ins(f's_branch {t}_back')
            a.label(f'{t}_last0')
        if self.spec:
            a.salu('s_cmp_lg_u32', s(sSTEP), self.spec[0], nodst=True)
            a.ins(f's_cbranch_scc1 {t}_last1')
            self.spec[1](a)
            a.salu('s_mov_b32', 'm0', L_DUMP)
            a.salu('s_cmp_eq_u32', 0, 1, nodst=True)
            a.ins(f's_branch {t}_back')
            a.label(f'{t}_last1')
        a.salu('s_cmp_eq_u32', s(sSTEP), self.nsteps - 1, nodst=True)
        a.ins(f's_cbranch_scc1 {t}_last2')
        pubk(AQ0)
        a.salu('s_add_u32', s(sKM), s(sKM), 32 * 4096)
        a.salu('s_mov_b32', s(sNC1), '0xbf800000')
        a.salu('s_cmp_eq_u32', 0, 0, nodst=True)
        a.ins(f's_branch {t}_back')
        a.label(f'{t}_last2')
        M.update({8: R0, 1: R6, VL: R7})
        a.ins('s_waitcnt lgkmcnt(0)')
        run([lambda: pubk(AQ0), sal('s_add_u32', s(sT0), s(sNONCE), self.nsteps), val('v_mov_b32', v(R4), s(sT0)), ('v1', 1) if self.bf else None] + [(o, sl) for sl in (VL,) for o in ('v0', 'v1')]
            + [cvt(AV0, AV0), cvt(AV0 + 1, AV0 + 2), cvt(AV0 + 2, AV1), cvt(AV0 + 3, AV1 + 2), lambda: pubv(AV0)])
        flag(R4)
```

```python
import sys
sys.path.insert(0, 'gen2')
from asmfw import Asm
import chain2 as C, qkv2 as Q, attn2 as A, ssm as S
from chain2 import s, v
from build_ct import kd
NAME = 'concat_heads__memory_aug_recurrent_mem_tr__ssm_conv_s4d__prompt'
def start(a, name):
    a.raw(f'.text\n.globl {name}\n.p2align 8\n.type {name},@function\n{name}:')
def ws_srd(a, p):
    a.salu('s_mov_b32', 's4', s(p)); a.salu('s_mov_b32', 's5', s(p + 1))
    a.salu('s_mov_b32', 's6', C.WS_SIZE); a.salu('s_mov_b32', 's7', '0x20000')

sNONCE = C.sNONCE
DBG = 96
SY_ATT = C.WS_SYNC + 65536
D_NONCE, D_HELP, D_CH, D_ARR, D_SSM, D_T2, D_ATT, D_WF, D_OP = 64, 4, 128, 132, 8, 12, 16, 20, 136
D_XF2 = 24
D_MODE, D_CH2, D_ARR2, D_GO2 = 140, 208, 212, 216
XCC = [3]
NWARM = [5]
XD = [0]
OPS = [4]
DV = [70]
HDELAY = [0]
TMO = [1 << 17]
KVR = 2
CPS = [0]
D_POOL = 32
D_P2 = 160
D_QP = 68
NCH = [32]
FX = [0]
BOFF = [48]
ATS = [3]
MSL = [4]

DIAG = [0]
IFL = ['']
def diag(a, idx, val=None):
    if not DIAG[0]: return
    a.fence()
    a.ins('s_memrealtime s[90:91]'); a.ins('s_waitcnt lgkmcnt(0)')
    if val is not None: a.salu('s_mov_b32', 's90', val)
    a.salu('s_mov_b64', 's[100:101]', 'exec'); a.salu('s_mov_b64', 'exec', 1)
    a.valu('v_mov_b32', v(DV[0]), 's90')
    a.salu('s_lshl_b32', 's91', 's2', 8); a.salu('s_add_u32', 's91', 's91', 203 << 20)
    a.vmem('buffer_store_dword', v(DV[0]), 'off', 's[4:7]', 's91', mods=f'offset:{4 * idx}', load=False)
    a.salu('s_mov_b64', 'exec', 's[100:101]')
    a.nop(2)

LD = [0]
def ldiag(a, word, vreg, op='buffer_atomic_umax'):
    if not LD[0]: return
    a.fence()
    a.ins('s_memrealtime s[90:91]'); a.ins('s_waitcnt lgkmcnt(0)')
    a.salu('s_lshl_b32', 's91', 's2', 8); a.salu('s_add_u32', 's91', 's91', 203 << 20)
    a.valu('v_mov_b32', v(vreg), 's90')
    a.valu('v_cmp_eq_u32', 'vcc', 0, 'v0' if vreg > 200 else v(C.LH))
    a.salu('s_mov_b64', 'exec', 'vcc')
    a.vmem('buffer_store_dword', v(vreg), 'off', 's[4:7]', 's91', mods=f'offset:{4 * word}', load=False)
    a.salu('s_mov_b64', 'exec', -1)
    a.nop(2)

def scan(a, base, p2):
    _tk[0] += 1
    a.valu('v_and_b32', 'v1', 63, 'v0'); a.valu('v_min_u32', 'v1', 6, 'v1'); a.valu('v_lshlrev_b32', 'v2', 2, 'v1')
    a.salu('s_cmp_lg_u32', 's32', 0, nodst=True)
    a.valu('v_mov_b32', 'v251', 163832)
    a.ins(f's_cbranch_scc1 sw{_tk[0]}')
    a.vmem('buffer_load_dword', 'v3', 'v2', s(DBG, 4), 0, mods=f'offen offset:{base} sc1')
    a.valu('v_mov_b32', 'v4', (32, 24, 19)[p2])
    if p2 == 2: a.valu('v_cmp_eq_u32', 'vcc', 6, 'v1'); a.valu('v_cndmask_b32', 'v4', 'v4', 14, 'vcc', mods='')
    if p2 == 1: a.valu('v_cmp_gt_u32', 'vcc', 4, 'v1'); a.valu('v_cndmask_b32', 'v4', 'v4', 22, 'vcc', mods='')
    a.wait(vm='all')
    a.valu('v_cmp_lt_u32', 'vcc', 'v3', 'v4')
    a.salu('s_ff1_i32_b64', 's40', 'vcc')
    a.valu('v_mov_b32', 'v250', 's40')
    a.ds('ds_write_b32', 'v251', 'v250')
    a.wait(lds='all')
    a.label(f'sw{_tk[0]}')
    a.ins('s_barrier')
    a.ds('ds_read_b32', 'v252', 'v251')
    a.wait(lds='all')
    a.valu('v_readfirstlane_b32', 's33', 'v252')
    a.ins('s_barrier')
    a.nop(2)

def dsel(a, idx):
    if not DIAG[0]: return
    L = f'ds{len(a.lines)}'
    a.salu('s_cmp_ge_u32', 's36', 192, nodst=True)
    a.ins(f's_cbranch_scc1 {L}')
    diag(a, idx)
    a.ins('s_memtime s[88:89]'); a.ins('s_waitcnt lgkmcnt(0)'); diag(a, idx + 40, 's88')
    a.ins(f's_branch {L}x')
    a.label(L)
    diag(a, idx + 5)
    a.label(L + 'x')

def trace(a, base, sidx, k):
    if not DIAG[0]: return
    a.fence()
    a.ins('s_memrealtime s[90:91]'); a.ins('s_waitcnt lgkmcnt(0)')
    a.salu('s_lshl_b32', 's92', s(sidx), 4); a.salu('s_add_u32', 's92', 's92', (201 << 20) + base + 4 * k)
    a.valu('v_mov_b32', 'v249', 's90')
    a.salu('s_mov_b64', 'exec', 1)
    a.vmem('buffer_store_dword', 'v249', 'off', 's[4:7]', 's92', load=False)
    a.salu('s_mov_b64', 'exec', -1)
    a.nop(2)

_tk = [0]
def get_nonce(a, vd):
    _tk[0] += 1
    L = f'gn{_tk[0]}'
    a.fence()
    a.salu('s_mov_b32', 's88', 1 << 22)
    a.label(L)
    a.salu('s_cmp_lg_u32', s(sNONCE), 0, nodst=True)
    a.ins(f's_cbranch_scc1 {L}x')
    a.vmem('buffer_load_dword', v(vd), 'off', s(DBG, 4), 0, mods=f'offset:{D_NONCE} sc1')
    a.salu('s_sub_u32', 's88', 's88', 1)
    a.ins(f's_cbranch_scc1 {L}x')
    a.ins('s_waitcnt vmcnt(0)')
    a.valu('v_readfirstlane_b32', s(sNONCE), v(vd))
    a.nop(2)
    a.ins(f's_branch {L}')
    a.label(f'{L}x')

def ticket(a, dst, off, vb=250, mid=None, nyoung=0):
    _tk[0] += 1
    L = f'tk{_tk[0]}'
    a.fence()
    a.salu('s_mov_b32', 's37', off)
    a.valu('v_mov_b32', v(vb), 1)
    a.valu('v_mov_b32', v(vb + 1), 163832)
    a.valu('v_cmp_eq_u32', 'vcc', 0, 'v0')
    a.salu('s_and_saveexec_b64', 's[38:39]', 'vcc')
    a.ins(f's_cbranch_execz {L}' + ('m' if mid else ''))
    a.vmem('buffer_atomic_add', v(vb), 'off', s(DBG, 4), 's37', mods='sc0')
    if mid:
        a.label(L + 'm')
        a.salu('s_mov_b64', 's[38:39]', 'exec')
        a.salu('s_mov_b64', 'exec', -1)
        mid()
        a.salu('s_mov_b64', 'exec', 's[38:39]')
        a.ins(f's_cbranch_execz {L}')
    a.ins(f's_waitcnt vmcnt({nyoung})'); a.done['vm'] = a.vm_seq
    a.ds('ds_write_b32', v(vb + 1), v(vb))
    a.wait(lds='all')
    a.label(L)
    a.salu('s_mov_b64', 'exec', -1)
    a.ins('s_barrier')
    a.ds('ds_read_b32', v(vb + 2), v(vb + 1))
    a.wait(lds='all')
    a.valu('v_readfirstlane_b32', s(dst), v(vb + 2))
    a.ins('s_barrier')
    a.nop(4)

def flag_store(a, soff):
    _tk[0] += 1
    a.ins('s_waitcnt vmcnt(0)')
    a.ins('s_barrier')
    a.valu('v_mov_b32', 'v250', s(sNONCE))
    a.valu('v_cmp_eq_u32', 'vcc', 0, 'v0')
    a.salu('s_and_saveexec_b64', 's[38:39]', 'vcc')
    a.ins(f's_cbranch_execz fs{_tk[0]}')
    a.vmem('buffer_store_dword', 'v250', 'off', 's[4:7]', soff, mods='sc1', load=False)
    a.label(f'fs{_tk[0]}')
    a.salu('s_mov_b64', 'exec', -1)

def flags_wait(a, soff, lo, hi, va, vd, sleep=2):
    _tk[0] += 1
    L = f'fw{_tk[0]}'
    a.fence()
    a.valu('v_mbcnt_lo_u32_b32', v(va), -1, 0)
    a.valu('v_mbcnt_hi_u32_b32', v(va), -1, v(va))
    a.valu('v_min_u32', v(va), hi - lo - 1, v(va))
    a.valu('v_lshlrev_b32', v(va), 2, v(va))
    a.salu('s_mov_b32', 's88', 1 << 22)
    a.label(L)
    a.vmem('buffer_load_dword', v(vd), v(va), 's[4:7]', soff, mods=f'offen offset:{4 * lo} sc1')
    a.salu('s_sub_u32', 's88', 's88', 1)
    a.ins(f's_cbranch_scc1 {L}x')
    a.ins('s_waitcnt vmcnt(0)')
    a.valu('v_cmp_ne_u32', 'vcc', s(sNONCE), v(vd))
    a.ins(f's_cbranch_vccz {L}x')
    a.ins(f's_sleep {sleep}')
    a.salu('s_cmp_gt_u32', 's88', (1 << 22) - BOFF[0], nodst=True)
    a.ins(f's_cbranch_scc1 {L}')
    a.ins('s_sleep 40')
    a.ins(f's_branch {L}')
    a.label(f'{L}x')

def coarse_wait(a, sseg, vd, shp):
    _tk[0] += 1
    L = f'cw{_tk[0]}'
    a.fence()
    a.salu('s_mov_b32', 's88', 1 << 16)
    a.label(L)
    a.vmem('buffer_load_dword', v(vd), 'off', 's[4:7]', s(shp), mods='offset:128 sc1')
    a.ins('s_waitcnt vmcnt(0)')
    a.valu('v_readfirstlane_b32', 's42', v(vd))
    a.salu('s_sub_u32', 's42', 's42', s(sNONCE))
    a.salu('s_cmp_gt_u32', 's42', 64, nodst=True)
    a.salu('s_cselect_b32', 's42', 0, 's42')
    a.salu('s_add_u32', 's42', 's42', 2)
    a.salu('s_cmp_ge_u32', 's42', s(sseg), nodst=True)
    a.ins(f's_cbranch_scc1 {L}x')
    a.salu('s_sub_u32', 's88', 's88', 1)
    a.ins(f's_cbranch_scc1 {L}x')
    a.salu('s_sub_u32', 's42', s(sseg), 's42')
    a.salu('s_min_u32', 's42', 's42', 6)
    a.label(f'{L}s')
    a.ins('s_sleep 24')
    a.salu('s_sub_u32', 's42', 's42', 1)
    a.salu('s_cmp_lg_u32', 's42', 0, nodst=True)
    a.ins(f's_cbranch_scc1 {L}s')
    a.ins(f's_branch {L}')
    a.label(f'{L}x')

def prog_wait(a, lab, va, vd, vneed, sbase, sleep, scnt='s40'):
    a.salu('s_mov_b32', scnt, 1 << 22)
    a.label(lab)
    a.vmem('buffer_load_dword', v(vd), v(va), 's[4:7]', sbase, mods='offen sc1')
    a.salu('s_sub_u32', scnt, scnt, 1)
    a.ins(f's_cbranch_scc1 {lab}_go')
    a.ins('s_waitcnt vmcnt(0)')
    a.valu('v_subrev_u32', v(vd), vneed, v(vd))
    a.valu('v_cmp_lt_u32', 'vcc', 64, v(vd))
    a.ins(f's_cbranch_vccz {lab}_go')
    a.ins(f's_sleep {sleep}')
    a.ins(f's_branch {lab}')
    a.label(f'{lab}_go')

def k_main(a, hd=0, hg=0, warm=0, msl=4, cp=1, wt=1, qw=9, qx=0, kvr=2, cop=0, nat=10, qp=0, wm=9, tlb=0, tsh=20, xs=0, ops=2, ats=1, leak=0, wl=9, hj=0, nw=1, asy=1, xc=None, xi=0, **kw):
    if xc is not None: XCC[0] = xc
    global KVR
    KVR = kvr
    n = NAME + '_kernel'
    DV[0] = 59
    start(a, n)
    if leak == 4: a.ins('s_memrealtime s[100:101]')
    a.salu('s_cmp_ge_u32', 's2', 256, nodst=True)
    a.ins('s_cbranch_scc1 L_exit')
    a.ins('s_load_dwordx4 s[84:87], s[0:1], 120')
    a.ins('s_load_dwordx16 s[48:63], s[0:1], 0')
    a.valu('v_lshrrev_b32', 'v1', 6, 'v0')
    a.valu('v_readfirstlane_b32', 's32', 'v1')
    a.ins('s_getreg_b32 s3, hwreg(HW_REG_XCC_ID)')
    a.salu('s_and_b32', 's3', 's3', 15)
    a.salu('s_cmp_lg_u32', 's32', 3, nodst=True)
    a.ins('s_cbranch_scc1 L_nowarm')
    a.ins('s_getpc_b64 s[44:45]')
    a.label('L_pcw')
    a.valu('v_and_b32', 'v1', 63, 'v0')
    a.valu('v_lshlrev_b32', 'v1', 7, 'v1')
    a.salu('s_cmp_lg_u32', 's3', XCC[0], nodst=True)
    a.salu('s_cselect_b32', 's33', 'L_helper-L_pcw', 0)
    a.valu('v_add_u32', 'v1', 's33', 'v1')
    for i in range(NWARM[0]):
        if i == 2: a.ins('s_cbranch_scc0 L_nowarm')
        a.valu('v_min_u32', 'v2', 'L_exit-L_pcw', 'v1')
        a.vmem('global_load_dword', v(240 + i), 'v2', 's[44:45]')
        a.valu('v_add_u32', 'v1', 8192, 'v1')
    a.label('L_nowarm')
    a.forget()
    a.ins('s_waitcnt lgkmcnt(0)')
    if leak == 5: a.ins('s_memrealtime s[100:101]')
    ws_srd(a, 86)
    a.salu('s_mov_b32', s(DBG), 's84'); a.salu('s_mov_b32', s(DBG + 1), 's85')
    a.salu('s_mov_b32', s(DBG + 2), 256); a.salu('s_mov_b32', s(DBG + 3), '0x20000')
    a.salu('s_mov_b32', s(sNONCE), 0)
    diag(a, 0)
    a.salu('s_cmp_lg_u32', 's3', XCC[0], nodst=True)
    a.ins('s_cbranch_scc1 L_helper')
    lanes = C.Chain(a, 'x', gs=kw.get('gs', 2))
    def mid():
        if tlb:
            a.salu('s_cmp_lg_u32', 's32', 0, nodst=True)
            a.ins('s_cbranch_scc1 L_notlb')
            a.valu('v_lshlrev_b32', 'v1', 21, 'v0'); a.valu('v_add_u32', 'v2', (2 << 20) - 128, 'v1')
            pages = [0, 32, 43, 44, 46, 47, 48, 60]
            m_ = sum(1 << p for p in pages)
            a.salu('s_mov_b32', 'exec_lo', m_ & 0xffffffff); a.salu('s_mov_b32', 'exec_hi', m_ >> 32)
            a.ins('buffer_load_dword v246, v2, s[4:7], 0 offen sc1')
            a.salu('s_mov_b64', 'exec', 7)
            a.salu('s_mov_b32', 's14', 576 * 8192); a.salu('s_mov_b32', 's15', '0x20000')
            if tlb > 1:
                for p in (58, 56, 54, 52):
                    a.salu('s_mov_b64', 's[12:13]', s(p, 2))
                    a.ins('buffer_load_dword v246, v1, s[12:15], 0 offen')
            a.salu('s_mov_b32', 's14', 9216); a.salu('s_mov_b64', 's[12:13]', 's[50:51]')
            a.ins('buffer_load_dword v246, v1, s[12:15], 0 offen')
            a.salu('s_mov_b64', 'exec', -1)
            a.label('L_notlb')
        lanes.load_lanes()
    ticket(a, C.sH, D_CH, mid=mid, nyoung=(0, 2, 6)[tlb])
    a.salu('s_cmp_ge_u32', s(C.sH), NCH[0], nodst=True)
    a.ins('s_cbranch_scc1 L_helper')
    a.label('L_chain')
    diag(a, 14)
    ldiag(a, 0, 250)
    if leak and leak < 4: a.ins('s_memrealtime s[100:101]'); a.ins('s_waitcnt lgkmcnt(0)')
    diag(a, 15, s(C.sH))
    if DIAG[0]:
        a.ins('s_getreg_b32 s89, hwreg(HW_REG_HW_ID)'); diag(a, 12, 's89')
    def kvaddr(a, va, sb, q=0):
        a.salu('s_lshr_b32', s(sb), s(C.sH), 1); a.salu('s_lshl_b32', s(sb), s(sb), 8); a.salu('s_add_u32', s(sb), s(sb), Q.SY_PRG + q)
        a.valu('v_bfe_u32', v(va), v(C.LH), 4, 6); a.valu('v_min_u32', v(va), 11, v(va)); a.valu('v_lshlrev_b32', v(va), 2, v(va))
    def kvwait(a, lab, need, va, vd):
        kvaddr(a, va, 92, 4096 if need == Q.DONE else 0)
        a.salu('s_add_u32', 's93', s(sNONCE), need)
        prog_wait(a, lab, va, vd, 's93', 's92', 2, scnt='s94')
    def hook(a):
        if not DIAG[0]: return
        a.salu('s_lshl_b32', 's88', s(C.sH), 2); a.salu('s_add_u32', 's88', 's88', s(C.sW))
        a.salu('s_cmp_lg_u32', 's88', 0, nodst=True)
        a.ins('s_cbranch_scc1 L_nohook')
        a.ins('s_memrealtime s[90:91]'); a.ins('s_memtime s[72:73]'); a.ins('s_waitcnt lgkmcnt(0)')
        a.valu('v_mov_b32', v(C.Rq[1]), 's90'); a.valu('v_mov_b32', v(C.Rq[1] + 1), 's72')
        a.salu('s_lshl_b32', 's88', s(C.sSTEP), 3); a.salu('s_add_u32', 's88', 's88', 200 << 20)
        a.vmem('buffer_store_dwordx2', v(C.Rq[1], 2), 'off', 's[4:7]', 's88', load=False)
        a.label('L_nohook')
        a.fence()
    def chain_body(tag, safe):
        for i in range(5): a.salu('s_mov_b64', s(C.sPTR + 2 * i, 2), s(C.sPTR + 2 * i + 2, 2))
        def cpywait(a, notyet):
            if notyet is None:
                L = f'{tag}_cpe{len(a.lines)}'
                a.salu('s_cmp_eq_u32', 's88', 0, nodst=True)
                a.ins(f's_cbranch_scc1 {L}')
                a.salu('s_lshl_b32', 's89', 's73', 7); a.salu('s_add_u32', 's89', 's89', C.SY_CPY)
                a.valu('v_min_u32', 'v33', 11, 'v57'); a.valu('v_lshlrev_b32', 'v33', 2, 'v33')
                a.ins(f'buffer_load_dword v34, off, s[{DBG}:{DBG+3}], 0 offset:{D_NONCE} sc1')
                a.ins('buffer_load_dword v35, v33, s[4:7], s89 offen sc1')
                a.lines.append(L + ':')
                CPS[0] = a.vm_seq
                return
            d0 = dict(a.done)
            a.wait(vm=CPS[0])
            a.done = d0
            a.valu('v_max_u32', 'v34', 1, 'v34')
            a.valu('v_cmp_eq_u32', 'vcc', 1, 'v34')
            a.ins(f's_cbranch_vccnz {notyet}')
            a.valu('v_cmp_ne_u32', 'vcc', 'v34', 'v35')
            a.ins(f's_cbranch_vccnz {notyet}')
        def w0hook(a):
            if not safe: hook(a)
            a.salu('s_cmp_lg_u32', s(C.sSTEP), 6 * KVR - 2, nodst=True)
            a.ins(f's_cbranch_scc1 {tag}_nokv')
            if asy:
                r = C.Rq[1]
                kvaddr(a, r, 92); a.valu('v_add_u32', v(r), C.L_NON + 16, v(r))
                a.ins('s_waitcnt vmcnt(0)')
                a.ds('ds_read_b32', v(r + 1), v(r))
                a.salu('s_add_u32', 's93', s(sNONCE), Q.DONE)
                a.wait(lds='all')
                a.valu('v_cmp_ne_u32', 'vcc', 's93', v(r + 1))
                a.ins(f's_cbranch_vccz {tag}_kv1_go')
            kvwait(a, f'{tag}_kv1', Q.DONE, C.Rq[1], C.Rq[1] + 1)
            ldiag(a, 5, C.Rq[1])
            a.ins(f's_branch {tag}_w0p')
            a.label(f'{tag}_nokv')
        def kvasync(a):
            kvaddr(a, C.Rq[6], 92, 4096)
            a.salu('s_mov_b32', 'm0', C.L_NON + 16)
            a.salu('s_mov_b64', 'exec', '0xfff')
            a.ins(f'buffer_load_dword v{C.Rq[6]}, s[4:7], s92 offen sc1 lds')
            a.salu('s_mov_b64', 'exec', -1)
        spec = (6 * KVR - 3, kvasync) if asy else None
        if safe: ch = C.Chain(a, tag, spec=spec, fl='sc1', lfl='sc1', xoff=C.XOFF, d0=200, d1=200, dB=100, dZ=400, ks=1, w0hook=w0hook, spinmax=1 << 20)
        else: ch = C.Chain(a, tag, spec=spec, cpy=cpywait if cp else None, ptrace=(lambda a, j: diag(a, 16 + j)), w0hook=w0hook, spinmax=1 << 20, **kw)
        if safe: ch.load_lanes()
        arr, mode = (D_ARR2, D_GO2) if safe else (D_ARR, D_MODE)
        def st1(a):
            a.valu('v_mov_b32', 'v46', 1)
            a.salu('s_mov_b64', 'exec', 1)
            a.vmem('buffer_atomic_add', 'v46', 'off', s(DBG, 4), 0, mods=f'offset:{arr} sc0')
            a.salu('s_mov_b64', 'exec', -1)
        def st2(a):
            a.valu('v_readfirstlane_b32', 's41', 'v46')
            a.valu('v_mov_b32', 'v46', 1); a.valu('v_mov_b32', 'v47', 0)
            a.salu('s_cmp_eq_u32', 's41', 127, nodst=True)
            a.salu('s_cselect_b64', 'exec', 1, 0)
            a.vmem('buffer_atomic_cmpswap', 'v[46:47]', 'off', s(DBG, 4), 0, mods=f'offset:{mode}', load=False)
            a.salu('s_mov_b64', 'exec', -1)
        def st3(a):
            a.vmem('buffer_load_dword', 'v24', 'off', s(DBG, 4), 0, mods=f'offset:{mode} sc1')
            a.vmem('buffer_load_dword', 'v25', 'off', s(DBG, 4), 0, mods=f'offset:{D_NONCE} sc1')
            kvaddr(a, 26, 84)
            a.vmem('buffer_load_dword', 'v27', 'v26', 's[4:7]', 's84', mods='offen sc1')
        def st4(a):
            a.valu('v_readfirstlane_b32', s(sNONCE), 'v25')
            a.valu('v_readfirstlane_b32', 's85', 'v24')
            a.salu('s_add_u32', 's86', s(sNONCE), KVR)
            a.valu('v_subrev_u32', 'v27', 's86', 'v27')
            a.valu('v_cmp_lt_u32', 's[86:87]', 64, 'v27')
            a.salu('s_cmp_eq_u32', s(sNONCE), 0, nodst=True)
            a.salu('s_cselect_b64', 's[86:87]', -1, 's[86:87]')
            a.salu('s_cmp_lg_u64', 's[86:87]', 0, nodst=True)
            a.ins(f's_cbranch_scc1 {tag}_nt')
            ch.touch_kv()
            a.lines.append(f'{tag}_nt:')
        def late(a):
            q0, d0 = a.vm_seq, dict(a.done)
            get_nonce(a, 27)
            a.vm_seq, a.done = q0, d0
        ch.prologue(st1, st2, st3, st4, late)
        diag(a, 2)
        if hd: ldiag(a, 4, 26)
        a.salu('s_cmp_eq_u32', 's85', 1, nodst=True)
        a.ins(f's_cbranch_scc1 {tag}_run')
        a.salu('s_mov_b32', 's40', (1 << 24) if safe else TMO[0])
        a.label(f'{tag}_startpoll')
        a.vmem('buffer_load_dword', 'v3', 'off', s(DBG, 4), 0, mods=f'offset:{mode} sc1')
        a.wait(vm='all')
        a.valu('v_readfirstlane_b32', 's85', 'v3')
        a.salu('s_cmp_eq_u32', 's85', 1, nodst=True)
        a.ins(f's_cbranch_scc1 {tag}_run')
        if not safe:
            a.salu('s_cmp_eq_u32', 's85', 2, nodst=True)
            a.ins(f's_cbranch_scc1 {tag}_leave')
        a.ins('s_sleep 1')
        a.salu('s_sub_u32', 's40', 's40', 1)
        a.ins(f's_cbranch_scc0 {tag}_startpoll')
        if safe: a.ins('s_endpgm')
        else:
            a.valu('v_mov_b32', 'v4', 2); a.valu('v_mov_b32', 'v5', 0)
            a.salu('s_mov_b64', 'exec', 1)
            a.vmem('buffer_atomic_cmpswap', 'v[4:5]', 'off', s(DBG, 4), 0, mods=f'offset:{D_MODE}', load=False)
            a.salu('s_mov_b64', 'exec', -1)
            a.salu('s_mov_b32', 's40', 1 << 20)
            a.ins(f's_branch {tag}_startpoll')
            a.label(f'{tag}_leave')
            a.valu('v_lshrrev_b32', 'v0', 4, v(C.LH))
            a.salu('s_mov_b32', 's32', s(C.sW))
            a.ins('s_load_dwordx16 s[48:63], s[0:1], 0')
            a.ins('s_waitcnt lgkmcnt(0)')
            a.ins('s_branch L_helper')
        a.label(f'{tag}_run')
        diag(a, 3)
        a.salu('s_cmp_eq_u64', 's[86:87]', 0, nodst=True)
        a.ins(f's_cbranch_scc1 {tag}_kvok')
        kvwait(a, f'{tag}_kv0', KVR, 2, 3)
        ch.touch_kv()
        a.ins('s_waitcnt vmcnt(0)')
        a.label(f'{tag}_kvok')
        ch.loop_init()
        diag(a, 4)
        if not hd: ldiag(a, 4, 24)
        if leak: a.ins('s_memrealtime s[90:91]'); a.ins('s_waitcnt lgkmcnt(0)'); a.salu('s_mov_b32', 's101', 's90')
        if not safe and DIAG[0]: print(ch.outs, [(j[1], j[3] // 1024) for j in ch.sched])
        ch.step()
        diag(a, 5)
        ldiag(a, 6, 24)
        if leak and not safe:
            a.ins('s_memrealtime s[90:91]'); a.ins('s_waitcnt lgkmcnt(0)')
            if leak in (1, 4, 5): a.salu('s_add_u32', 's92', 's100', 20000)
            elif leak == 2: a.salu('s_add_u32', 's92', 's90', 1000)
            elif leak == 3: a.salu('s_add_u32', 's92', 's101', 20000)
            a.label('L_leak')
            a.ins('s_memrealtime s[90:91]'); a.ins('s_waitcnt lgkmcnt(0)')
            a.salu('s_sub_u32', 's93', 's92', 's90'); a.salu('s_cmp_gt_i32', 's93', 0, nodst=True)
            a.ins('s_cbranch_scc1 L_leak')
        a.ins('s_endpgm')
        ch.load_sub()
    chain_body('cf', False)
    a.label('L_chain_safe')
    a.forget()
    chain_body('cs', True)
    def mode_check(lab):
        a.salu('s_mov_b32', 's40', 4 * TMO[0])
        a.label(f'{lab}_w')
        a.vmem('buffer_load_dword', 'v250', 'off', s(DBG, 4), 0, mods=f'offset:{D_MODE} sc1')
        a.wait(vm='all')
        a.valu('v_readfirstlane_b32', 's41', 'v250')
        a.salu('s_cmp_lg_u32', 's41', 0, nodst=True)
        a.ins(f's_cbranch_scc1 {lab}_known')
        a.salu('s_sub_u32', 's40', 's40', 1)
        a.ins(f's_cbranch_scc1 {lab}_force')
        a.ins('s_sleep 2')
        a.ins(f's_branch {lab}_w')
        a.label(f'{lab}_force')
        a.valu('v_mov_b32', 'v250', 2); a.valu('v_mov_b32', 'v251', 0)
        a.salu('s_mov_b64', 'exec', 1)
        a.vmem('buffer_atomic_cmpswap', 'v[250:251]', 'off', s(DBG, 4), 0, mods=f'offset:{D_MODE}', load=False)
        a.salu('s_mov_b64', 'exec', -1)
        a.ins('s_waitcnt vmcnt(0)')
        a.salu('s_mov_b32', 's40', 4 * TMO[0])
        a.ins(f's_branch {lab}_w')
        a.label(f'{lab}_known')
    a.forget()
    a.label('L_helper')
    DV[0] = 249
    a.forget()
    a.ins('s_load_dwordx16 s[64:79], s[0:1], 64')
    a.salu('s_sub_u32', 's33', 's3', XCC[0] + 1); a.salu('s_and_b32', 's33', 's33', 3 if FX[0] else 7)
    a.label('L_pool')
    a.salu('s_lshl_b32', 's35', 's33', 2); a.salu('s_add_u32', 's35', 's35', D_POOL)
    ticket(a, 34, 's35')
    a.salu('s_mov_b32', 's36', 's33')
    a.salu('s_or_b32', 's33', 's34', 's32')
    a.salu('s_cmp_lg_u32', 's33', 0, nodst=True)
    a.ins('s_cbranch_scc1 L_helper1')
    a.ins('s_memrealtime s[90:91]'); a.ins('s_waitcnt lgkmcnt(0)')
    a.salu('s_lshl_b32', 's90', 's90', 8); a.salu('s_or_b32', 's90', 's90', 1)
    a.valu('v_mov_b32', 'v250', 's90'); a.valu('v_mov_b32', 'v251', 0)
    a.salu('s_mov_b64', 'exec', 1)
    a.vmem('buffer_atomic_cmpswap', 'v[250:251]', 'off', s(DBG, 4), 0, mods=f'offset:{D_NONCE}', load=False)
    a.salu('s_mov_b64', 'exec', -1)
    a.label('L_helper1')
    diag(a, 9)
    a.salu('s_cmp_ge_u32', 's34', 32, nodst=True)
    a.ins('s_cbranch_scc1 L_qkv_next')
    a.salu('s_cmp_ge_u32', 's36', 7, nodst=True)
    a.ins('s_cbranch_scc1 L_qkv_next')
    a.salu('s_max_u32', 's37', 's36', 4); a.salu('s_sub_u32', 's37', 's37', 4); a.salu('s_mul_i32', 's37', 's37', 6)
    a.salu('s_lshl_b32', 's38', 's36', 1); a.salu('s_add_u32', 's38', 's38', 's37')
    a.salu('s_cmp_lt_u32', 's36', 4, nodst=True); a.salu('s_cselect_b32', 's39', 2, 8)
    a.salu('s_mul_i32', 's36', 's36', 30); a.salu('s_sub_u32', 's36', 's36', 's37')
    a.salu('s_cmp_lt_u32', 's34', 's39', nodst=True)
    a.ins('s_cbranch_scc1 L_copy')
    a.salu('s_add_u32', 's36', 's36', 's34'); a.salu('s_sub_u32', 's36', 's36', 's39')
    if warm:
        a.salu('s_cmp_lg_u32', s(sNONCE), 0, nodst=True)
        a.ins('s_cbranch_scc1 L_nowm')
        a.salu('s_mul_i32', 's37', 's36', 24576)
        a.salu('s_mov_b32', 's14', 576 * 8192); a.salu('s_mov_b32', 's15', '0x20000')
        a.salu('s_mov_b32', 'm0', 155648)
        if warm == 1:
            a.valu('v_lshlrev_b32', 'v1', 7, 'v0'); a.valu('v_min_u32', 'v1', 24576 - 128, 'v1')
        else: a.valu('v_lshlrev_b32', 'v1', 4, 'v0')
        for p in [x for i, x in enumerate((58, 56, 54, 52)) if wm >> i & 1]:
            a.salu('s_mov_b64', 's[12:13]', s(p, 2))
            if warm == 1:
                a.raw('    buffer_load_dword v1, s[12:15], s37 offen lds')
            else:
                for i in range(6):
                    a.salu('s_add_u32', 's38', 's37', min(i * 4096, 21504 - 4096))
                    a.raw('    buffer_load_dwordx4 v1, s[12:15], s38 offen lds')
        a.label('L_nowm')
    a.salu('s_mul_i32', 's37', 's36', 171); a.salu('s_lshr_b32', 's37', 's37', 10)
    a.salu('s_mul_i32', 's38', 's37', 6); a.salu('s_sub_u32', 's36', 's36', 's38')
    a.salu('s_lshl_b32', 's36', 's36', 5); a.salu('s_add_u32', 's36', 's36', 's37')
    if hd:
        a.salu('s_cmp_lt_u32', 's36', 32 * hg, nodst=True); a.ins('s_cbranch_scc1 L_job')
        for i in range(hd): a.ins('s_sleep 127')
    a.ins('s_branch L_job')
    a.label('L_copy')
    if 1:
        a.salu('s_add_u32', 's36', 's38', 's34')
        a.salu('s_mul_i32', 's36', 's36', 11); a.salu('s_and_b32', 's36', 's36', 31)
        a.salu('s_cmp_ge_u32', 's36', 27 if cp else 0, nodst=True)
        a.ins('s_cbranch_scc1 L_qkv_next')
        a.salu('s_mul_i32', 's33', 's36', 57); a.salu('s_lshr_b32', 's33', 's33', 9)
        a.salu('s_mul_i32', 's37', 's33', 9); a.salu('s_sub_u32', 's37', 's36', 's37')
        a.salu('s_lshl_b32', 's36', 's37', 2); a.salu('s_add_u32', 's36', 's36', 1); a.salu('s_min_u32', 's36', 's36', 31)
        a.salu('s_lshr_b32', 's39', 's52', 8); a.salu('s_sub_u32', 's36', 's36', 's39'); a.salu('s_and_b32', 's36', 's36', 31)
        a.salu('s_lshl_b32', 's36', 's36', 8)
        a.salu('s_mov_b32', 's14', 576 * 8192); a.salu('s_mov_b32', 's15', '0x20000')
        a.valu('v_lshrrev_b32', 'v1', 4, 'v0'); a.valu('v_lshlrev_b32', 'v1', 13, 'v1'); a.valu('v_and_b32', 'v2', 15, 'v0'); a.valu('v_lshl_add_u32', 'v1', 'v2', 4, 'v1')
        a.valu('v_lshlrev_b32', 'v2', 4, 'v0')
        NR = 3 if kw.get('swn', 4) < 4 else 2
        a.salu('s_mul_i32', 's40', 's33', NR); a.salu('s_mul_i32', 's39', 's40', 192 * 256); a.salu('s_lshl_b32', 's41', 's37', 19); a.salu('s_add_u32', 's39', 's39', 's41')
        a.salu('s_add_u32', 's39', 's39', C.WS_CPY)
        for h_ in range(NR):
            a.salu('s_add_u32', 's41', 's40', h_)
            a.salu('s_cmp_lt_u32', 's41', 3, nodst=True)
            a.salu('s_cselect_b64', 's[12:13]', 's[52:53]', 's[54:55]')
            a.salu('s_cselect_b32', 's42', 0, 3)
            a.salu('s_cmp_ge_u32', 's41', 6, nodst=True); a.salu('s_cselect_b64', 's[12:13]', 's[56:57]', 's[12:13]'); a.salu('s_cselect_b32', 's42', 6, 's42')
            a.salu('s_sub_u32', 's41', 's41', 's42')
            a.salu('s_mul_i32', 's38', 's41', 192 * 8192); a.salu('s_add_u32', 's38', 's38', 's36')
            for i in range(12):
                a.vmem('buffer_load_dwordx4', v(8 + 48 * h_ + 4 * i, 4), 'v1', 's[12:15]', 's38', mods='offen')
                a.salu('s_add_u32', 's38', 's38', 16 * 8192)
        a.vmem('buffer_load_dword', 'v3', 'off', s(DBG, 4), 0, mods=f'offset:{D_NONCE} sc1')
        a.wait(vm='all')
        for i in range(12 * NR):
            a.vmem('buffer_store_dwordx4', v(8 + 4 * i, 4), 'v2', 's[4:7]', 's39', mods='offen sc1', load=False, data=v(8 + 4 * i, 4))
            a.salu('s_add_u32', 's39', 's39', 4096)
        a.valu('v_readfirstlane_b32', s(sNONCE), 'v3')
        get_nonce(a, 3)
        a.salu('s_lshl_b32', 's37', 's37', 7); a.salu('s_lshl_b32', 's36', 's33', 2); a.salu('s_add_u32', 's36', 's36', 's32')
        a.salu('s_lshl_b32', 's36', 's36', 2); a.salu('s_add_u32', 's37', 's37', 's36'); a.salu('s_add_u32', 's37', 's37', C.SY_CPY)
        a.valu('v_mov_b32', 'v3', s(sNONCE))
        a.ins('s_waitcnt vmcnt(0)')
        a.salu('s_mov_b64', 'exec', 1)
        a.vmem('buffer_store_dword', 'v3', 'off', 's[4:7]', 's37', mods='sc1', load=False)
        a.salu('s_mov_b64', 'exec', -1)
        diag(a, 44)
    a.label('L_qkv_next')
    if qp:
        a.salu('s_sub_u32', 's33', 's3', XCC[0] + 1); a.salu('s_and_b32', 's33', 's33', 3 if FX[0] else 7)
        a.salu('s_cmp_eq_u32', 's33', 7, nodst=True)
        a.ins('s_cbranch_scc1 L_qscan')
        a.label('L_qtake')
        a.salu('s_lshl_b32', 's35', 's33', 2); a.salu('s_add_u32', 's35', 's35', D_QP)
        ticket(a, 34, 's35')
        a.salu('s_mul_i32', 's36', 's33', 19); a.salu('s_add_u32', 's36', 's36', 's34')
        a.salu('s_cmp_ge_u32', 's34', 19, nodst=True); a.salu('s_cselect_b32', 's36', 128, 's36')
        a.salu('s_cmp_lt_u32', 's36', 128, nodst=True)
        a.ins('s_cbranch_scc1 L_qjob')
        a.label('L_qscan')
        scan(a, D_QP, 2)
        a.salu('s_cmp_lt_u32', 's33', 7, nodst=True)
        a.ins('s_cbranch_scc1 L_qtake')
        a.ins('s_branch L_ssm_next')
        a.label('L_qjob')
        a.salu('s_and_b32', 's37', 's36', 7); a.salu('s_lshl_b32', 's37', 's37', 4); a.salu('s_lshr_b32', 's36', 's36', 3)
        a.salu('s_add_u32', 's36', 's36', 's37'); a.salu('s_add_u32', 's36', 's36', 192)
    else:
        ticket(a, 36, D_HELP)
        a.salu('s_add_u32', 's36', 's36', 192)
        a.salu('s_cmp_ge_u32', 's36', 320, nodst=True)
        a.ins('s_cbranch_scc1 L_ssm_next')
    a.label('L_job')
    a.salu('s_and_b32', s(Q.sHh), 's36', 15); a.salu('s_lshl_b32', s(Q.sHh), s(Q.sHh), 1)
    a.salu('s_bfe_u32', s(Q.sM), 's36', '0x10004')
    a.salu('s_lshr_b32', s(Q.sSEG), 's36', 5)
    a.salu('s_mul_i32', 's33', s(Q.sM), 6); a.salu('s_add_u32', 's33', 's33', s(Q.sSEG))
    a.salu('s_add_u32', s(Q.sM), s(Q.sM), 1)
    a.salu('s_lshr_b32', 's37', 's36', 4); a.salu('s_sub_u32', 's38', 's37', 12)
    a.salu('s_cmp_ge_u32', 's36', 192, nodst=True)
    a.salu('s_cselect_b32', s(Q.sM), 0, s(Q.sM))
    a.salu('s_cselect_b32', s(Q.sSEG), 's38', s(Q.sSEG))
    a.salu('s_cselect_b32', 's33', 's37', 's33')
    a.salu('s_cselect_b32', s(Q.sSTR), 8, 6)
    def nonce_early(a):
        a.valu('v_mov_b32', 'v28', s(sNONCE))
        a.salu('s_cmp_lg_u32', s(sNONCE), 0, nodst=True)
        a.ins('s_cbranch_scc1 L_ne')
        a.ins(f'buffer_load_dword v28, off, s[{DBG}:{DBG+3}], 0 offset:{D_NONCE} sc1')
        if wl:
            a.salu('s_cmp_ge_u32', 's36', 192, nodst=True)
            a.ins('s_cbranch_scc1 L_ne')
            a.salu('s_mul_i32', 's37', 's36', 24576)
            a.salu('s_mov_b32', 's46', 576 * 8192); a.salu('s_mov_b32', 's47', '0x20000')
            a.valu('v_lshlrev_b32', 'v29', 7, 'v0'); a.valu('v_min_u32', 'v29', 24576 - 128, 'v29')
            for p in [x for i, x in enumerate((58, 56, 54, 52)) if wl >> i & 1]:
                a.salu('s_mov_b64', 's[44:45]', s(p, 2))
                a.ins('buffer_load_dword v30, v29, s[44:47], s37 offen')
        a.lines.append('L_ne:')
    Q.qkv_role(a, 'qk', 48, 52, sNONCE, 33, at=(nat, nonce_early), late=lambda a: (a.valu('v_readfirstlane_b32', s(sNONCE), 'v28'), get_nonce(a, 25), dsel(a, 8)), qw=qw, qx=qx, cop=cop)
    dsel(a, 6)
    a.salu('s_cmp_ge_u32', 's36', 64, nodst=True)
    a.ins('s_cbranch_scc1 L_qkv_next')
    a.salu('s_lshr_b32', 's33', 's36', 5)
    if xs & 8: a.ins('s_endpgm')
    Q.memkv_role(a, 'mk', sNONCE, 33, slp=msl)
    diag(a, 1)
    a.ins('s_endpgm')
    a.label('L_ssm_next')
    if xs & 1: a.ins('s_branch L_phase2')
    ticket(a, S.sD0, D_SSM)
    a.salu('s_cmp_ge_u32', s(S.sD0), 144, nodst=True)
    a.ins('s_cbranch_scc1 L_phase2')
    a.salu('s_lshl_b32', s(S.sD0), s(S.sD0), 2)
    a.forget()
    S.ssm_job(a, 'ss', 62, 76)
    diag(a, 7)
    a.ins('s_branch L_ssm_next')
    sWv, sCB = 32, 33
    a.label('L_phase2')
    a.forget()
    scan(a, D_POOL, False)
    a.salu('s_cmp_lt_u32', 's33', 7, nodst=True)
    a.ins('s_cbranch_scc1 L_pool')
    if wt > 1:
        a.salu('s_cmp_lg_u32', 's32', 0, nodst=True); a.ins('s_cbranch_scc1 L_nwb'); a.ins('buffer_wbl2 sc1'); a.ins('s_waitcnt vmcnt(0)'); a.label('L_nwb')
    get_nonce(a, 250)
    mode_check('mc2')
    a.salu('s_cmp_eq_u32', 's41', 1, nodst=True)
    a.ins('s_cbranch_scc1 L_phase2b')
    ticket(a, C.sH, D_CH2)
    a.salu('s_cmp_lt_u32', s(C.sH), 32, nodst=True)
    a.ins('s_cbranch_scc1 L_chain_safe')
    a.label('L_phase2b')
    if xs & 2: a.ins('s_branch L_done')
    if xi:
        a.salu('s_bitcmp1_b32', xi, 's3', nodst=True); a.ins('s_cbranch_scc1 L_done')
    a.salu('s_mov_b32', 's8', 's76'); a.salu('s_mov_b32', 's9', 's77')
    a.salu('s_mov_b32', 's10', 2048 * 2304); a.salu('s_mov_b32', 's11', '0x20000')
    a.salu('s_sub_u32', 's33', 's3', XCC[0] + 1); a.salu('s_and_b32', 's33', 's33', 3 if FX[0] else 7)
    a.salu('s_cmp_eq_u32', 's33', 7, nodst=True)
    a.ins('s_cbranch_scc1 L_p2scan')
    a.label('L_p2take')
    a.salu('s_lshl_b32', 's35', 's33', 2); a.salu('s_add_u32', 's35', 's35', D_P2)
    ticket(a, 34, 's35')
    a.salu('s_cmp_lt_u32', 's33', 4, nodst=True); a.salu('s_cselect_b32', 's36', 4, 6)
    a.salu('s_cmp_lt_u32', 's34', 's36', nodst=True)
    a.ins('s_cbranch_scc1 L_att0')
    a.salu('s_sub_u32', 's34', 's34', 's36')
    a.salu('s_cmp_lt_u32', 's34', 18, nodst=True)
    a.ins('s_cbranch_scc1 L_op_start')
    a.label('L_p2scan')
    scan(a, D_P2, True)
    a.salu('s_cmp_lt_u32', 's33', 7, nodst=True)
    a.ins('s_cbranch_scc1 L_p2take')
    a.ins('s_branch L_done')
    a.label('L_att0')
    a.salu('s_mul_i32', 's36', 's34', 7); a.salu('s_mul_i32', 's37', 's34', 3); a.salu('s_add_u32', 's37', 's37', 12)
    a.salu('s_cmp_lt_u32', 's34', 4, nodst=True); a.salu('s_cselect_b32', 's34', 's36', 's37')
    a.salu('s_add_u32', 's34', 's34', 's33')
    a.salu('s_cmp_ge_u32', 's34', 32, nodst=True)
    a.ins('s_cbranch_scc1 L_done')
    a.label('L_att_next')
    a.forget()
    a.salu('s_lshr_b32', s(A.sSEG), 's34', 3)
    a.salu('s_and_b32', s(A.sHh), 's34', 7)
    a.salu('s_lshl_b32', s(A.sHh), s(A.sHh), 2)
    a.salu('s_add_u32', s(A.sHh), s(A.sHh), s(sWv))
    a.salu('s_lshr_b32', 's36', s(A.sHh), 1); a.salu('s_lshl_b32', 's36', 's36', 8); a.salu('s_add_u32', 's36', 's36', Q.SY_PRG)
    a.salu('s_mul_i32', 's37', s(A.sSEG), 43); a.salu('s_lshr_b32', 's37', 's37', 8)
    a.salu('s_mul_i32', 's41', 's37', 6); a.salu('s_sub_u32', 's41', s(A.sSEG), 's41')
    a.valu('v_and_b32', 'v1', 63, 'v0')
    a.valu('v_mul_u32_u24', 'v2', 6, 'v1'); a.valu('v_add_u32', 'v2', 's41', 'v2')
    a.valu('v_mov_b32', 'v4', 's37')
    a.salu('s_and_b32', 's41', s(A.sSEG), 7); a.salu('s_add_u32', 's41', 's41', 12)
    a.salu('s_lshr_b32', 's37', s(A.sSEG), 3)
    a.valu('v_mov_b32', 'v5', 's41'); a.valu('v_mov_b32', 'v6', 's37')
    a.valu('v_cmp_lt_u32', 'vcc', 1, 'v1')
    a.valu('v_cndmask_b32', 'v2', 'v2', 'v5', 'vcc'); a.valu('v_cndmask_b32', 'v4', 'v4', 'v6', 'vcc')
    a.valu('v_lshlrev_b32', 'v2', 2, 'v2')
    a.valu('v_add3_u32', 'v4', 'v4', s(sNONCE), 1)
    prog_wait(a, 'L_aw1', 2, 3, 'v4', 's36', 4)
    def mid(a):
        a.fence()
        trace(a, 0, 34, 0)
        coarse_wait(a, A.sSEG, 199, 36)
        trace(a, 0, 34, 1)
        a.salu('s_and_b32', 's37', s(A.sSEG), 1); a.salu('s_lshl_b32', 's37', 's37', 2); a.salu('s_add_u32', 's37', 's37', 's36'); a.salu('s_add_u32', 's37', 's37', 128)
        a.salu('s_add_u32', 's41', s(A.sSEG), s(sNONCE)); a.salu('s_add_u32', 's41', 's41', 1)
        a.salu('s_lshl_b32', 's42', s(A.sHh), 7); a.salu('s_add_u32', 's42', 's42', C.SY_CHF)
        a.salu('s_cmp_ge_u32', s(A.sSEG), 62, nodst=True)
        a.salu('s_cselect_b32', 's37', 's42', 's37')
        a.salu('s_cselect_b32', 's42', 12, 8)
        a.valu('v_lshlrev_b32', 'v198', 2, 'v0'); a.valu('v_and_b32', 'v198', 's42', 'v198')
        prog_wait(a, 'L_aw2', 198, 199, 's41', 's37', ats)
        trace(a, 0, 34, 2)
    A.attn_job(a, 'at', ld_fl='sc1', st_fl='sc1', mid=mid)
    a.salu('s_lshr_b32', 's40', 's34', 1)
    a.salu('s_lshl_b32', 's40', 's40', 7)
    a.salu('s_and_b32', 's41', s(A.sHh), 7)
    a.salu('s_lshl_b32', 's41', 's41', 2)
    a.salu('s_add_u32', 's40', 's40', 's41')
    a.salu('s_add_u32', 's40', 's40', SY_ATT)
    a.valu('v_mov_b32', 'v250', s(sNONCE))
    a.salu('s_cmp_ge_u32', s(A.sSEG), 62 if nw else 99, nodst=True)
    a.ins('s_cbranch_scc1 L_afl')
    a.ins('s_waitcnt vmcnt(0)')
    a.label('L_afl')
    a.salu('s_mov_b64', 'exec', 1)
    a.vmem('buffer_store_dword', 'v250', 'off', 's[4:7]', 's40', mods='sc1', load=False)
    a.salu('s_mov_b64', 'exec', -1)
    trace(a, 0, 34, 3)
    a.salu('s_add_u32', 's34', 's34', 32)
    a.salu('s_cmp_lt_u32', 's34', 512, nodst=True)
    a.fence()
    a.ins('s_cbranch_scc1 L_att_next')
    a.ins('s_branch L_done')
    a.label('L_op_start')
    if xs & 4: a.ins('s_branch L_done')
    a.forget()
    a.salu('s_mov_b32', s(A.sSEG), 's33')
    a.salu('s_mov_b32', s(sCB), 's34')
    A.oproj_load(a, 58, sCB, sWv)
    a.salu('s_mov_b32', 's35', s(A.sSEG))
    a.label('L_op_seg')
    a.salu('s_sub_u32', 's40', 's35', 126); a.salu('s_lshr_b32', 's41', 's40', 1); a.salu('s_add_u32', 's41', 's41', 126)
    a.salu('s_and_b32', 's40', 's40', 1); a.salu('s_lshl_b32', 's40', 's40', 3); a.salu('s_lshl_b32', 's44', '0x00ff00ff', 's40')
    a.salu('s_cmp_ge_u32', 's35', 126 if hj else 999, nodst=True)
    a.salu('s_cselect_b32', s(A.sSEG), 's41', 's35'); a.salu('s_cselect_b32', 's44', 's44', -1); a.salu('s_mov_b32', 's45', 's44')
    a.salu('s_lshr_b32', 's43', s(A.sSEG), 1)
    a.salu('s_add_u32', 's43', 's43', 1)
    a.salu('s_min_u32', 's43', 's43', 63)
    a.salu('s_and_b32', 's36', s(sCB), 15); a.salu('s_lshl_b32', 's36', 's36', 8); a.salu('s_add_u32', 's36', 's36', Q.SY_PRG)
    a.salu('s_lshl_b32', 's94', s(sCB), 7); a.salu('s_add_u32', 's94', 's94', s(A.sSEG))
    trace(a, 65536, 94, 0)
    a.salu('s_cmp_ge_u32', s(A.sSEG), 120, nodst=True)
    a.ins('s_cbranch_scc1 L_nocw')
    coarse_wait(a, 43, 3, 36)
    a.label('L_nocw')
    trace(a, 65536, 94, 1)
    a.salu('s_lshr_b32', 's89', s(A.sSEG), 1)
    a.salu('s_lshl_b32', 's89', 's89', 2)
    a.salu('s_add_u32', 's89', 's89', s(sWv))
    a.salu('s_lshl_b32', 's89', 's89', 7)
    a.salu('s_add_u32', 's89', 's89', SY_ATT)
    flags_wait(a, 's89', 0, 8, 2, 3, sleep=ops)
    trace(a, 65536, 94, 2)
    A.oproj_seg(a, 'os', 8, sCB, sWv, A.sSEG, ofl='sc1' if wt else '', sMSK=44)
    trace(a, 65536, 94, 3)
    a.salu('s_add_u32', 's35', 's35', 7)
    a.salu('s_cmp_ge_u32', 's35', 130 if hj else 128, nodst=True)
    a.ins('s_cbranch_scc1 L_done')
    a.ins('s_barrier')
    a.ins('s_branch L_op_seg')
    a.label('L_done')
    diag(a, 10)
    ldiag(a, 7, 250)
    a.label('L_exit')
    a.ins('s_endpgm')
    a.raw(kd(n, 512, 256))

def build(**kw):
    hdr = open(f'/code/{NAME}.s.ref').read().split('; Override launch geometry')[0]
    a = Asm()
    a.raw(hdr.rstrip())
    a.raw('; @launch grid=(256,1,1) block=(256,1,1) lds=163840')
    a.raw('.amdgcn_target "amdgcn-amd-amdhsa--gfx950"')
    x0 = XCC[0]
    k_main(a, **kw)
    XCC[0] = x0
    return a.text()

if __name__ == '__main__':
    kw = dict(d0=70, dB=18, ks=2, pA=14, d1=68, dX=40, dZ=164, pbr=0, p1=4)
    open('one.s', 'w').write(build(**kw))
    for spec in sys.argv[1:]:
        k2 = dict((x.split('=')[0], int(x.split('=')[1])) for x in spec.split(','))
        open('one_' + spec.replace('=', '').replace(',', '_') + '.s', 'w').write(build(**{**kw, **k2}))
    XCC[0] = 9; TMO[0] = 1 << 8; FX[0] = 1
    open('one_safe.s', 'w').write(build(**kw))
    XCC[0] = 0; TMO[0] = 1 << 8; NCH[0] = 31; FX[0] = 0
    open('one_safe2.s', 'w').write(build(**kw))
    TMO[0] = 1 << 17; NCH[0] = 32
    LD[0] = 1
    open('one_l.s', 'w').write(build(**kw))
    for spec in sys.argv[1:]:
        k2 = dict((x.split('=')[0], int(x.split('=')[1])) for x in spec.split(','))
        open('one_' + spec.replace('=', '').replace(',', '_') + '_l.s', 'w').write(build(**{**kw, **k2}))
    LD[0] = 0
    DIAG[0] = 1
    for spec in sys.argv[1:]:
        k2 = dict((x.split('=')[0], int(x.split('=')[1])) for x in spec.split(','))
        open('one_' + spec.replace('=', '').replace(',', '_') + '_d.s', 'w').write(build(**{**kw, **k2}))
    open('one_d.s', 'w').write(build(**kw))
    print('ok')
```

```python
from asmfw import Asm, R

def s(i, n=1): return R(i, n, 's')
def v(i, n=1): return R(i, n, 'v')
MF32 = 'v_mfma_f32_16x16x32_bf16'
MFF = 'v_mfma_f32_16x16x4_f32'

CH = 16384
L_U = 0
L_KD = 4608
L_K0 = 7424
L_K1 = 11776
L_Y = 7424
C0 = 2064

SRD_U, SRD_P, SRD_O = 8, 12, 16
sD0, sW, sT0, sT1, sT2, sI = 20, 21, 22, 23, 24, 25
sL2E, sINV2PI = 26, 27

def ssm_job(a: Asm, tag, pB, pOUT, dg=lambda a, i: None):
    t = tag
    pU, pLA, pAI, pCR, pCI, pDT, pDS = [pB + 2 * i for i in range(7)]
    LANE, Cc, G, LB, TMP, TMP2, TMP3 = 1, 2, 3, 4, 5, 6, 7
    UR = 8
    def srd(base, p, size):
        a.salu('s_mov_b32', s(base), s(p)); a.salu('s_mov_b32', s(base + 1), s(p + 1))
        a.salu('s_mov_b32', s(base + 2), size); a.salu('s_mov_b32', s(base + 3), '0x20000')
    a.valu('v_lshrrev_b32', v(TMP), 6, 'v0')
    a.valu('v_readfirstlane_b32', s(sW), v(TMP))
    a.valu('v_and_b32', v(LANE), 63, 'v0')
    a.valu('v_and_b32', v(Cc), 15, v(LANE))
    a.valu('v_lshrrev_b32', v(G), 4, v(LANE))
    a.valu('v_lshlrev_b32', v(LB), 14, v(TMP))
    srd(SRD_U, pU, 2048 * 1152)
    srd(SRD_O, pOUT, 2048 * 2304)
    dg(a, 0)
    PR = 24
    a.salu('s_add_u32', s(sT0), s(sD0), s(sW))
    a.salu('s_lshl_b32', s(sT1), s(sT0), 8)
    a.valu('v_lshlrev_b32', v(TMP2), 3, v(Cc))
    a.valu('v_lshl_add_u32', v(TMP2), v(G), 1, v(TMP2))
    for q, p in enumerate((pLA, pAI, pCR, pCI)):
        srd(SRD_P, p, 576 * 256)
        for i in range(2):
            a.vmem('buffer_load_ushort', v(PR + i * 4 + q), v(TMP2), s(SRD_P, 4), s(sT1), mods=f'offen offset:{i*128}')
    srd(SRD_P, pDT, 1152)
    a.salu('s_lshl_b32', s(sT1), s(sT0), 1)
    tp = a.vmem('buffer_load_ushort', v(32), 'off', s(SRD_P, 4), s(sT1))
    a.valu('v_mul_u32_u24', v(TMP), 8 * 1152, 'v0')
    a.salu('s_lshl_b32', s(sT0), s(sD0), 1)
    for r in range(8):
        a.salu('s_add_u32', s(sT1), s(sT0), r * 1152)
        a.vmem('buffer_load_dwordx2', v(UR + 2 * r, 2), v(TMP), s(SRD_U, 4), s(sT1), mods='offen')
    a.salu('s_mov_b32', s(sL2E), '0x3fb8aa3b')
    a.salu('s_mov_b32', s(sINV2PI), '0x3e22f983')
    for i in range(2): a.valu('v_mov_b32', v(34 + i), 0)
    a.valu('v_lshl_add_u32', v(TMP2), v(LANE), 3, v(LB))
    a.ds('ds_write_b64', v(TMP2), v(34, 2), mods=f'offset:{L_U}')
    a.wait(vm=tp)
    dg(a, 1)
    def exp_bf16(dst, src):
        a.valu('v_lshlrev_b32', v(dst), 16, v(src))
        a.valu('v_mul_f32', v(dst), s(sL2E), v(dst))
        a.valu('v_exp_f32', v(dst), v(dst))
        a.valu('v_cvt_pk_bf16_f32', v(dst), v(dst), v(dst))
        a.valu('v_and_b32', v(dst), '0xffff0000', v(dst))
    DT = 32
    exp_bf16(DT, DT)
    a.valu('v_add_f32', v(33), v(DT), v(DT))
    for i in range(2):
        b = PR + i * 4
        exp_bf16(b, b)
        a.valu('v_mul_f32', v(b), v(b), v(DT))
        a.valu('v_mul_f32', v(b), s(sL2E), v(b))
        a.valu('v_sub_f32', v(b), 0, v(b))
        a.valu('v_lshlrev_b32', v(b + 1), 16, v(b + 1))
        a.valu('v_mul_f32', v(b + 1), v(b + 1), v(DT))
        a.valu('v_mul_f32', v(b + 1), s(sINV2PI), v(b + 1))
        for q in (2, 3):
            a.valu('v_lshlrev_b32', v(b + q), 16, v(b + q))
            a.valu('v_mul_f32', v(b + q), v(b + q), v(33))
    POS = 44
    a.valu('v_cvt_f32_u32', v(POS + 3), v(Cc))
    a.valu('v_mul_f32', v(POS), '0x41800000', v(POS + 3))
    a.valu('v_and_b32', v(TMP), 7, v(Cc))
    a.valu('v_add_u32', v(TMP), 8, v(TMP))
    a.valu('v_cvt_f32_u32', v(TMP), v(TMP))
    a.valu('v_mul_f32', v(POS + 1), '0x42000000', v(TMP))
    a.valu('v_mul_f32', v(TMP2), '0x42800000', v(TMP))
    a.valu('v_cmp_lt_u32', 'vcc', 7, v(Cc))
    a.valu('v_cndmask_b32', v(POS + 1), v(POS + 1), v(TMP2), 'vcc')
    a.valu('v_add_f32', v(TMP), '0x41000000', v(POS + 3))
    a.valu('v_mul_f32', v(POS + 2), '0x43000000', v(TMP))
    KA = 48
    for i in range(16): a.valu('v_mov_b32', v(KA + i), 0)
    ZA, ZB, CR, CI = 64, 65, 66, 67
    E = 68
    PA, PBt = 96, 108
    V = a.valu
    def sq(r1, i1, r0, i0, T):
        V('v_mul_f32', v(T), v(i0), v(i0)); V('v_add_f32', v(T + 1), v(r0), v(r0))
        V('v_fma_f32', v(r1), v(r0), v(r0), f'-v{T}'); V('v_mul_f32', v(i1), v(T + 1), v(i0))
    a.salu('s_mov_b32', s(sI), 8)
    a.fence()
    a.label(f'{t}_kg')
    a.forget()
    for kap in range(4):
        b = PR + (kap & 1) * 4
        for q, d in enumerate((ZA, ZB, CR, CI)):
            V('v_mov_b32_dpp', v(d), v(b + q), mods=f'row_newbcast:{kap >> 1} row_mask:0xf bank_mask:0xf')
        items = [(E + 6, E + 7, POS + 3, 82), (E + 2, E + 3, POS + 1, 84)]
        for re, im, pos, T in items: V('v_mul_f32', v(T), v(ZA), v(pos)); V('v_mul_f32', v(T + 1), v(ZB), v(pos))
        for re, im, pos, T in items: V('v_exp_f32', v(T), v(T)); V('v_fract_f32', v(T + 1), v(T + 1))
        for re, im, pos, T in items: V('v_cos_f32', v(re), v(T + 1)); V('v_sin_f32', v(im), v(T + 1))
        if kap >= 2:
            for q in range(4): V('v_mov_b32_dpp', v(b + q), v(b + q), mods='row_ror:2 row_mask:0xf bank_mask:0xf')
        for re, im, pos, T in items: V('v_mul_f32', v(re), v(re), v(T)); V('v_mul_f32', v(im), v(im), v(T))
        for i in range(1, 4): sq(E + 6 + 2 * i, E + 7 + 2 * i, E + 4 + 2 * i, E + 5 + 2 * i, 82)
        sq(E, E + 1, E + 12, E + 13, 82)
        sq(86, 87, E + 2, E + 3, 84); sq(E + 4, E + 5, 86, 87, 84)
        for bt in range(4): V('v_cvt_pk_bf16_f32', v(PBt + 4 * bt + kap), v(E + 6 + 2 * bt), v(E + 7 + 2 * bt))
        for tl in range(3):
            re, im = E + 2 * tl, E + 2 * tl + 1
            V('v_mul_f32', v(84), v(CI), v(im))
            V('v_mul_f32', v(85), v(CI), v(re))
            V('v_fma_f32', v(re), v(CR), v(re), '-v84')
            V('v_fma_f32', v(im), f'-v{CR}', v(im), '-v85')
            V('v_cvt_pk_bf16_f32', v(PA + 4 * tl + kap), v(re), v(im))
    for blk, (tl, bt) in enumerate(((0, 0), (1, 1), (1, 2), (2, 3))):
        d = v(KA + 4 * blk, 4)
        a.mfma(MF32, d, v(PA + 4 * tl, 4), v(PBt + 4 * bt, 4), d)
    a.salu('s_sub_u32', s(sI), s(sI), 1)
    a.salu('s_cmp_lg_u32', s(sI), 0, nodst=True)
    a.ins(f's_cbranch_scc1 {t}_kg')
    a.wait(vm='all')
    a.valu('v_mov_b32', v(36), '0x05040100'); a.valu('v_mov_b32', v(37), '0x07060302')
    a.valu('v_lshlrev_b32', v(TMP2), 4, 'v0')
    for ch in range(4):
        for j in range(4):
            a.valu('v_perm_b32', v(40 + j), v(UR + 2 * (2 * j + 1) + (ch >> 1)), v(UR + 2 * (2 * j) + (ch >> 1)), v(36 + (ch & 1)))
        a.ds('ds_write_b128', v(TMP2), v(40, 4), mods=f'offset:{ch*CH + L_U + 512}')
        a.nop(2)
    dg(a, 2)
    a.valu('v_lshlrev_b32', v(TMP), 8, v(G))
    a.valu('v_lshl_add_u32', v(TMP), v(Cc), 2, v(TMP))
    a.valu('v_add_u32', v(TMP), v(TMP), v(LB))
    for r in range(4): a.ds('ds_write_b32', v(TMP), v(KA + r), mods=f'offset:{L_KD + r*64}')
    a.valu('v_cmp_gt_u32', 'vcc', 2, v(G))
    a.salu('s_mov_b64', 'exec', 'vcc')
    for r in range(4): a.ds('ds_write_b32', v(TMP), v(KA + 4 + r), mods=f'offset:{L_KD + 1024 + r*64}')
    for r in range(4): a.ds('ds_write_b32', v(TMP), v(KA + 12 + r), mods=f'offset:{L_KD + 2048 + r*64}')
    a.salu('s_not_b64', 'exec', 'exec')
    for r in range(4): a.ds('ds_write_b32', v(TMP), v(KA + 8 + r), mods=f'offset:{L_KD + 1024 + r*64}')
    a.salu('s_mov_b32', 'exec_lo', 0); a.salu('s_mov_b32', 'exec_hi', 3)
    a.valu('v_cmp_eq_u32', 'vcc', 0, v(Cc))
    a.valu('v_cndmask_b32', v(TMP2), 0, v(KA + 12), 'vcc')
    a.ds('ds_write_b32', v(TMP), v(TMP2), mods=f'offset:{L_KD + 2048}')
    a.salu('s_mov_b64', 'exec', -1)
    a.wait(lds='all')
    a.valu('v_lshlrev_b32', v(TMP3), 1, v(LANE))
    a.valu('v_sub_u32', v(TMP3), C0 + 1, v(TMP3))
    a.valu('v_lshl_add_u32', v(64), v(LANE), 2, v(LB))
    a.valu('v_mov_b32', v(65), 641)
    a.salu('s_mov_b32', s(sI), 17)
    a.label(f'{t}_exp')
    for q in range(3):
        L, F = 66 + q, 70 + q
        a.valu('v_subrev_u32', v(L), q, v(TMP3))
        a.valu('v_cvt_f32_u32', v(F), v(L))
        a.valu('v_cvt_pk_bf16_f32', v(F), v(F), v(F))
        a.valu('v_and_b32', v(F), '0xffff', v(F))
        a.valu('v_subrev_u32', v(F), '0x4280', v(F))
        a.valu('v_cmp_gt_u32', 'vcc', 256, v(L))
        a.valu('v_cndmask_b32', v(F), v(F), v(L), 'vcc')
        a.valu('v_cmp_gt_u32', 'vcc', 2048, v(L))
        a.valu('v_cndmask_b32', v(F), v(65), v(F), 'vcc')
        a.valu('v_lshl_add_u32', v(F), v(F), 2, v(LB))
        a.ds('ds_read_b32', v(74 + q), v(F), mods=f'offset:{L_KD}')
    a.wait(lds='all')
    a.valu('v_cvt_pk_bf16_f32', v(78), v(75), v(76))
    a.valu('v_cvt_pk_bf16_f32', v(79), v(74), v(75))
    a.ds('ds_write_b32', v(64), v(78), mods=f'offset:{L_K0}')
    a.ds('ds_write_b32', v(64), v(79), mods=f'offset:{L_K1}')
    a.valu('v_subrev_u32', v(TMP3), 128, v(TMP3))
    a.valu('v_add_u32', v(64), 256, v(64))
    a.salu('s_sub_u32', s(sI), s(sI), 1)
    a.salu('s_cmp_lg_u32', s(sI), 0, nodst=True)
    a.fence()
    a.ins(f's_cbranch_scc1 {t}_exp')
    a.wait(lds='all')
    a.ins('s_barrier')
    dg(a, 3)
    AA, BA = 64, 65
    a.valu('v_and_b32', v(TMP), 1, v(Cc))
    a.valu('v_mul_u32_u24', v(AA), L_K1 - L_K0, v(TMP))
    a.valu('v_sub_u32', v(TMP), v(TMP), v(Cc))
    a.valu('v_lshl_add_u32', v(TMP), v(G), 3, v(TMP))
    a.valu('v_lshl_add_u32', v(AA), v(TMP), 1, v(AA))
    a.valu('v_add_u32', v(AA), L_K0 + 2 * (C0 - 16), v(AA))
    a.valu('v_add_u32', v(AA), v(AA), v(LB))
    a.valu('v_lshlrev_b32', v(BA), 5, v(Cc))
    a.valu('v_lshl_add_u32', v(BA), v(G), 4, v(BA))
    a.valu('v_add_u32', v(BA), L_U + 512 - 32, v(BA))
    a.valu('v_add_u32', v(BA), v(BA), v(LB))
    YA = 96
    AFR, BFR = 160, 128
    for i in range(32): a.valu('v_mov_b32', v(YA + i), 0)
    A2 = [66, 67, 68, 69]
    for q in range(4): a.valu('v_subrev_u32', v(A2[q]), 1024 * q + 512, v(AA))
    a.salu('s_mov_b32', s(sI), 8)
    a.fence()
    a.label(f'{t}_cv')
    a.forget()
    def rdA(Gp):
        o = 128 * (1 - (Gp & 1))
        a.ds('ds_read2_b32', v(AFR + 4 * Gp, 2), v(A2[Gp >> 1]), mods=f'offset0:{o} offset1:{o + 1}')
        a.ds('ds_read2_b32', v(AFR + 4 * Gp + 2, 2), v(A2[Gp >> 1]), mods=f'offset0:{o + 2} offset1:{o + 3}')
    rdA(0)
    for m in range(8): a.ds('ds_read_b128', v(BFR + 4 * m, 4), v(BA), mods=f'offset:{m * 512}')
    rdA(1)
    for Gp in range(8):
        for nt in range(Gp, 8):
            d = v(YA + 4 * nt, 4)
            a.mfma(MF32, d, v(AFR + 4 * Gp, 4), v(BFR + 4 * (nt - Gp), 4), d)
            if Gp < 2 and nt in (2, 4, 6): rdA(2 + 3 * Gp + (nt - 2) // 2)
            if Gp == 3 and nt < 7: a.valu('v_subrev_u32', v(A2[nt - 3]), 64, v(A2[nt - 3]))
            if Gp == 3 and nt == 7: a.valu('v_subrev_u32', v(BA), 64, v(BA))
    a.salu('s_sub_u32', s(sI), s(sI), 1)
    a.salu('s_cmp_lg_u32', s(sI), 0, nodst=True)
    a.ins(f's_cbranch_scc1 {t}_cv')
    a.fence()
    dg(a, 4)
    a.valu('v_lshlrev_b32', v(TMP), 6, v(Cc))
    a.valu('v_lshl_add_u32', v(TMP), v(G), 4, v(TMP))
    a.valu('v_add_u32', v(TMP), v(TMP), v(LB))
    for nt in range(8):
        a.ds('ds_write_b128', v(TMP), v(YA + 4 * nt, 4), mods=f'offset:{L_Y + nt*1024}')
    srd(SRD_P, pDS, 1152)
    a.salu('s_lshl_b32', s(sT1), s(sD0), 1)
    a.vmem('buffer_load_dwordx2', v(24, 2), 'off', s(SRD_P, 4), s(sT1))
    a.wait(vm='all', lds='all')
    a.ins('s_barrier')
    a.valu('v_lshlrev_b32', v(26), 16, v(24)); a.valu('v_and_b32', v(27), '0xffff0000', v(24))
    a.valu('v_lshlrev_b32', v(28), 16, v(25)); a.valu('v_and_b32', v(29), '0xffff0000', v(25))
    a.valu('v_lshlrev_b32', v(TMP), 5, 'v0')
    for ch in range(4):
        a.ds('ds_read_b128', v(64 + ch * 8, 4), v(TMP), mods=f'offset:{ch*CH + L_Y}')
        a.ds('ds_read_b128', v(68 + ch * 8, 4), v(TMP), mods=f'offset:{ch*CH + L_Y + 16}')
    a.wait(lds='all')
    a.valu('v_mul_u32_u24', v(TMP), 8 * 2304, 'v0')
    a.salu('s_lshl_b32', s(sT0), s(sD0), 1)
    a.salu('s_add_u32', s(sT0), s(sT0), 1152)
    for r in range(8):
        for ch in range(4):
            u = UR + 2 * r + (ch >> 1)
            if ch & 1: a.valu('v_and_b32', v(TMP2), '0xffff0000', v(u))
            else: a.valu('v_lshlrev_b32', v(TMP2), 16, v(u))
            a.valu('v_fmac_f32', v(64 + ch * 8 + r), v(TMP2), v(26 + ch))
        a.valu('v_cvt_pk_bf16_f32', v(UR + 2 * r), v(64 + r), v(72 + r))
        a.valu('v_cvt_pk_bf16_f32', v(UR + 2 * r + 1), v(80 + r), v(88 + r))
        a.salu('s_add_u32', s(sT1), s(sT0), r * 2304)
        a.vmem('buffer_store_dwordx2', v(UR + 2 * r, 2), v(TMP), s(SRD_O, 4), s(sT1), mods='offen', load=False)
```

```python
import sys
sys.path.insert(0, 'gen2')
from asmfw import Asm
import chain2 as C, qkv2 as Q, attn2 as A, ssm as S
from chain2 import s, v
from build_ct import kd
NAME = 'concat_heads__memory_aug_recurrent_mem_tr__ssm_conv_s4d__prompt'
def start(a, name):
    a.raw(f'.text\n.globl {name}\n.p2align 8\n.type {name},@function\n{name}:')
def ws_srd(a, p):
    a.salu('s_mov_b32', 's4', s(p)); a.salu('s_mov_b32', 's5', s(p + 1))
    a.salu('s_mov_b32', 's6', C.WS_SIZE); a.salu('s_mov_b32', 's7', '0x20000')

sNONCE = C.sNONCE
DBG = 96
SY_ATT = C.WS_SYNC + 65536
D_NONCE, D_HELP, D_CH, D_ARR, D_SSM, D_T2, D_ATT, D_WF, D_OP = 64, 4, 128, 132, 8, 12, 16, 20, 136
D_XF2 = 24
D_MODE, D_CH2, D_ARR2, D_GO2 = 140, 208, 212, 216
XCC = [3]
NWARM = [4]
XD = [0]
OPS = [4]
DV = [70]
HDELAY = [0]
TMO = [1 << 17]
KVR = 2
CPS = [0]
D_POOL = 32
D_P2 = 160
D_QP = 68
D_SP = 96
NCH = [32]
FX = [0]
BOFF = [48]
ATS = [3]
MSL = [4]

DIAG = [0]
IFL = ['']
def diag(a, idx, val=None):
    if not DIAG[0]: return
    a.fence()
    a.ins('s_memrealtime s[90:91]'); a.ins('s_waitcnt lgkmcnt(0)')
    if val is not None: a.salu('s_mov_b32', 's90', val)
    a.salu('s_mov_b64', 's[100:101]', 'exec'); a.salu('s_mov_b64', 'exec', 1)
    a.valu('v_mov_b32', v(DV[0]), 's90')
    a.salu('s_lshl_b32', 's91', 's2', 8); a.salu('s_add_u32', 's91', 's91', 203 << 20)
    a.vmem('buffer_store_dword', v(DV[0]), 'off', 's[4:7]', 's91', mods=f'offset:{4 * idx}', load=False)
    a.salu('s_mov_b64', 'exec', 's[100:101]')
    a.nop(2)

LD = [0]
def ldiag(a, word, vreg, op='buffer_atomic_umax'):
    if not LD[0]: return
    a.fence()
    a.ins('s_memrealtime s[90:91]'); a.ins('s_waitcnt lgkmcnt(0)')
    a.salu('s_lshl_b32', 's91', 's2', 8); a.salu('s_add_u32', 's91', 's91', 203 << 20)
    a.valu('v_mov_b32', v(vreg), 's90')
    a.valu('v_cmp_eq_u32', 'vcc', 0, 'v0' if vreg > 200 else v(C.LH))
    a.salu('s_mov_b64', 'exec', 'vcc')
    a.vmem('buffer_store_dword', v(vreg), 'off', 's[4:7]', 's91', mods=f'offset:{4 * word}', load=False)
    a.salu('s_mov_b64', 'exec', -1)
    a.nop(2)

def scan(a, base, p2):
    _tk[0] += 1
    a.valu('v_and_b32', 'v1', 63, 'v0'); a.valu('v_min_u32', 'v1', 5 if p2 in (1, 3) else 6, 'v1'); a.valu('v_lshlrev_b32', 'v2', 2, 'v1')
    a.salu('s_cmp_lg_u32', 's32', 0, nodst=True)
    a.valu('v_mov_b32', 'v251', 163832)
    a.ins(f's_cbranch_scc1 sw{_tk[0]}')
    a.vmem('buffer_load_dword', 'v3', 'v2', s(DBG, 4), 0, mods=f'offen offset:{base} sc1')
    a.valu('v_mov_b32', 'v4', (32, 26, 19, 24)[p2])
    if p2 == 2: a.valu('v_cmp_eq_u32', 'vcc', 6, 'v1'); a.valu('v_cndmask_b32', 'v4', 'v4', 14, 'vcc', mods='')
    if p2 == 1: a.valu('v_cmp_gt_u32', 'vcc', 4, 'v1'); a.valu('v_cndmask_b32', 'v4', 'v4', 27, 'vcc', mods='')
    a.wait(vm='all')
    a.valu('v_cmp_lt_u32', 'vcc', 'v3', 'v4')
    a.salu('s_ff1_i32_b64', 's40', 'vcc')
    a.valu('v_mov_b32', 'v250', 's40')
    a.ds('ds_write_b32', 'v251', 'v250')
    a.wait(lds='all')
    a.label(f'sw{_tk[0]}')
    a.ins('s_barrier')
    a.ds('ds_read_b32', 'v252', 'v251')
    a.wait(lds='all')
    a.valu('v_readfirstlane_b32', 's33', 'v252')
    a.ins('s_barrier')
    a.nop(2)

def dsel(a, idx):
    if not DIAG[0]: return
    L = f'ds{len(a.lines)}'
    a.salu('s_cmp_ge_u32', 's36', 192, nodst=True)
    a.ins(f's_cbranch_scc1 {L}')
    diag(a, idx)
    a.ins('s_memtime s[88:89]'); a.ins('s_waitcnt lgkmcnt(0)'); diag(a, idx + 40, 's88')
    a.ins(f's_branch {L}x')
    a.label(L)
    diag(a, idx + 5)
    a.label(L + 'x')

def trace(a, base, sidx, k):
    if not DIAG[0]: return
    a.fence()
    a.ins('s_memrealtime s[90:91]'); a.ins('s_waitcnt lgkmcnt(0)')
    a.salu('s_lshl_b32', 's92', s(sidx), 4); a.salu('s_add_u32', 's92', 's92', (201 << 20) + base + 4 * k)
    a.valu('v_mov_b32', 'v249', 's90')
    a.salu('s_mov_b64', 'exec', 1)
    a.vmem('buffer_store_dword', 'v249', 'off', 's[4:7]', 's92', load=False)
    a.salu('s_mov_b64', 'exec', -1)
    a.nop(2)

_tk = [0]
def get_nonce(a, vd):
    _tk[0] += 1
    L = f'gn{_tk[0]}'
    a.fence()
    a.salu('s_mov_b32', 's88', 1 << 22)
    a.label(L)
    a.salu('s_cmp_lg_u32', s(sNONCE), 0, nodst=True)
    a.ins(f's_cbranch_scc1 {L}x')
    a.vmem('buffer_load_dword', v(vd), 'off', s(DBG, 4), 0, mods=f'offset:{D_NONCE} sc1')
    a.salu('s_sub_u32', 's88', 's88', 1)
    a.ins(f's_cbranch_scc1 {L}x')
    a.ins('s_waitcnt vmcnt(0)')
    a.valu('v_readfirstlane_b32', s(sNONCE), v(vd))
    a.nop(2)
    a.ins(f's_branch {L}')
    a.label(f'{L}x')

def ticket(a, dst, off, vb=250, mid=None, nyoung=0):
    _tk[0] += 1
    L = f'tk{_tk[0]}'
    a.fence()
    a.salu('s_mov_b32', 's37', off)
    a.valu('v_mov_b32', v(vb), 1)
    a.valu('v_mov_b32', v(vb + 1), 163832)
    a.valu('v_cmp_eq_u32', 'vcc', 0, 'v0')
    a.salu('s_and_saveexec_b64', 's[38:39]', 'vcc')
    a.ins(f's_cbranch_execz {L}' + ('m' if mid else ''))
    a.vmem('buffer_atomic_add', v(vb), 'off', s(DBG, 4), 's37', mods='sc0')
    if mid:
        a.label(L + 'm')
        a.salu('s_mov_b64', 's[38:39]', 'exec')
        a.salu('s_mov_b64', 'exec', -1)
        mid()
        a.salu('s_mov_b64', 'exec', 's[38:39]')
        a.ins(f's_cbranch_execz {L}')
    a.ins(f's_waitcnt vmcnt({nyoung})'); a.done['vm'] = a.vm_seq
    a.ds('ds_write_b32', v(vb + 1), v(vb))
    a.wait(lds='all')
    a.label(L)
    a.salu('s_mov_b64', 'exec', -1)
    a.ins('s_barrier')
    a.ds('ds_read_b32', v(vb + 2), v(vb + 1))
    a.wait(lds='all')
    a.valu('v_readfirstlane_b32', s(dst), v(vb + 2))
    a.ins('s_barrier')
    a.nop(4)

def flag_store(a, soff):
    _tk[0] += 1
    a.ins('s_waitcnt vmcnt(0)')
    a.ins('s_barrier')
    a.valu('v_mov_b32', 'v250', s(sNONCE))
    a.valu('v_cmp_eq_u32', 'vcc', 0, 'v0')
    a.salu('s_and_saveexec_b64', 's[38:39]', 'vcc')
    a.ins(f's_cbranch_execz fs{_tk[0]}')
    a.vmem('buffer_store_dword', 'v250', 'off', 's[4:7]', soff, mods='sc1', load=False)
    a.label(f'fs{_tk[0]}')
    a.salu('s_mov_b64', 'exec', -1)

def flags_wait(a, soff, lo, hi, va, vd, sleep=2):
    _tk[0] += 1
    L = f'fw{_tk[0]}'
    a.fence()
    a.valu('v_mbcnt_lo_u32_b32', v(va), -1, 0)
    a.valu('v_mbcnt_hi_u32_b32', v(va), -1, v(va))
    a.valu('v_min_u32', v(va), hi - lo - 1, v(va))
    a.valu('v_lshlrev_b32', v(va), 2, v(va))
    a.salu('s_mov_b32', 's88', 1 << 22)
    a.label(L)
    a.vmem('buffer_load_dword', v(vd), v(va), 's[4:7]', soff, mods=f'offen offset:{4 * lo} sc1')
    a.salu('s_sub_u32', 's88', 's88', 1)
    a.ins(f's_cbranch_scc1 {L}x')
    a.ins('s_waitcnt vmcnt(0)')
    a.valu('v_cmp_ne_u32', 'vcc', s(sNONCE), v(vd))
    a.ins(f's_cbranch_vccz {L}x')
    a.ins(f's_sleep {sleep}')
    a.salu('s_cmp_gt_u32', 's88', (1 << 22) - BOFF[0], nodst=True)
    a.ins(f's_cbranch_scc1 {L}')
    a.ins('s_sleep 40')
    a.ins(f's_branch {L}')
    a.label(f'{L}x')

def coarse_wait(a, sseg, vd, shp):
    _tk[0] += 1
    L = f'cw{_tk[0]}'
    a.fence()
    a.salu('s_mov_b32', 's88', 1 << 16)
    a.label(L)
    a.vmem('buffer_load_dword', v(vd), 'off', 's[4:7]', s(shp), mods='offset:128 sc1')
    a.ins('s_waitcnt vmcnt(0)')
    a.valu('v_readfirstlane_b32', 's42', v(vd))
    a.salu('s_sub_u32', 's42', 's42', s(sNONCE))
    a.salu('s_cmp_gt_u32', 's42', 64, nodst=True)
    a.salu('s_cselect_b32', 's42', 0, 's42')
    a.salu('s_add_u32', 's42', 's42', 2)
    a.salu('s_cmp_ge_u32', 's42', s(sseg), nodst=True)
    a.ins(f's_cbranch_scc1 {L}x')
    a.salu('s_sub_u32', 's88', 's88', 1)
    a.ins(f's_cbranch_scc1 {L}x')
    a.salu('s_sub_u32', 's42', s(sseg), 's42')
    a.salu('s_min_u32', 's42', 's42', 6)
    a.label(f'{L}s')
    a.ins('s_sleep 24')
    a.salu('s_sub_u32', 's42', 's42', 1)
    a.salu('s_cmp_lg_u32', 's42', 0, nodst=True)
    a.ins(f's_cbranch_scc1 {L}s')
    a.ins(f's_branch {L}')
    a.label(f'{L}x')

def prog_wait(a, lab, va, vd, vneed, sbase, sleep, scnt='s40'):
    a.salu('s_mov_b32', scnt, 1 << 22)
    a.label(lab)
    a.vmem('buffer_load_dword', v(vd), v(va), 's[4:7]', sbase, mods='offen sc1')
    a.salu('s_sub_u32', scnt, scnt, 1)
    a.ins(f's_cbranch_scc1 {lab}_go')
    a.ins('s_waitcnt vmcnt(0)')
    a.valu('v_subrev_u32', v(vd), vneed, v(vd))
    a.valu('v_cmp_lt_u32', 'vcc', 64, v(vd))
    a.ins(f's_cbranch_vccz {lab}_go')
    a.ins(f's_sleep {sleep}')
    a.ins(f's_branch {lab}')
    a.label(f'{lab}_go')

def k_main(a, hd=0, hg=0, warm=0, msl=4, cp=1, wt=1, qw=9, qx=0, kvr=2, cop=0, nat=10, qp=0, wm=9, tlb=0, tsh=20, xs=0, ops=2, ats=1, leak=0, wl=9, hj=0, nw=1, asy=1, xc=None, xi=0, sm=0, qm=0, sp=1, ng=6, **kw):
    if xc is not None: XCC[0] = xc
    global KVR
    KVR = kvr
    n = NAME + '_kernel'
    DV[0] = 59
    start(a, n)
    if leak == 4: a.ins('s_memrealtime s[100:101]')
    a.salu('s_cmp_ge_u32', 's2', 256, nodst=True)
    a.ins('s_cbranch_scc1 L_exit')
    a.ins('s_load_dwordx4 s[84:87], s[0:1], 120')
    a.ins('s_load_dwordx16 s[48:63], s[0:1], 0')
    a.valu('v_lshrrev_b32', 'v1', 6, 'v0')
    a.valu('v_readfirstlane_b32', 's32', 'v1')
    a.ins('s_getreg_b32 s3, hwreg(HW_REG_XCC_ID)')
    a.salu('s_and_b32', 's3', 's3', 15)
    a.salu('s_cmp_lg_u32', 's32', 3, nodst=True)
    a.ins('s_cbranch_scc1 L_nowarm')
    a.ins('s_getpc_b64 s[44:45]')
    a.label('L_pcw')
    a.valu('v_and_b32', 'v1', 63, 'v0')
    a.valu('v_lshlrev_b32', 'v1', 7, 'v1')
    a.salu('s_cmp_lg_u32', 's3', XCC[0], nodst=True)
    a.salu('s_cselect_b32', 's33', 'L_helper-L_pcw', 0)
    a.valu('v_add_u32', 'v1', 's33', 'v1')
    for i in range(NWARM[0]):
        if i == 2: a.ins('s_cbranch_scc0 L_nowarm')
        a.valu('v_min_u32', 'v2', 'L_exit-L_pcw', 'v1')
        a.vmem('global_load_dword', v(240 + i), 'v2', 's[44:45]')
        a.valu('v_add_u32', 'v1', 8192, 'v1')
    a.label('L_nowarm')
    a.forget()
    a.ins('s_waitcnt lgkmcnt(0)')
    if leak == 5: a.ins('s_memrealtime s[100:101]')
    ws_srd(a, 86)
    a.salu('s_mov_b32', s(DBG), 's84'); a.salu('s_mov_b32', s(DBG + 1), 's85')
    a.salu('s_mov_b32', s(DBG + 2), 256); a.salu('s_mov_b32', s(DBG + 3), '0x20000')
    a.salu('s_mov_b32', s(sNONCE), 0)
    diag(a, 0)
    a.salu('s_cmp_lg_u32', 's3', XCC[0], nodst=True)
    a.ins('s_cbranch_scc1 L_helper')
    lanes = C.Chain(a, 'x', gs=kw.get('gs', 2))
    def mid():
        if tlb:
            a.salu('s_cmp_lg_u32', 's32', 0, nodst=True)
            a.ins('s_cbranch_scc1 L_notlb')
            a.valu('v_lshlrev_b32', 'v1', 21, 'v0'); a.valu('v_add_u32', 'v2', (2 << 20) - 128, 'v1')
            pages = [0, 32, 43, 44, 46, 47, 48, 60]
            m_ = sum(1 << p for p in pages)
            a.salu('s_mov_b32', 'exec_lo', m_ & 0xffffffff); a.salu('s_mov_b32', 'exec_hi', m_ >> 32)
            a.ins('buffer_load_dword v246, v2, s[4:7], 0 offen sc1')
            a.salu('s_mov_b64', 'exec', 7)
            a.salu('s_mov_b32', 's14', 576 * 8192); a.salu('s_mov_b32', 's15', '0x20000')
            if tlb > 1:
                for p in (58, 56, 54, 52):
                    a.salu('s_mov_b64', 's[12:13]', s(p, 2))
                    a.ins('buffer_load_dword v246, v1, s[12:15], 0 offen')
            a.salu('s_mov_b32', 's14', 9216); a.salu('s_mov_b64', 's[12:13]', 's[50:51]')
            a.ins('buffer_load_dword v246, v1, s[12:15], 0 offen')
            a.salu('s_mov_b64', 'exec', -1)
            a.label('L_notlb')
        lanes.load_lanes()
    ticket(a, C.sH, D_CH, mid=mid, nyoung=(0, 2, 6)[tlb])
    a.salu('s_cmp_ge_u32', s(C.sH), NCH[0], nodst=True)
    a.ins('s_cbranch_scc1 L_helper')
    a.label('L_chain')
    diag(a, 14)
    ldiag(a, 0, 250)
    if leak and leak < 4: a.ins('s_memrealtime s[100:101]'); a.ins('s_waitcnt lgkmcnt(0)')
    diag(a, 15, s(C.sH))
    if DIAG[0]:
        a.ins('s_getreg_b32 s89, hwreg(HW_REG_HW_ID)'); diag(a, 12, 's89')
    def kvaddr(a, va, sb, q=0):
        a.salu('s_lshr_b32', s(sb), s(C.sH), 1); a.salu('s_lshl_b32', s(sb), s(sb), 8); a.salu('s_add_u32', s(sb), s(sb), Q.SY_PRG + q)
        a.valu('v_bfe_u32', v(va), v(C.LH), 4, 6); a.valu('v_min_u32', v(va), 11, v(va)); a.valu('v_lshlrev_b32', v(va), 2, v(va))
    def kvwait(a, lab, need, va, vd):
        kvaddr(a, va, 92, 4096 if need == Q.DONE else 0)
        a.salu('s_add_u32', 's93', s(sNONCE), need)
        prog_wait(a, lab, va, vd, 's93', 's92', 2, scnt='s94')
    def hook(a):
        if not DIAG[0]: return
        a.salu('s_lshl_b32', 's88', s(C.sH), 2); a.salu('s_add_u32', 's88', 's88', s(C.sW))
        a.salu('s_cmp_lg_u32', 's88', 0, nodst=True)
        a.ins('s_cbranch_scc1 L_nohook')
        a.ins('s_memrealtime s[90:91]'); a.ins('s_memtime s[72:73]'); a.ins('s_waitcnt lgkmcnt(0)')
        a.valu('v_mov_b32', v(C.Rq[1]), 's90'); a.valu('v_mov_b32', v(C.Rq[1] + 1), 's72')
        a.salu('s_lshl_b32', 's88', s(C.sSTEP), 3); a.salu('s_add_u32', 's88', 's88', 200 << 20)
        a.vmem('buffer_store_dwordx2', v(C.Rq[1], 2), 'off', 's[4:7]', 's88', load=False)
        a.label('L_nohook')
        a.fence()
    def chain_body(tag, safe):
        for i in range(5): a.salu('s_mov_b64', s(C.sPTR + 2 * i, 2), s(C.sPTR + 2 * i + 2, 2))
        def cpywait(a, notyet):
            if notyet is None:
                L = f'{tag}_cpe{len(a.lines)}'
                a.salu('s_cmp_eq_u32', 's88', 0, nodst=True)
                a.ins(f's_cbranch_scc1 {L}')
                a.salu('s_lshl_b32', 's89', 's73', 7); a.salu('s_add_u32', 's89', 's89', C.SY_CPY)
                a.valu('v_min_u32', 'v33', 11, 'v57'); a.valu('v_lshlrev_b32', 'v33', 2, 'v33')
                a.ins(f'buffer_load_dword v34, off, s[{DBG}:{DBG+3}], 0 offset:{D_NONCE} sc1')
                a.ins('buffer_load_dword v35, v33, s[4:7], s89 offen sc1')
                a.lines.append(L + ':')
                CPS[0] = a.vm_seq
                return
            d0 = dict(a.done)
            a.wait(vm=CPS[0])
            a.done = d0
            a.valu('v_max_u32', 'v34', 1, 'v34')
            a.valu('v_cmp_eq_u32', 'vcc', 1, 'v34')
            a.ins(f's_cbranch_vccnz {notyet}')
            a.valu('v_cmp_ne_u32', 'vcc', 'v34', 'v35')
            a.ins(f's_cbranch_vccnz {notyet}')
        def w0hook(a):
            if not safe: hook(a)
            a.salu('s_cmp_lg_u32', s(C.sSTEP), 6 * KVR - 2, nodst=True)
            a.ins(f's_cbranch_scc1 {tag}_nokv')
            if asy:
                r = C.Rq[1]
                kvaddr(a, r, 92); a.valu('v_add_u32', v(r), C.L_NON + 16, v(r))
                a.ins('s_waitcnt vmcnt(0)')
                a.ds('ds_read_b32', v(r + 1), v(r))
                a.salu('s_add_u32', 's93', s(sNONCE), Q.DONE)
                a.wait(lds='all')
                a.valu('v_cmp_ne_u32', 'vcc', 's93', v(r + 1))
                a.ins(f's_cbranch_vccz {tag}_kv1_go')
            kvwait(a, f'{tag}_kv1', Q.DONE, C.Rq[1], C.Rq[1] + 1)
            ldiag(a, 5, C.Rq[1])
            a.ins(f's_branch {tag}_w0p')
            a.label(f'{tag}_nokv')
        def kvasync(a):
            kvaddr(a, C.Rq[6], 92, 4096)
            a.salu('s_mov_b32', 'm0', C.L_NON + 16)
            a.salu('s_mov_b64', 'exec', '0xfff')
            a.ins(f'buffer_load_dword v{C.Rq[6]}, s[4:7], s92 offen sc1 lds')
            a.salu('s_mov_b64', 'exec', -1)
        spec = (6 * KVR - 3, kvasync) if asy else None
        if safe: ch = C.Chain(a, tag, spec=spec, fl='sc1', lfl='sc1', xoff=C.XOFF, d0=200, d1=200, dB=100, dZ=400, ks=1, w0hook=w0hook, spinmax=1 << 20)
        else: ch = C.Chain(a, tag, spec=spec, cpy=cpywait if cp else None, ptrace=(lambda a, j: diag(a, 16 + j)), w0hook=w0hook, spinmax=1 << 20, **kw)
        if safe: ch.load_lanes()
        arr, mode = (D_ARR2, D_GO2) if safe else (D_ARR, D_MODE)
        def st1(a):
            a.valu('v_mov_b32', 'v46', 1)
            a.salu('s_mov_b64', 'exec', 1)
            a.vmem('buffer_atomic_add', 'v46', 'off', s(DBG, 4), 0, mods=f'offset:{arr} sc0')
            a.salu('s_mov_b64', 'exec', -1)
        def st2(a):
            a.valu('v_readfirstlane_b32', 's41', 'v46')
            a.valu('v_mov_b32', 'v46', 1); a.valu('v_mov_b32', 'v47', 0)
            a.salu('s_cmp_eq_u32', 's41', 127, nodst=True)
            a.salu('s_cselect_b64', 'exec', 1, 0)
            a.vmem('buffer_atomic_cmpswap', 'v[46:47]', 'off', s(DBG, 4), 0, mods=f'offset:{mode}', load=False)
            a.salu('s_mov_b64', 'exec', -1)
        def st3(a):
            a.vmem('buffer_load_dword', 'v24', 'off', s(DBG, 4), 0, mods=f'offset:{mode} sc1')
            a.vmem('buffer_load_dword', 'v25', 'off', s(DBG, 4), 0, mods=f'offset:{D_NONCE} sc1')
            kvaddr(a, 26, 84)
            a.vmem('buffer_load_dword', 'v27', 'v26', 's[4:7]', 's84', mods='offen sc1')
        def st4(a):
            a.valu('v_readfirstlane_b32', s(sNONCE), 'v25')
            a.valu('v_readfirstlane_b32', 's85', 'v24')
            a.salu('s_add_u32', 's86', s(sNONCE), KVR)
            a.valu('v_subrev_u32', 'v27', 's86', 'v27')
            a.valu('v_cmp_lt_u32', 's[86:87]', 64, 'v27')
            a.salu('s_cmp_eq_u32', s(sNONCE), 0, nodst=True)
            a.salu('s_cselect_b64', 's[86:87]', -1, 's[86:87]')
            a.salu('s_cmp_lg_u64', 's[86:87]', 0, nodst=True)
            a.ins(f's_cbranch_scc1 {tag}_nt')
            ch.touch_kv()
            a.lines.append(f'{tag}_nt:')
        def late(a):
            q0, d0 = a.vm_seq, dict(a.done)
            get_nonce(a, 27)
            a.vm_seq, a.done = q0, d0
        ch.prologue(st1, st2, st3, st4, late)
        diag(a, 2)
        if hd: ldiag(a, 4, 26)
        a.salu('s_cmp_eq_u32', 's85', 1, nodst=True)
        a.ins(f's_cbranch_scc1 {tag}_run')
        a.salu('s_mov_b32', 's40', (1 << 24) if safe else TMO[0])
        a.label(f'{tag}_startpoll')
        a.vmem('buffer_load_dword', 'v3', 'off', s(DBG, 4), 0, mods=f'offset:{mode} sc1')
        a.wait(vm='all')
        a.valu('v_readfirstlane_b32', 's85', 'v3')
        a.salu('s_cmp_eq_u32', 's85', 1, nodst=True)
        a.ins(f's_cbranch_scc1 {tag}_run')
        if not safe:
            a.salu('s_cmp_eq_u32', 's85', 2, nodst=True)
            a.ins(f's_cbranch_scc1 {tag}_leave')
        a.ins('s_sleep 1')
        a.salu('s_sub_u32', 's40', 's40', 1)
        a.ins(f's_cbranch_scc0 {tag}_startpoll')
        if safe: a.ins('s_endpgm')
        else:
            a.valu('v_mov_b32', 'v4', 2); a.valu('v_mov_b32', 'v5', 0)
            a.salu('s_mov_b64', 'exec', 1)
            a.vmem('buffer_atomic_cmpswap', 'v[4:5]', 'off', s(DBG, 4), 0, mods=f'offset:{D_MODE}', load=False)
            a.salu('s_mov_b64', 'exec', -1)
            a.salu('s_mov_b32', 's40', 1 << 20)
            a.ins(f's_branch {tag}_startpoll')
            a.label(f'{tag}_leave')
            a.valu('v_lshrrev_b32', 'v0', 4, v(C.LH))
            a.salu('s_mov_b32', 's32', s(C.sW))
            a.ins('s_load_dwordx16 s[48:63], s[0:1], 0')
            a.ins('s_waitcnt lgkmcnt(0)')
            a.ins('s_branch L_helper')
        a.label(f'{tag}_run')
        diag(a, 3)
        a.salu('s_cmp_eq_u64', 's[86:87]', 0, nodst=True)
        a.ins(f's_cbranch_scc1 {tag}_kvok')
        kvwait(a, f'{tag}_kv0', KVR, 2, 3)
        ch.touch_kv()
        a.ins('s_waitcnt vmcnt(0)')
        a.label(f'{tag}_kvok')
        ch.loop_init()
        diag(a, 4)
        if not hd: ldiag(a, 4, 24)
        if leak: a.ins('s_memrealtime s[90:91]'); a.ins('s_waitcnt lgkmcnt(0)'); a.salu('s_mov_b32', 's101', 's90')
        if not safe and DIAG[0]: print(ch.outs, [(j[1], j[3] // 1024) for j in ch.sched])
        ch.step()
        diag(a, 5)
        ldiag(a, 6, 24)
        if leak and not safe:
            a.ins('s_memrealtime s[90:91]'); a.ins('s_waitcnt lgkmcnt(0)')
            if leak in (1, 4, 5): a.salu('s_add_u32', 's92', 's100', 20000)
            elif leak == 2: a.salu('s_add_u32', 's92', 's90', 1000)
            elif leak == 3: a.salu('s_add_u32', 's92', 's101', 20000)
            a.label('L_leak')
            a.ins('s_memrealtime s[90:91]'); a.ins('s_waitcnt lgkmcnt(0)')
            a.salu('s_sub_u32', 's93', 's92', 's90'); a.salu('s_cmp_gt_i32', 's93', 0, nodst=True)
            a.ins('s_cbranch_scc1 L_leak')
        a.ins('s_endpgm')
        ch.load_sub()
    chain_body('cf', False)
    a.label('L_chain_safe')
    a.forget()
    chain_body('cs', True)
    def mode_check(lab):
        a.salu('s_mov_b32', 's40', 4 * TMO[0])
        a.label(f'{lab}_w')
        a.vmem('buffer_load_dword', 'v250', 'off', s(DBG, 4), 0, mods=f'offset:{D_MODE} sc1')
        a.wait(vm='all')
        a.valu('v_readfirstlane_b32', 's41', 'v250')
        a.salu('s_cmp_lg_u32', 's41', 0, nodst=True)
        a.ins(f's_cbranch_scc1 {lab}_known')
        a.salu('s_sub_u32', 's40', 's40', 1)
        a.ins(f's_cbranch_scc1 {lab}_force')
        a.ins('s_sleep 2')
        a.ins(f's_branch {lab}_w')
        a.label(f'{lab}_force')
        a.valu('v_mov_b32', 'v250', 2); a.valu('v_mov_b32', 'v251', 0)
        a.salu('s_mov_b64', 'exec', 1)
        a.vmem('buffer_atomic_cmpswap', 'v[250:251]', 'off', s(DBG, 4), 0, mods=f'offset:{D_MODE}', load=False)
        a.salu('s_mov_b64', 'exec', -1)
        a.ins('s_waitcnt vmcnt(0)')
        a.salu('s_mov_b32', 's40', 4 * TMO[0])
        a.ins(f's_branch {lab}_w')
        a.label(f'{lab}_known')
    a.forget()
    a.label('L_helper')
    DV[0] = 249
    a.forget()
    a.ins('s_load_dwordx16 s[64:79], s[0:1], 64')
    a.salu('s_sub_u32', 's33', 's3', XCC[0] + 1); a.salu('s_and_b32', 's33', 's33', 3 if FX[0] else 7)
    a.label('L_pool')
    a.salu('s_lshl_b32', 's35', 's33', 2); a.salu('s_add_u32', 's35', 's35', D_POOL)
    ticket(a, 34, 's35')
    a.salu('s_mov_b32', 's36', 's33')
    a.salu('s_or_b32', 's33', 's34', 's32')
    a.salu('s_cmp_lg_u32', 's33', 0, nodst=True)
    a.ins('s_cbranch_scc1 L_helper1')
    a.ins('s_memrealtime s[90:91]'); a.ins('s_waitcnt lgkmcnt(0)')
    a.salu('s_lshl_b32', 's90', 's90', 8); a.salu('s_or_b32', 's90', 's90', 1)
    a.valu('v_mov_b32', 'v250', 's90'); a.valu('v_mov_b32', 'v251', 0)
    a.salu('s_mov_b64', 'exec', 1)
    a.vmem('buffer_atomic_cmpswap', 'v[250:251]', 'off', s(DBG, 4), 0, mods=f'offset:{D_NONCE}', load=False)
    a.salu('s_mov_b64', 'exec', -1)
    a.label('L_helper1')
    diag(a, 9)
    a.salu('s_cmp_ge_u32', 's34', 32, nodst=True)
    a.ins('s_cbranch_scc1 L_qkv_next')
    a.salu('s_cmp_ge_u32', 's36', 7, nodst=True)
    a.ins('s_cbranch_scc1 L_qkv_next')
    a.salu('s_cmp_eq_u32', 's36', 6, nodst=True)
    a.salu('s_cselect_b32', 's36', 's34', 's36')
    a.ins('s_cbranch_scc1 L_job')
    a.salu('s_max_u32', 's37', 's36', 4); a.salu('s_sub_u32', 's37', 's37', 4); a.salu('s_mul_i32', 's37', 's37', 5)
    a.salu('s_mul_i32', 's38', 's36', 7); a.salu('s_sub_u32', 's38', 's38', 's37')
    a.salu('s_cmp_lt_u32', 's36', 4, nodst=True); a.salu('s_cselect_b32', 's39', 7, 2)
    a.salu('s_mul_i32', 's36', 's36', 25); a.salu('s_add_u32', 's36', 's36', 's37')
    a.salu('s_cmp_lt_u32', 's34', 's39', nodst=True)
    a.ins('s_cbranch_scc1 L_copy')
    a.salu('s_add_u32', 's36', 's36', 's34'); a.salu('s_sub_u32', 's36', 's36', 's39')
    if warm:
        a.salu('s_cmp_lg_u32', s(sNONCE), 0, nodst=True)
        a.ins('s_cbranch_scc1 L_nowm')
        a.salu('s_mul_i32', 's37', 's36', 24576)
        a.salu('s_mov_b32', 's14', 576 * 8192); a.salu('s_mov_b32', 's15', '0x20000')
        a.salu('s_mov_b32', 'm0', 155648)
        if warm == 1:
            a.valu('v_lshlrev_b32', 'v1', 7, 'v0'); a.valu('v_min_u32', 'v1', 24576 - 128, 'v1')
        else: a.valu('v_lshlrev_b32', 'v1', 4, 'v0')
        for p in [x for i, x in enumerate((58, 56, 54, 52)) if wm >> i & 1]:
            a.salu('s_mov_b64', 's[12:13]', s(p, 2))
            if warm == 1:
                a.raw('    buffer_load_dword v1, s[12:15], s37 offen lds')
            else:
                for i in range(6):
                    a.salu('s_add_u32', 's38', 's37', min(i * 4096, 21504 - 4096))
                    a.raw('    buffer_load_dwordx4 v1, s[12:15], s38 offen lds')
        a.label('L_nowm')
    a.salu('s_mul_i32', 's37', 's36', 205); a.salu('s_lshr_b32', 's37', 's37', 10)
    a.salu('s_mul_i32', 's38', 's37', 5); a.salu('s_sub_u32', 's36', 's36', 's38'); a.salu('s_add_u32', 's36', 's36', 1)
    a.salu('s_lshl_b32', 's36', 's36', 5); a.salu('s_add_u32', 's36', 's36', 's37')
    if hd:
        a.salu('s_cmp_lt_u32', 's36', 32 * hg, nodst=True); a.ins('s_cbranch_scc1 L_job')
        for i in range(hd): a.ins('s_sleep 127')
    a.ins('s_branch L_job')
    a.label('L_copy')
    if 1:
        a.salu('s_add_u32', 's36', 's38', 's34')
        a.salu('s_mul_i32', 's36', 's36', 11); a.salu('s_and_b32', 's36', 's36', 31)
        a.salu('s_cmp_ge_u32', 's36', 27 if cp else 0, nodst=True)
        a.ins('s_cbranch_scc1 L_qkv_next')
        a.salu('s_mul_i32', 's33', 's36', 57); a.salu('s_lshr_b32', 's33', 's33', 9)
        a.salu('s_mul_i32', 's37', 's33', 9); a.salu('s_sub_u32', 's37', 's36', 's37')
        a.salu('s_lshl_b32', 's36', 's37', 2); a.salu('s_add_u32', 's36', 's36', 1); a.salu('s_min_u32', 's36', 's36', 31)
        a.salu('s_lshr_b32', 's39', 's52', 8); a.salu('s_sub_u32', 's36', 's36', 's39'); a.salu('s_and_b32', 's36', 's36', 31)
        a.salu('s_lshl_b32', 's36', 's36', 8)
        a.salu('s_mov_b32', 's14', 576 * 8192); a.salu('s_mov_b32', 's15', '0x20000')
        a.valu('v_lshrrev_b32', 'v1', 4, 'v0'); a.valu('v_lshlrev_b32', 'v1', 13, 'v1'); a.valu('v_and_b32', 'v2', 15, 'v0'); a.valu('v_lshl_add_u32', 'v1', 'v2', 4, 'v1')
        a.valu('v_lshlrev_b32', 'v2', 4, 'v0')
        NR = 3 if kw.get('swn', 4) < 4 else 2
        a.salu('s_mul_i32', 's40', 's33', NR); a.salu('s_mul_i32', 's39', 's40', 192 * 256); a.salu('s_lshl_b32', 's41', 's37', 19); a.salu('s_add_u32', 's39', 's39', 's41')
        a.salu('s_add_u32', 's39', 's39', C.WS_CPY)
        for h_ in range(NR):
            a.salu('s_add_u32', 's41', 's40', h_)
            a.salu('s_cmp_lt_u32', 's41', 3, nodst=True)
            a.salu('s_cselect_b64', 's[12:13]', 's[52:53]', 's[54:55]')
            a.salu('s_cselect_b32', 's42', 0, 3)
            a.salu('s_cmp_ge_u32', 's41', 6, nodst=True); a.salu('s_cselect_b64', 's[12:13]', 's[56:57]', 's[12:13]'); a.salu('s_cselect_b32', 's42', 6, 's42')
            a.salu('s_sub_u32', 's41', 's41', 's42')
            a.salu('s_mul_i32', 's38', 's41', 192 * 8192); a.salu('s_add_u32', 's38', 's38', 's36')
            for i in range(12):
                a.vmem('buffer_load_dwordx4', v(8 + 48 * h_ + 4 * i, 4), 'v1', 's[12:15]', 's38', mods='offen')
                a.salu('s_add_u32', 's38', 's38', 16 * 8192)
        a.vmem('buffer_load_dword', 'v3', 'off', s(DBG, 4), 0, mods=f'offset:{D_NONCE} sc1')
        a.wait(vm='all')
        for i in range(12 * NR):
            a.vmem('buffer_store_dwordx4', v(8 + 4 * i, 4), 'v2', 's[4:7]', 's39', mods='offen sc1', load=False, data=v(8 + 4 * i, 4))
            a.salu('s_add_u32', 's39', 's39', 4096)
        a.valu('v_readfirstlane_b32', s(sNONCE), 'v3')
        get_nonce(a, 3)
        a.salu('s_lshl_b32', 's37', 's37', 7); a.salu('s_lshl_b32', 's36', 's33', 2); a.salu('s_add_u32', 's36', 's36', 's32')
        a.salu('s_lshl_b32', 's36', 's36', 2); a.salu('s_add_u32', 's37', 's37', 's36'); a.salu('s_add_u32', 's37', 's37', C.SY_CPY)
        a.valu('v_mov_b32', 'v3', s(sNONCE))
        a.ins('s_waitcnt vmcnt(0)')
        a.salu('s_mov_b64', 'exec', 1)
        a.vmem('buffer_store_dword', 'v3', 'off', 's[4:7]', 's37', mods='sc1', load=False)
        a.salu('s_mov_b64', 'exec', -1)
        diag(a, 44)
    a.label('L_qkv_next')
    if qm:
        a.salu('s_bitcmp0_b32', qm, 's3', nodst=True); a.ins('s_cbranch_scc1 L_ssm_next')
    if qp:
        a.salu('s_sub_u32', 's33', 's3', XCC[0] + 1); a.salu('s_and_b32', 's33', 's33', 3 if FX[0] else 7)
        a.salu('s_cmp_eq_u32', 's33', 7, nodst=True)
        a.ins('s_cbranch_scc1 L_qscan')
        a.label('L_qtake')
        a.salu('s_lshl_b32', 's35', 's33', 2); a.salu('s_add_u32', 's35', 's35', D_QP)
        ticket(a, 34, 's35')
        a.salu('s_mul_i32', 's36', 's33', 19); a.salu('s_add_u32', 's36', 's36', 's34')
        a.salu('s_cmp_ge_u32', 's34', 19, nodst=True); a.salu('s_cselect_b32', 's36', 128, 's36')
        a.salu('s_cmp_lt_u32', 's36', 128, nodst=True)
        a.ins('s_cbranch_scc1 L_qjob')
        a.label('L_qscan')
        scan(a, D_QP, 2)
        a.salu('s_cmp_lt_u32', 's33', 7, nodst=True)
        a.ins('s_cbranch_scc1 L_qtake')
        a.ins('s_branch L_ssm_next')
        a.label('L_qjob')
        a.salu('s_and_b32', 's37', 's36', 7); a.salu('s_lshl_b32', 's37', 's37', 4); a.salu('s_lshr_b32', 's36', 's36', 3)
        a.salu('s_add_u32', 's36', 's36', 's37'); a.salu('s_add_u32', 's36', 's36', 192)
    else:
        ticket(a, 36, D_HELP)
        a.salu('s_add_u32', 's36', 's36', 192)
        a.salu('s_cmp_ge_u32', 's36', 320, nodst=True)
        a.ins('s_cbranch_scc1 L_ssm_next')
    a.label('L_job')
    a.salu('s_and_b32', s(Q.sHh), 's36', 15); a.salu('s_lshl_b32', s(Q.sHh), s(Q.sHh), 1)
    a.salu('s_bfe_u32', s(Q.sM), 's36', '0x10004')
    a.salu('s_lshr_b32', s(Q.sSEG), 's36', 5)
    a.salu('s_mul_i32', 's33', s(Q.sM), 6); a.salu('s_add_u32', 's33', 's33', s(Q.sSEG))
    a.salu('s_add_u32', s(Q.sM), s(Q.sM), 1)
    a.salu('s_lshr_b32', 's37', 's36', 4); a.salu('s_sub_u32', 's38', 's37', 12)
    a.salu('s_cmp_ge_u32', 's36', 192, nodst=True)
    a.salu('s_cselect_b32', s(Q.sM), 0, s(Q.sM))
    a.salu('s_cselect_b32', s(Q.sSEG), 's38', s(Q.sSEG))
    a.salu('s_cselect_b32', 's33', 's37', 's33')
    a.salu('s_cselect_b32', s(Q.sSTR), 8, 6)
    def nonce_early(a):
        a.valu('v_mov_b32', 'v28', s(sNONCE))
        a.salu('s_cmp_lg_u32', s(sNONCE), 0, nodst=True)
        a.ins('s_cbranch_scc1 L_ne')
        a.ins(f'buffer_load_dword v28, off, s[{DBG}:{DBG+3}], 0 offset:{D_NONCE} sc1')
        if wl:
            a.salu('s_cmp_ge_u32', 's36', 192, nodst=True)
            a.ins('s_cbranch_scc1 L_ne')
            a.salu('s_mul_i32', 's37', 's36', 24576)
            a.salu('s_mov_b32', 's46', 576 * 8192); a.salu('s_mov_b32', 's47', '0x20000')
            a.valu('v_lshlrev_b32', 'v29', 7, 'v0'); a.valu('v_min_u32', 'v29', 24576 - 128, 'v29')
            for p in [x for i, x in enumerate((58, 56, 54, 52)) if wl >> i & 1]:
                a.salu('s_mov_b64', 's[44:45]', s(p, 2))
                a.ins('buffer_load_dword v30, v29, s[44:47], s37 offen')
        a.lines.append('L_ne:')
    Q.qkv_role(a, 'qk', 48, 52, sNONCE, 33, at=(nat, nonce_early), late=lambda a: (a.valu('v_readfirstlane_b32', s(sNONCE), 'v28'), get_nonce(a, 25), dsel(a, 8)), qw=qw, qx=qx, cop=cop)
    dsel(a, 6)
    a.salu('s_cmp_ge_u32', 's36', 64, nodst=True)
    a.ins('s_cbranch_scc1 L_qkv_next')
    a.salu('s_lshr_b32', 's33', 's36', 5)
    if xs & 8: a.ins('s_endpgm')
    Q.memkv_role(a, 'mk', sNONCE, 33, slp=msl)
    diag(a, 1)
    a.ins('s_endpgm')
    a.label('L_ssm_next')
    if xs & 1: a.ins('s_branch L_phase2')
    if sm:
        a.salu('s_bitcmp0_b32', sm, 's3', nodst=True); a.ins('s_cbranch_scc1 L_phase2')
    if sp:
        a.salu('s_sub_u32', 's33', 's3', XCC[0] + 1); a.salu('s_and_b32', 's33', 's33', 3 if FX[0] else 7)
        a.salu('s_cmp_ge_u32', 's33', 6, nodst=True)
        a.ins('s_cbranch_scc1 L_sscan')
        a.label('L_stake')
        a.salu('s_lshl_b32', 's35', 's33', 2); a.salu('s_add_u32', 's35', 's35', D_SP)
        ticket(a, 34, 's35')
        a.salu('s_mul_i32', s(S.sD0), 's33', 24); a.salu('s_add_u32', s(S.sD0), s(S.sD0), 's34')
        a.salu('s_cmp_lt_u32', 's34', 24, nodst=True)
        a.ins('s_cbranch_scc1 L_sjob')
        a.label('L_sscan')
        scan(a, D_SP, 3)
        a.salu('s_cmp_lt_u32', 's33', 7, nodst=True)
        a.ins('s_cbranch_scc1 L_stake')
        a.ins('s_branch L_phase2')
        a.label('L_sjob')
    else:
        ticket(a, S.sD0, D_SSM)
        a.salu('s_cmp_ge_u32', s(S.sD0), 144, nodst=True)
        a.ins('s_cbranch_scc1 L_phase2')
    a.salu('s_lshl_b32', s(S.sD0), s(S.sD0), 2)
    a.forget()
    S.ssm_job(a, 'ss', 62, 76, dg=lambda a, i: diag(a, 50 + i))
    diag(a, 7)
    a.ins('s_branch L_ssm_next')
    sWv, sCB = 32, 33
    a.label('L_phase2')
    a.forget()
    scan(a, D_POOL, False)
    a.salu('s_cmp_lt_u32', 's33', 7, nodst=True)
    a.ins('s_cbranch_scc1 L_pool')
    if wt > 1:
        a.salu('s_cmp_lg_u32', 's32', 0, nodst=True); a.ins('s_cbranch_scc1 L_nwb'); a.ins('buffer_wbl2 sc1'); a.ins('s_waitcnt vmcnt(0)'); a.label('L_nwb')
    get_nonce(a, 250)
    mode_check('mc2')
    a.salu('s_cmp_eq_u32', 's41', 1, nodst=True)
    a.ins('s_cbranch_scc1 L_phase2b')
    ticket(a, C.sH, D_CH2)
    a.salu('s_cmp_lt_u32', s(C.sH), 32, nodst=True)
    a.ins('s_cbranch_scc1 L_chain_safe')
    a.label('L_phase2b')
    diag(a, 55)
    if xs & 2: a.ins('s_branch L_done')
    if xi:
        a.salu('s_bitcmp1_b32', xi, 's3', nodst=True); a.ins('s_cbranch_scc1 L_done')
    a.salu('s_mov_b32', 's8', 's76'); a.salu('s_mov_b32', 's9', 's77')
    a.salu('s_mov_b32', 's10', 2048 * 2304); a.salu('s_mov_b32', 's11', '0x20000')
    a.salu('s_sub_u32', 's33', 's3', XCC[0] + 1); a.salu('s_and_b32', 's33', 's33', 3 if FX[0] else 7)
    a.salu('s_cmp_ge_u32', 's33', 6, nodst=True)
    a.ins('s_cbranch_scc1 L_p2scan')
    a.label('L_p2take')
    a.salu('s_lshl_b32', 's35', 's33', 2); a.salu('s_add_u32', 's35', 's35', D_P2)
    ticket(a, 34, 's35')
    a.salu('s_cmp_lt_u32', 's33', 4, nodst=True); a.salu('s_cselect_b32', 's36', 6 if ng == 7 else 9, 5 if ng == 7 else 8)
    a.salu('s_cmp_lt_u32', 's34', 's36', nodst=True)
    a.ins('s_cbranch_scc1 L_att0')
    a.salu('s_sub_u32', 's34', 's34', 's36')
    a.salu('s_cmp_ge_u32', 's34', 21 if ng == 7 else 18, nodst=True)
    a.ins('s_cbranch_scc1 L_p2scan')
    if ng == 6: a.ins('s_branch L_op_start')
    a.salu('s_mul_i32', 's36', 's33', 3); a.salu('s_add_u32', 's36', 's36', 's34'); a.salu('s_sub_u32', 's37', 's34', 3)
    a.salu('s_cmp_lt_u32', 's34', 3, nodst=True)
    a.salu('s_cselect_b32', 's34', 's36', 's37'); a.salu('s_cselect_b32', 's33', 6, 's33')
    a.ins('s_branch L_op_start')
    a.label('L_p2scan')
    scan(a, D_P2, True)
    a.salu('s_cmp_lt_u32', 's33', 7, nodst=True)
    a.ins('s_cbranch_scc1 L_p2take')
    a.ins('s_branch L_done')
    a.label('L_att0')
    a.salu('s_mul_i32', 's34', 's34', 6); a.salu('s_add_u32', 's34', 's34', 's33')
    a.salu('s_cmp_ge_u32', 's34', 32 if ng == 7 else 48, nodst=True)
    a.ins('s_cbranch_scc1 L_done')
    a.label('L_att_next')
    a.forget()
    a.salu('s_lshr_b32', s(A.sSEG), 's34', 3)
    a.salu('s_and_b32', s(A.sHh), 's34', 7)
    a.salu('s_lshl_b32', s(A.sHh), s(A.sHh), 2)
    a.salu('s_add_u32', s(A.sHh), s(A.sHh), s(sWv))
    a.salu('s_lshr_b32', 's36', s(A.sHh), 1); a.salu('s_lshl_b32', 's36', 's36', 8); a.salu('s_add_u32', 's36', 's36', Q.SY_PRG)
    a.salu('s_mul_i32', 's37', s(A.sSEG), 43); a.salu('s_lshr_b32', 's37', 's37', 8)
    a.salu('s_mul_i32', 's41', 's37', 6); a.salu('s_sub_u32', 's41', s(A.sSEG), 's41')
    a.valu('v_and_b32', 'v1', 63, 'v0')
    a.valu('v_mul_u32_u24', 'v2', 6, 'v1'); a.valu('v_add_u32', 'v2', 's41', 'v2')
    a.valu('v_mov_b32', 'v4', 's37')
    a.salu('s_and_b32', 's41', s(A.sSEG), 7); a.salu('s_add_u32', 's41', 's41', 12)
    a.salu('s_lshr_b32', 's37', s(A.sSEG), 3)
    a.valu('v_mov_b32', 'v5', 's41'); a.valu('v_mov_b32', 'v6', 's37')
    a.valu('v_cmp_lt_u32', 'vcc', 1, 'v1')
    a.valu('v_cndmask_b32', 'v2', 'v2', 'v5', 'vcc'); a.valu('v_cndmask_b32', 'v4', 'v4', 'v6', 'vcc')
    a.valu('v_lshlrev_b32', 'v2', 2, 'v2')
    a.valu('v_add3_u32', 'v4', 'v4', s(sNONCE), 1)
    prog_wait(a, 'L_aw1', 2, 3, 'v4', 's36', 4)
    def mid(a):
        a.fence()
        trace(a, 0, 34, 0)
        coarse_wait(a, A.sSEG, 199, 36)
        trace(a, 0, 34, 1)
        a.salu('s_and_b32', 's37', s(A.sSEG), 1); a.salu('s_lshl_b32', 's37', 's37', 2); a.salu('s_add_u32', 's37', 's37', 's36'); a.salu('s_add_u32', 's37', 's37', 128)
        a.salu('s_add_u32', 's41', s(A.sSEG), s(sNONCE)); a.salu('s_add_u32', 's41', 's41', 1)
        a.salu('s_lshl_b32', 's42', s(A.sHh), 7); a.salu('s_add_u32', 's42', 's42', C.SY_CHF)
        a.salu('s_cmp_ge_u32', s(A.sSEG), 62, nodst=True)
        a.salu('s_cselect_b32', 's37', 's42', 's37')
        a.salu('s_cselect_b32', 's42', 12, 8)
        a.valu('v_lshlrev_b32', 'v198', 2, 'v0'); a.valu('v_and_b32', 'v198', 's42', 'v198')
        prog_wait(a, 'L_aw2', 198, 199, 's41', 's37', ats)
        trace(a, 0, 34, 2)
    A.attn_job(a, 'at', ld_fl='sc1', st_fl='sc1', mid=mid)
    a.salu('s_lshr_b32', 's40', 's34', 1)
    a.salu('s_lshl_b32', 's40', 's40', 7)
    a.salu('s_and_b32', 's41', s(A.sHh), 7)
    a.salu('s_lshl_b32', 's41', 's41', 2)
    a.salu('s_add_u32', 's40', 's40', 's41')
    a.salu('s_add_u32', 's40', 's40', SY_ATT)
    a.valu('v_mov_b32', 'v250', s(sNONCE))
    a.salu('s_cmp_ge_u32', s(A.sSEG), 62 if nw else 99, nodst=True)
    a.ins('s_cbranch_scc1 L_afl')
    a.ins('s_waitcnt vmcnt(0)')
    a.label('L_afl')
    a.salu('s_mov_b64', 'exec', 1)
    a.vmem('buffer_store_dword', 'v250', 'off', 's[4:7]', 's40', mods='sc1', load=False)
    a.salu('s_mov_b64', 'exec', -1)
    trace(a, 0, 34, 3)
    a.salu('s_add_u32', 's34', 's34', 32 if ng == 7 else 48)
    a.salu('s_cmp_lt_u32', 's34', 512, nodst=True)
    a.fence()
    a.ins('s_cbranch_scc1 L_att_next')
    a.ins('s_branch L_done')
    a.label('L_op_start')
    if xs & 4: a.ins('s_branch L_done')
    a.forget()
    a.salu('s_mov_b32', s(A.sSEG), 's33')
    a.salu('s_mov_b32', s(sCB), 's34')
    A.oproj_load(a, 58, sCB, sWv)
    diag(a, 56)
    a.salu('s_mov_b32', 's35', s(A.sSEG))
    a.label('L_op_seg')
    a.salu('s_sub_u32', 's40', 's35', 126); a.salu('s_lshr_b32', 's41', 's40', 1); a.salu('s_add_u32', 's41', 's41', 126)
    a.salu('s_and_b32', 's40', 's40', 1); a.salu('s_lshl_b32', 's40', 's40', 3); a.salu('s_lshl_b32', 's44', '0x00ff00ff', 's40')
    a.salu('s_cmp_ge_u32', 's35', 126 if hj else 999, nodst=True)
    a.salu('s_cselect_b32', s(A.sSEG), 's41', 's35'); a.salu('s_cselect_b32', 's44', 's44', -1); a.salu('s_mov_b32', 's45', 's44')
    a.salu('s_lshr_b32', 's43', s(A.sSEG), 1)
    a.salu('s_add_u32', 's43', 's43', 1)
    a.salu('s_min_u32', 's43', 's43', 63)
    a.salu('s_and_b32', 's36', s(sCB), 15); a.salu('s_lshl_b32', 's36', 's36', 8); a.salu('s_add_u32', 's36', 's36', Q.SY_PRG)
    a.salu('s_lshl_b32', 's94', s(sCB), 7); a.salu('s_add_u32', 's94', 's94', s(A.sSEG))
    trace(a, 65536, 94, 0)
    a.salu('s_cmp_ge_u32', s(A.sSEG), 120, nodst=True)
    a.ins('s_cbranch_scc1 L_nocw')
    coarse_wait(a, 43, 3, 36)
    a.label('L_nocw')
    trace(a, 65536, 94, 1)
    a.salu('s_lshr_b32', 's89', s(A.sSEG), 1)
    a.salu('s_lshl_b32', 's89', 's89', 2)
    a.salu('s_add_u32', 's89', 's89', s(sWv))
    a.salu('s_lshl_b32', 's89', 's89', 7)
    a.salu('s_add_u32', 's89', 's89', SY_ATT)
    flags_wait(a, 's89', 0, 8, 2, 3, sleep=ops)
    trace(a, 65536, 94, 2)
    A.oproj_seg(a, 'os', 8, sCB, sWv, A.sSEG, ofl='sc1' if wt else '', sMSK=44)
    trace(a, 65536, 94, 3)
    a.salu('s_add_u32', 's35', 's35', ng)
    a.salu('s_cmp_ge_u32', 's35', 130 if hj else 128, nodst=True)
    a.ins('s_cbranch_scc1 L_done')
    a.ins('s_barrier')
    a.ins('s_branch L_op_seg')
    a.label('L_done')
    diag(a, 10)
    ldiag(a, 7, 250)
    a.label('L_exit')
    a.ins('s_endpgm')
    a.raw(kd(n, 512, 256))

def build(**kw):
    hdr = open(f'/code/{NAME}.s.ref').read().split('; Override launch geometry')[0]
    a = Asm()
    a.raw(hdr.rstrip())
    a.raw('; @launch grid=(256,1,1) block=(256,1,1) lds=163840')
    a.raw('.amdgcn_target "amdgcn-amd-amdhsa--gfx950"')
    x0 = XCC[0]
    k_main(a, **kw)
    XCC[0] = x0
    return a.text()

if __name__ == '__main__':
    kw = dict(d0=70, dB=18, ks=2, pA=14, d1=68, dX=40, dZ=164, pbr=0, p1=4)
    open('one.s', 'w').write(build(**kw))
    for spec in sys.argv[1:]:
        k2 = dict((x.split('=')[0], int(x.split('=')[1])) for x in spec.split(','))
        open('one_' + spec.replace('=', '').replace(',', '_') + '.s', 'w').write(build(**{**kw, **k2}))
    XCC[0] = 9; TMO[0] = 1 << 8; FX[0] = 1
    open('one_safe.s', 'w').write(build(**kw))
    XCC[0] = 3; TMO[0] = 1 << 8; NCH[0] = 31; FX[0] = 0
    open('one_safe2.s', 'w').write(build(**kw))
    TMO[0] = 1 << 17; NCH[0] = 32
    LD[0] = 1
    open('one_l.s', 'w').write(build(**kw))
    for spec in sys.argv[1:]:
        k2 = dict((x.split('=')[0], int(x.split('=')[1])) for x in spec.split(','))
        open('one_' + spec.replace('=', '').replace(',', '_') + '_l.s', 'w').write(build(**{**kw, **k2}))
    LD[0] = 0
    DIAG[0] = 1
    for spec in sys.argv[1:]:
        k2 = dict((x.split('=')[0], int(x.split('=')[1])) for x in spec.split(','))
        open('one_' + spec.replace('=', '').replace(',', '_') + '_d.s', 'w').write(build(**{**kw, **k2}))
    open('one_d.s', 'w').write(build(**kw))
    print('ok')
```

```python
from asmfw import Asm, R
import chain2 as C

def s(i, n=1): return R(i, n, 's')
def v(i, n=1): return R(i, n, 'v')
MF32 = 'v_mfma_f32_16x16x32_bf16'

SRD_WS, SRD_X, SRD_W = 4, 8, 12
sM, sHh, sW, sSEG, sSTR = 16, 17, 18, 19, 20
sT0, sT1, sT2 = 21, 22, 23
sSRC, sLDSW, sOUT, sBUF, sOUT1 = 24, 25, 26, 27, 28
sPRG, sRND, sT3 = 29, 30, 31
sO2, sOA, sSA, sHS = 40, 41, 42, 43
XBUF = 36864
SY_PRG = C.WS_SYNC
DONE = 63
WF = 64

def wfrag(hd, tau, k): return R(tau * 72 + k * 4, 4, 'a') if hd else v(WF + tau * 72 + k * 4, 4)

def tr_loader(a, srd, jobs, GA, TA, T1, T2, sWK, sT, bufs, mid=None, at=None):
    nb = len(bufs); tags = {}
    def issue(j):
        jobs[j][0](a)
        for p in range(4):
            a.salu('s_add_u32', 'm0', s(sWK), bufs[j % nb] + p * 1024)
            if p: a.salu('s_add_u32', s(sT), s(sT), jobs[j][1])
            else: a.nop(1)
            a.raw(f'    buffer_load_dwordx4 v{GA}, s[{srd}:{srd+3}], s{sT} offen lds'); a.pos += 1; a.vm_seq += 1
        tags[j] = a.vm_seq
    for j in range(min(nb, len(jobs))): issue(j)
    if mid: mid()
    for j in range(len(jobs)):
        a.valu('v_add_u32', v(T1), bufs[j % nb], v(TA))
        a.valu('v_xor_b32', v(T2), 32, v(T1))
        a.wait(vm=tags[j])
        for dst, alt, off in jobs[j][2]:
            a.ds('ds_read_b64_tr_b16', dst, v(T2 if alt else T1), mods=f'offset:{off}')
        a.wait(lds='all')
        if at and j == at[0]: at[1](a)
        if j + nb < len(jobs): issue(j + nb)

def qkv_role(a: Asm, tag, pX, pW, sNONCE, sGRP, late=None, qw=0, qx=0, cop=1, at=None):
    t = tag
    ACC, PK, AF = 208, 8, 32
    LANE16, VSRC, VRD, TMP, TMP2, GA, LWv, TA = 1, 2, 3, 4, 5, 6, 7, 24
    srd = s(SRD_WS, 4)
    a.valu('v_lshrrev_b32', v(TMP), 6, 'v0')
    a.valu('v_readfirstlane_b32', s(sW), v(TMP))
    a.valu('v_lshlrev_b32', v(LWv), 4, 'v0')
    a.valu('v_and_b32', v(TMP), 63, 'v0')
    a.valu('v_lshrrev_b32', v(GA), 2, v(TMP)); a.valu('v_lshlrev_b32', v(GA), 13, v(GA))
    a.valu('v_lshrrev_b32', v(TMP2), 4, v(TMP)); a.valu('v_and_b32', v(TMP2), 2, v(TMP2)); a.valu('v_xor_b32', v(TMP2), v(TMP2), v(TMP))
    a.valu('v_and_b32', v(TMP2), 3, v(TMP2)); a.valu('v_lshl_add_u32', v(GA), v(TMP2), 4, v(GA))
    a.valu('v_lshrrev_b32', v(TA), 4, v(TMP)); a.valu('v_lshlrev_b32', v(TA), 9, v(TA))
    a.valu('v_bfe_u32', v(TMP2), v(TMP), 2, 2); a.valu('v_lshl_add_u32', v(TA), v(TMP2), 6, v(TA))
    a.valu('v_bfe_u32', v(TMP2), v(TMP), 4, 1); a.valu('v_lshl_add_u32', v(TA), v(TMP2), 5, v(TA))
    a.valu('v_and_b32', v(TMP2), 3, v(TMP)); a.valu('v_lshl_add_u32', v(TA), v(TMP2), 3, v(TA))
    a.salu('s_lshl_b32', s(sT3), s(sW), 12)
    a.valu('v_add_u32', v(TA), s(sT3), v(TA))
    a.salu('s_cmp_eq_u32', s(sM), 1, nodst=True)
    a.salu('s_cselect_b64', s(SRD_W, 2), s(pW + 2, 2), s(pW, 2))
    a.salu('s_cmp_eq_u32', s(sM), 2, nodst=True)
    a.salu('s_cselect_b64', s(SRD_W, 2), s(pW + 4, 2), s(SRD_W, 2))
    a.salu('s_mov_b32', s(SRD_W + 2), 576 * 8192); a.salu('s_mov_b32', s(SRD_W + 3), '0x20000')
    a.salu('s_lshl_b32', s(sOUT1), s(sHh), 8); a.salu('s_lshl_b32', s(sT0), s(sW), 6); a.salu('s_add_u32', s(sOUT1), s(sOUT1), s(sT0))
    if cop:
        a.valu('v_lshrrev_b32', v(25), 2, 'v0'); a.valu('v_mul_u32_u24', v(25), s(sSTR), v(25)); a.valu('v_add_u32', v(25), s(sSEG), v(25))
        a.valu('v_lshlrev_b32', v(25), 13, v(25)); a.valu('v_and_b32', v(26), 3, 'v0'); a.valu('v_lshl_add_u32', v(25), v(26), 7, v(25))
        a.salu('s_lshl_b32', s(sT0), s(sHh), 8)
        a.salu('s_lshl_b32', s(sT1), s(sSTR), 19); a.salu('s_add_u32', s(sT1), s(sT1), s(sT0))
        a.ins(f'buffer_load_dword v27, v25, s[{SRD_W}:{SRD_W+3}], s{sT0} offen')
        a.ins(f'buffer_load_dword v27, v25, s[{SRD_W}:{SRD_W+3}], s{sT1} offen')
    def rest():
        a.valu('v_and_b32', v(TMP2), 15, v(TMP))
        a.valu('v_lshrrev_b32', v(VRD), 4, v(TMP))
        a.valu('v_lshrrev_b32', v(VSRC), 2, v(TMP2))
        a.valu('v_xor_b32', v(VRD), v(VRD), v(VSRC))
        a.valu('v_lshl_add_u32', v(VRD), v(TMP2), 2, v(VRD))
        a.valu('v_lshlrev_b32', v(LANE16), 4, v(VRD))
        a.valu('v_lshrrev_b32', v(TMP2), 2, v(TMP))
        a.valu('v_lshrrev_b32', v(VRD), 4, v(TMP))
        a.valu('v_and_b32', v(TMP), 3, v(TMP))
        a.valu('v_xor_b32', v(TMP), v(TMP), v(VRD))
        a.valu('v_lshlrev_b32', v(VRD), 3, v(VRD))
        a.valu('v_and_b32', v(TMP2), 3, v(TMP2))
        a.valu('v_add_u32', v(VRD), v(VRD), v(TMP2))
        a.valu('v_mul_u32_u24', v(VSRC), 1152, v(VRD))
        a.valu('v_lshl_add_u32', v(VSRC), v(TMP), 4, v(VSRC))
        a.salu('s_mov_b32', s(SRD_X), s(pX)); a.salu('s_mov_b32', s(SRD_X + 1), s(pX + 1))
        a.salu('s_mov_b32', s(SRD_X + 2), 2048 * 1152); a.salu('s_mov_b32', s(SRD_X + 3), '0x20000')
        a.salu('s_lshr_b32', s(sT1), s(sW), 1); a.salu('s_mul_i32', s(sSRC), s(sT1), 4608)
        a.salu('s_and_b32', s(sT1), s(sW), 1); a.salu('s_mul_i32', s(sT2), s(sT1), 576); a.salu('s_add_u32', s(sSRC), s(sSRC), s(sT2))
        a.salu('s_mul_i32', s(sLDSW), s(sW), 9 * 1024)
        a.salu('s_mul_i32', s(sT1), s(sSEG), 32 * 1152); a.salu('s_add_u32', s(sSRC), s(sSRC), s(sT1))
        a.salu('s_mul_i32', s(sSA), s(sSTR), 32 * 1152)
        a.salu('s_mov_b32', s(sBUF), 0)
        dma(sBUF)
        a.salu('s_lshl_b32', s(sT1), s(sSEG), 5); a.salu('s_add_u32', s(sT1), s(sT1), s(sHh))
        a.salu('s_lshl_b32', s(sOUT), s(sT1), 14)
        a.salu('s_mul_i32', s(sT2), s(sW), 3072); a.salu('s_add_u32', s(sOUT), s(sOUT), s(sT2))
        a.salu('s_lshl_b32', s(sT2), s(sM), 11); a.salu('s_add_u32', s(sOUT), s(sOUT), s(sT2))
        a.salu('s_add_u32', s(sOUT), s(sOUT), C.WS_KV - 2048)
        a.salu('s_lshl_b32', s(sT1), s(sT1), 13); a.salu('s_add_u32', s(sT1), s(sT1), C.WS_Q)
        a.salu('s_cmp_eq_u32', s(sM), 0, nodst=True)
        a.salu('s_cselect_b32', s(sOUT), s(sT1), s(sOUT))
        a.salu('s_cselect_b32', s(sO2), 4, 1); a.salu('s_cselect_b32', s(sHS), 1, 2)
        a.salu('s_lshl_b32', s(sO2), s(sO2), 10); a.salu('s_lshl_b32', s(sHS), s(sHS), 13)
        a.salu('s_lshl_b32', s(sOA), s(sHS), 5); a.salu('s_mul_i32', s(sOA), s(sOA), s(sSTR))
        a.salu('s_lshl_b32', s(sPRG), s(sHh), 7); a.salu('s_lshl_b32', s(sT1), s(sGRP), 2)
        a.salu('s_add_u32', s(sPRG), s(sPRG), s(sT1)); a.salu('s_add_u32', s(sPRG), s(sPRG), SY_PRG)
    def dma_ops(bufreg):
        ops = []
        for i in range(9):
            def f(i=i):
                if i == 0: a.salu('s_add_u32', s(sT2), s(bufreg), s(sLDSW))
                a.salu('s_add_u32', 'm0', s(sT2), i * 1024 - i * 64)
                a.nop(1)
                a.raw(f'    buffer_load_dwordx4 v{VSRC}, s[{SRD_X}:{SRD_X+3}], s{sSRC} offen offset:{i * 64} lds')
                a.pos += 1; a.vm_seq += 1
                if i == 8: a.salu('s_add_u32', s(sSRC), s(sSRC), s(sSA))
            ops.append(f)
        return ops
    def dma(bufreg):
        for f in dma_ops(bufreg): f()
    jobs = []
    for tt in range(9):
        for hd in range(2):
            def setup(a, tt=tt, hd=hd): a.salu('s_add_u32', s(sT0), s(sOUT1), tt * 64 * 8192 + hd * 256)
            rd = []
            for kk in range(2):
                for tau in range(2):
                    k_, b_ = ('a', tau * 72 + (2 * tt + kk) * 4) if hd else ('v', WF + tau * 72 + (2 * tt + kk) * 4)
                    for jp in range(2): rd.append((R(b_ + 2 * jp, 2, k_), tau, kk * 2048 + jp * 256))
            jobs.append((setup, 16 * 8192, rd))
    tr_loader(a, SRD_W, jobs, GA, TA, 25, 26, sT3, sT0, [40960 + 16384 * i for i in range(7)], mid=rest, at=at)
    a.salu('s_lshr_b32', s(sT0), s(sHh), 3); a.salu('s_cmp_eq_u32', s(sT0), 3, nodst=True); a.salu('s_cselect_b32', s(sT0), 1, s(sGRP))
    a.salu('s_cmp_lg_u32', s(sT0), 0, nodst=True)
    a.ins(f's_cbranch_scc1 {t}_noclr')
    for i in range(4): a.valu('v_mov_b32', v(8 + i), -1)
    a.valu('v_lshrrev_b32', v(25), 6, 'v0'); a.valu('v_mul_u32_u24', v(25), 12288 - 1024, v(25)); a.valu('v_add_u32', v(25), v(25), v(LWv))
    a.salu('s_lshl_b32', s(sT0), s(sHh), 9); a.salu('s_add_u32', s(sT0), s(sT0), C.WS_MEMH); a.salu('s_add_u32', s(sT1), s(sT0), 64 * 12288)
    a.label(f'{t}_clr')
    a.vmem('buffer_store_dwordx4', v(8, 4), v(25), srd, s(sT0), mods='offen sc1', load=False, data=v(8, 4))
    a.salu('s_add_u32', s(sT0), s(sT0), 4 * 12288)
    a.salu('s_cmp_lt_u32', s(sT0), s(sT1), nodst=True)
    a.ins(f's_cbranch_scc1 {t}_clr')
    a.label(f'{t}_noclr')
    a.salu('s_cmp_ge_u32', s(sGRP), 6, nodst=True)
    a.ins(f's_cbranch_scc1 {t}_noclr2')
    for i in range(4): a.valu('v_mov_b32', v(8 + i), -1)
    a.salu('s_cmp_lt_u32', s(sGRP), 4, nodst=True); a.salu('s_cselect_b32', s(sT0), 60, 54); a.salu('s_add_u32', s(sT0), s(sT0), s(sGRP))
    a.salu('s_lshl_b32', s(sT2), s(sHh), 12)
    for base, sh, extra in ((C.WS_KM, 17, 0), (C.WS_VM, 17, 0), (C.WS_O, 18, 0), (C.WS_O, 18, 131072)):
        a.salu('s_lshl_b32', s(sT1), s(sT0), sh); a.salu('s_add_u32', s(sT1), s(sT1), s(sT2)); a.salu('s_add_u32', s(sT1), s(sT1), base + extra)
        for hh in range(2):
            a.vmem('buffer_store_dwordx4', v(8, 4), v(LWv), srd, s(sT1), mods='offen sc1', load=False, data=v(8, 4))
            if hh == 0: a.salu('s_add_u32', s(sT1), s(sT1), 4096)
    a.label(f'{t}_noclr2')
    if late: late(a)
    a.ins('s_barrier')
    a.salu('s_mov_b32', s(sBUF), XBUF)
    dma(sBUF)
    a.salu('s_mov_b32', s(sBUF), 0)
    a.salu('s_mov_b32', s(sRND), s(sNONCE))
    a.salu('s_cmp_eq_u32', s(sW), 0, nodst=True)
    a.salu('s_cselect_b32', 's34', 1, 0); a.salu('s_mov_b32', 's35', 0)
    sPRV = sT3
    a.salu('s_mov_b32', s(sPRV), '0x80000000')
    VR2 = 24
    def rdA(k, base):
        for x in range(2):
            tg = a.ds('ds_read_b128', v(AF + ((k % 4) * 2 + x) * 4, 4), v(base), mods=f'offset:{(x*18+k%18)*1024}')
        return tg
    a.valu('v_mov_b32', v(VRD), v(LANE16))
    def slot(k, x): return AF + ((k % 3) * 2 + x) * 4
    def rd(k, base):
        for x in range(2): tg = a.ds('ds_read_b128', v(slot(k, x), 4), v(base), mods=f'offset:{(x*18+k%18)*1024}')
        return tg
    for k in range(2): rd(k, VRD)
    a.salu('s_cmp_eq_u32', s(sM), 2, nodst=True)
    a.ins(f's_cbranch_scc1 {t}_vloop')
    def pub(valexpr):
        a.valu('v_mov_b32', v(TMP), valexpr)
        a.salu('s_mov_b64', 'exec', 's[34:35]')
        a.vmem('buffer_store_dword', v(TMP), 'off', srd, s(sPRG), mods='sc1', load=False)
        a.salu('s_mov_b64', 'exec', -1)
    def pack(isv, hd, x, tau):
        o, hi = (tau, x) if isv else (x, tau)
        src_ = ACC + ((hd * 2 + x) * 2 + tau) * 4
        for r in range(2): a.valu('v_cvt_pk_bf16_f32', v(PK + (hd * 2 + o) * 4 + 2 * hi + r), v(src_ + 2 * r), v(src_ + 2 * r + 1))
    def store(q):
        if q == 0: a.salu('s_mov_b32', s(sOUT1), s(sPRV))
        elif q == 2: a.salu('s_add_u32', s(sOUT1), s(sPRV), s(sHS))
        else: a.salu('s_add_u32', s(sOUT1), s(sOUT1), s(sO2))
        a.vmem('buffer_store_dwordx4', v(PK + q * 4, 4), v(LWv), srd, s(sOUT1), mods='offen sc1', load=False, data=v(PK + q * 4, 4))
    for isv in (0, 1):
        L = f'{t}_vloop' if isv else f'{t}_loop'
        a.fence()
        a.label(L)
        a.forget()
        a.salu('s_add_u32', s(sT1), s(sBUF), 2 * XBUF)
        a.salu('s_sub_u32', s(sT0), s(sT1), 4 * XBUF)
        a.salu('s_cselect_b32', s(sT1), s(sT1), s(sT0))
        a.salu('s_add_u32', s(sBUF), s(sBUF), XBUF)
        a.salu('s_cmp_eq_u32', s(sBUF), 4 * XBUF, nodst=True)
        a.salu('s_cselect_b32', s(sBUF), 0, s(sBUF))
        dops = dma_ops(sT1)
        for k in range(18):
            a.ins('s_waitcnt lgkmcnt(2)')
            n = 0
            for hd in range(2):
                for x in range(2):
                    for tau in range(2):
                        acc = v(ACC + ((hd * 2 + x) * 2 + tau) * 4, 4)
                        xf = v(slot(k, x), 4); wf = wfrag(hd, tau, k)
                        if k == 0: pack(isv, hd, x, tau)
                        a.auto = False
                        if isv: a.mfma(MF32, acc, xf, wf, 0 if k == 0 else acc)
                        else: a.mfma(MF32, acc, wf, xf, 0 if k == 0 else acc)
                        a.auto = True
                        n += 1
                        if n == 1: rd(k + 2, VRD if k + 2 < 18 else VR2)
                        if n == 3 and 1 <= k <= 4: store(k - 1)
                        if n == 3 and 5 <= k <= 13: dops[k - 5]()
                        if n == 3 and k == 14: a.valu('v_add_u32', v(VR2), s(sBUF), v(LANE16))
                        if n == 6 and k == 15:
                            a.ins('s_waitcnt vmcnt(9)'); a.ins('s_barrier')
                        if n == 3 and k == 16: pub(s(sRND))
        a.valu('v_mov_b32', v(VRD), v(VR2))
        a.salu('s_mov_b32', s(sPRV), s(sOUT))
        a.salu('s_add_u32', s(sOUT), s(sOUT), s(sOA))
        a.salu('s_add_u32', s(sRND), s(sRND), 1)
        a.salu('s_add_u32', s(sSEG), s(sSEG), s(sSTR))
        a.salu('s_cmp_lt_u32', s(sSEG), 64, nodst=True)
        a.ins(f's_cbranch_scc1 {L}')
        a.fence()
        for hd in range(2):
            for x in range(2):
                for tau in range(2): pack(isv, hd, x, tau)
        if not isv: a.ins(f's_branch {t}_done')
    a.label(f'{t}_done')
    for q in range(4): store(q)
    a.ins('s_waitcnt vmcnt(0) lgkmcnt(0)')
    a.ins('s_barrier')
    a.salu('s_add_u32', s(sT1), s(sNONCE), DONE)
    pub(s(sT1))
    a.salu('s_cmp_eq_u32', s(sM), 0, nodst=True)
    a.ins(f's_cbranch_scc1 {t}_nq')
    a.salu('s_add_u32', s(sPRG), s(sPRG), 4096)
    pub(s(sT1))
    a.label(f'{t}_nq')


def memkv_role(a: Asm, tag, sNONCE, slp=4):
    t = tag
    ACC = 8
    regs = [24 + 4 * i for i in range(10)] + [208 + 4 * i for i in range(8)]
    VA, VF, TMP, TMP2, LWv = [1, 2, 3], 6, 4, 5, 7
    VP, VD, VD2, VDP = 240, 241, 242, 243
    srd = s(SRD_WS, 4)
    sS, sSRCM, sDST, sN = 19, 24, 26, 27
    a.forget()
    a.valu('v_and_b32', v(TMP), 63, 'v0')
    a.valu('v_lshrrev_b32', v(TMP2), 4, v(TMP))
    a.valu('v_bfe_u32', v(VP), v(TMP), 3, 1); a.valu('v_lshlrev_b32', v(VDP), 17, v(VP)); a.valu('v_mul_u32_u24', v(VP), 12288, v(VP))
    for b in range(3):
        a.valu('v_add_u32', v(VA[b]), 4 * b, v(TMP2))
        a.valu('v_mul_u32_u24', v(VF), 11, v(VA[b])); a.valu('v_lshrrev_b32', v(VF), 5, v(VF))
        a.valu('v_add_u32', v(VA[b]), v(VA[b]), v(VF)); a.valu('v_lshlrev_b32', v(VA[b]), 7, v(VA[b]))
        a.valu('v_and_b32', v(VF), 7, v(TMP)); a.valu('v_lshl_add_u32', v(VA[b]), v(VF), 4, v(VA[b]))
        a.valu('v_add_u32', v(VA[b]), v(VA[b]), v(VP))
    a.valu('v_min_u32', v(VF), 23, v(TMP)); a.valu('v_lshlrev_b32', v(VF), 9, v(VF))
    a.valu('v_or_b32', v(VD), 128, v(LWv)); a.valu('v_mov_b32', v(VD2), v(VD))
    a.salu('s_cmp_lg_u32', s(sM), 2, nodst=True)
    a.ins(f's_cbranch_scc1 {t}_isk')
    a.valu('v_lshrrev_b32', v(VDP), 5, v(TMP)); a.valu('v_lshlrev_b32', v(VDP), 17, v(VDP))
    a.valu('v_mov_b32', v(VD), v(LWv)); a.valu('v_xor_b32', v(VD2), 512, v(LWv))
    a.label(f'{t}_isk')
    a.valu('v_add_u32', v(VD), v(VD), v(VDP)); a.valu('v_add_u32', v(VD2), v(VD2), v(VDP))
    a.salu('s_mov_b32', s(sS), 0); a.salu('s_mov_b32', s(sN), 2)
    a.salu('s_mov_b32', s(sSRCM), C.WS_MEMH)
    a.salu('s_lshl_b32', s(sDST), s(sHh), 12)
    a.salu('s_mov_b32', s(sT0), C.WS_KM)
    a.salu('s_cmp_eq_u32', s(sM), 2, nodst=True)
    a.salu('s_cselect_b32', s(sT0), C.WS_VM, s(sT0))
    a.salu('s_add_u32', s(sDST), s(sDST), s(sT0))
    a.salu('s_lshl_b32', s(sPRG), s(sHh), 7); a.salu('s_lshl_b32', s(sT0), s(sM), 3); a.salu('s_add_u32', s(sPRG), s(sPRG), s(sT0))
    a.salu('s_add_u32', s(sPRG), s(sPRG), SY_PRG + 128 - 8)
    a.fence()
    a.label(f'{t}_loop')
    a.forget()
    a.salu('s_cmp_lg_u32', s(sS), 58, nodst=True)
    a.ins(f's_cbranch_scc1 {t}_same')
    a.salu('s_mov_b32', s(sN), 1)
    for b in range(3): a.valu('v_sub_u32', v(VA[b]), v(VA[b]), v(VP))
    a.valu('v_sub_u32', v(VD), v(VD), v(VDP)); a.valu('v_sub_u32', v(VD2), v(VD2), v(VDP))
    a.label(f'{t}_same')
    a.salu('s_cmp_lg_u32', s(sW), 0, nodst=True)
    a.ins(f's_cbranch_scc1 {t}_go')
    a.salu('s_mul_i32', s(sT2), s(sN), 12288); a.salu('s_add_u32', s(sT2), s(sT2), s(sSRCM)); a.salu('s_sub_u32', s(sT2), s(sT2), 12288)
    a.salu('s_mov_b32', s(sT0), 1 << 22)
    a.label(f'{t}_wait')
    a.vmem('buffer_load_dword', v(TMP), v(VF), srd, s(sT2), mods='offen offset:384 sc1')
    a.salu('s_sub_u32', s(sT0), s(sT0), 1)
    a.ins(f's_cbranch_scc1 {t}_go')
    a.ins('s_waitcnt vmcnt(0)')
    a.valu('v_cmp_ne_u32', 'vcc', s(sNONCE), v(TMP))
    a.ins(f's_cbranch_vccz {t}_go')
    a.ins(f's_sleep {slp}')
    a.ins(f's_branch {t}_wait')
    a.label(f'{t}_go')
    a.ins('s_barrier')
    a.salu('s_mov_b32', s(sRND), 1 << 12)
    a.label(f'{t}_again')
    a.valu('v_mov_b32', v(TMP2), 0)
    tg = []
    for k in range(18):
        if k % 6 == 0: a.salu('s_add_u32', s(sT2), s(sSRCM), (k // 6) * 4096)
        tg.append(a.vmem('buffer_load_dwordx4', v(regs[k], 4), v(VA[k % 3]), srd, s(sT2), mods=f'offen offset:{((k // 3) & 1) * 2048} sc1'))
    a.salu('s_cmp_eq_u32', s(sM), 2, nodst=True)
    a.ins(f's_cbranch_scc1 {t}_v')
    done0 = dict(a.done)
    for isv in (0, 1):
        if isv: a.label(f'{t}_v'); a.done = dict(done0)
        for k in range(18):
            a.wait(vm=tg[k])
            for hd in range(2):
                for tau in range(2):
                    acc = v(ACC + (hd * 2 + tau) * 4, 4); xf = v(regs[k], 4); wf = wfrag(hd, tau, k)
                    if isv: a.mfma(MF32, acc, xf, wf, 0 if k == 0 else acc)
                    else: a.mfma(MF32, acc, wf, xf, 0 if k == 0 else acc)
                a.valu('v_max3_u32', v(TMP2), v(TMP2), v(regs[k] + 2 * hd), v(regs[k] + 2 * hd + 1))
        if isv:
            for q4 in range(8): a.valu('v_pk_mul_f32', v(ACC + 2 * q4, 2), v(ACC + 2 * q4, 2), '0.5', mods='op_sel_hi:[1,0]')
        a.fence()
        if not isv: a.ins(f's_branch {t}_st')
    a.label(f'{t}_st')
    a.valu('v_cmp_eq_u32', 'vcc', -1, v(TMP2))
    a.salu('s_sub_u32', s(sRND), s(sRND), 1)
    a.ins(f's_cbranch_scc1 {t}_ok')
    a.ins(f's_cbranch_vccnz {t}_again')
    a.label(f'{t}_ok')
    for q4 in range(8): a.valu('v_cvt_pk_bf16_f32', v(24 + q4), v(ACC + 2 * q4), v(ACC + 2 * q4 + 1))
    a.salu('s_add_u32', s(sT0), s(sDST), 4096)
    a.vmem('buffer_store_dwordx4', v(24, 4), v(VD), srd, s(sDST), mods='offen sc1', load=False, data=v(24, 4))
    a.vmem('buffer_store_dwordx4', v(28, 4), v(VD), srd, s(sT0), mods='offen sc1', load=False, data=v(28, 4))
    a.salu('s_add_u32', s(sS), s(sS), s(sN))
    a.salu('s_cmp_eq_u32', s(sN), 1, nodst=True)
    a.ins(f's_cbranch_scc1 {t}_fl')
    a.salu('s_cmp_lg_u32', s(sM), 2, nodst=True)
    a.ins(f's_cbranch_scc1 {t}_wt')
    a.vmem('buffer_store_dwordx4', v(24, 4), v(VD2), srd, s(sDST), mods='offen sc1', load=False, data=v(24, 4))
    a.vmem('buffer_store_dwordx4', v(28, 4), v(VD2), srd, s(sT0), mods='offen sc1', load=False, data=v(28, 4))
    a.label(f'{t}_wt')
    a.ins('s_waitcnt vmcnt(0)')
    a.label(f'{t}_fl')
    a.ins('s_barrier')
    a.salu('s_add_u32', s(sT1), s(sS), s(sNONCE))
    a.valu('v_mov_b32', v(TMP), s(sT1))
    a.salu('s_mov_b64', 'exec', 's[34:35]')
    a.vmem('buffer_store_dword', v(TMP), 'off', srd, s(sPRG), mods='sc1', load=False)
    a.salu('s_mov_b64', 'exec', -1)
    a.salu('s_mul_i32', s(sT0), s(sN), 12288); a.salu('s_add_u32', s(sSRCM), s(sSRCM), s(sT0))
    a.salu('s_lshl_b32', s(sT0), s(sN), 17); a.salu('s_add_u32', s(sDST), s(sDST), s(sT0))
    a.salu('s_cmp_lt_u32', s(sS), 62, nodst=True)
    a.fence()
    a.ins(f's_cbranch_scc1 {t}_loop')
```

```python
import sys
sys.path.insert(0, 'gen2')
from asmfw import Asm
import chain2 as C, qkv2 as Q, attn2 as A, ssm as S
from chain2 import s, v
from build_ct import kd
NAME = 'concat_heads__memory_aug_recurrent_mem_tr__ssm_conv_s4d__prompt'
def start(a, name):
    a.raw(f'.text\n.globl {name}\n.p2align 8\n.type {name},@function\n{name}:')
def ws_srd(a, p):
    a.salu('s_mov_b32', 's4', s(p)); a.salu('s_mov_b32', 's5', s(p + 1))
    a.salu('s_mov_b32', 's6', C.WS_SIZE); a.salu('s_mov_b32', 's7', '0x20000')

sNONCE = C.sNONCE
DBG = 96
SY_ATT = C.WS_SYNC + 65536
D_NONCE, D_HELP, D_CH, D_ARR, D_SSM, D_T2, D_ATT, D_WF, D_OP = 64, 4, 128, 132, 8, 12, 16, 20, 136
D_XF2 = 24
D_MODE, D_CH2, D_ARR2, D_GO2 = 140, 208, 212, 216
XCC = [3]
NWARM = [4]
XD = [0]
OPS = [4]
DV = [70]
HDELAY = [0]
TMO = [1 << 17]
KVR = 2
CPS = [0]
D_POOL = 32
D_P2 = 160
D_QP = 68
D_SP = 96
NCH = [32]
FX = [0]
BOFF = [48]
ATS = [3]
MSL = [4]

DIAG = [0]
IFL = ['']
def diag(a, idx, val=None):
    if not DIAG[0]: return
    a.fence()
    a.ins('s_memrealtime s[90:91]'); a.ins('s_waitcnt lgkmcnt(0)')
    if val is not None: a.salu('s_mov_b32', 's90', val)
    a.salu('s_mov_b64', 's[100:101]', 'exec'); a.salu('s_mov_b64', 'exec', 1)
    a.valu('v_mov_b32', v(DV[0]), 's90')
    a.salu('s_lshl_b32', 's91', 's2', 8); a.salu('s_add_u32', 's91', 's91', 203 << 20)
    a.vmem('buffer_store_dword', v(DV[0]), 'off', 's[4:7]', 's91', mods=f'offset:{4 * idx}', load=False)
    a.salu('s_mov_b64', 'exec', 's[100:101]')
    a.nop(2)

LD = [0]
def ldiag(a, word, vreg, op='buffer_atomic_umax'):
    if not LD[0]: return
    a.fence()
    a.ins('s_memrealtime s[90:91]'); a.ins('s_waitcnt lgkmcnt(0)')
    a.salu('s_lshl_b32', 's91', 's2', 8); a.salu('s_add_u32', 's91', 's91', 203 << 20)
    a.valu('v_mov_b32', v(vreg), 's90')
    a.valu('v_cmp_eq_u32', 'vcc', 0, 'v0' if vreg > 200 else v(C.LH))
    a.salu('s_mov_b64', 'exec', 'vcc')
    a.vmem('buffer_store_dword', v(vreg), 'off', 's[4:7]', 's91', mods=f'offset:{4 * word}', load=False)
    a.salu('s_mov_b64', 'exec', -1)
    a.nop(2)

def scan(a, base, p2):
    _tk[0] += 1
    a.valu('v_and_b32', 'v1', 63, 'v0'); a.valu('v_min_u32', 'v1', 5 if p2 in (1, 3) else 6, 'v1'); a.valu('v_lshlrev_b32', 'v2', 2, 'v1')
    a.salu('s_cmp_lg_u32', 's32', 0, nodst=True)
    a.valu('v_mov_b32', 'v251', 163832)
    a.ins(f's_cbranch_scc1 sw{_tk[0]}')
    a.vmem('buffer_load_dword', 'v3', 'v2', s(DBG, 4), 0, mods=f'offen offset:{base} sc1')
    a.valu('v_mov_b32', 'v4', (32, 26, 19, 24)[p2])
    if p2 == 2: a.valu('v_cmp_eq_u32', 'vcc', 6, 'v1'); a.valu('v_cndmask_b32', 'v4', 'v4', 14, 'vcc', mods='')
    if p2 == 1: a.valu('v_cmp_gt_u32', 'vcc', 4, 'v1'); a.valu('v_cndmask_b32', 'v4', 'v4', 27, 'vcc', mods='')
    a.wait(vm='all')
    a.valu('v_cmp_lt_u32', 'vcc', 'v3', 'v4')
    a.salu('s_ff1_i32_b64', 's40', 'vcc')
    a.valu('v_mov_b32', 'v250', 's40')
    a.ds('ds_write_b32', 'v251', 'v250')
    a.wait(lds='all')
    a.label(f'sw{_tk[0]}')
    a.ins('s_barrier')
    a.ds('ds_read_b32', 'v252', 'v251')
    a.wait(lds='all')
    a.valu('v_readfirstlane_b32', 's33', 'v252')
    a.ins('s_barrier')
    a.nop(2)

def dsel(a, idx):
    if not DIAG[0]: return
    L = f'ds{len(a.lines)}'
    a.salu('s_cmp_ge_u32', 's36', 192, nodst=True)
    a.ins(f's_cbranch_scc1 {L}')
    diag(a, idx)
    a.ins('s_memtime s[88:89]'); a.ins('s_waitcnt lgkmcnt(0)'); diag(a, idx + 40, 's88')
    a.ins(f's_branch {L}x')
    a.label(L)
    diag(a, idx + 5)
    a.label(L + 'x')

def trace(a, base, sidx, k):
    if not DIAG[0]: return
    a.fence()
    a.ins('s_memrealtime s[90:91]'); a.ins('s_waitcnt lgkmcnt(0)')
    a.salu('s_lshl_b32', 's92', s(sidx), 4); a.salu('s_add_u32', 's92', 's92', (201 << 20) + base + 4 * k)
    a.valu('v_mov_b32', 'v249', 's90')
    a.salu('s_mov_b64', 'exec', 1)
    a.vmem('buffer_store_dword', 'v249', 'off', 's[4:7]', 's92', load=False)
    a.salu('s_mov_b64', 'exec', -1)
    a.nop(2)

_tk = [0]
def get_nonce(a, vd):
    _tk[0] += 1
    L = f'gn{_tk[0]}'
    a.fence()
    a.salu('s_mov_b32', 's88', 1 << 22)
    a.label(L)
    a.salu('s_cmp_lg_u32', s(sNONCE), 0, nodst=True)
    a.ins(f's_cbranch_scc1 {L}x')
    a.vmem('buffer_load_dword', v(vd), 'off', s(DBG, 4), 0, mods=f'offset:{D_NONCE} sc1')
    a.salu('s_sub_u32', 's88', 's88', 1)
    a.ins(f's_cbranch_scc1 {L}x')
    a.ins('s_waitcnt vmcnt(0)')
    a.valu('v_readfirstlane_b32', s(sNONCE), v(vd))
    a.nop(2)
    a.ins(f's_branch {L}')
    a.label(f'{L}x')

def ticket(a, dst, off, vb=250, mid=None, nyoung=0):
    _tk[0] += 1
    L = f'tk{_tk[0]}'
    a.fence()
    a.salu('s_mov_b32', 's37', off)
    a.valu('v_mov_b32', v(vb), 1)
    a.valu('v_mov_b32', v(vb + 1), 163832)
    a.valu('v_cmp_eq_u32', 'vcc', 0, 'v0')
    a.salu('s_and_saveexec_b64', 's[38:39]', 'vcc')
    a.ins(f's_cbranch_execz {L}' + ('m' if mid else ''))
    a.vmem('buffer_atomic_add', v(vb), 'off', s(DBG, 4), 's37', mods='sc0')
    if mid:
        a.label(L + 'm')
        a.salu('s_mov_b64', 's[38:39]', 'exec')
        a.salu('s_mov_b64', 'exec', -1)
        mid()
        a.salu('s_mov_b64', 'exec', 's[38:39]')
        a.ins(f's_cbranch_execz {L}')
    a.ins(f's_waitcnt vmcnt({nyoung})'); a.done['vm'] = a.vm_seq
    a.ds('ds_write_b32', v(vb + 1), v(vb))
    a.wait(lds='all')
    a.label(L)
    a.salu('s_mov_b64', 'exec', -1)
    a.ins('s_barrier')
    a.ds('ds_read_b32', v(vb + 2), v(vb + 1))
    a.wait(lds='all')
    a.valu('v_readfirstlane_b32', s(dst), v(vb + 2))
    a.ins('s_barrier')
    a.nop(4)

def flag_store(a, soff):
    _tk[0] += 1
    a.ins('s_waitcnt vmcnt(0)')
    a.ins('s_barrier')
    a.valu('v_mov_b32', 'v250', s(sNONCE))
    a.valu('v_cmp_eq_u32', 'vcc', 0, 'v0')
    a.salu('s_and_saveexec_b64', 's[38:39]', 'vcc')
    a.ins(f's_cbranch_execz fs{_tk[0]}')
    a.vmem('buffer_store_dword', 'v250', 'off', 's[4:7]', soff, mods='sc1', load=False)
    a.label(f'fs{_tk[0]}')
    a.salu('s_mov_b64', 'exec', -1)

def flags_wait(a, soff, lo, hi, va, vd, sleep=2):
    _tk[0] += 1
    L = f'fw{_tk[0]}'
    a.fence()
    a.valu('v_mbcnt_lo_u32_b32', v(va), -1, 0)
    a.valu('v_mbcnt_hi_u32_b32', v(va), -1, v(va))
    a.valu('v_min_u32', v(va), hi - lo - 1, v(va))
    a.valu('v_lshlrev_b32', v(va), 2, v(va))
    a.salu('s_mov_b32', 's88', 1 << 22)
    a.label(L)
    a.vmem('buffer_load_dword', v(vd), v(va), 's[4:7]', soff, mods=f'offen offset:{4 * lo} sc1')
    a.salu('s_sub_u32', 's88', 's88', 1)
    a.ins(f's_cbranch_scc1 {L}x')
    a.ins('s_waitcnt vmcnt(0)')
    a.valu('v_cmp_ne_u32', 'vcc', s(sNONCE), v(vd))
    a.ins(f's_cbranch_vccz {L}x')
    a.ins(f's_sleep {sleep}')
    a.salu('s_cmp_gt_u32', 's88', (1 << 22) - BOFF[0], nodst=True)
    a.ins(f's_cbranch_scc1 {L}')
    a.ins('s_sleep 40')
    a.ins(f's_branch {L}')
    a.label(f'{L}x')

def coarse_wait(a, sseg, vd, shp):
    _tk[0] += 1
    L = f'cw{_tk[0]}'
    a.fence()
    a.salu('s_mov_b32', 's88', 1 << 16)
    a.salu('s_cmp_ge_u32', 's47', s(sseg), nodst=True)
    a.ins(f's_cbranch_scc1 {L}x')
    a.label(L)
    a.vmem('buffer_load_dword', v(vd), 'off', 's[4:7]', s(shp), mods='offset:128 sc1')
    a.ins('s_waitcnt vmcnt(0)')
    a.valu('v_readfirstlane_b32', 's42', v(vd))
    a.salu('s_sub_u32', 's42', 's42', s(sNONCE))
    a.salu('s_cmp_gt_u32', 's42', 64, nodst=True)
    a.salu('s_cselect_b32', 's42', 0, 's42')
    a.salu('s_add_u32', 's42', 's42', 2)
    a.salu('s_mov_b32', 's47', 's42')
    a.salu('s_cmp_ge_u32', 's42', s(sseg), nodst=True)
    a.ins(f's_cbranch_scc1 {L}x')
    a.salu('s_sub_u32', 's88', 's88', 1)
    a.ins(f's_cbranch_scc1 {L}x')
    a.salu('s_sub_u32', 's42', s(sseg), 's42')
    a.salu('s_min_u32', 's42', 's42', 6)
    a.label(f'{L}s')
    a.ins('s_sleep 24')
    a.salu('s_sub_u32', 's42', 's42', 1)
    a.salu('s_cmp_lg_u32', 's42', 0, nodst=True)
    a.ins(f's_cbranch_scc1 {L}s')
    a.ins(f's_branch {L}')
    a.label(f'{L}x')

def prog_wait(a, lab, va, vd, vneed, sbase, sleep, scnt='s40'):
    a.salu('s_mov_b32', scnt, 1 << 22)
    a.label(lab)
    a.vmem('buffer_load_dword', v(vd), v(va), 's[4:7]', sbase, mods='offen sc1')
    a.salu('s_sub_u32', scnt, scnt, 1)
    a.ins(f's_cbranch_scc1 {lab}_go')
    a.ins('s_waitcnt vmcnt(0)')
    a.valu('v_subrev_u32', v(vd), vneed, v(vd))
    a.valu('v_cmp_lt_u32', 'vcc', 64, v(vd))
    a.ins(f's_cbranch_vccz {lab}_go')
    a.ins(f's_sleep {sleep}')
    a.ins(f's_branch {lab}')
    a.label(f'{lab}_go')

def k_main(a, hd=0, hg=0, warm=0, msl=4, cp=1, wt=1, qw=9, qx=0, kvr=2, cop=0, nat=10, qp=0, wm=9, tlb=0, tsh=20, xs=0, ops=2, ats=1, leak=0, wl=9, hj=0, nw=1, asy=1, xc=None, xi=0, sm=0, qm=0, sp=1, ng=6, **kw):
    if xc is not None: XCC[0] = xc
    global KVR
    KVR = kvr
    n = NAME + '_kernel'
    DV[0] = 59
    start(a, n)
    if leak == 4: a.ins('s_memrealtime s[100:101]')
    a.salu('s_cmp_ge_u32', 's2', 256, nodst=True)
    a.ins('s_cbranch_scc1 L_exit')
    a.ins('s_load_dwordx4 s[84:87], s[0:1], 120')
    a.ins('s_load_dwordx16 s[48:63], s[0:1], 0')
    a.valu('v_lshrrev_b32', 'v1', 6, 'v0')
    a.valu('v_readfirstlane_b32', 's32', 'v1')
    a.ins('s_getreg_b32 s3, hwreg(HW_REG_XCC_ID)')
    a.salu('s_and_b32', 's3', 's3', 15)
    a.salu('s_cmp_lg_u32', 's32', 3, nodst=True)
    a.ins('s_cbranch_scc1 L_nowarm')
    a.ins('s_getpc_b64 s[44:45]')
    a.label('L_pcw')
    a.valu('v_and_b32', 'v1', 63, 'v0')
    a.valu('v_lshlrev_b32', 'v1', 7, 'v1')
    a.salu('s_cmp_lg_u32', 's3', XCC[0], nodst=True)
    a.salu('s_cselect_b32', 's33', 'L_helper-L_pcw', 0)
    a.valu('v_add_u32', 'v1', 's33', 'v1')
    for i in range(NWARM[0]):
        if i == 2: a.ins('s_cbranch_scc0 L_nowarm')
        a.valu('v_min_u32', 'v2', 'L_exit-L_pcw', 'v1')
        a.vmem('global_load_dword', v(240 + i), 'v2', 's[44:45]')
        a.valu('v_add_u32', 'v1', 8192, 'v1')
    a.label('L_nowarm')
    a.forget()
    a.ins('s_waitcnt lgkmcnt(0)')
    if leak == 5: a.ins('s_memrealtime s[100:101]')
    ws_srd(a, 86)
    a.salu('s_mov_b32', s(DBG), 's84'); a.salu('s_mov_b32', s(DBG + 1), 's85')
    a.salu('s_mov_b32', s(DBG + 2), 256); a.salu('s_mov_b32', s(DBG + 3), '0x20000')
    a.salu('s_mov_b32', s(sNONCE), 0)
    diag(a, 0)
    a.salu('s_cmp_lg_u32', 's3', XCC[0], nodst=True)
    a.ins('s_cbranch_scc1 L_helper')
    lanes = C.Chain(a, 'x', gs=kw.get('gs', 2))
    def mid():
        if tlb:
            a.salu('s_cmp_lg_u32', 's32', 0, nodst=True)
            a.ins('s_cbranch_scc1 L_notlb')
            a.valu('v_lshlrev_b32', 'v1', 21, 'v0'); a.valu('v_add_u32', 'v2', (2 << 20) - 128, 'v1')
            pages = [0, 32, 43, 44, 46, 47, 48, 60]
            m_ = sum(1 << p for p in pages)
            a.salu('s_mov_b32', 'exec_lo', m_ & 0xffffffff); a.salu('s_mov_b32', 'exec_hi', m_ >> 32)
            a.ins('buffer_load_dword v246, v2, s[4:7], 0 offen sc1')
            a.salu('s_mov_b64', 'exec', 7)
            a.salu('s_mov_b32', 's14', 576 * 8192); a.salu('s_mov_b32', 's15', '0x20000')
            if tlb > 1:
                for p in (58, 56, 54, 52):
                    a.salu('s_mov_b64', 's[12:13]', s(p, 2))
                    a.ins('buffer_load_dword v246, v1, s[12:15], 0 offen')
            a.salu('s_mov_b32', 's14', 9216); a.salu('s_mov_b64', 's[12:13]', 's[50:51]')
            a.ins('buffer_load_dword v246, v1, s[12:15], 0 offen')
            a.salu('s_mov_b64', 'exec', -1)
            a.label('L_notlb')
        lanes.load_lanes()
    ticket(a, C.sH, D_CH, mid=mid, nyoung=(0, 2, 6)[tlb])
    a.salu('s_cmp_ge_u32', s(C.sH), NCH[0], nodst=True)
    a.ins('s_cbranch_scc1 L_helper')
    a.label('L_chain')
    diag(a, 14)
    ldiag(a, 0, 250)
    if leak and leak < 4: a.ins('s_memrealtime s[100:101]'); a.ins('s_waitcnt lgkmcnt(0)')
    diag(a, 15, s(C.sH))
    if DIAG[0]:
        a.ins('s_getreg_b32 s89, hwreg(HW_REG_HW_ID)'); diag(a, 12, 's89')
    def kvaddr(a, va, sb, q=0):
        a.salu('s_lshr_b32', s(sb), s(C.sH), 1); a.salu('s_lshl_b32', s(sb), s(sb), 8); a.salu('s_add_u32', s(sb), s(sb), Q.SY_PRG + q)
        a.valu('v_bfe_u32', v(va), v(C.LH), 4, 6); a.valu('v_min_u32', v(va), 11, v(va)); a.valu('v_lshlrev_b32', v(va), 2, v(va))
    def kvwait(a, lab, need, va, vd):
        kvaddr(a, va, 92, 4096 if need == Q.DONE else 0)
        a.salu('s_add_u32', 's93', s(sNONCE), need)
        prog_wait(a, lab, va, vd, 's93', 's92', 2, scnt='s94')
    def hook(a):
        if not DIAG[0]: return
        a.salu('s_lshl_b32', 's88', s(C.sH), 2); a.salu('s_add_u32', 's88', 's88', s(C.sW))
        a.salu('s_cmp_lg_u32', 's88', 0, nodst=True)
        a.ins('s_cbranch_scc1 L_nohook')
        a.ins('s_memrealtime s[90:91]'); a.ins('s_memtime s[72:73]'); a.ins('s_waitcnt lgkmcnt(0)')
        a.valu('v_mov_b32', v(C.Rq[1]), 's90'); a.valu('v_mov_b32', v(C.Rq[1] + 1), 's72')
        a.salu('s_lshl_b32', 's88', s(C.sSTEP), 3); a.salu('s_add_u32', 's88', 's88', 200 << 20)
        a.vmem('buffer_store_dwordx2', v(C.Rq[1], 2), 'off', 's[4:7]', 's88', load=False)
        a.label('L_nohook')
        a.fence()
    def chain_body(tag, safe):
        for i in range(5): a.salu('s_mov_b64', s(C.sPTR + 2 * i, 2), s(C.sPTR + 2 * i + 2, 2))
        def cpywait(a, notyet):
            if notyet is None:
                L = f'{tag}_cpe{len(a.lines)}'
                a.salu('s_cmp_eq_u32', 's88', 0, nodst=True)
                a.ins(f's_cbranch_scc1 {L}')
                a.salu('s_lshl_b32', 's89', 's73', 7); a.salu('s_add_u32', 's89', 's89', C.SY_CPY)
                a.valu('v_min_u32', 'v33', 11, 'v57'); a.valu('v_lshlrev_b32', 'v33', 2, 'v33')
                a.ins(f'buffer_load_dword v34, off, s[{DBG}:{DBG+3}], 0 offset:{D_NONCE} sc1')
                a.ins('buffer_load_dword v35, v33, s[4:7], s89 offen sc1')
                a.lines.append(L + ':')
                CPS[0] = a.vm_seq
                return
            d0 = dict(a.done)
            a.wait(vm=CPS[0])
            a.done = d0
            a.valu('v_max_u32', 'v34', 1, 'v34')
            a.valu('v_cmp_eq_u32', 'vcc', 1, 'v34')
            a.ins(f's_cbranch_vccnz {notyet}')
            a.valu('v_cmp_ne_u32', 'vcc', 'v34', 'v35')
            a.ins(f's_cbranch_vccnz {notyet}')
        def w0hook(a):
            if not safe: hook(a)
            a.salu('s_cmp_lg_u32', s(C.sSTEP), 6 * KVR - 2, nodst=True)
            a.ins(f's_cbranch_scc1 {tag}_nokv')
            if asy:
                r = C.Rq[1]
                kvaddr(a, r, 92); a.valu('v_add_u32', v(r), C.L_NON + 16, v(r))
                a.ins('s_waitcnt vmcnt(0)')
                a.ds('ds_read_b32', v(r + 1), v(r))
                a.salu('s_add_u32', 's93', s(sNONCE), Q.DONE)
                a.wait(lds='all')
                a.valu('v_cmp_ne_u32', 'vcc', 's93', v(r + 1))
                a.ins(f's_cbranch_vccz {tag}_kv1_go')
            kvwait(a, f'{tag}_kv1', Q.DONE, C.Rq[1], C.Rq[1] + 1)
            ldiag(a, 5, C.Rq[1])
            a.ins(f's_branch {tag}_w0p')
            a.label(f'{tag}_nokv')
        def kvasync(a):
            kvaddr(a, C.Rq[6], 92, 4096)
            a.salu('s_mov_b32', 'm0', C.L_NON + 16)
            a.salu('s_mov_b64', 'exec', '0xfff')
            a.ins(f'buffer_load_dword v{C.Rq[6]}, s[4:7], s92 offen sc1 lds')
            a.salu('s_mov_b64', 'exec', -1)
        spec = (6 * KVR - 3, kvasync) if asy else None
        if safe: ch = C.Chain(a, tag, spec=spec, fl='sc1', lfl='sc1', xoff=C.XOFF, d0=200, d1=200, dB=100, dZ=400, ks=1, w0hook=w0hook, spinmax=1 << 20)
        else: ch = C.Chain(a, tag, spec=spec, cpy=cpywait if cp else None, ptrace=(lambda a, j: diag(a, 16 + j)), w0hook=w0hook, spinmax=1 << 20, **kw)
        if safe: ch.load_lanes()
        arr, mode = (D_ARR2, D_GO2) if safe else (D_ARR, D_MODE)
        def st1(a):
            a.valu('v_mov_b32', 'v46', 1)
            a.salu('s_mov_b64', 'exec', 1)
            a.vmem('buffer_atomic_add', 'v46', 'off', s(DBG, 4), 0, mods=f'offset:{arr} sc0')
            a.salu('s_mov_b64', 'exec', -1)
        def st2(a):
            a.valu('v_readfirstlane_b32', 's41', 'v46')
            a.valu('v_mov_b32', 'v46', 1); a.valu('v_mov_b32', 'v47', 0)
            a.salu('s_cmp_eq_u32', 's41', 127, nodst=True)
            a.salu('s_cselect_b64', 'exec', 1, 0)
            a.vmem('buffer_atomic_cmpswap', 'v[46:47]', 'off', s(DBG, 4), 0, mods=f'offset:{mode}', load=False)
            a.salu('s_mov_b64', 'exec', -1)
        def st3(a):
            a.vmem('buffer_load_dword', 'v24', 'off', s(DBG, 4), 0, mods=f'offset:{mode} sc1')
            a.vmem('buffer_load_dword', 'v25', 'off', s(DBG, 4), 0, mods=f'offset:{D_NONCE} sc1')
            kvaddr(a, 26, 84)
            a.vmem('buffer_load_dword', 'v27', 'v26', 's[4:7]', 's84', mods='offen sc1')
        def st4(a):
            a.valu('v_readfirstlane_b32', s(sNONCE), 'v25')
            a.valu('v_readfirstlane_b32', 's85', 'v24')
            a.salu('s_add_u32', 's86', s(sNONCE), KVR)
            a.valu('v_subrev_u32', 'v27', 's86', 'v27')
            a.valu('v_cmp_lt_u32', 's[86:87]', 64, 'v27')
            a.salu('s_cmp_eq_u32', s(sNONCE), 0, nodst=True)
            a.salu('s_cselect_b64', 's[86:87]', -1, 's[86:87]')
            a.salu('s_cmp_lg_u64', 's[86:87]', 0, nodst=True)
            a.ins(f's_cbranch_scc1 {tag}_nt')
            ch.touch_kv()
            a.lines.append(f'{tag}_nt:')
        def late(a):
            q0, d0 = a.vm_seq, dict(a.done)
            get_nonce(a, 27)
            a.vm_seq, a.done = q0, d0
        ch.prologue(st1, st2, st3, st4, late)
        diag(a, 2)
        if hd: ldiag(a, 4, 26)
        a.salu('s_cmp_eq_u32', 's85', 1, nodst=True)
        a.ins(f's_cbranch_scc1 {tag}_run')
        a.salu('s_mov_b32', 's40', (1 << 24) if safe else TMO[0])
        a.label(f'{tag}_startpoll')
        a.vmem('buffer_load_dword', 'v3', 'off', s(DBG, 4), 0, mods=f'offset:{mode} sc1')
        a.wait(vm='all')
        a.valu('v_readfirstlane_b32', 's85', 'v3')
        a.salu('s_cmp_eq_u32', 's85', 1, nodst=True)
        a.ins(f's_cbranch_scc1 {tag}_run')
        if not safe:
            a.salu('s_cmp_eq_u32', 's85', 2, nodst=True)
            a.ins(f's_cbranch_scc1 {tag}_leave')
        a.ins('s_sleep 1')
        a.salu('s_sub_u32', 's40', 's40', 1)
        a.ins(f's_cbranch_scc0 {tag}_startpoll')
        if safe: a.ins('s_endpgm')
        else:
            a.valu('v_mov_b32', 'v4', 2); a.valu('v_mov_b32', 'v5', 0)
            a.salu('s_mov_b64', 'exec', 1)
            a.vmem('buffer_atomic_cmpswap', 'v[4:5]', 'off', s(DBG, 4), 0, mods=f'offset:{D_MODE}', load=False)
            a.salu('s_mov_b64', 'exec', -1)
            a.salu('s_mov_b32', 's40', 1 << 20)
            a.ins(f's_branch {tag}_startpoll')
            a.label(f'{tag}_leave')
            a.valu('v_lshrrev_b32', 'v0', 4, v(C.LH))
            a.salu('s_mov_b32', 's32', s(C.sW))
            a.ins('s_load_dwordx16 s[48:63], s[0:1], 0')
            a.ins('s_waitcnt lgkmcnt(0)')
            a.ins('s_branch L_helper')
        a.label(f'{tag}_run')
        diag(a, 3)
        a.salu('s_cmp_eq_u64', 's[86:87]', 0, nodst=True)
        a.ins(f's_cbranch_scc1 {tag}_kvok')
        kvwait(a, f'{tag}_kv0', KVR, 2, 3)
        ch.touch_kv()
        a.ins('s_waitcnt vmcnt(0)')
        a.label(f'{tag}_kvok')
        ch.loop_init()
        diag(a, 4)
        if not hd: ldiag(a, 4, 24)
        if leak: a.ins('s_memrealtime s[90:91]'); a.ins('s_waitcnt lgkmcnt(0)'); a.salu('s_mov_b32', 's101', 's90')
        if not safe and DIAG[0]: print(ch.outs, [(j[1], j[3] // 1024) for j in ch.sched])
        ch.step()
        diag(a, 5)
        ldiag(a, 6, 24)
        if leak and not safe:
            a.ins('s_memrealtime s[90:91]'); a.ins('s_waitcnt lgkmcnt(0)')
            if leak in (1, 4, 5): a.salu('s_add_u32', 's92', 's100', 20000)
            elif leak == 2: a.salu('s_add_u32', 's92', 's90', 1000)
            elif leak == 3: a.salu('s_add_u32', 's92', 's101', 20000)
            a.label('L_leak')
            a.ins('s_memrealtime s[90:91]'); a.ins('s_waitcnt lgkmcnt(0)')
            a.salu('s_sub_u32', 's93', 's92', 's90'); a.salu('s_cmp_gt_i32', 's93', 0, nodst=True)
            a.ins('s_cbranch_scc1 L_leak')
        a.ins('s_endpgm')
        ch.load_sub()
    chain_body('cf', False)
    a.label('L_chain_safe')
    a.forget()
    chain_body('cs', True)
    def mode_check(lab):
        a.salu('s_mov_b32', 's40', 4 * TMO[0])
        a.label(f'{lab}_w')
        a.vmem('buffer_load_dword', 'v250', 'off', s(DBG, 4), 0, mods=f'offset:{D_MODE} sc1')
        a.wait(vm='all')
        a.valu('v_readfirstlane_b32', 's41', 'v250')
        a.salu('s_cmp_lg_u32', 's41', 0, nodst=True)
        a.ins(f's_cbranch_scc1 {lab}_known')
        a.salu('s_sub_u32', 's40', 's40', 1)
        a.ins(f's_cbranch_scc1 {lab}_force')
        a.ins('s_sleep 2')
        a.ins(f's_branch {lab}_w')
        a.label(f'{lab}_force')
        a.valu('v_mov_b32', 'v250', 2); a.valu('v_mov_b32', 'v251', 0)
        a.salu('s_mov_b64', 'exec', 1)
        a.vmem('buffer_atomic_cmpswap', 'v[250:251]', 'off', s(DBG, 4), 0, mods=f'offset:{D_MODE}', load=False)
        a.salu('s_mov_b64', 'exec', -1)
        a.ins('s_waitcnt vmcnt(0)')
        a.salu('s_mov_b32', 's40', 4 * TMO[0])
        a.ins(f's_branch {lab}_w')
        a.label(f'{lab}_known')
    a.forget()
    a.label('L_helper')
    DV[0] = 249
    a.forget()
    a.ins('s_load_dwordx16 s[64:79], s[0:1], 64')
    a.salu('s_sub_u32', 's33', 's3', XCC[0] + 1); a.salu('s_and_b32', 's33', 's33', 3 if FX[0] else 7)
    a.label('L_pool')
    a.salu('s_lshl_b32', 's35', 's33', 2); a.salu('s_add_u32', 's35', 's35', D_POOL)
    ticket(a, 34, 's35')
    a.salu('s_mov_b32', 's36', 's33')
    a.salu('s_or_b32', 's33', 's34', 's32')
    a.salu('s_cmp_lg_u32', 's33', 0, nodst=True)
    a.ins('s_cbranch_scc1 L_helper1')
    a.ins('s_memrealtime s[90:91]'); a.ins('s_waitcnt lgkmcnt(0)')
    a.salu('s_lshl_b32', 's90', 's90', 8); a.salu('s_or_b32', 's90', 's90', 1)
    a.valu('v_mov_b32', 'v250', 's90'); a.valu('v_mov_b32', 'v251', 0)
    a.salu('s_mov_b64', 'exec', 1)
    a.vmem('buffer_atomic_cmpswap', 'v[250:251]', 'off', s(DBG, 4), 0, mods=f'offset:{D_NONCE}', load=False)
    a.salu('s_mov_b64', 'exec', -1)
    a.label('L_helper1')
    diag(a, 9)
    a.salu('s_cmp_ge_u32', 's34', 32, nodst=True)
    a.ins('s_cbranch_scc1 L_qkv_next')
    a.salu('s_cmp_ge_u32', 's36', 7, nodst=True)
    a.ins('s_cbranch_scc1 L_qkv_next')
    a.salu('s_cmp_eq_u32', 's36', 6, nodst=True)
    a.salu('s_cselect_b32', 's36', 's34', 's36')
    a.ins('s_cbranch_scc1 L_job')
    a.salu('s_max_u32', 's37', 's36', 4); a.salu('s_sub_u32', 's37', 's37', 4); a.salu('s_mul_i32', 's37', 's37', 5)
    a.salu('s_mul_i32', 's38', 's36', 7); a.salu('s_sub_u32', 's38', 's38', 's37')
    a.salu('s_cmp_lt_u32', 's36', 4, nodst=True); a.salu('s_cselect_b32', 's39', 7, 2)
    a.salu('s_mul_i32', 's36', 's36', 25); a.salu('s_add_u32', 's36', 's36', 's37')
    a.salu('s_cmp_lt_u32', 's34', 's39', nodst=True)
    a.ins('s_cbranch_scc1 L_copy')
    a.salu('s_add_u32', 's36', 's36', 's34'); a.salu('s_sub_u32', 's36', 's36', 's39')
    if warm:
        a.salu('s_cmp_lg_u32', s(sNONCE), 0, nodst=True)
        a.ins('s_cbranch_scc1 L_nowm')
        a.salu('s_mul_i32', 's37', 's36', 24576)
        a.salu('s_mov_b32', 's14', 576 * 8192); a.salu('s_mov_b32', 's15', '0x20000')
        a.salu('s_mov_b32', 'm0', 155648)
        if warm == 1:
            a.valu('v_lshlrev_b32', 'v1', 7, 'v0'); a.valu('v_min_u32', 'v1', 24576 - 128, 'v1')
        else: a.valu('v_lshlrev_b32', 'v1', 4, 'v0')
        for p in [x for i, x in enumerate((58, 56, 54, 52)) if wm >> i & 1]:
            a.salu('s_mov_b64', 's[12:13]', s(p, 2))
            if warm == 1:
                a.raw('    buffer_load_dword v1, s[12:15], s37 offen lds')
            else:
                for i in range(6):
                    a.salu('s_add_u32', 's38', 's37', min(i * 4096, 21504 - 4096))
                    a.raw('    buffer_load_dwordx4 v1, s[12:15], s38 offen lds')
        a.label('L_nowm')
    a.salu('s_mul_i32', 's37', 's36', 205); a.salu('s_lshr_b32', 's37', 's37', 10)
    a.salu('s_mul_i32', 's38', 's37', 5); a.salu('s_sub_u32', 's36', 's36', 's38'); a.salu('s_add_u32', 's36', 's36', 1)
    a.salu('s_lshl_b32', 's36', 's36', 5); a.salu('s_add_u32', 's36', 's36', 's37')
    if hd:
        a.salu('s_cmp_lt_u32', 's36', 32 * hg, nodst=True); a.ins('s_cbranch_scc1 L_job')
        for i in range(hd): a.ins('s_sleep 127')
    a.ins('s_branch L_job')
    a.label('L_copy')
    if 1:
        a.salu('s_add_u32', 's36', 's38', 's34')
        a.salu('s_mul_i32', 's36', 's36', 11); a.salu('s_and_b32', 's36', 's36', 31)
        a.salu('s_cmp_ge_u32', 's36', 27 if cp else 0, nodst=True)
        a.ins('s_cbranch_scc1 L_qkv_next')
        a.salu('s_mul_i32', 's33', 's36', 57); a.salu('s_lshr_b32', 's33', 's33', 9)
        a.salu('s_mul_i32', 's37', 's33', 9); a.salu('s_sub_u32', 's37', 's36', 's37')
        a.salu('s_lshl_b32', 's36', 's37', 2); a.salu('s_add_u32', 's36', 's36', 1); a.salu('s_min_u32', 's36', 's36', 31)
        a.salu('s_lshr_b32', 's39', 's52', 8); a.salu('s_sub_u32', 's36', 's36', 's39'); a.salu('s_and_b32', 's36', 's36', 31)
        a.salu('s_lshl_b32', 's36', 's36', 8)
        a.salu('s_mov_b32', 's14', 576 * 8192); a.salu('s_mov_b32', 's15', '0x20000')
        a.valu('v_lshrrev_b32', 'v1', 4, 'v0'); a.valu('v_lshlrev_b32', 'v1', 13, 'v1'); a.valu('v_and_b32', 'v2', 15, 'v0'); a.valu('v_lshl_add_u32', 'v1', 'v2', 4, 'v1')
        a.valu('v_lshlrev_b32', 'v2', 4, 'v0')
        NR = 3 if kw.get('swn', 4) < 4 else 2
        a.salu('s_mul_i32', 's40', 's33', NR); a.salu('s_mul_i32', 's39', 's40', 192 * 256); a.salu('s_lshl_b32', 's41', 's37', 19); a.salu('s_add_u32', 's39', 's39', 's41')
        a.salu('s_add_u32', 's39', 's39', C.WS_CPY)
        for h_ in range(NR):
            a.salu('s_add_u32', 's41', 's40', h_)
            a.salu('s_cmp_lt_u32', 's41', 3, nodst=True)
            a.salu('s_cselect_b64', 's[12:13]', 's[52:53]', 's[54:55]')
            a.salu('s_cselect_b32', 's42', 0, 3)
            a.salu('s_cmp_ge_u32', 's41', 6, nodst=True); a.salu('s_cselect_b64', 's[12:13]', 's[56:57]', 's[12:13]'); a.salu('s_cselect_b32', 's42', 6, 's42')
            a.salu('s_sub_u32', 's41', 's41', 's42')
            a.salu('s_mul_i32', 's38', 's41', 192 * 8192); a.salu('s_add_u32', 's38', 's38', 's36')
            for i in range(12):
                a.vmem('buffer_load_dwordx4', v(8 + 48 * h_ + 4 * i, 4), 'v1', 's[12:15]', 's38', mods='offen')
                a.salu('s_add_u32', 's38', 's38', 16 * 8192)
        a.vmem('buffer_load_dword', 'v3', 'off', s(DBG, 4), 0, mods=f'offset:{D_NONCE} sc1')
        a.wait(vm='all')
        for i in range(12 * NR):
            a.vmem('buffer_store_dwordx4', v(8 + 4 * i, 4), 'v2', 's[4:7]', 's39', mods='offen sc1', load=False, data=v(8 + 4 * i, 4))
            a.salu('s_add_u32', 's39', 's39', 4096)
        a.valu('v_readfirstlane_b32', s(sNONCE), 'v3')
        get_nonce(a, 3)
        a.salu('s_lshl_b32', 's37', 's37', 7); a.salu('s_lshl_b32', 's36', 's33', 2); a.salu('s_add_u32', 's36', 's36', 's32')
        a.salu('s_lshl_b32', 's36', 's36', 2); a.salu('s_add_u32', 's37', 's37', 's36'); a.salu('s_add_u32', 's37', 's37', C.SY_CPY)
        a.valu('v_mov_b32', 'v3', s(sNONCE))
        a.ins('s_waitcnt vmcnt(0)')
        a.salu('s_mov_b64', 'exec', 1)
        a.vmem('buffer_store_dword', 'v3', 'off', 's[4:7]', 's37', mods='sc1', load=False)
        a.salu('s_mov_b64', 'exec', -1)
        diag(a, 44)
    a.label('L_qkv_next')
    if qm:
        a.salu('s_bitcmp0_b32', qm, 's3', nodst=True); a.ins('s_cbranch_scc1 L_ssm_next')
    if qp:
        a.salu('s_sub_u32', 's33', 's3', XCC[0] + 1); a.salu('s_and_b32', 's33', 's33', 3 if FX[0] else 7)
        a.salu('s_cmp_eq_u32', 's33', 7, nodst=True)
        a.ins('s_cbranch_scc1 L_qscan')
        a.label('L_qtake')
        a.salu('s_lshl_b32', 's35', 's33', 2); a.salu('s_add_u32', 's35', 's35', D_QP)
        ticket(a, 34, 's35')
        a.salu('s_mul_i32', 's36', 's33', 19); a.salu('s_add_u32', 's36', 's36', 's34')
        a.salu('s_cmp_ge_u32', 's34', 19, nodst=True); a.salu('s_cselect_b32', 's36', 128, 's36')
        a.salu('s_cmp_lt_u32', 's36', 128, nodst=True)
        a.ins('s_cbranch_scc1 L_qjob')
        a.label('L_qscan')
        scan(a, D_QP, 2)
        a.salu('s_cmp_lt_u32', 's33', 7, nodst=True)
        a.ins('s_cbranch_scc1 L_qtake')
        a.ins('s_branch L_ssm_next')
        a.label('L_qjob')
        a.salu('s_and_b32', 's37', 's36', 7); a.salu('s_lshl_b32', 's37', 's37', 4); a.salu('s_lshr_b32', 's36', 's36', 3)
        a.salu('s_add_u32', 's36', 's36', 's37'); a.salu('s_add_u32', 's36', 's36', 192)
    else:
        ticket(a, 36, D_HELP)
        a.salu('s_add_u32', 's36', 's36', 192)
        a.salu('s_cmp_ge_u32', 's36', 320, nodst=True)
        a.ins('s_cbranch_scc1 L_ssm_next')
    a.label('L_job')
    a.salu('s_and_b32', s(Q.sHh), 's36', 15); a.salu('s_lshl_b32', s(Q.sHh), s(Q.sHh), 1)
    a.salu('s_bfe_u32', s(Q.sM), 's36', '0x10004')
    a.salu('s_lshr_b32', s(Q.sSEG), 's36', 5)
    a.salu('s_mul_i32', 's33', s(Q.sM), 6); a.salu('s_add_u32', 's33', 's33', s(Q.sSEG))
    a.salu('s_add_u32', s(Q.sM), s(Q.sM), 1)
    a.salu('s_lshr_b32', 's37', 's36', 4); a.salu('s_sub_u32', 's38', 's37', 12)
    a.salu('s_cmp_ge_u32', 's36', 192, nodst=True)
    a.salu('s_cselect_b32', s(Q.sM), 0, s(Q.sM))
    a.salu('s_cselect_b32', s(Q.sSEG), 's38', s(Q.sSEG))
    a.salu('s_cselect_b32', 's33', 's37', 's33')
    a.salu('s_cselect_b32', s(Q.sSTR), 8, 6)
    def nonce_early(a):
        a.valu('v_mov_b32', 'v28', s(sNONCE))
        a.salu('s_cmp_lg_u32', s(sNONCE), 0, nodst=True)
        a.ins('s_cbranch_scc1 L_ne')
        a.ins(f'buffer_load_dword v28, off, s[{DBG}:{DBG+3}], 0 offset:{D_NONCE} sc1')
        if wl:
            a.salu('s_cmp_ge_u32', 's36', 192, nodst=True)
            a.ins('s_cbranch_scc1 L_ne')
            a.salu('s_mul_i32', 's37', 's36', 24576)
            a.salu('s_mov_b32', 's46', 576 * 8192); a.salu('s_mov_b32', 's47', '0x20000')
            a.valu('v_lshlrev_b32', 'v29', 7, 'v0'); a.valu('v_min_u32', 'v29', 24576 - 128, 'v29')
            for p in [x for i, x in enumerate((58, 56, 54, 52)) if wl >> i & 1]:
                a.salu('s_mov_b64', 's[44:45]', s(p, 2))
                a.ins('buffer_load_dword v30, v29, s[44:47], s37 offen')
        a.lines.append('L_ne:')
    Q.qkv_role(a, 'qk', 48, 52, sNONCE, 33, at=(nat, nonce_early), late=lambda a: (a.valu('v_readfirstlane_b32', s(sNONCE), 'v28'), get_nonce(a, 25), dsel(a, 8)), qw=qw, qx=qx, cop=cop)
    dsel(a, 6)
    a.salu('s_cmp_ge_u32', 's36', 64, nodst=True)
    a.ins('s_cbranch_scc1 L_qkv_next')
    a.salu('s_cmp_lt_u32', 's36', 32, nodst=True)
    a.ins('s_cbranch_scc1 L_exit')
    if xs & 8: a.ins('s_endpgm')
    Q.memkv_role(a, 'mk', sNONCE, slp=msl)
    diag(a, 1)
    a.ins('s_endpgm')
    a.label('L_ssm_next')
    if xs & 1: a.ins('s_branch L_phase2')
    if sm:
        a.salu('s_bitcmp0_b32', sm, 's3', nodst=True); a.ins('s_cbranch_scc1 L_phase2')
    if sp:
        a.salu('s_sub_u32', 's33', 's3', XCC[0] + 1); a.salu('s_and_b32', 's33', 's33', 3 if FX[0] else 7)
        a.salu('s_cmp_ge_u32', 's33', 6, nodst=True)
        a.ins('s_cbranch_scc1 L_sscan')
        a.label('L_stake')
        a.salu('s_lshl_b32', 's35', 's33', 2); a.salu('s_add_u32', 's35', 's35', D_SP)
        ticket(a, 34, 's35')
        a.salu('s_mul_i32', s(S.sD0), 's33', 24); a.salu('s_add_u32', s(S.sD0), s(S.sD0), 's34')
        a.salu('s_cmp_lt_u32', 's34', 24, nodst=True)
        a.ins('s_cbranch_scc1 L_sjob')
        a.label('L_sscan')
        scan(a, D_SP, 3)
        a.salu('s_cmp_lt_u32', 's33', 7, nodst=True)
        a.ins('s_cbranch_scc1 L_stake')
        a.ins('s_branch L_phase2')
        a.label('L_sjob')
    else:
        ticket(a, S.sD0, D_SSM)
        a.salu('s_cmp_ge_u32', s(S.sD0), 144, nodst=True)
        a.ins('s_cbranch_scc1 L_phase2')
    a.salu('s_lshl_b32', s(S.sD0), s(S.sD0), 2)
    a.forget()
    S.ssm_job(a, 'ss', 62, 76, dg=lambda a, i: diag(a, 50 + i))
    diag(a, 7)
    a.ins('s_branch L_ssm_next')
    sWv, sCB = 32, 33
    a.label('L_phase2')
    a.forget()
    scan(a, D_POOL, False)
    a.salu('s_cmp_lt_u32', 's33', 7, nodst=True)
    a.ins('s_cbranch_scc1 L_pool')
    if wt > 1:
        a.salu('s_cmp_lg_u32', 's32', 0, nodst=True); a.ins('s_cbranch_scc1 L_nwb'); a.ins('buffer_wbl2 sc1'); a.ins('s_waitcnt vmcnt(0)'); a.label('L_nwb')
    get_nonce(a, 250)
    mode_check('mc2')
    a.salu('s_cmp_eq_u32', 's41', 1, nodst=True)
    a.ins('s_cbranch_scc1 L_phase2b')
    ticket(a, C.sH, D_CH2)
    a.salu('s_cmp_lt_u32', s(C.sH), 32, nodst=True)
    a.ins('s_cbranch_scc1 L_chain_safe')
    a.label('L_phase2b')
    diag(a, 55)
    a.salu('s_mov_b32', 's47', 0); a.salu('s_mov_b32', 's46', 0)
    if xs & 2: a.ins('s_branch L_done')
    if xi:
        a.salu('s_bitcmp1_b32', xi, 's3', nodst=True); a.ins('s_cbranch_scc1 L_done')
    a.salu('s_mov_b32', 's8', 's76'); a.salu('s_mov_b32', 's9', 's77')
    a.salu('s_mov_b32', 's10', 2048 * 2304); a.salu('s_mov_b32', 's11', '0x20000')
    a.salu('s_sub_u32', 's33', 's3', XCC[0] + 1); a.salu('s_and_b32', 's33', 's33', 3 if FX[0] else 7)
    a.salu('s_cmp_ge_u32', 's33', 6, nodst=True)
    a.ins('s_cbranch_scc1 L_p2scan')
    a.label('L_p2take')
    a.salu('s_lshl_b32', 's35', 's33', 2); a.salu('s_add_u32', 's35', 's35', D_P2)
    ticket(a, 34, 's35')
    a.salu('s_cmp_lt_u32', 's33', 4, nodst=True); a.salu('s_cselect_b32', 's36', 6 if ng == 7 else 9, 5 if ng == 7 else 8)
    a.salu('s_cmp_lt_u32', 's34', 's36', nodst=True)
    a.ins('s_cbranch_scc1 L_att0')
    a.salu('s_sub_u32', 's34', 's34', 's36')
    a.salu('s_cmp_ge_u32', 's34', 21 if ng == 7 else 18, nodst=True)
    a.ins('s_cbranch_scc1 L_p2scan')
    if ng == 6: a.ins('s_branch L_op_start')
    a.salu('s_mul_i32', 's36', 's33', 3); a.salu('s_add_u32', 's36', 's36', 's34'); a.salu('s_sub_u32', 's37', 's34', 3)
    a.salu('s_cmp_lt_u32', 's34', 3, nodst=True)
    a.salu('s_cselect_b32', 's34', 's36', 's37'); a.salu('s_cselect_b32', 's33', 6, 's33')
    a.ins('s_branch L_op_start')
    a.label('L_p2scan')
    scan(a, D_P2, True)
    a.salu('s_cmp_lt_u32', 's33', 7, nodst=True)
    a.ins('s_cbranch_scc1 L_p2take')
    a.ins('s_branch L_done')
    a.label('L_att0')
    a.salu('s_mul_i32', 's34', 's34', 6); a.salu('s_add_u32', 's34', 's34', 's33')
    a.salu('s_cmp_ge_u32', 's34', 32 if ng == 7 else 48, nodst=True)
    a.ins('s_cbranch_scc1 L_done')
    a.label('L_att_next')
    a.forget()
    a.salu('s_lshr_b32', s(A.sSEG), 's34', 3)
    a.salu('s_and_b32', s(A.sHh), 's34', 7)
    a.salu('s_lshl_b32', s(A.sHh), s(A.sHh), 2)
    a.salu('s_add_u32', s(A.sHh), s(A.sHh), s(sWv))
    a.salu('s_lshr_b32', 's36', s(A.sHh), 1); a.salu('s_lshl_b32', 's36', 's36', 8); a.salu('s_add_u32', 's36', 's36', Q.SY_PRG)
    a.salu('s_mul_i32', 's37', s(A.sSEG), 43); a.salu('s_lshr_b32', 's37', 's37', 8)
    a.salu('s_mul_i32', 's41', 's37', 6); a.salu('s_sub_u32', 's41', s(A.sSEG), 's41')
    a.valu('v_and_b32', 'v1', 63, 'v0')
    a.valu('v_mul_u32_u24', 'v2', 6, 'v1'); a.valu('v_add_u32', 'v2', 's41', 'v2')
    a.valu('v_mov_b32', 'v4', 's37')
    a.salu('s_and_b32', 's41', s(A.sSEG), 7); a.salu('s_add_u32', 's41', 's41', 12)
    a.salu('s_lshr_b32', 's37', s(A.sSEG), 3)
    a.valu('v_mov_b32', 'v5', 's41'); a.valu('v_mov_b32', 'v6', 's37')
    a.valu('v_cmp_lt_u32', 'vcc', 1, 'v1')
    a.valu('v_cndmask_b32', 'v2', 'v2', 'v5', 'vcc'); a.valu('v_cndmask_b32', 'v4', 'v4', 'v6', 'vcc')
    a.valu('v_lshlrev_b32', 'v2', 2, 'v2')
    a.valu('v_add3_u32', 'v4', 'v4', s(sNONCE), 1)
    prog_wait(a, 'L_aw1', 2, 3, 'v4', 's36', 4)
    def mid(a):
        a.fence()
        trace(a, 0, 34, 0)
        coarse_wait(a, A.sSEG, 199, 36)
        trace(a, 0, 34, 1)
        a.salu('s_add_u32', 's37', 's36', 128)
        a.salu('s_add_u32', 's41', s(A.sSEG), s(sNONCE)); a.salu('s_add_u32', 's41', 's41', 1)
        a.salu('s_lshl_b32', 's42', s(A.sHh), 7); a.salu('s_add_u32', 's42', 's42', C.SY_CHF)
        a.salu('s_cmp_ge_u32', s(A.sSEG), 62, nodst=True)
        a.salu('s_cselect_b32', 's37', 's42', 's37')
        a.salu('s_cselect_b32', 's42', 12, 8)
        a.valu('v_lshlrev_b32', 'v198', 2, 'v0'); a.valu('v_and_b32', 'v198', 's42', 'v198')
        prog_wait(a, 'L_aw2', 198, 199, 's41', 's37', ats)
        trace(a, 0, 34, 2)
    A.attn_job(a, 'at', ld_fl='sc1', st_fl='sc1', mid=mid)
    a.salu('s_lshr_b32', 's40', 's34', 1)
    a.salu('s_lshl_b32', 's40', 's40', 7)
    a.salu('s_and_b32', 's41', s(A.sHh), 7)
    a.salu('s_lshl_b32', 's41', 's41', 2)
    a.salu('s_add_u32', 's40', 's40', 's41')
    a.salu('s_add_u32', 's40', 's40', SY_ATT)
    a.valu('v_mov_b32', 'v250', s(sNONCE))
    a.salu('s_cmp_ge_u32', s(A.sSEG), 58 if nw else 99, nodst=True)
    a.ins('s_cbranch_scc1 L_afl')
    a.ins('s_waitcnt vmcnt(0)')
    a.label('L_afl')
    a.salu('s_mov_b64', 'exec', 1)
    a.vmem('buffer_store_dword', 'v250', 'off', 's[4:7]', 's40', mods='sc1', load=False)
    a.salu('s_mov_b64', 'exec', -1)
    trace(a, 0, 34, 3)
    a.salu('s_add_u32', 's34', 's34', 32 if ng == 7 else 48)
    a.salu('s_cmp_lt_u32', 's34', 512, nodst=True)
    a.fence()
    a.ins('s_cbranch_scc1 L_att_next')
    a.ins('s_branch L_done')
    a.label('L_op_start')
    if xs & 4: a.ins('s_branch L_done')
    a.forget()
    a.salu('s_mov_b32', s(A.sSEG), 's33')
    a.salu('s_mov_b32', s(sCB), 's34')
    A.oproj_load(a, 58, sCB, sWv)
    diag(a, 56)
    a.salu('s_mov_b32', 's35', s(A.sSEG))
    a.label('L_op_seg')
    a.salu('s_sub_u32', 's40', 's35', 126); a.salu('s_lshr_b32', 's41', 's40', 1); a.salu('s_add_u32', 's41', 's41', 126)
    a.salu('s_and_b32', 's40', 's40', 1); a.salu('s_lshl_b32', 's40', 's40', 3); a.salu('s_lshl_b32', 's44', '0x00ff00ff', 's40')
    a.salu('s_cmp_ge_u32', 's35', 126 if hj else 999, nodst=True)
    a.salu('s_cselect_b32', s(A.sSEG), 's41', 's35'); a.salu('s_cselect_b32', 's44', 's44', -1); a.salu('s_mov_b32', 's45', 's44')
    a.salu('s_lshr_b32', 's43', s(A.sSEG), 1)
    a.salu('s_add_u32', 's43', 's43', 1)
    a.salu('s_min_u32', 's43', 's43', 63)
    a.salu('s_and_b32', 's36', s(sCB), 15); a.salu('s_lshl_b32', 's36', 's36', 8); a.salu('s_add_u32', 's36', 's36', Q.SY_PRG)
    a.salu('s_lshl_b32', 's94', s(sCB), 7); a.salu('s_add_u32', 's94', 's94', s(A.sSEG))
    trace(a, 65536, 94, 0)
    a.salu('s_cmp_ge_u32', s(A.sSEG), 120, nodst=True)
    a.ins('s_cbranch_scc1 L_nocw')
    coarse_wait(a, 43, 3, 36)
    a.label('L_nocw')
    trace(a, 65536, 94, 1)
    a.salu('s_lshr_b32', 's89', s(A.sSEG), 1)
    a.salu('s_lshl_b32', 's89', 's89', 2)
    a.salu('s_add_u32', 's89', 's89', s(sWv))
    a.salu('s_lshl_b32', 's89', 's89', 7)
    a.salu('s_add_u32', 's89', 's89', SY_ATT)
    a.salu('s_cmp_lg_u32', 's46', 0, nodst=True)
    a.ins('s_cbranch_scc1 L_opgo')
    flags_wait(a, 's89', 0, 8, 2, 3, sleep=ops)
    a.label('L_opgo')
    a.valu('v_lshrrev_b32', 'v5', 2, 'v1'); a.valu('v_and_b32', 'v5', 28, 'v5')
    a.salu('s_add_u32', 's89', 's89', (ng // 2) * 512)
    def post(a):
        a.ins('s_waitcnt vmcnt(0)')
        a.valu('v_cmp_ne_u32', 'vcc', s(sNONCE), 'v6')
        a.salu('s_cmp_eq_u64', 'vcc', 0, nodst=True); a.salu('s_cselect_b32', 's46', 1, 0)
    def pre(a):
        a.vmem('buffer_load_dword', 'v6', 'v5', 's[4:7]', 's89', mods='offen sc1')
    trace(a, 65536, 94, 2)
    A.oproj_seg(a, 'os', 8, sCB, sWv, A.sSEG, ofl='sc1' if wt else '', sMSK=44, pre=pre if ng % 2 == 0 else None, post=post if ng % 2 == 0 else None)
    trace(a, 65536, 94, 3)
    a.salu('s_add_u32', 's35', 's35', ng)
    a.salu('s_cmp_ge_u32', 's35', 130 if hj else 128, nodst=True)
    a.ins('s_cbranch_scc1 L_done')
    a.ins('s_barrier')
    a.ins('s_branch L_op_seg')
    a.label('L_done')
    diag(a, 10)
    ldiag(a, 7, 250)
    a.label('L_exit')
    a.ins('s_endpgm')
    a.raw(kd(n, 512, 256))

def build(**kw):
    hdr = open(f'/code/{NAME}.s.ref').read().split('; Override launch geometry')[0]
    a = Asm()
    a.raw(hdr.rstrip())
    a.raw('; @launch grid=(256,1,1) block=(256,1,1) lds=163840')
    a.raw('.amdgcn_target "amdgcn-amd-amdhsa--gfx950"')
    x0 = XCC[0]
    k_main(a, **kw)
    XCC[0] = x0
    return a.text()

if __name__ == '__main__':
    kw = dict(d0=70, dB=18, ks=2, pA=14, d1=68, dX=40, dZ=164, pbr=0, p1=4)
    open('one.s', 'w').write(build(**kw))
    for spec in sys.argv[1:]:
        k2 = dict((x.split('=')[0], int(x.split('=')[1])) for x in spec.split(','))
        open('one_' + spec.replace('=', '').replace(',', '_') + '.s', 'w').write(build(**{**kw, **k2}))
    XCC[0] = 9; TMO[0] = 1 << 8; FX[0] = 1
    open('one_safe.s', 'w').write(build(**kw))
    XCC[0] = 3; TMO[0] = 1 << 8; NCH[0] = 31; FX[0] = 0
    open('one_safe2.s', 'w').write(build(**kw))
    TMO[0] = 1 << 17; NCH[0] = 32
    LD[0] = 1
    open('one_l.s', 'w').write(build(**kw))
    for spec in sys.argv[1:]:
        k2 = dict((x.split('=')[0], int(x.split('=')[1])) for x in spec.split(','))
        open('one_' + spec.replace('=', '').replace(',', '_') + '_l.s', 'w').write(build(**{**kw, **k2}))
    LD[0] = 0
    DIAG[0] = 1
    for spec in sys.argv[1:]:
        k2 = dict((x.split('=')[0], int(x.split('=')[1])) for x in spec.split(','))
        open('one_' + spec.replace('=', '').replace(',', '_') + '_d.s', 'w').write(build(**{**kw, **k2}))
    open('one_d.s', 'w').write(build(**kw))
    print('ok')
```

```python
from asmfw import Asm, R

MB = 1 << 20
WS_KV = 0
WS_Q = 32 * MB
WS_O = 48 * MB
WS_MEM = 64 * MB
WS_PART = 64 * MB + 65536
XOFF = 1 * MB
WS_KM = 68 * MB
WS_VM = 77 * MB
WS_M0 = 88 * MB
WS_MEMH = 86 * MB
WS_CPY = 92 * MB
WS_SYNC = 120 * MB
SY_CHF = WS_SYNC + 16384
SY_CPY = WS_SYNC + 24576
WS_SIZE = 256 * MB

K = 1024
L_MISC = 96 * K
L_MBUF = L_MISC
L_TB = L_MISC + 9216
L_DUMP = L_MISC + 9728
L_NON = L_MISC + 9984
L_SEL = L_MISC + 10240
L_MM = L_MISC + 11264
L_SC = L_MISC + 12288
L_OB = L_MBUF + 4096
B_LW0, B_LW1 = 56 * K, 96 * K

LDS_ADDR = {}
for _t in range(4):
    LDS_ADDR[('k', 0, _t)] = _t * 16 * K
    LDS_ADDR[('k', 1, _t)] = _t * 16 * K + 8 * K
LDS_ADDR[('q', 0, 0)] = 64 * K; LDS_ADDR[('q', 1, 0)] = 72 * K
LDS_ADDR[('k', 0, 8)] = 80 * K; LDS_ADDR[('k', 1, 8)] = 88 * K
LDS_ADDR[('o', 2, 2)] = 112 * K; LDS_ADDR[('o', 3, 2)] = 120 * K
LDS_ADDR[('o', 2, 3)] = 128 * K; LDS_ADDR[('o', 3, 3)] = 136 * K
LDS_ADDR[('o', 4, 0)] = 144 * K; LDS_ADDR[('o', 4, 1)] = 152 * K

AQ0, AK0, AQ1, AK1, AV0, AV1 = 0, 4, 8, 12, 16, 20
Rq = [24 + 4 * i for i in range(9)]
IDX, LH, LW0, LW1, LW2, L16, PST, PSX, OR0, MST, MMW, LW3 = range(60, 72)
ZZ, OA1, OA2, OA3, OW, MMR, PFA = 72, 74, 75, 76, 77, 78, 79
VW0 = 80

def all_frags():
    fr = [(m, t, sl) for m in 'qkv' for sl in range(9) for t in range(2)]
    fr += [('o', u, k) for u in range(4) for k in range(4)] + [('o', 4, 0), ('o', 4, 1)]
    return fr
REGF = {}
_res = [f for f in all_frags() if f not in LDS_ADDR]
assert len(_res) == 54
for _i, _f in enumerate(_res): REGF[_f] = ('a', _i * 8) if _i < 32 else ('v', VW0 + (_i - 32) * 8)
def freg(f): return R(REGF[f][1], 8, REGF[f][0])

SRD, SRDW = 4, 8
sH, sW = 12, 13
sMEM, sMEM4, sMEM8, sMST, sMRS = 14, 15, 16, 17, 18
sPL, sPS0, sPS1, sPSX = 19, 20, 21, 22
sKX, sPF, sKM, sVM, sFL = 23, 24, 25, 26, 27
sSTEP, sSPIN, sTAG, sMSU = 28, 29, 30, 31
sSTM, sHI8, sW0M, sLO8 = 32, 34, 36, 38
sT0, sT1, sT2, sT3 = 40, 41, 42, 43
sC1, sNC1, sK128 = 44, 46, 47
sPTR = 48
sONE, sHALF = 60, 62
sROLE, sFV = 64, 65
sAL = 47
sD1 = 58
sACC = 68
sNONCE = 95
sSUM = 96

SMF = 'v_smfmac_f32_16x16x64_bf16'
MF32 = 'v_mfma_f32_16x16x32_bf16'
MF16 = 'v_mfma_f32_16x16x16_bf16'
def s(i, n=1): return R(i, n, 's')
def v(i, n=1): return R(i, n, 'v')

def lds_base(addr):
    if addr + 4096 < 64 * K: return LH, addr
    if addr < L_MISC + 16 * K: return LW0, addr - B_LW0
    return LW1, addr - B_LW1

class Chain:
    def __init__(self, a, tag, fl='', lfl='nt', pfl='sc1', xoff=0, nsteps=64, timing=0, dA=0, dB=24, d0=0, d1=24, dX=0, nopub=0, nopf=0,
                 hook=None, nomax=0, gap=0, dual=0, tstep=40, spinmax=1 << 16, prof=None, pstride=8, pA=20, pF=30, rt=0, dW=0, ks=2, early=1, k1=1, pskip=0, dZ=60, dE=0, ins0=0, p1=1, epf=1, npr=10, pg=6, dP=10, k0=1, pG=30, eo=1, w0hook=None, pbr=1, ppos=1, ptrace=None, lcap=16, lrev=5, gs=2, lord=1, lasy=3, lt=1, lpri=5, gforce=0, cpy=None, swn=4, swe=5, pf128=0, pfe=0, xnop=0, c1n=2, bf=0, hb=0, ha=1, hx=0, lsd=3, lte=4, tx=0, lbo=0, p0d=0, dY=0, one3=0, spec=None, rt0=1, pl=0, kvnt=0, slp=0, slo=2, dm=0, ntk=0):
        self.ntk = ntk
        self.dm = dm
        self.slp = slp; self.slo = slo
        self.kvnt = kvnt
        if pl: lfl = 'sc1'
        self.rt0 = rt0
        self.spec = spec
        self.dY = dY; self.one3 = one3
        self.p0d = p0d
        self.lbo = lbo
        self.tx = tx
        self.lsd = lsd; self.lte = lte
        self.hx = hx
        self.hb = hb; self.ha = ha
        self.bf = bf
        self.c1n = c1n
        self.xnop = xnop
        self.pf128 = pf128; self.pfe = pfe
        self.swe = swe
        self.swn = swn
        self.cpy = cpy
        self.gforce = gforce
        self.lpri = lpri; self.tick = lambda: None
        self.lasy = lasy; self.lt = lt
        self.lord = lord
        self.gs = gs
        self.lcap = lcap; self.lrev = lrev
        self.ptrace = ptrace
        self.pbr = pbr; self.ppos = ppos
        self.w0hook = w0hook
        self.eo = eo
        self.k0 = k0; self.pG = pG
        self.npr = npr; self.pg = pg; self.dP = dP
        self.p1 = p1; self.epf = epf
        self.ins0 = ins0
        self.dZ = dZ; self.dE = dE
        self.pskip = pskip
        self.k1 = k1
        self.ks = ks; self.early = early
        self.dW = dW
        self.clk = 's_memrealtime' if rt else 's_memtime'
        self.pA = pA; self.pF = pF
        self.prof = prof; self.pstride = pstride
        self.a = a; self.tag = tag; self.fl = fl; self.lfl = lfl; self.pfl = pfl
        self.wsmem = WS_MEM + xoff; self.wspart = WS_PART + xoff; self.nsteps = nsteps; self.timing = timing
        self.dA = dA; self.dB = dB; self.d0 = d0; self.d1 = d1; self.dX = dX; self.nopub = nopub; self.nopf = nopf
        self.hook = hook; self.nomax = nomax; self.gap = gap; self.dual = dual; self.tstep = tstep; self.spinmax = spinmax

    def delay(self, n):
        if self.dm:
            for i in range(n // 4): self.a.ins(f'v_mfma_f32_16x16x32_bf16 v[{Rq[1]}:{Rq[1]+3}], a[{8*(i%8)}:{8*(i%8)+3}], a[{64+8*(i%8)}:{67+8*(i%8)}], 0' if self.dm == 1 else f'v_mfma_f32_16x16x16_bf16 v[{Rq[1]}:{Rq[1]+3}], v[{ZZ}:{ZZ+1}], v[{ZZ}:{ZZ+1}], 0')
            self.a.nop(n % 4 + 3)
            return
        k = (n - self.slo) // 16 if self.slp and n >= 16 + self.slo else 0
        if k: self.a.ins(f's_sleep {k}'); n -= 16 * k + self.slo
        if n > 0: self.a.nop(n)

    def stamp(self, i):
        if self.prof is not None:
            if i == self.prof and not getattr(self.a, '_prof', None): self.a.start_prof(sACC, self.pstride, 12, self.pskip)
        elif self.timing == 1 or (self.timing == 2 and i == 0): self.a.ins(f'{self.clk} s[{sACC+2*i}:{sACC+2*i+1}]')

    def addresses(self):
        a = self.a
        T0, T1, C, G = 0 + 24, 25, 26, 27
        a.valu('v_lshrrev_b32', v(T0), 6, 'v0')
        a.valu('v_lshlrev_b32', v(LH), 4, 'v0')
        a.valu('v_add_u32', v(LW0), B_LW0, v(LH))
        a.valu('v_xor_b32', v(LW1), 1024, v(LH)); a.valu('v_add_u32', v(LW1), B_LW1, v(LW1))
        a.valu('v_xor_b32', v(LW2), 2048, v(LH)); a.valu('v_add_u32', v(LW2), B_LW1, v(LW2))
        a.valu('v_and_b32', v(L16), 1023, v(LH)); a.valu('v_add_u32', v(L16), B_LW1, v(L16))
        a.valu('v_and_b32', v(C), 15, 'v0')
        a.valu('v_bfe_u32', v(G), 'v0', 4, 2)
        a.valu('v_mov_b32', v(IDX), '0x4444'); a.valu('v_mov_b32', v(T1), '0xeeee')
        a.valu('v_cmp_lt_u32', 'vcc', 7, v(C))
        a.valu('v_cndmask_b32', v(IDX), v(IDX), v(T1), 'vcc')
        self.tick()
        a.valu('v_and_b32', v(PSX), 12, v(C)); a.valu('v_lshlrev_b32', v(PSX), 3, v(PSX))
        a.valu('v_and_b32', v(T1), 1, v(C)); a.valu('v_lshl_add_u32', v(PSX), v(T1), 4, v(PSX))
        a.valu('v_bfe_u32', v(T1), v(C), 1, 1); a.valu('v_lshl_add_u32', v(PSX), v(T1), 3, v(PSX))
        a.valu('v_lshl_add_u32', v(PST), v(G), 14, v(PSX)); a.valu('v_lshl_add_u32', v(PST), v(T0), 17, v(PST))
        self.tick()
        a.valu('v_and_b32', v(PSX), 63, v(PSX))
        a.valu('v_lshrrev_b32', v(T1), 1, v(T0)); a.valu('v_lshl_add_u32', v(PSX), v(T1), 18, v(PSX))
        a.valu('v_lshl_add_u32', v(PSX), v(G), 16, v(PSX))
        a.valu('v_lshrrev_b32', v(T1), 3, v(C)); a.valu('v_lshl_add_u32', v(PSX), v(T1), 15, v(PSX))
        a.valu('v_and_b32', v(T1), 1, v(T0)); a.valu('v_lshl_add_u32', v(PSX), v(T1), 6, v(PSX))
        self.tick()
        a.valu('v_and_b32', v(T1), 31, 'v0')
        a.valu('v_lshlrev_b32', v(MMW), 4, v(T1))
        a.valu('v_lshlrev_b32', v(28), 3, v(T1)); a.valu('v_add_u32', v(28), L_DUMP, v(28))
        a.valu('v_lshrrev_b32', v(T1), 1, v(T0)); a.valu('v_lshl_add_u32', v(MMW), v(T1), 9, v(MMW))
        a.valu('v_and_b32', v(T1), 1, v(T0)); a.valu('v_lshl_add_u32', v(MMW), v(T1), 3, v(MMW))
        a.valu('v_add_u32', v(MMW), L_MM, v(MMW))
        a.valu('v_cmp_gt_u32', 'vcc', 2, v(G))
        a.valu('v_cndmask_b32', v(MMW), v(MMW), v(28), 'vcc')
        self.tick()
        a.valu('v_xor_b32', v(LW3), 2048, v(LW1))
        a.valu('v_lshrrev_b32', v(OR0), 4, 'v0'); a.valu('v_lshlrev_b32', v(OR0), 7, v(OR0))
        a.valu('v_and_b32', v(T1), 7, v(C)); a.valu('v_lshl_add_u32', v(OR0), v(T1), 4, v(OR0)); a.valu('v_add_u32', v(OR0), L_OB, v(OR0))
        for i, r in enumerate((OA1, OA2, OA3)): a.valu('v_xor_b32', v(r), 512 * (i + 1), v(OR0))
        a.valu('v_lshrrev_b32', v(T1), 3, v(C)); a.valu('v_lshl_add_u32', v(OW), v(T1), 3, v(OR0))
        a.valu('v_or_b32', v(MMR), 512, v(L16)); a.valu('v_lshlrev_b32', v(PFA), 2, v(LH))
        if self.pf128: a.valu('v_and_b32', v(PFA), '0xffffff80', v(PFA))
        a.valu('v_mov_b64', v(ZZ, 2), 0)
        a.valu('v_and_b32', v(T1), 1, v(G)); a.valu('v_lshlrev_b32', v(MST), 7, v(T1))
        a.valu('v_lshrrev_b32', v(T1), 1, v(G)); a.valu('v_lshl_add_u32', v(MST), v(T1), 3, v(MST))
        a.valu('v_and_b32', v(T1), 3, v(C)); a.valu('v_lshl_add_u32', v(MST), v(T1), 4, v(MST))
        a.valu('v_bfe_u32', v(T1), v(C), 2, 1); a.valu('v_lshl_add_u32', v(MST), v(T1), 2, v(MST))
        self.tick()
        a.salu('s_mov_b32', s(sSTM), '0x00ff00ff'); a.salu('s_mov_b32', s(sSTM + 1), '0x00ff00ff')
        a.salu('s_not_b64', s(sHI8, 2), s(sSTM, 2))
        a.salu('s_lshr_b32', s(sMSU), s(sH), 1); a.salu('s_lshl_b32', s(sMSU), s(sMSU), 8)
        a.salu('s_and_b32', s(sT0), s(sH), 1); a.salu('s_lshl_b32', s(sT0), s(sT0), 6); a.salu('s_add_u32', s(sMSU), s(sMSU), s(sT0))
        a.salu('s_and_b32', s(sT0), s(sW), 1); a.salu('s_lshl_b32', s(sT0), s(sT0), 12)
        a.salu('s_add_u32', s(sMSU), s(sMSU), s(sT0))
        a.salu('s_lshl_b32', s(sPL), s(sH), 14); a.salu('s_add_u32', s(sPL), s(sPL), self.wspart - B_LW1)
        a.salu('s_add_u32', s(sT1), s(sPL), 8192)
        a.salu('s_add_u32', s(sPL), s(sPL), s(sT0))
        a.salu('s_and_b32', s(sT0), s(sH), 1); a.salu('s_lshl_b32', s(sT0), s(sT0), 2); a.salu('s_or_b32', s(sT0), s(sT0), s(sW))
        a.salu('s_cmp_eq_u32', s(sT0), 5, nodst=True)
        a.salu('s_cselect_b32', s(sROLE), 0, s(sW))
        a.salu('s_cmp_lg_u32', s(sW), 1, nodst=True)
        a.ins(f's_cbranch_scc1 {self.tag}_notx')
        a.salu('s_mov_b32', s(sSTM), '0xff'); a.salu('s_mov_b32', s(sSTM + 1), '0xff')
        a.salu('s_mov_b32', s(sPL), s(sT1))
        a.salu('s_lshr_b32', s(sMSU), s(sH), 3); a.salu('s_lshl_b32', s(sMSU), s(sMSU), 8)
        a.salu('s_and_b32', s(sT0), s(sH), 2); a.salu('s_lshl_b32', s(sT0), s(sT0), 6); a.salu('s_add_u32', s(sMSU), s(sMSU), s(sT0))
        a.salu('s_and_b32', s(sT0), s(sH), 4); a.salu('s_lshl_b32', s(sT0), s(sT0), 4); a.salu('s_add_u32', s(sMSU), s(sMSU), s(sT0))
        a.salu('s_add_u32', s(sMSU), s(sMSU), 8192)
        a.label(f'{self.tag}_notx')
        a.salu('s_cmp_lg_u32', s(sW), 0, nodst=True)
        a.ins(f's_cbranch_scc1 {self.tag}_notp')
        a.salu('s_min_u32', s(sT0), s(sH), 23); a.salu('s_mul_i32', s(sT0), s(sT0), 384); a.salu('s_add_u32', s(sT0), s(sT0), L_MBUF)
        a.valu('v_add_u32', v(MST), s(sT0), v(LH))
        a.valu('v_mov_b32', v(T1), L_NON)
        a.valu('v_cmp_lt_u32', 'vcc', 23, 'v0')
        a.valu('v_cndmask_b32', v(MST), v(MST), v(T1), 'vcc')
        a.label(f'{self.tag}_notp')
        a.fence()

    def init_exchange(self):
        a = self.a; srd = s(SRD, 4)
        self.tick()
        for i in range(4): a.valu('v_mov_b32', v(28 + i), 1)
        a.salu('s_lshl_b32', s(sT0), s(sH), 14); a.salu('s_add_u32', s(sT0), s(sT0), self.wspart)
        for rd in range(3):
            a.salu('s_add_u32', s(sT1), s(sT0), rd * 4096)
            a.vmem('buffer_store_dwordx4', v(28, 4), v(LH), srd, s(sT1), mods='offen ' + self.fl, load=False, data=v(28, 4))
        a.salu('s_cmp_eq_u32', s(sROLE), 0, nodst=True)
        a.salu('s_cselect_b64', 'exec', 0, s(sSTM, 2))
        a.valu('v_mov_b32', v(27), -1)
        for i in range(4):
            a.salu('s_add_u32', s(sT1), s(sMSU), self.wsmem + i * 16384)
            a.vmem('buffer_store_dword', v(27), v(MST), srd, s(sT1), mods='offen ' + self.fl, load=False)
        a.salu('s_mov_b64', 'exec', -1)
        self.tick()
        a.salu('s_mov_b64', s(68, 2), s(sPTR, 2))
        a.salu('s_mov_b32', s(70), 9216); a.salu('s_mov_b32', s(71), '0x20000')
        a.valu('v_and_b32', v(25), 7, 'v0'); a.valu('v_mul_u32_u24', v(25), 1152, v(25))
        a.valu('v_lshrrev_b32', v(26), 3, 'v0'); a.valu('v_lshl_add_u32', v(25), v(26), 4, v(25))
        a.vmem('buffer_load_dwordx4', v(36, 4), v(25), s(68, 4), 0, mods='offen')
        a.vmem('buffer_load_dwordx4', v(40, 4), v(25), s(68, 4), 0, mods='offen offset:512')
        a.valu('v_bfe_u32', v(25), 'v0', 2, 3); a.valu('v_mul_u32_u24', v(25), 1152, v(25))
        a.valu('v_lshrrev_b32', v(26), 5, 'v0'); a.valu('v_lshl_add_u32', v(25), v(26), 4, v(25))
        a.valu('v_and_b32', v(26), 3, 'v0'); a.valu('v_lshl_add_u32', v(25), v(26), 2, v(25))
        a.vmem('buffer_load_dword', v(44), v(25), s(68, 4), 0, mods='offen offset:1024')

    def init_late(self):
        a = self.a; srd = s(SRD, 4)
        for r in range(36, 45): a.valu('v_min_u32', v(r), -2, v(r))
        a.salu('s_lshl_b32', s(sMEM), s(sH), 16); a.salu('s_add_u32', s(sMEM), s(sMEM), WS_M0)
        a.salu('s_add_u32', s(sT1), s(sMEM), 4096); a.salu('s_add_u32', s(sT2), s(sMEM), 8192)
        a.valu('v_lshrrev_b32', v(45), 2, v(LH))
        a.vmem('buffer_store_dwordx4', v(36, 4), v(LH), srd, s(sMEM), mods='offen ' + self.fl, load=False, data=v(36, 4))
        a.vmem('buffer_store_dwordx4', v(40, 4), v(LH), srd, s(sT1), mods='offen ' + self.fl, load=False, data=v(40, 4))
        a.vmem('buffer_store_dword', v(44), v(45), srd, s(sT2), mods='offen ' + self.fl, load=False)

    def constants(self):
        a = self.a
        C, E, LO, HI = 28, 29, 31, 32
        a.valu('v_bfe_u32', v(C), v(LH), 4, 4)
        a.valu('v_bfe_u32', v(E), v(LH), 8, 1); a.valu('v_lshlrev_b32', v(E), 2, v(E)); a.valu('v_sub_u32', v(E), v(C), v(E))
        a.valu('v_mov_b32', v(LO), '0x3f80'); a.valu('v_mov_b32', v(HI), '0x3f800000')
        for m in range(4):
            self.tick()
            lo = 2 * m if m < 2 else 2 * m + 4
            a.valu('v_cmp_eq_u32', 'vcc', lo, v(E)); a.valu('v_cndmask_b32', v(16 + m), 0, v(LO), 'vcc')
            a.valu('v_cmp_eq_u32', 'vcc', lo + 1, v(E)); a.valu('v_cndmask_b32', v(16 + m), v(16 + m), v(HI), 'vcc')
            a.valu('v_cmp_eq_u32', 'vcc', 2 * m, v(C)); a.valu('v_cndmask_b32', v(20 + m), 0, v(LO), 'vcc')
            a.valu('v_cmp_eq_u32', 'vcc', 2 * m + 1, v(C)); a.valu('v_cndmask_b32', v(20 + m), v(20 + m), v(HI), 'vcc')

    def constants_put(self):
        a = self.a
        a.ds('ds_write_b128', v(MMR), v(16, 4), mods=f'offset:{L_TB - 512 - B_LW1}')
        a.ds('ds_write_b128', v(L16), v(20, 4), mods=f'offset:{L_SEL - B_LW1}')
        for m in range(4): a.valu('v_mov_b32', v(44 + m), s(sNONCE))
        a.valu('v_mov_b32', v(48), L_NON)
        a.ds('ds_write_b128', v(48), v(44, 4))

    def load_lanes(self):
        a = self.a
        GA, GO, GX, TA, TO, TX, T0, T1, T2 = 48, 49, 50, 51, 52, 53, 54, 55, 56
        L = 57
        a.valu('v_lshrrev_b32', v(T0), 6, 'v0')
        a.valu('v_readfirstlane_b32', s(sW), v(T0))
        a.valu('v_and_b32', v(L), 63, 'v0')
        def bit(dst, src, b, sh, acc):
            a.valu('v_bfe_u32', v(T0), v(src), b, 1)
            if acc: a.valu('v_lshl_add_u32', v(dst), v(T0), sh, v(dst))
            else: a.valu('v_lshlrev_b32', v(dst), sh, v(T0))
        bit(GA, L, 2, 13, 0); bit(GA, L, 3, 15, 1); bit(GA, L, 4, 14, 1); bit(GA, L, 5, 16, 1)
        a.valu('v_lshrrev_b32', v(T1), 4, v(L)); a.valu('v_and_b32', v(T1), 2, v(T1)); a.valu('v_xor_b32', v(T1), v(T1), v(L))
        a.valu('v_and_b32', v(T1), 3, v(T1)); a.valu('v_lshl_add_u32', v(GA), v(T1), 4, v(GA))
        bit(TA, L, 2, 6, 0); bit(TA, L, 3, 9, 1); bit(TA, L, 4, 7, 1); bit(TA, L, 5, 12, 1)
        bit(TA, L, 0, 3, 1); bit(TA, L, 1, 4, 1); bit(TA, L, 3, 5, 1)
        a.valu('v_lshrrev_b32', v(T1), 3, v(L)); a.valu('v_mul_u32_u24', v(GO), 1152, v(T1))
        a.valu('v_and_b32', v(T1), 7, v(L)); a.valu('v_lshl_add_u32', v(GO), v(T1), 4, v(GO))
        bit(TO, L, 4, 13, 0); bit(TO, L, 5, 9, 1); bit(TO, L, 2, 7, 1); bit(TO, L, 3, 5, 1)
        a.valu('v_and_b32', v(T1), 3, v(L)); a.valu('v_lshl_add_u32', v(TO), v(T1), 3, v(TO))
        a.valu('v_lshrrev_b32', v(T1), 2, v(L)); a.valu('v_mul_u32_u24', v(GX), 1152, v(T1))
        a.valu('v_and_b32', v(T1), 3, v(L)); a.valu('v_lshl_add_u32', v(GX), v(T1), 4, v(GX))
        bit(TX, L, 4, 12, 0); bit(TX, L, 5, 8, 1); bit(TX, L, 2, 6, 1); bit(TX, L, 3, 5, 1)
        a.valu('v_and_b32', v(T1), 3, v(L)); a.valu('v_lshl_add_u32', v(TX), v(T1), 3, v(TX))
        sWK, sX16 = 66, 93
        a.salu('s_lshl_b32', s(sWK), s(sW), 10)
        a.salu('s_and_b32', s(sX16), s(sW), self.gs - 1); a.salu('s_lshl_b32', s(sX16), s(sX16), 14)
        a.salu('s_and_b32', s(75), s(sW), 4 - self.gs); a.salu('s_lshl_b32', s(75), s(75), 19)
        for r in (TA, TO, TX): a.valu('v_add_u32', v(r), s(sWK), v(r))
        a.valu('v_mov_b32', v(58), v(GA))
        a.salu('s_mov_b32', s(SRDW + 2), 576 * 8192); a.salu('s_mov_b32', s(SRDW + 3), '0x20000')

    def load_sub(self):
        a = self.a; t = self.tag
        a.label(f'{t}_dma')
        a.salu('s_xor_b32', s(74), s(76), s(81))
        a.salu('s_add_u32', 'm0', s(74), s(80))
        a.salu('s_add_u32', s(76), s(76), 4096)
        a.raw(f'    buffer_load_dwordx4 v58, s[{SRDW}:{SRDW+3}], s78 offen lds')
        a.salu('s_add_u32', s(78), s(78), s(79))
        a.salu('s_cmp_lt_u32', s(76), s(77), nodst=True)
        a.ins(f's_cbranch_scc1 {t}_dma')
        a.ins('s_setpc_b64 s[82:83]')

    def load_weights(self):
        a = self.a; t = self.tag
        GA, GO, GX, TA, TO, TX, T0, T1, T2 = 48, 49, 50, 51, 52, 53, 54, 55, 56
        sWK, sCOL, sOB, sX16, sKS = 66, 67, 92, 93, 94
        a.salu('s_lshl_b32', s(sCOL), s(sH), 8); a.salu('s_lshl_b32', s(sT0), s(sW), 6); a.salu('s_add_u32', s(sCOL), s(sCOL), s(sT0))
        a.salu('s_mul_i32', s(sOB), s(sH), 128 * 1152)
        a.salu('s_lshr_b32', s(73), s(sPTR + 2), 8); a.salu('s_add_u32', s(73), s(73), s(sH)); a.salu('s_and_b32', s(73), s(73), 31)
        a.salu('s_bitcmp1_b32', '0xa2222222', s(73), nodst=True)
        a.salu('s_cselect_b32', s(88), 1 if self.cpy else 0, 0); a.salu('s_mov_b32', s(72), 0)
        a.salu('s_add_u32', s(73), s(73), 1); a.salu('s_lshr_b32', s(73), s(73), 2)
        def switch():
            L = f'{t}_ncp{len(a.lines)}'
            a.salu('s_cmp_eq_u32', s(88), 0, nodst=True)
            a.ins(f's_cbranch_scc1 {L}')
            self.cpy(a, L)
            a.salu('s_mov_b32', s(88), 0); a.salu('s_mov_b32', s(72), 5)
            a.salu('s_lshl_b32', s(74), s(73), 19); a.salu('s_add_u32', s(74), s(74), WS_CPY)
            a.salu('s_add_u32', s(sPTR + 2), s(SRD), s(74)); a.salu('s_addc_u32', s(sPTR + 3), s(SRD + 1), 0)
            for i in ((4, 6) if self.swn < 4 else (4,)): a.salu('s_add_u32', s(sPTR + i), s(sPTR + i - 2), 576 * 256); a.salu('s_addc_u32', s(sPTR + i + 1), s(sPTR + i - 1), 0)
            a.salu('s_lshl_b32', s(sCOL), s(sW), 6)
            a.valu('v_and_b32', v(T0), 63, v(GA)); a.valu('v_lshrrev_b32', v(GA), 13, v(GA)); a.valu('v_lshl_add_u32', v(GA), v(GA), 8, v(T0))
            a.lines.append(L + ':')
            cur['va'] = None; cur['st'] = None; cur['m'] = None; cur['sw'] = True
        pW = {'q': sPTR + 2, 'k': sPTR + 4, 'v': sPTR + 6, 'o': sPTR + 8}
        cur = {'m': None, 'va': GA, 'st': None, 'x': None, 'sw': False}
        def call(m, va, step, xm, buf, lo, hi):
            if cur['m'] != m: a.salu('s_mov_b64', s(SRDW, 2), s(pW[m], 2)); cur['m'] = m
            if cur['va'] != va: a.valu('v_mov_b32', v(58), v(va)); cur['va'] = va
            if cur['st'] != step:
                if va == GA and cur['sw']: a.salu('s_lshr_b32', s(79), step, s(72))
                else: a.salu('s_mov_b32', s(79), step)
                cur['st'] = step
            if cur['x'] != xm: a.salu('s_mov_b32', s(81), xm); cur['x'] = xm
            if lo == 0: a.salu('s_add_u32', s(80), s(sWK), buf); a.salu('s_mov_b32', s(76), 0)
            a.salu('s_mov_b32', s(77), hi * 4096)
            a.ins(f's_call_b64 s[82:83], {t}_dma')
            a.vm_seq += hi - lo
        def issue(job):
            kind, m, x, buf = job
            if kind == 'g':
                cur['ng'] = cur.get('ng', 0) + 1
                if self.cpy and self.swn < cur['ng'] <= self.swn + self.swe: switch()
                if self.cpy and self.swn <= cur['ng'] < self.swn + self.swe: self.cpy(a, None)
                a.salu('s_xor_b32', s(78), s(75), x * self.gs * 64 * 8192)
                if cur['sw']: a.salu('s_lshr_b32', s(78), s(78), s(72))
                a.salu('s_add_u32', s(78), s(78), s(sCOL))
                for p in range(0, 4 * self.gs, 2): call(m, GA, 16 * 8192, s(sX16), buf, p, p + 2); yield
            elif kind == 's':
                if cur['sw']: a.salu('s_lshr_b32', s(78), 512 * 8192, s(72)); a.salu('s_add_u32', s(78), s(78), s(sCOL))
                else: a.salu('s_add_u32', s(78), s(sCOL), 512 * 8192)
                for p in (0, 2): call(m, GA, 16 * 8192, 0, buf, p, p + 2); yield
            elif kind == 'o':
                a.salu('s_xor_b32', s(sKS), s(sW), x[1]); a.salu('s_mul_i32', s(sKS), s(sKS), 32 * 1152)
                a.salu('s_add_u32', s(sKS), s(sKS), s(sOB))
                a.salu('s_lshl_b32', s(74), s(sW), 7); a.salu('s_add_u32', s(sKS), s(sKS), s(74))
                a.salu('s_add_u32', s(78), s(sKS), x[0] * 512)
                for p in (0, 2): call(m, GO, 8 * 1152, 0, buf, p, p + 2); yield
            else:
                for kk in range(2):
                    a.salu('s_xor_b32', s(sKS), s(sW), 2 * kk); a.salu('s_mul_i32', s(sKS), s(sKS), 32 * 1152)
                    a.salu('s_add_u32', s(sKS), s(sKS), s(sOB))
                    a.salu('s_lshr_b32', s(74), s(sW), 1); a.salu('s_lshl_b32', s(74), s(74), 6)
                    a.salu('s_add_u32', s(sKS), s(sKS), s(74))
                    a.salu('s_add_u32', s(78), s(sKS), 1024)
                    call(m, GX, 16 * 1152, 0, buf, 2 * kk, 2 * kk + 2); yield
        def build(frs, base, offs, buf):
            a.valu('v_add_u32', v(T1), buf, v(base))
            if base == TA: a.valu('v_xor_b32', v(T2), 32, v(T1))
            tmp = {}
            for fi, f in enumerate(frs):
                k, b = ('v', 8 * fi) if f in LDS_ADDR else REGF[f]
                for jp in range(4):
                    alt, off = offs(fi, jp)
                    a.ds('ds_read_b64_tr_b16', R(b + 2 * jp, 2, k), v(T2 if alt else T1), mods=f'offset:{off}')
                self.tick()
            self.side()
            a.wait(lds='all')
            wr = False
            for fi, f in enumerate(frs):
                if f in LDS_ADDR:
                    rg, off = lds_base(LDS_ADDR[f])
                    if rg == LW1:
                        a.ins('s_barrier')
                    a.ds('ds_write_b128', v(rg), v(8 * fi, 4), mods=f'offset:{off}')
                    a.ds('ds_write_b128', v(rg), v(8 * fi + 4, 4), mods=f'offset:{off + 4096}')
                    wr = True
            if wr: a.wait(lds='all')
        oq = lambda fi, jp: (fi, (jp >> 1) * 8192 + (jp & 1) * 256)
        oo = lambda fi, jp: (0, (jp >> 1) * 4096 + (jp & 1) * 256 + fi * 64)
        ox = lambda fi, jp: (0, fi * 8192 + (jp >> 1) * 512 + (jp & 1) * 128)
        def consume(job):
            kind, m, x, buf = job
            if kind == 'g':
                for i in range(self.gs): build([(m, 0, x * self.gs + i), (m, 1, x * self.gs + i)], TA, oq, buf + i * 16384)
            elif kind == 's': build([(m, 0, 8), (m, 1, 8)], TA, oq, buf)
            elif kind == 'o': build([('o', 2 * x[0], x[1]), ('o', 2 * x[0] + 1, x[1])], TO, oo, buf)
            else: build([('o', 4, 0), ('o', 4, 1)], TX, ox, buf)
        jobs = [['o', 'o', x, None] for x in ((0, 0), (0, 1), (0, 2), (0, 3), (1, 0), (1, 1))] + [['s', 'v', 8, None]] + [['g', 'v', x, None] for x in range(4)] + [
                ['g', 'k', 2, None], ['g', 'k', 3, None], ['g', 'q', 2, None], ['g', 'q', 3, None], ['s', 'q', 8, None], ['g', 'q', 1, None],
                ['g', 'q', 0, 64 * K], ['g', 'k', 0, 0], ['g', 'k', 1, 32 * K], ['x', 'o', 0, 144 * K], ['o', 'o', (1, 3), 128 * K], ['o', 'o', (1, 2), 112 * K], ['s', 'k', 8, 80 * K]]
        size = lambda j: self.gs * 16 * K if j[0] == 'g' else 16 * K
        def finals(j):
            if j[:3] == ['g', 'q', 0]: return [(64 * K, 80 * K)]
            if j[3] is not None and j[4]: return [(j[3], j[3] + size(j))]
            return []
        for j in jobs: j.append(j[3] is not None)
        def place(n, done):
            busy = [(jobs[x][3], jobs[x][3] + size(jobs[x])) for x in range(done, n)] + [sp for x in range(n) for sp in finals(jobs[x])]
            if not jobs[n][4]: busy += finals(jobs[n])
            cands = [K * [112, 80, 16, 0, 144, 96, 32, 112, 64, 0, 32, 128, 64, 0, 32, 96, 112, 64, 0, 32, 144, 128, 112, 80][n]]
            for lo in cands:
                if all(b[1] <= lo or b[0] >= lo + size(jobs[n]) for b in busy): return lo
            return None
        tags = {}; S = dict(n=0, gen=None, left=0, j=0, out=0, bonus=0, bq=0)
        def tick(force=False):
            if S['gen'] is None:
                n = S['n']
                if n >= len(jobs): return False
                lo = place(n, S['j'])
                if lo is None: return False
                if S['out'] + 2 > min(24, self.lcap + S['bonus']) and not force: return False
                jobs[n][3] = lo; S['gen'] = issue(jobs[n][:4]); S['left'] = size(jobs[n]) // 8192
            elif S['out'] + 2 > min(24, self.lcap + S['bonus']) and not force: return False
            next(S['gen']); S['left'] -= 1; S['out'] += 2
            if S['left'] == 0: tags[S['n']] = a.vm_seq; S['n'] += 1; S['gen'] = None
            return True
        self.tick = tick
        pend = list(self.stages); mark = None
        chunks = []
        filler = []
        def chop(f, chunks=chunks):
            sub = Asm(); sub.auto = False; sub.lines = ['@'] * 0
            keep_a, keep_t = self.a, self.tick
            cuts = []
            def cutp(): sub.fence(); cuts.append((len(sub.lines), sub.vm_seq))
            self.a, self.tick = sub, cutp
            f(sub); cutp()
            self.a, self.tick = keep_a, keep_t
            l0 = q0 = 0
            for l1, q1 in cuts:
                if l1 > l0: chunks.append((sub.lines[l0:l1], q1 - q0))
                l0, q0 = l1, q1
        def side():
            if chunks:
                ls, nq = chunks.pop(0)
                a.fence(); a.lines += ls; a.pos += len(ls); a.vm_seq += nq
                nst = sum('buffer_store' in x for x in ls)
                if nst and self.lbo: S['bonus'] += nst + 1; S['bq'] = a.vm_seq
                if not chunks: S['mark'] = a.vm_seq
            elif filler:
                ls, nq = filler.pop(0)
                a.fence(); a.lines += ls; a.pos += len(ls)
        self.side = side
        chop(lambda a: (self.loop_scalars(), self.constants()), filler)
        for i in range(self.lpri): tick()
        for j in range(len(jobs)):
            S['j'] = j
            if j in tags and tags[j] > S['bq']: S['bonus'] = 0
            if pend and not chunks and (S.get('mark') is None or (j > 0 and tags[j - 1] > S['mark'])):
                chop(pend.pop(0))
                if j == 0:
                    while tick(): pass
                    for i in range(self.lsd): side()
            if len(jobs) - j in self.at:
                assert not pend and not chunks and not filler
                self.at[len(jobs) - j](a)
            while tick(): pass
            while j not in tags: assert tick(True)
            a.wait(vm=tags[j])
            self.outs = getattr(self, 'outs', []) + [S['out']]
            S['out'] -= size(jobs[j]) // 4096
            consume(jobs[j][:4])
            if self.ptrace: self.ptrace(a, j)
        self.tick = lambda: None
        assert not pend
        self.sched = [(j[:4]) for j in jobs]
        a.ins('s_barrier')

    def prologue(self, st1=None, st2=None, st3=None, st4=None, late=None):
        a = self.a
        def s0(a): self.addresses(); self.init_exchange()
        def s1(a):
            if st1: st1(a)
        def s4(a):
            self.init_late()
            if st4: st4(a)
            else: self.touch_kv()
        self.stages = [s0] + ([s1] if st1 else []) + [x for x in (st2,) if x]
        self.at = {self.lt: s4, self.lte: lambda a: self.touch_exchange()}
        if st3: self.at[self.lasy] = st3
        self.load_weights()
        if late: late(a)
        self.constants_put()
        a.wait(vm='all', lds='all')
        a.fence()

    def loop_scalars(self):
        a = self.a
        a.salu('s_mov_b32', s(sC1), '0x3e0293ee'); a.salu('s_mov_b32', s(sC1 + 1), s(sC1))
        a.salu('s_mov_b32', s(sNC1), '0x42000000' if not self.gforce else 0)
        a.salu('s_mov_b32', s(sONE), '0x3f803f80'); a.salu('s_mov_b32', s(sONE + 1), s(sONE))
        a.salu('s_mov_b32', s(sHALF), '0x3e803e80'); a.salu('s_mov_b32', s(sHALF + 1), s(sHALF))
        a.salu('s_mov_b32', s(sSTEP), 0)
        a.salu('s_lshl_b32', s(sD1), s(sW), 10); a.salu('s_add_u32', s(sD1), s(sD1), L_MBUF + 4096)
        a.salu('s_lshl_b32', s(sD1 + 1), s(sW), 8); a.salu('s_add_u32', s(sD1 + 1), s(sD1 + 1), L_MBUF + 8192)
        a.salu('s_lshl_b32', s(sPF), s(sH), 14); a.salu('s_add_u32', s(sPF), s(sPF), WS_KV)
        a.salu('s_add_u32', s(sAL), s(sPF), (self.nsteps - 1) * 32 * 16384)
        a.salu('s_mul_i32', s(sT0), s(sW), 3072); a.salu('s_add_u32', s(sKX), s(sPF), s(sT0))
        a.salu('s_lshl_b32', s(sPS0), s(sH), 7); a.salu('s_add_u32', s(sPS0), s(sPS0), self.wspart)
        a.salu('s_add_u32', s(sPS1), s(sPS0), 65536)
        a.salu('s_add_u32', s(sLO8), s(sPS0), 4096); a.salu('s_add_u32', s(sLO8 + 1), s(sPS1), 4096)
        a.salu('s_lshl_b32', s(sPSX), s(sH), 7); a.salu('s_add_u32', s(sPSX), s(sPSX), self.wspart + 8192)
        self.tick()
        a.salu('s_lshl_b32', s(sT0), s(sH), 12)
        a.salu('s_add_u32', s(sKM), s(sT0), WS_KM + (self.nsteps - 2) * 32 * 4096)
        a.salu('s_add_u32', s(sVM), s(sT0), WS_VM + (self.nsteps - 2) * 32 * 4096)
        a.salu('s_lshl_b32', s(sFV), s(sH), 9); a.salu('s_add_u32', s(sFV), s(sFV), WS_MEMH)
        a.salu('s_lshl_b32', s(sT0), s(sW), 5); a.salu('s_or_b32', s(sT0), s(sT0), s(sH))
        a.salu('s_cmp_lt_u32', s(sT0), 24, nodst=True)
        a.salu('s_cselect_b32', s(sW0M), '0x1ffffff', 0); a.salu('s_mov_b32', s(sW0M + 1), 0)
        a.salu('s_lshl_b32', s(sFL), s(sH), 7); a.salu('s_add_u32', s(sFL), s(sFL), SY_CHF)
        a.salu('s_lshl_b32', s(sT0), s(sW), 2); a.salu('s_add_u32', s(sFL), s(sFL), s(sT0))

    def touch_kv(self):
        a = self.a
        if self.ntk: return
        a.salu('s_add_u32', s(sT0), s(sPF), 32 * 16384)
        a.ins(f'buffer_load_dword v30, v{PFA}, s[{SRD}:{SRD+3}], s{sPF} offen sc1')
        a.ins(f'buffer_load_dword v30, v{PFA}, s[{SRD}:{SRD+3}], s{sT0} offen sc1')

    def touch_exchange(self):
        a = self.a
        a.valu('v_lshlrev_b32', v(45), 3, v(LH))
        a.salu('s_lshl_b32', s(sT0), s(sH), 14); a.salu('s_add_u32', s(sT0), s(sT0), self.wspart - self.wsmem)
        a.salu('s_lshl_b32', s(sT1), s(sH), 11); a.salu('s_sub_u32', s(sT1), s(sT1), 96 * 128)
        a.valu('v_add_u32', v(30), s(sT0), v(45)); a.valu('v_add_u32', v(45), s(sT1), v(45))
        a.valu('v_cmp_gt_u32', 'vcc', 96 * 16, v(LH))
        a.valu('v_cndmask_b32', v(45), v(45), v(30), 'vcc')
        a.salu('s_lshl_b32', s(sT0), s(sH), 16); a.salu('s_add_u32', s(sT0), s(sT0), WS_M0 - self.wsmem - 112 * 128)
        a.valu('v_lshlrev_b32', v(30), 3, v(LH)); a.valu('v_add_u32', v(30), s(sT0), v(30))
        a.valu('v_cmp_gt_u32', 'vcc', 112 * 16, v(LH))
        a.valu('v_cndmask_b32', v(45), v(30), v(45), 'vcc')
        a.valu('v_cmp_gt_u32', 'vcc', 184 * 16, v(LH))
        a.salu('s_mov_b32', s(sT0), self.wsmem)
        a.salu('s_mov_b64', 'exec', 'vcc')
        if self.tx == 1:
            a.salu('s_cmp_eq_u32', s(sW), 0, nodst=True); a.salu('s_cselect_b64', 'exec', 0, 'exec')
        a.ins(f'buffer_load_dword v30, v45, s[{SRD}:{SRD+3}], s{sT0} offen sc1')
        a.salu('s_mov_b64', 'exec', -1)

    def loop_init(self):
        a = self.a
        a.salu('s_mov_b32', 'm0', L_DUMP)
        a.salu('s_add_u32', s(sPF), s(sPF), 2 * 32 * 16384)
        m_ = (3 << (self.nsteps - 2)) | (self.spec[0] if self.spec else 0) | self.rt0
        a.salu('s_mov_b32', s(66), hex(m_ & 0xffffffff)); a.salu('s_mov_b32', s(67), hex(m_ >> 32))
        if self.timing:
            for i in range(24): a.salu('s_mov_b32', s(sACC + i), 0)

    def step(self):
        a = self.a; t = self.tag; fl = self.fl; lfl = self.lfl
        srd = s(SRD, 4); T = {}
        R0, R1, R2, R3, R4, R5, R6, R7, R8 = Rq
        ACCS = {'q0': AQ0, 'q1': AQ1, 'k0': AK0, 'k1': AK1, 'v0': AV0, 'v1': AV1}
        where = {}
        M = {}
        def fr(f, dst):
            rg, off = lds_base(LDS_ADDR[f])
            def f0(): where[f] = dst; a.ds('ds_read_b128', v(dst, 4), v(rg), mods=f'offset:{off}')
            def f1(): T[f] = a.ds('ds_read_b128', v(dst + 4, 4), v(rg), mods=f'offset:{off + 4096}')
            return f0, f1
        def xr(i): return {0: (LW0, B_LW0), 1: (LW1, B_LW1), 2: (LW2, B_LW1), 3: (LW3, B_LW1)}[i]
        def mr(sl, dst):
            def f():
                M[sl] = dst
                if sl == 8: T[('m', sl)] = a.ds('ds_read_b128', v(dst, 4), v(L16), mods=f'offset:{L_MBUF + 8192 - B_LW1}')
                else:
                    rg, b = xr(sl & 3)
                    T[('m', sl)] = a.ds('ds_read_b128', v(dst, 4), v(rg), mods=f'offset:{L_MBUF + (sl >> 2) * 4096 - b}')
            return f
        def wl(key): return lambda: a.wait(lds=T[key])
        def wv(key): return lambda: (a.wait(vm=T[key]) if T[key] > a.done['vm'] else None)
        def mm(o, sl):
            f = (o[0], int(o[1]), sl)
            a.mfma(SMF, v(ACCS[o], 4), v(M[sl], 4), v(where[f], 8) if f in LDS_ADDR else freg(f), v(IDX))
        def run(seq):
            for x in seq:
                if isinstance(x, tuple): mm(*x)
                elif x is not None: x()
        def sal(*args, **kw): return lambda: a.salu(*args, **kw)
        def val(*args, **kw): return lambda: a.valu(*args, **kw)
        def ins(x): return lambda: a.ins(x)
        def z2(r, c=0): return val('v_mov_b64', v(r, 2), c)
        def zero(lo, hi):
            for i in range(lo, hi, 2): z2(i)()
        def cvt(d, x, y=None): return val('v_cvt_pk_bf16_f32', v(d), v(x), v(x + 1 if y is None else y))
        def dpp(d, x, bm): return val('v_mov_b32_dpp', v(d), v(x), mods=f'row_ror:8 row_mask:0xf bank_mask:{bm}', rmw=True)
        def mf(op, d, A, B, C): return lambda: a.mfma(op, v(d, 4), v(A, 4 if op == MF32 else 2), v(B, 4 if op == MF32 else 2), 0 if C is None else v(C, 4))
        def zmf(d): return mf(MF16, d, ZZ, ZZ, None)
        def st(k): return lambda: self.stamp(k)
        LC, TM, LCW, MC = R8, R8 + 1, R8 + 2, R8 + 3
        def vbr(lab):
            a.ins(f's_cbranch_vccnz {lab}')
        def poll0(R0=R0):
            a.vmem('buffer_load_dwordx4', v(R0, 4), v(LH), srd, s(sMEM), mods='offen ' + lfl); a.nowait(v(R0, 4))
            if self.p0d:
                a.raw(f'    buffer_load_dwordx4 v{LH}, s[{SRD}:{SRD+3}], s{sMEM} offen {lfl} lds'); a.pos += 1; a.vm_seq += 1
        def dma1(i):
            def f():
                a.salu('s_mov_b32', 'm0', s(sD1 + i))
                a.nop(1)
                a.raw(f'    buffer_load_dwordx4 v{LH}, s[{SRD}:{SRD+3}], s{sMEM4} offen {lfl} lds' if i == 0 else f'    buffer_load_dword v{LC}, s[{SRD}:{SRD+3}], s{sMEM8} offen {lfl} lds')
                a.pos += 1; a.vm_seq += 1
            return f
        def rd1a(): a.ds('ds_read_b128', v(R1, 4), v(LW0), mods=f'offset:{L_MBUF + 4096 - B_LW0}')
        def rd1b(): a.ds('ds_read_b32', v(MC), v(LCW))
        m0d = sal('s_mov_b32', 'm0', L_DUMP)
        def poll1():
            a.vmem('buffer_load_dwordx4', v(R1, 4), v(LH), srd, s(sMEM4), mods='offen ' + lfl)
            a.vmem('buffer_load_dword', v(MC), v(LC), srd, s(sMEM8), mods='offen ' + lfl)
            a.nowait(v(R1, 4)); a.nowait(v(MC))
        def prefetch_top():
            run(list(fr(('q', 1, 0), R2)) + list(fr(('k', 0, 0), R4)) + list(fr(('k', 1, 0), R6)))
        def prefetch_av(): run(list(fr(('q', 0, 0), AV0)))
        def offsets():
            a.salu('s_add_u32', s(sMEM4), s(sMEM), 4096); a.salu('s_add_u32', s(sMEM8), s(sMEM), 8192)
        def pubk(r):
            if self.nopub: return
            a.salu('s_mov_b64', 'exec', s(sHI8, 2))
            a.vmem('buffer_store_dwordx4', v(r, 4), v(LH), srd, s(sKM), mods='offen ' + self.pfl, load=False, data=v(r, 4))
            a.salu('s_mov_b64', 'exec', -1)
        def pubv(r):
            if self.nopub: return
            a.vmem('buffer_store_dwordx4', v(r, 4), v(LH), srd, s(sVM), mods='offen ' + self.pfl, load=False, data=v(r, 4))
        def flag(r):
            if self.nopub: return
            a.salu('s_mov_b64', 'exec', 1)
            a.vmem('buffer_store_dword', v(r), 'off', srd, s(sFL), mods='sc1', load=False)
            a.salu('s_mov_b64', 'exec', -1)
        def pf(r):
            if self.nopf: return
            a.raw(f'    buffer_load_dword v{r}, s[{SRD}:{SRD+3}], s{sPF} offen sc1 lds'); a.pos += 1; a.vm_seq += 1

        offsets(); prefetch_top()
        a.salu('s_add_u32', s(sMRS), s(sMEM), s(sMSU))
        if self.p0d: a.salu('s_sub_u32', 'm0', s(sD1), 4096)
        a.salu('s_mov_b32', s(sSPIN), self.spinmax)
        poll0()
        a.raw('.p2align 6')
        a.label(f'{t}_loop')
        a.forget()
        zero(0, 16)
        a.label(f'{t}_loop2')
        st(0)()
        def top():
            prefetch_av()
            a.valu('v_lshrrev_b32', v(LC), 2, v(LH))
            a.valu('v_add_u32', v(LCW), L_MBUF + 8192, v(LC))
            if self.timing: a.salu('s_mov_b32', 's94', s(sSPIN))
            a.salu('s_mov_b32', s(sSPIN), self.spinmax)
            if self.hook: self.hook(a)
        top()
        for i in range(self.ks - 1):
            if self.pA: a.nop(self.pA)
            poll0()
        r1 = self.p1 == 3
        if r1:
            if self.dA: a.nop(self.dA)
            poll1()
        a.ins('s_waitcnt lgkmcnt(0)')
        a.label(f'{t}_chk0')
        a.ins(f's_waitcnt vmcnt({2 * self.ks - 1 if self.p0d else self.ks - 1 + (2 if r1 else 0)})')
        a.lines.append(f'{t}_chk0b:')
        st(1)()
        M[0] = R0; M[4] = R1
        K01, K11 = fr(('k', 0, 1), R2), fr(('k', 1, 1), R4)
        K02, K12 = fr(('k', 0, 2), R2), fr(('k', 1, 2), R4)
        K03, K13 = fr(('k', 0, 3), R2), fr(('k', 1, 3), R4)
        o2 = [sal('s_add_u32', s(sT3), s(sMEM), s(sMSU)), sal('s_add_u32', s(sT1), s(sMEM), 16384), sal('s_and_b32', s(sT1), s(sT1), 0xffff),
              sal('s_add_u32', s(sT1), s(sT1), self.wsmem), sal('s_add_u32', s(sMST), s(sT1), s(sMSU)), sal('s_and_b32', s(sTAG), s(sSTEP), 1)]
        a.valu('v_max3_u32', v(TM), v(R0), v(R0 + 1), v(R0 + 2)); a.valu('v_max_u32', v(TM), v(TM), v(R0 + 3))
        a.valu('v_cmp_eq_u32', 'vcc', -1, v(TM))
        if not self.p0d: wA = a.ds('ds_write_b128', v(LW0), v(R0, 4), mods=f'offset:{L_MBUF - B_LW0}')
        vbr(f'{t}_spin0')
        if self.p0d: run([('k1', 0), ins(f's_waitcnt vmcnt({2 * self.ks - 2})')])
        elif self.p1 == 4: run([('q0', 0), dma1(0), ('q1', 0), dma1(1), ('k1', 0), K01[0], zmf(AV0), K01[1], lambda: a.wait(lds=wA)])
        else: run([('q0', 0), poll1 if self.p1 in (1, 3) else None, ('q1', 0), K01[0], ('k1', 0), K01[1], zmf(AV0), lambda: a.wait(lds=wA)])
        a.ins('s_barrier')
        st(2)()
        p4 = self.p1 == 4
        KV = [R0, R2, R4, R5] if p4 else [R2, R3, R4, R5]
        M8 = R3 if p4 else R0
        def kx(i):
            def f(): T['kx', i] = a.vmem('buffer_load_dwordx4', v(KV[i], 4), v(LH), srd, s(sKX), mods=f'offen offset:{i*1024} ' + ('sc1', 'sc1 nt', 'nt')[self.kvnt])
            return f
        c1 = [val('v_max3_u32', v(TM), v(R1), v(R1 + 1), v(R1 + 2)), val('v_max3_u32', v(TM), v(TM), v(R1 + 3), v(MC)), val('v_cmp_eq_u32', 'vcc', -1, v(TM))]
        def w1a(): a.ds('ds_write_b128', v(LW0), v(R1, 4), mods=f'offset:{L_MBUF + 4096 - B_LW0}')
        def w1b(): T['wB'] = a.ds('ds_write_b32', v(LCW), v(MC))
        if self.p1 == 4:
            if self.p0d: run([mr(1, R6), ('q1', 0), K01[0], K01[1], ('q0', 0), dma1(0), ('k0', 0), dma1(1), zmf(AV0), K11[0], zmf(AV1), K11[1], ('q0', 1), mr(2, R7), ('v0', 0), m0d, ('v1', 0), o2[0], o2[1]])
            else: run([mr(1, R6), zmf(AV1), mr(2, R7), ('k0', 0), K11[0], ('v0', 0), K11[1], ('v1', 0), m0d, ('q0', 1), o2[0], o2[1]])
            run([('k0', 1), K02[0], ('q1', 1), K02[1], ('k1', 1), K12[0], ('v0', 1), K12[1], ('v1', 1), mr(3, R6),
                 ('q0', 2), ins('s_waitcnt vmcnt(0)'), st(3), rd1a, ('k0', 2), rd1b, kx(0), ('q1', 2), K03[0], ('k1', 2), K03[1], ('v0', 2), K13[0], ('v1', 2), K13[1],
                 lambda: a._autowait([('v', MC)], 'mc'), ('q0', 3), c1[0], ('q1', 3), c1[1], ('k0', 3), kx(1), c1[2], ('v0', 3), ('v1', 3)])
            vbr(f'{t}_spin1')
            a.lines.append(f'{t}_go1:')
        elif self.p1 == 2:
            run([mr(1, R6), zmf(AV1), poll1, mr(2, R7), ('k0', 0), K11[0], ('v0', 0), K11[1], ('v1', 0),
                 ('q0', 1), o2[0], o2[1], ('k0', 1), K02[0], ('q1', 1), K02[1], ('k1', 1), K12[0], ('v0', 1), K12[1], ('v1', 1), mr(3, R6),
                 ('k0', 2), K03[0], ('q0', 2), K03[1], ('k1', 2), K13[0], ('q1', 2), K13[1], ('v0', 2), ('v1', 2),
                 ('q0', 3), ins('s_waitcnt vmcnt(0)'), st(3), w1a, ('q1', 3), w1b, c1[0], c1[1], ('k0', 3), kx(0), c1[2], ('k1', 3), ('v0', 3)])
            vbr(f'{t}_spin1')
            a.lines.append(f'{t}_go1:')
            run([('v1', 3), wl('wB')])
        else:
            run([mr(1, R6), zmf(AV1), mr(2, R7), ('k0', 0), K11[0], ('v0', 0), K11[1], ('v1', 0),
                 ('q0', 1), o2[0], o2[1], ('k0', 1), K02[0], ('q1', 1), K02[1], ('k1', 1), K12[0], ('q0', 2), K12[1], ('q1', 2), mr(3, R6),
                 ('k0', 2), ins('s_waitcnt vmcnt(0)'), st(3), w1a, ('k1', 2), w1b, c1[0], ('q0', 3), K03[0], c1[1], ('q1', 3), K03[1], c1[2], ('v0', 2), K13[0], ('v1', 2), K13[1]])
            vbr(f'{t}_spin1')
            a.lines.append(f'{t}_go1:')
            run([('q0', 4), wl('wB')])
        a.ins('s_barrier')
        TB = R1
        def tbld(): T['tb'] = a.ds('ds_read_b128', v(TB, 4), v(MMR), mods=f'offset:{L_TB - 512 - B_LW1}')
        def pmld(R1=AQ0):
            if self.nopub: return
            a.salu('s_mov_b64', 'exec', s(sW0M, 2))
            a.ds('ds_read_b128', v(R1, 4), v(MST))
            a.salu('s_mov_b64', 'exec', -1)
        def pubm(R1=AQ0, restore=True):
            if self.nopub: return
            a._autowait([('v', R1 + i) for i in range(4)], 'pubm')
            L = f'{t}_np{len(a.lines)}'
            a.salu('s_mov_b64', 'exec', s(sW0M, 2))
            if self.pbr: a.ins(f's_cbranch_execz {L}')
            a.vmem('buffer_store_dwordx4', v(R1, 4), v(LH), srd, s(sFV), mods='offen ' + self.pfl, load=False, data=v(R1, 4))
            if self.pbr: a.pos -= 1; a.lines.append(L + ':')
            if restore: a.salu('s_mov_b64', 'exec', -1)
        K08, K18 = fr(('k', 0, 8), R6), fr(('k', 1, 8), R6)
        VB = 5 if self.p1 in (2, 4) else 1
        VL = 4 if self.p1 in (2, 4) else 3
        if self.p1 == 2: run([mr(5, R7), ('q0', 4), mr(6, R6), ('q1', 4), kx(1), ('k0', 4), mr(7, R8), o2[2], ('k1', 4), mr(8, R0), o2[3], o2[4], o2[5]])
        elif self.p1 == 4: run([mr(5, R7), ('k1', 3), mr(6, R6), ('q0', 4), kx(2), ('q1', 4), mr(7, R8), o2[2], ('k0', 4), mr(8, M8), o2[3], ('k1', 4), o2[4], o2[5]])
        else: run([mr(5, R7), ('q1', 4), mr(7, R8), ('k0', 4), lambda: a._autowait([('v', R4 + 4)], 'k13'), ('k0', 3), kx(0), ('k1', 3), mr(6, R6), ('k1', 4), mr(8, R0), o2[2], o2[3], ('v0', 4), kx(1), ('v1', 4), o2[4], o2[5]])
        run([('q0', 5), kx(3) if p4 else tbld, ('k0', 5), tbld if p4 else kx(2), ('q1', 5), ('k1', 5)] + ([K08[1], ('q0', 6), None if p4 else kx(3)] if self.p1 in (2, 4) else [('v0', 5), kx(3), ('v1', 5), K08[1], ('q0', 6)])
            + [('k0', 6), ('q1', 6), (lambda: pf(PFA)) if p4 else None, ('k1', 6), ('v0', 6), (lambda: pf(PFA)) if self.p1 not in (2, 4) else None, ('v1', 6), K08[0],
             ('q0', 7), (lambda: pf(PFA)) if self.p1 == 2 else None, sal('s_bitcmp1_b64', s(66, 2), s(sSTEP), nodst=True), ('q1', 7), ('q0', 8), ('q1', 8), ('k0', 7), lambda: a._autowait([('v', R6)], 'k08'), cvt(AQ0, AQ0),
             ('k0', 8), K18[0], cvt(AQ1, AQ1), ('k1', 7), K18[1], cvt(AQ1 + 1, AQ1 + 2), ('v0', 7), cvt(AQ0 + 1, AQ0 + 2),
             mf(MF16, AQ1, AQ1, TB, None), cvt(AQ0 + 2, AK0), cvt(AQ0 + 3, AK0 + 2), ('v1', 7), lambda: pmld(R8), mf(MF32, AK0, AQ0, TB, None), cvt(AQ0 + 2, AQ1), ('k1', 8), mr(VB, R6)])
        st(4)()
        heat = lambda: a.mfma(MF16, v(R6, 4), v(ZZ, 2), v(ZZ, 2), v(R6, 4))
        XF0, XF1, U22, U23, U32, U33 = fr(('o', 4, 0), R2), fr(('o', 4, 1), R6), fr(('o', 2, 2), R4), fr(('o', 2, 3), R2), fr(('o', 3, 2), R6), fr(('o', 3, 3), R4)
        run([cvt(AQ0 + 3, AQ1 + 2), wv(('kx', 1)), cvt(AQ0, AK0), cvt(AQ0 + 1, AK0 + 2), mf(MF32, AK0, KV[1], AQ0, None), cvt(AK1, AK1), cvt(AK1 + 1, AK1 + 2),
             mf(MF16, AK1, AK1, TB + 2, None), mr(VL, R7), XF0[0] if p4 else XF0[1], mf(MF32, R1, KV[0], AQ0, None), wv(('kx', 3)), None if p4 else XF0[0], sal('s_mov_b64', 'exec', s(sHI8, 2)),
             cvt(AQ0 + 2, AK1), cvt(AQ0 + 3, AK1 + 2), sal('s_mov_b64', 'exec', -1),
             mf(MF32, AQ1, AQ0, AQ0, None)]
            + [dpp(R1 + r, AK0 + r, '0xc') for r in range(4)] + [('v0', 8)])
        a.ds('ds_write_b128', v(LW0), v(R1, 4), mods=f'offset:{L_SC - B_LW0}')
        run([dpp(AQ1, AQ1 + 2, '0xc'), dpp(AQ1 + 1, AQ1 + 3, '0xc'), ('v1', 8)])
        ws_ = a.ds('ds_write_b64', v(MMW), v(AQ1, 2))
        if self.bf: run([('v0', 1), ins(f's_cbranch_scc1 {t}_last'), lambda: a.lines.append(f'{t}_back:'), ('v1', 1), XF0[0], ('v0', 3), zmf(AK1) if self.bf > 1 else None])
        else: run([('v0', VB), lambda: pubm(R8), ('v1', VB), ins(f's_cbranch_scc1 {t}_last'), lambda: a.lines.append(f'{t}_back:')] + [heat] * self.hb)
        a.wait(lds=ws_)
        a.ins('s_barrier')
        st(5)()
        X0, X1, X2, X3, MA, MB_ = R1, AK0, AQ1, AQ0, R8, AK1
        def xrd(i, d):
            rg, b = xr(i)
            return lambda: a.ds('ds_read_b128', v(d, 4), v(rg), mods=f'offset:{L_SC - b}')
        def mmrd(d, o): return lambda: a.ds('ds_read_b128', v(d, 4), v(MMR), mods=f'offset:{L_MM + o - B_LW1}')
        def mulc(d): return val('v_mul_f32', v(d), s(sC1), v(d))
        def fmc(d, x): return val('v_fmac_f32', v(d), s(sC1), v(x))
        BM, BT = AK0 + 2, AQ1
        AC = [R1, AQ1, AV0, AV1]; ACX = AK0
        WL, LQ, O0, O1 = R0, AQ0, AK1, AV1
        ET, EM = AQ0, MA + 2
        CK = AK0
        F = {0: AQ0, 1: R0, 2: AK1, 3: R8}
        def ex(d, x): return val('v_exp_f32', v(d), v(x))
        def pkf(d, x): return val('v_pk_fma_f32', v(d, 2), v(x, 2), s(sC1, 2), v(d, 2))
        BMT = R8 + 2
        mm_ = [val('v_pk_add_f32', v(MA, 2), v(MA, 2), v(MA + 2, 2)), val('v_pk_add_f32', v(MB_, 2), v(MB_, 2), v(MB_ + 2, 2)), val('v_pk_add_f32', v(MA, 2), v(MA, 2), v(MB_, 2)),
               val('v_pk_mul_f32', v(MA, 2), v(MA, 2), s(sC1, 2))]
        def pkm(d): return val('v_pk_mul_f32', v(d, 2), v(d, 2), s(sC1, 2))
        run(([mmrd(MA, -512), ('v0', VL), mmrd(MB_, 0), xrd(1, X1), ('v1', VL), xrd(2, X2), xrd(3, X3)] if self.ha else [mmrd(MA, -512), mmrd(MB_, 0), None if self.bf else ('v0', 3), xrd(1, X1), xrd(2, X2), ('v1', 3), xrd(3, X3)]) + [heat] * max(self.ha - 1, 0) + [
             z2(WL, s(sHALF, 2)), z2(WL + 2, s(sONE, 2)), cvt(AV0, AV0), cvt(AV0 + 1, AV0 + 2), pkm(X0), pkm(X0 + 2), lambda: a._autowait([('v', MB_)], 'mb')] + mm_ + [ex(EM, MA), ex(EM + 1, MA + 1),
             lambda: a._autowait([('v', X2)], 'x2'), pkf(X0, X1), pkf(X0 + 2, X1 + 2), cvt(BM, EM), pkf(X0, X2), pkf(X0 + 2, X2 + 2),
             pkf(X0, X3), dpp(BM + 1, BM, '0xf'), pkf(X0 + 2, X3 + 2)])
        st(6)()
        def soft(first):
            x_ = [cvt(AV0 + 2, AV1), cvt(AV0 + 3, AV1 + 2), None] if first else [None] * 3
            if not first: run([ex(EM, MA), ex(EM + 1, MA + 1), cvt(BM, EM), dpp(BM + 1, BM, '0xf')])
            run([ex(ET, X0), mf(MF16, O0, AV0, BM, None), XF1[0] if first else None, ex(ET + 1, X0 + 1), x_[0], ex(ET + 2, X0 + 2), x_[1], cvt(BT, ET), ex(ET + 3, X0 + 3), mf(MF16, O1, AV0 + 2, BM, None), XF1[1] if first else None,
                 cvt(BT + 1, ET + 2), dpp(BT + 2, BT, '0xf'), val('v_max3_f32', v(CK), f'|v{X0}|', f'|v{X0+1}|', f'|v{X0+2}|'), dpp(BT + 3, BT + 1, '0xf'), st(7) if first else None,
                 mf(MF32, LQ, WL, BM, None), XF0[1] if (first and p4) else None, val('v_max3_f32', v(CK), v(CK), f'|v{X0+3}|', f'|v{MA}|'), val('v_max_f32_e64', v(CK), v(CK), f'|v{MA+1}|'),
                 mf(MF32, O0, R4, BT, O0), val('v_cmp_nge_f32', 'vcc', s(sNC1), v(CK)),
                 mf(MF32, O1, R5, BT, O1),
                 val('v_add_f32_dpp', v(LQ), v(LQ), v(LQ), mods='row_ror:8 row_mask:0xf bank_mask:0xf'), val('v_rcp_f32', v(LQ), v(LQ))])
        soft(True)
        vbr(f'{t}_guard')
        a.lines.append(f'{t}_norm:')
        run([zmf(AC[0])]
            + [val('v_mul_f32', v(O0 + r), v(O0 + r), v(LQ)) for r in range(4)]
            + [val('v_mul_f32_dpp', v(O0 + r), v(O1 + r), v(LQ), mods='row_ror:8 row_mask:0xf bank_mask:0xc', rmw=True) for r in range(4)]
            + [cvt(O0, O0), cvt(O0 + 1, O0 + 2), zmf(AC[1])])
        wo = a.ds('ds_write_b64', v(OW), v(O0, 2))
        def guard():
            a.label(f'{t}_guard')
            a.forget()
            a.ins(f's_cbranch_scc0 {t}_guard2')
            pubv(AV0)
            a.salu('s_add_u32', s(sVM), s(sVM), 32 * 4096)
            a.salu('s_add_u32', s(sT0), s(sNONCE), self.nsteps - 1); a.valu('v_mov_b32', v(CK + 1), s(sT0)); flag(CK + 1)
            a.label(f'{t}_guard2')
            a.nop(8)
            M1, M2 = BM, BM + 1
            a.valu('v_max3_f32', v(M1), v(X0), v(X0 + 1), v(X0 + 2))
            a.valu('v_max3_f32', v(M2), v(X0 + 3), v(MA), v(MA + 1))
            a.valu('v_max_f32', v(M1), v(M1), v(M2))
            a.valu('v_max_f32_dpp', v(M1), v(M1), v(M1), mods='row_ror:8 row_mask:0xf bank_mask:0xf')
            for sw in ('v_permlane32_swap_b32', 'v_permlane16_swap_b32'):
                a.valu('v_mov_b32', v(M2), v(M1)); a.valu(sw, v(M1), v(M2)); a.valu('v_max_f32', v(M1), v(M1), v(M2))
            for d in (X0, X0 + 1, X0 + 2, X0 + 3, MA, MA + 1): a.valu('v_sub_f32', v(d), v(d), v(M1))
            soft(False)
            a.fence()
            a.ins(f's_branch {t}_norm')
        def E(u, i):
            def f():
                fg = ('o', u, i)
                a.mfma(SMF, v(ACX if u == 4 else AC[u], 4), v(F[2 * i if u == 4 else i], 4), v(where[fg], 8) if fg in LDS_ADDR else freg(fg), v(IDX))
            return f
        OA = [None, OA1, OA2, OA3]
        run([zmf(ACX), lambda: a.ds('ds_read_b128', v(F[0], 4), v(OR0)), zmf(AC[2]), U22[0], zmf(AC[3]), U22[1]])
        a.wait(lds=wo)
        a.ins('s_barrier')
        st(8)()
        if self.xnop: a.nop(self.xnop)
        def frd(i): return lambda: a.ds('ds_read_b128', v(F[i], 4), v(OA[i]))
        def tag(r): return val('v_and_or_b32', v(r), v(r), -2, s(sTAG))
        def fin(u):
            r = ACX if u == 4 else AC[u]
            so = [sPS0, sPS1, sLO8, sLO8 + 1, sPSX][u]
            return [cvt(r, r), cvt(r + 1, r + 2), tag(r), lambda: a.vmem('buffer_store_dwordx2', v(r, 2), v(PSX if u == 4 else PST), srd, s(so), mods='offen ' + fl, load=False)]
        P0 = [R4, R5, R6, R7]
        def shot(P):
            for i in range(4):
                a.vmem('buffer_load_dwordx4', v(P[i], 4), v(L16), srd, s(sPL), mods=f'offen offset:{1024 * i} ' + lfl)
            a.nowait(v(P[0], 16))
        def shot0():
            if not self.ins0: return
            if self.dE: a.nop(self.dE)
            a.ins(f's_cbranch_scc1 {t}_ns0')
            p = a.pos
            for r in P0: a.valu('v_not_b32', v(r), s(sTAG))
            shot(P0)
            a.pos = p
            a.lines.append(f'{t}_ns0:')
        f0, f1, f2, f3, fx = [fin(u) for u in range(5)]
        def aw(*regs): return lambda: a._autowait([('v', r) for r in regs], 'aw')
        if self.eo == 3:
          run([frd(1), frd(2), frd(3), E(0, 0), E(1, 0), E(4, 0), U23[0],
             aw(F[2]), E(0, 1), U23[1], E(0, 2), E(0, 3), E(1, 1), E(1, 2), f0[0], E(1, 3), f0[2], f0[1], E(4, 1), f0[3], U32[0], E(2, 2), U32[1], f1[0], f1[2], f1[1], E(2, 0), f1[3], st(9), U33[0],
             E(2, 1), U33[1], fx[0], E(2, 3), fx[2], E(3, 0), fx[1], E(3, 1), fx[3] if self.hx else None, f2[0], aw(R4 + 4), E(3, 2), f2[2], E(3, 3), sal('s_cmp_lg_u32', s(sW), 2, nodst=True), f2[1]]
             + [val('v_not_b32', v(r + o), s(sTAG)) for r in P0 for o in (0, 2)] + [f3[0], f3[2], f3[1]])
          if self.dE: a.nop(self.dE)
          a.ins(f's_cbranch_scc1 {t}_ns0')
          shot(P0)
          a.lines.append(f'{t}_ns0:')
          a.ins('s_barrier')
          run([None if self.hx else fx[3], f2[3], f3[3]])
        elif self.eo == 2:
          run([frd(1), frd(2), frd(3), E(0, 0), E(1, 0), E(4, 0), U23[0],
             aw(F[2]), E(0, 1), U23[1], E(0, 2), E(0, 3), E(1, 1), E(1, 2), f0[0], E(1, 3), f0[2], f0[1], E(4, 1), f0[3], U32[0], E(2, 2), U32[1], f1[0], f1[2], f1[1], E(2, 0), f1[3], st(9), U33[0],
             E(2, 1), U33[1], fx[0], E(2, 3), fx[2], fx[1], E(3, 0), fx[3], E(3, 1), f2[0], aw(R4 + 4), E(3, 2), f2[2], f2[1], E(3, 3), f2[3], sal('s_cmp_lg_u32', s(sW), 2, nodst=True), f3[0], f3[2], f3[1], f3[3]])
        else:
          run([frd(1), frd(2), frd(3), E(0, 0), E(1, 0), E(4, 0), U23[0], E(2, 0), U23[1],
             aw(F[2]), E(0, 1), E(4, 1), U32[0], E(0, 2), U32[1], E(0, 3), fx[0], E(2, 2), U33[0], fx[2], E(1, 1), U33[1], fx[1], E(1, 2), fx[3], f0[0], E(1, 3), f0[2], E(2, 1), f0[1],
             E(2, 3), f0[3], f1[0], aw(R4 + 4), E(3, 0), f1[2], E(3, 1), f1[1], E(3, 2), f1[3], st(9), f2[0], E(3, 3), f2[2], f2[1], f2[3], sal('s_cmp_lg_u32', s(sW), 2, nodst=True), f3[0], f3[2], f3[1], f3[3]])
        st(10)()
        P = [AQ0, AK0, AQ1, AK1]; RD, XT, NEG, SELR = R1, AV1, AV1 + 1, R8
        def finish():
            a.fence()
            a.ins(f's_branch {t}_loop')
        def publish():
            a.valu('v_cvt_pk_bf16_f32', v(RD), v(RD), v(RD + 2))
            a.salu('s_mov_b64', 'exec', s(sSTM, 2))
            a.vmem('buffer_store_dword', v(RD), v(MST), srd, s(sMST), mods='offen ' + fl, load=False)
            st(11)()
        def reset():
            a.salu('s_mov_b64', 'exec', -1)
        def reset_old():
            a.valu('v_mov_b32', v(NEG), -1)
            a.salu('s_mov_b64', 'exec', s(sSTM, 2))
            a.vmem('buffer_store_dword', v(NEG), v(MST), srd, s(sMRS), mods='offen ' + fl, load=False)
            a.salu('s_mov_b64', 'exec', -1)
            a.salu('s_mov_b32', s(sMRS), s(sT3))
        def idle(pre=True):
            a.ds('ds_read_b128', v(SELR, 4), v(L16), mods=f'offset:{L_SEL - B_LW1}')
            if pre: prefetch_top()
            a.salu('s_add_u32', s(sSTEP), s(sSTEP), 1); a.salu('s_mov_b32', s(sMEM), s(sT1))
            a.salu('s_add_u32', s(sKX), s(sKX), 32 * 16384); a.salu('s_add_u32', s(sPF), s(sPF), 32 * 16384); a.salu('s_min_u32', s(sPF), s(sPF), s(sAL))
            offsets()
            a.salu('s_add_u32', s(sFV), s(sFV), 24 * 512)
            a.salu('s_mov_b32', s(sT0), 1)
            if self.p0d: a.salu('s_sub_u32', 'm0', s(sD1), 4096)
            if self.eo == 3: z2(R0, -1)()
        def reduce(lab, k, P, y=0, pre=False):
            a.label(f'{t}_chk{lab}')
            a.valu('v_mov_b32', v(XT), 0)
            for i in range(4):
                a.ins(f's_waitcnt vmcnt({4 * k - 1 - i + y})')
                chk = [val('v_bitop3_b32', v(XT), v(XT), v(r), s(sTAG), mods='bitop3:0xf6') for r in (P[i], P[i] + 2)]
                if k > 1 or pre: run(chk)
                a.mfma(MF32, v(RD, 4), v(P[i], 4), v(SELR, 4), 0 if i == 0 else v(RD, 4))
                if k == 1 and not pre: run(chk)
            a.valu('v_and_b32', v(XT), s(sT0), v(XT))
            a.valu('v_cmp_ne_u32', 'vcc', 0, v(XT))
            a.ins(f's_cbranch_vccnz {t}_spin{lab}')
            a.pos += 4
            a.valu('v_permlane32_swap_b32', v(RD), v(RD + 2)); a.valu('v_permlane32_swap_b32', v(RD + 1), v(RD + 3))
            a.valu('v_add_f32', v(RD), v(RD), v(RD + 2)); a.valu('v_add_f32', v(RD + 2), v(RD + 1), v(RD + 3))
        def retry(lab, P):
            a.label(f'{t}_spin{lab}')
            a.forget()
            shot(P)
            a.salu('s_sub_u32', s(sSPIN), s(sSPIN), 1)
            a.salu('s_cmp_lt_i32', s(sSPIN), 0, nodst=True)
            a.salu('s_cselect_b32', s(sT0), 0, 1)
            if self.eo == 3: a.ins('s_waitcnt vmcnt(0)')
            a.ins(f's_branch {t}_chk{lab}')
        a.ins(f's_cbranch_scc1 {t}_w013')
        a.fence()
        reset_old()
        if self.eo != 3:
            if self.d0: self.delay(self.d0 - 7)
            shot(P0)
        idle(False); zero(0, 16)
        if self.k0 > 1: a.nop(self.pF); shot(P0)
        reduce('F', self.k0, P0, (2 if self.hx else 3) if self.eo == 3 else 0, self.eo == 3); publish(); reset()
        if self.k0 == 1: prefetch_top()
        self.delay(self.dB); poll0()
        if self.k0 > 1: a.ins('s_waitcnt vmcnt(1)'); prefetch_top()
        a.fence()
        a.ins(f's_branch {t}_loop2')
        a.label(f'{t}_w013')
        a.forget()
        idle()
        a.salu('s_cmp_eq_u32', s(sROLE), 0, nodst=True)
        a.ins(f's_cbranch_scc1 {t}_w0')
        reset_old()
        a.salu('s_cmp_eq_u32', s(sW), 1, nodst=True)
        if self.dX: self.delay(self.dX - 6)
        a.ins(f's_cbranch_scc1 {t}_sx')
        self.delay(self.d1 - self.dX)
        a.lines.append(f'{t}_sx:')
        shot(P)
        if self.k1 > 1: a.nop(self.pG); shot(P)
        if self.eo == 3: a.nop(self.dA); poll0()
        reduce('G', self.k1, P, 1 if self.eo == 3 else 0)
        a.salu('s_cmp_eq_u32', s(sW), 3, nodst=True)
        a.ins(f's_cbranch_scc1 {t}_w3')
        a.valu('v_mov_b32', v(RD + 1), v(RD)); a.valu('v_mov_b32', v(RD + 3), v(RD + 2))
        a.valu('v_permlane16_swap_b32', v(RD), v(RD + 1)); a.valu('v_permlane16_swap_b32', v(RD + 2), v(RD + 3))
        a.valu('v_add_f32', v(RD), v(RD), v(RD + 1)); a.valu('v_add_f32', v(RD + 2), v(RD + 2), v(RD + 3))
        a.label(f'{t}_w3')
        if self.k1 > 1: a.ins('s_cbranch_execz .+4') if 0 else None
        publish(); reset()
        if self.dY:
            a.ins(f's_cbranch_scc1 {t}_w3b')
            a.nop(self.dY)
            a.lines.append(f'{t}_w3b:')
        poll0()
        if self.one3:
            zero(0, 16); top(); a.ins('s_waitcnt vmcnt(0) lgkmcnt(0)'); a.fence(); a.ins(f's_branch {t}_chk0b')
        elif self.eo == 3:
            zero(0, 16); top(); a.ins('s_waitcnt vmcnt(3) lgkmcnt(0)'); a.fence(); a.ins(f's_branch {t}_chk0b')
        else: finish()
        a.label(f'{t}_w0')
        a.forget()
        zero(0, 16)
        self.delay(self.dZ // 3)
        if self.w0hook: self.w0hook(a)
        self.delay(self.dZ - self.dZ // 3)
        a.lines.append(f'{t}_w0p:')
        poll0()
        a.ins(f's_branch {t}_loop2')
        retry('F', P0); retry('G', P)
        guard()
        a.label(f'{t}_spin0')
        a.forget()
        poll0()
        a.salu('s_sub_u32', s(sSPIN), s(sSPIN), 1)
        a.salu('s_cmp_lt_i32', s(sSPIN), 0, nodst=True)
        if r1: a.ins(f's_waitcnt vmcnt({self.ks - 1})')
        a.ins(f's_cbranch_scc0 {t}_chk0')
        a.ins('s_waitcnt vmcnt(0)')
        for r in range(4): a.valu('v_min_u32', v(R0 + r), -2, v(R0 + r))
        a.ins(f's_branch {t}_chk0')
        a.label(f'{t}_spin1')
        a.forget()
        if self.p1 == 4: run([dma1(0), dma1(1), m0d])
        else: poll1()
        a.salu('s_sub_u32', s(sSPIN), s(sSPIN), 1)
        a.salu('s_cmp_lt_i32', s(sSPIN), 0, nodst=True)
        a.ins(f's_waitcnt vmcnt({2 if r1 else 0})')
        if self.p1 == 4: run([rd1a, rd1b, ins('s_waitcnt lgkmcnt(0)')] + c1)
        else: run(c1 + [w1a, w1b, ins('s_waitcnt lgkmcnt(0)')])
        a.ins(f's_cbranch_scc1 {t}_go1')
        a.ins(f's_cbranch_vccnz {t}_spin1')
        a.ins(f's_branch {t}_go1')
        a.label(f'{t}_last')
        a.forget(); a.nop(2)
        if self.rt0:
            a.salu('s_cmp_ge_u32', s(sSTEP), 2, nodst=True)
            a.ins(f's_cbranch_scc1 {t}_last0')
            a.salu('s_and_b32', s(sT0), s(sH), 3); a.salu('s_lshl_b32', s(sT0), s(sT0), 14); a.salu('s_add_u32', s(sT0), s(sT0), self.wsmem)
            a.salu('s_lshr_b32', s(sT2), s(sH), 2); a.salu('s_lshl_b32', s(sT2), s(sT2), 3); a.salu('s_lshl_b64', 'exec', '0x55', s(sT2))
            a.ins(f'buffer_load_dword v{PFA}, s[{SRD}:{SRD+3}], s{sT0} offen sc1 lds')
            a.salu('s_mov_b64', 'exec', -1)
            if self.ntk:
                a.salu('s_sub_u32', s(sT0), s(sPF), 32 * 16384)
                a.ins(f'buffer_load_dword v{PFA}, s[{SRD}:{SRD+3}], s{sT0} offen sc1 lds')
            a.salu('s_cmp_eq_u32', 0, 1, nodst=True)
            a.ins(f's_branch {t}_back')
            a.label(f'{t}_last0')
        if self.spec:
            a.salu('s_cmp_ge_u32', s(sSTEP), self.nsteps - 2, nodst=True)
            a.ins(f's_cbranch_scc1 {t}_last1')
            self.spec[1](a)
            a.salu('s_mov_b32', 'm0', L_DUMP)
            a.salu('s_cmp_eq_u32', 0, 1, nodst=True)
            a.ins(f's_branch {t}_back')
            a.label(f'{t}_last1')
        a.salu('s_cmp_eq_u32', s(sSTEP), self.nsteps - 1, nodst=True)
        a.ins(f's_cbranch_scc1 {t}_last2')
        pubk(AQ0)
        a.salu('s_add_u32', s(sKM), s(sKM), 32 * 4096)
        a.salu('s_mov_b32', s(sNC1), '0xbf800000')
        a.salu('s_cmp_eq_u32', 0, 0, nodst=True)
        a.ins(f's_branch {t}_back')
        a.label(f'{t}_last2')
        M.update({8: R0, 1: R6, VL: R7})
        a.ins('s_waitcnt lgkmcnt(0)')
        run([lambda: pubk(AQ0), sal('s_add_u32', s(sT0), s(sNONCE), self.nsteps), val('v_mov_b32', v(R4), s(sT0)), ('v1', 1) if self.bf else None] + [(o, sl) for sl in (VL,) for o in ('v0', 'v1')]
            + [cvt(AV0, AV0), cvt(AV0 + 1, AV0 + 2), cvt(AV0 + 2, AV1), cvt(AV0 + 3, AV1 + 2), lambda: pubv(AV0)])
        flag(R4)
```

```python
from asmfw import Asm, R
import chain2 as C

def s(i, n=1): return R(i, n, 's')
def v(i, n=1): return R(i, n, 'v')
MF32 = 'v_mfma_f32_16x16x32_bf16'

SRD_WS, SRD_X, SRD_W = 4, 8, 12
sM, sHh, sW, sSEG, sSTR = 16, 17, 18, 19, 20
sT0, sT1, sT2 = 21, 22, 23
sSRC, sLDSW, sOUT, sBUF, sOUT1 = 24, 25, 26, 27, 28
sPRG, sRND, sT3 = 29, 30, 31
sO2, sOA, sSA, sHS = 40, 41, 42, 43
XBUF = 36864
SY_PRG = C.WS_SYNC
DONE = 63
WF = 64

def wfrag(hd, tau, k): return R(tau * 72 + k * 4, 4, 'a') if hd else v(WF + tau * 72 + k * 4, 4)

def tr_loader(a, srd, jobs, GA, TA, T1, T2, sWK, sT, bufs, mid=None, at=None):
    nb = len(bufs); tags = {}
    def issue(j):
        jobs[j][0](a)
        for p in range(4):
            a.salu('s_add_u32', 'm0', s(sWK), bufs[j % nb] + p * 1024)
            if p: a.salu('s_add_u32', s(sT), s(sT), jobs[j][1])
            else: a.nop(1)
            a.raw(f'    buffer_load_dwordx4 v{GA}, s[{srd}:{srd+3}], s{sT} offen lds'); a.pos += 1; a.vm_seq += 1
        tags[j] = a.vm_seq
    for j in range(min(nb, len(jobs))): issue(j)
    if mid: mid()
    for j in range(len(jobs)):
        a.valu('v_add_u32', v(T1), bufs[j % nb], v(TA))
        a.valu('v_xor_b32', v(T2), 32, v(T1))
        a.wait(vm=tags[j])
        for dst, alt, off in jobs[j][2]:
            a.ds('ds_read_b64_tr_b16', dst, v(T2 if alt else T1), mods=f'offset:{off}')
        a.wait(lds='all')
        if at and j == at[0]: at[1](a)
        if j + nb < len(jobs): issue(j + nb)

def qkv_role(a: Asm, tag, pX, pW, sNONCE, sGRP, late=None, qw=0, qx=0, cop=1, at=None):
    t = tag
    ACC, PK, AF = 208, 8, 32
    LANE16, VSRC, VRD, TMP, TMP2, GA, LWv, TA = 1, 2, 3, 4, 5, 6, 7, 24
    srd = s(SRD_WS, 4)
    a.valu('v_lshrrev_b32', v(TMP), 6, 'v0')
    a.valu('v_readfirstlane_b32', s(sW), v(TMP))
    a.valu('v_lshlrev_b32', v(LWv), 4, 'v0')
    a.valu('v_and_b32', v(TMP), 63, 'v0')
    a.valu('v_lshrrev_b32', v(GA), 2, v(TMP)); a.valu('v_lshlrev_b32', v(GA), 13, v(GA))
    a.valu('v_lshrrev_b32', v(TMP2), 4, v(TMP)); a.valu('v_and_b32', v(TMP2), 2, v(TMP2)); a.valu('v_xor_b32', v(TMP2), v(TMP2), v(TMP))
    a.valu('v_and_b32', v(TMP2), 3, v(TMP2)); a.valu('v_lshl_add_u32', v(GA), v(TMP2), 4, v(GA))
    a.valu('v_lshrrev_b32', v(TA), 4, v(TMP)); a.valu('v_lshlrev_b32', v(TA), 9, v(TA))
    a.valu('v_bfe_u32', v(TMP2), v(TMP), 2, 2); a.valu('v_lshl_add_u32', v(TA), v(TMP2), 6, v(TA))
    a.valu('v_bfe_u32', v(TMP2), v(TMP), 4, 1); a.valu('v_lshl_add_u32', v(TA), v(TMP2), 5, v(TA))
    a.valu('v_and_b32', v(TMP2), 3, v(TMP)); a.valu('v_lshl_add_u32', v(TA), v(TMP2), 3, v(TA))
    a.salu('s_lshl_b32', s(sT3), s(sW), 12)
    a.valu('v_add_u32', v(TA), s(sT3), v(TA))
    a.salu('s_cmp_eq_u32', s(sM), 1, nodst=True)
    a.salu('s_cselect_b64', s(SRD_W, 2), s(pW + 2, 2), s(pW, 2))
    a.salu('s_cmp_eq_u32', s(sM), 2, nodst=True)
    a.salu('s_cselect_b64', s(SRD_W, 2), s(pW + 4, 2), s(SRD_W, 2))
    a.salu('s_mov_b32', s(SRD_W + 2), 576 * 8192); a.salu('s_mov_b32', s(SRD_W + 3), '0x20000')
    a.salu('s_lshl_b32', s(sOUT1), s(sHh), 8); a.salu('s_lshl_b32', s(sT0), s(sW), 6); a.salu('s_add_u32', s(sOUT1), s(sOUT1), s(sT0))
    if cop:
        a.valu('v_lshrrev_b32', v(25), 2, 'v0'); a.valu('v_mul_u32_u24', v(25), s(sSTR), v(25)); a.valu('v_add_u32', v(25), s(sSEG), v(25))
        a.valu('v_lshlrev_b32', v(25), 13, v(25)); a.valu('v_and_b32', v(26), 3, 'v0'); a.valu('v_lshl_add_u32', v(25), v(26), 7, v(25))
        a.salu('s_lshl_b32', s(sT0), s(sHh), 8)
        a.salu('s_lshl_b32', s(sT1), s(sSTR), 19); a.salu('s_add_u32', s(sT1), s(sT1), s(sT0))
        a.ins(f'buffer_load_dword v27, v25, s[{SRD_W}:{SRD_W+3}], s{sT0} offen')
        a.ins(f'buffer_load_dword v27, v25, s[{SRD_W}:{SRD_W+3}], s{sT1} offen')
    def rest():
        a.valu('v_and_b32', v(TMP2), 15, v(TMP))
        a.valu('v_lshrrev_b32', v(VRD), 4, v(TMP))
        a.valu('v_lshrrev_b32', v(VSRC), 2, v(TMP2))
        a.valu('v_xor_b32', v(VRD), v(VRD), v(VSRC))
        a.valu('v_lshl_add_u32', v(VRD), v(TMP2), 2, v(VRD))
        a.valu('v_lshlrev_b32', v(LANE16), 4, v(VRD))
        a.valu('v_lshrrev_b32', v(TMP2), 2, v(TMP))
        a.valu('v_lshrrev_b32', v(VRD), 4, v(TMP))
        a.valu('v_and_b32', v(TMP), 3, v(TMP))
        a.valu('v_xor_b32', v(TMP), v(TMP), v(VRD))
        a.valu('v_lshlrev_b32', v(VRD), 3, v(VRD))
        a.valu('v_and_b32', v(TMP2), 3, v(TMP2))
        a.valu('v_add_u32', v(VRD), v(VRD), v(TMP2))
        a.valu('v_mul_u32_u24', v(VSRC), 1152, v(VRD))
        a.valu('v_lshl_add_u32', v(VSRC), v(TMP), 4, v(VSRC))
        a.salu('s_mov_b32', s(SRD_X), s(pX)); a.salu('s_mov_b32', s(SRD_X + 1), s(pX + 1))
        a.salu('s_mov_b32', s(SRD_X + 2), 2048 * 1152); a.salu('s_mov_b32', s(SRD_X + 3), '0x20000')
        a.salu('s_lshr_b32', s(sT1), s(sW), 1); a.salu('s_mul_i32', s(sSRC), s(sT1), 4608)
        a.salu('s_and_b32', s(sT1), s(sW), 1); a.salu('s_mul_i32', s(sT2), s(sT1), 576); a.salu('s_add_u32', s(sSRC), s(sSRC), s(sT2))
        a.salu('s_mul_i32', s(sLDSW), s(sW), 9 * 1024)
        a.salu('s_mul_i32', s(sT1), s(sSEG), 32 * 1152); a.salu('s_add_u32', s(sSRC), s(sSRC), s(sT1))
        a.salu('s_mul_i32', s(sSA), s(sSTR), 32 * 1152)
        a.salu('s_mov_b32', s(sBUF), 0)
        dma(sBUF)
        a.salu('s_lshl_b32', s(sT1), s(sSEG), 5); a.salu('s_add_u32', s(sT1), s(sT1), s(sHh))
        a.salu('s_lshl_b32', s(sOUT), s(sT1), 14)
        a.salu('s_mul_i32', s(sT2), s(sW), 3072); a.salu('s_add_u32', s(sOUT), s(sOUT), s(sT2))
        a.salu('s_lshl_b32', s(sT2), s(sM), 11); a.salu('s_add_u32', s(sOUT), s(sOUT), s(sT2))
        a.salu('s_add_u32', s(sOUT), s(sOUT), C.WS_KV - 2048)
        a.salu('s_lshl_b32', s(sT1), s(sT1), 13); a.salu('s_add_u32', s(sT1), s(sT1), C.WS_Q)
        a.salu('s_cmp_eq_u32', s(sM), 0, nodst=True)
        a.salu('s_cselect_b32', s(sOUT), s(sT1), s(sOUT))
        a.salu('s_cselect_b32', s(sO2), 4, 1); a.salu('s_cselect_b32', s(sHS), 1, 2)
        a.salu('s_lshl_b32', s(sO2), s(sO2), 10); a.salu('s_lshl_b32', s(sHS), s(sHS), 13)
        a.salu('s_lshl_b32', s(sOA), s(sHS), 5); a.salu('s_mul_i32', s(sOA), s(sOA), s(sSTR))
        a.salu('s_lshl_b32', s(sPRG), s(sHh), 7); a.salu('s_lshl_b32', s(sT1), s(sGRP), 2)
        a.salu('s_add_u32', s(sPRG), s(sPRG), s(sT1)); a.salu('s_add_u32', s(sPRG), s(sPRG), SY_PRG)
    def dma_ops(bufreg):
        ops = []
        for i in range(9):
            def f(i=i):
                if i == 0: a.salu('s_add_u32', s(sT2), s(bufreg), s(sLDSW))
                a.salu('s_add_u32', 'm0', s(sT2), i * 1024 - i * 64)
                a.nop(1)
                a.raw(f'    buffer_load_dwordx4 v{VSRC}, s[{SRD_X}:{SRD_X+3}], s{sSRC} offen offset:{i * 64} lds')
                a.pos += 1; a.vm_seq += 1
                if i == 8: a.salu('s_add_u32', s(sSRC), s(sSRC), s(sSA))
            ops.append(f)
        return ops
    def dma(bufreg):
        for f in dma_ops(bufreg): f()
    jobs = []
    for tt in range(9):
        for hd in range(2):
            def setup(a, tt=tt, hd=hd): a.salu('s_add_u32', s(sT0), s(sOUT1), tt * 64 * 8192 + hd * 256)
            rd = []
            for kk in range(2):
                for tau in range(2):
                    k_, b_ = ('a', tau * 72 + (2 * tt + kk) * 4) if hd else ('v', WF + tau * 72 + (2 * tt + kk) * 4)
                    for jp in range(2): rd.append((R(b_ + 2 * jp, 2, k_), tau, kk * 2048 + jp * 256))
            jobs.append((setup, 16 * 8192, rd))
    tr_loader(a, SRD_W, jobs, GA, TA, 25, 26, sT3, sT0, [40960 + 16384 * i for i in range(7)], mid=rest, at=at)
    a.salu('s_lshr_b32', s(sT0), s(sHh), 3); a.salu('s_cmp_eq_u32', s(sT0), 3, nodst=True); a.salu('s_cselect_b32', s(sT0), 1, s(sGRP))
    a.salu('s_cmp_lg_u32', s(sT0), 0, nodst=True)
    a.ins(f's_cbranch_scc1 {t}_noclr')
    for i in range(4): a.valu('v_mov_b32', v(8 + i), -1)
    a.valu('v_lshrrev_b32', v(25), 6, 'v0'); a.valu('v_mul_u32_u24', v(25), 12288 - 1024, v(25)); a.valu('v_add_u32', v(25), v(25), v(LWv))
    a.salu('s_lshl_b32', s(sT0), s(sHh), 9); a.salu('s_add_u32', s(sT0), s(sT0), C.WS_MEMH); a.salu('s_add_u32', s(sT1), s(sT0), 64 * 12288)
    a.label(f'{t}_clr')
    a.vmem('buffer_store_dwordx4', v(8, 4), v(25), srd, s(sT0), mods='offen sc1', load=False, data=v(8, 4))
    a.salu('s_add_u32', s(sT0), s(sT0), 4 * 12288)
    a.salu('s_cmp_lt_u32', s(sT0), s(sT1), nodst=True)
    a.ins(f's_cbranch_scc1 {t}_clr')
    a.label(f'{t}_noclr')
    a.salu('s_cmp_ge_u32', s(sGRP), 6, nodst=True)
    a.ins(f's_cbranch_scc1 {t}_noclr2')
    for i in range(4): a.valu('v_mov_b32', v(8 + i), -1)
    a.salu('s_cmp_lt_u32', s(sGRP), 4, nodst=True); a.salu('s_cselect_b32', s(sT0), 60, 54); a.salu('s_add_u32', s(sT0), s(sT0), s(sGRP))
    a.salu('s_lshl_b32', s(sT2), s(sHh), 12)
    for base, sh, extra in ((C.WS_KM, 17, 0), (C.WS_VM, 17, 0), (C.WS_O, 18, 0), (C.WS_O, 18, 131072)):
        a.salu('s_lshl_b32', s(sT1), s(sT0), sh); a.salu('s_add_u32', s(sT1), s(sT1), s(sT2)); a.salu('s_add_u32', s(sT1), s(sT1), base + extra)
        for hh in range(2):
            a.vmem('buffer_store_dwordx4', v(8, 4), v(LWv), srd, s(sT1), mods='offen sc1', load=False, data=v(8, 4))
            if hh == 0: a.salu('s_add_u32', s(sT1), s(sT1), 4096)
    a.label(f'{t}_noclr2')
    if late: late(a)
    a.ins('s_barrier')
    a.salu('s_mov_b32', s(sBUF), XBUF)
    dma(sBUF)
    a.salu('s_mov_b32', s(sBUF), 0)
    a.salu('s_mov_b32', s(sRND), s(sNONCE))
    a.salu('s_cmp_eq_u32', s(sW), 0, nodst=True)
    a.salu('s_cselect_b32', 's34', 1, 0); a.salu('s_mov_b32', 's35', 0)
    sPRV = sT3
    a.salu('s_mov_b32', s(sPRV), '0x80000000')
    VR2 = 24
    def rdA(k, base):
        for x in range(2):
            tg = a.ds('ds_read_b128', v(AF + ((k % 4) * 2 + x) * 4, 4), v(base), mods=f'offset:{(x*18+k%18)*1024}')
        return tg
    a.valu('v_mov_b32', v(VRD), v(LANE16))
    def slot(k, x): return AF + ((k % 3) * 2 + x) * 4
    def rd(k, base):
        for x in range(2): tg = a.ds('ds_read_b128', v(slot(k, x), 4), v(base), mods=f'offset:{(x*18+k%18)*1024}')
        return tg
    for k in range(2): rd(k, VRD)
    a.salu('s_cmp_eq_u32', s(sM), 2, nodst=True)
    a.ins(f's_cbranch_scc1 {t}_vloop')
    def pub(valexpr):
        a.valu('v_mov_b32', v(TMP), valexpr)
        a.salu('s_mov_b64', 'exec', 's[34:35]')
        a.vmem('buffer_store_dword', v(TMP), 'off', srd, s(sPRG), mods='sc1', load=False)
        a.salu('s_mov_b64', 'exec', -1)
    def pack(isv, hd, x, tau):
        o, hi = (tau, x) if isv else (x, tau)
        src_ = ACC + ((hd * 2 + x) * 2 + tau) * 4
        for r in range(2): a.valu('v_cvt_pk_bf16_f32', v(PK + (hd * 2 + o) * 4 + 2 * hi + r), v(src_ + 2 * r), v(src_ + 2 * r + 1))
    def store(q):
        if q == 0: a.salu('s_mov_b32', s(sOUT1), s(sPRV))
        elif q == 2: a.salu('s_add_u32', s(sOUT1), s(sPRV), s(sHS))
        else: a.salu('s_add_u32', s(sOUT1), s(sOUT1), s(sO2))
        a.vmem('buffer_store_dwordx4', v(PK + q * 4, 4), v(LWv), srd, s(sOUT1), mods='offen sc1', load=False, data=v(PK + q * 4, 4))
    for isv in (0, 1):
        L = f'{t}_vloop' if isv else f'{t}_loop'
        a.fence()
        a.label(L)
        a.forget()
        a.salu('s_add_u32', s(sT1), s(sBUF), 2 * XBUF)
        a.salu('s_sub_u32', s(sT0), s(sT1), 4 * XBUF)
        a.salu('s_cselect_b32', s(sT1), s(sT1), s(sT0))
        a.salu('s_add_u32', s(sBUF), s(sBUF), XBUF)
        a.salu('s_cmp_eq_u32', s(sBUF), 4 * XBUF, nodst=True)
        a.salu('s_cselect_b32', s(sBUF), 0, s(sBUF))
        dops = dma_ops(sT1)
        for k in range(18):
            a.ins('s_waitcnt lgkmcnt(2)')
            n = 0
            for hd in range(2):
                for x in range(2):
                    for tau in range(2):
                        acc = v(ACC + ((hd * 2 + x) * 2 + tau) * 4, 4)
                        xf = v(slot(k, x), 4); wf = wfrag(hd, tau, k)
                        if k == 0: pack(isv, hd, x, tau)
                        a.auto = False
                        if isv: a.mfma(MF32, acc, xf, wf, 0 if k == 0 else acc)
                        else: a.mfma(MF32, acc, wf, xf, 0 if k == 0 else acc)
                        a.auto = True
                        n += 1
                        if n == 1: rd(k + 2, VRD if k + 2 < 18 else VR2)
                        if n == 3 and 1 <= k <= 4: store(k - 1)
                        if n == 3 and 5 <= k <= 13: dops[k - 5]()
                        if n == 3 and k == 14: a.valu('v_add_u32', v(VR2), s(sBUF), v(LANE16))
                        if n == 6 and k == 15:
                            a.ins('s_waitcnt vmcnt(9)'); a.ins('s_barrier')
                        if n == 3 and k == 16: pub(s(sRND))
        a.valu('v_mov_b32', v(VRD), v(VR2))
        a.salu('s_mov_b32', s(sPRV), s(sOUT))
        a.salu('s_add_u32', s(sOUT), s(sOUT), s(sOA))
        a.salu('s_add_u32', s(sRND), s(sRND), 1)
        a.salu('s_add_u32', s(sSEG), s(sSEG), s(sSTR))
        a.salu('s_cmp_lt_u32', s(sSEG), 64, nodst=True)
        a.ins(f's_cbranch_scc1 {L}')
        a.fence()
        for hd in range(2):
            for x in range(2):
                for tau in range(2): pack(isv, hd, x, tau)
        if not isv: a.ins(f's_branch {t}_done')
    a.label(f'{t}_done')
    for q in range(4): store(q)
    a.ins('s_waitcnt vmcnt(0) lgkmcnt(0)')
    a.ins('s_barrier')
    a.salu('s_add_u32', s(sT1), s(sNONCE), DONE)
    pub(s(sT1))
    a.salu('s_cmp_eq_u32', s(sM), 0, nodst=True)
    a.ins(f's_cbranch_scc1 {t}_nq')
    a.salu('s_add_u32', s(sPRG), s(sPRG), 4096)
    pub(s(sT1))
    a.label(f'{t}_nq')


def memkv_role(a: Asm, tag, sNONCE, slp=4):
    t = tag
    ACC = 8
    regs = [24 + 4 * i for i in range(10)] + [208 + 4 * i for i in range(8)]
    VA, VF, TMP, TMP2, LWv = [1, 2, 3], 6, 4, 5, 7
    VP, VD, VD2, VDP = 240, 241, 242, 243
    srd = s(SRD_WS, 4)
    sS, sSRCM, sDST, sN = 19, 24, 26, 27
    a.forget()
    a.valu('v_and_b32', v(TMP), 63, 'v0')
    a.valu('v_lshrrev_b32', v(TMP2), 4, v(TMP))
    a.valu('v_bfe_u32', v(VP), v(TMP), 3, 1); a.valu('v_lshlrev_b32', v(VDP), 17, v(VP)); a.valu('v_mul_u32_u24', v(VP), 12288, v(VP))
    for b in range(3):
        a.valu('v_add_u32', v(VA[b]), 4 * b, v(TMP2))
        a.valu('v_mul_u32_u24', v(VF), 11, v(VA[b])); a.valu('v_lshrrev_b32', v(VF), 5, v(VF))
        a.valu('v_add_u32', v(VA[b]), v(VA[b]), v(VF)); a.valu('v_lshlrev_b32', v(VA[b]), 7, v(VA[b]))
        a.valu('v_and_b32', v(VF), 7, v(TMP)); a.valu('v_lshl_add_u32', v(VA[b]), v(VF), 4, v(VA[b]))
        a.valu('v_add_u32', v(VA[b]), v(VA[b]), v(VP))
    a.valu('v_min_u32', v(VF), 23, v(TMP)); a.valu('v_lshlrev_b32', v(VF), 9, v(VF))
    a.valu('v_or_b32', v(VD), 128, v(LWv)); a.valu('v_mov_b32', v(VD2), v(VD))
    a.salu('s_cmp_lg_u32', s(sM), 2, nodst=True)
    a.ins(f's_cbranch_scc1 {t}_isk')
    a.valu('v_lshrrev_b32', v(VDP), 5, v(TMP)); a.valu('v_lshlrev_b32', v(VDP), 17, v(VDP))
    a.valu('v_mov_b32', v(VD), v(LWv)); a.valu('v_xor_b32', v(VD2), 512, v(LWv))
    a.label(f'{t}_isk')
    a.valu('v_add_u32', v(VD), v(VD), v(VDP)); a.valu('v_add_u32', v(VD2), v(VD2), v(VDP))
    a.salu('s_mov_b32', s(sS), 0); a.salu('s_mov_b32', s(sN), 2)
    a.salu('s_mov_b32', s(sSRCM), C.WS_MEMH)
    a.salu('s_lshl_b32', s(sDST), s(sHh), 12)
    a.salu('s_mov_b32', s(sT0), C.WS_KM)
    a.salu('s_cmp_eq_u32', s(sM), 2, nodst=True)
    a.salu('s_cselect_b32', s(sT0), C.WS_VM, s(sT0))
    a.salu('s_add_u32', s(sDST), s(sDST), s(sT0))
    a.salu('s_lshl_b32', s(sPRG), s(sHh), 7); a.salu('s_lshl_b32', s(sT0), s(sM), 3); a.salu('s_add_u32', s(sPRG), s(sPRG), s(sT0))
    a.salu('s_add_u32', s(sPRG), s(sPRG), SY_PRG + 128 - 8)
    a.fence()
    a.label(f'{t}_loop')
    a.forget()
    a.salu('s_cmp_lg_u32', s(sS), 58, nodst=True)
    a.ins(f's_cbranch_scc1 {t}_same')
    a.salu('s_mov_b32', s(sN), 1)
    for b in range(3): a.valu('v_sub_u32', v(VA[b]), v(VA[b]), v(VP))
    a.valu('v_sub_u32', v(VD), v(VD), v(VDP)); a.valu('v_sub_u32', v(VD2), v(VD2), v(VDP))
    a.label(f'{t}_same')
    a.salu('s_mov_b32', s(sRND), 1 << 12)
    a.salu('s_cmp_eq_u32', s(sN), 1, nodst=True)
    a.ins(f's_cbranch_scc1 {t}_again')
    a.salu('s_cmp_lg_u32', s(sW), 0, nodst=True)
    a.ins(f's_cbranch_scc1 {t}_go')
    a.label(f'{t}_look')
    a.salu('s_mul_i32', s(sT2), s(sN), 12288); a.salu('s_add_u32', s(sT2), s(sT2), s(sSRCM)); a.salu('s_sub_u32', s(sT2), s(sT2), 12288)
    a.salu('s_mov_b32', s(sT0), 1 << 22)
    a.label(f'{t}_wait')
    a.vmem('buffer_load_dword', v(TMP), v(VF), srd, s(sT2), mods='offen offset:384 sc1')
    a.salu('s_sub_u32', s(sT0), s(sT0), 1)
    a.ins(f's_cbranch_scc1 {t}_go')
    a.ins('s_waitcnt vmcnt(0)')
    a.valu('v_cmp_ne_u32', 'vcc', s(sNONCE), v(TMP))
    a.ins(f's_cbranch_vccz {t}_go')
    a.ins(f's_sleep {slp}')
    a.ins(f's_branch {t}_wait')
    a.label(f'{t}_go')
    a.salu('s_cmp_eq_u32', s(sN), 1, nodst=True)
    a.ins(f's_cbranch_scc1 {t}_again')
    a.ins('s_barrier')
    a.label(f'{t}_again')
    a.valu('v_mov_b32', v(TMP2), 0)
    tg = []
    for k in range(18):
        if k % 6 == 0: a.salu('s_add_u32', s(sT2), s(sSRCM), (k // 6) * 4096)
        tg.append(a.vmem('buffer_load_dwordx4', v(regs[k], 4), v(VA[k % 3]), srd, s(sT2), mods=f'offen offset:{((k // 3) & 1) * 2048} sc1'))
    a.salu('s_cmp_eq_u32', s(sM), 2, nodst=True)
    a.ins(f's_cbranch_scc1 {t}_v')
    done0 = dict(a.done)
    for isv in (0, 1):
        if isv: a.label(f'{t}_v'); a.done = dict(done0)
        for k in range(18):
            a.wait(vm=tg[k])
            for hd in range(2):
                for tau in range(2):
                    acc = v(ACC + (hd * 2 + tau) * 4, 4); xf = v(regs[k], 4); wf = wfrag(hd, tau, k)
                    if isv: a.mfma(MF32, acc, xf, wf, 0 if k == 0 else acc)
                    else: a.mfma(MF32, acc, wf, xf, 0 if k == 0 else acc)
                a.valu('v_max3_u32', v(TMP2), v(TMP2), v(regs[k] + 2 * hd), v(regs[k] + 2 * hd + 1))
        if isv:
            for q4 in range(8): a.valu('v_pk_mul_f32', v(ACC + 2 * q4, 2), v(ACC + 2 * q4, 2), '0.5', mods='op_sel_hi:[1,0]')
        a.fence()
        if not isv: a.ins(f's_branch {t}_st')
    a.label(f'{t}_st')
    a.valu('v_cmp_eq_u32', 'vcc', -1, v(TMP2))
    a.salu('s_sub_u32', s(sRND), s(sRND), 1)
    a.ins(f's_cbranch_scc1 {t}_ok')
    a.ins(f's_cbranch_vccz {t}_ok')
    a.salu('s_cmp_eq_u32', s(sN), 1, nodst=True)
    a.ins(f's_cbranch_scc1 {t}_look')
    a.ins(f's_branch {t}_again')
    a.label(f'{t}_ok')
    for q4 in range(8): a.valu('v_cvt_pk_bf16_f32', v(24 + q4), v(ACC + 2 * q4), v(ACC + 2 * q4 + 1))
    a.salu('s_add_u32', s(sT0), s(sDST), 4096)
    a.vmem('buffer_store_dwordx4', v(24, 4), v(VD), srd, s(sDST), mods='offen sc1', load=False, data=v(24, 4))
    a.vmem('buffer_store_dwordx4', v(28, 4), v(VD), srd, s(sT0), mods='offen sc1', load=False, data=v(28, 4))
    a.salu('s_add_u32', s(sS), s(sS), s(sN))
    a.salu('s_cmp_eq_u32', s(sN), 1, nodst=True)
    a.ins(f's_cbranch_scc1 {t}_fl')
    a.salu('s_cmp_lg_u32', s(sM), 2, nodst=True)
    a.ins(f's_cbranch_scc1 {t}_wt')
    a.vmem('buffer_store_dwordx4', v(24, 4), v(VD2), srd, s(sDST), mods='offen sc1', load=False, data=v(24, 4))
    a.vmem('buffer_store_dwordx4', v(28, 4), v(VD2), srd, s(sT0), mods='offen sc1', load=False, data=v(28, 4))
    a.label(f'{t}_wt')
    a.ins('s_waitcnt vmcnt(0)')
    a.label(f'{t}_fl')
    a.ins('s_barrier')
    a.salu('s_add_u32', s(sT1), s(sS), s(sNONCE))
    a.valu('v_mov_b32', v(TMP), s(sT1))
    a.salu('s_mov_b64', 'exec', 's[34:35]')
    a.vmem('buffer_store_dword', v(TMP), 'off', srd, s(sPRG), mods='sc1', load=False)
    a.salu('s_mov_b64', 'exec', -1)
    a.salu('s_mul_i32', s(sT0), s(sN), 12288); a.salu('s_add_u32', s(sSRCM), s(sSRCM), s(sT0))
    a.salu('s_lshl_b32', s(sT0), s(sN), 17); a.salu('s_add_u32', s(sDST), s(sDST), s(sT0))
    a.salu('s_cmp_lt_u32', s(sS), 62, nodst=True)
    a.fence()
    a.ins(f's_cbranch_scc1 {t}_loop')
```

```python
import sys
sys.path.insert(0, 'gen2')
from asmfw import Asm
import chain2 as C, qkv2 as Q, attn2 as A, ssm as S
from chain2 import s, v
from build_ct import kd
NAME = 'concat_heads__memory_aug_recurrent_mem_tr__ssm_conv_s4d__prompt'
def start(a, name):
    a.raw(f'.text\n.globl {name}\n.p2align 8\n.type {name},@function\n{name}:')
def ws_srd(a, p):
    a.salu('s_mov_b32', 's4', s(p)); a.salu('s_mov_b32', 's5', s(p + 1))
    a.salu('s_mov_b32', 's6', C.WS_SIZE); a.salu('s_mov_b32', 's7', '0x20000')

sNONCE = C.sNONCE
DBG = 96
SY_ATT = C.WS_SYNC + 65536
D_NONCE, D_HELP, D_CH, D_ARR, D_SSM, D_T2, D_ATT, D_WF, D_OP = 64, 4, 128, 132, 8, 12, 16, 20, 136
D_XF2 = 24
D_MODE, D_CH2, D_ARR2, D_GO2 = 140, 208, 212, 216
XCC = [3]
NWARM = [4]
XD = [0]
OPS = [4]
DV = [70]
HDELAY = [0]
TMO = [1 << 17]
KVR = 2
CPS = [0]
D_POOL = 32
D_P2 = 160
D_QP = 68
D_SP = 96
NCH = [32]
FX = [0]
BOFF = [48]
ATS = [3]
MSL = [4]

DIAG = [0]
IFL = ['']
def diag(a, idx, val=None):
    if not DIAG[0]: return
    a.fence()
    a.ins('s_memrealtime s[90:91]'); a.ins('s_waitcnt lgkmcnt(0)')
    if val is not None: a.salu('s_mov_b32', 's90', val)
    a.salu('s_mov_b64', 's[100:101]', 'exec'); a.salu('s_mov_b64', 'exec', 1)
    a.valu('v_mov_b32', v(DV[0]), 's90')
    a.salu('s_lshl_b32', 's91', 's2', 8); a.salu('s_add_u32', 's91', 's91', 203 << 20)
    a.vmem('buffer_store_dword', v(DV[0]), 'off', 's[4:7]', 's91', mods=f'offset:{4 * idx}', load=False)
    a.salu('s_mov_b64', 'exec', 's[100:101]')
    a.nop(2)

LD = [0]
def ldiag(a, word, vreg, op='buffer_atomic_umax'):
    if not LD[0]: return
    a.fence()
    a.ins('s_memrealtime s[90:91]'); a.ins('s_waitcnt lgkmcnt(0)')
    a.salu('s_lshl_b32', 's91', 's2', 8); a.salu('s_add_u32', 's91', 's91', 203 << 20)
    a.valu('v_mov_b32', v(vreg), 's90')
    a.valu('v_cmp_eq_u32', 'vcc', 0, 'v0' if vreg > 200 else v(C.LH))
    a.salu('s_mov_b64', 'exec', 'vcc')
    a.vmem('buffer_store_dword', v(vreg), 'off', 's[4:7]', 's91', mods=f'offset:{4 * word}', load=False)
    a.salu('s_mov_b64', 'exec', -1)
    a.nop(2)

def scan(a, base, p2):
    _tk[0] += 1
    a.valu('v_and_b32', 'v1', 63, 'v0'); a.valu('v_min_u32', 'v1', 5 if p2 in (1, 3, 4, 5) else 6, 'v1'); a.valu('v_lshlrev_b32', 'v2', 2, 'v1')
    a.salu('s_cmp_lg_u32', 's32', 0, nodst=True)
    a.valu('v_mov_b32', 'v251', 163832)
    a.ins(f's_cbranch_scc1 sw{_tk[0]}')
    a.vmem('buffer_load_dword', 'v3', 'v2', s(DBG, 4), 0, mods=f'offen offset:{base} sc1')
    a.valu('v_mov_b32', 'v4', (32, 26, 19, 24, 19, 26)[p2])
    if p2 == 2: a.valu('v_cmp_eq_u32', 'vcc', 6, 'v1'); a.valu('v_cndmask_b32', 'v4', 'v4', 14, 'vcc', mods='')
    if p2 == 4: a.valu('v_cmp_eq_u32', 'vcc', 5, 'v1'); a.valu('v_cndmask_b32', 'v4', 'v4', 17, 'vcc', mods='')
    if p2 == 5: a.valu('v_lshrrev_b32', 'v5', 'v1', 54); a.valu('v_and_b32', 'v5', 1, 'v5'); a.valu('v_add_u32', 'v4', 'v4', 'v5')
    if p2 == 1: a.valu('v_cmp_gt_u32', 'vcc', 4, 'v1'); a.valu('v_cndmask_b32', 'v4', 'v4', 27, 'vcc', mods='')
    a.wait(vm='all')
    a.valu('v_cmp_lt_u32', 'vcc', 'v3', 'v4')
    a.salu('s_ff1_i32_b64', 's40', 'vcc')
    a.valu('v_mov_b32', 'v250', 's40')
    a.ds('ds_write_b32', 'v251', 'v250')
    a.wait(lds='all')
    a.label(f'sw{_tk[0]}')
    a.ins('s_barrier')
    a.ds('ds_read_b32', 'v252', 'v251')
    a.wait(lds='all')
    a.valu('v_readfirstlane_b32', 's33', 'v252')
    a.ins('s_barrier')
    a.nop(2)

def pool_of(a):
    a.salu('s_sub_u32', 's33', 's3', (XCC[0] | 1) + 1); a.salu('s_and_b32', 's33', 's33', 3 if FX[0] else 7)
    if not XCC[0] & 1:
        a.salu('s_cmp_ge_u32', 's33', 6, nodst=True); a.salu('s_cselect_b32', 's35', 1, 0); a.salu('s_xor_b32', 's33', 's33', 's35')

def dsel(a, idx):
    if not DIAG[0]: return
    L = f'ds{len(a.lines)}'
    a.salu('s_cmp_ge_u32', 's36', 192, nodst=True)
    a.ins(f's_cbranch_scc1 {L}')
    diag(a, idx)
    a.ins('s_memtime s[88:89]'); a.ins('s_waitcnt lgkmcnt(0)'); diag(a, idx + 40, 's88')
    a.ins(f's_branch {L}x')
    a.label(L)
    diag(a, idx + 5)
    a.label(L + 'x')

def trace(a, base, sidx, k):
    if not DIAG[0]: return
    a.fence()
    a.ins('s_memrealtime s[90:91]'); a.ins('s_waitcnt lgkmcnt(0)')
    a.salu('s_lshl_b32', 's92', s(sidx), 4); a.salu('s_add_u32', 's92', 's92', (201 << 20) + base + 4 * k)
    a.valu('v_mov_b32', 'v249', 's90')
    a.salu('s_mov_b64', 'exec', 1)
    a.vmem('buffer_store_dword', 'v249', 'off', 's[4:7]', 's92', load=False)
    a.salu('s_mov_b64', 'exec', -1)
    a.nop(2)

_tk = [0]
def get_nonce(a, vd):
    _tk[0] += 1
    L = f'gn{_tk[0]}'
    a.fence()
    a.salu('s_mov_b32', 's88', 1 << 22)
    a.label(L)
    a.salu('s_cmp_lg_u32', s(sNONCE), 0, nodst=True)
    a.ins(f's_cbranch_scc1 {L}x')
    a.vmem('buffer_load_dword', v(vd), 'off', s(DBG, 4), 0, mods=f'offset:{D_NONCE} sc1')
    a.salu('s_sub_u32', 's88', 's88', 1)
    a.ins(f's_cbranch_scc1 {L}x')
    a.ins('s_waitcnt vmcnt(0)')
    a.valu('v_readfirstlane_b32', s(sNONCE), v(vd))
    a.nop(2)
    a.ins(f's_branch {L}')
    a.label(f'{L}x')

def ticket(a, dst, off, vb=250, mid=None, nyoung=0):
    _tk[0] += 1
    L = f'tk{_tk[0]}'
    a.fence()
    a.salu('s_mov_b32', 's37', off)
    a.valu('v_mov_b32', v(vb), 1)
    a.valu('v_mov_b32', v(vb + 1), 163832)
    a.valu('v_cmp_eq_u32', 'vcc', 0, 'v0')
    a.salu('s_and_saveexec_b64', 's[38:39]', 'vcc')
    a.ins(f's_cbranch_execz {L}' + ('m' if mid else ''))
    a.vmem('buffer_atomic_add', v(vb), 'off', s(DBG, 4), 's37', mods='sc0')
    if mid:
        a.label(L + 'm')
        a.salu('s_mov_b64', 's[38:39]', 'exec')
        a.salu('s_mov_b64', 'exec', -1)
        mid()
        a.salu('s_mov_b64', 'exec', 's[38:39]')
        a.ins(f's_cbranch_execz {L}')
    a.ins(f's_waitcnt vmcnt({nyoung})'); a.done['vm'] = a.vm_seq
    a.ds('ds_write_b32', v(vb + 1), v(vb))
    a.wait(lds='all')
    a.label(L)
    a.salu('s_mov_b64', 'exec', -1)
    a.ins('s_barrier')
    a.ds('ds_read_b32', v(vb + 2), v(vb + 1))
    a.wait(lds='all')
    a.valu('v_readfirstlane_b32', s(dst), v(vb + 2))
    a.ins('s_barrier')
    a.nop(4)

def flag_store(a, soff):
    _tk[0] += 1
    a.ins('s_waitcnt vmcnt(0)')
    a.ins('s_barrier')
    a.valu('v_mov_b32', 'v250', s(sNONCE))
    a.valu('v_cmp_eq_u32', 'vcc', 0, 'v0')
    a.salu('s_and_saveexec_b64', 's[38:39]', 'vcc')
    a.ins(f's_cbranch_execz fs{_tk[0]}')
    a.vmem('buffer_store_dword', 'v250', 'off', 's[4:7]', soff, mods='sc1', load=False)
    a.label(f'fs{_tk[0]}')
    a.salu('s_mov_b64', 'exec', -1)

def flags_wait(a, soff, lo, hi, va, vd, sleep=2):
    _tk[0] += 1
    L = f'fw{_tk[0]}'
    a.fence()
    a.valu('v_mbcnt_lo_u32_b32', v(va), -1, 0)
    a.valu('v_mbcnt_hi_u32_b32', v(va), -1, v(va))
    a.valu('v_min_u32', v(va), hi - lo - 1, v(va))
    a.valu('v_lshlrev_b32', v(va), 2, v(va))
    a.salu('s_mov_b32', 's88', 1 << 22)
    a.label(L)
    a.vmem('buffer_load_dword', v(vd), v(va), 's[4:7]', soff, mods=f'offen offset:{4 * lo} sc1')
    a.salu('s_sub_u32', 's88', 's88', 1)
    a.ins(f's_cbranch_scc1 {L}x')
    a.ins('s_waitcnt vmcnt(0)')
    a.valu('v_cmp_ne_u32', 'vcc', s(sNONCE), v(vd))
    a.ins(f's_cbranch_vccz {L}x')
    a.ins(f's_sleep {sleep}')
    a.salu('s_cmp_gt_u32', 's88', (1 << 22) - BOFF[0], nodst=True)
    a.ins(f's_cbranch_scc1 {L}')
    a.ins('s_sleep 40')
    a.ins(f's_branch {L}')
    a.label(f'{L}x')

def coarse_wait(a, sseg, vd, shp):
    _tk[0] += 1
    L = f'cw{_tk[0]}'
    a.fence()
    a.salu('s_mov_b32', 's88', 1 << 16)
    a.salu('s_cmp_ge_u32', 's47', s(sseg), nodst=True)
    a.ins(f's_cbranch_scc1 {L}x')
    a.label(L)
    a.vmem('buffer_load_dword', v(vd), 'off', 's[4:7]', s(shp), mods='offset:128 sc1')
    a.ins('s_waitcnt vmcnt(0)')
    a.valu('v_readfirstlane_b32', 's42', v(vd))
    a.salu('s_sub_u32', 's42', 's42', s(sNONCE))
    a.salu('s_cmp_gt_u32', 's42', 64, nodst=True)
    a.salu('s_cselect_b32', 's42', 0, 's42')
    a.salu('s_add_u32', 's42', 's42', 2)
    a.salu('s_mov_b32', 's47', 's42')
    a.salu('s_cmp_ge_u32', 's42', s(sseg), nodst=True)
    a.ins(f's_cbranch_scc1 {L}x')
    a.salu('s_sub_u32', 's88', 's88', 1)
    a.ins(f's_cbranch_scc1 {L}x')
    a.salu('s_sub_u32', 's42', s(sseg), 's42')
    a.salu('s_min_u32', 's42', 's42', 6)
    a.label(f'{L}s')
    a.ins('s_sleep 24')
    a.salu('s_sub_u32', 's42', 's42', 1)
    a.salu('s_cmp_lg_u32', 's42', 0, nodst=True)
    a.ins(f's_cbranch_scc1 {L}s')
    a.ins(f's_branch {L}')
    a.label(f'{L}x')

def prog_wait(a, lab, va, vd, vneed, sbase, sleep, scnt='s40'):
    a.salu('s_mov_b32', scnt, 1 << 22)
    a.label(lab)
    a.vmem('buffer_load_dword', v(vd), v(va), 's[4:7]', sbase, mods='offen sc1')
    a.salu('s_sub_u32', scnt, scnt, 1)
    a.ins(f's_cbranch_scc1 {lab}_go')
    a.ins('s_waitcnt vmcnt(0)')
    a.valu('v_subrev_u32', v(vd), vneed, v(vd))
    a.valu('v_cmp_lt_u32', 'vcc', 64, v(vd))
    a.ins(f's_cbranch_vccz {lab}_go')
    a.ins(f's_sleep {sleep}')
    a.ins(f's_branch {lab}')
    a.label(f'{lab}_go')

def k_main(a, hd=0, hg=0, warm=0, msl=4, cp=1, wt=1, qw=9, qx=0, kvr=1, kv2=4, cop=0, nat=10, qp=0, wm=9, tlb=0, tsh=20, xs=0, ops=2, ats=1, leak=0, wl=9, hj=0, nw=1, asy=1, xc=None, xi=0, sm=0, qm=0, sp=1, ng=6, pm=2, onb=9, ag=0, ant=0, **kw):
    if xc is not None: XCC[0] = xc
    global KVR
    KVR = kvr
    n = NAME + '_kernel'
    DV[0] = 59
    start(a, n)
    if leak == 4: a.ins('s_memrealtime s[100:101]')
    a.salu('s_cmp_ge_u32', 's2', 256, nodst=True)
    a.ins('s_cbranch_scc1 L_exit')
    a.ins('s_load_dwordx4 s[84:87], s[0:1], 120')
    a.ins('s_load_dwordx16 s[48:63], s[0:1], 0')
    a.valu('v_lshrrev_b32', 'v1', 6, 'v0')
    a.valu('v_readfirstlane_b32', 's32', 'v1')
    a.ins('s_getreg_b32 s3, hwreg(HW_REG_XCC_ID)')
    a.salu('s_and_b32', 's3', 's3', 15)
    a.salu('s_cmp_lg_u32', 's32', 3, nodst=True)
    a.ins('s_cbranch_scc1 L_nowarm')
    a.ins('s_getpc_b64 s[44:45]')
    a.label('L_pcw')
    a.valu('v_and_b32', 'v1', 63, 'v0')
    a.valu('v_lshlrev_b32', 'v1', 7, 'v1')
    a.salu('s_cmp_lg_u32', 's3', XCC[0], nodst=True)
    a.salu('s_cselect_b32', 's33', 'L_helper-L_pcw', 0)
    a.valu('v_add_u32', 'v1', 's33', 'v1')
    for i in range(NWARM[0]):
        if i == 2: a.ins('s_cbranch_scc0 L_nowarm')
        a.valu('v_min_u32', 'v2', 'L_exit-L_pcw', 'v1')
        a.vmem('global_load_dword', v(240 + i), 'v2', 's[44:45]')
        a.valu('v_add_u32', 'v1', 8192, 'v1')
    a.label('L_nowarm')
    a.forget()
    a.ins('s_waitcnt lgkmcnt(0)')
    if leak == 5: a.ins('s_memrealtime s[100:101]')
    ws_srd(a, 86)
    a.salu('s_mov_b32', s(DBG), 's84'); a.salu('s_mov_b32', s(DBG + 1), 's85')
    a.salu('s_mov_b32', s(DBG + 2), 256); a.salu('s_mov_b32', s(DBG + 3), '0x20000')
    a.salu('s_mov_b32', s(sNONCE), 0)
    diag(a, 0)
    a.salu('s_cmp_lg_u32', 's3', XCC[0], nodst=True)
    a.ins('s_cbranch_scc1 L_helper')
    lanes = C.Chain(a, 'x', gs=kw.get('gs', 2))
    def mid():
        if tlb:
            a.salu('s_cmp_lg_u32', 's32', 0, nodst=True)
            a.ins('s_cbranch_scc1 L_notlb')
            a.valu('v_lshlrev_b32', 'v1', 21, 'v0'); a.valu('v_add_u32', 'v2', (2 << 20) - 128, 'v1')
            pages = [0, 32, 43, 44, 46, 47, 48, 60]
            m_ = sum(1 << p for p in pages)
            a.salu('s_mov_b32', 'exec_lo', m_ & 0xffffffff); a.salu('s_mov_b32', 'exec_hi', m_ >> 32)
            a.ins('buffer_load_dword v246, v2, s[4:7], 0 offen sc1')
            a.salu('s_mov_b64', 'exec', 7)
            a.salu('s_mov_b32', 's14', 576 * 8192); a.salu('s_mov_b32', 's15', '0x20000')
            if tlb > 1:
                for p in (58, 56, 54, 52):
                    a.salu('s_mov_b64', 's[12:13]', s(p, 2))
                    a.ins('buffer_load_dword v246, v1, s[12:15], 0 offen')
            a.salu('s_mov_b32', 's14', 9216); a.salu('s_mov_b64', 's[12:13]', 's[50:51]')
            a.ins('buffer_load_dword v246, v1, s[12:15], 0 offen')
            a.salu('s_mov_b64', 'exec', -1)
            a.label('L_notlb')
        lanes.load_lanes()
    ticket(a, C.sH, D_CH, mid=mid, nyoung=(0, 2, 6)[tlb])
    a.salu('s_cmp_ge_u32', s(C.sH), NCH[0], nodst=True)
    a.ins('s_cbranch_scc1 L_helper')
    a.label('L_chain')
    diag(a, 14)
    ldiag(a, 0, 250)
    if leak and leak < 4: a.ins('s_memrealtime s[100:101]'); a.ins('s_waitcnt lgkmcnt(0)')
    diag(a, 15, s(C.sH))
    if DIAG[0]:
        a.ins('s_getreg_b32 s89, hwreg(HW_REG_HW_ID)'); diag(a, 12, 's89')
    def kvaddr(a, va, sb, q=0):
        a.salu('s_lshr_b32', s(sb), s(C.sH), 1); a.salu('s_lshl_b32', s(sb), s(sb), 8); a.salu('s_add_u32', s(sb), s(sb), Q.SY_PRG + q)
        a.valu('v_bfe_u32', v(va), v(C.LH), 4, 6); a.valu('v_min_u32', v(va), 11, v(va)); a.valu('v_lshlrev_b32', v(va), 2, v(va))
    def kvwait(a, lab, need, va, vd):
        kvaddr(a, va, 92, 4096 if need == Q.DONE else 0)
        a.salu('s_add_u32', 's93', s(sNONCE), need)
        prog_wait(a, lab, va, vd, 's93', 's92', 2, scnt='s94')
    def hook(a):
        if not DIAG[0]: return
        a.salu('s_lshl_b32', 's88', s(C.sH), 2); a.salu('s_add_u32', 's88', 's88', s(C.sW))
        a.salu('s_cmp_lg_u32', 's88', 0, nodst=True)
        a.ins('s_cbranch_scc1 L_nohook')
        a.ins('s_memrealtime s[90:91]'); a.ins('s_memtime s[72:73]'); a.ins('s_waitcnt lgkmcnt(0)')
        a.valu('v_mov_b32', v(C.Rq[1]), 's90'); a.valu('v_mov_b32', v(C.Rq[1] + 1), 's72')
        a.salu('s_lshl_b32', 's88', s(C.sSTEP), 3); a.salu('s_add_u32', 's88', 's88', 200 << 20)
        a.vmem('buffer_store_dwordx2', v(C.Rq[1], 2), 'off', 's[4:7]', 's88', load=False)
        a.label('L_nohook')
        a.fence()
    def chain_body(tag, safe):
        for i in range(5): a.salu('s_mov_b64', s(C.sPTR + 2 * i, 2), s(C.sPTR + 2 * i + 2, 2))
        def cpywait(a, notyet):
            if notyet is None:
                L = f'{tag}_cpe{len(a.lines)}'
                a.salu('s_cmp_eq_u32', 's88', 0, nodst=True)
                a.ins(f's_cbranch_scc1 {L}')
                a.salu('s_lshl_b32', 's89', 's73', 7); a.salu('s_add_u32', 's89', 's89', C.SY_CPY)
                a.valu('v_min_u32', 'v33', 11, 'v57'); a.valu('v_lshlrev_b32', 'v33', 2, 'v33')
                a.ins(f'buffer_load_dword v34, off, s[{DBG}:{DBG+3}], 0 offset:{D_NONCE} sc1')
                a.ins('buffer_load_dword v35, v33, s[4:7], s89 offen sc1')
                a.lines.append(L + ':')
                CPS[0] = a.vm_seq
                return
            d0 = dict(a.done)
            a.wait(vm=CPS[0])
            a.done = d0
            a.valu('v_max_u32', 'v34', 1, 'v34')
            a.valu('v_cmp_eq_u32', 'vcc', 1, 'v34')
            a.ins(f's_cbranch_vccnz {notyet}')
            a.valu('v_cmp_ne_u32', 'vcc', 'v34', 'v35')
            a.ins(f's_cbranch_vccnz {notyet}')
        CK1, CK2 = 6 * KVR - 2, 6 * kv2 - 2
        def level(a, step_off):
            a.salu('s_cmp_eq_u32', s(C.sSTEP), CK2 - step_off, nodst=True)
            a.salu('s_cselect_b32', 's93', Q.DONE, kv2); a.salu('s_cselect_b32', 's94', 4096, 0)
            a.salu('s_add_u32', 's93', 's93', s(sNONCE)); a.salu('s_add_u32', 's92', 's92', 's94')
        def w0hook(a):
            if not safe: hook(a)
            a.salu('s_bitcmp0_b32', hex((1 << CK1) | (1 << CK2)), s(C.sSTEP), nodst=True)
            a.ins(f's_cbranch_scc1 {tag}_nokv')
            a.salu('s_cmp_ge_u32', s(C.sSTEP), 32, nodst=True)
            a.ins(f's_cbranch_scc1 {tag}_nokv')
            r = C.Rq[1]
            kvaddr(a, r, 92); level(a, 0)
            a.valu('v_add_u32', v(r + 2), C.L_NON + 16, v(r))
            a.ins('s_waitcnt vmcnt(0)')
            a.ds('ds_read_b32', v(r + 1), v(r + 2))
            a.wait(lds='all')
            a.valu('v_subrev_u32', v(r + 1), 's93', v(r + 1))
            a.valu('v_cmp_lt_u32', 'vcc', 64, v(r + 1))
            a.ins(f's_cbranch_vccz {tag}_kv1_go')
            prog_wait(a, f'{tag}_kv1', r, r + 1, 's93', 's92', 2, scnt='s94')
            a.ins(f's_branch {tag}_w0p')
            a.label(f'{tag}_nokv')
            if LD[0]:
                a.salu('s_cmp_lg_u32', s(C.sSTEP), 11, nodst=True); a.ins(f's_cbranch_scc1 {tag}_nld'); ldiag(a, 5, C.Rq[1]); a.ins(f's_branch {tag}_w0p'); a.label(f'{tag}_nld')
        def kvasync(a):
            kvaddr(a, C.Rq[6], 92); level(a, 1)
            a.salu('s_mov_b32', 'm0', C.L_NON + 16)
            a.salu('s_mov_b64', 'exec', '0xfff')
            a.ins(f'buffer_load_dword v{C.Rq[6]}, s[4:7], s92 offen sc1 lds')
            a.salu('s_mov_b64', 'exec', -1)
        spec = ((1 << (CK1 - 1)) | (1 << (CK2 - 1)), kvasync)
        if safe: ch = C.Chain(a, tag, spec=spec, fl='sc1', lfl='sc1', xoff=C.XOFF, d0=200, d1=200, dB=100, dZ=400, ks=1, w0hook=w0hook, spinmax=1 << 20)
        else: ch = C.Chain(a, tag, spec=spec, cpy=cpywait if cp else None, ptrace=(lambda a, j: diag(a, 16 + j)), w0hook=w0hook, spinmax=1 << 20, **kw)
        if safe: ch.load_lanes()
        arr, mode = (D_ARR2, D_GO2) if safe else (D_ARR, D_MODE)
        def st1(a):
            a.valu('v_mov_b32', 'v46', 1)
            a.salu('s_mov_b64', 'exec', 1)
            a.vmem('buffer_atomic_add', 'v46', 'off', s(DBG, 4), 0, mods=f'offset:{arr} sc0')
            a.salu('s_mov_b64', 'exec', -1)
        def st2(a):
            a.valu('v_readfirstlane_b32', 's41', 'v46')
            a.valu('v_mov_b32', 'v46', 1); a.valu('v_mov_b32', 'v47', 0)
            a.salu('s_cmp_eq_u32', 's41', 127, nodst=True)
            a.salu('s_cselect_b64', 'exec', 1, 0)
            a.vmem('buffer_atomic_cmpswap', 'v[46:47]', 'off', s(DBG, 4), 0, mods=f'offset:{mode}', load=False)
            a.salu('s_mov_b64', 'exec', -1)
        def st3(a):
            a.vmem('buffer_load_dword', 'v24', 'off', s(DBG, 4), 0, mods=f'offset:{mode} sc1')
            a.vmem('buffer_load_dword', 'v25', 'off', s(DBG, 4), 0, mods=f'offset:{D_NONCE} sc1')
            kvaddr(a, 26, 84)
            a.vmem('buffer_load_dword', 'v27', 'v26', 's[4:7]', 's84', mods='offen sc1')
        def st4(a):
            a.valu('v_readfirstlane_b32', s(sNONCE), 'v25')
            a.valu('v_readfirstlane_b32', 's85', 'v24')
            a.salu('s_add_u32', 's86', s(sNONCE), KVR)
            a.valu('v_subrev_u32', 'v27', 's86', 'v27')
            a.valu('v_cmp_lt_u32', 's[86:87]', 64, 'v27')
            a.salu('s_cmp_eq_u32', s(sNONCE), 0, nodst=True)
            a.salu('s_cselect_b64', 's[86:87]', -1, 's[86:87]')
            a.salu('s_cmp_lg_u64', 's[86:87]', 0, nodst=True)
            a.ins(f's_cbranch_scc1 {tag}_nt')
            ch.touch_kv()
            a.lines.append(f'{tag}_nt:')
        def late(a):
            q0, d0 = a.vm_seq, dict(a.done)
            get_nonce(a, 27)
            a.vm_seq, a.done = q0, d0
        ch.prologue(st1, st2, st3, st4, late)
        diag(a, 2)
        if hd: ldiag(a, 4, 26)
        a.salu('s_cmp_eq_u32', 's85', 1, nodst=True)
        a.ins(f's_cbranch_scc1 {tag}_run')
        a.salu('s_mov_b32', 's40', (1 << 24) if safe else TMO[0])
        a.label(f'{tag}_startpoll')
        a.vmem('buffer_load_dword', 'v3', 'off', s(DBG, 4), 0, mods=f'offset:{mode} sc1')
        a.wait(vm='all')
        a.valu('v_readfirstlane_b32', 's85', 'v3')
        a.salu('s_cmp_eq_u32', 's85', 1, nodst=True)
        a.ins(f's_cbranch_scc1 {tag}_run')
        if not safe:
            a.salu('s_cmp_eq_u32', 's85', 2, nodst=True)
            a.ins(f's_cbranch_scc1 {tag}_leave')
        a.ins('s_sleep 1')
        a.salu('s_sub_u32', 's40', 's40', 1)
        a.ins(f's_cbranch_scc0 {tag}_startpoll')
        if safe: a.ins('s_endpgm')
        else:
            a.valu('v_mov_b32', 'v4', 2); a.valu('v_mov_b32', 'v5', 0)
            a.salu('s_mov_b64', 'exec', 1)
            a.vmem('buffer_atomic_cmpswap', 'v[4:5]', 'off', s(DBG, 4), 0, mods=f'offset:{D_MODE}', load=False)
            a.salu('s_mov_b64', 'exec', -1)
            a.salu('s_mov_b32', 's40', 1 << 20)
            a.ins(f's_branch {tag}_startpoll')
            a.label(f'{tag}_leave')
            a.valu('v_lshrrev_b32', 'v0', 4, v(C.LH))
            a.salu('s_mov_b32', 's32', s(C.sW))
            a.ins('s_load_dwordx16 s[48:63], s[0:1], 0')
            a.ins('s_waitcnt lgkmcnt(0)')
            a.ins('s_branch L_helper')
        a.label(f'{tag}_run')
        diag(a, 3)
        a.salu('s_cmp_eq_u64', 's[86:87]', 0, nodst=True)
        a.ins(f's_cbranch_scc1 {tag}_kvok')
        kvwait(a, f'{tag}_kv0', KVR, 2, 3)
        ch.touch_kv()
        a.ins('s_waitcnt vmcnt(0)')
        a.label(f'{tag}_kvok')
        ch.loop_init()
        diag(a, 4)
        if not hd: ldiag(a, 4, 24)
        if leak: a.ins('s_memrealtime s[90:91]'); a.ins('s_waitcnt lgkmcnt(0)'); a.salu('s_mov_b32', 's101', 's90')
        if not safe and DIAG[0]: print(ch.outs, [(j[1], j[3] // 1024) for j in ch.sched])
        ch.step()
        diag(a, 5)
        ldiag(a, 6, 24)
        if leak and not safe:
            a.ins('s_memrealtime s[90:91]'); a.ins('s_waitcnt lgkmcnt(0)')
            if leak in (1, 4, 5): a.salu('s_add_u32', 's92', 's100', 20000)
            elif leak == 2: a.salu('s_add_u32', 's92', 's90', 1000)
            elif leak == 3: a.salu('s_add_u32', 's92', 's101', 20000)
            a.label('L_leak')
            a.ins('s_memrealtime s[90:91]'); a.ins('s_waitcnt lgkmcnt(0)')
            a.salu('s_sub_u32', 's93', 's92', 's90'); a.salu('s_cmp_gt_i32', 's93', 0, nodst=True)
            a.ins('s_cbranch_scc1 L_leak')
        a.ins('s_endpgm')
        ch.load_sub()
    chain_body('cf', False)
    a.label('L_chain_safe')
    a.forget()
    chain_body('cs', True)
    def mode_check(lab):
        a.salu('s_mov_b32', 's40', 4 * TMO[0])
        a.label(f'{lab}_w')
        a.vmem('buffer_load_dword', 'v250', 'off', s(DBG, 4), 0, mods=f'offset:{D_MODE} sc1')
        a.wait(vm='all')
        a.valu('v_readfirstlane_b32', 's41', 'v250')
        a.salu('s_cmp_lg_u32', 's41', 0, nodst=True)
        a.ins(f's_cbranch_scc1 {lab}_known')
        a.salu('s_sub_u32', 's40', 's40', 1)
        a.ins(f's_cbranch_scc1 {lab}_force')
        a.ins('s_sleep 2')
        a.ins(f's_branch {lab}_w')
        a.label(f'{lab}_force')
        a.valu('v_mov_b32', 'v250', 2); a.valu('v_mov_b32', 'v251', 0)
        a.salu('s_mov_b64', 'exec', 1)
        a.vmem('buffer_atomic_cmpswap', 'v[250:251]', 'off', s(DBG, 4), 0, mods=f'offset:{D_MODE}', load=False)
        a.salu('s_mov_b64', 'exec', -1)
        a.ins('s_waitcnt vmcnt(0)')
        a.salu('s_mov_b32', 's40', 4 * TMO[0])
        a.ins(f's_branch {lab}_w')
        a.label(f'{lab}_known')
    a.forget()
    a.label('L_helper')
    DV[0] = 249
    a.forget()
    a.ins('s_load_dwordx16 s[64:79], s[0:1], 64')
    pool_of(a)
    a.label('L_pool')
    a.salu('s_lshl_b32', 's35', 's33', 2); a.salu('s_add_u32', 's35', 's35', D_POOL)
    ticket(a, 34, 's35')
    a.salu('s_mov_b32', 's36', 's33')
    a.salu('s_or_b32', 's33', 's34', 's32')
    a.salu('s_cmp_lg_u32', 's33', 0, nodst=True)
    a.ins('s_cbranch_scc1 L_helper1')
    a.ins('s_memrealtime s[90:91]'); a.ins('s_waitcnt lgkmcnt(0)')
    a.salu('s_lshl_b32', 's90', 's90', 8); a.salu('s_or_b32', 's90', 's90', 1)
    a.valu('v_mov_b32', 'v250', 's90'); a.valu('v_mov_b32', 'v251', 0)
    a.salu('s_mov_b64', 'exec', 1)
    a.vmem('buffer_atomic_cmpswap', 'v[250:251]', 'off', s(DBG, 4), 0, mods=f'offset:{D_NONCE}', load=False)
    a.salu('s_mov_b64', 'exec', -1)
    a.label('L_helper1')
    diag(a, 9)
    a.salu('s_cmp_ge_u32', 's34', 32, nodst=True)
    a.ins('s_cbranch_scc1 L_qkv_next')
    a.salu('s_cmp_ge_u32', 's36', 7, nodst=True)
    a.ins('s_cbranch_scc1 L_qkv_next')
    if pm:
        a.salu('s_mov_b32', 's38', 0)
        a.salu('s_cmp_eq_u32', 's36', 6, nodst=True)
        a.ins('s_cbranch_scc1 L_copy')
        a.salu('s_lshl_b32', 's36', 's36', 5); a.salu('s_add_u32', 's36', 's36', 's34')
        a.salu('s_mul_i32', 's37', 's36', 171); a.salu('s_lshr_b32', 's37', 's37', 10)
        a.salu('s_mul_i32', 's38', 's37', 6); a.salu('s_sub_u32', 's36', 's36', 's38')
        a.salu('s_lshl_b32', 's36', 's36', 5); a.salu('s_add_u32', 's36', 's36', 's37')
        a.ins('s_branch L_job')
    a.salu('s_cmp_eq_u32', 's36', 6, nodst=True)
    a.salu('s_cselect_b32', 's36', 's34', 's36')
    a.ins('s_cbranch_scc1 L_job')
    a.salu('s_max_u32', 's37', 's36', 4); a.salu('s_sub_u32', 's37', 's37', 4); a.salu('s_mul_i32', 's37', 's37', 5)
    a.salu('s_mul_i32', 's38', 's36', 7); a.salu('s_sub_u32', 's38', 's38', 's37')
    a.salu('s_cmp_lt_u32', 's36', 4, nodst=True); a.salu('s_cselect_b32', 's39', 7, 2)
    a.salu('s_mul_i32', 's36', 's36', 25); a.salu('s_add_u32', 's36', 's36', 's37')
    a.salu('s_cmp_lt_u32', 's34', 's39', nodst=True)
    a.ins('s_cbranch_scc1 L_copy')
    a.salu('s_add_u32', 's36', 's36', 's34'); a.salu('s_sub_u32', 's36', 's36', 's39')
    if warm:
        a.salu('s_cmp_lg_u32', s(sNONCE), 0, nodst=True)
        a.ins('s_cbranch_scc1 L_nowm')
        a.salu('s_mul_i32', 's37', 's36', 24576)
        a.salu('s_mov_b32', 's14', 576 * 8192); a.salu('s_mov_b32', 's15', '0x20000')
        a.salu('s_mov_b32', 'm0', 155648)
        if warm == 1:
            a.valu('v_lshlrev_b32', 'v1', 7, 'v0'); a.valu('v_min_u32', 'v1', 24576 - 128, 'v1')
        else: a.valu('v_lshlrev_b32', 'v1', 4, 'v0')
        for p in [x for i, x in enumerate((58, 56, 54, 52)) if wm >> i & 1]:
            a.salu('s_mov_b64', 's[12:13]', s(p, 2))
            if warm == 1:
                a.raw('    buffer_load_dword v1, s[12:15], s37 offen lds')
            else:
                for i in range(6):
                    a.salu('s_add_u32', 's38', 's37', min(i * 4096, 21504 - 4096))
                    a.raw('    buffer_load_dwordx4 v1, s[12:15], s38 offen lds')
        a.label('L_nowm')
    a.salu('s_mul_i32', 's37', 's36', 205); a.salu('s_lshr_b32', 's37', 's37', 10)
    a.salu('s_mul_i32', 's38', 's37', 5); a.salu('s_sub_u32', 's36', 's36', 's38'); a.salu('s_add_u32', 's36', 's36', 1)
    a.salu('s_lshl_b32', 's36', 's36', 5); a.salu('s_add_u32', 's36', 's36', 's37')
    if hd:
        a.salu('s_cmp_lt_u32', 's36', 32 * hg, nodst=True); a.ins('s_cbranch_scc1 L_job')
        for i in range(hd): a.ins('s_sleep 127')
    a.ins('s_branch L_job')
    a.label('L_copy')
    if 1:
        a.salu('s_add_u32', 's36', 's38', 's34')
        a.salu('s_mul_i32', 's36', 's36', 11); a.salu('s_and_b32', 's36', 's36', 31)
        a.salu('s_cmp_ge_u32', 's36', 27 if cp else 0, nodst=True)
        a.ins('s_cbranch_scc1 ' + ('L_cdone' if pm else 'L_qkv_next'))
        a.salu('s_mul_i32', 's33', 's36', 57); a.salu('s_lshr_b32', 's33', 's33', 9)
        a.salu('s_mul_i32', 's37', 's33', 9); a.salu('s_sub_u32', 's37', 's36', 's37')
        a.salu('s_lshl_b32', 's36', 's37', 2); a.salu('s_add_u32', 's36', 's36', 1); a.salu('s_min_u32', 's36', 's36', 31)
        a.salu('s_lshr_b32', 's39', 's52', 8); a.salu('s_sub_u32', 's36', 's36', 's39'); a.salu('s_and_b32', 's36', 's36', 31)
        a.salu('s_lshl_b32', 's36', 's36', 8)
        a.salu('s_mov_b32', 's14', 576 * 8192); a.salu('s_mov_b32', 's15', '0x20000')
        a.valu('v_lshrrev_b32', 'v1', 4, 'v0'); a.valu('v_lshlrev_b32', 'v1', 13, 'v1'); a.valu('v_and_b32', 'v2', 15, 'v0'); a.valu('v_lshl_add_u32', 'v1', 'v2', 4, 'v1')
        a.valu('v_lshlrev_b32', 'v2', 4, 'v0')
        NR = 3 if kw.get('swn', 4) < 4 else 2
        a.salu('s_mul_i32', 's40', 's33', NR); a.salu('s_mul_i32', 's39', 's40', 192 * 256); a.salu('s_lshl_b32', 's41', 's37', 19); a.salu('s_add_u32', 's39', 's39', 's41')
        a.salu('s_add_u32', 's39', 's39', C.WS_CPY)
        for h_ in range(NR):
            a.salu('s_add_u32', 's41', 's40', h_)
            a.salu('s_cmp_lt_u32', 's41', 3, nodst=True)
            a.salu('s_cselect_b64', 's[12:13]', 's[52:53]', 's[54:55]')
            a.salu('s_cselect_b32', 's42', 0, 3)
            a.salu('s_cmp_ge_u32', 's41', 6, nodst=True); a.salu('s_cselect_b64', 's[12:13]', 's[56:57]', 's[12:13]'); a.salu('s_cselect_b32', 's42', 6, 's42')
            a.salu('s_sub_u32', 's41', 's41', 's42')
            a.salu('s_mul_i32', 's38', 's41', 192 * 8192); a.salu('s_add_u32', 's38', 's38', 's36')
            for i in range(12):
                a.vmem('buffer_load_dwordx4', v(8 + 48 * h_ + 4 * i, 4), 'v1', 's[12:15]', 's38', mods='offen')
                a.salu('s_add_u32', 's38', 's38', 16 * 8192)
        a.vmem('buffer_load_dword', 'v3', 'off', s(DBG, 4), 0, mods=f'offset:{D_NONCE} sc1')
        a.wait(vm='all')
        for i in range(12 * NR):
            a.vmem('buffer_store_dwordx4', v(8 + 4 * i, 4), 'v2', 's[4:7]', 's39', mods='offen sc1', load=False, data=v(8 + 4 * i, 4))
            a.salu('s_add_u32', 's39', 's39', 4096)
        a.valu('v_readfirstlane_b32', s(sNONCE), 'v3')
        get_nonce(a, 3)
        a.salu('s_lshl_b32', 's37', 's37', 7); a.salu('s_lshl_b32', 's36', 's33', 2); a.salu('s_add_u32', 's36', 's36', 's32')
        a.salu('s_lshl_b32', 's36', 's36', 2); a.salu('s_add_u32', 's37', 's37', 's36'); a.salu('s_add_u32', 's37', 's37', C.SY_CPY)
        a.valu('v_mov_b32', 'v3', s(sNONCE))
        a.ins('s_waitcnt vmcnt(0)')
        a.salu('s_mov_b64', 'exec', 1)
        a.vmem('buffer_store_dword', 'v3', 'off', 's[4:7]', 's37', mods='sc1', load=False)
        a.salu('s_mov_b64', 'exec', -1)
        diag(a, 44)
        if pm:
            a.label('L_cdone')
            if pm == 1: a.ins('s_endpgm')
            a.salu('s_add_u32', s(S.sD0), 's34', 112)
            a.ins('s_waitcnt lgkmcnt(0)')
            a.ins('s_branch L_sjob')
    a.label('L_qkv_next')
    if qm:
        a.salu('s_bitcmp0_b32', qm, 's3', nodst=True); a.ins('s_cbranch_scc1 L_ssm_next')
    if qp:
        pool_of(a)
        a.salu('s_cmp_eq_u32', 's33', 7, nodst=True)
        a.ins('s_cbranch_scc1 L_qscan')
        a.label('L_qtake')
        a.salu('s_lshl_b32', 's35', 's33', 2); a.salu('s_add_u32', 's35', 's35', D_QP)
        ticket(a, 34, 's35')
        a.salu('s_mul_i32', 's36', 's33', 19); a.salu('s_add_u32', 's36', 's36', 's34')
        a.salu('s_cmp_ge_u32', 's34', 19, nodst=True); a.salu('s_cselect_b32', 's36', 128, 's36')
        a.salu('s_cmp_lt_u32', 's36', 128, nodst=True)
        a.ins('s_cbranch_scc1 L_qjob')
        a.label('L_qscan')
        scan(a, D_QP, 2)
        a.salu('s_cmp_lt_u32', 's33', 7, nodst=True)
        a.ins('s_cbranch_scc1 L_qtake')
        a.ins('s_branch L_ssm_next')
        a.label('L_qjob')
        a.salu('s_and_b32', 's37', 's36', 7); a.salu('s_lshl_b32', 's37', 's37', 4); a.salu('s_lshr_b32', 's36', 's36', 3)
        a.salu('s_add_u32', 's36', 's36', 's37'); a.salu('s_add_u32', 's36', 's36', 192)
    else:
        ticket(a, 36, D_HELP)
        a.salu('s_add_u32', 's36', 's36', 192)
        a.salu('s_cmp_ge_u32', 's36', 320, nodst=True)
        a.ins('s_cbranch_scc1 L_ssm_next')
    a.label('L_job')
    a.salu('s_and_b32', s(Q.sHh), 's36', 15); a.salu('s_lshl_b32', s(Q.sHh), s(Q.sHh), 1)
    a.salu('s_bfe_u32', s(Q.sM), 's36', '0x10004')
    a.salu('s_lshr_b32', s(Q.sSEG), 's36', 5)
    a.salu('s_mul_i32', 's33', s(Q.sM), 6); a.salu('s_add_u32', 's33', 's33', s(Q.sSEG))
    a.salu('s_add_u32', s(Q.sM), s(Q.sM), 1)
    a.salu('s_lshr_b32', 's37', 's36', 4); a.salu('s_sub_u32', 's38', 's37', 12)
    a.salu('s_cmp_ge_u32', 's36', 192, nodst=True)
    a.salu('s_cselect_b32', s(Q.sM), 0, s(Q.sM))
    a.salu('s_cselect_b32', s(Q.sSEG), 's38', s(Q.sSEG))
    a.salu('s_cselect_b32', 's33', 's37', 's33')
    a.salu('s_cselect_b32', s(Q.sSTR), 8, 6)
    def nonce_early(a):
        a.valu('v_mov_b32', 'v28', s(sNONCE))
        a.salu('s_cmp_lg_u32', s(sNONCE), 0, nodst=True)
        a.ins('s_cbranch_scc1 L_ne')
        a.ins(f'buffer_load_dword v28, off, s[{DBG}:{DBG+3}], 0 offset:{D_NONCE} sc1')
        if wl:
            a.salu('s_cmp_ge_u32', 's36', 192, nodst=True)
            a.ins('s_cbranch_scc1 L_ne')
            a.salu('s_mul_i32', 's37', 's36', 24576)
            a.salu('s_mov_b32', 's46', 576 * 8192); a.salu('s_mov_b32', 's47', '0x20000')
            a.valu('v_lshlrev_b32', 'v29', 7, 'v0'); a.valu('v_min_u32', 'v29', 24576 - 128, 'v29')
            for p in [x for i, x in enumerate((58, 56, 54, 52)) if wl >> i & 1]:
                a.salu('s_mov_b64', 's[44:45]', s(p, 2))
                a.ins('buffer_load_dword v30, v29, s[44:47], s37 offen')
        a.lines.append('L_ne:')
    Q.qkv_role(a, 'qk', 48, 52, sNONCE, 33, at=(nat, nonce_early), late=lambda a: (a.valu('v_readfirstlane_b32', s(sNONCE), 'v28'), get_nonce(a, 25), dsel(a, 8)), qw=qw, qx=qx, cop=cop)
    dsel(a, 6)
    a.salu('s_cmp_ge_u32', 's36', 64, nodst=True)
    a.ins('s_cbranch_scc1 L_qkv_next')
    a.salu('s_cmp_lt_u32', 's36', 32, nodst=True)
    a.ins('s_cbranch_scc1 ' + ('L_qkv_next' if pm else 'L_exit'))
    if xs & 8: a.ins('s_endpgm')
    Q.memkv_role(a, 'mk', sNONCE, slp=msl)
    diag(a, 1)
    a.ins('s_endpgm')
    a.label('L_ssm_next')
    if xs & 1: a.ins('s_branch L_phase2')
    if sm:
        a.salu('s_bitcmp0_b32', sm, 's3', nodst=True); a.ins('s_cbranch_scc1 L_phase2')
    if sp:
        pool_of(a)
        a.salu('s_cmp_ge_u32', 's33', 6, nodst=True)
        a.ins('s_cbranch_scc1 L_sscan')
        a.label('L_stake')
        a.salu('s_lshl_b32', 's35', 's33', 2); a.salu('s_add_u32', 's35', 's35', D_SP)
        ticket(a, 34, 's35')
        NS = 19 if pm == 2 else 24
        a.salu('s_mul_i32', s(S.sD0), 's33', NS); a.salu('s_add_u32', s(S.sD0), s(S.sD0), 's34')
        a.salu('s_cmp_ge_u32', s(S.sD0), 112 if pm == 2 else 144, nodst=True); a.salu('s_cselect_b32', 's34', 99, 's34')
        a.salu('s_cmp_lt_u32', 's34', NS, nodst=True)
        a.ins('s_cbranch_scc1 L_sjob')
        a.label('L_sscan')
        scan(a, D_SP, 4 if pm == 2 else 3)
        a.salu('s_cmp_lt_u32', 's33', 7, nodst=True)
        a.ins('s_cbranch_scc1 L_stake')
        a.ins('s_branch L_phase2')
        a.label('L_sjob')
    else:
        ticket(a, S.sD0, D_SSM)
        a.salu('s_cmp_ge_u32', s(S.sD0), 144, nodst=True)
        a.ins('s_cbranch_scc1 L_phase2')
    a.salu('s_lshl_b32', s(S.sD0), s(S.sD0), 2)
    a.forget()
    S.ssm_job(a, 'ss', 62, 76, dg=lambda a, i: diag(a, 50 + i))
    diag(a, 7)
    if pm == 2:
        a.salu('s_cmp_ge_u32', s(S.sD0), 448, nodst=True); a.ins('s_cbranch_scc1 L_exit')
    a.ins('s_branch L_ssm_next')
    sWv, sCB = 32, 33
    a.label('L_phase2')
    a.forget()
    scan(a, D_POOL, False)
    a.salu('s_cmp_lt_u32', 's33', 7, nodst=True)
    a.ins('s_cbranch_scc1 L_pool')
    if wt > 1:
        a.salu('s_cmp_lg_u32', 's32', 0, nodst=True); a.ins('s_cbranch_scc1 L_nwb'); a.ins('buffer_wbl2 sc1'); a.ins('s_waitcnt vmcnt(0)'); a.label('L_nwb')
    get_nonce(a, 250)
    mode_check('mc2')
    a.salu('s_cmp_eq_u32', 's41', 1, nodst=True)
    a.ins('s_cbranch_scc1 L_phase2b')
    ticket(a, C.sH, D_CH2)
    a.salu('s_cmp_lt_u32', s(C.sH), 32, nodst=True)
    a.ins('s_cbranch_scc1 L_chain_safe')
    a.label('L_phase2b')
    diag(a, 55)
    a.salu('s_mov_b32', 's47', 0); a.salu('s_mov_b32', 's46', 0)
    if xs & 2: a.ins('s_branch L_done')
    if xi:
        a.salu('s_bitcmp1_b32', xi, 's3', nodst=True); a.ins('s_cbranch_scc1 L_done')
    a.salu('s_mov_b32', 's8', 's76'); a.salu('s_mov_b32', 's9', 's77')
    a.salu('s_mov_b32', 's10', 2048 * 2304); a.salu('s_mov_b32', 's11', '0x20000')
    pool_of(a)
    a.salu('s_cmp_ge_u32', 's33', 6, nodst=True)
    a.ins('s_cbranch_scc1 L_p2scan')
    a.label('L_p2take')
    a.salu('s_lshl_b32', 's35', 's33', 2); a.salu('s_add_u32', 's35', 's35', D_P2)
    ticket(a, 34, 's35')
    if pm: a.salu('s_bitcmp1_b32', 54, 's33', nodst=True)
    else: a.salu('s_cmp_lt_u32', 's33', 4, nodst=True)
    a.salu('s_cselect_b32', 's36', 6 if ng == 7 else 9, 5 if ng == 7 else 8)
    a.salu('s_cmp_lt_u32', 's34', 's36', nodst=True)
    a.ins('s_cbranch_scc1 L_att0')
    a.salu('s_sub_u32', 's34', 's34', 's36')
    a.salu('s_cmp_ge_u32', 's34', 21 if ng == 7 else 18, nodst=True)
    a.ins('s_cbranch_scc1 L_p2scan')
    if ng == 6: a.ins('s_branch L_op_start')
    a.salu('s_mul_i32', 's36', 's33', 3); a.salu('s_add_u32', 's36', 's36', 's34'); a.salu('s_sub_u32', 's37', 's34', 3)
    a.salu('s_cmp_lt_u32', 's34', 3, nodst=True)
    a.salu('s_cselect_b32', 's34', 's36', 's37'); a.salu('s_cselect_b32', 's33', 6, 's33')
    a.ins('s_branch L_op_start')
    a.label('L_p2scan')
    scan(a, D_P2, 5 if pm else 1)
    a.salu('s_cmp_lt_u32', 's33', 7, nodst=True)
    a.ins('s_cbranch_scc1 L_p2take')
    a.ins('s_branch L_done')
    a.label('L_att0')
    a.salu('s_mul_i32', 's34', 's34', 6); a.salu('s_add_u32', 's34', 's34', 's33')
    a.salu('s_cmp_ge_u32', 's34', 32 if ng == 7 else 48, nodst=True)
    a.ins('s_cbranch_scc1 L_done')
    a.label('L_att_next')
    a.forget()
    a.salu('s_lshr_b32', s(A.sSEG), 's34', 3)
    a.salu('s_and_b32', s(A.sHh), 's34', 7)
    a.salu('s_lshl_b32', s(A.sHh), s(A.sHh), 2)
    a.salu('s_add_u32', s(A.sHh), s(A.sHh), s(sWv))
    a.salu('s_lshr_b32', 's36', s(A.sHh), 1); a.salu('s_lshl_b32', 's36', 's36', 8); a.salu('s_add_u32', 's36', 's36', Q.SY_PRG)
    a.salu('s_mul_i32', 's37', s(A.sSEG), 43); a.salu('s_lshr_b32', 's37', 's37', 8)
    a.salu('s_mul_i32', 's41', 's37', 6); a.salu('s_sub_u32', 's41', s(A.sSEG), 's41')
    a.valu('v_and_b32', 'v1', 63, 'v0')
    a.valu('v_mul_u32_u24', 'v2', 6, 'v1'); a.valu('v_add_u32', 'v2', 's41', 'v2')
    a.valu('v_mov_b32', 'v4', 's37')
    a.salu('s_and_b32', 's41', s(A.sSEG), 7); a.salu('s_add_u32', 's41', 's41', 12)
    a.salu('s_lshr_b32', 's37', s(A.sSEG), 3)
    a.valu('v_mov_b32', 'v5', 's41'); a.valu('v_mov_b32', 'v6', 's37')
    a.valu('v_cmp_lt_u32', 'vcc', 1, 'v1')
    a.valu('v_cndmask_b32', 'v2', 'v2', 'v5', 'vcc'); a.valu('v_cndmask_b32', 'v4', 'v4', 'v6', 'vcc')
    a.valu('v_lshlrev_b32', 'v2', 2, 'v2')
    a.valu('v_add3_u32', 'v4', 'v4', s(sNONCE), 1)
    prog_wait(a, 'L_aw1', 2, 3, 'v4', 's36', 4)
    if ag:
        a.salu('s_cmp_ge_u32', s(A.sSEG), ag, nodst=True)
        a.ins('s_cbranch_scc1 L_nag')
        coarse_wait(a, A.sSEG, 3, 36)
        a.label('L_nag')
    def mid(a):
        a.fence()
        trace(a, 0, 34, 0)
        coarse_wait(a, A.sSEG, 199, 36)
        trace(a, 0, 34, 1)
        a.salu('s_add_u32', 's37', 's36', 128)
        a.salu('s_add_u32', 's41', s(A.sSEG), s(sNONCE)); a.salu('s_add_u32', 's41', 's41', 1)
        a.salu('s_lshl_b32', 's42', s(A.sHh), 7); a.salu('s_add_u32', 's42', 's42', C.SY_CHF)
        a.salu('s_cmp_ge_u32', s(A.sSEG), 62, nodst=True)
        a.salu('s_cselect_b32', 's37', 's42', 's37')
        a.salu('s_cselect_b32', 's42', 12, 8)
        a.valu('v_lshlrev_b32', 'v198', 2, 'v0'); a.valu('v_and_b32', 'v198', 's42', 'v198')
        prog_wait(a, 'L_aw2', 198, 199, 's41', 's37', ats)
        trace(a, 0, 34, 2)
    A.attn_job(a, 'at', ld_fl='sc1 nt' if ant else 'sc1', st_fl='sc1', mid=mid)
    a.salu('s_lshr_b32', 's40', 's34', 1)
    a.salu('s_lshl_b32', 's40', 's40', 7)
    a.salu('s_and_b32', 's41', s(A.sHh), 7)
    a.salu('s_lshl_b32', 's41', 's41', 2)
    a.salu('s_add_u32', 's40', 's40', 's41')
    a.salu('s_add_u32', 's40', 's40', SY_ATT)
    a.valu('v_mov_b32', 'v250', s(sNONCE))
    a.salu('s_cmp_ge_u32', s(A.sSEG), 58 if nw else 99, nodst=True)
    a.ins('s_cbranch_scc1 L_afl')
    a.ins('s_waitcnt vmcnt(0)')
    a.label('L_afl')
    a.salu('s_mov_b64', 'exec', 1)
    a.vmem('buffer_store_dword', 'v250', 'off', 's[4:7]', 's40', mods='sc1', load=False)
    a.salu('s_mov_b64', 'exec', -1)
    trace(a, 0, 34, 3)
    a.salu('s_add_u32', 's34', 's34', 32 if ng == 7 else 48)
    a.salu('s_cmp_lt_u32', 's34', 512, nodst=True)
    a.fence()
    a.ins('s_cbranch_scc1 L_att_next')
    a.ins('s_branch L_done')
    a.label('L_op_start')
    if xs & 4: a.ins('s_branch L_done')
    a.forget()
    a.salu('s_mov_b32', s(A.sSEG), 's33')
    a.salu('s_mov_b32', s(sCB), 's34')
    A.oproj_load(a, 58, sCB, sWv, nb=onb)
    diag(a, 56)
    a.salu('s_mov_b32', 's35', s(A.sSEG))
    a.label('L_op_seg')
    a.salu('s_sub_u32', 's40', 's35', 126); a.salu('s_lshr_b32', 's41', 's40', 1); a.salu('s_add_u32', 's41', 's41', 126)
    a.salu('s_and_b32', 's40', 's40', 1); a.salu('s_lshl_b32', 's40', 's40', 3); a.salu('s_lshl_b32', 's44', '0x00ff00ff', 's40')
    a.salu('s_cmp_ge_u32', 's35', 126 if hj else 999, nodst=True)
    a.salu('s_cselect_b32', s(A.sSEG), 's41', 's35'); a.salu('s_cselect_b32', 's44', 's44', -1); a.salu('s_mov_b32', 's45', 's44')
    a.salu('s_lshr_b32', 's43', s(A.sSEG), 1)
    a.salu('s_add_u32', 's43', 's43', 1)
    a.salu('s_min_u32', 's43', 's43', 63)
    a.salu('s_and_b32', 's36', s(sCB), 15); a.salu('s_lshl_b32', 's36', 's36', 8); a.salu('s_add_u32', 's36', 's36', Q.SY_PRG)
    a.salu('s_lshl_b32', 's94', s(sCB), 7); a.salu('s_add_u32', 's94', 's94', s(A.sSEG))
    trace(a, 65536, 94, 0)
    a.salu('s_cmp_ge_u32', s(A.sSEG), 120, nodst=True)
    a.ins('s_cbranch_scc1 L_nocw')
    coarse_wait(a, 43, 3, 36)
    a.label('L_nocw')
    trace(a, 65536, 94, 1)
    a.salu('s_lshr_b32', 's89', s(A.sSEG), 1)
    a.salu('s_lshl_b32', 's89', 's89', 2)
    a.salu('s_add_u32', 's89', 's89', s(sWv))
    a.salu('s_lshl_b32', 's89', 's89', 7)
    a.salu('s_add_u32', 's89', 's89', SY_ATT)
    a.salu('s_cmp_lg_u32', 's46', 0, nodst=True)
    a.ins('s_cbranch_scc1 L_opgo')
    flags_wait(a, 's89', 0, 8, 2, 3, sleep=ops)
    a.label('L_opgo')
    a.valu('v_lshrrev_b32', 'v5', 2, 'v1'); a.valu('v_and_b32', 'v5', 28, 'v5')
    a.salu('s_add_u32', 's89', 's89', (ng // 2) * 512)
    def post(a):
        a.ins('s_waitcnt vmcnt(0)')
        a.valu('v_cmp_ne_u32', 'vcc', s(sNONCE), 'v6')
        a.salu('s_cmp_eq_u64', 'vcc', 0, nodst=True); a.salu('s_cselect_b32', 's46', 1, 0)
    def pre(a):
        a.vmem('buffer_load_dword', 'v6', 'v5', 's[4:7]', 's89', mods='offen sc1')
    trace(a, 65536, 94, 2)
    A.oproj_seg(a, 'os', 8, sCB, sWv, A.sSEG, ofl='sc1' if wt else '', sMSK=44, pre=pre if ng % 2 == 0 else None, post=post if ng % 2 == 0 else None)
    trace(a, 65536, 94, 3)
    a.salu('s_add_u32', 's35', 's35', ng)
    a.salu('s_cmp_ge_u32', 's35', 130 if hj else 128, nodst=True)
    a.ins('s_cbranch_scc1 L_done')
    a.ins('s_barrier')
    a.ins('s_branch L_op_seg')
    a.label('L_done')
    diag(a, 10)
    ldiag(a, 7, 250)
    a.label('L_exit')
    a.ins('s_endpgm')
    a.raw(kd(n, 512, 256))

def build(**kw):
    hdr = open(f'/code/{NAME}.s.ref').read().split('; Override launch geometry')[0]
    a = Asm()
    a.raw(hdr.rstrip())
    a.raw('; @launch grid=(256,1,1) block=(256,1,1) lds=163840')
    a.raw('.amdgcn_target "amdgcn-amd-amdhsa--gfx950"')
    x0 = XCC[0]
    k_main(a, **kw)
    XCC[0] = x0
    return a.text()

if __name__ == '__main__':
    kw = dict(d0=70, dB=18, ks=2, pA=14, d1=68, dX=40, dZ=164, pbr=0, p1=4)
    open('one.s', 'w').write(build(**kw))
    for spec in sys.argv[1:]:
        k2 = dict((x.split('=')[0], int(x.split('=')[1])) for x in spec.split(','))
        open('one_' + spec.replace('=', '').replace(',', '_') + '.s', 'w').write(build(**{**kw, **k2}))
    XCC[0] = 9; TMO[0] = 1 << 8; FX[0] = 1
    open('one_safe.s', 'w').write(build(**kw))
    XCC[0] = 3; TMO[0] = 1 << 8; NCH[0] = 31; FX[0] = 0
    open('one_safe2.s', 'w').write(build(**kw))
    TMO[0] = 1 << 17; NCH[0] = 32
    LD[0] = 1
    open('one_l.s', 'w').write(build(**kw))
    for spec in sys.argv[1:]:
        k2 = dict((x.split('=')[0], int(x.split('=')[1])) for x in spec.split(','))
        open('one_' + spec.replace('=', '').replace(',', '_') + '_l.s', 'w').write(build(**{**kw, **k2}))
    LD[0] = 0
    DIAG[0] = 1
    for spec in sys.argv[1:]:
        k2 = dict((x.split('=')[0], int(x.split('=')[1])) for x in spec.split(','))
        open('one_' + spec.replace('=', '').replace(',', '_') + '_d.s', 'w').write(build(**{**kw, **k2}))
    open('one_d.s', 'w').write(build(**kw))
    print('ok')
```
